```python
import torch

def _softmax(x, axis=-1):
    return torch.softmax(x, dim=axis)
def _gelu(x):
    return torch.nn.functional.gelu(x, approximate="tanh")
def _silu(x):
    return torch.nn.functional.silu(x)
def _sigmoid(x):
    return torch.sigmoid(x)
def _layernorm(x, axis=-1, eps=1e-5):
    m = x.mean(dim=axis, keepdim=True)
    v = x.var(dim=axis, keepdim=True, unbiased=False)
    return (x - m) / torch.sqrt(v + eps)
def _scatter_add(tgt, idx, src, axis=0):
    return tgt.clone().index_add_(axis, idx, src)
def _segment_sum(src, seg, n):
    out = torch.zeros((n,) + src.shape[1:], dtype=src.dtype)
    return out.index_add_(0, seg, src)
def _pad(x, pw):
    flat = tuple(v for pair in reversed(pw) for v in pair)
    return torch.nn.functional.pad(x, flat)

kernel_name = 'gated_mix__softmax_full_mha__swiglu_ffn__prompt'

def setup_inputs():

    _w = (lambda a: (lambda t: t.to(torch.bfloat16) if t.is_floating_point() else t)(torch.as_tensor(a)))
    def _A_setup():
        B, S, D = 1, 2048, 512
        return {
            "x": _w((lambda *s: torch.randn(*s, dtype=torch.bfloat16) * 0.05)(B, S, D)),
            "wqkv": _w((lambda *s: torch.randn(*s, dtype=torch.bfloat16) * 0.8)(D, 3 * D)),
            "wo": _w((lambda *s: torch.randn(*s, dtype=torch.bfloat16) * 0.05)(D, D)),
        }
    _A_in = _A_setup()

    def _B_setup():
        B, S, D, F = 1, 2048, 512, 1792
        return {
            "x": _w((lambda *s: torch.randn(*s, dtype=torch.bfloat16) * 0.05)(B, S, D)),
            "w_gate": _w((lambda *s: torch.randn(*s, dtype=torch.bfloat16) * 0.1)(D, F)),
            "w_up": _w((lambda *s: torch.randn(*s, dtype=torch.bfloat16) * 0.1)(D, F)),
            "w_down": _w((lambda *s: torch.randn(*s, dtype=torch.bfloat16) * 0.1)(F, D)),
        }
    _B_in = _B_setup()

    return {
        "A_x": _A_in["x"],
        "A_wqkv": _A_in["wqkv"],
        "A_wo": _A_in["wo"],
        "B_x": _B_in["x"],
        "B_w_gate": _B_in["w_gate"],
        "B_w_up": _B_in["w_up"],
        "B_w_down": _B_in["w_down"],
        "gate_w": _w((lambda *s: torch.randn(*s, dtype=torch.bfloat16) * 0.05)(512) * 16.0),
    }

def reference(A_x, A_wqkv, A_wo, B_x, B_w_gate, B_w_up, B_w_down, gate_w):
    def _A_ref(x, wqkv, wo):
        B, S, D = x.shape
        H = 32; Dh = D // H
        qkv = (lambda x, *d: x.permute(*d))((x @ wqkv).reshape(B, S, 3, H, Dh), 2, 0, 3, 1, 4)
        q, k, v = qkv[0], qkv[1], qkv[2]
        scale = Dh ** -0.5
        scores = torch.einsum("bhqd,bhkd->bhqk", q, k) * scale
        p = _softmax(scores, axis=-1)
        o = torch.einsum("bhqk,bhkd->bhqd", p, v)
        return (lambda x, *d: x.permute(*d))(o, 0, 2, 1, 3).reshape(B, S, D) @ wo

    def _B_ref(x, w_gate, w_up, w_down):
        g = _silu(x @ w_gate)
        u = x @ w_up
        return (g * u) @ w_down

    x = A_x
    g = _sigmoid((x * gate_w).sum(-1, keepdims=True))
    a = _A_ref(x, A_wqkv, A_wo)
    b = _B_ref(x, B_w_gate, B_w_up, B_w_down)
    return g * a + (1 - g) * b
```

```python
import re

TRANS = ("v_exp_f32", "v_log_f32", "v_rcp_f32", "v_rsq_f32", "v_sqrt_f32", "v_sin_f32", "v_cos_f32",
         "v_exp_f16", "v_rcp_iflag_f32")

def regs_of(tok):
    tok = tok.strip()
    tok = tok.lstrip("-")
    m = re.fullmatch(r"abs\((.*)\)", tok)
    if m: tok = m.group(1)
    tok = tok.strip("|")
    m = re.fullmatch(r"([vsa])(\d+)", tok)
    if m: return {tok}
    m = re.fullmatch(r"([vsa])\[(\d+):(\d+)\]", tok)
    if m: return {"%s%d" % (m.group(1), i) for i in range(int(m.group(2)), int(m.group(3)) + 1)}
    if tok in ("vcc", "vcc_lo", "vcc_hi"): return {"vcc"}
    if tok in ("exec", "exec_lo", "exec_hi"): return {"exec"}
    if tok == "m0": return {"m0"}
    return set()

class Ins:
    def __init__(self, text):
        self.text = text
        t = text.split(";")[0].strip()
        parts = t.split(None, 1)
        self.mn = parts[0]
        rest = parts[1] if len(parts) > 1 else ""
        ops = [o.strip() for o in rest.split(",")] if rest else []
        mods = []
        if ops:
            last = ops[-1].split()
            if len(last) > 1:
                ops[-1] = last[0]
                mods = last[1:]
        self.ops = ops
        self.mods = mods
        mn = self.mn
        self.dst = set(); self.src = set()
        self.cls = "other"
        R = [regs_of(o) for o in ops]
        if mn.startswith("v_mfma") or mn.startswith("v_smfmac"):
            self.cls = "mfma"
            self.dst = R[0]
            self.A, self.B = R[1], R[2]
            if mn.startswith("v_smfmac"):
                self.C = R[0]; self.idx = R[3]
                self.src = R[0] | R[1] | R[2] | R[3]
            else:
                self.C = R[3]; self.idx = set()
                self.src = R[1] | R[2] | R[3]
            self.passes = 8 if "32x32" in mn else 4
        elif mn.startswith("v_"):
            self.cls = "valu"
            if mn.startswith("v_cmp"):
                self.dst = R[0]; self.src = set().union(*R[1:])
                if mn.startswith("v_cmpx"): self.dst |= {"exec"}
            elif "permlane" in mn and "swap" in mn:
                self.dst = R[0] | R[1]; self.src = R[0] | R[1]
            elif mn.startswith(("v_add_co", "v_sub_co", "v_addc_co", "v_subb_co", "v_subrev_co")):
                self.dst = R[0] | R[1]; self.src = set().union(*R[2:])
            elif mn == "v_nop":
                pass
            else:
                self.dst = R[0]; self.src = set().union(*R[1:]) if len(R) > 1 else set()
                if mn.startswith(("v_fmac", "v_pk_fmac", "v_dot2c", "v_writelane")) or "UNUSED_PRESERVE" in text:
                    self.src |= R[0]
                if mn.startswith("v_cndmask") and len(ops) == 3: self.src |= {"vcc"}
            self.trans = any(mn.startswith(x) for x in TRANS)
            self.dpp = any(m.startswith(("row_", "quad_perm", "wave_", "bank_mask", "row_mask")) for m in mods) or mn.endswith("_dpp")
        elif mn.startswith(("buffer_", "global_")):
            self.cls = "vmem"
            self.lds = ("lds" in mods) or ("_lds_" in mn)
            if "load" in mn and not self.lds:
                self.dst = R[0]; self.src = set().union(*R[1:])
            elif "atomic" in mn and "sc0" in mods:
                self.dst = R[0]; self.src = set().union(*R)
            else:
                self.src = set().union(*R) if R else set()
            if self.lds: self.src |= {"m0"}
            self.store = "store" in mn or "atomic" in mn
            self.wide = self.store and ("x4" in mn or "x3" in mn)
            self.data = R[0] if (mn.startswith("buffer_store")) else (R[1] if mn.startswith("global_store") else set())
        elif mn.startswith("ds_"):
            self.cls = "ds"
            if mn.startswith(("ds_read", "ds_bpermute", "ds_swizzle", "ds_permute")) or "_rtn" in mn:
                self.dst = R[0]; self.src = set().union(*R[1:])
            else:
                self.src = set().union(*R)
        elif mn.startswith(("s_load", "s_memtime", "s_memrealtime", "s_buffer_load")):
            self.cls = "smem"
            self.dst = R[0]; self.src = set().union(*R[1:]) if len(R) > 1 else set()
        elif mn.startswith("s_"):
            self.cls = "salu"
            if mn.startswith(("s_cmp", "s_bitcmp")):
                self.src = set().union(*R)
            elif mn.startswith(("s_waitcnt", "s_barrier", "s_nop", "s_branch", "s_cbranch", "s_endpgm", "s_setprio", "s_sleep")):
                pass
            else:
                self.dst = R[0] if R else set(); self.src = set().union(*R[1:]) if len(R) > 1 else set()
                if "saveexec" in mn: self.dst |= {"exec"}; self.src |= {"exec"}
        self.states = 1
        if mn == "s_nop": self.states = int(ops[0], 0) + 1

def isv(s): return {r for r in s if r[0] in "va" and r not in ("vcc",)}
def iss(s): return {r for r in s if r[0] == "s" or r == "vcc"}

def need(p, c):
    n = 0
    if p.cls == "valu":
        pv = isv(p.dst); ps = iss(p.dst)
        if c.cls == "mfma" and pv & c.src: n = max(n, 2)
        if c.cls == "valu":
            if p.trans and not c.trans and pv & c.src: n = max(n, 1)
            if ("permlane" in c.mn or c.dpp) and pv & c.src: n = max(n, 2)
            if c.mn.startswith(("v_readlane", "v_readfirstlane")) and pv & c.src: n = max(n, 1)
            if ps & c.src: n = max(n, 4 if c.mn.startswith(("v_readlane", "v_writelane")) else 2)
            if ("sdwa" in p.mn or "op_sel" in p.text) and pv & (c.src | c.dst): n = max(n, 1)
            if "exec" in p.dst: n = max(n, 5 if c.dpp else (4 if ("permlane" in c.mn or "lane" in c.mn) else 0))
        if c.cls == "vmem" and ps & c.src: n = max(n, 5)
        if c.cls == "mfma" and "exec" in p.dst: n = max(n, 4)
        if c.cls == "salu" and ps & c.src: n = max(n, 1)
    if p.cls == "mfma":
        big = 12 if p.passes == 8 else 8
        if c.cls == "mfma":
            if p.dst & (c.A | c.B | c.idx): n = max(n, big)
            if p.dst & c.C and p.dst != c.C: n = max(n, 10 if p.passes == 8 else 6)
            if p.dst & c.C and p.dst == c.C and p.passes != c.passes: n = max(n, 10 if p.passes == 8 else 6)
            if p.dst & c.dst and not (p.dst == c.C): n = max(n, 0)
        elif c.cls in ("valu", "vmem", "ds"):
            if p.dst & (c.src | c.dst): n = max(n, big)
            if c.cls == "valu" and p.C & c.dst: n = max(n, 7 if p.passes == 8 else 3)
    if p.cls == "salu":
        if "m0" in p.dst and c.cls == "vmem" and c.lds: n = max(n, 1)
    if p.cls == "vmem" and p.wide and c.cls == "valu" and p.data & c.dst: n = max(n, 2)
    if p.cls == "vmem" and p.wide and c.cls in ("ds", "vmem", "mfma") and p.data & c.dst: n = max(n, 1)
    return n

def check_trace(trace, name=""):
    errs = []
    W = 24
    vm = []
    lg = []
    sm = set()
    for i, c in enumerate(trace):
        d = 0
        for j in range(i - 1, max(-1, i - W), -1):
            p = trace[j]
            n = need(p, c)
            if n > d:
                errs.append("%s: hazard need %d have %d: [%s] -> [%s]" % (name, n, d, p.text.strip(), c.text.strip()))
            d += p.states
            if d > 20: break
        touched = c.src | c.dst
        for (ds_, t) in vm:
            if ds_ & touched and "kv-ok" not in c.text: errs.append("%s: vmcnt: [%s] pending at [%s]" % (name, t.strip(), c.text.strip()))
        for (ds_, t) in lg:
            if ds_ & touched: errs.append("%s: lgkm: [%s] pending at [%s]" % (name, t.strip(), c.text.strip()))
        if sm & touched: errs.append("%s: smem pending at [%s]" % (name, c.text.strip()))
        if c.mn == "s_waitcnt":
            m = re.search(r"vmcnt\((\d+)\)", c.text)
            if m:
                n = int(m.group(1)); vm = vm[len(vm) - n:] if n < len(vm) and n > 0 else ([] if n == 0 else vm)
            m = re.search(r"lgkmcnt\((\d+)\)", c.text)
            if m:
                n = int(m.group(1))
                if n == 0: lg = []; sm = set()
                else:
                    if sm: errs.append("%s: counted lgkmcnt with smem outstanding [%s]" % (name, c.text))
                    lg = lg[len(lg) - n:] if n < len(lg) else lg
        elif c.cls == "vmem":
            vm.append((set(c.dst), c.text))
            if len(vm) > 63: errs.append("%s: more than 63 vmem outstanding at [%s]" % (name, c.text.strip()))
        elif c.cls == "ds":
            lg.append((set(c.dst), c.text))
        elif c.cls == "smem":
            sm |= c.dst
    return errs

class Asm:
    def __init__(self):
        self.lines = []
        self.nlab = 0
    def __call__(self, s):
        for l in s.split("\n"):
            if l.strip(): self.lines.append(l if l.strip().endswith(":") or l.startswith(".") or l.startswith(";") else "    " + l.strip())
    def label(self, name): self.lines.append(name + ":")
    def newlabel(self, p="L"):
        self.nlab += 1
        return "%s_%d" % (p, self.nlab)
    def text(self): return "\n".join(self.lines) + "\n"

def check_text(text, verbose=True):
    lines = text.split("\n")
    items = []
    for l in lines:
        t = l.split(";")[0].strip()
        if not t or t.startswith("."): continue
        if t.endswith(":"): items.append(("label", t[:-1]))
        else: items.append(("ins", Ins(l)))
    labels = {v: i for i, (k, v) in enumerate(items) if k == "label"}
    errs = []
    trace = []; name = "start"
    def expand(lo, hi):
        out = []
        i = lo
        while i < hi:
            k, v = items[i]
            if k == "ins":
                out.append(v)
                if v.mn.startswith("s_cbranch") or v.mn == "s_branch":
                    tgt = labels.get(v.ops[0])
                    if tgt is not None and tgt <= i and tgt >= lo0[0]:
                        body = [x for (kk, x) in items[tgt:i + 1] if kk == "ins"]
                        out += body + body
            i += 1
        return out
    lo0 = [0]
    start = 0
    for i, (k, v) in enumerate(items):
        if k == "ins" and (v.mn == "s_endpgm" or (v.mn == "s_branch" and labels.get(v.ops[0], -1) > i)):
            lo0[0] = start
            nm = next((x for (kk, x) in items[start:i + 1] if kk == "label"), "?")
            errs += check_trace(expand(start, i + 1), nm)
            start = i + 1
    seen = set(); out = []
    for e in errs:
        if e not in seen: seen.add(e); out.append(e)
    return out
```

```python
import sys
sys.path.insert(0, "gen")
from asmlib import *

MB = 1 << 20
QF = 0; KF = 2*MB; VF = 4*MB; HF = 6*MB; OF = 14*MB; GG = 16*MB; BB = 17*MB
LOG2E = 1.4426950408889634
import struct
def f2u(x): return struct.unpack("<I", struct.pack("<f", x))[0]
def hx(x): return "0x%x" % (x & 0xffffffff)

def vr(b, n): return "v[%d:%d]" % (b, b + n - 1) if n > 1 else "v%d" % b
def sr(b, n): return "s[%d:%d]" % (b, b + n - 1) if n > 1 else "s%d" % b

def srd(a, d, base, off, size):
    if off == 0:
        a("s_mov_b32 s%d, s%d" % (d, base)); a("s_mov_b32 s%d, s%d" % (d + 1, base + 1))
    else:
        a("s_add_u32 s%d, s%d, %s" % (d, base, off if isinstance(off, str) else hx(off)))
        a("s_addc_u32 s%d, s%d, 0" % (d + 1, base + 1))
    a("s_mov_b32 s%d, %s" % (d + 2, size if isinstance(size, str) else hx(size)))
    a("s_mov_b32 s%d, 0x20000" % (d + 3))

def header(a, name):
    a(".globl %s" % name); a(".p2align 8"); a(".type %s,@function" % name); a.label(name)

def descriptor(name, nv, ns=102):
    acc = (nv + 3) // 4 * 4
    return """.p2align 6
.amdhsa_kernel %s
  .amdhsa_next_free_vgpr %d
  .amdhsa_next_free_sgpr %d
  .amdhsa_accum_offset %d
  .amdhsa_group_segment_fixed_size 0
  .amdhsa_kernarg_size 88
  .amdhsa_user_sgpr_count 2
  .amdhsa_user_sgpr_kernarg_segment_ptr 1
  .amdhsa_system_sgpr_workgroup_id_x 1
  .amdhsa_float_denorm_mode_32 3
.end_amdhsa_kernel
""" % (name, nv, ns, acc)

SLOT = 28672; NSLOT = 5
def k1(a):
    name = "k1_kernel"
    header(a, name)
    a("s_cmp_ge_u32 s2, 256")
    a("s_cbranch_scc1 K1_END")
    a("s_load_dwordx4 s[4:7], s[0:1], 0")
    a("s_load_dwordx4 s[8:11], s[0:1], 32")
    a("s_load_dwordx2 s[12:13], s[0:1], 56")
    a("s_load_dwordx2 s[14:15], s[0:1], 80")
    a("v_lshrrev_b32 v1, 6, v0")
    a("v_and_b32 v0, 63, v0")
    a("s_and_b32 s16, s2, 7")
    a("v_readfirstlane_b32 s3, v1")
    a("s_lshr_b32 s17, s2, 3")
    a("s_and_b32 s18, s16, 1")
    a("s_lshl_b32 s18, s18, 3")
    a("s_and_b32 s19, s17, 7")
    a("s_add_u32 s18, s18, s19")
    a("s_lshr_b32 s19, s16, 1")
    a("s_lshl_b32 s19, s19, 2")
    a("s_lshr_b32 s17, s17, 3")
    a("s_add_u32 s19, s19, s17")
    a("s_mov_b32 s58, %d" % SLOT)
    a("s_cmp_ge_u32 s3, 4")
    a("s_cbranch_scc1 K1_LOADER")
    a("s_and_b32 s36, s3, 1")
    a("s_lshr_b32 s37, s3, 1")
    AX0, AX1, AQ, AG0, AG1 = 2, 3, 4, 5, 6
    F = [12, 40]; ACC = 68
    def T(tt, c): return ACC + 16 * (2 * c + tt)
    a("v_and_b32 v7, 31, v0")
    a("v_lshrrev_b32 v8, 5, v0")
    a("v_and_b32 v9, 15, v0")
    a("v_bfe_u32 v10, v0, 4, 1")
    a("v_bfe_u32 v11, v0, 2, 2")
    a("v_xor_b32 v11, v8, v11")
    a("v_lshlrev_b32 v11, 4, v11")
    a("s_lshl_b32 s38, s36, 12")
    a("v_lshl_add_u32 v%d, v7, 6, v11" % AX0)
    a("v_add_u32 v%d, s38, v%d" % (AX0, AX0))
    a("v_xor_b32 v%d, 32, v%d" % (AX1, AX0))
    a("v_lshrrev_b32 v15, 2, v9")
    a("v_lshl_add_u32 v12, v8, 3, v15")
    a("v_bfe_u32 v13, v9, 1, 1")
    a("v_lshl_add_u32 v13, v10, 1, v13")
    a("v_and_b32 v14, 1, v9")
    a("v_lshlrev_b32 v14, 3, v14")
    a("v_lshrrev_b32 v16, 3, v9")
    a("v_xor_b32 v16, s37, v16")
    a("v_lshl_add_u32 v16, v16, 2, v13")
    a("v_lshl_add_u32 v16, v16, 4, v14")
    a("v_lshl_add_u32 v16, v12, 7, v16")
    a("v_add_u32 v%d, 8192, v16" % AQ)
    a("s_lshl_b32 s38, s37, 1")
    for u, R in ((0, AG0), (1, AG1)):
        if u: a("s_add_u32 s38, s38, 1")
        a("v_xor_b32 v16, s38, v15")
        a("v_lshl_add_u32 v16, v16, 2, v13")
        a("v_lshl_add_u32 v16, v16, 4, v14")
        a("v_lshl_add_u32 v16, v12, 8, v16")
        a("v_add_u32 v%d, 12288, v16" % R)
    for r in range(ACC, ACC + 160): a("v_mov_b32 v%d, 0" % r)
    a("s_mov_b32 s40, 0")
    a("s_mov_b32 s41, 16")
    def reads(f, ks):
        b = F[f]; L = []
        ax = AX0 if ks == 0 else AX1
        def X(tt): return "ds_read_b128 %s, v%d offset:%d" % (vr(b + 4 * tt, 4), ax, tt * 2048)
        def W(c, q):
            d = vr(b + 8 + 4 * c + 2 * q, 2)
            if c == 0: return "ds_read_b64_tr_b16 %s, v%d offset:%d" % (d, AQ, (16 * ks + 4 * q) * 128)
            u = (c - 1) % 2; up = (c - 1) // 2
            return "ds_read_b64_tr_b16 %s, v%d offset:%d" % (d, AG0 + u, (16 * ks + 4 * q) * 256 + up * 8192)
        return [X(0), W(0, 0), W(0, 1), X(1), W(1, 0), W(1, 1), W(2, 0), W(2, 1), W(3, 0), W(3, 1), W(4, 0), W(4, 1)]
    def mf(f, tt, c, swap):
        b = F[f]; x = vr(b + 4 * tt, 4); w = vr(b + 8 + 4 * c, 4); d = vr(T(tt, c), 16)
        if swap and c > 0: return "v_mfma_f32_32x32x16_bf16 %s, %s, %s, %s" % (d, x, w, d)
        return "v_mfma_f32_32x32x16_bf16 %s, %s, %s, %s" % (d, w, x, d)
    a("s_barrier")
    for r in reads(0, 0): a(r)
    a("s_cmp_ge_u32 s19, 14")
    a("s_cbranch_scc1 K1_ZLOOP")
    def loop(lab, swap):
        a(".p2align 6")
        a.label(lab)
        for ph in range(2):
            R = reads(1 - ph, 1 - ph)
            a("s_waitcnt lgkmcnt(0)")
            n = 0
            for c in range(5):
                for tt in range(2):
                    a(mf(ph, tt, c, swap))
                    if ph == 1 and n == 0: a("s_barrier")
                    if n < 6:
                        a(R[2 * n]); a(R[2 * n + 1])
                    if ph == 0 and n == 6:
                        a("s_add_u32 s40, s40, 1")
                        a("s_cmp_eq_u32 s40, %d" % NSLOT)
                        a("s_cselect_b32 s42, %s, s58" % (hx(-(NSLOT - 1) * SLOT)))
                        a("s_cselect_b32 s40, 0, s40")
                    if ph == 0 and n == 7:
                        for R_ in (AX0, AX1, AQ): a("v_add_u32 v%d, s42, v%d" % (R_, R_))
                    if ph == 0 and n == 8:
                        for R_ in (AG0, AG1): a("v_add_u32 v%d, s42, v%d" % (R_, R_))
                    if ph == 1 and n == 7:
                        a("s_sub_u32 s41, s41, 1")
                        a("s_cmp_lg_u32 s41, 0")
                    n += 1
        a("s_cbranch_scc1 %s" % lab)
    def epi_common():
        a("s_waitcnt lgkmcnt(0)")
        srd(a, 20, 14, 0, 6 * MB)
        srd(a, 24, 14, HF, 7 * MB)
        a("s_lshl_b32 s44, s18, 2")
        a("s_lshl_b32 s45, s36, 1")
        a("s_add_u32 s44, s44, s45")
        a("s_lshl_b32 s46, s19, 1")
        a("s_add_u32 s46, s46, s37")
        a("s_lshl_b32 s46, s46, 17")
        a("s_lshl_b32 s45, s44, 10")
        a("s_add_u32 s46, s46, s45")
        a("s_cmp_lt_u32 s19, 8")
        a("s_cselect_b32 s48, %s, 1.0" % hx(f2u(0.25 * LOG2E)))
        a("s_mov_b32 s49, s48")
        a("s_cselect_b32 s50, 0, 12")
        a("v_lshrrev_b32 v11, 1, v7")
        a("v_xor_b32 v11, v7, v11")
        a("v_and_b32 v11, 4, v11")
        a("v_mul_u32_u24 v11, 3, v11")
        a("v_and_b32 v11, s50, v11")
        a("v_xor_b32 v11, v7, v11")
        a("v_lshlrev_b32 v11, 4, v11")
        a("v_lshl_add_u32 v11, v8, 9, v11")
        a("v_lshlrev_b32 v2, 4, v0")
        a("s_nop 7")
        TMP = 12
        for tt in range(2):
            b = T(tt, 0)
            for i in range(8): a("v_pk_mul_f32 %s, %s, s[48:49]" % (vr(b + 2 * i, 2), vr(b + 2 * i, 2)))
            for i in range(8): a("v_cvt_pk_bf16_f32 v%d, v%d, v%d" % (TMP + 8 * tt + i, b + 2 * i, b + 2 * i + 1))
            a("s_add_u32 s47, s46, 0x10000")
            a("buffer_store_dwordx4 %s, v11, s[20:23], s46 offen offset:%d" % (vr(TMP + 8 * tt, 4), tt * 1024))
            a("buffer_store_dwordx4 %s, v11, s[20:23], s47 offen offset:%d" % (vr(TMP + 8 * tt + 4, 4), tt * 1024))
    loop("K1_XLOOP", False)
    epi_common()
    a("s_mov_b32 s52, %s" % hx(f2u(-LOG2E))); a("s_mov_b32 s53, s52")
    a("s_mov_b32 s54, 1.0"); a("s_mov_b32 s55, 1.0")
    a("s_mul_i32 s56, s44, 112")
    a("s_lshl_b32 s57, s19, 3")
    a("s_add_u32 s56, s56, s57")
    a("s_lshl_b32 s57, s37, 2")
    a("s_add_u32 s56, s56, s57")
    a("s_lshl_b32 s56, s56, 10")
    a("s_add_u32 s57, s56, %d" % (112 * 1024))
    E = 228
    for tt in range(2):
        for u in range(2):
            G = T(tt, 1 + u); U = T(tt, 3 + u); P = 28 + 8 * (2 * tt + u)
            for i in range(8): a("v_pk_mul_f32 %s, %s, s[52:53]" % (vr(E + 2 * i, 2), vr(G + 2 * i, 2)))
            for i in range(16): a("v_exp_f32 v%d, v%d" % (E + i, E + i))
            for i in range(8): a("v_pk_mul_f32 %s, %s, %s" % (vr(G + 2 * i, 2), vr(G + 2 * i, 2), vr(U + 2 * i, 2)))
            for i in range(8): a("v_pk_add_f32 %s, %s, s[54:55]" % (vr(E + 2 * i, 2), vr(E + 2 * i, 2)))
            for i in range(16): a("v_rcp_f32 v%d, v%d" % (E + i, E + i))
            a("s_nop 0")
            for i in range(8): a("v_pk_mul_f32 %s, %s, %s" % (vr(G + 2 * i, 2), vr(G + 2 * i, 2), vr(E + 2 * i, 2)))
            for i in range(8): a("v_cvt_pk_bf16_f32 v%d, v%d, v%d" % (P + i, G + 2 * i, G + 2 * i + 1))
            for jj in range(2):
                a("buffer_store_dwordx4 %s, v2, s[24:27], s%d offen offset:%d" % (vr(P + 4 * jj, 4), 56 + tt, u * 2048 + jj * 1024))
    a("s_endpgm")
    loop("K1_ZLOOP", True)
    epi_common()
    a("v_lshlrev_b32 v3, 16, v10")
    a("v_lshl_add_u32 v3, v8, 8, v3")
    a("v_lshl_add_u32 v3, v9, 4, v3")
    a("s_sub_u32 s56, s19, 14")
    a("s_lshl_b32 s56, s56, 3")
    a("s_lshl_b32 s57, s37, 1")
    a("s_add_u32 s56, s56, s57")
    a("s_lshl_b32 s56, s56, 17")
    a("s_add_u32 s56, s56, s45")
    a("s_add_u32 s56, s56, %s" % hx(VF))
    n = 0
    for part in range(2):
        for u in range(2):
            a("s_add_u32 s57, s56, %s" % hx((4 * part + u) << 17))
            for tt in range(2):
                b = T(tt, 1 + 2 * part + u); P = 28 + 8 * (n % 4); n += 1
                for i in range(8): a("v_cvt_pk_bf16_f32 v%d, v%d, v%d" % (P + i, b + 2 * i, b + 2 * i + 1))
                for j in range(2):
                    a("buffer_store_dwordx4 %s, v3, s[20:23], s57 offen offset:%d" % (vr(P + 4 * j, 4), tt * 1024 + j * 512))
    a("s_endpgm")
    a.label("K1_LOADER")
    a("s_sub_u32 s36, s3, 4")
    a("s_waitcnt lgkmcnt(0)")
    a("s_lshl_b32 s38, s18, 17")
    srd(a, 20, 4, "s38", 128 * 1024)
    a("s_lshl_b32 s38, s19, 7")
    a("s_sub_u32 s39, %d, s38" % (512 * 3072))
    srd(a, 24, 6, "s38", "s39")
    a("s_cmp_ge_u32 s19, 14")
    a("s_cbranch_scc1 K1_LZ")
    a("s_lshl_b32 s38, s19, 8")
    a("s_sub_u32 s39, %d, s38" % (512 * 3584))
    srd(a, 28, 8, "s38", "s39")
    srd(a, 32, 10, "s38", "s39")
    a("s_mov_b32 s37, 3584")
    a("s_branch K1_LGO")
    a.label("K1_LZ")
    a("s_sub_u32 s38, s19, 14")
    a("s_lshl_b32 s38, s38, 9")
    a("s_add_u32 s38, s38, 2048")
    a("s_sub_u32 s39, %d, s38" % (512 * 3072))
    srd(a, 28, 6, "s38", "s39")
    a("s_add_u32 s38, s38, 256")
    a("s_sub_u32 s39, s39, 256")
    srd(a, 32, 6, "s38", "s39")
    a("s_mov_b32 s37, 3072")
    a.label("K1_LGO")
    a("v_lshrrev_b32 v8, 4, v0")
    a("v_and_b32 v9, 3, v0")
    a("v_xor_b32 v9, v9, v8")
    a("v_lshlrev_b32 v9, 4, v9")
    a("v_lshrrev_b32 v10, 2, v0")
    a("v_lshl_add_u32 v2, v10, 10, v9")
    a("s_lshl_b32 s38, s36, 15")
    a("v_add_u32 v2, s38, v2")
    a("v_add_u32 v3, %d, v2" % (16384 - 1024))
    a("v_and_b32 v9, 1, v8")
    a("v_lshlrev_b32 v9, 2, v9")
    a("v_and_b32 v10, 7, v0")
    a("v_xor_b32 v9, v9, v10")
    a("v_lshlrev_b32 v9, 4, v9")
    a("v_lshrrev_b32 v10, 3, v0")
    a("s_lshl_b32 s38, s36, 3")
    a("v_add_u32 v10, s38, v10")
    a("v_mul_u32_u24 v10, 3072, v10")
    a("v_add_u32 v4, v10, v9")
    a("v_lshlrev_b32 v9, 2, v8")
    a("v_and_b32 v10, 15, v0")
    a("v_xor_b32 v9, v9, v10")
    a("v_lshlrev_b32 v9, 4, v9")
    a("v_add_u32 v10, s38, v8")
    a("v_mul_u32_u24 v10, s37, v10")
    a("v_add_u32 v5, v10, v9")
    a("s_lshl_b32 s38, s37, 2")
    a("s_sub_u32 s38, s38, 1024")
    a("v_add_u32 v6, s38, v5")
    a("s_lshl_b32 s40, s36, 11")
    a("s_lshl_b32 s41, s36, 10")
    a("s_add_u32 s41, s41, 8192")
    a("s_add_u32 s42, s40, 12288")
    a("s_add_u32 s43, s40, 20480")
    a("s_mov_b32 s44, 0")
    a("s_mov_b32 s45, 0"); a("s_mov_b32 s46, 0"); a("s_mov_b32 s47, 0")
    a("s_lshl_b32 s48, s37, 5")
    def issue():
        a("s_mov_b32 m0, s40")
        a("s_add_u32 s44, s44, 1")
        a("buffer_load_dwordx4 v2, s[20:23], s45 offen lds")
        a("buffer_load_dwordx4 v3, s[20:23], s45 offen offset:1024 lds")
        a("s_mov_b32 m0, s41")
        a("s_cmp_eq_u32 s44, %d" % NSLOT)
        a("buffer_load_dwordx4 v4, s[24:27], s46 offen lds")
        a("s_mov_b32 m0, s42")
        a("s_cselect_b32 s49, %s, s58" % (hx(-(NSLOT - 1) * SLOT)))
        a("buffer_load_dwordx4 v5, s[28:31], s47 offen lds")
        a("buffer_load_dwordx4 v6, s[28:31], s47 offen offset:1024 lds")
        a("s_mov_b32 m0, s43")
        a("s_cselect_b32 s44, 0, s44")
        a("buffer_load_dwordx4 v5, s[32:35], s47 offen lds")
        a("buffer_load_dwordx4 v6, s[32:35], s47 offen offset:1024 lds")
        for r in (40, 41, 42, 43): a("s_add_u32 s%d, s%d, s49" % (r, r))
        a("s_add_u32 s45, s45, 64")
        a("s_add_u32 s46, s46, %d" % (32 * 3072))
        a("s_add_u32 s47, s47, s48")
    a("s_mov_b32 s50, 5")
    a.label("K1_LPRO")
    issue()
    a("s_sub_u32 s50, s50, 1")
    a("s_cmp_lg_u32 s50, 0")
    a("s_cbranch_scc1 K1_LPRO")
    a("s_waitcnt vmcnt(28)"); a("s_barrier")
    a("s_waitcnt vmcnt(21)"); a("s_barrier")
    a("s_mov_b32 s50, 11")
    a.label("K1_LLOOP")
    a("s_waitcnt vmcnt(14)"); a("s_barrier")
    issue()
    a("s_sub_u32 s50, s50, 1")
    a("s_cmp_lg_u32 s50, 0")
    a("s_cbranch_scc1 K1_LLOOP")
    a("s_waitcnt vmcnt(14)"); a("s_barrier")
    a("s_waitcnt vmcnt(7)"); a("s_barrier")
    a("s_waitcnt vmcnt(0)"); a("s_barrier")
    srd(a, 24, 12, 0, 1024)
    srd(a, 28, 14, GG, 16384)
    a("s_lshl_b32 s38, s19, 3")
    a("s_lshl_b32 s39, s36, 1")
    a("s_add_u32 s38, s38, s39")
    a("s_lshl_b32 s39, s38, 10")
    a("v_lshlrev_b32 v2, 4, v0")
    a("buffer_load_dwordx4 v[8:11], v2, s[24:27], 0 offen")
    a("buffer_load_dwordx4 v[12:15], v2, s[20:23], s39 offen")
    a("buffer_load_dwordx4 v[16:19], v2, s[20:23], s39 offen offset:1024")
    a("s_barrier")
    a("s_mov_b32 s40, 0xffff0000")
    a("s_waitcnt vmcnt(0)")
    for i in range(4):
        a("v_lshlrev_b32 v%d, 16, v%d" % (20 + 2 * i, 8 + i))
        a("v_and_b32 v%d, s40, v%d" % (21 + 2 * i, 8 + i))
    for t in range(2):
        x = 12 + 4 * t; acc = 40 + t
        for i in range(4):
            a("v_lshlrev_b32 v28, 16, v%d" % (x + i))
            a("v_and_b32 v29, s40, v%d" % (x + i))
            a("v_mul_f32 v28, v28, v%d" % (20 + 2 * i))
            a("v_mul_f32 v29, v29, v%d" % (21 + 2 * i))
            a("v_cvt_pk_bf16_f32 v28, v28, v29")
            a("v_and_b32 v29, s40, v28")
            a("v_lshlrev_b32 v28, 16, v28")
            if i == 0: a("v_add_f32 v%d, v28, v29" % acc)
            else:
                a("v_add_f32 v28, v28, v29")
                a("v_add_f32 v%d, v%d, v28" % (acc, acc))
    for m in ("row_shr:1", "row_shr:2", "row_shr:4", "row_shr:8"):
        a("s_nop 0")
        for t in range(2): a("v_add_f32_dpp v%d, v%d, v%d %s row_mask:0xf bank_mask:0xf bound_ctrl:0" % (40 + t, 40 + t, 40 + t, m))
    a("s_nop 0")
    for t in range(2): a("v_add_f32_dpp v%d, v%d, v%d row_bcast:15 row_mask:0xa bank_mask:0xf" % (40 + t, 40 + t, 40 + t))
    a("s_nop 0")
    for t in range(2): a("v_add_f32_dpp v%d, v%d, v%d row_bcast:31 row_mask:0xc bank_mask:0xf" % (40 + t, 40 + t, 40 + t))
    a("s_mov_b32 s41, %s" % hx(f2u(-LOG2E)))
    for t in range(2):
        z = 40 + t; o = 44 + 2 * t
        a("v_cvt_pk_bf16_f32 v%d, v%d, v%d" % (z, z, z))
        a("v_and_b32 v%d, s40, v%d" % (z, z))
        a("v_mul_f32 v%d, s41, v%d" % (z, z))
        a("v_exp_f32 v%d, v%d" % (z, z))
        a("s_nop 0")
        a("v_add_f32 v%d, 1.0, v%d" % (z, z))
        a("v_rcp_f32 v%d, v%d" % (z, z))
        a("s_nop 0")
        a("v_cvt_pk_bf16_f32 v%d, v%d, v%d" % (z, z, z))
        a("v_and_b32 v%d, s40, v%d" % (o, z))
        a("v_sub_f32 v%d, 1.0, v%d" % (z, o))
        a("v_cvt_pk_bf16_f32 v%d, v%d, v%d" % (z, z, z))
        a("v_and_b32 v%d, s40, v%d" % (o + 1, z))
    a("s_lshl_b32 s39, s18, 7")
    a("s_add_u32 s38, s38, s39")
    a("s_lshl_b32 s38, s38, 3")
    a("v_mov_b32 v2, 0")
    a("s_mov_b32 exec_lo, 0")
    a("s_mov_b32 exec_hi, 0x80000000")
    a("buffer_store_dwordx4 v[44:47], v2, s[28:31], s38 offen")
    a.label("K1_END")
    a("s_endpgm")
    return name, 256, "grid=(256,1,1) block=(512,1,1) lds=%d" % (NSLOT * SLOT)

def k2(a):
    name = "k2_kernel"
    header(a, name)
    Q = 8; S = [24, 40]; K = [56, 60]; V = [64, 72]; O = 80
    a("s_cmp_ge_u32 s2, 256")
    a("s_cbranch_scc1 K2_END")
    a("s_load_dwordx2 s[4:5], s[0:1], 80")
    a("v_lshrrev_b32 v1, 6, v0")
    a("v_and_b32 v0, 63, v0")
    a("s_and_b32 s20, s2, 7")
    a("v_readfirstlane_b32 s3, v1")
    a("s_lshl_b32 s20, s20, 2")
    a("s_bfe_u32 s21, s2, 0x20003")
    a("s_add_u32 s20, s20, s21")
    a("s_lshr_b32 s21, s2, 5")
    a("s_and_b32 s22, s3, 1")
    a("s_lshr_b32 s23, s3, 1")
    a("v_lshlrev_b32 v1, 4, v0")
    a("v_and_b32 v2, 15, v0")
    a("v_lshlrev_b32 v2, 4, v2")
    a("v_lshrrev_b32 v4, 5, v0")
    a("v_lshl_add_u32 v2, v4, 8, v2")
    a("v_mov_b32 v3, 0xdddddddd")
    a("s_lshl_b32 s24, s20, 16")
    a("s_lshl_b32 s25, s21, 3")
    a("s_lshl_b32 s26, s22, 2")
    a("s_add_u32 s25, s25, s26")
    a("s_lshl_b32 s27, s23, 14")
    a("s_add_u32 s27, s27, s24")
    a("s_add_u32 s26, s27, %s" % hx(KF))
    a("s_mov_b32 s30, 0x0000ffff"); a("s_mov_b32 s31, 0x0000ffff")
    for i in range(16): a("v_mov_b32 v%d, 0x3f803f80" % (V[0] + i))
    a("s_waitcnt lgkmcnt(0)")
    srd(a, 8, 4, 0, 4 * MB)
    srd(a, 12, 4, VF, 2 * MB)
    srd(a, 16, 4, OF, 2 * MB)
    for s in range(4):
        a("s_add_u32 s28, s23, %d" % s)
        a("s_and_b32 s28, s28, 3")
        a("s_add_u32 s28, s28, s25")
        if s == 0: a("s_mov_b32 s29, s28")
        a("s_lshl_b32 s28, s28, 10")
        a("s_add_u32 s28, s28, s24")
        a("buffer_load_dwordx4 %s, v1, s[8:11], s28 offen" % vr(Q + 4 * s, 4))
    def ldK(b):
        a("buffer_load_dwordx4 %s, v1, s[8:11], s26 offen" % vr(K[b], 4))
        a("s_add_u32 s26, s26, 1024")
    def ldV(b):
        a("s_mov_b64 exec, s[30:31]")
        a("buffer_load_dwordx4 %s, v2, s[12:15], s27 offen" % vr(V[b], 4))
        a("buffer_load_dwordx4 %s, v2, s[12:15], s27 offen offset:512" % vr(V[b] + 4, 4))
        a("s_mov_b64 exec, -1")
        a("s_add_u32 s27, s27, 1024")
    ldK(0); ldV(0); ldK(1)
    for i in range(64): a("v_mov_b32 v%d, 0" % (O + i))
    for i in range(8): a("v_mov_b32 v%d, 0" % (S[1] + 8 + i))
    def QK(sl, kb, sb): a("v_mfma_f32_32x32x16_bf16 %s, %s, %s, 0" % (vr(S[sb], 16), vr(K[kb], 4), vr(Q + 4 * sl, 4)))
    def PV(sl, vb, sb, j): a("v_smfmac_f32_32x32x32_bf16 %s, %s, %s, v3" % (vr(O + 16 * sl, 16), vr(V[vb] + 4 * j, 4), vr(S[sb] + 8 * j, 8)))
    a("s_mov_b32 s32, 8")
    a("s_waitcnt vmcnt(3)")
    QK(0, 0, 0)
    a("s_nop 15")
    a(".p2align 6")
    a.label("K2_LOOP")
    for b in range(2):
        for sl in range(4):
            sb = sl % 2
            def E(i): a("v_exp_f32 v%d, v%d" % (S[sb] + i, S[sb] + i))
            E(0); E(1)
            if sl == 0: PV(3, 1 - b, 1, 1); ldV(1 - b)
            else: PV(sl - 1, b, 1 - sb, 1)
            E(2); E(3); E(4)
            if sl == 3:
                a("s_waitcnt vmcnt(3)")
                QK(0, 1 - b, 0)
            else:
                QK(sl + 1, b, 1 - sb)
                if sl == 2: ldK(b)
            for i in range(5, 10): E(i)
            if sl == 0: a("s_waitcnt vmcnt(3)")
            PV(sl, b, sb, 0)
            if b == 1 and sl == 3:
                a("s_sub_u32 s32, s32, 1"); a("s_cmp_lg_u32 s32, 0")
            for i in range(10, 16): E(i)
    a("s_cbranch_scc1 K2_LOOP")
    a("s_nop 1")
    PV(3, 1, 1, 1)
    for s in range(1, 4):
        a("s_add_u32 s28, s23, %d" % s)
        a("s_and_b32 s28, s28, 3")
        a("s_lshl_b32 s28, s28, 1")
        a("s_add_u32 s28, s28, s22")
        a("s_mul_i32 s28, s28, 3")
        a("s_add_u32 s28, s28, %d" % (s - 1))
        a("s_mul_i32 s28, s28, 2304")
        a("v_add_u32 v%d, s28, v1" % (S[0] + 2 * s))
        a("v_lshl_add_u32 v%d, v0, 2, s28" % (S[0] + 2 * s + 1))
    for s in range(1, 4):
        if s == 3: a("s_nop 7")
        a("ds_write_b128 v%d, %s" % (S[0] + 2 * s, vr(O + 16 * s, 4)))
        a("ds_write_b128 v%d, %s offset:1024" % (S[0] + 2 * s, vr(O + 16 * s + 4, 4)))
        a("ds_write_b32 v%d, v%d offset:2048" % (S[0] + 2 * s + 1, O + 16 * s + 8))
    a("s_mul_i32 s28, s3, %d" % (3 * 2304))
    a("v_add_u32 v4, s28, v1")
    a("v_lshl_add_u32 v5, v0, 2, s28")
    a("s_waitcnt lgkmcnt(0)")
    a("s_barrier")
    for s in range(3):
        a("ds_read_b128 %s, v4 offset:%d" % (vr(O + 16 * (s + 1), 4), s * 2304))
        a("ds_read_b128 %s, v4 offset:%d" % (vr(O + 16 * (s + 1) + 4, 4), s * 2304 + 1024))
        a("ds_read_b32 v%d, v5 offset:%d" % (O + 16 * (s + 1) + 8, s * 2304 + 2048))
    for s in range(3):
        a("s_waitcnt lgkmcnt(%d)" % (6 - 3 * s))
        for i in range(9): a("v_add_f32 v%d, v%d, v%d" % (O + i, O + i, O + 16 * (s + 1) + i))
    a("s_mov_b32 s34, %s" % hx(f2u(2.0 ** -60)))
    a("v_mov_b32 v5, %s" % hx(f2u(2.0 ** 40)))
    a("v_mul_f32 v4, 0, v%d" % O)
    for i in range(1, 8): a("v_fmac_f32 v4, 0, v%d" % (O + i))
    a("v_med3_f32 v5, v%d, s34, v5" % (O + 8))
    a("v_add_f32 v5, v5, v4")
    a("v_cmp_eq_f32 vcc, v5, v%d" % (O + 8))
    a("s_nop 1")
    a("s_cmp_eq_u64 vcc, -1")
    a("s_cbranch_scc0 K2_SLOW")
    a.label("K2_NORM")
    a("v_rcp_f32 v4, v%d" % (O + 8))
    a("s_lshl_b32 s28, s29, 5")
    a("s_add_u32 s28, s28, s20")
    a("s_lshl_b32 s28, s28, 10")
    for i in range(8): a("v_mul_f32 v%d, v%d, v4" % (O + i, O + i))
    for i in range(4): a("v_cvt_pk_bf16_f32 v%d, v%d, v%d" % (S[0] + i, O + 2 * i, O + 2 * i + 1))
    a("buffer_store_dwordx4 %s, v1, s[16:19], s28 offen" % vr(S[0], 4))
    a.label("K2_END")
    a("s_endpgm")
    a.label("K2_SLOW")
    CB = O + 16
    a("s_waitcnt vmcnt(0)")
    a("s_add_u32 s26, s24, %s" % hx(KF))
    a("v_mov_b32 v4, 0xff800000")
    a("s_mov_b32 s32, 64")
    a.label("K2_SL1")
    ldK(0)
    a("s_waitcnt vmcnt(0)")
    QK(0, 0, 0)
    a("s_nop 15")
    for i in range(8): a("v_max3_f32 v4, v4, v%d, v%d" % (S[0] + 2 * i, S[0] + 2 * i + 1))
    a("s_sub_u32 s32, s32, 1"); a("s_cmp_lg_u32 s32, 0")
    a("s_cbranch_scc1 K2_SL1")
    a("v_mov_b32 v5, v4")
    a("s_nop 1")
    a("v_permlane32_swap_b32 v4, v5")
    a("s_nop 1")
    a("v_max_f32 v4, v4, v5")
    for i in range(16): a("v_sub_f32 v%d, 0, v4" % (CB + i))
    for i in range(16): a("v_mov_b32 v%d, 0" % (O + i))
    a("s_add_u32 s26, s24, %s" % hx(KF))
    a("s_mov_b32 s27, s24")
    a("s_mov_b32 s32, 64")
    a.label("K2_SL2")
    ldK(0); ldV(0)
    a("s_waitcnt vmcnt(0)")
    a("v_mfma_f32_32x32x16_bf16 %s, %s, %s, %s" % (vr(S[0], 16), vr(K[0], 4), vr(Q, 4), vr(CB, 16)))
    a("s_nop 15")
    for i in range(16): a("v_exp_f32 v%d, v%d" % (S[0] + i, S[0] + i))
    a("s_nop 1")
    PV(0, 0, 0, 0); PV(0, 0, 0, 1)
    a("s_sub_u32 s32, s32, 1"); a("s_cmp_lg_u32 s32, 0")
    a("s_cbranch_scc1 K2_SL2")
    a("s_nop 15")
    a("s_branch K2_NORM")
    a("s_endpgm")
    return name, 144, "grid=(256,1,1) block=(512,1,1) lds=%d" % (8 * 3 * 2304)

RED = 16896
def kgemm(a, name, P, wptr_off, actoff, NK, D, final):
    header(a, name)
    nk = NK // 4
    ACC = 16; ACT = 80; WF = 8
    RING = 4 * RED
    a("s_cmp_ge_u32 s2, 256")
    a("s_cbranch_scc1 %s_END" % P)
    a("s_load_dwordx2 s[4:5], s[0:1], 80")
    a("s_load_dwordx2 s[6:7], s[0:1], %d" % wptr_off)
    a("s_load_dwordx2 s[36:37], s[0:1], 64")
    a("v_lshrrev_b32 v1, 6, v0")
    a("v_and_b32 v0, 63, v0")
    a("s_and_b32 s20, s2, 7")
    a("v_readfirstlane_b32 s3, v1")
    a("s_lshl_b32 s20, s20, 2")
    a("s_bfe_u32 s21, s2, 0x20003")
    a("s_add_u32 s20, s20, s21")
    a("s_lshr_b32 s21, s2, 5")
    a("v_lshlrev_b32 v1, 4, v0")
    a("v_add_u32 v2, %d, v1" % (NK * 1024))
    a("v_bfe_u32 v7, v0, 4, 1")
    a("v_lshlrev_b32 v8, 2, v7")
    a("v_and_b32 v9, 7, v0")
    a("v_xor_b32 v8, v8, v9")
    a("v_lshlrev_b32 v8, 4, v8")
    a("v_lshrrev_b32 v9, 3, v0")
    a("v_lshl_add_u32 v3, v9, 10, v8")
    a("v_add_u32 v4, %d, v3" % (8192 - 1024))
    a("v_lshrrev_b32 v8, 5, v0")
    a("v_bfe_u32 v9, v0, 2, 2")
    a("v_lshl_add_u32 v8, v8, 2, v9")
    a("v_bfe_u32 v9, v0, 1, 1")
    a("v_lshl_add_u32 v9, v7, 1, v9")
    a("v_bfe_u32 v10, v0, 3, 1")
    a("v_lshl_add_u32 v9, v10, 2, v9")
    a("v_lshlrev_b32 v9, 4, v9")
    a("v_and_b32 v10, 1, v0")
    a("v_lshl_add_u32 v9, v10, 3, v9")
    a("v_lshl_add_u32 v9, v8, 7, v9")
    a("s_mul_i32 s22, s3, %d" % (D * 2048))
    a("s_add_u32 s22, s22, %d" % RING)
    a("v_add_u32 v5, s22, v9")
    a("v_xor_b32 v6, 64, v5")
    a("s_mul_i32 s24, s20, %d" % (2 * NK))
    a("s_mul_i32 s25, s3, %d" % nk)
    a("s_add_u32 s24, s24, s25")
    a("s_lshl_b32 s24, s24, 10")
    a("s_lshl_b32 s25, s25, 14")
    a("s_lshl_b32 s26, s21, 7")
    a("s_add_u32 s25, s25, s26")
    a("s_waitcnt lgkmcnt(0)")
    srd(a, 8, 4, actoff, 64 * NK * 1024)
    srd(a, 12, 6, 0, NK * 16 * 1024)
    def issue(sl):
        a("s_add_u32 m0, s22, %d" % (sl * 2048))
        a("buffer_load_dwordx4 %s, v1, s[8:11], s24 offen" % vr(ACT + 8 * sl, 4))
        a("buffer_load_dwordx4 %s, v2, s[8:11], s24 offen" % vr(ACT + 8 * sl + 4, 4))
        a("buffer_load_dwordx4 v3, s[12:15], s25 offen lds")
        a("buffer_load_dwordx4 v4, s[12:15], s25 offen offset:1024 lds")
        a("s_add_u32 s24, s24, 1024")
        a("s_add_u32 s25, s25, 16384")
    def step(sl, vm):
        a("s_waitcnt vmcnt(%d)" % vm)
        for ft in range(2):
            for q in range(2):
                a("ds_read_b64_tr_b16 %s, v%d offset:%d" % (vr(WF + 4 * ft + 2 * q, 2), 5 + ft, sl * 2048 + q * 1024))
        for ft in range(2):
            a("s_waitcnt lgkmcnt(%d)" % (2 - 2 * ft))
            for tt in range(2):
                d = vr(ACC + 16 * (2 * tt + ft), 16)
                a("v_mfma_f32_32x32x16_bf16 %s, %s, %s, %s" % (d, vr(WF + 4 * ft, 4), vr(ACT + 8 * sl + 4 * tt, 4), d))
    for sl in range(D): issue(sl)
    for r in range(ACC, ACC + 64): a("v_mov_b32 v%d, 0" % r)
    rounds = nk // D
    if rounds > 1:
        a("s_mov_b32 s32, %d" % (rounds - 1))
        a.label("%s_LOOP" % P)
        for sl in range(D):
            step(sl, 4 * (D - 1)); issue(sl)
        a("s_sub_u32 s32, s32, 1"); a("s_cmp_lg_u32 s32, 0")
        a("s_cbranch_scc1 %s_LOOP" % P)
    for sl in range(D): step(sl, 4 * (D - 1 - sl))
    a("v_lshrrev_b32 v8, 3, v0")
    a("v_and_b32 v9, 7, v0")
    a("s_lshl_b32 s26, s20, 6")
    a("s_lshl_b32 s27, s3, 4")
    a("s_add_u32 s26, s26, s27")
    a("v_lshlrev_b32 v10, 10, v8")
    a("v_lshl_add_u32 v10, v9, 4, v10")
    a("s_lshl_b32 s27, s26, 10")
    a("s_lshl_b32 s28, s21, 7")
    a("s_add_u32 s27, s27, s28")
    a("s_add_u32 s28, s27, 8192")
    if final:
        srd(a, 8, 4, BB, 2 * MB)
        srd(a, 12, 4, GG, 16384)
        srd(a, 16, 36, 0, 2 * MB)
        a("v_lshlrev_b32 v11, 3, v8")
        a("s_lshl_b32 s29, s26, 3")
        a("buffer_load_dwordx4 v[80:83], v10, s[8:11], s27 offen")
        a("buffer_load_dwordx4 v[84:87], v10, s[8:11], s28 offen")
        a("buffer_load_dwordx2 v[88:89], v11, s[12:15], s29 offen")
        a("buffer_load_dwordx2 v[90:91], v11, s[12:15], s29 offen offset:64")
    else:
        srd(a, 16, 4, BB, 2 * MB)
    a("s_mul_i32 s29, s3, %d" % RED)
    a("v_add_u32 v2, s29, v1")
    a("s_nop 7")
    for t in range(4):
        for g in range(4):
            a("ds_write_b128 v2, %s offset:%d" % (vr(ACC + 16 * t + 4 * g, 4), (t * 4 + g) * 1056))
    a("s_lshr_b32 s29, s3, 1")
    a("s_mul_i32 s29, s29, %d" % (8 * 1056))
    a("s_and_b32 s30, s3, 1")
    a("s_lshl_b32 s30, s30, 8")
    a("s_add_u32 s29, s29, s30")
    a("v_mul_u32_u24 v3, 1056, v9")
    a("v_lshl_add_u32 v3, v8, 4, v3")
    a("v_add_u32 v3, s29, v3")
    a("s_waitcnt lgkmcnt(0)")
    a("s_barrier")
    for p in range(2):
        for sw in range(4):
            for h in range(2):
                a("ds_read_b128 %s, v3 offset:%d" % (vr(ACC + 32 * p + 8 * sw + 4 * h, 4), sw * RED + h * 512 + p * 128))
    a("s_mov_b32 s30, 0xffff0000")
    for p in range(2):
        b = ACC + 32 * p
        a("s_waitcnt lgkmcnt(%d)" % (8 - 8 * p))
        for i in range(8): a("v_add_f32 v%d, v%d, v%d" % (b + i, b + i, b + 8 + i))
        for i in range(8): a("v_add_f32 v%d, v%d, v%d" % (b + 16 + i, b + 16 + i, b + 24 + i))
        for i in range(8): a("v_add_f32 v%d, v%d, v%d" % (b + i, b + i, b + 16 + i))
        if final:
            if p == 0: a("s_waitcnt vmcnt(0)")
            for i in range(4):
                a("v_lshlrev_b32 v%d, 16, v%d" % (b + 8 + 2 * i, 80 + 4 * p + i))
                a("v_and_b32 v%d, s30, v%d" % (b + 9 + 2 * i, 80 + 4 * p + i))
            for i in range(8): a("v_mul_f32 v%d, v%d, v%d" % (b + i, b + i, 88 + 2 * p))
            for i in range(8): a("v_fmac_f32 v%d, v%d, v%d" % (b + i, b + 8 + i, 89 + 2 * p))
        for i in range(4): a("v_cvt_pk_bf16_f32 v%d, v%d, v%d" % (b + 16 + i, b + 2 * i, b + 2 * i + 1))
        a("buffer_store_dwordx4 %s, v10, s[16:19], s%d offen" % (vr(b + 16, 4), 27 + p))
    a.label("%s_END" % P)
    a("s_endpgm")
    return name, ACT + 8 * D, "grid=(256,1,1) block=(256,1,1) lds=%d" % (RING + 4 * D * 2048)

def build(out):
    a = Asm()
    ks = []
    a('.amdgcn_target "amdgcn-amd-amdhsa--gfx950"')
    a(".text")
    ks.append(k1(a))
    ks.append(k2(a))
    ks.append(kgemm(a, "kd_kernel", "KD", 48, HF, 112, 4, False))
    ks.append(kgemm(a, "k3_kernel", "K3", 16, OF, 32, 8, True))
    body = a.text()
    errs = check_text(body)
    for e in errs: print("CHECK:", e)
    hdr = "; gated mix of softmax attention and SwiGLU FFN; generated by gen/gen1.py\n"
    for (n, nv, l) in ks: hdr += "; @launch kernel=%s %s\n" % (n, l)
    txt = hdr + body + '.section .rodata,"a"\n' + "".join(descriptor(n, nv) for (n, nv, l) in ks)
    open(out, "w").write(txt)
    print("wrote", out, len(txt), "bytes;", len(errs), "check errors")

if __name__ == "__main__":
    build(sys.argv[1] if len(sys.argv) > 1 else "gated_mix__softmax_full_mha__swiglu_ffn__prompt.s")
```

```python
import re

TRANS = ("v_exp_f32", "v_log_f32", "v_rcp_f32", "v_rsq_f32", "v_sqrt_f32", "v_sin_f32", "v_cos_f32",
         "v_exp_f16", "v_rcp_iflag_f32")

def regs_of(tok):
    tok = tok.strip()
    tok = tok.lstrip("-")
    m = re.fullmatch(r"abs\((.*)\)", tok)
    if m: tok = m.group(1)
    tok = tok.strip("|")
    m = re.fullmatch(r"([vsa])(\d+)", tok)
    if m: return {tok}
    m = re.fullmatch(r"([vsa])\[(\d+):(\d+)\]", tok)
    if m: return {"%s%d" % (m.group(1), i) for i in range(int(m.group(2)), int(m.group(3)) + 1)}
    if tok in ("vcc", "vcc_lo", "vcc_hi"): return {"vcc"}
    if tok in ("exec", "exec_lo", "exec_hi"): return {"exec"}
    if tok == "m0": return {"m0"}
    return set()

class Ins:
    def __init__(self, text):
        self.text = text
        t = text.split(";")[0].strip()
        parts = t.split(None, 1)
        self.mn = parts[0]
        rest = parts[1] if len(parts) > 1 else ""
        ops = [o.strip() for o in rest.split(",")] if rest else []
        mods = []
        if ops:
            last = ops[-1].split()
            if len(last) > 1:
                ops[-1] = last[0]
                mods = last[1:]
        self.ops = ops
        self.mods = mods
        mn = self.mn
        self.dst = set(); self.src = set()
        self.cls = "other"
        R = [regs_of(o) for o in ops]
        if mn.startswith("v_mfma") or mn.startswith("v_smfmac"):
            self.cls = "mfma"
            self.dst = R[0]
            self.A, self.B = R[1], R[2]
            if mn.startswith("v_smfmac"):
                self.C = R[0]; self.idx = R[3]
                self.src = R[0] | R[1] | R[2] | R[3]
            else:
                self.C = R[3]; self.idx = set()
                self.src = R[1] | R[2] | R[3]
            self.passes = 8 if "32x32" in mn else 4
        elif mn.startswith("v_"):
            self.cls = "valu"
            if mn.startswith("v_cmp"):
                self.dst = R[0]; self.src = set().union(*R[1:])
                if mn.startswith("v_cmpx"): self.dst |= {"exec"}
            elif "permlane" in mn and "swap" in mn:
                self.dst = R[0] | R[1]; self.src = R[0] | R[1]
            elif mn.startswith(("v_add_co", "v_sub_co", "v_addc_co", "v_subb_co", "v_subrev_co")):
                self.dst = R[0] | R[1]; self.src = set().union(*R[2:])
            elif mn == "v_nop":
                pass
            else:
                self.dst = R[0]; self.src = set().union(*R[1:]) if len(R) > 1 else set()
                if mn.startswith(("v_fmac", "v_pk_fmac", "v_dot2c", "v_writelane")) or "UNUSED_PRESERVE" in text:
                    self.src |= R[0]
                if mn.startswith("v_cndmask") and len(ops) == 3: self.src |= {"vcc"}
            self.trans = any(mn.startswith(x) for x in TRANS)
            self.dpp = any(m.startswith(("row_", "quad_perm", "wave_", "bank_mask", "row_mask")) for m in mods) or mn.endswith("_dpp")
        elif mn.startswith(("buffer_", "global_")):
            self.cls = "vmem"
            self.lds = ("lds" in mods) or ("_lds_" in mn)
            if "load" in mn and not self.lds:
                self.dst = R[0]; self.src = set().union(*R[1:])
            elif "atomic" in mn and "sc0" in mods:
                self.dst = R[0]; self.src = set().union(*R)
            else:
                self.src = set().union(*R) if R else set()
            if self.lds: self.src |= {"m0"}
            self.store = "store" in mn or "atomic" in mn
            self.wide = self.store and ("x4" in mn or "x3" in mn)
            self.data = R[0] if (mn.startswith("buffer_store")) else (R[1] if mn.startswith("global_store") else set())
        elif mn.startswith("ds_"):
            self.cls = "ds"
            if mn.startswith(("ds_read", "ds_bpermute", "ds_swizzle", "ds_permute")) or "_rtn" in mn:
                self.dst = R[0]; self.src = set().union(*R[1:])
            else:
                self.src = set().union(*R)
        elif mn.startswith(("s_load", "s_memtime", "s_memrealtime", "s_buffer_load")):
            self.cls = "smem"
            self.dst = R[0]; self.src = set().union(*R[1:]) if len(R) > 1 else set()
        elif mn.startswith("s_"):
            self.cls = "salu"
            if mn.startswith(("s_cmp", "s_bitcmp")):
                self.src = set().union(*R)
            elif mn.startswith(("s_waitcnt", "s_barrier", "s_nop", "s_branch", "s_cbranch", "s_endpgm", "s_setprio", "s_sleep")):
                pass
            else:
                self.dst = R[0] if R else set(); self.src = set().union(*R[1:]) if len(R) > 1 else set()
                if "saveexec" in mn: self.dst |= {"exec"}; self.src |= {"exec"}
        m = re.search(r";\s*W:(\S+)", text)
        if m: self.dst = set(self.dst) | {"tok_" + m.group(1)}
        m = re.search(r";\s*R:(\S+)", text)
        if m: self.src = set(self.src) | {"tok_" + t for t in m.group(1).split(",")}
        self.states = 1
        if mn == "s_nop": self.states = int(ops[0], 0) + 1

def isv(s): return {r for r in s if r[0] in "va" and r not in ("vcc",)}
def iss(s): return {r for r in s if r[0] == "s" or r == "vcc"}

def need(p, c):
    n = 0
    if p.cls == "valu":
        pv = isv(p.dst); ps = iss(p.dst)
        if c.cls == "mfma" and pv & c.src: n = max(n, 2)
        if c.cls == "valu":
            if p.trans and not c.trans and pv & c.src: n = max(n, 1)
            if ("permlane" in c.mn or c.dpp) and pv & c.src: n = max(n, 2)
            if c.mn.startswith(("v_readlane", "v_readfirstlane")) and pv & c.src: n = max(n, 1)
            if ps & c.src: n = max(n, 4 if c.mn.startswith(("v_readlane", "v_writelane")) else 2)
            if ("sdwa" in p.mn or "op_sel" in p.text) and pv & (c.src | c.dst): n = max(n, 1)
            if "exec" in p.dst: n = max(n, 5 if c.dpp else (4 if ("permlane" in c.mn or "lane" in c.mn) else 0))
        if c.cls == "vmem" and ps & c.src: n = max(n, 5)
        if c.cls == "mfma" and "exec" in p.dst: n = max(n, 4)
        if c.cls == "salu" and ps & c.src: n = max(n, 1)
    if p.cls == "mfma":
        big = 12 if p.passes == 8 else 8
        if c.cls == "mfma":
            if p.dst & (c.A | c.B | c.idx): n = max(n, big)
            if p.dst & c.C and p.dst != c.C: n = max(n, 10 if p.passes == 8 else 6)
            if p.dst & c.C and p.dst == c.C and p.passes != c.passes: n = max(n, 10 if p.passes == 8 else 6)
            if p.dst & c.dst and not (p.dst == c.C): n = max(n, 0)
        elif c.cls in ("valu", "vmem", "ds"):
            if p.dst & (c.src | c.dst): n = max(n, big)
            if c.cls == "valu" and p.C & c.dst: n = max(n, 7 if p.passes == 8 else 3)
    if p.cls == "salu":
        if "m0" in p.dst and c.cls == "vmem" and c.lds: n = max(n, 1)
    if p.cls == "vmem" and p.wide and c.cls == "valu" and p.data & c.dst: n = max(n, 2)
    if p.cls == "vmem" and p.wide and c.cls in ("ds", "vmem", "mfma") and p.data & c.dst: n = max(n, 1)
    return n

def check_trace(trace, name=""):
    errs = []
    W = 24
    vm = []
    lg = []
    sm = set()
    for i, c in enumerate(trace):
        d = 0
        for j in range(i - 1, max(-1, i - W), -1):
            p = trace[j]
            n = need(p, c)
            if n > d:
                errs.append("%s: hazard need %d have %d: [%s] -> [%s]" % (name, n, d, p.text.strip(), c.text.strip()))
            d += p.states
            if d > 20: break
        touched = c.src | c.dst
        for (ds_, t) in vm:
            if c.cls == "vmem" and not (isv(ds_) & touched) and not ({x for x in ds_ if x.startswith("tok_")} & c.src): continue
            if ds_ & touched and "kv-ok" not in c.text and not (c.cls == "vmem" and "dummy" in c.text): errs.append("%s: vmcnt: [%s] pending at [%s]" % (name, t.strip(), c.text.strip()))
        for (ds_, t) in lg:
            if ds_ & touched: errs.append("%s: lgkm: [%s] pending at [%s]" % (name, t.strip(), c.text.strip()))
        if sm & touched: errs.append("%s: smem pending at [%s]" % (name, c.text.strip()))
        if c.mn == "s_waitcnt":
            m = re.search(r"vmcnt\((\d+)\)", c.text)
            if m:
                n = int(m.group(1)); vm = vm[len(vm) - n:] if n < len(vm) and n > 0 else ([] if n == 0 else vm)
            m = re.search(r"lgkmcnt\((\d+)\)", c.text)
            if m:
                n = int(m.group(1))
                if n == 0: lg = []; sm = set()
                else:
                    if sm: errs.append("%s: counted lgkmcnt with smem outstanding [%s]" % (name, c.text))
                    lg = lg[len(lg) - n:] if n < len(lg) else lg
        elif c.cls == "vmem":
            vm.append((set(c.dst), c.text))
            if len(vm) > 63: errs.append("%s: more than 63 vmem outstanding at [%s]" % (name, c.text.strip()))
        elif c.cls == "ds":
            lg.append((set(c.dst), c.text))
        elif c.cls == "smem":
            sm |= c.dst
    return errs

class Asm:
    def __init__(self):
        self.lines = []
        self.nlab = 0
    def __call__(self, s):
        for l in s.split("\n"):
            if l.strip(): self.lines.append(l if l.strip().endswith(":") or l.startswith(".") or l.startswith(";") else "    " + l.strip())
    def label(self, name): self.lines.append(name + ":")
    def newlabel(self, p="L"):
        self.nlab += 1
        return "%s_%d" % (p, self.nlab)
    def text(self): return "\n".join(self.lines) + "\n"

def check_text(text, verbose=True):
    lines = text.split("\n")
    items = []
    for l in lines:
        t = l.split(";")[0].strip()
        if not t or t.startswith("."): continue
        if t.endswith(":"): items.append(("label", t[:-1]))
        else: items.append(("ins", Ins(l)))
    labels = {v: i for i, (k, v) in enumerate(items) if k == "label"}
    errs = []
    trace = []; name = "start"
    def expand(lo, hi):
        out = []
        i = lo
        while i < hi:
            k, v = items[i]
            if k == "ins":
                out.append(v)
                if v.mn.startswith("s_cbranch") or v.mn == "s_branch":
                    tgt = labels.get(v.ops[0])
                    if tgt is not None and tgt <= i and tgt >= lo0[0]:
                        body = [x for (kk, x) in items[tgt:i + 1] if kk == "ins"]
                        out += body + body
            i += 1
        return out
    lo0 = [0]
    start = 0
    for i, (k, v) in enumerate(items):
        if k == "ins" and (v.mn == "s_endpgm" or (v.mn == "s_branch" and labels.get(v.ops[0], -1) > i)):
            lo0[0] = start
            nm = next((x for (kk, x) in items[start:i + 1] if kk == "label"), "?")
            errs += check_trace(expand(start, i + 1), nm)
            start = i + 1
    seen = set(); out = []
    for e in errs:
        if e not in seen: seen.add(e); out.append(e)
    return out

class VM:
    def __init__(self, a, name="vmcnt", maxn=63):
        self.a = a; self.ops = []; self.name = name; self.maxn = maxn
    def issue(self, text, tag):
        self.a(text); self.ops.append(tag)
    def count(self, tags):
        last = -1
        for i, t in enumerate(self.ops):
            if t in tags: last = i
        return None if last < 0 else len(self.ops) - 1 - last
    def wait(self, *tags):
        n = self.count(tags)
        if n is None: return
        n2 = min(n, self.maxn)
        self.a("s_waitcnt %s(%d)" % (self.name, n2))
        self.ops = self.ops[len(self.ops) - n2:] if n2 > 0 else []
```

```python
import sys
sys.path.insert(0, "gen")
from asmlib import *

MB = 1 << 20
QF = 0; KF = 2*MB; VF = 4*MB; HF = 6*MB; OF = 14*MB; GG = 16*MB; BB = 17*MB
LOG2E = 1.4426950408889634
import struct
def f2u(x): return struct.unpack("<I", struct.pack("<f", x))[0]
def hx(x): return "0x%x" % (x & 0xffffffff)

def vr(b, n): return "v[%d:%d]" % (b, b + n - 1) if n > 1 else "v%d" % b
def sr(b, n): return "s[%d:%d]" % (b, b + n - 1) if n > 1 else "s%d" % b

def srd(a, d, base, off, size):
    if off == 0:
        a("s_mov_b32 s%d, s%d" % (d, base)); a("s_mov_b32 s%d, s%d" % (d + 1, base + 1))
    else:
        a("s_add_u32 s%d, s%d, %s" % (d, base, off if isinstance(off, str) else hx(off)))
        a("s_addc_u32 s%d, s%d, 0" % (d + 1, base + 1))
    a("s_mov_b32 s%d, %s" % (d + 2, size if isinstance(size, str) else hx(size)))
    a("s_mov_b32 s%d, 0x20000" % (d + 3))

STAMP = False
TS = 32 * MB
NST = 10
def stamp(a, i):
    if not STAMP: return
    a("s_memtime s[%d:%d]" % (62 + 2 * i, 63 + 2 * i))
    a("s_waitcnt lgkmcnt(0)")
def stamp_begin(a):
    if not STAMP: return
    a("s_memrealtime s[82:83]")
    a("s_memtime s[62:63]")
    for i in range(1, NST): a("s_mov_b32 s%d, 0" % (62 + 2 * i))
def stamp_end(a, kid, wsreg, n):
    if not STAMP: return
    n = NST - 1
    a("s_mov_b64 exec, -1")
    a("s_waitcnt vmcnt(0)")
    a("s_memtime s[%d:%d]" % (62 + 2 * n, 63 + 2 * n))
    a("s_memrealtime s[98:99]")
    a("s_waitcnt lgkmcnt(0)")
    srd(a, 20, wsreg, TS + kid * MB, MB)
    a("s_lshl_b32 s24, s2, 4")
    a("s_add_u32 s24, s24, s3")
    a("s_lshl_b32 s24, s24, 6")
    vals = ["s82", "s98"] + ["s%d" % (62 + 2 * i) for i in range(n + 1)]
    a("v_mov_b32 v0, 0")
    for i, v in enumerate(vals):
        a("v_mov_b32 v1, %s" % v)
        a("buffer_store_dword v1, v0, s[20:23], s24 offen offset:%d" % (4 * i))
    a("s_waitcnt vmcnt(0)")

def header(a, name):
    a(".globl %s" % name); a(".p2align 8"); a(".type %s,@function" % name); a.label(name)

def descriptor(name, nv, ns=102):
    acc = (nv + 3) // 4 * 4
    return """.p2align 6
.amdhsa_kernel %s
  .amdhsa_next_free_vgpr %d
  .amdhsa_next_free_sgpr %d
  .amdhsa_accum_offset %d
  .amdhsa_group_segment_fixed_size 0
  .amdhsa_kernarg_size 88
  .amdhsa_user_sgpr_count 2
  .amdhsa_user_sgpr_kernarg_segment_ptr 1
  .amdhsa_system_sgpr_workgroup_id_x 1
  .amdhsa_float_denorm_mode_32 3
.end_amdhsa_kernel
""" % (name, nv, ns, acc)

SLOT = 28672; NSLOT = 5
def k1(a):
    name = "k1_kernel"
    header(a, name)
    a("s_cmp_ge_u32 s2, 256")
    a("s_cbranch_scc1 K1_END")
    stamp_begin(a)
    a("s_load_dwordx4 s[4:7], s[0:1], 0")
    a("s_load_dwordx4 s[8:11], s[0:1], 32")
    a("s_load_dwordx2 s[12:13], s[0:1], 56")
    a("s_load_dwordx2 s[14:15], s[0:1], 80")
    a("v_lshrrev_b32 v1, 6, v0")
    a("v_and_b32 v0, 63, v0")
    a("s_and_b32 s16, s2, 7")
    a("v_readfirstlane_b32 s3, v1")
    a("s_lshr_b32 s17, s2, 3")
    a("s_and_b32 s18, s16, 1")
    a("s_lshl_b32 s18, s18, 3")
    a("s_and_b32 s19, s17, 7")
    a("s_add_u32 s18, s18, s19")
    a("s_lshr_b32 s19, s16, 1")
    a("s_lshl_b32 s19, s19, 2")
    a("s_lshr_b32 s17, s17, 3")
    a("s_add_u32 s19, s19, s17")
    a("s_mov_b32 s58, %d" % SLOT)
    a("s_cmp_ge_u32 s3, 4")
    a("s_cbranch_scc1 K1_LOADER")
    a("s_and_b32 s36, s3, 1")
    a("s_lshr_b32 s37, s3, 1")
    AX0, AX1, AQ, AG0, AG1 = 2, 3, 4, 5, 6
    F = [12, 40]; ACC = 68
    def T(tt, c): return ACC + 16 * (2 * c + tt)
    a("v_and_b32 v7, 31, v0")
    a("v_lshrrev_b32 v8, 5, v0")
    a("v_and_b32 v9, 15, v0")
    a("v_bfe_u32 v10, v0, 4, 1")
    a("v_bfe_u32 v11, v0, 2, 2")
    a("v_xor_b32 v11, v8, v11")
    a("v_lshlrev_b32 v11, 4, v11")
    a("s_lshl_b32 s38, s36, 12")
    a("v_lshl_add_u32 v%d, v7, 6, v11" % AX0)
    a("v_add_u32 v%d, s38, v%d" % (AX0, AX0))
    a("v_xor_b32 v%d, 32, v%d" % (AX1, AX0))
    a("v_lshrrev_b32 v15, 2, v9")
    a("v_lshl_add_u32 v12, v8, 3, v15")
    a("v_bfe_u32 v13, v9, 1, 1")
    a("v_lshl_add_u32 v13, v10, 1, v13")
    a("v_and_b32 v14, 1, v9")
    a("v_lshlrev_b32 v14, 3, v14")
    a("v_lshrrev_b32 v16, 3, v9")
    a("v_xor_b32 v16, s37, v16")
    a("v_lshl_add_u32 v16, v16, 2, v13")
    a("v_lshl_add_u32 v16, v16, 4, v14")
    a("v_lshl_add_u32 v16, v12, 7, v16")
    a("v_add_u32 v%d, 8192, v16" % AQ)
    a("s_lshl_b32 s38, s37, 1")
    for u, R in ((0, AG0), (1, AG1)):
        if u: a("s_add_u32 s38, s38, 1")
        a("v_xor_b32 v16, s38, v15")
        a("v_lshl_add_u32 v16, v16, 2, v13")
        a("v_lshl_add_u32 v16, v16, 4, v14")
        a("v_lshl_add_u32 v16, v12, 8, v16")
        a("v_add_u32 v%d, 12288, v16" % R)
    for r in range(ACC, ACC + 160): a("v_mov_b32 v%d, 0" % r)
    a("s_mov_b32 s40, 0")
    a("s_mov_b32 s41, 16")
    def reads(f, ks):
        b = F[f]; L = []
        ax = AX0 if ks == 0 else AX1
        def X(tt): return "ds_read_b128 %s, v%d offset:%d" % (vr(b + 4 * tt, 4), ax, tt * 2048)
        def W(c, q):
            d = vr(b + 8 + 4 * c + 2 * q, 2)
            if c == 0: return "ds_read_b64_tr_b16 %s, v%d offset:%d" % (d, AQ, (16 * ks + 4 * q) * 128)
            u = (c - 1) % 2; up = (c - 1) // 2
            return "ds_read_b64_tr_b16 %s, v%d offset:%d" % (d, AG0 + u, (16 * ks + 4 * q) * 256 + up * 8192)
        return [X(0), W(0, 0), W(0, 1), X(1), W(1, 0), W(1, 1), W(2, 0), W(2, 1), W(3, 0), W(3, 1), W(4, 0), W(4, 1)]
    def mf(f, tt, c, swap):
        b = F[f]; x = vr(b + 4 * tt, 4); w = vr(b + 8 + 4 * c, 4); d = vr(T(tt, c), 16)
        if swap and c > 0: return "v_mfma_f32_32x32x16_bf16 %s, %s, %s, %s" % (d, x, w, d)
        return "v_mfma_f32_32x32x16_bf16 %s, %s, %s, %s" % (d, w, x, d)
    stamp(a, 1)
    a("s_barrier")
    stamp(a, 2)
    for r in reads(0, 0): a(r)
    a("s_cmp_ge_u32 s19, 14")
    a("s_cbranch_scc1 K1_ZLOOP")
    def loop(lab, swap):
        a(".p2align 6")
        a.label(lab)
        for ph in range(2):
            R = reads(1 - ph, 1 - ph)
            a("s_waitcnt lgkmcnt(0)")
            n = 0
            for c in range(5):
                for tt in range(2):
                    a(mf(ph, tt, c, swap))
                    if ph == 1 and n == 0: a("s_barrier")
                    if n < 6:
                        a(R[2 * n]); a(R[2 * n + 1])
                    if ph == 0 and n == 6:
                        a("s_add_u32 s40, s40, 1")
                        a("s_cmp_eq_u32 s40, %d" % NSLOT)
                        a("s_cselect_b32 s42, %s, s58" % (hx(-(NSLOT - 1) * SLOT)))
                        a("s_cselect_b32 s40, 0, s40")
                    if ph == 0 and n == 7:
                        for R_ in (AX0, AX1, AQ): a("v_add_u32 v%d, s42, v%d" % (R_, R_))
                    if ph == 0 and n == 8:
                        for R_ in (AG0, AG1): a("v_add_u32 v%d, s42, v%d" % (R_, R_))
                    if ph == 1 and n == 7:
                        a("s_sub_u32 s41, s41, 1")
                        a("s_cmp_lg_u32 s41, 0")
                    n += 1
        a("s_cbranch_scc1 %s" % lab)
    def epi_common():
        a("s_waitcnt lgkmcnt(0)")
        stamp(a, 3)
        srd(a, 20, 14, 0, 6 * MB)
        srd(a, 24, 14, HF, 7 * MB)
        a("s_lshl_b32 s44, s18, 2")
        a("s_lshl_b32 s45, s36, 1")
        a("s_add_u32 s44, s44, s45")
        a("s_lshl_b32 s46, s19, 1")
        a("s_add_u32 s46, s46, s37")
        a("s_lshl_b32 s46, s46, 17")
        a("s_lshl_b32 s45, s44, 10")
        a("s_add_u32 s46, s46, s45")
        a("s_cmp_lt_u32 s19, 8")
        a("s_cselect_b32 s48, %s, 1.0" % hx(f2u(0.25 * LOG2E)))
        a("s_mov_b32 s49, s48")
        a("s_cselect_b32 s50, 0, 12")
        a("v_lshrrev_b32 v11, 1, v7")
        a("v_xor_b32 v11, v7, v11")
        a("v_and_b32 v11, 4, v11")
        a("v_mul_u32_u24 v11, 3, v11")
        a("v_and_b32 v11, s50, v11")
        a("v_xor_b32 v11, v7, v11")
        a("v_lshlrev_b32 v11, 4, v11")
        a("v_lshl_add_u32 v11, v8, 9, v11")
        a("v_lshlrev_b32 v2, 4, v0")
        a("s_nop 7")
        TMP = 12
        for tt in range(2):
            b = T(tt, 0)
            for i in range(8): a("v_pk_mul_f32 %s, %s, s[48:49]" % (vr(b + 2 * i, 2), vr(b + 2 * i, 2)))
            for i in range(8): a("v_cvt_pk_bf16_f32 v%d, v%d, v%d" % (TMP + 8 * tt + i, b + 2 * i, b + 2 * i + 1))
            a("s_add_u32 s47, s46, 0x10000")
            a("buffer_store_dwordx4 %s, v11, s[20:23], s46 offen offset:%d" % (vr(TMP + 8 * tt, 4), tt * 1024))
            a("buffer_store_dwordx4 %s, v11, s[20:23], s47 offen offset:%d" % (vr(TMP + 8 * tt + 4, 4), tt * 1024))
    loop("K1_XLOOP", False)
    epi_common()
    a("s_mov_b32 s52, %s" % hx(f2u(-LOG2E))); a("s_mov_b32 s53, s52")
    a("s_mov_b32 s54, 1.0"); a("s_mov_b32 s55, 1.0")
    a("s_mul_i32 s56, s44, 112")
    a("s_lshl_b32 s57, s19, 3")
    a("s_add_u32 s56, s56, s57")
    a("s_lshl_b32 s57, s37, 2")
    a("s_add_u32 s56, s56, s57")
    a("s_lshl_b32 s56, s56, 10")
    a("s_add_u32 s57, s56, %d" % (112 * 1024))
    E = 228
    for tt in range(2):
        for u in range(2):
            G = T(tt, 1 + u); U = T(tt, 3 + u); P = 28 + 8 * (2 * tt + u)
            for i in range(8): a("v_pk_mul_f32 %s, %s, s[52:53]" % (vr(E + 2 * i, 2), vr(G + 2 * i, 2)))
            for i in range(16): a("v_exp_f32 v%d, v%d" % (E + i, E + i))
            for i in range(8): a("v_pk_mul_f32 %s, %s, %s" % (vr(G + 2 * i, 2), vr(G + 2 * i, 2), vr(U + 2 * i, 2)))
            for i in range(8): a("v_pk_add_f32 %s, %s, s[54:55]" % (vr(E + 2 * i, 2), vr(E + 2 * i, 2)))
            for i in range(16): a("v_rcp_f32 v%d, v%d" % (E + i, E + i))
            a("s_nop 0")
            for i in range(8): a("v_pk_mul_f32 %s, %s, %s" % (vr(G + 2 * i, 2), vr(G + 2 * i, 2), vr(E + 2 * i, 2)))
            for i in range(8): a("v_cvt_pk_bf16_f32 v%d, v%d, v%d" % (P + i, G + 2 * i, G + 2 * i + 1))
            for jj in range(2):
                a("buffer_store_dwordx4 %s, v2, s[24:27], s%d offen offset:%d" % (vr(P + 4 * jj, 4), 56 + tt, u * 2048 + jj * 1024))
    stamp(a, 4)
    stamp_end(a, 0, 14, 5)
    a("s_endpgm")
    loop("K1_ZLOOP", True)
    epi_common()
    a("v_lshlrev_b32 v3, 16, v10")
    a("v_lshl_add_u32 v3, v8, 8, v3")
    a("v_lshl_add_u32 v3, v9, 4, v3")
    a("s_sub_u32 s56, s19, 14")
    a("s_lshl_b32 s56, s56, 3")
    a("s_lshl_b32 s57, s37, 1")
    a("s_add_u32 s56, s56, s57")
    a("s_lshl_b32 s56, s56, 17")
    a("s_add_u32 s56, s56, s45")
    a("s_add_u32 s56, s56, %s" % hx(VF))
    n = 0
    for part in range(2):
        for u in range(2):
            a("s_add_u32 s57, s56, %s" % hx((4 * part + u) << 17))
            for tt in range(2):
                b = T(tt, 1 + 2 * part + u); P = 28 + 8 * (n % 4); n += 1
                for i in range(8): a("v_cvt_pk_bf16_f32 v%d, v%d, v%d" % (P + i, b + 2 * i, b + 2 * i + 1))
                for j in range(2):
                    a("buffer_store_dwordx4 %s, v3, s[20:23], s57 offen offset:%d" % (vr(P + 4 * j, 4), tt * 1024 + j * 512))
    stamp(a, 4)
    stamp_end(a, 0, 14, 5)
    a("s_endpgm")
    a.label("K1_LOADER")
    a("s_sub_u32 s36, s3, 4")
    a("s_waitcnt lgkmcnt(0)")
    a("s_lshl_b32 s38, s18, 17")
    srd(a, 20, 4, "s38", 128 * 1024)
    a("s_lshl_b32 s38, s19, 7")
    a("s_sub_u32 s39, %d, s38" % (512 * 3072))
    srd(a, 24, 6, "s38", "s39")
    a("s_cmp_ge_u32 s19, 14")
    a("s_cbranch_scc1 K1_LZ")
    a("s_lshl_b32 s38, s19, 8")
    a("s_sub_u32 s39, %d, s38" % (512 * 3584))
    srd(a, 28, 8, "s38", "s39")
    srd(a, 32, 10, "s38", "s39")
    a("s_mov_b32 s37, 3584")
    a("s_branch K1_LGO")
    a.label("K1_LZ")
    a("s_sub_u32 s38, s19, 14")
    a("s_lshl_b32 s38, s38, 9")
    a("s_add_u32 s38, s38, 2048")
    a("s_sub_u32 s39, %d, s38" % (512 * 3072))
    srd(a, 28, 6, "s38", "s39")
    a("s_add_u32 s38, s38, 256")
    a("s_sub_u32 s39, s39, 256")
    srd(a, 32, 6, "s38", "s39")
    a("s_mov_b32 s37, 3072")
    a.label("K1_LGO")
    a("v_lshrrev_b32 v8, 4, v0")
    a("v_and_b32 v9, 3, v0")
    a("v_xor_b32 v9, v9, v8")
    a("v_lshlrev_b32 v9, 4, v9")
    a("v_lshrrev_b32 v10, 2, v0")
    a("v_lshl_add_u32 v2, v10, 10, v9")
    a("s_lshl_b32 s38, s36, 15")
    a("v_add_u32 v2, s38, v2")
    a("v_add_u32 v3, %d, v2" % (16384 - 1024))
    a("v_and_b32 v9, 1, v8")
    a("v_lshlrev_b32 v9, 2, v9")
    a("v_and_b32 v10, 7, v0")
    a("v_xor_b32 v9, v9, v10")
    a("v_lshlrev_b32 v9, 4, v9")
    a("v_lshrrev_b32 v10, 3, v0")
    a("s_lshl_b32 s38, s36, 3")
    a("v_add_u32 v10, s38, v10")
    a("v_mul_u32_u24 v10, 3072, v10")
    a("v_add_u32 v4, v10, v9")
    a("v_lshlrev_b32 v9, 2, v8")
    a("v_and_b32 v10, 15, v0")
    a("v_xor_b32 v9, v9, v10")
    a("v_lshlrev_b32 v9, 4, v9")
    a("v_add_u32 v10, s38, v8")
    a("v_mul_u32_u24 v10, s37, v10")
    a("v_add_u32 v5, v10, v9")
    a("s_lshl_b32 s38, s37, 2")
    a("s_sub_u32 s38, s38, 1024")
    a("v_add_u32 v6, s38, v5")
    a("s_lshl_b32 s40, s36, 11")
    a("s_lshl_b32 s41, s36, 10")
    a("s_add_u32 s41, s41, 8192")
    a("s_add_u32 s42, s40, 12288")
    a("s_add_u32 s43, s40, 20480")
    a("s_mov_b32 s44, 0")
    a("s_mov_b32 s45, 0"); a("s_mov_b32 s46, 0"); a("s_mov_b32 s47, 0")
    a("s_lshl_b32 s48, s37, 5")
    def issue():
        a("s_mov_b32 m0, s40")
        a("s_add_u32 s44, s44, 1")
        a("buffer_load_dwordx4 v2, s[20:23], s45 offen lds")
        a("buffer_load_dwordx4 v3, s[20:23], s45 offen offset:1024 lds")
        a("s_mov_b32 m0, s41")
        a("s_cmp_eq_u32 s44, %d" % NSLOT)
        a("buffer_load_dwordx4 v4, s[24:27], s46 offen lds")
        a("s_mov_b32 m0, s42")
        a("s_cselect_b32 s49, %s, s58" % (hx(-(NSLOT - 1) * SLOT)))
        a("buffer_load_dwordx4 v5, s[28:31], s47 offen lds")
        a("buffer_load_dwordx4 v6, s[28:31], s47 offen offset:1024 lds")
        a("s_mov_b32 m0, s43")
        a("s_cselect_b32 s44, 0, s44")
        a("buffer_load_dwordx4 v5, s[32:35], s47 offen lds")
        a("buffer_load_dwordx4 v6, s[32:35], s47 offen offset:1024 lds")
        for r in (40, 41, 42, 43): a("s_add_u32 s%d, s%d, s49" % (r, r))
        a("s_add_u32 s45, s45, 64")
        a("s_add_u32 s46, s46, %d" % (32 * 3072))
        a("s_add_u32 s47, s47, s48")
    a("s_mov_b32 s50, 5")
    a.label("K1_LPRO")
    issue()
    a("s_sub_u32 s50, s50, 1")
    a("s_cmp_lg_u32 s50, 0")
    a("s_cbranch_scc1 K1_LPRO")
    stamp(a, 1)
    a("s_waitcnt vmcnt(28)")
    stamp(a, 2)
    a("s_barrier")
    a("s_waitcnt vmcnt(21)"); a("s_barrier")
    a("s_mov_b32 s50, 11")
    a.label("K1_LLOOP")
    a("s_waitcnt vmcnt(14)"); a("s_barrier")
    issue()
    a("s_sub_u32 s50, s50, 1")
    a("s_cmp_lg_u32 s50, 0")
    a("s_cbranch_scc1 K1_LLOOP")
    a("s_waitcnt vmcnt(14)"); a("s_barrier")
    a("s_waitcnt vmcnt(7)"); a("s_barrier")
    a("s_waitcnt vmcnt(0)")
    stamp(a, 3)
    a("s_barrier")
    srd(a, 24, 12, 0, 1024)
    srd(a, 28, 14, GG, 16384)
    a("s_lshl_b32 s38, s19, 3")
    a("s_lshl_b32 s39, s36, 1")
    a("s_add_u32 s38, s38, s39")
    a("s_lshl_b32 s39, s38, 10")
    a("v_lshlrev_b32 v2, 4, v0")
    a("buffer_load_dwordx4 v[8:11], v2, s[24:27], 0 offen")
    a("buffer_load_dwordx4 v[12:15], v2, s[20:23], s39 offen")
    a("buffer_load_dwordx4 v[16:19], v2, s[20:23], s39 offen offset:1024")
    a("s_barrier")
    a("s_mov_b32 s40, 0xffff0000")
    a("s_waitcnt vmcnt(0)")
    for i in range(4):
        a("v_lshlrev_b32 v%d, 16, v%d" % (20 + 2 * i, 8 + i))
        a("v_and_b32 v%d, s40, v%d" % (21 + 2 * i, 8 + i))
    for t in range(2):
        x = 12 + 4 * t; acc = 40 + t
        for i in range(4):
            a("v_lshlrev_b32 v28, 16, v%d" % (x + i))
            a("v_and_b32 v29, s40, v%d" % (x + i))
            a("v_mul_f32 v28, v28, v%d" % (20 + 2 * i))
            a("v_mul_f32 v29, v29, v%d" % (21 + 2 * i))
            a("v_cvt_pk_bf16_f32 v28, v28, v29")
            a("v_and_b32 v29, s40, v28")
            a("v_lshlrev_b32 v28, 16, v28")
            if i == 0: a("v_add_f32 v%d, v28, v29" % acc)
            else:
                a("v_add_f32 v28, v28, v29")
                a("v_add_f32 v%d, v%d, v28" % (acc, acc))
    for m in ("row_shr:1", "row_shr:2", "row_shr:4", "row_shr:8"):
        a("s_nop 0")
        for t in range(2): a("v_add_f32_dpp v%d, v%d, v%d %s row_mask:0xf bank_mask:0xf bound_ctrl:0" % (40 + t, 40 + t, 40 + t, m))
    a("s_nop 0")
    for t in range(2): a("v_add_f32_dpp v%d, v%d, v%d row_bcast:15 row_mask:0xa bank_mask:0xf" % (40 + t, 40 + t, 40 + t))
    a("s_nop 0")
    for t in range(2): a("v_add_f32_dpp v%d, v%d, v%d row_bcast:31 row_mask:0xc bank_mask:0xf" % (40 + t, 40 + t, 40 + t))
    a("s_mov_b32 s41, %s" % hx(f2u(-LOG2E)))
    for t in range(2):
        z = 40 + t; o = 44 + 2 * t
        a("v_cvt_pk_bf16_f32 v%d, v%d, v%d" % (z, z, z))
        a("v_and_b32 v%d, s40, v%d" % (z, z))
        a("v_mul_f32 v%d, s41, v%d" % (z, z))
        a("v_exp_f32 v%d, v%d" % (z, z))
        a("s_nop 0")
        a("v_add_f32 v%d, 1.0, v%d" % (z, z))
        a("v_rcp_f32 v%d, v%d" % (z, z))
        a("s_nop 0")
        a("v_cvt_pk_bf16_f32 v%d, v%d, v%d" % (z, z, z))
        a("v_and_b32 v%d, s40, v%d" % (o, z))
        a("v_sub_f32 v%d, 1.0, v%d" % (z, o))
        a("v_cvt_pk_bf16_f32 v%d, v%d, v%d" % (z, z, z))
        a("v_and_b32 v%d, s40, v%d" % (o + 1, z))
    a("s_lshl_b32 s39, s18, 7")
    a("s_add_u32 s38, s38, s39")
    a("s_lshl_b32 s38, s38, 3")
    a("v_mov_b32 v2, 0")
    a("s_mov_b32 exec_lo, 0")
    a("s_mov_b32 exec_hi, 0x80000000")
    a("buffer_store_dwordx4 v[44:47], v2, s[28:31], s38 offen")
    stamp(a, 4)
    stamp_end(a, 0, 14, 5)
    a.label("K1_END")
    a("s_endpgm")
    return name, 256, "grid=(256,1,1) block=(512,1,1) lds=%d" % (NSLOT * SLOT)

def k2(a):
    name = "k2_kernel"
    header(a, name)
    Q = 8; S = [24, 40]; K = [56, 60]; V = [64, 72]; O = 80
    a("s_cmp_ge_u32 s2, 256")
    a("s_cbranch_scc1 K2_END")
    stamp_begin(a)
    a("s_load_dwordx2 s[4:5], s[0:1], 80")
    a("v_lshrrev_b32 v1, 6, v0")
    a("v_and_b32 v0, 63, v0")
    a("s_and_b32 s20, s2, 7")
    a("v_readfirstlane_b32 s3, v1")
    a("s_lshl_b32 s20, s20, 2")
    a("s_bfe_u32 s21, s2, 0x20003")
    a("s_add_u32 s20, s20, s21")
    a("s_lshr_b32 s21, s2, 5")
    a("s_and_b32 s22, s3, 1")
    a("s_lshr_b32 s23, s3, 1")
    a("v_lshlrev_b32 v1, 4, v0")
    a("v_and_b32 v2, 15, v0")
    a("v_lshlrev_b32 v2, 4, v2")
    a("v_lshrrev_b32 v4, 5, v0")
    a("v_lshl_add_u32 v2, v4, 8, v2")
    a("v_mov_b32 v3, 0xdddddddd")
    a("s_lshl_b32 s24, s20, 16")
    a("s_lshl_b32 s25, s21, 3")
    a("s_lshl_b32 s26, s22, 2")
    a("s_add_u32 s25, s25, s26")
    a("s_lshl_b32 s27, s23, 14")
    a("s_add_u32 s27, s27, s24")
    a("s_add_u32 s26, s27, %s" % hx(KF))
    a("s_mov_b32 s30, 0x0000ffff"); a("s_mov_b32 s31, 0x0000ffff")
    for i in range(16): a("v_mov_b32 v%d, 0x3f803f80" % (V[0] + i))
    a("s_waitcnt lgkmcnt(0)")
    srd(a, 8, 4, 0, 4 * MB)
    srd(a, 12, 4, VF, 2 * MB)
    srd(a, 16, 4, OF, 2 * MB)
    for s in range(4):
        a("s_add_u32 s28, s23, %d" % s)
        a("s_and_b32 s28, s28, 3")
        a("s_add_u32 s28, s28, s25")
        if s == 0: a("s_mov_b32 s29, s28")
        a("s_lshl_b32 s28, s28, 10")
        a("s_add_u32 s28, s28, s24")
        a("buffer_load_dwordx4 %s, v1, s[8:11], s28 offen" % vr(Q + 4 * s, 4))
    def ldK(b):
        a("buffer_load_dwordx4 %s, v1, s[8:11], s26 offen" % vr(K[b], 4))
        a("s_add_u32 s26, s26, 1024")
    def ldV(b):
        a("s_mov_b64 exec, s[30:31]")
        a("buffer_load_dwordx4 %s, v2, s[12:15], s27 offen" % vr(V[b], 4))
        a("buffer_load_dwordx4 %s, v2, s[12:15], s27 offen offset:512" % vr(V[b] + 4, 4))
        a("s_mov_b64 exec, -1")
        a("s_add_u32 s27, s27, 1024")
    ldK(0); ldV(0); ldK(1)
    for i in range(64): a("v_mov_b32 v%d, 0" % (O + i))
    for i in range(8): a("v_mov_b32 v%d, 0" % (S[1] + 8 + i))
    def QK(sl, kb, sb): a("v_mfma_f32_32x32x16_bf16 %s, %s, %s, 0" % (vr(S[sb], 16), vr(K[kb], 4), vr(Q + 4 * sl, 4)))
    def PV(sl, vb, sb, j): a("v_smfmac_f32_32x32x32_bf16 %s, %s, %s, v3" % (vr(O + 16 * sl, 16), vr(V[vb] + 4 * j, 4), vr(S[sb] + 8 * j, 8)))
    a("s_mov_b32 s32, 8")
    stamp(a, 1)
    a("s_waitcnt vmcnt(3)")
    stamp(a, 2)
    QK(0, 0, 0)
    a("s_nop 15")
    a(".p2align 6")
    a.label("K2_LOOP")
    for b in range(2):
        for sl in range(4):
            sb = sl % 2
            def E(i): a("v_exp_f32 v%d, v%d" % (S[sb] + i, S[sb] + i))
            E(0); E(1)
            if sl == 0: PV(3, 1 - b, 1, 1); ldV(1 - b)
            else: PV(sl - 1, b, 1 - sb, 1)
            E(2); E(3); E(4)
            if sl == 3:
                a("s_waitcnt vmcnt(3)")
                QK(0, 1 - b, 0)
            else:
                QK(sl + 1, b, 1 - sb)
                if sl == 2: ldK(b)
            for i in range(5, 10): E(i)
            if sl == 0: a("s_waitcnt vmcnt(3)")
            PV(sl, b, sb, 0)
            if b == 1 and sl == 3:
                a("s_sub_u32 s32, s32, 1"); a("s_cmp_lg_u32 s32, 0")
            for i in range(10, 16): E(i)
    a("s_cbranch_scc1 K2_LOOP")
    a("s_nop 1")
    PV(3, 1, 1, 1)
    stamp(a, 3)
    for s in range(1, 4):
        a("s_add_u32 s28, s23, %d" % s)
        a("s_and_b32 s28, s28, 3")
        a("s_lshl_b32 s28, s28, 1")
        a("s_add_u32 s28, s28, s22")
        a("s_mul_i32 s28, s28, 3")
        a("s_add_u32 s28, s28, %d" % (s - 1))
        a("s_mul_i32 s28, s28, 2304")
        a("v_add_u32 v%d, s28, v1" % (S[0] + 2 * s))
        a("v_lshl_add_u32 v%d, v0, 2, s28" % (S[0] + 2 * s + 1))
    for s in range(1, 4):
        if s == 3: a("s_nop 7")
        a("ds_write_b128 v%d, %s" % (S[0] + 2 * s, vr(O + 16 * s, 4)))
        a("ds_write_b128 v%d, %s offset:1024" % (S[0] + 2 * s, vr(O + 16 * s + 4, 4)))
        a("ds_write_b32 v%d, v%d offset:2048" % (S[0] + 2 * s + 1, O + 16 * s + 8))
    a("s_mul_i32 s28, s3, %d" % (3 * 2304))
    a("v_add_u32 v4, s28, v1")
    a("v_lshl_add_u32 v5, v0, 2, s28")
    a("s_waitcnt lgkmcnt(0)")
    a("s_barrier")
    stamp(a, 4)
    for s in range(3):
        a("ds_read_b128 %s, v4 offset:%d" % (vr(O + 16 * (s + 1), 4), s * 2304))
        a("ds_read_b128 %s, v4 offset:%d" % (vr(O + 16 * (s + 1) + 4, 4), s * 2304 + 1024))
        a("ds_read_b32 v%d, v5 offset:%d" % (O + 16 * (s + 1) + 8, s * 2304 + 2048))
    for s in range(3):
        a("s_waitcnt lgkmcnt(%d)" % (6 - 3 * s))
        for i in range(9): a("v_add_f32 v%d, v%d, v%d" % (O + i, O + i, O + 16 * (s + 1) + i))
    a("s_mov_b32 s34, %s" % hx(f2u(2.0 ** -60)))
    a("v_mov_b32 v5, %s" % hx(f2u(2.0 ** 40)))
    a("v_mul_f32 v4, 0, v%d" % O)
    for i in range(1, 8): a("v_fmac_f32 v4, 0, v%d" % (O + i))
    a("v_med3_f32 v5, v%d, s34, v5" % (O + 8))
    a("v_add_f32 v5, v5, v4")
    a("v_cmp_eq_f32 vcc, v5, v%d" % (O + 8))
    a("s_nop 1")
    a("s_cmp_eq_u64 vcc, -1")
    a("s_cbranch_scc0 K2_SLOW")
    a.label("K2_NORM")
    a("v_rcp_f32 v4, v%d" % (O + 8))
    a("s_lshl_b32 s28, s29, 5")
    a("s_add_u32 s28, s28, s20")
    a("s_lshl_b32 s28, s28, 10")
    for i in range(8): a("v_mul_f32 v%d, v%d, v4" % (O + i, O + i))
    for i in range(4): a("v_cvt_pk_bf16_f32 v%d, v%d, v%d" % (S[0] + i, O + 2 * i, O + 2 * i + 1))
    a("buffer_store_dwordx4 %s, v1, s[16:19], s28 offen" % vr(S[0], 4))
    stamp_end(a, 1, 4, 5)
    a.label("K2_END")
    a("s_endpgm")
    a.label("K2_SLOW")
    CB = O + 16
    a("s_waitcnt vmcnt(0)")
    a("s_add_u32 s26, s24, %s" % hx(KF))
    a("v_mov_b32 v4, 0xff800000")
    a("s_mov_b32 s32, 64")
    a.label("K2_SL1")
    ldK(0)
    a("s_waitcnt vmcnt(0)")
    QK(0, 0, 0)
    a("s_nop 15")
    for i in range(8): a("v_max3_f32 v4, v4, v%d, v%d" % (S[0] + 2 * i, S[0] + 2 * i + 1))
    a("s_sub_u32 s32, s32, 1"); a("s_cmp_lg_u32 s32, 0")
    a("s_cbranch_scc1 K2_SL1")
    a("v_mov_b32 v5, v4")
    a("s_nop 1")
    a("v_permlane32_swap_b32 v4, v5")
    a("s_nop 1")
    a("v_max_f32 v4, v4, v5")
    for i in range(16): a("v_sub_f32 v%d, 0, v4" % (CB + i))
    for i in range(16): a("v_mov_b32 v%d, 0" % (O + i))
    a("s_add_u32 s26, s24, %s" % hx(KF))
    a("s_mov_b32 s27, s24")
    a("s_mov_b32 s32, 64")
    a.label("K2_SL2")
    ldK(0); ldV(0)
    a("s_waitcnt vmcnt(0)")
    a("v_mfma_f32_32x32x16_bf16 %s, %s, %s, %s" % (vr(S[0], 16), vr(K[0], 4), vr(Q, 4), vr(CB, 16)))
    a("s_nop 15")
    for i in range(16): a("v_exp_f32 v%d, v%d" % (S[0] + i, S[0] + i))
    a("s_nop 1")
    PV(0, 0, 0, 0); PV(0, 0, 0, 1)
    a("s_sub_u32 s32, s32, 1"); a("s_cmp_lg_u32 s32, 0")
    a("s_cbranch_scc1 K2_SL2")
    a("s_nop 15")
    a("s_branch K2_NORM")
    a("s_endpgm")
    return name, 144, "grid=(256,1,1) block=(512,1,1) lds=%d" % (8 * 3 * 2304)

RED = 16896
def kgemm(a, name, P, wptr_off, actoff, NK, D, final):
    header(a, name)
    nk = NK // 4
    ACC = 16; ACT = 80; WF = 8
    RING = 4 * RED
    a("s_cmp_ge_u32 s2, 256")
    a("s_cbranch_scc1 %s_END" % P)
    stamp_begin(a)
    a("s_load_dwordx2 s[4:5], s[0:1], 80")
    a("s_load_dwordx2 s[6:7], s[0:1], %d" % wptr_off)
    a("s_load_dwordx2 s[36:37], s[0:1], 64")
    a("v_lshrrev_b32 v1, 6, v0")
    a("v_and_b32 v0, 63, v0")
    a("s_and_b32 s20, s2, 7")
    a("v_readfirstlane_b32 s3, v1")
    a("s_lshl_b32 s20, s20, 2")
    a("s_bfe_u32 s21, s2, 0x20003")
    a("s_add_u32 s20, s20, s21")
    a("s_lshr_b32 s21, s2, 5")
    a("v_lshlrev_b32 v1, 4, v0")
    a("v_add_u32 v2, %d, v1" % (NK * 1024))
    a("v_bfe_u32 v7, v0, 4, 1")
    a("v_lshlrev_b32 v8, 2, v7")
    a("v_and_b32 v9, 7, v0")
    a("v_xor_b32 v8, v8, v9")
    a("v_lshlrev_b32 v8, 4, v8")
    a("v_lshrrev_b32 v9, 3, v0")
    a("v_lshl_add_u32 v3, v9, 10, v8")
    a("v_add_u32 v4, %d, v3" % (8192 - 1024))
    a("v_lshrrev_b32 v8, 5, v0")
    a("v_bfe_u32 v9, v0, 2, 2")
    a("v_lshl_add_u32 v8, v8, 2, v9")
    a("v_bfe_u32 v9, v0, 1, 1")
    a("v_lshl_add_u32 v9, v7, 1, v9")
    a("v_bfe_u32 v10, v0, 3, 1")
    a("v_lshl_add_u32 v9, v10, 2, v9")
    a("v_lshlrev_b32 v9, 4, v9")
    a("v_and_b32 v10, 1, v0")
    a("v_lshl_add_u32 v9, v10, 3, v9")
    a("v_lshl_add_u32 v9, v8, 7, v9")
    a("s_mul_i32 s22, s3, %d" % (D * 2048))
    a("s_add_u32 s22, s22, %d" % RING)
    a("v_add_u32 v5, s22, v9")
    a("v_xor_b32 v6, 64, v5")
    a("s_mul_i32 s24, s20, %d" % (2 * NK))
    a("s_mul_i32 s25, s3, %d" % nk)
    a("s_add_u32 s24, s24, s25")
    a("s_lshl_b32 s24, s24, 10")
    a("s_lshl_b32 s25, s25, 14")
    a("s_lshl_b32 s26, s21, 7")
    a("s_add_u32 s25, s25, s26")
    a("s_waitcnt lgkmcnt(0)")
    srd(a, 8, 4, actoff, 64 * NK * 1024)
    srd(a, 12, 6, 0, NK * 16 * 1024)
    def issue(sl):
        a("s_add_u32 m0, s22, %d" % (sl * 2048))
        a("buffer_load_dwordx4 %s, v1, s[8:11], s24 offen" % vr(ACT + 8 * sl, 4))
        a("buffer_load_dwordx4 %s, v2, s[8:11], s24 offen" % vr(ACT + 8 * sl + 4, 4))
        a("buffer_load_dwordx4 v3, s[12:15], s25 offen lds")
        a("buffer_load_dwordx4 v4, s[12:15], s25 offen offset:1024 lds")
        a("s_add_u32 s24, s24, 1024")
        a("s_add_u32 s25, s25, 16384")
    def step(sl, vm):
        a("s_waitcnt vmcnt(%d)" % vm)
        for ft in range(2):
            for q in range(2):
                a("ds_read_b64_tr_b16 %s, v%d offset:%d" % (vr(WF + 4 * ft + 2 * q, 2), 5 + ft, sl * 2048 + q * 1024))
        for ft in range(2):
            a("s_waitcnt lgkmcnt(%d)" % (2 - 2 * ft))
            for tt in range(2):
                d = vr(ACC + 16 * (2 * tt + ft), 16)
                a("v_mfma_f32_32x32x16_bf16 %s, %s, %s, %s" % (d, vr(WF + 4 * ft, 4), vr(ACT + 8 * sl + 4 * tt, 4), d))
    for sl in range(D): issue(sl)
    for r in range(ACC, ACC + 64): a("v_mov_b32 v%d, 0" % r)
    rounds = nk // D
    stamp(a, 1)
    if STAMP: a("s_waitcnt vmcnt(%d)" % (4 * (D - 1)))
    stamp(a, 2)
    if rounds > 1:
        a("s_mov_b32 s32, %d" % (rounds - 1))
        a.label("%s_LOOP" % P)
        for sl in range(D):
            step(sl, 4 * (D - 1)); issue(sl)
        a("s_sub_u32 s32, s32, 1"); a("s_cmp_lg_u32 s32, 0")
        a("s_cbranch_scc1 %s_LOOP" % P)
    for sl in range(D): step(sl, 4 * (D - 1 - sl))
    stamp(a, 3)
    a("v_lshrrev_b32 v8, 3, v0")
    a("v_and_b32 v9, 7, v0")
    a("s_lshl_b32 s26, s20, 6")
    a("s_lshl_b32 s27, s3, 4")
    a("s_add_u32 s26, s26, s27")
    a("v_lshlrev_b32 v10, 10, v8")
    a("v_lshl_add_u32 v10, v9, 4, v10")
    a("s_lshl_b32 s27, s26, 10")
    a("s_lshl_b32 s28, s21, 7")
    a("s_add_u32 s27, s27, s28")
    a("s_add_u32 s28, s27, 8192")
    if final:
        srd(a, 8, 4, BB, 2 * MB)
        srd(a, 12, 4, GG, 16384)
        srd(a, 16, 36, 0, 2 * MB)
        a("v_lshlrev_b32 v11, 3, v8")
        a("s_lshl_b32 s29, s26, 3")
        a("buffer_load_dwordx4 v[80:83], v10, s[8:11], s27 offen")
        a("buffer_load_dwordx4 v[84:87], v10, s[8:11], s28 offen")
        a("buffer_load_dwordx2 v[88:89], v11, s[12:15], s29 offen")
        a("buffer_load_dwordx2 v[90:91], v11, s[12:15], s29 offen offset:64")
    else:
        srd(a, 16, 4, BB, 2 * MB)
    a("s_mul_i32 s29, s3, %d" % RED)
    a("v_add_u32 v2, s29, v1")
    a("s_nop 7")
    for t in range(4):
        for g in range(4):
            a("ds_write_b128 v2, %s offset:%d" % (vr(ACC + 16 * t + 4 * g, 4), (t * 4 + g) * 1056))
    a("s_lshr_b32 s29, s3, 1")
    a("s_mul_i32 s29, s29, %d" % (8 * 1056))
    a("s_and_b32 s30, s3, 1")
    a("s_lshl_b32 s30, s30, 8")
    a("s_add_u32 s29, s29, s30")
    a("v_mul_u32_u24 v3, 1056, v9")
    a("v_lshl_add_u32 v3, v8, 4, v3")
    a("v_add_u32 v3, s29, v3")
    a("s_waitcnt lgkmcnt(0)")
    a("s_barrier")
    stamp(a, 4)
    for p in range(2):
        for sw in range(4):
            for h in range(2):
                a("ds_read_b128 %s, v3 offset:%d" % (vr(ACC + 32 * p + 8 * sw + 4 * h, 4), sw * RED + h * 512 + p * 128))
    a("s_mov_b32 s30, 0xffff0000")
    for p in range(2):
        b = ACC + 32 * p
        a("s_waitcnt lgkmcnt(%d)" % (8 - 8 * p))
        for i in range(8): a("v_add_f32 v%d, v%d, v%d" % (b + i, b + i, b + 8 + i))
        for i in range(8): a("v_add_f32 v%d, v%d, v%d" % (b + 16 + i, b + 16 + i, b + 24 + i))
        for i in range(8): a("v_add_f32 v%d, v%d, v%d" % (b + i, b + i, b + 16 + i))
        if final:
            if p == 0: a("s_waitcnt vmcnt(0)")
            for i in range(4):
                a("v_lshlrev_b32 v%d, 16, v%d" % (b + 8 + 2 * i, 80 + 4 * p + i))
                a("v_and_b32 v%d, s30, v%d" % (b + 9 + 2 * i, 80 + 4 * p + i))
            for i in range(8): a("v_mul_f32 v%d, v%d, v%d" % (b + i, b + i, 88 + 2 * p))
            for i in range(8): a("v_fmac_f32 v%d, v%d, v%d" % (b + i, b + 8 + i, 89 + 2 * p))
        for i in range(4): a("v_cvt_pk_bf16_f32 v%d, v%d, v%d" % (b + 16 + i, b + 2 * i, b + 2 * i + 1))
        a("buffer_store_dwordx4 %s, v10, s[16:19], s%d offen" % (vr(b + 16, 4), 27 + p))
    stamp_end(a, 3 if final else 2, 4, 5)
    a.label("%s_END" % P)
    a("s_endpgm")
    return name, ACT + 8 * D, "grid=(256,1,1) block=(256,1,1) lds=%d" % (RING + 4 * D * 2048)

def build(out):
    a = Asm()
    ks = []
    a('.amdgcn_target "amdgcn-amd-amdhsa--gfx950"')
    a(".text")
    ks.append(k1(a))
    ks.append(k2(a))
    ks.append(kgemm(a, "kd_kernel", "KD", 48, HF, 112, 4, False))
    ks.append(kgemm(a, "k3_kernel", "K3", 16, OF, 32, 8, True))
    body = a.text()
    errs = check_text(body)
    for e in errs: print("CHECK:", e)
    hdr = "; gated mix of softmax attention and SwiGLU FFN; generated by gen/gen1.py\n"
    for (n, nv, l) in ks: hdr += "; @launch kernel=%s %s\n" % (n, l)
    txt = hdr + body + '.section .rodata,"a"\n' + "".join(descriptor(n, nv) for (n, nv, l) in ks)
    open(out, "w").write(txt)
    print("wrote", out, len(txt), "bytes;", len(errs), "check errors")

if __name__ == "__main__":
    if "stamp" in sys.argv: STAMP = True
    build(sys.argv[1] if len(sys.argv) > 1 else "gated_mix__softmax_full_mha__swiglu_ffn__prompt.s")
```

```python
import sys
sys.path.insert(0, "gen")
import gen1
from gen1 import *
from asmlib import *

SC = " sc1"

def gate_code(a, vm, srd_gw, srd_x, soff_x, T):
    def issue():
        vm.issue("buffer_load_dwordx4 %s, v1, %s, 0 offen" % (vr(T, 4), srd_gw), "g")
        vm.issue("buffer_load_dwordx4 %s, v1, %s, %s offen" % (vr(T + 4, 4), srd_x, soff_x), "g")
    def compute():
        vm.wait("g")
        acc = T + 8; p = T + 10
        for i in range(4):
            a("v_lshlrev_b32 v%d, 16, v%d" % (p, T + i))
            a("v_and_b32 v%d, 0xffff0000, v%d" % (p + 1, T + i))
            a("v_lshlrev_b32 v%d, 16, v%d" % (p + 2, T + 4 + i))
            a("v_and_b32 v%d, 0xffff0000, v%d" % (p + 3, T + 4 + i))
            a("v_mul_f32 v%d, v%d, v%d" % (p, p, p + 2))
            a("v_mul_f32 v%d, v%d, v%d" % (p + 1, p + 1, p + 3))
            a("v_cvt_pk_bf16_f32 v%d, v%d, v%d" % (p, p, p + 1))
            a("v_and_b32 v%d, 0xffff0000, v%d" % (p + 1, p))
            a("v_lshlrev_b32 v%d, 16, v%d" % (p, p))
            if i == 0: a("v_add_f32 v%d, v%d, v%d" % (acc, p, p + 1))
            else:
                a("v_add_f32 v%d, v%d, v%d" % (p, p, p + 1))
                a("v_add_f32 v%d, v%d, v%d" % (acc, acc, p))
        for m in ("row_shr:1", "row_shr:2", "row_shr:4", "row_shr:8"):
            a("s_nop 1")
            a("v_add_f32_dpp v%d, v%d, v%d %s row_mask:0xf bank_mask:0xf bound_ctrl:0" % (acc, acc, acc, m))
        a("s_nop 1")
        a("v_add_f32_dpp v%d, v%d, v%d row_bcast:15 row_mask:0xa bank_mask:0xf" % (acc, acc, acc))
        a("s_nop 1")
        a("v_add_f32_dpp v%d, v%d, v%d row_bcast:31 row_mask:0xc bank_mask:0xf" % (acc, acc, acc))
        z = acc; o = T + 12
        a("v_cvt_pk_bf16_f32 v%d, v%d, v%d" % (z, z, z))
        a("v_and_b32 v%d, 0xffff0000, v%d" % (z, z))
        a("v_mul_f32 v%d, %s, v%d" % (z, hx(f2u(-LOG2E)), z))
        a("v_exp_f32 v%d, v%d" % (z, z))
        a("s_nop 0")
        a("v_add_f32 v%d, 1.0, v%d" % (z, z))
        a("v_rcp_f32 v%d, v%d" % (z, z))
        a("s_nop 0")
        a("v_cvt_pk_bf16_f32 v%d, v%d, v%d" % (z, z, z))
        a("v_and_b32 v%d, 0xffff0000, v%d" % (o, z))
        a("v_sub_f32 v%d, 1.0, v%d" % (z, o))
        a("v_cvt_pk_bf16_f32 v%d, v%d, v%d" % (z, z, z))
        a("v_and_b32 v%d, 0xffff0000, v%d" % (o + 1, z))
        return o
    return issue, compute

EXP = ""
ROT = True
ASLOT = 28800; ANS = 5
GST = [16, 32, 40, 48, 56]
def ka(a):
    name = "ka_kernel"
    header(a, name)
    X = 128; ACC = 64; WF = 32
    vAX, vAW1, vAW2, vT, vST, vD = 2, 3, 4, 5, 6, 7
    TMP = 16
    a("s_load_dwordx4 s[4:7], s[0:1], 0")
    a("s_cmp_ge_u32 s2, 256")
    a("s_cbranch_scc1 KA_END")
    a("s_load_dwordx4 s[8:11], s[0:1], 32")
    a("s_load_dwordx2 s[12:13], s[0:1], 56")
    a("s_load_dwordx2 s[14:15], s[0:1], 80")
    gen1.stamp_begin(a)
    a("v_lshrrev_b32 v1, 6, v0")
    a("v_and_b32 v0, 63, v0")
    a("s_and_b32 s16, s2, 7")
    a("v_readfirstlane_b32 s3, v1")
    a("s_lshr_b32 s17, s2, 3")
    a("s_and_b32 s18, s16, 1")
    a("s_lshl_b32 s18, s18, 3")
    a("s_and_b32 s19, s17, 7")
    a("s_add_u32 s18, s18, s19")
    a("s_lshr_b32 s41, s16, 1")
    a("s_lshl_b32 s19, s41, 2")
    a("s_lshr_b32 s38, s17, 3")
    a("s_add_u32 s19, s19, s38")
    a("s_and_b32 s36, s3, 3")
    a("v_lshlrev_b32 v1, 4, v0")
    a("s_cmp_lt_u32 s3, 4")
    a("s_cbranch_scc0 KA_H1")

    def half(hf):
        vm = VM(a); lg = VM(a, "lgkmcnt", 15)
        def dma(s):
            slot = (s % ANS) * ASLOT
            tag = ("d", s)
            G = []
            pre = [("s", "s_add_u32 s48, s50, %d" % (s % 8)), ("s", "s_and_b32 s48, s48, 7"),
                   ("s", "s_mul_i32 s49, s48, %d" % (64 * (3072 if s < 8 else 3584)))]
            if s < 8:
                pre.append(("s", "s_lshl_b32 s48, s48, 7"))
                for i in range(2):
                    G.append([("s", "s_add_u32 m0, s56, %d" % slot), ("s", "s_nop 0"),
                              ("v", "buffer_load_dwordx4 v%d, s[20:23], s48 offen offset:%d lds" % (vD + i, 1024 * i))])
                for T in ((2,) if hf == 0 else (0, 1)):
                    G.append([("s", "s_add_u32 m0, s57, %d" % slot), ("s", "s_nop 0"),
                              ("v", "buffer_load_dwordx4 v%d, s[24:27], s49 offen offset:%d lds" % (vD + 2, T * 1024))])
            elif hf == 0:
                for i in range(4):
                    up = i // 2
                    G.append([("s", "s_add_u32 m0, s59, %d" % (slot + up * 14464)), ("s", "s_nop 0"),
                              ("v", "buffer_load_dwordx4 v%d, s[%d:%d], s49 offen offset:%d lds" % (vD + 3 + i % 2, 40 + 4 * up, 43 + 4 * up, 1024 * (i % 2)))])
            else:
                for i in range(3):
                    G.append([("s", "s_add_u32 m0, s59, %d" % slot), ("s", "s_nop 0"),
                              ("v", "buffer_load_dwordx4 v%d, s[40:43], s49 offen offset:%d lds" % (vD + 3 + i, 1024 * i))])
            last = None
            for g in G:
                if g[0][1] == last: del g[0:2]
                else: last = g[0][1]
            G[0] = [G[0][0]] + pre + G[0][2:]
            return [[(k, t, tag) for (k, t) in g] for g in G]
        def flat(G): return [x for g in G for x in g]
        def emit(it):
            k, t, tag = it
            if k == "v": vm.issue(t, tag)
            elif k == "l": lg.issue(t, tag)
            elif k == "f": t()
            else: a(t)
        a("v_lshrrev_b32 v16, 4, v0")
        a("v_and_b32 v17, 7, v0")
        a("v_xor_b32 v17, v17, v16")
        a("v_lshlrev_b32 v17, 4, v17")
        a("v_lshrrev_b32 v18, 3, v0")
        a("v_lshl_add_u32 v17, v18, 10, v17")
        a("s_lshl_b32 s43, s3, 14")
        a("v_add_u32 v%d, s43, v17" % vD)
        a("v_xor_b32 v%d, 64, v%d" % (vD + 1, vD))
        a("v_add_u32 v%d, %d, v%d" % (vD + 1, 7168, vD + 1))
        a("v_lshrrev_b32 v17, 2, v0")
        a("s_lshl_b32 s43, s36, 4")
        a("v_add_u32 v17, s43, v17")
        a("v_mul_u32_u24 v17, 3072, v17")
        a("v_and_b32 v18, 3, v0")
        a("v_lshl_add_u32 v%d, v18, 4, v17" % (vD + 2))
        a("s_lshl_b32 s56, s3, 11")
        a("s_mul_i32 s57, s36, 3072")
        a("s_add_u32 s57, s57, 16384")
        a("s_lshl_b32 s44, s18, 17")
        a("s_lshl_b32 s45, s19, 6")
        a("s_sub_u32 s46, %d, s45" % (512 * 3072))
        a("s_lshl_b32 s50, s19, 1")
        a("s_add_u32 s50, s50, s18")
        if not ROT: a("s_mov_b32 s50, 0")
        a("s_waitcnt lgkmcnt(0)")
        gen1.stamp(a, 1)
        srd(a, 20, 4, "s44", 128 * 1024)
        srd(a, 24, 6, "s45", "s46")
        for it in flat(dma(0)): emit(it)
        a("s_barrier")
        for it in flat(dma(1)): emit(it)
        a("s_mul_i32 s38, s19, 224")
        a("s_sub_u32 s39, %d, s38" % (512 * 3584))
        if hf == 0:
            srd(a, 40, 8, "s38", "s39")
            srd(a, 44, 10, "s38", "s39")
            a("s_lshl_b32 s59, s36, 11")
            a("s_lshl_b32 s38, s36, 7")
            nv = 2
        else:
            a("s_cmp_ge_u32 s36, 2")
            a("s_cselect_b32 s44, s10, s8")
            a("s_cselect_b32 s45, s11, s9")
            a("s_cselect_b32 s59, 14464, 0")
            srd(a, 40, 44, "s38", "s39")
            a("s_and_b32 s38, s36, 1")
            a("s_mul_i32 s38, s38, 3")
            a("s_add_u32 s38, s38, 8")
            a("s_lshl_b32 s39, s38, 10")
            a("s_add_u32 s59, s59, s39")
            a("s_lshl_b32 s38, s38, 6")
            nv = 3
        for i in range(nv):
            a("v_add_u32 v16, s38, v0")
            if i: a("v_add_u32 v16, %d, v16" % (64 * i))
            a("v_mul_u32_u24 v17, 4682, v16")
            a("v_lshrrev_b32 v17, 16, v17")
            a("v_mul_u32_u24 v18, %d, v17" % (3584 - 224))
            a("v_lshl_add_u32 v%d, v16, 4, v18" % (vD + 3 + i))
            if i: a("v_subrev_u32 v%d, %d, v%d" % (vD + 3 + i, 1024 * i, vD + 3 + i))
        a("v_and_b32 v16, 31, v0")
        a("v_lshrrev_b32 v17, 5, v0")
        a("v_bfe_u32 v18, v0, 1, 3")
        a("v_xor_b32 v18, v17, v18")
        a("v_lshlrev_b32 v18, 4, v18")
        a("v_lshl_add_u32 v18, v16, 7, v18")
        a("s_lshl_b32 s38, s36, 12")
        a("v_add_u32 v%d, s38, v18" % vAX)
        a("v_bfe_u32 v18, v0, 2, 2")
        a("v_lshl_add_u32 v18, v17, 3, v18")
        a("v_bfe_u32 v19, v0, 4, 1")
        a("v_and_b32 v20, 3, v0")
        a("v_lshlrev_b32 v20, 3, v20")
        a("v_lshl_add_u32 v21, v18, 6, v20")
        a("v_lshl_add_u32 v21, v19, 5, v21")
        a("v_add_u32 v%d, 16384, v21" % vAW1)
        a("v_mul_u32_u24 v21, 224, v18")
        a("v_add_u32 v21, v21, v20")
        a("v_mul_u32_u24 v22, 14464, v19")
        a("v_add_u32 v21, v21, v22")
        a("v_add_u32 v%d, %d, v21" % (vAW2, (8 % ANS) * ASLOT + (0 if hf == 0 else 96)))
        if hf == 0:
            a("v_lshrrev_b32 v21, 1, v16")
            a("v_xor_b32 v21, v16, v21")
            a("v_and_b32 v21, 4, v21")
            a("v_mul_u32_u24 v21, 3, v21")
            a("v_xor_b32 v21, v16, v21")
            a("v_lshlrev_b32 v21, 4, v21")
            a("v_lshl_add_u32 v%d, v17, 9, v21" % vST)
        else:
            a("v_and_b32 v21, 15, v0")
            a("v_lshlrev_b32 v21, 4, v21")
            a("v_lshl_add_u32 v21, v17, 8, v21")
            a("v_lshl_add_u32 v%d, v19, 16, v21" % vST)
        a("s_lshl_b32 s90, s18, 2")
        a("s_add_u32 s90, s90, s36")
        a("s_lshl_b32 s91, s90, 10")
        a("s_lshl_b32 s92, s19, 17")
        a("s_add_u32 s91, s91, s92")
        gi0, gc0 = gate_code(a, vm, "s[28:31]", "s[20:23]", "s39", X + 112)
        def gi():
            srd(a, 28, 12, 0, 1024)
            a("s_lshl_b32 s38, s19, 3")
            a("s_add_u32 s38, s38, s3")
            a("s_lshl_b32 s39, s38, 10")
            gi0()
        def gc():
            o = gc0()
            srd(a, 28, 14, GG, 16384)
            a("s_lshl_b32 s39, s18, 7")
            a("s_add_u32 s38, s38, s39")
            a("s_lshl_b32 s38, s38, 3")
            a("v_mov_b32 v16, 0")
            a("s_mov_b32 exec_lo, 0")
            a("s_mov_b32 exec_hi, 0x80000000")
            vm.issue("buffer_store_dwordx2 %s, v16, s[28:31], s38 offen%s" % (vr(o, 2), SC), "gst")
            a("s_mov_b64 exec, -1")
            srd(a, 28, 14, 0, 6 * MB)
        if hf == 0: P1 = [(0, 0), (1, 1)]; P2 = [2, 3, 0]
        else: P1 = [(2, 3)]; P2 = [0, 1, 2, 3]
        def wf(g, n):
            if g < 32: return WF + 8 * (g % 4) + 4 * n
            return WF + 16 * (g % 2) + 4 * n
        def reads(g):
            s, ks = g // 4, g % 4
            L = []
            if ks == 0 and s not in (0, 8):
                d = (s % ANS - (s - 1) % ANS) * ASLOT
                for r in ((vAX, vAW1) if s < 8 else (vAW2,)):
                    L.append(("s", "v_add_u32 v%d, %s, v%d" % (r, hx(d), r), None))
            if g < 32:
                if ks: L.append(("s", "v_xor_b32 v%d, %d, v%d" % (vT, 32 * ks, vAX), None))
                L.append(("l", "ds_read_b128 %s, v%d" % (vr(X + 4 * g, 4), vT if ks else vAX), g))
                for n, (T, _) in enumerate(P1):
                    for q in range(2):
                        L.append(("l", "ds_read_b64_tr_b16 %s, v%d offset:%d" % (vr(wf(g, n) + 2 * q, 2), vAW1, ks * 3072 + T * 1024 + q * 256), g))
            else:
                for n in range(len(P2)):
                    for q in range(2):
                        L.append(("l", "ds_read_b64_tr_b16 %s, v%d offset:%d" % (vr(wf(g, n) + 2 * q, 2), vAW2, (16 * ks + 4 * q) * 224 + n * 32), g))
            return L
        def mfmas(g):
            L = []
            x = vr(X + 4 * (g % 32), 4)
            if g < 32:
                for n, (T, ac) in enumerate(P1):
                    d = vr(ACC + 16 * ac, 16); w = vr(wf(g, n), 4)
                    A, B = (x, w) if T == 2 else (w, x)
                    L.append("v_mfma_f32_32x32x16_bf16 %s, %s, %s, %s" % (d, A, B, "0" if g == 0 else d))
            else:
                for n, ac in enumerate(P2):
                    d = vr(ACC + 16 * ac, 16)
                    L.append("v_mfma_f32_32x32x16_bf16 %s, %s, %s, %s" % (d, vr(wf(g, n), 4), x, "0" if g == 32 else d))
            return L
        def epi1():
            if hf == 0:
                a("s_mov_b32 s92, %s" % hx(f2u(0.25 * LOG2E))); a("s_mov_b32 s93, s92")
                a("s_add_u32 s94, s91, 0x10000")
                a("s_add_u32 s95, s91, %s" % hx(KF))
                a("s_add_u32 s96, s95, 0x10000")
                a("s_nop 4")
                b = ACC
                for i in range(8): a("v_pk_mul_f32 %s, %s, s[92:93]" % (vr(b + 2 * i, 2), vr(b + 2 * i, 2)))
                for i in range(8): a("v_cvt_pk_bf16_f32 v%d, v%d, v%d" % (TMP + i, b + 2 * i, b + 2 * i + 1))
                vm.issue("buffer_store_dwordx4 %s, v1, s[28:31], s91 offen%s" % (vr(TMP, 4), SC), "qkv")
                vm.issue("buffer_store_dwordx4 %s, v1, s[28:31], s94 offen%s" % (vr(TMP + 4, 4), SC), "qkv")
                b = ACC + 16
                for i in range(8): a("v_cvt_pk_bf16_f32 v%d, v%d, v%d" % (TMP + 8 + i, b + 2 * i, b + 2 * i + 1))
                vm.issue("buffer_store_dwordx4 %s, v%d, s[28:31], s95 offen%s" % (vr(TMP + 8, 4), vST, SC), "qkv")
                vm.issue("buffer_store_dwordx4 %s, v%d, s[28:31], s96 offen%s" % (vr(TMP + 12, 4), vST, SC), "qkv")
            else:
                a("s_add_u32 s94, s91, %s" % hx(VF))
                a("s_nop 7")
                b = ACC + 48
                for i in range(8): a("v_cvt_pk_bf16_f32 v%d, v%d, v%d" % (TMP + i, b + 2 * i, b + 2 * i + 1))
                for j in range(2):
                    vm.issue("buffer_store_dwordx4 %s, v%d, s[28:31], s94 offen offset:%d%s" % (vr(TMP + 4 * j, 4), vST, j * 512, SC), "qkv")
        def barrier(s):
            vm.wait(("d", s))
            a("s_barrier")
        barrier(0)
        gen1.stamp(a, 2)
        for it in reads(0) + reads(1): emit(it)
        pend = dma(2) + dma(3)
        for g in range(64):
            nxt = []
            if g < 30: nxt = [g + 2]
            elif g == 30: nxt = []
            elif g < 63: nxt = [g + 1]
            O = []
            bar = None
            for g2 in nxt:
                if g2 % 4 == 0: bar = g2 // 4
                O += reads(g2)
            if bar is not None:
                assert not any(it[2] == ("d", bar) for grp in pend for it in grp), (g, bar)
                pend += dma(bar + 3) if bar + 3 <= 15 else []
            for _ in range(2 if len(pend) > 4 else 1):
                if pend: O += pend.pop(0)
            if g == 17: O.append(("f", gi, None))
            if g == 25: O.append(("f", gc, None))
            M = mfmas(g)
            lg.wait(g)
            if g in GST: gen1.stamp(a, 3 + GST.index(g))
            if g == 32:
                for m in M[:-1]: a(m)
                for it in O: emit(it)
                epi1()
                a("s_nop 1")
                a(M[-1])
                continue
            n = len(M); per = -(-len(O) // n)
            for i, m in enumerate(M):
                a(m)
                if i == 0 and bar is not None: barrier(bar)
                for it in O[i * per:(i + 1) * per]: emit(it)
        gen1.stamp(a, 8)
        srd(a, 32, 14, HF, 7 * MB)
        a("s_mul_i32 s94, s90, 112")
        a("s_mul_i32 s95, s19, 7")
        a("s_add_u32 s94, s94, s95")
        a("s_add_u32 s94, s94, %d" % (0 if hf == 0 else 3))
        a("s_lshl_b32 s94, s94, 10")
        a("s_mov_b32 s92, %s" % hx(f2u(-LOG2E))); a("s_mov_b32 s93, s92")
        a("s_mov_b32 s96, 1.0"); a("s_mov_b32 s97, 1.0")
        a("s_nop 1")
        for n, ac in enumerate(P2):
            G = ACC + 16 * ac; U = G + 8; E = WF + 8 * n; P = TMP + 4 * n
            for i in range(4): a("v_pk_mul_f32 %s, %s, s[92:93]" % (vr(E + 2 * i, 2), vr(G + 2 * i, 2)))
            for i in range(8): a("v_exp_f32 v%d, v%d" % (E + i, E + i))
            for i in range(4): a("v_pk_mul_f32 %s, %s, %s" % (vr(G + 2 * i, 2), vr(G + 2 * i, 2), vr(U + 2 * i, 2)))
            for i in range(4): a("v_pk_add_f32 %s, %s, s[96:97]" % (vr(E + 2 * i, 2), vr(E + 2 * i, 2)))
            for i in range(8): a("v_rcp_f32 v%d, v%d" % (E + i, E + i))
            a("s_nop 0")
            for i in range(4): a("v_pk_mul_f32 %s, %s, %s" % (vr(G + 2 * i, 2), vr(G + 2 * i, 2), vr(E + 2 * i, 2)))
            for i in range(4): a("v_cvt_pk_bf16_f32 v%d, v%d, v%d" % (P + i, G + 2 * i, G + 2 * i + 1))
            vm.issue("buffer_store_dwordx4 %s, v1, s[32:35], s94 offen offset:%d%s" % (vr(P, 4), n * 1024, SC), "h")
        gen1.stamp_end(a, 0, 14, 5)
        a("s_endpgm")
    half(0)
    a.label("KA_H1")
    half(1)
    a.label("KA_END")
    a("s_endpgm")
    return name, 256, "grid=(256,1,1) block=(512,1,1) lds=%d" % (ANS * ASLOT)

def build(out, kernels):
    a = Asm()
    ks = []
    a('.amdgcn_target "amdgcn-amd-amdhsa--gfx950"')
    a(".text")
    for k in kernels: ks.append(k(a))
    body = a.text()
    errs = check_text(body)
    for e in errs[:40]: print("CHECK:", e)
    hdr = "; gated mix of softmax attention and SwiGLU FFN; generated by the scripts in gen/\n"
    for (n, nv, l) in ks: hdr += "; @launch kernel=%s %s\n" % (n, l)
    txt = hdr + body + '.section .rodata,"a"\n' + "".join(descriptor(n, nv) for (n, nv, l) in ks)
    open(out, "w").write(txt)
    print("wrote", out, len(txt), "bytes;", len(errs), "check errors")

if __name__ == "__main__":
    if "stamp" in sys.argv: gen1.STAMP = True
    if "expa" in sys.argv: EXP = "a"
    for x in sys.argv:
        if x == "norot": ROT = False
    build(sys.argv[1], [ka, k2, lambda a: kgemm(a, "kd_kernel", "KD", 48, HF, 112, 4, False), lambda a: kgemm(a, "k3_kernel", "K3", 16, OF, 32, 8, True)])
```

```python
import sys
sys.path.insert(0, "gen")
import gen1
from gen1 import *
from asmlib import *
from gen2 import gate_code, build
SC = " sc1"
ASLOT = 32768; ANS = 5
GST = [16, 32, 40, 48, 56]
ROT = 8
GCG = 5
QSC = SC
NOST = False

def ab_prologue(a, endlabel):
    a("s_load_dwordx4 s[4:7], s[0:1], 0")
    a("s_cmp_ge_u32 s2, 256")
    a("s_cbranch_scc1 %s" % endlabel)
    a("s_load_dwordx4 s[8:11], s[0:1], 32")
    a("s_load_dwordx2 s[12:13], s[0:1], 56")
    a("s_load_dwordx2 s[14:15], s[0:1], 80")
    gen1.stamp_begin(a)
    a("v_lshrrev_b32 v1, 6, v0")
    a("v_and_b32 v0, 63, v0")
    a("s_and_b32 s16, s2, 7")
    a("v_readfirstlane_b32 s3, v1")
    a("s_lshr_b32 s17, s2, 3")
    a("s_and_b32 s18, s16, 1")
    a("s_lshl_b32 s18, s18, 3")
    a("s_and_b32 s19, s17, 7")
    a("s_add_u32 s18, s18, s19")
    a("s_lshr_b32 s54, s16, 1")
    a("s_lshl_b32 s19, s54, 2")
    a("s_lshr_b32 s55, s17, 3")
    a("s_add_u32 s19, s19, s55")
    a("s_and_b32 s36, s3, 3")
    a("s_lshr_b32 s37, s3, 2")
    a("v_lshlrev_b32 v1, 4, v0")

def phase_ab(a, tail):
    X = 128; ACC = 64; WF = 32
    vAX, vT, vST, vAW1, vAW2, vD = 2, 3, 4, 5, 7, 11
    a("v_lshrrev_b32 v20, 4, v0")
    a("v_and_b32 v21, 7, v0")
    a("v_xor_b32 v22, v21, v20")
    a("v_lshlrev_b32 v22, 4, v22")
    a("v_lshrrev_b32 v23, 3, v0")
    a("v_lshl_add_u32 v22, v23, 10, v22")
    a("s_lshl_b32 s58, s3, 14")
    a("v_add_u32 v%d, s58, v22" % vD)
    a("v_xor_b32 v%d, 64, v%d" % (vD + 1, vD))
    a("v_add_u32 v%d, %d, v%d" % (vD + 1, 7168, vD + 1))
    a("v_and_b32 v22, 1, v20")
    a("v_lshlrev_b32 v22, 2, v22")
    a("v_xor_b32 v22, v22, v21")
    a("s_lshl_b32 s58, s3, 3")
    a("v_add_u32 v23, s58, v23")
    a("v_mul_u32_u24 v23, 3072, v23")
    a("v_lshl_add_u32 v%d, v22, 4, v23" % (vD + 2))
    a("s_lshl_b32 s56, s3, 11")
    a("s_lshl_b32 s57, s3, 10")
    a("s_add_u32 s57, s57, 16384")
    a("s_lshl_b32 s44, s18, 17")
    a("s_lshl_b32 s45, s19, 7")
    a("s_sub_u32 s46, %d, s45" % (512 * 3072))
    a("s_lshl_b32 s50, s55, 1")
    a("s_add_u32 s50, s50, s18")
    if ROT != 8:
        a("s_add_u32 s50, s55, s18")
        a("s_and_b32 s50, s50, %d" % (ROT - 1))
        a("s_mul_i32 s50, s50, %d" % (8 // ROT))
    a("s_lshl_b32 s51, s54, 8")
    a("s_sub_u32 s51, 1920, s51")
    a("s_add_u32 s58, s55, 1")
    a("s_bitcmp1_b32 s58, 1")
    a("s_cselect_b32 s52, 1, 0")
    a("s_waitcnt lgkmcnt(0)")
    gen1.stamp(a, 1)
    srd(a, 20, 4, "s44", 128 * 1024)
    srd(a, 24, 6, "s45", "s46")
    a("s_cmp_eq_u32 s52, 0")
    a("s_cbranch_scc1 AB_P")
    a("s_cmp_eq_u32 s37, 0")
    a("s_cbranch_scc0 AB_R1")

    def stream(kind):
        P = kind == "P"
        vm = VM(a); lg = VM(a, "lgkmcnt", 15)
        def dma(s):
            slot = (s % ANS) * ASLOT
            tag = ("d", s)
            G = []
            pre = [("s", "s_add_u32 s48, s50, %d" % (s % 8)), ("s", "s_and_b32 s48, s48, 7"),
                   ("s", "s_mul_i32 s49, s48, %d" % (64 * (3072 if s < 8 else 3584)))]
            def grp(m0, off, txt): G.append([("s", "s_add_u32 m0, %s, %d" % (m0, off)), ("s", "s_nop 0"), ("v", txt)])
            if s < 8:
                pre.append(("s", "s_lshl_b32 s48, s48, 7"))
                for i in range(2):
                    grp("s56", slot, "buffer_load_dwordx4 v%d, s[20:23], s48 offen offset:%d lds" % (vD + i, 1024 * i))
                grp("s57", slot, "buffer_load_dwordx4 v%d, s[24:27], s49 offen lds" % (vD + 2))
                if not P:
                    grp("s57", slot + 8192, "buffer_load_dwordx4 v%d, s[24:27], s49 offen lds" % (vD + 2))
                    G[-1][1] = ("s", "s_add_u32 s49, s49, s51")
            elif P:
                for i in range(4):
                    up = i // 2
                    grp("s56", slot + up * 16384, "buffer_load_dwordx4 v%d, s[%d:%d], s49 offen offset:%d lds" % (vD + 3 + i, 40 + 4 * up, 43 + 4 * up, 1024 * (i % 2)))
            else:
                for i in range(3):
                    grp("s59", slot, "buffer_load_dwordx4 v%d, s[40:43], s49 offen offset:%d lds" % (vD + 3 + i, 1024 * i))
            last = None
            for g in G:
                if g[0][1] == last: del g[0:2]
                else: last = g[0][1]
            G[0] = [G[0][0]] + pre + G[0][2:]
            return [[(k, t, tag) for (k, t) in g] for g in G]
        def flat(G): return [x for g in G for x in g]
        def emit(it):
            k, t, tag = it
            if k == "v": vm.issue(t, tag)
            elif k == "l": lg.issue(t, tag)
            elif k == "f": t()
            else: a(t)
        gi0, gc0 = gate_code(a, vm, "s[28:31]", "s[20:23]", "s39", X + 112)
        for it in flat(dma(0)): emit(it)
        srd(a, 28, 12, 0, 1024)
        a("s_lshl_b32 s60, s19, 3")
        a("s_add_u32 s60, s60, s3")
        a("s_lshl_b32 s39, s60, 10")
        gi0()
        a("s_barrier")
        for it in flat(dma(1)): emit(it)
        a("s_mul_i32 s53, s54, 28")
        if P:
            a("s_cmp_eq_u32 s55, 0")
            a("s_cselect_b32 s38, 0, 20")
        else:
            a("s_cmp_eq_u32 s55, 1")
            a("s_cselect_b32 s38, 8, 14")
        a("s_add_u32 s53, s53, s38")
        a("s_lshl_b32 s38, s53, 5")
        a("s_sub_u32 s39, %d, s38" % (512 * 3584))
        if P:
            srd(a, 40, 8, "s38", "s39")
            srd(a, 44, 10, "s38", "s39")
            a("v_lshlrev_b32 v21, 1, v20")
            a("v_and_b32 v22, 15, v0")
            a("v_xor_b32 v21, v21, v22")
            a("s_lshl_b32 s58, s3, 3")
            a("v_add_u32 v22, s58, v20")
            a("v_mul_u32_u24 v22, 3584, v22")
            a("v_lshl_add_u32 v%d, v21, 4, v22" % (vD + 3))
            a("v_xor_b32 v21, 8, v21")
            a("v_lshl_add_u32 v%d, v21, 4, v22" % (vD + 5))
            a("v_add_u32 v%d, %d, v%d" % (vD + 4, 4 * 3584 - 1024, vD + 3))
            a("v_add_u32 v%d, %d, v%d" % (vD + 6, 4 * 3584 - 1024, vD + 5))
        else:
            up = 1 if kind == "R1" else 0
            srd(a, 40, 8 + 2 * up, "s38", "s39")
            a("s_mul_i32 s59, s36, 3072")
            if up: a("s_add_u32 s59, s59, 12320")
            a("s_mul_i32 s38, s36, 192")
            for i in range(3):
                a("v_add_u32 v21, s38, v0")
                if i: a("v_add_u32 v21, %d, v21" % (64 * i))
                a("v_mul_u32_u24 v22, 5462, v21")
                a("v_lshrrev_b32 v22, 16, v22")
                a("v_mul_u32_u24 v22, %d, v22" % (3584 - 192))
                a("v_lshl_add_u32 v%d, v21, 4, v22" % (vD + 3 + i))
                if i: a("v_subrev_u32 v%d, %d, v%d" % (vD + 3 + i, 1024 * i, vD + 3 + i))
        a("v_and_b32 v24, 31, v0")
        a("v_lshrrev_b32 v25, 5, v0")
        a("v_bfe_u32 v26, v0, 1, 3")
        a("v_xor_b32 v26, v25, v26")
        a("v_lshlrev_b32 v26, 4, v26")
        a("v_lshl_add_u32 v26, v24, 7, v26")
        a("s_lshl_b32 s38, s36, 12")
        a("v_add_u32 v%d, s38, v26" % vAX)
        a("v_bfe_u32 v21, v0, 2, 2")
        a("v_lshl_add_u32 v26, v25, 3, v21")
        a("v_bfe_u32 v27, v0, 4, 1")
        a("v_and_b32 v28, 3, v0")
        a("v_lshlrev_b32 v28, 3, v28")
        a("v_lshl_add_u32 v29, v26, 7, v28")
        a("v_lshl_add_u32 v29, v27, 5, v29")
        a("v_bfe_u32 v30, v0, 3, 1")
        if P: a("v_xor_b32 v30, s37, v30")
        a("v_lshl_add_u32 v29, v30, 6, v29")
        a("v_add_u32 v%d, %d, v29" % (vAW1, 16384 + (8192 if kind == "R1" else 0)))
        if not P: a("v_xor_b32 v%d, 64, v%d" % (vAW1 + 1, vAW1))
        s8 = (8 % ANS) * ASLOT
        if P:
            a("v_xor_b32 v30, s37, v27")
            a("v_lshl_add_u32 v30, v30, 2, v21")
            a("v_lshl_add_u32 v29, v30, 5, v28")
            a("v_lshl_add_u32 v29, v26, 8, v29")
            a("v_lshl_add_u32 v29, v27, 14, v29")
            a("v_add_u32 v%d, %d, v29" % (vAW2, s8))
            for n in range(1, 4): a("v_xor_b32 v%d, %d, v%d" % (vAW2 + n, 32 * n, vAW2))
        else:
            a("v_mul_u32_u24 v29, 192, v26")
            a("v_add_u32 v29, v29, v28")
            a("v_mul_u32_u24 v30, 12320, v27")
            a("v_add_u32 v29, v29, v30")
            a("v_add_u32 v%d, %d, v29" % (vAW2, s8 + (96 if kind == "R1" else 0)))
        a("s_lshl_b32 s90, s18, 2")
        a("s_add_u32 s90, s90, s36")
        a("s_lshl_b32 s91, s90, 10")
        if kind != "R1":
            a("s_cmp_lt_u32 s19, 8")
            a("s_cselect_b32 s92, %s, 1.0" % hx(f2u(0.25 * LOG2E)))
            a("s_cselect_b32 s38, 0, 12")
            a("s_mov_b32 s93, s92")
            a("v_lshrrev_b32 v29, 1, v24")
            a("v_xor_b32 v29, v24, v29")
            a("v_and_b32 v29, 4, v29")
            a("v_mul_u32_u24 v29, 3, v29")
            a("v_and_b32 v29, s38, v29")
            a("v_xor_b32 v29, v24, v29")
            a("v_lshlrev_b32 v29, 4, v29")
            a("v_lshl_add_u32 v%d, v25, 9, v29" % vST)
            a("s_lshl_b32 s38, s19, 18")
            a("s_add_u32 s91, s91, s38")
            if P:
                a("s_lshl_b32 s38, s37, 17")
                a("s_add_u32 s91, s91, s38")
        else:
            a("v_and_b32 v29, 15, v0")
            a("v_lshlrev_b32 v29, 4, v29")
            a("v_lshl_add_u32 v29, v25, 8, v29")
            a("v_lshl_add_u32 v%d, v27, 16, v29" % vST)
            a("s_lshl_b32 s38, s54, 1")
            a("s_add_u32 s38, s38, s55")
            a("s_sub_u32 s38, s38, 1")
            a("s_lshl_b32 s38, s38, 18")
            a("s_add_u32 s91, s91, s38")
            a("s_add_u32 s91, s91, %s" % hx(VF))
        def gc():
            o = gc0()
            srd(a, 28, 14, GG, 16384)
            a("s_lshl_b32 s39, s18, 7")
            a("s_add_u32 s38, s60, s39")
            a("s_lshl_b32 s38, s38, 3")
            a("v_mov_b32 v20, 0")
            a("s_mov_b32 exec_lo, 0")
            a("s_mov_b32 exec_hi, 0x80000000")
            vm.issue("buffer_store_dwordx2 %s, v20, s[28:31], s38 offen%s" % (vr(o, 2), SC), "gst")
            a("s_mov_b64 exec, -1")
            srd(a, 28, 14, 0, 6 * MB)
        if P: P1 = [3]; P2 = [0, 1, 2, 3]
        else: P1 = [0, 1]; P2 = [2, 3, 0]
        def wf(g, n):
            if g < 32: return WF + 8 * (g % 4) + 4 * n
            return WF + 16 * (g % 2) + 4 * n
        def reads(g):
            s, ks = g // 4, g % 4
            L = []
            if ks == 0 and s not in (0, 8):
                d = (s % ANS - (s - 1) % ANS) * ASLOT
                if s < 8: R = [vAX] + [vAW1 + n for n in range(len(P1))]
                else: R = [vAW2 + n for n in range(4 if P else 1)]
                for r in R: L.append(("s", "v_add_u32 v%d, %s, v%d" % (r, hx(d), r), None))
            if g < 32:
                if ks: L.append(("s", "v_xor_b32 v%d, %d, v%d" % (vT, 32 * ks, vAX), None))
                L.append(("l", "ds_read_b128 %s, v%d" % (vr(X + 4 * g, 4), vT if ks else vAX), g))
                for n in range(len(P1)):
                    for q in range(2):
                        L.append(("l", "ds_read_b64_tr_b16 %s, v%d offset:%d" % (vr(wf(g, n) + 2 * q, 2), vAW1 + n, (16 * ks + 4 * q) * 128), g))
            else:
                for n in range(len(P2)):
                    for q in range(2):
                        if P: ad, off = vAW2 + n, (16 * ks + 4 * q) * 256
                        else: ad, off = vAW2, (16 * ks + 4 * q) * 192 + n * 32
                        L.append(("l", "ds_read_b64_tr_b16 %s, v%d offset:%d" % (vr(wf(g, n) + 2 * q, 2), ad, off), g))
            return L
        def mfmas(g):
            L = []
            x = vr(X + 4 * (g % 32), 4)
            for n, ac in enumerate(P1 if g < 32 else P2):
                d = vr(ACC + 16 * ac, 16); w = vr(wf(g, n), 4)
                A, B = (x, w) if (kind == "R1" and g < 32) else (w, x)
                L.append("v_mfma_f32_32x32x16_bf16 %s, %s, %s, %s" % (d, A, B, "0" if g in (0, 32) else d))
            return L
        def epi1():
            a("s_nop 7")
            for n, ac in enumerate(P1):
                b = ACC + 16 * ac
                if kind != "R1":
                    for i in range(8): a("v_pk_mul_f32 %s, %s, s[92:93]" % (vr(b + 2 * i, 2), vr(b + 2 * i, 2)))
                for i in range(8): a("v_cvt_pk_bf16_f32 v%d, v%d, v%d" % (b + i, b + 2 * i, b + 2 * i + 1))
                if kind != "R1":
                    a("s_add_u32 s94, s91, 0x10000")
                    vm.issue("buffer_store_dwordx4 %s, v%d, s[28:31], s91 offen%s" % (vr(b, 4), vST, QSC), "qkv") if not NOST else None
                    vm.issue("buffer_store_dwordx4 %s, v%d, s[28:31], s94 offen%s" % (vr(b + 4, 4), vST, QSC), "qkv") if not NOST else None
                else:
                    for j in range(2):
                        vm.issue("buffer_store_dwordx4 %s, v%d, s[28:31], s91 offen offset:%d%s" % (vr(b + 4 * j, 4), vST, j * 512, QSC), "qkv") if not NOST else None
                if n + 1 < len(P1): a("s_add_u32 s91, s91, 0x20000")
        def barrier(s):
            vm.wait(("d", s))
            a("s_barrier")
        barrier(0)
        gen1.stamp(a, 2)
        for it in reads(0) + reads(1): emit(it)
        pend = dma(2) + dma(3)
        for g in range(64):
            nxt = []
            if g < 30: nxt = [g + 2]
            elif g == 30: nxt = []
            elif g < 63: nxt = [g + 1]
            O = []
            bar = None
            for g2 in nxt:
                if g2 % 4 == 0: bar = g2 // 4
                O += reads(g2)
            if bar is not None:
                assert not any(it[2] == ("d", bar) for grp in pend for it in grp), (g, bar)
                pend += dma(bar + 3) if bar + 3 <= 15 else []
            for _ in range(2 if len(pend) > 4 else 1):
                if pend: O += pend.pop(0)
            if g == GCG: O.append(("f", gc, None))
            M = mfmas(g)
            lg.wait(g)
            if g in GST: gen1.stamp(a, 3 + GST.index(g))
            if g == 32:
                for m in M[:-1]: a(m)
                for it in O: emit(it)
                epi1()
                a("s_nop 1")
                a(M[-1])
                continue
            n = len(M); per = -(-len(O) // n)
            for i, m in enumerate(M):
                a(m)
                if i == 0 and bar is not None: barrier(bar)
                for it in O[i * per:(i + 1) * per]: emit(it)
        gen1.stamp(a, 8)
        srd(a, 32, 14, HF, 7 * MB)
        a("s_mul_i32 s94, s90, 112")
        a("s_add_u32 s94, s94, s53")
        if P:
            a("s_lshl_b32 s95, s37, 2")
            a("s_add_u32 s94, s94, s95")
        elif kind == "R1": a("s_add_u32 s94, s94, 3")
        a("s_lshl_b32 s94, s94, 10")
        a("s_mov_b32 s92, %s" % hx(f2u(-LOG2E))); a("s_mov_b32 s93, s92")
        a("s_mov_b32 s96, 1.0"); a("s_mov_b32 s97, 1.0")
        a("s_nop 2")
        for n, ac in enumerate(P2):
            G = ACC + 16 * ac; U = G + 8; E = WF + 8 * n
            for i in range(4): a("v_pk_mul_f32 %s, %s, s[92:93]" % (vr(E + 2 * i, 2), vr(G + 2 * i, 2)))
            for i in range(8): a("v_exp_f32 v%d, v%d" % (E + i, E + i))
            for i in range(4): a("v_pk_mul_f32 %s, %s, %s" % (vr(G + 2 * i, 2), vr(G + 2 * i, 2), vr(U + 2 * i, 2)))
            for i in range(4): a("v_pk_add_f32 %s, %s, s[96:97]" % (vr(E + 2 * i, 2), vr(E + 2 * i, 2)))
            for i in range(8): a("v_rcp_f32 v%d, v%d" % (E + i, E + i))
            a("s_nop 0")
            for i in range(4): a("v_pk_mul_f32 %s, %s, %s" % (vr(G + 2 * i, 2), vr(G + 2 * i, 2), vr(E + 2 * i, 2)))
            for i in range(4): a("v_cvt_pk_bf16_f32 v%d, v%d, v%d" % (G + i, G + 2 * i, G + 2 * i + 1))
            vm.issue("buffer_store_dwordx4 %s, v1, s[32:35], s94 offen offset:%d%s" % (vr(G, 4), n * 1024, SC), "h")
        tail(kind, vm)
    stream("R0")
    a.label("AB_R1")
    stream("R1")
    a.label("AB_P")
    stream("P")

def ka(a):
    name = "ka_kernel"
    header(a, name)
    ab_prologue(a, "KA_END")
    def tail(kind, vm):
        gen1.stamp_end(a, 0, 14, 5)
        a("s_endpgm")
    phase_ab(a, tail)
    a.label("KA_END")
    a("s_endpgm")
    return name, 256, "grid=(256,1,1) block=(512,1,1) lds=%d" % (ANS * ASLOT)

if __name__ == "__main__":
    if "stamp" in sys.argv: gen1.STAMP = True
    for x in sys.argv:
        if x.startswith("rot="): ROT = int(x[4:])
    if "nosc" in sys.argv: QSC = ""
    if "nost" in sys.argv: NOST = True
    for x in sys.argv:
        if x.startswith("gst="): GST = [int(y) for y in x[4:].split(",")]
    build(sys.argv[1], [ka, k2, lambda a: kgemm(a, "kd_kernel", "KD", 48, HF, 112, 4, False), lambda a: kgemm(a, "k3_kernel", "K3", 16, OF, 32, 8, True)])
```

```python
import re

TRANS = ("v_exp_f32", "v_log_f32", "v_rcp_f32", "v_rsq_f32", "v_sqrt_f32", "v_sin_f32", "v_cos_f32",
         "v_exp_f16", "v_rcp_iflag_f32")

def regs_of(tok):
    tok = tok.strip()
    tok = tok.lstrip("-")
    m = re.fullmatch(r"abs\((.*)\)", tok)
    if m: tok = m.group(1)
    tok = tok.strip("|")
    m = re.fullmatch(r"([vsa])(\d+)", tok)
    if m: return {tok}
    m = re.fullmatch(r"([vsa])\[(\d+):(\d+)\]", tok)
    if m: return {"%s%d" % (m.group(1), i) for i in range(int(m.group(2)), int(m.group(3)) + 1)}
    if tok in ("vcc", "vcc_lo", "vcc_hi"): return {"vcc"}
    if tok in ("exec", "exec_lo", "exec_hi"): return {"exec"}
    if tok == "m0": return {"m0"}
    return set()

class Ins:
    def __init__(self, text):
        self.text = text
        t = text.split(";")[0].strip()
        parts = t.split(None, 1)
        self.mn = parts[0]
        rest = parts[1] if len(parts) > 1 else ""
        ops = [o.strip() for o in rest.split(",")] if rest else []
        mods = []
        if ops:
            last = ops[-1].split()
            if len(last) > 1:
                ops[-1] = last[0]
                mods = last[1:]
        self.ops = ops
        self.mods = mods
        mn = self.mn
        self.dst = set(); self.src = set()
        self.cls = "other"
        R = [regs_of(o) for o in ops]
        if mn.startswith("v_mfma") or mn.startswith("v_smfmac"):
            self.cls = "mfma"
            self.dst = R[0]
            self.A, self.B = R[1], R[2]
            if mn.startswith("v_smfmac"):
                self.C = R[0]; self.idx = R[3]
                self.src = R[0] | R[1] | R[2] | R[3]
            else:
                self.C = R[3]; self.idx = set()
                self.src = R[1] | R[2] | R[3]
            self.passes = 8 if "32x32" in mn else 4
        elif mn.startswith("v_"):
            self.cls = "valu"
            if mn.startswith("v_cmp"):
                self.dst = R[0]; self.src = set().union(*R[1:])
                if mn.startswith("v_cmpx"): self.dst |= {"exec"}
            elif "permlane" in mn and "swap" in mn:
                self.dst = R[0] | R[1]; self.src = R[0] | R[1]
            elif mn.startswith(("v_add_co", "v_sub_co", "v_addc_co", "v_subb_co", "v_subrev_co")):
                self.dst = R[0] | R[1]; self.src = set().union(*R[2:])
            elif mn == "v_nop":
                pass
            else:
                self.dst = R[0]; self.src = set().union(*R[1:]) if len(R) > 1 else set()
                if mn.startswith(("v_fmac", "v_pk_fmac", "v_dot2c", "v_writelane")) or "UNUSED_PRESERVE" in text:
                    self.src |= R[0]
                if mn.startswith("v_cndmask") and len(ops) == 3: self.src |= {"vcc"}
            self.trans = any(mn.startswith(x) for x in TRANS)
            self.dpp = any(m.startswith(("row_", "quad_perm", "wave_", "bank_mask", "row_mask")) for m in mods) or mn.endswith("_dpp")
        elif mn.startswith(("buffer_", "global_")):
            self.cls = "vmem"
            self.lds = ("lds" in mods) or ("_lds_" in mn)
            if "load" in mn and not self.lds:
                self.dst = R[0]; self.src = set().union(*R[1:])
            elif "atomic" in mn and "sc0" in mods:
                self.dst = R[0]; self.src = set().union(*R)
            else:
                self.src = set().union(*R) if R else set()
            if self.lds: self.src |= {"m0"}
            self.store = "store" in mn or "atomic" in mn
            self.wide = self.store and ("x4" in mn or "x3" in mn)
            self.data = R[0] if (mn.startswith("buffer_store")) else (R[1] if mn.startswith("global_store") else set())
        elif mn.startswith("ds_"):
            self.cls = "ds"
            if mn.startswith(("ds_read", "ds_bpermute", "ds_swizzle", "ds_permute")) or "_rtn" in mn:
                self.dst = R[0]; self.src = set().union(*R[1:])
            else:
                self.src = set().union(*R)
        elif mn.startswith(("s_load", "s_memtime", "s_memrealtime", "s_buffer_load")):
            self.cls = "smem"
            self.dst = R[0]; self.src = set().union(*R[1:]) if len(R) > 1 else set()
        elif mn.startswith("s_"):
            self.cls = "salu"
            if mn.startswith(("s_cmp", "s_bitcmp")):
                self.src = set().union(*R)
            elif mn.startswith(("s_waitcnt", "s_barrier", "s_nop", "s_branch", "s_cbranch", "s_endpgm", "s_setprio", "s_sleep")):
                pass
            else:
                self.dst = R[0] if R else set(); self.src = set().union(*R[1:]) if len(R) > 1 else set()
                if "saveexec" in mn: self.dst |= {"exec"}; self.src |= {"exec"}
        m = re.search(r";\s*W:(\S+)", text)
        if m: self.dst = set(self.dst) | {"tok_" + m.group(1)}
        m = re.search(r";\s*R:(\S+)", text)
        if m: self.src = set(self.src) | {"tok_" + t for t in m.group(1).split(",")}
        self.states = 1
        if mn == "s_nop": self.states = int(ops[0], 0) + 1

def isv(s): return {r for r in s if r[0] in "va" and r not in ("vcc",)}
def iss(s): return {r for r in s if r[0] == "s" or r == "vcc"}

def need(p, c):
    n = 0
    if p.cls == "valu":
        pv = isv(p.dst); ps = iss(p.dst)
        if c.cls == "mfma" and pv & c.src: n = max(n, 2)
        if c.cls == "valu":
            if p.trans and not c.trans and pv & c.src: n = max(n, 1)
            if ("permlane" in c.mn or c.dpp) and pv & c.src: n = max(n, 2)
            if c.mn.startswith(("v_readlane", "v_readfirstlane")) and pv & c.src: n = max(n, 1)
            if ps & c.src: n = max(n, 4 if c.mn.startswith(("v_readlane", "v_writelane")) else 2)
            if ("sdwa" in p.mn or "op_sel" in p.text) and pv & (c.src | c.dst): n = max(n, 1)
            if "exec" in p.dst: n = max(n, 5 if c.dpp else (4 if ("permlane" in c.mn or "lane" in c.mn) else 0))
        if c.cls == "vmem" and ps & c.src: n = max(n, 5)
        if c.cls == "mfma" and "exec" in p.dst: n = max(n, 4)
        if c.cls == "salu" and ps & c.src: n = max(n, 1)
    if p.cls == "mfma":
        big = 12 if p.passes == 8 else 8
        if c.cls == "mfma":
            if p.dst & (c.A | c.B | c.idx): n = max(n, big)
            if p.dst & c.C and p.dst != c.C: n = max(n, 10 if p.passes == 8 else 6)
            if p.dst & c.C and p.dst == c.C and p.passes != c.passes: n = max(n, 10 if p.passes == 8 else 6)
            if p.dst & c.dst and not (p.dst == c.C): n = max(n, 0)
        elif c.cls in ("valu", "vmem", "ds"):
            if p.dst & (c.src | c.dst): n = max(n, big)
            if c.cls == "valu" and p.C & c.dst: n = max(n, 7 if p.passes == 8 else 3)
    if p.cls == "salu":
        if "m0" in p.dst and c.cls == "vmem" and c.lds: n = max(n, 1)
    if p.cls == "vmem" and p.wide and c.cls == "valu" and p.data & c.dst: n = max(n, 2)
    if p.cls == "vmem" and p.wide and c.cls in ("ds", "vmem", "mfma") and p.data & c.dst: n = max(n, 1)
    return n

def check_trace(trace, name=""):
    errs = []
    W = 24
    vm = []
    lg = []
    sm = set()
    for i, c in enumerate(trace):
        d = 0
        for j in range(i - 1, max(-1, i - W), -1):
            p = trace[j]
            n = need(p, c)
            if n > d:
                errs.append("%s: hazard need %d have %d: [%s] -> [%s]" % (name, n, d, p.text.strip(), c.text.strip()))
            d += p.states
            if d > 20: break
        touched = c.src | c.dst
        for (ds_, t) in vm:
            if c.cls == "vmem" and not (isv(ds_) & touched) and not ({x for x in ds_ if x.startswith("tok_")} & c.src): continue
            if ds_ & touched and "kv-ok" not in c.text and not (c.cls == "vmem" and "dummy" in c.text): errs.append("%s: vmcnt: [%s] pending at [%s]" % (name, t.strip(), c.text.strip()))
        for (ds_, t) in lg:
            if ds_ & touched: errs.append("%s: lgkm: [%s] pending at [%s]" % (name, t.strip(), c.text.strip()))
        if sm & touched: errs.append("%s: smem pending at [%s]" % (name, c.text.strip()))
        if c.mn == "s_waitcnt":
            m = re.search(r"vmcnt\((\d+)\)", c.text)
            if m:
                n = int(m.group(1)); vm = vm[len(vm) - n:] if n < len(vm) and n > 0 else ([] if n == 0 else vm)
            m = re.search(r"lgkmcnt\((\d+)\)", c.text)
            if m:
                n = int(m.group(1))
                if n == 0: lg = []; sm = set()
                else:
                    if sm: errs.append("%s: counted lgkmcnt with smem outstanding [%s]" % (name, c.text))
                    lg = lg[len(lg) - n:] if n < len(lg) else lg
        elif c.cls == "vmem":
            vm.append((set(c.dst), c.text))
            if len(vm) > 63: errs.append("%s: more than 63 vmem outstanding at [%s]" % (name, c.text.strip()))
        elif c.cls == "ds":
            lg.append((set(c.dst), c.text))
        elif c.cls == "smem":
            sm |= c.dst
    return errs

class Asm:
    def __init__(self):
        self.lines = []
        self.nlab = 0
    def __call__(self, s):
        for l in s.split("\n"):
            if l.strip(): self.lines.append(l if l.strip().endswith(":") or l.startswith(".") or l.startswith(";") else "    " + l.strip())
    def label(self, name): self.lines.append(name + ":")
    def newlabel(self, p="L"):
        self.nlab += 1
        return "%s_%d" % (p, self.nlab)
    def text(self): return "\n".join(self.lines) + "\n"

def check_text(text, verbose=True):
    lines = text.split("\n")
    items = []
    for l in lines:
        t = l.split(";")[0].strip()
        if not t or t.startswith("."): continue
        if t.endswith(":"): items.append(("label", t[:-1]))
        else: items.append(("ins", Ins(l)))
    labels = {v: i for i, (k, v) in enumerate(items) if k == "label"}
    errs = []
    trace = []; name = "start"
    def expand(lo, hi):
        out = []
        i = lo
        while i < hi:
            k, v = items[i]
            if k == "ins":
                out.append(v)
                if v.mn.startswith("s_cbranch") or v.mn == "s_branch":
                    tgt = labels.get(v.ops[0])
                    if tgt is not None and tgt <= i and tgt >= lo0[0]:
                        body = [x for (kk, x) in items[tgt:i + 1] if kk == "ins"]
                        out += body + body
            i += 1
        return out
    lo0 = [0]
    start = 0
    for i, (k, v) in enumerate(items):
        if k == "ins" and (v.mn == "s_endpgm" or (v.mn == "s_branch" and labels.get(v.ops[0], -1) > i)):
            lo0[0] = start
            nm = next((x for (kk, x) in items[start:i + 1] if kk == "label"), "?")
            errs += check_trace(expand(start, i + 1), nm)
            start = i + 1
    seen = set(); out = []
    for e in errs:
        if e not in seen: seen.add(e); out.append(e)
    return out

class VM:
    def __init__(self, a, name="vmcnt", maxn=63):
        self.a = a; self.ops = []; self.name = name; self.maxn = maxn
    def issue(self, text, tag):
        self.a(text); self.ops.append(tag)
    def count(self, tags):
        last = -1
        for i, t in enumerate(self.ops):
            if t in tags: last = i
        return None if last < 0 else len(self.ops) - 1 - last
    def wait(self, *tags):
        n = self.count(tags)
        if n is None:
            if getattr(self, "force", False): self.a("s_waitcnt %s(%d)" % (self.name, self.maxn))
            return
        n2 = min(n, self.maxn)
        self.a("s_waitcnt %s(%d)" % (self.name, n2))
        self.ops = self.ops[len(self.ops) - n2:] if n2 > 0 else []

def steady_loop(a, trackers, gen_body):
    save = a.lines
    for t in trackers: t.force = True
    txts = []
    for trial in range(3):
        a.lines = []
        gen_body()
        txts.append(a.lines)
    for t in trackers: t.force = False
    a.lines = save
    norm = lambda T: [re.sub(r"JIT_\d+|s_sleep \d+|s_bitcmp.*", "", l) for l in T]
    assert norm(txts[1]) == norm(txts[2]), "loop waits did not converge"
    body = []
    for l1, l2 in zip(txts[0], txts[1]):
        if l1 != l2 and "waitcnt" in l1:
            n1 = int(l1.split("(")[1].split(")")[0]); n2 = int(l2.split("(")[1].split(")")[0])
            l1 = l1 if n1 < n2 else l2
        if l1.strip() in ("s_waitcnt vmcnt(63)", "s_waitcnt lgkmcnt(15)"): continue
        body.append(l1)
    return body
```

```python
import sys
sys.path.insert(0, "gen")
import gen1
from gen1 import *
from asmlib import *
from gen2 import gate_code, build
SC = " sc1"
ASLOT = 32768; ANS = 5
GST = [16, 32, 40, 48, 56]
ROT = 8
GCG = 5
PUBB = 11
POLLG = 58
QSC = SC
NOST = False

def ab_prologue(a, endlabel):
    a("s_load_dwordx4 s[4:7], s[0:1], 0")
    a("s_cmp_ge_u32 s2, 256")
    a("s_cbranch_scc1 %s" % endlabel)
    a("s_load_dwordx4 s[8:11], s[0:1], 32")
    a("s_load_dwordx2 s[12:13], s[0:1], 56")
    a("s_load_dwordx2 s[14:15], s[0:1], 80")
    gen1.stamp_begin(a)
    a("v_lshrrev_b32 v1, 6, v0")
    a("v_and_b32 v0, 63, v0")
    a("s_and_b32 s16, s2, 7")
    a("v_readfirstlane_b32 s3, v1")
    a("s_lshr_b32 s17, s2, 3")
    a("s_and_b32 s18, s16, 1")
    a("s_lshl_b32 s18, s18, 3")
    a("s_and_b32 s19, s17, 7")
    a("s_add_u32 s18, s18, s19")
    a("s_lshr_b32 s54, s16, 1")
    a("s_lshl_b32 s19, s54, 2")
    a("s_lshr_b32 s55, s17, 3")
    a("s_add_u32 s19, s19, s55")
    a("s_and_b32 s36, s3, 3")
    a("s_lshr_b32 s37, s3, 2")
    a("v_lshlrev_b32 v1, 4, v0")

def phase_ab(a, tail, hook=None):
    X = 128; ACC = 64; WF = 32
    vAX, vT, vST, vAW1, vAW2, vD = 2, 3, 4, 5, 7, 11
    a("v_lshrrev_b32 v20, 4, v0")
    a("v_and_b32 v21, 7, v0")
    a("v_xor_b32 v22, v21, v20")
    a("v_lshlrev_b32 v22, 4, v22")
    a("v_lshrrev_b32 v23, 3, v0")
    a("v_lshl_add_u32 v22, v23, 10, v22")
    a("s_lshl_b32 s58, s3, 14")
    a("v_add_u32 v%d, s58, v22" % vD)
    a("v_xor_b32 v%d, 64, v%d" % (vD + 1, vD))
    a("v_add_u32 v%d, %d, v%d" % (vD + 1, 7168, vD + 1))
    a("v_and_b32 v22, 1, v20")
    a("v_lshlrev_b32 v22, 2, v22")
    a("v_xor_b32 v22, v22, v21")
    a("s_lshl_b32 s58, s3, 3")
    a("v_add_u32 v23, s58, v23")
    a("v_mul_u32_u24 v23, 3072, v23")
    a("v_lshl_add_u32 v%d, v22, 4, v23" % (vD + 2))
    a("s_lshl_b32 s56, s3, 11")
    a("s_lshl_b32 s57, s3, 10")
    a("s_add_u32 s57, s57, 16384")
    a("s_lshl_b32 s44, s18, 17")
    a("s_lshl_b32 s45, s19, 7")
    a("s_sub_u32 s46, %d, s45" % (512 * 3072))
    a("s_lshl_b32 s50, s55, 1")
    a("s_add_u32 s50, s50, s18")
    if ROT != 8:
        a("s_add_u32 s50, s55, s18")
        a("s_and_b32 s50, s50, %d" % (ROT - 1))
        a("s_mul_i32 s50, s50, %d" % (8 // ROT))
    a("s_lshl_b32 s51, s54, 8")
    a("s_sub_u32 s51, 1920, s51")
    a("s_add_u32 s58, s55, 1")
    a("s_bitcmp1_b32 s58, 1")
    a("s_cselect_b32 s52, 1, 0")
    a("s_waitcnt lgkmcnt(0)")
    gen1.stamp(a, 1)
    srd(a, 20, 4, "s44", 128 * 1024)
    srd(a, 24, 6, "s45", "s46")
    a("s_cmp_eq_u32 s52, 0")
    a("s_cbranch_scc1 AB_P")
    a("s_cmp_eq_u32 s37, 0")
    a("s_cbranch_scc0 AB_R1")

    def stream(kind):
        P = kind == "P"
        vm = VM(a); lg = VM(a, "lgkmcnt", 15)
        def dma(s):
            slot = (s % ANS) * ASLOT
            tag = ("d", s)
            G = []
            pre = [("s", "s_add_u32 s48, s50, %d" % (s % 8)), ("s", "s_and_b32 s48, s48, 7"),
                   ("s", "s_mul_i32 s49, s48, %d" % (64 * (3072 if s < 8 else 3584)))]
            def grp(m0, off, txt): G.append([("s", "s_add_u32 m0, %s, %d" % (m0, off)), ("s", "s_nop 0"), ("v", txt)])
            if s < 8:
                pre.append(("s", "s_lshl_b32 s48, s48, 7"))
                for i in range(2):
                    grp("s56", slot, "buffer_load_dwordx4 v%d, s[20:23], s48 offen offset:%d lds" % (vD + i, 1024 * i))
                grp("s57", slot, "buffer_load_dwordx4 v%d, s[24:27], s49 offen lds" % (vD + 2))
                if not P:
                    grp("s57", slot + 8192, "buffer_load_dwordx4 v%d, s[24:27], s49 offen lds" % (vD + 2))
                    G[-1][1] = ("s", "s_add_u32 s49, s49, s51")
            elif P:
                for i in range(4):
                    up = i // 2
                    grp("s56", slot + up * 16384, "buffer_load_dwordx4 v%d, s[%d:%d], s49 offen offset:%d lds" % (vD + 3 + i, 40 + 4 * up, 43 + 4 * up, 1024 * (i % 2)))
            else:
                for i in range(3):
                    grp("s59", slot, "buffer_load_dwordx4 v%d, s[40:43], s49 offen offset:%d lds" % (vD + 3 + i, 1024 * i))
            last = None
            for g in G:
                if g[0][1] == last: del g[0:2]
                else: last = g[0][1]
            G[0] = [G[0][0]] + pre + G[0][2:]
            return [[(k, t, tag) for (k, t) in g] for g in G]
        def flat(G): return [x for g in G for x in g]
        def emit(it):
            k, t, tag = it
            if k == "v": vm.issue(t, tag)
            elif k == "l": lg.issue(t, tag)
            elif k == "f": t()
            else: a(t)
        gi0, gc0 = gate_code(a, vm, "s[28:31]", "s[20:23]", "s39", X + 112)
        for it in flat(dma(0)): emit(it)
        srd(a, 28, 12, 0, 1024)
        a("s_lshl_b32 s60, s19, 3")
        a("s_add_u32 s60, s60, s3")
        a("s_lshl_b32 s39, s60, 10")
        gi0()
        a("s_barrier")
        for it in flat(dma(1)): emit(it)
        a("s_mul_i32 s53, s54, 28")
        if P:
            a("s_cmp_eq_u32 s55, 0")
            a("s_cselect_b32 s38, 0, 20")
        else:
            a("s_cmp_eq_u32 s55, 1")
            a("s_cselect_b32 s38, 8, 14")
        a("s_add_u32 s53, s53, s38")
        a("s_lshl_b32 s38, s53, 5")
        a("s_sub_u32 s39, %d, s38" % (512 * 3584))
        if P:
            srd(a, 40, 8, "s38", "s39")
            srd(a, 44, 10, "s38", "s39")
            a("v_lshlrev_b32 v21, 1, v20")
            a("v_and_b32 v22, 15, v0")
            a("v_xor_b32 v21, v21, v22")
            a("s_lshl_b32 s58, s3, 3")
            a("v_add_u32 v22, s58, v20")
            a("v_mul_u32_u24 v22, 3584, v22")
            a("v_lshl_add_u32 v%d, v21, 4, v22" % (vD + 3))
            a("v_xor_b32 v21, 8, v21")
            a("v_lshl_add_u32 v%d, v21, 4, v22" % (vD + 5))
            a("v_add_u32 v%d, %d, v%d" % (vD + 4, 4 * 3584 - 1024, vD + 3))
            a("v_add_u32 v%d, %d, v%d" % (vD + 6, 4 * 3584 - 1024, vD + 5))
        else:
            up = 1 if kind == "R1" else 0
            srd(a, 40, 8 + 2 * up, "s38", "s39")
            a("s_mul_i32 s59, s36, 3072")
            if up: a("s_add_u32 s59, s59, 12320")
            a("s_mul_i32 s38, s36, 192")
            for i in range(3):
                a("v_add_u32 v21, s38, v0")
                if i: a("v_add_u32 v21, %d, v21" % (64 * i))
                a("v_mul_u32_u24 v22, 5462, v21")
                a("v_lshrrev_b32 v22, 16, v22")
                a("v_mul_u32_u24 v22, %d, v22" % (3584 - 192))
                a("v_lshl_add_u32 v%d, v21, 4, v22" % (vD + 3 + i))
                if i: a("v_subrev_u32 v%d, %d, v%d" % (vD + 3 + i, 1024 * i, vD + 3 + i))
        a("v_and_b32 v24, 31, v0")
        a("v_lshrrev_b32 v25, 5, v0")
        a("v_bfe_u32 v26, v0, 1, 3")
        a("v_xor_b32 v26, v25, v26")
        a("v_lshlrev_b32 v26, 4, v26")
        a("v_lshl_add_u32 v26, v24, 7, v26")
        a("s_lshl_b32 s38, s36, 12")
        a("v_add_u32 v%d, s38, v26" % vAX)
        a("v_bfe_u32 v21, v0, 2, 2")
        a("v_lshl_add_u32 v26, v25, 3, v21")
        a("v_bfe_u32 v27, v0, 4, 1")
        a("v_and_b32 v28, 3, v0")
        a("v_lshlrev_b32 v28, 3, v28")
        a("v_lshl_add_u32 v29, v26, 7, v28")
        a("v_lshl_add_u32 v29, v27, 5, v29")
        a("v_bfe_u32 v30, v0, 3, 1")
        if P: a("v_xor_b32 v30, s37, v30")
        a("v_lshl_add_u32 v29, v30, 6, v29")
        a("v_add_u32 v%d, %d, v29" % (vAW1, 16384 + (8192 if kind == "R1" else 0)))
        if not P: a("v_xor_b32 v%d, 64, v%d" % (vAW1 + 1, vAW1))
        s8 = (8 % ANS) * ASLOT
        if P:
            a("v_xor_b32 v30, s37, v27")
            a("v_lshl_add_u32 v30, v30, 2, v21")
            a("v_lshl_add_u32 v29, v30, 5, v28")
            a("v_lshl_add_u32 v29, v26, 8, v29")
            a("v_lshl_add_u32 v29, v27, 14, v29")
            a("v_add_u32 v%d, %d, v29" % (vAW2, s8))
            for n in range(1, 4): a("v_xor_b32 v%d, %d, v%d" % (vAW2 + n, 32 * n, vAW2))
        else:
            a("v_mul_u32_u24 v29, 192, v26")
            a("v_add_u32 v29, v29, v28")
            a("v_mul_u32_u24 v30, 12320, v27")
            a("v_add_u32 v29, v29, v30")
            a("v_add_u32 v%d, %d, v29" % (vAW2, s8 + (96 if kind == "R1" else 0)))
        a("s_lshl_b32 s90, s18, 2")
        a("s_add_u32 s90, s90, s36")
        a("s_lshl_b32 s91, s90, 10")
        if kind != "R1":
            a("s_cmp_lt_u32 s19, 8")
            a("s_cselect_b32 s92, %s, 1.0" % hx(f2u(0.25 * LOG2E)))
            a("s_cselect_b32 s38, 0, 12")
            a("s_mov_b32 s93, s92")
            a("v_lshrrev_b32 v29, 1, v24")
            a("v_xor_b32 v29, v24, v29")
            a("v_and_b32 v29, 4, v29")
            a("v_mul_u32_u24 v29, 3, v29")
            a("v_and_b32 v29, s38, v29")
            a("v_xor_b32 v29, v24, v29")
            a("v_lshlrev_b32 v29, 4, v29")
            a("v_lshl_add_u32 v%d, v25, 9, v29" % vST)
            a("s_lshl_b32 s38, s19, 18")
            a("s_add_u32 s91, s91, s38")
            if P:
                a("s_lshl_b32 s38, s37, 17")
                a("s_add_u32 s91, s91, s38")
        else:
            a("v_and_b32 v29, 15, v0")
            a("v_lshlrev_b32 v29, 4, v29")
            a("v_lshl_add_u32 v29, v25, 8, v29")
            a("v_lshl_add_u32 v%d, v27, 16, v29" % vST)
            a("s_lshl_b32 s38, s54, 1")
            a("s_add_u32 s38, s38, s55")
            a("s_sub_u32 s38, s38, 1")
            a("s_lshl_b32 s38, s38, 18")
            a("s_add_u32 s91, s91, s38")
            a("s_add_u32 s91, s91, %s" % hx(VF))
        def gc():
            o = gc0()
            srd(a, 28, 14, GG, 16384)
            a("s_lshl_b32 s39, s18, 7")
            a("s_add_u32 s38, s60, s39")
            a("s_lshl_b32 s38, s38, 3")
            a("v_mov_b32 v20, 0")
            a("s_mov_b32 exec_lo, 0")
            a("s_mov_b32 exec_hi, 0x80000000")
            vm.issue("buffer_store_dwordx2 %s, v20, s[28:31], s38 offen%s" % (vr(o, 2), SC), "gst")
            a("s_mov_b64 exec, -1")
            srd(a, 28, 14, 0, 6 * MB)
        if P: P1 = [3]; P2 = [0, 1, 2, 3]
        else: P1 = [0, 1]; P2 = [2, 3, 0]
        def wf(g, n):
            if g < 32: return WF + 8 * (g % 4) + 4 * n
            return WF + 16 * (g % 2) + 4 * n
        def reads(g):
            s, ks = g // 4, g % 4
            L = []
            if ks == 0 and s not in (0, 8):
                d = (s % ANS - (s - 1) % ANS) * ASLOT
                if s < 8: R = [vAX] + [vAW1 + n for n in range(len(P1))]
                else: R = [vAW2 + n for n in range(4 if P else 1)]
                for r in R: L.append(("s", "v_add_u32 v%d, %s, v%d" % (r, hx(d), r), None))
            if g < 32:
                if ks: L.append(("s", "v_xor_b32 v%d, %d, v%d" % (vT, 32 * ks, vAX), None))
                L.append(("l", "ds_read_b128 %s, v%d" % (vr(X + 4 * g, 4), vT if ks else vAX), g))
                for n in range(len(P1)):
                    for q in range(2):
                        L.append(("l", "ds_read_b64_tr_b16 %s, v%d offset:%d" % (vr(wf(g, n) + 2 * q, 2), vAW1 + n, (16 * ks + 4 * q) * 128), g))
            else:
                for n in range(len(P2)):
                    for q in range(2):
                        if P: ad, off = vAW2 + n, (16 * ks + 4 * q) * 256
                        else: ad, off = vAW2, (16 * ks + 4 * q) * 192 + n * 32
                        L.append(("l", "ds_read_b64_tr_b16 %s, v%d offset:%d" % (vr(wf(g, n) + 2 * q, 2), ad, off), g))
            return L
        def mfmas(g):
            L = []
            x = vr(X + 4 * (g % 32), 4)
            for n, ac in enumerate(P1 if g < 32 else P2):
                d = vr(ACC + 16 * ac, 16); w = vr(wf(g, n), 4)
                A, B = (x, w) if (kind == "R1" and g < 32) else (w, x)
                L.append("v_mfma_f32_32x32x16_bf16 %s, %s, %s, %s" % (d, A, B, "0" if g in (0, 32) else d))
            return L
        def epi1():
            a("s_nop 7")
            for n, ac in enumerate(P1):
                b = ACC + 16 * ac
                if kind != "R1":
                    for i in range(8): a("v_pk_mul_f32 %s, %s, s[92:93]" % (vr(b + 2 * i, 2), vr(b + 2 * i, 2)))
                for i in range(8): a("v_cvt_pk_bf16_f32 v%d, v%d, v%d" % (b + i, b + 2 * i, b + 2 * i + 1))
                if kind != "R1":
                    a("s_add_u32 s94, s91, 0x10000")
                    vm.issue("buffer_store_dwordx4 %s, v%d, s[28:31], s91 offen%s" % (vr(b, 4), vST, QSC), "qkv") if not NOST else None
                    vm.issue("buffer_store_dwordx4 %s, v%d, s[28:31], s94 offen%s" % (vr(b + 4, 4), vST, QSC), "qkv") if not NOST else None
                else:
                    for j in range(2):
                        vm.issue("buffer_store_dwordx4 %s, v%d, s[28:31], s91 offen offset:%d%s" % (vr(b + 4 * j, 4), vST, j * 512, QSC), "qkv") if not NOST else None
                if n + 1 < len(P1): a("s_add_u32 s91, s91, 0x20000")
        def barrier(s):
            if hook and s == PUBB: vm.wait(("d", s), "qkv", "gst")
            else: vm.wait(("d", s))
            a("s_barrier")
            if hook and s == PUBB: hook(kind, vm, "pub")
        barrier(0)
        gen1.stamp(a, 2)
        for it in reads(0) + reads(1): emit(it)
        pend = dma(2) + dma(3)
        for g in range(64):
            nxt = []
            if g < 30: nxt = [g + 2]
            elif g == 30: nxt = []
            elif g < 63: nxt = [g + 1]
            O = []
            bar = None
            for g2 in nxt:
                if g2 % 4 == 0: bar = g2 // 4
                O += reads(g2)
            if bar is not None:
                assert not any(it[2] == ("d", bar) for grp in pend for it in grp), (g, bar)
                pend += dma(bar + 3) if bar + 3 <= 15 else []
            for _ in range(2 if len(pend) > 4 else 1):
                if pend: O += pend.pop(0)
            if g == GCG: O.append(("f", gc, None))
            if hook and g == 40: O.append(("f", lambda: hook(kind, vm, "setup"), None))
            if hook and g == POLLG: O.append(("f", lambda: hook(kind, vm, "poll"), None))
            M = mfmas(g)
            lg.wait(g)
            if g in GST: gen1.stamp(a, 3 + GST.index(g))
            if g == 32:
                for m in M[:-1]: a(m)
                for it in O: emit(it)
                epi1()
                a("s_nop 1")
                a(M[-1])
                continue
            n = len(M); per = -(-len(O) // n)
            for i, m in enumerate(M):
                a(m)
                if i == 0 and bar is not None: barrier(bar)
                for it in O[i * per:(i + 1) * per]: emit(it)
        gen1.stamp(a, 8 if not hook else 4)
        if hook: hook(kind, vm, "pre_h")
        srd(a, 32, 14, HF, 7 * MB)
        a("s_mul_i32 s94, s90, 112")
        a("s_add_u32 s94, s94, s53")
        if P:
            a("s_lshl_b32 s95, s37, 2")
            a("s_add_u32 s94, s94, s95")
        elif kind == "R1": a("s_add_u32 s94, s94, 3")
        a("s_lshl_b32 s94, s94, 10")
        a("s_mov_b32 s92, %s" % hx(f2u(-LOG2E))); a("s_mov_b32 s93, s92")
        a("s_mov_b32 s96, 1.0"); a("s_mov_b32 s97, 1.0")
        a("s_nop 2")
        for n, ac in enumerate(P2):
            G = ACC + 16 * ac; U = G + 8; E = WF + 8 * n
            for i in range(4): a("v_pk_mul_f32 %s, %s, s[92:93]" % (vr(E + 2 * i, 2), vr(G + 2 * i, 2)))
            for i in range(8): a("v_exp_f32 v%d, v%d" % (E + i, E + i))
            for i in range(4): a("v_pk_mul_f32 %s, %s, %s" % (vr(G + 2 * i, 2), vr(G + 2 * i, 2), vr(U + 2 * i, 2)))
            for i in range(4): a("v_pk_add_f32 %s, %s, s[96:97]" % (vr(E + 2 * i, 2), vr(E + 2 * i, 2)))
            for i in range(8): a("v_rcp_f32 v%d, v%d" % (E + i, E + i))
            a("s_nop 0")
            for i in range(4): a("v_pk_mul_f32 %s, %s, %s" % (vr(G + 2 * i, 2), vr(G + 2 * i, 2), vr(E + 2 * i, 2)))
            for i in range(4): a("v_cvt_pk_bf16_f32 v%d, v%d, v%d" % (G + i, G + 2 * i, G + 2 * i + 1))
            vm.issue("buffer_store_dwordx4 %s, v1, s[32:35], s94 offen offset:%d%s" % (vr(G, 4), n * 1024, SC), "h")
        tail(kind, vm)
    stream("R0")
    a.label("AB_R1")
    stream("R1")
    a.label("AB_P")
    stream("P")

def ka(a):
    name = "ka_kernel"
    header(a, name)
    ab_prologue(a, "KA_END")
    def tail(kind, vm):
        gen1.stamp_end(a, 0, 14, 5)
        a("s_endpgm")
    phase_ab(a, tail)
    a.label("KA_END")
    a("s_endpgm")
    return name, 256, "grid=(256,1,1) block=(512,1,1) lds=%d" % (ANS * ASLOT)

if __name__ == "__main__":
    if "stamp" in sys.argv: gen1.STAMP = True
    for x in sys.argv:
        if x.startswith("rot="): ROT = int(x[4:])
    if "nosc" in sys.argv: QSC = ""
    if "nost" in sys.argv: NOST = True
    for x in sys.argv:
        if x.startswith("gst="): GST = [int(y) for y in x[4:].split(",")]
    build(sys.argv[1], [ka, k2, lambda a: kgemm(a, "kd_kernel", "KD", 48, HF, 112, 4, False), lambda a: kgemm(a, "k3_kernel", "K3", 16, OF, 32, 8, True)])
```

```python
import sys
sys.path.insert(0, "gen")
import gen1, gen3
from gen1 import *
from asmlib import *
from gen2 import build
from gen3 import ab_prologue, phase_ab, SC, ANS, ASLOT

RED = 16896
NLOOP_B = 5
WRING = 131072

def kf(a):
    name = "kf_kernel"
    header(a, name)
    Q = 128; K = [144, 148]; V = [152, 160]; S = [32, 48]; O = 64
    WF = 168; DA = 176; ACT = 240
    vV, vIX, vP, vPO, vLD = 18, 19, 20, 21, 22
    vH1, vW0, vW1, vT0, vT1 = 23, 24, 25, 26, 27
    ab_prologue(a, "KF_END")
    a("s_load_dwordx2 s[100:101], s[0:1], 72")
    def spin(lab, expect, vm):
        vm.wait("poll")
        a("v_cmp_eq_u32 vcc, %d, v%d" % (expect, vP))
        a("s_mov_b32 s38, 0x40000")
        a("s_cmp_eq_u64 vcc, -1")
        a("s_cbranch_scc1 %s_OK" % lab)
        a.label(lab)
        a("s_sleep 8")
        a("buffer_load_dword v%d, v%d, s[84:87], 0 offen sc1" % (vP, vPO))
        a("s_sub_u32 s38, s38, 1")
        a("s_waitcnt vmcnt(0)")
        a("v_cmp_eq_u32 vcc, %d, v%d" % (expect, vP))
        a("s_cselect_b32 s39, 1, 0")
        a("s_cmp_eq_u64 vcc, -1")
        a("s_cselect_b32 s39, 1, s39")
        a("s_cmp_eq_u32 s39, 0")
        a("s_cbranch_scc1 %s" % lab)
        a.label(lab + "_OK")
    def ldK(vm, b):
        vm.issue("buffer_load_dwordx4 %s, v1, s[8:11], s26 offen%s" % (vr(K[b], 4), SC), ("K", b))
        a("s_add_u32 s26, s26, 1024")
    def ldV(vm, b):
        a("s_mov_b64 exec, s[30:31]")
        vm.issue("buffer_load_dwordx4 %s, v%d, s[4:7], s27 offen%s" % (vr(V[b], 4), vV, SC), ("V", b))
        vm.issue("buffer_load_dwordx4 %s, v%d, s[4:7], s27 offen offset:512%s" % (vr(V[b] + 4, 4), vV, SC), ("V", b))
        a("s_mov_b64 exec, -1")
        a("s_add_u32 s27, s27, 1024")
    def hook(kind, vm, where):
        if where == "setup":
            srd(a, 84, 100, 0, 256)
            a("s_and_b32 s89, s2, 7")
            a("s_lshl_b32 s89, s89, 2")
            a("s_bfe_u32 s38, s2, 0x20003")
            a("s_add_u32 s89, s89, s38")
            a("s_lshr_b32 s88, s2, 5")
            a("s_cmp_eq_u32 s3, 0")
            a("s_cselect_b32 s38, 0, 0x1000")
            a("v_mov_b32 v%d, s38" % vLD)
            a("s_lshr_b32 s38, s89, 2")
            a("s_lshr_b32 s39, s38, 1")
            a("s_lshl_b32 s39, s39, 2")
            a("s_and_b32 s58, s38, 1")
            a("s_add_u32 s39, s39, s58")
            a("s_add_u32 s39, s39, 1")
            a("v_and_b32 v%d, 1, v0" % vPO)
            a("v_lshlrev_b32 v%d, 3, v%d" % (vPO, vPO))
            a("v_add_u32 v%d, s38, v%d" % (vPO, vPO))
            a("v_mov_b32 v%d, s39" % vP)
            a("v_cmp_gt_u32 vcc, 32, v0")
            a("s_nop 1")
            a("v_cndmask_b32 v%d, v%d, v%d, vcc" % (vPO, vP, vPO))
            a("v_lshlrev_b32 v%d, 4, v%d" % (vPO, vPO))
        elif where == "pub":
            a("s_lshl_b32 s38, s19, 4")
            a("v_mov_b32 v%d, 1" % vP)
            a("s_mov_b64 exec, 1")
            vm.issue("buffer_atomic_add v%d, v%d, s[84:87], s38 offen sc1" % (vP, vLD), "atom")
            a("s_mov_b64 exec, -1")
        elif where == "poll":
            vm.issue("buffer_load_dword v%d, v%d, s[84:87], 0 offen sc1" % (vP, vPO), "poll")
        elif where == "pre_h":
            a("s_and_b32 s22, s3, 1")
            a("s_lshr_b32 s23, s3, 1")
            a("v_and_b32 v%d, 15, v0" % vV)
            a("v_lshlrev_b32 v%d, 4, v%d" % (vV, vV))
            a("v_lshrrev_b32 v%d, 5, v0" % vIX)
            a("v_lshl_add_u32 v%d, v%d, 8, v%d" % (vV, vIX, vV))
            a("s_lshl_b32 s24, s89, 16")
            a("s_lshl_b32 s25, s88, 3")
            a("s_lshl_b32 s26, s22, 2")
            a("s_add_u32 s25, s25, s26")
            a("s_lshl_b32 s27, s23, 14")
            a("s_add_u32 s27, s27, s24")
            a("s_add_u32 s26, s27, %s" % hx(KF))
            a("s_mov_b32 s30, 0x0000ffff"); a("s_mov_b32 s31, 0x0000ffff")
            srd(a, 8, 14, 0, 4 * MB)
            srd(a, 4, 14, VF, 2 * MB)
            a("v_and_b32 v%d, 31, v0" % vIX)
            a("v_cmp_eq_u32 vcc, 16, v%d" % vIX)
            a("v_mov_b32 v%d, 0x3f803f80" % vIX)
            a("s_nop 0")
            a("v_cndmask_b32 v%d, 0, v%d, vcc" % (V[0], vIX))
            for i in range(1, 16): a("v_mov_b32 v%d, v%d" % (V[0] + i, V[0]))
            a("v_mov_b32 v%d, 0xdddddddd" % vIX)
            spin("KF_SQ_" + kind, 16, vm)
            for s in range(4):
                a("s_add_u32 s28, s23, %d" % s)
                a("s_and_b32 s28, s28, 3")
                a("s_add_u32 s28, s28, s25")
                if s == 0: a("s_mov_b32 s29, s28")
                a("s_lshl_b32 s28, s28, 10")
                a("s_add_u32 s28, s28, s24")
                vm.issue("buffer_load_dwordx4 %s, v1, s[8:11], s28 offen%s" % (vr(Q + 4 * s, 4), SC), "Q")
                if s == 0: ldK(vm, 0)
            ldV(vm, 0); ldK(vm, 1); ldV(vm, 1)
    def tail(kind, vm):
        if kind != "P":
            a("v_mov_b32 v4, 0x1000")
            vm.issue("buffer_store_dword v4, v4, s[84:87], 0 offen", "h")
        assert vm.ops[-14:] == ["Q", ("K", 0), "Q", "Q", "Q", ("V", 0), ("V", 0), ("K", 1), ("V", 1), ("V", 1), "h", "h", "h", "h"], vm.ops
        if kind != "P": a("s_branch KF_C")
    phase_ab(a, tail, hook)
    a.label("KF_C")
    gen1.stamp(a, 5)
    vm = VM(a); vm.ops = ["Q", ("K", 0), "Q", "Q", "Q", ("V", 0), ("V", 0), ("K", 1), ("V", 1), ("V", 1), "h", "h", "h", "h"]
    lg = VM(a, "lgkmcnt", 15)
    a("s_load_dwordx2 s[12:13], s[0:1], 48")
    def QK(sl, kb, sb): a("v_mfma_f32_32x32x16_bf16 %s, %s, %s, 0" % (vr(S[sb], 16), vr(K[kb], 4), vr(Q + 4 * sl, 4)))
    def PV(sl, vb, sb, j): a("v_smfmac_f32_32x32x32_bf16 %s, %s, %s, v%d" % (vr(O + 16 * sl, 16), vr(V[vb] + 4 * j, 4), vr(S[sb] + 8 * j, 8), vIX))
    vm.wait(("K", 0))
    QK(0, 0, 0)
    for i in range(64): a("v_mov_b32 v%d, 0" % (O + i))
    def down_setup():
        a("v_add_u32 v%d, %d, v1" % (vH1, 112 * 1024))
        a("v_bfe_u32 v4, v0, 4, 1")
        a("v_lshlrev_b32 v5, 2, v4")
        a("v_and_b32 v6, 7, v0")
        a("v_xor_b32 v5, v5, v6")
        a("v_lshlrev_b32 v5, 4, v5")
        a("v_lshrrev_b32 v6, 3, v0")
        a("v_lshl_add_u32 v%d, v6, 10, v5" % vW0)
        a("v_add_u32 v%d, %d, v%d" % (vW1, 8192 - 1024, vW0))
        a("v_lshrrev_b32 v5, 5, v0")
        a("v_bfe_u32 v6, v0, 2, 2")
        a("v_lshl_add_u32 v5, v5, 2, v6")
        a("v_bfe_u32 v6, v0, 1, 1")
        a("v_lshl_add_u32 v6, v4, 1, v6")
        a("v_bfe_u32 v7, v0, 3, 1")
        a("v_lshl_add_u32 v6, v7, 2, v6")
        a("v_lshlrev_b32 v6, 4, v6")
        a("v_and_b32 v7, 1, v0")
        a("v_lshl_add_u32 v6, v7, 3, v6")
        a("v_lshl_add_u32 v6, v5, 7, v6")
        a("s_lshl_b32 s40, s3, 12")
        a("s_add_u32 s40, s40, %d" % WRING)
        a("v_add_u32 v%d, s40, v6" % vT0)
        a("v_xor_b32 v%d, 64, v%d" % (vT1, vT0))
        a("s_lshl_b32 s41, s88, 1")
        a("s_and_b32 s42, s89, 3")
        a("s_mul_i32 s42, s42, 3")
        a("s_add_u32 s41, s41, s42")
        a("s_cmp_ge_u32 s41, 14")
        a("s_cselect_b32 s42, 14, 0")
        a("s_sub_u32 s41, s41, s42")
        a("s_mul_i32 s42, s3, 14")
        a("s_add_u32 s43, s42, s41")
        a("s_mul_i32 s42, s89, 224")
        a("s_add_u32 s42, s42, s43")
        a("s_lshl_b32 s42, s42, 10")
        a("s_lshl_b32 s43, s43, 14")
        a("s_lshl_b32 s44, s88, 7")
        a("s_add_u32 s43, s43, s44")
        a("s_waitcnt lgkmcnt(0)")
        srd(a, 48, 12, 0, 1792 * 1024)
        a("s_lshr_b32 s44, s89, 1")
        a("s_lshl_b32 s44, s44, 4")
        a("s_add_u32 s44, s44, 4")
        a("v_mov_b32 v%d, s44" % vPO)
        for r in range(DA, DA + 64): a("v_mov_b32 v%d, 0" % r)
    def ldD(vm, b):
        a("s_add_u32 m0, s40, %d" % (b * 2048))
        vm.issue("buffer_load_dwordx4 %s, v1, s[32:35], s42 offen%s" % (vr(ACT + 8 * b, 4), SC), ("D", b))
        vm.issue("buffer_load_dwordx4 %s, v%d, s[32:35], s42 offen%s" % (vr(ACT + 8 * b + 4, 4), vH1, SC), ("D", b))
        vm.issue("buffer_load_dwordx4 v%d, s[48:51], s43 offen lds ; W:w%d" % (vW0, b), ("D", b))
        vm.issue("buffer_load_dwordx4 v%d, s[48:51], s43 offen offset:1024 lds ; W:w%d" % (vW1, b), ("D", b))
        a("s_add_u32 s41, s41, 1")
        a("s_cmp_eq_u32 s41, 14")
        a("s_cselect_b32 s44, %d, 1" % (-13))
        a("s_cselect_b32 s41, 0, s41")
        a("s_lshl_b32 s45, s44, 10")
        a("s_add_u32 s42, s42, s45")
        a("s_lshl_b32 s45, s44, 14")
        a("s_add_u32 s43, s43, s45")
    def rdW(b):
        for ft in range(2):
            for q in range(2):
                lg.issue("ds_read_b64_tr_b16 %s, v%d offset:%d ; R:w%d" % (vr(WF + 4 * ft + 2 * q, 2), vT0 + ft, b * 2048 + q * 1024, b), ("w", ft))
    def DM(b, n):
        ft, tt = n // 2, n % 2
        lg.wait(("w", ft))
        d = vr(DA + 16 * (2 * tt + ft), 16)
        a("v_mfma_f32_32x32x16_bf16 %s, %s, %s, %s" % (d, vr(WF + 4 * ft, 4), vr(ACT + 8 * b + 4 * tt, 4), d))
    def iteration(first=False, down=False, loop=None, extra=None):
        for b in range(2):
            for sl in range(4):
                sb = sl % 2
                def E(i): a("v_exp_f32 v%d, v%d" % (S[sb] + i, S[sb] + i))
                if down and sl == 0:
                    vm.wait(("D", b)); rdW(b)
                E(0); E(1)
                if sl == 0:
                    if not (first and b == 0):
                        PV(3, 1 - b, 1, 1); ldV(vm, 1 - b)
                else: PV(sl - 1, b, 1 - sb, 1)
                E(2); E(3); E(4)
                if sl == 3:
                    vm.wait(("K", 1 - b))
                    QK(0, 1 - b, 0)
                else:
                    if first and b == 0: vm.wait("Q")
                    QK(sl + 1, b, 1 - sb)
                    if sl == 2: ldK(vm, b)
                for i in range(5, 10): E(i)
                if sl == 0: vm.wait(("V", b))
                PV(sl, b, sb, 0)
                if extra: extra(b, sl)
                for i in range(10, 13): E(i)
                if down:
                    DM(b, sl)
                    if sl == 3: ldD(vm, b)
                if loop and b == 1 and sl == 3:
                    a("s_sub_u32 s46, s46, 1"); a("s_cmp_lg_u32 s46, 0")
                for i in range(13, 16): E(i)
        if loop: a("s_cbranch_scc1 %s" % loop)
    def ex0(b, sl):
        if b == 1 and sl == 0: down_setup()
    iteration(first=True, extra=ex0)
    vm.wait("h")
    a("s_barrier")
    a("s_lshl_b32 s38, s18, 4")
    a("s_add_u32 s38, s38, 4")
    a("v_mov_b32 v%d, 1" % vP)
    a("s_mov_b64 exec, 1")
    vm.issue("buffer_atomic_add v%d, v%d, s[84:87], s38 offen sc1" % (vP, vLD), "atom")
    a("s_mov_b64 exec, -1")
    for it in range(1, 8 - NLOOP_B):
        def ex(b, sl):
            if it == 7 - NLOOP_B and b == 0 and sl == 0:
                vm.issue("buffer_load_dword v%d, v%d, s[84:87], 0 offen sc1" % (vP, vPO), "poll")
            if it == 7 - NLOOP_B and sl == 3:
                if b == 0: spin("KF_SH", 16, vm)
                ldD(vm, b)
        iteration(extra=ex)
    gen1.stamp(a, 6)
    a("s_mov_b32 s46, %d" % NLOOP_B)
    body = steady_loop(a, [vm, lg], lambda: iteration(down=True, loop="KF_LB"))
    a(".p2align 6")
    a.label("KF_LB")
    a.lines += body
    a("s_nop 1")
    PV(3, 1, 1, 1)
    gen1.stamp(a, 7)
    for s in range(1, 4):
        a("s_add_u32 s28, s23, %d" % s)
        a("s_and_b32 s28, s28, 3")
        a("s_lshl_b32 s28, s28, 1")
        a("s_add_u32 s28, s28, s22")
        a("s_mul_i32 s28, s28, 3")
        a("s_add_u32 s28, s28, %d" % (s - 1))
        a("s_mul_i32 s28, s28, 2304")
        a("v_add_u32 v%d, s28, v1" % (S[0] + 2 * s))
        a("v_lshl_add_u32 v%d, v0, 2, s28" % (S[0] + 2 * s + 1))
    for s in range(1, 4):
        if s == 3: a("s_nop 7")
        a("ds_write_b128 v%d, %s" % (S[0] + 2 * s, vr(O + 16 * s, 4)))
        a("ds_write_b128 v%d, %s offset:1024" % (S[0] + 2 * s, vr(O + 16 * s + 4, 4)))
        a("ds_write_b32 v%d, v%d offset:2048" % (S[0] + 2 * s + 1, O + 16 * s + 8))
    a("s_mul_i32 s28, s3, %d" % (3 * 2304))
    a("v_add_u32 v4, s28, v1")
    a("v_lshl_add_u32 v5, v0, 2, s28")
    srd(a, 52, 14, OF, 2 * MB)
    a("s_waitcnt lgkmcnt(0)")
    a("s_barrier")
    for s in range(3):
        a("ds_read_b128 %s, v4 offset:%d" % (vr(O + 16 * (s + 1), 4), s * 2304))
        a("ds_read_b128 %s, v4 offset:%d" % (vr(O + 16 * (s + 1) + 4, 4), s * 2304 + 1024))
        a("ds_read_b32 v%d, v5 offset:%d" % (O + 16 * (s + 1) + 8, s * 2304 + 2048))
    for s in range(3):
        a("s_waitcnt lgkmcnt(%d)" % (6 - 3 * s))
        for i in range(9): a("v_add_f32 v%d, v%d, v%d" % (O + i, O + i, O + 16 * (s + 1) + i))
    a.label("KF_CHK")
    a("v_mov_b32 v4, v%d" % (O + 8))
    a("s_nop 1")
    a("v_permlane32_swap_b32 v%d, v4" % (O + 8))
    a("s_cmp_eq_u32 s46, 1")
    a("s_cbranch_scc1 KF_NORM")
    a("s_mov_b32 s38, %s" % hx(f2u(2.0 ** -60)))
    a("v_mov_b32 v5, %s" % hx(f2u(2.0 ** 40)))
    a("v_mul_f32 v4, 0, v%d" % O)
    for i in range(1, 8): a("v_fmac_f32 v4, 0, v%d" % (O + i))
    a("v_med3_f32 v5, v%d, s38, v5" % (O + 8))
    a("v_add_f32 v5, v5, v4")
    a("v_cmp_eq_f32 vcc, v5, v%d" % (O + 8))
    a("s_nop 1")
    a("s_cmp_eq_u64 vcc, -1")
    a("s_cbranch_scc0 KF_SLOW")
    a.label("KF_NORM")
    a("v_rcp_f32 v4, v%d" % (O + 8))
    a("s_lshl_b32 s28, s29, 5")
    a("s_add_u32 s28, s28, s89")
    a("s_lshl_b32 s28, s28, 10")
    for i in range(8): a("v_mul_f32 v%d, v%d, v4" % (O + i, O + i))
    for i in range(4): a("v_cvt_pk_bf16_f32 v%d, v%d, v%d" % (S[0] + i, O + 2 * i, O + 2 * i + 1))
    vm.issue("buffer_store_dwordx4 %s, v1, s[52:55], s28 offen%s" % (vr(S[0], 4), SC), "o")
    rem = 14 - 2 * NLOOP_B
    for i in range(rem):
        b = i % 2
        vm.wait(("D", b)); rdW(b)
        for n in range(4): DM(b, n)
        if i + 2 < rem: ldD(vm, b)
    gen1.stamp(a, 8)
    a("v_lshrrev_b32 v8, 3, v0")
    a("v_and_b32 v9, 7, v0")
    a("s_lshl_b32 s26, s89, 6")
    a("s_lshl_b32 s27, s3, 3")
    a("s_add_u32 s26, s26, s27")
    a("v_lshlrev_b32 v10, 10, v8")
    a("v_lshl_add_u32 v10, v9, 4, v10")
    a("s_lshl_b32 s27, s26, 10")
    a("s_lshl_b32 s28, s88, 7")
    a("s_add_u32 s27, s27, s28")
    srd(a, 52, 14, BB, 2 * MB)
    a("s_mul_i32 s29, s3, %d" % RED)
    a("v_add_u32 v2, s29, v1")
    a("s_lshr_b32 s29, s3, 2")
    a("s_mul_i32 s29, s29, %d" % (8 * 1056))
    a("s_and_b32 s30, s3, 3")
    a("s_lshl_b32 s30, s30, 7")
    a("s_add_u32 s29, s29, s30")
    a("v_mul_u32_u24 v3, 1056, v9")
    a("v_lshl_add_u32 v3, v8, 4, v3")
    a("v_add_u32 v3, s29, v3")
    a("v_add_u32 v11, %d, v3" % (4 * RED))
    a("s_barrier")
    for t in range(4):
        for g in range(4):
            a("ds_write_b128 v2, %s offset:%d" % (vr(DA + 16 * t + 4 * g, 4), (t * 4 + g) * 1056))
    a("s_waitcnt lgkmcnt(0)")
    a("s_barrier")
    R = 64
    for sw in range(8):
        for h in range(2):
            a("ds_read_b128 %s, v%d offset:%d" % (vr(R + 8 * sw + 4 * h, 4), 3 if sw < 4 else 11, (sw % 4) * RED + h * 512))
    for p in range(4):
        a("s_waitcnt lgkmcnt(%d)" % (12 - 4 * p))
        for i in range(8): a("v_add_f32 v%d, v%d, v%d" % (R + 16 * p + i, R + 16 * p + i, R + 16 * p + 8 + i))
        if p % 2:
            for i in range(8): a("v_add_f32 v%d, v%d, v%d" % (R + 16 * (p - 1) + i, R + 16 * (p - 1) + i, R + 16 * p + i))
    for i in range(8): a("v_add_f32 v%d, v%d, v%d" % (R + i, R + i, R + 32 + i))
    for i in range(4): a("v_cvt_pk_bf16_f32 v%d, v%d, v%d" % (R + 8 + i, R + 2 * i, R + 2 * i + 1))
    a("buffer_store_dwordx4 %s, v10, s[52:55], s27 offen%s" % (vr(R + 8, 4), SC))
    gen1.stamp_end(a, 0, 14, 5)
    a.label("KF_END")
    a("s_endpgm")
    a.label("KF_SLOW")
    vm2 = VM(a)
    CB = O + 16
    a("s_waitcnt vmcnt(0)")
    a("s_add_u32 s26, s24, %s" % hx(KF))
    a("v_mov_b32 v4, 0xff800000")
    a("s_mov_b32 s46, 64")
    a.label("KF_SL1")
    ldK(vm2, 0)
    a("s_waitcnt vmcnt(0)")
    QK(0, 0, 0)
    a("s_nop 15")
    for i in range(8): a("v_max3_f32 v4, v4, v%d, v%d" % (S[0] + 2 * i, S[0] + 2 * i + 1))
    a("s_sub_u32 s46, s46, 1"); a("s_cmp_lg_u32 s46, 0")
    a("s_cbranch_scc1 KF_SL1")
    a("v_mov_b32 v5, v4")
    a("s_nop 1")
    a("v_permlane32_swap_b32 v4, v5")
    a("s_nop 1")
    a("v_max_f32 v4, v4, v5")
    for i in range(16): a("v_sub_f32 v%d, 0, v4" % (CB + i))
    for i in range(16): a("v_mov_b32 v%d, 0" % (O + i))
    a("s_add_u32 s26, s24, %s" % hx(KF))
    a("s_mov_b32 s27, s24")
    a("s_mov_b32 s46, 65")
    a.label("KF_SL2")
    ldK(vm2, 0); ldV(vm2, 0)
    a("s_waitcnt vmcnt(0)")
    a("v_mfma_f32_32x32x16_bf16 %s, %s, %s, %s" % (vr(S[0], 16), vr(K[0], 4), vr(Q, 4), vr(CB, 16)))
    a("s_nop 15")
    for i in range(16): a("v_exp_f32 v%d, v%d" % (S[0] + i, S[0] + i))
    a("s_nop 1")
    PV(0, 0, 0, 0); PV(0, 0, 0, 1)
    a("s_sub_u32 s46, s46, 1"); a("s_cmp_lg_u32 s46, 1")
    a("s_cbranch_scc1 KF_SL2")
    a("s_nop 15")
    a("s_branch KF_CHK")
    a("s_endpgm")
    return name, 256, "grid=(256,1,1) block=(512,1,1) lds=%d" % (ANS * ASLOT)

if __name__ == "__main__":
    if "stamp" in sys.argv: gen1.STAMP = True
    gen3.GST = [32]
    for x in sys.argv:
        if x.startswith("rot="): gen3.ROT = int(x[4:])
        if x.startswith("nb="): NLOOP_B = int(x[3:])
    def k3(a):
        return kgemm(a, "k3_kernel", "K3", 16, OF, 32, 8, True)
    build(sys.argv[1], [kf, k3])
```

```python
import sys
sys.path.insert(0, "gen")
from asmlib import *

MB = 1 << 20
QF = 0; KF = 2*MB; VF = 4*MB; HF = 6*MB; OF = 14*MB; GG = 16*MB; BB = 17*MB
LOG2E = 1.4426950408889634
import struct
def f2u(x): return struct.unpack("<I", struct.pack("<f", x))[0]
def hx(x): return "0x%x" % (x & 0xffffffff)

def vr(b, n): return "v[%d:%d]" % (b, b + n - 1) if n > 1 else "v%d" % b
def sr(b, n): return "s[%d:%d]" % (b, b + n - 1) if n > 1 else "s%d" % b

def srd(a, d, base, off, size):
    if off == 0:
        a("s_mov_b32 s%d, s%d" % (d, base)); a("s_mov_b32 s%d, s%d" % (d + 1, base + 1))
    else:
        a("s_add_u32 s%d, s%d, %s" % (d, base, off if isinstance(off, str) else hx(off)))
        a("s_addc_u32 s%d, s%d, 0" % (d + 1, base + 1))
    a("s_mov_b32 s%d, %s" % (d + 2, size if isinstance(size, str) else hx(size)))
    a("s_mov_b32 s%d, 0x20000" % (d + 3))

STAMP = False
TS = 32 * MB
NST = 10
SMAP = None
def stamp(a, i):
    if not STAMP: return
    if SMAP is not None:
        if i not in SMAP: return
        i = SMAP.index(i) + 1
    elif not isinstance(i, int): return
    a("%s s[%d:%d]" % ("s_memrealtime" if RT else "s_memtime", 62 + 2 * i, 63 + 2 * i))
    a("s_waitcnt lgkmcnt(0)")
RT = False
def stamp_begin(a):
    if not STAMP: return
    a("s_memrealtime s[82:83]")
    a("s_memtime s[62:63]")
    for i in range(1, NST): a("s_mov_b32 s%d, 0" % (62 + 2 * i))
def stamp_end(a, kid, wsreg, n):
    if not STAMP: return
    n = NST - 1
    a("s_mov_b64 exec, -1")
    a("s_waitcnt vmcnt(0)")
    a("s_memtime s[%d:%d]" % (62 + 2 * n, 63 + 2 * n))
    a("s_memrealtime s[98:99]")
    a("s_waitcnt lgkmcnt(0)")
    srd(a, 20, wsreg, TS + kid * MB, MB)
    a("s_lshl_b32 s24, s2, 4")
    a("s_add_u32 s24, s24, s3")
    a("s_lshl_b32 s24, s24, 6")
    vals = ["s82", "s98"] + ["s%d" % (62 + 2 * i) for i in range(n + 1)]
    a("v_mov_b32 v0, 0")
    for i, v in enumerate(vals):
        a("v_mov_b32 v1, %s" % v)
        a("buffer_store_dword v1, v0, s[20:23], s24 offen offset:%d" % (4 * i))
    a("s_waitcnt vmcnt(0)")

def header(a, name):
    a(".globl %s" % name); a(".p2align 8"); a(".type %s,@function" % name); a.label(name)

def descriptor(name, nv, ns=102):
    acc = (nv + 3) // 4 * 4
    return """.p2align 6
.amdhsa_kernel %s
  .amdhsa_next_free_vgpr %d
  .amdhsa_next_free_sgpr %d
  .amdhsa_accum_offset %d
  .amdhsa_group_segment_fixed_size 0
  .amdhsa_kernarg_size 88
  .amdhsa_user_sgpr_count 2
  .amdhsa_user_sgpr_kernarg_segment_ptr 1
  .amdhsa_system_sgpr_workgroup_id_x 1
  .amdhsa_float_denorm_mode_32 3
.end_amdhsa_kernel
""" % (name, nv, ns, acc)

SLOT = 28672; NSLOT = 5
def k1(a):
    name = "k1_kernel"
    header(a, name)
    a("s_cmp_ge_u32 s2, 256")
    a("s_cbranch_scc1 K1_END")
    stamp_begin(a)
    a("s_load_dwordx4 s[4:7], s[0:1], 0")
    a("s_load_dwordx4 s[8:11], s[0:1], 32")
    a("s_load_dwordx2 s[12:13], s[0:1], 56")
    a("s_load_dwordx2 s[14:15], s[0:1], 80")
    a("v_lshrrev_b32 v1, 6, v0")
    a("v_and_b32 v0, 63, v0")
    a("s_and_b32 s16, s2, 7")
    a("v_readfirstlane_b32 s3, v1")
    a("s_lshr_b32 s17, s2, 3")
    a("s_and_b32 s18, s16, 1")
    a("s_lshl_b32 s18, s18, 3")
    a("s_and_b32 s19, s17, 7")
    a("s_add_u32 s18, s18, s19")
    a("s_lshr_b32 s19, s16, 1")
    a("s_lshl_b32 s19, s19, 2")
    a("s_lshr_b32 s17, s17, 3")
    a("s_add_u32 s19, s19, s17")
    a("s_mov_b32 s58, %d" % SLOT)
    a("s_cmp_ge_u32 s3, 4")
    a("s_cbranch_scc1 K1_LOADER")
    a("s_and_b32 s36, s3, 1")
    a("s_lshr_b32 s37, s3, 1")
    AX0, AX1, AQ, AG0, AG1 = 2, 3, 4, 5, 6
    F = [12, 40]; ACC = 68
    def T(tt, c): return ACC + 16 * (2 * c + tt)
    a("v_and_b32 v7, 31, v0")
    a("v_lshrrev_b32 v8, 5, v0")
    a("v_and_b32 v9, 15, v0")
    a("v_bfe_u32 v10, v0, 4, 1")
    a("v_bfe_u32 v11, v0, 2, 2")
    a("v_xor_b32 v11, v8, v11")
    a("v_lshlrev_b32 v11, 4, v11")
    a("s_lshl_b32 s38, s36, 12")
    a("v_lshl_add_u32 v%d, v7, 6, v11" % AX0)
    a("v_add_u32 v%d, s38, v%d" % (AX0, AX0))
    a("v_xor_b32 v%d, 32, v%d" % (AX1, AX0))
    a("v_lshrrev_b32 v15, 2, v9")
    a("v_lshl_add_u32 v12, v8, 3, v15")
    a("v_bfe_u32 v13, v9, 1, 1")
    a("v_lshl_add_u32 v13, v10, 1, v13")
    a("v_and_b32 v14, 1, v9")
    a("v_lshlrev_b32 v14, 3, v14")
    a("v_lshrrev_b32 v16, 3, v9")
    a("v_xor_b32 v16, s37, v16")
    a("v_lshl_add_u32 v16, v16, 2, v13")
    a("v_lshl_add_u32 v16, v16, 4, v14")
    a("v_lshl_add_u32 v16, v12, 7, v16")
    a("v_add_u32 v%d, 8192, v16" % AQ)
    a("s_lshl_b32 s38, s37, 1")
    for u, R in ((0, AG0), (1, AG1)):
        if u: a("s_add_u32 s38, s38, 1")
        a("v_xor_b32 v16, s38, v15")
        a("v_lshl_add_u32 v16, v16, 2, v13")
        a("v_lshl_add_u32 v16, v16, 4, v14")
        a("v_lshl_add_u32 v16, v12, 8, v16")
        a("v_add_u32 v%d, 12288, v16" % R)
    for r in range(ACC, ACC + 160): a("v_mov_b32 v%d, 0" % r)
    a("s_mov_b32 s40, 0")
    a("s_mov_b32 s41, 16")
    def reads(f, ks):
        b = F[f]; L = []
        ax = AX0 if ks == 0 else AX1
        def X(tt): return "ds_read_b128 %s, v%d offset:%d" % (vr(b + 4 * tt, 4), ax, tt * 2048)
        def W(c, q):
            d = vr(b + 8 + 4 * c + 2 * q, 2)
            if c == 0: return "ds_read_b64_tr_b16 %s, v%d offset:%d" % (d, AQ, (16 * ks + 4 * q) * 128)
            u = (c - 1) % 2; up = (c - 1) // 2
            return "ds_read_b64_tr_b16 %s, v%d offset:%d" % (d, AG0 + u, (16 * ks + 4 * q) * 256 + up * 8192)
        return [X(0), W(0, 0), W(0, 1), X(1), W(1, 0), W(1, 1), W(2, 0), W(2, 1), W(3, 0), W(3, 1), W(4, 0), W(4, 1)]
    def mf(f, tt, c, swap):
        b = F[f]; x = vr(b + 4 * tt, 4); w = vr(b + 8 + 4 * c, 4); d = vr(T(tt, c), 16)
        if swap and c > 0: return "v_mfma_f32_32x32x16_bf16 %s, %s, %s, %s" % (d, x, w, d)
        return "v_mfma_f32_32x32x16_bf16 %s, %s, %s, %s" % (d, w, x, d)
    stamp(a, 1)
    a("s_barrier")
    stamp(a, 2)
    for r in reads(0, 0): a(r)
    a("s_cmp_ge_u32 s19, 14")
    a("s_cbranch_scc1 K1_ZLOOP")
    def loop(lab, swap):
        a(".p2align 6")
        a.label(lab)
        for ph in range(2):
            R = reads(1 - ph, 1 - ph)
            a("s_waitcnt lgkmcnt(0)")
            n = 0
            for c in range(5):
                for tt in range(2):
                    a(mf(ph, tt, c, swap))
                    if ph == 1 and n == 0: a("s_barrier")
                    if n < 6:
                        a(R[2 * n]); a(R[2 * n + 1])
                    if ph == 0 and n == 6:
                        a("s_add_u32 s40, s40, 1")
                        a("s_cmp_eq_u32 s40, %d" % NSLOT)
                        a("s_cselect_b32 s42, %s, s58" % (hx(-(NSLOT - 1) * SLOT)))
                        a("s_cselect_b32 s40, 0, s40")
                    if ph == 0 and n == 7:
                        for R_ in (AX0, AX1, AQ): a("v_add_u32 v%d, s42, v%d" % (R_, R_))
                    if ph == 0 and n == 8:
                        for R_ in (AG0, AG1): a("v_add_u32 v%d, s42, v%d" % (R_, R_))
                    if ph == 1 and n == 7:
                        a("s_sub_u32 s41, s41, 1")
                        a("s_cmp_lg_u32 s41, 0")
                    n += 1
        a("s_cbranch_scc1 %s" % lab)
    def epi_common():
        a("s_waitcnt lgkmcnt(0)")
        stamp(a, 3)
        srd(a, 20, 14, 0, 6 * MB)
        srd(a, 24, 14, HF, 7 * MB)
        a("s_lshl_b32 s44, s18, 2")
        a("s_lshl_b32 s45, s36, 1")
        a("s_add_u32 s44, s44, s45")
        a("s_lshl_b32 s46, s19, 1")
        a("s_add_u32 s46, s46, s37")
        a("s_lshl_b32 s46, s46, 17")
        a("s_lshl_b32 s45, s44, 10")
        a("s_add_u32 s46, s46, s45")
        a("s_cmp_lt_u32 s19, 8")
        a("s_cselect_b32 s48, %s, 1.0" % hx(f2u(0.25 * LOG2E)))
        a("s_mov_b32 s49, s48")
        a("s_cselect_b32 s50, 0, 12")
        a("v_lshrrev_b32 v11, 1, v7")
        a("v_xor_b32 v11, v7, v11")
        a("v_and_b32 v11, 4, v11")
        a("v_mul_u32_u24 v11, 3, v11")
        a("v_and_b32 v11, s50, v11")
        a("v_xor_b32 v11, v7, v11")
        a("v_lshlrev_b32 v11, 4, v11")
        a("v_lshl_add_u32 v11, v8, 9, v11")
        a("v_lshlrev_b32 v2, 4, v0")
        a("s_nop 7")
        TMP = 12
        for tt in range(2):
            b = T(tt, 0)
            for i in range(8): a("v_pk_mul_f32 %s, %s, s[48:49]" % (vr(b + 2 * i, 2), vr(b + 2 * i, 2)))
            for i in range(8): a("v_cvt_pk_bf16_f32 v%d, v%d, v%d" % (TMP + 8 * tt + i, b + 2 * i, b + 2 * i + 1))
            a("s_add_u32 s47, s46, 0x10000")
            a("buffer_store_dwordx4 %s, v11, s[20:23], s46 offen offset:%d" % (vr(TMP + 8 * tt, 4), tt * 1024))
            a("buffer_store_dwordx4 %s, v11, s[20:23], s47 offen offset:%d" % (vr(TMP + 8 * tt + 4, 4), tt * 1024))
    loop("K1_XLOOP", False)
    epi_common()
    a("s_mov_b32 s52, %s" % hx(f2u(-LOG2E))); a("s_mov_b32 s53, s52")
    a("s_mov_b32 s54, 1.0"); a("s_mov_b32 s55, 1.0")
    a("s_mul_i32 s56, s44, 112")
    a("s_lshl_b32 s57, s19, 3")
    a("s_add_u32 s56, s56, s57")
    a("s_lshl_b32 s57, s37, 2")
    a("s_add_u32 s56, s56, s57")
    a("s_lshl_b32 s56, s56, 10")
    a("s_add_u32 s57, s56, %d" % (112 * 1024))
    E = 228
    for tt in range(2):
        for u in range(2):
            G = T(tt, 1 + u); U = T(tt, 3 + u); P = 28 + 8 * (2 * tt + u)
            for i in range(8): a("v_pk_mul_f32 %s, %s, s[52:53]" % (vr(E + 2 * i, 2), vr(G + 2 * i, 2)))
            for i in range(16): a("v_exp_f32 v%d, v%d" % (E + i, E + i))
            for i in range(8): a("v_pk_mul_f32 %s, %s, %s" % (vr(G + 2 * i, 2), vr(G + 2 * i, 2), vr(U + 2 * i, 2)))
            for i in range(8): a("v_pk_add_f32 %s, %s, s[54:55]" % (vr(E + 2 * i, 2), vr(E + 2 * i, 2)))
            for i in range(16): a("v_rcp_f32 v%d, v%d" % (E + i, E + i))
            a("s_nop 0")
            for i in range(8): a("v_pk_mul_f32 %s, %s, %s" % (vr(G + 2 * i, 2), vr(G + 2 * i, 2), vr(E + 2 * i, 2)))
            for i in range(8): a("v_cvt_pk_bf16_f32 v%d, v%d, v%d" % (P + i, G + 2 * i, G + 2 * i + 1))
            for jj in range(2):
                a("buffer_store_dwordx4 %s, v2, s[24:27], s%d offen offset:%d" % (vr(P + 4 * jj, 4), 56 + tt, u * 2048 + jj * 1024))
    stamp(a, 4)
    stamp_end(a, 0, 14, 5)
    a("s_endpgm")
    loop("K1_ZLOOP", True)
    epi_common()
    a("v_lshlrev_b32 v3, 16, v10")
    a("v_lshl_add_u32 v3, v8, 8, v3")
    a("v_lshl_add_u32 v3, v9, 4, v3")
    a("s_sub_u32 s56, s19, 14")
    a("s_lshl_b32 s56, s56, 3")
    a("s_lshl_b32 s57, s37, 1")
    a("s_add_u32 s56, s56, s57")
    a("s_lshl_b32 s56, s56, 17")
    a("s_add_u32 s56, s56, s45")
    a("s_add_u32 s56, s56, %s" % hx(VF))
    n = 0
    for part in range(2):
        for u in range(2):
            a("s_add_u32 s57, s56, %s" % hx((4 * part + u) << 17))
            for tt in range(2):
                b = T(tt, 1 + 2 * part + u); P = 28 + 8 * (n % 4); n += 1
                for i in range(8): a("v_cvt_pk_bf16_f32 v%d, v%d, v%d" % (P + i, b + 2 * i, b + 2 * i + 1))
                for j in range(2):
                    a("buffer_store_dwordx4 %s, v3, s[20:23], s57 offen offset:%d" % (vr(P + 4 * j, 4), tt * 1024 + j * 512))
    stamp(a, 4)
    stamp_end(a, 0, 14, 5)
    a("s_endpgm")
    a.label("K1_LOADER")
    a("s_sub_u32 s36, s3, 4")
    a("s_waitcnt lgkmcnt(0)")
    a("s_lshl_b32 s38, s18, 17")
    srd(a, 20, 4, "s38", 128 * 1024)
    a("s_lshl_b32 s38, s19, 7")
    a("s_sub_u32 s39, %d, s38" % (512 * 3072))
    srd(a, 24, 6, "s38", "s39")
    a("s_cmp_ge_u32 s19, 14")
    a("s_cbranch_scc1 K1_LZ")
    a("s_lshl_b32 s38, s19, 8")
    a("s_sub_u32 s39, %d, s38" % (512 * 3584))
    srd(a, 28, 8, "s38", "s39")
    srd(a, 32, 10, "s38", "s39")
    a("s_mov_b32 s37, 3584")
    a("s_branch K1_LGO")
    a.label("K1_LZ")
    a("s_sub_u32 s38, s19, 14")
    a("s_lshl_b32 s38, s38, 9")
    a("s_add_u32 s38, s38, 2048")
    a("s_sub_u32 s39, %d, s38" % (512 * 3072))
    srd(a, 28, 6, "s38", "s39")
    a("s_add_u32 s38, s38, 256")
    a("s_sub_u32 s39, s39, 256")
    srd(a, 32, 6, "s38", "s39")
    a("s_mov_b32 s37, 3072")
    a.label("K1_LGO")
    a("v_lshrrev_b32 v8, 4, v0")
    a("v_and_b32 v9, 3, v0")
    a("v_xor_b32 v9, v9, v8")
    a("v_lshlrev_b32 v9, 4, v9")
    a("v_lshrrev_b32 v10, 2, v0")
    a("v_lshl_add_u32 v2, v10, 10, v9")
    a("s_lshl_b32 s38, s36, 15")
    a("v_add_u32 v2, s38, v2")
    a("v_add_u32 v3, %d, v2" % (16384 - 1024))
    a("v_and_b32 v9, 1, v8")
    a("v_lshlrev_b32 v9, 2, v9")
    a("v_and_b32 v10, 7, v0")
    a("v_xor_b32 v9, v9, v10")
    a("v_lshlrev_b32 v9, 4, v9")
    a("v_lshrrev_b32 v10, 3, v0")
    a("s_lshl_b32 s38, s36, 3")
    a("v_add_u32 v10, s38, v10")
    a("v_mul_u32_u24 v10, 3072, v10")
    a("v_add_u32 v4, v10, v9")
    a("v_lshlrev_b32 v9, 2, v8")
    a("v_and_b32 v10, 15, v0")
    a("v_xor_b32 v9, v9, v10")
    a("v_lshlrev_b32 v9, 4, v9")
    a("v_add_u32 v10, s38, v8")
    a("v_mul_u32_u24 v10, s37, v10")
    a("v_add_u32 v5, v10, v9")
    a("s_lshl_b32 s38, s37, 2")
    a("s_sub_u32 s38, s38, 1024")
    a("v_add_u32 v6, s38, v5")
    a("s_lshl_b32 s40, s36, 11")
    a("s_lshl_b32 s41, s36, 10")
    a("s_add_u32 s41, s41, 8192")
    a("s_add_u32 s42, s40, 12288")
    a("s_add_u32 s43, s40, 20480")
    a("s_mov_b32 s44, 0")
    a("s_mov_b32 s45, 0"); a("s_mov_b32 s46, 0"); a("s_mov_b32 s47, 0")
    a("s_lshl_b32 s48, s37, 5")
    def issue():
        a("s_mov_b32 m0, s40")
        a("s_add_u32 s44, s44, 1")
        a("buffer_load_dwordx4 v2, s[20:23], s45 offen lds")
        a("buffer_load_dwordx4 v3, s[20:23], s45 offen offset:1024 lds")
        a("s_mov_b32 m0, s41")
        a("s_cmp_eq_u32 s44, %d" % NSLOT)
        a("buffer_load_dwordx4 v4, s[24:27], s46 offen lds")
        a("s_mov_b32 m0, s42")
        a("s_cselect_b32 s49, %s, s58" % (hx(-(NSLOT - 1) * SLOT)))
        a("buffer_load_dwordx4 v5, s[28:31], s47 offen lds")
        a("buffer_load_dwordx4 v6, s[28:31], s47 offen offset:1024 lds")
        a("s_mov_b32 m0, s43")
        a("s_cselect_b32 s44, 0, s44")
        a("buffer_load_dwordx4 v5, s[32:35], s47 offen lds")
        a("buffer_load_dwordx4 v6, s[32:35], s47 offen offset:1024 lds")
        for r in (40, 41, 42, 43): a("s_add_u32 s%d, s%d, s49" % (r, r))
        a("s_add_u32 s45, s45, 64")
        a("s_add_u32 s46, s46, %d" % (32 * 3072))
        a("s_add_u32 s47, s47, s48")
    a("s_mov_b32 s50, 5")
    a.label("K1_LPRO")
    issue()
    a("s_sub_u32 s50, s50, 1")
    a("s_cmp_lg_u32 s50, 0")
    a("s_cbranch_scc1 K1_LPRO")
    stamp(a, 1)
    a("s_waitcnt vmcnt(28)")
    stamp(a, 2)
    a("s_barrier")
    a("s_waitcnt vmcnt(21)"); a("s_barrier")
    a("s_mov_b32 s50, 11")
    a.label("K1_LLOOP")
    a("s_waitcnt vmcnt(14)"); a("s_barrier")
    issue()
    a("s_sub_u32 s50, s50, 1")
    a("s_cmp_lg_u32 s50, 0")
    a("s_cbranch_scc1 K1_LLOOP")
    a("s_waitcnt vmcnt(14)"); a("s_barrier")
    a("s_waitcnt vmcnt(7)"); a("s_barrier")
    a("s_waitcnt vmcnt(0)")
    stamp(a, 3)
    a("s_barrier")
    srd(a, 24, 12, 0, 1024)
    srd(a, 28, 14, GG, 16384)
    a("s_lshl_b32 s38, s19, 3")
    a("s_lshl_b32 s39, s36, 1")
    a("s_add_u32 s38, s38, s39")
    a("s_lshl_b32 s39, s38, 10")
    a("v_lshlrev_b32 v2, 4, v0")
    a("buffer_load_dwordx4 v[8:11], v2, s[24:27], 0 offen")
    a("buffer_load_dwordx4 v[12:15], v2, s[20:23], s39 offen")
    a("buffer_load_dwordx4 v[16:19], v2, s[20:23], s39 offen offset:1024")
    a("s_barrier")
    a("s_mov_b32 s40, 0xffff0000")
    a("s_waitcnt vmcnt(0)")
    for i in range(4):
        a("v_lshlrev_b32 v%d, 16, v%d" % (20 + 2 * i, 8 + i))
        a("v_and_b32 v%d, s40, v%d" % (21 + 2 * i, 8 + i))
    for t in range(2):
        x = 12 + 4 * t; acc = 40 + t
        for i in range(4):
            a("v_lshlrev_b32 v28, 16, v%d" % (x + i))
            a("v_and_b32 v29, s40, v%d" % (x + i))
            a("v_mul_f32 v28, v28, v%d" % (20 + 2 * i))
            a("v_mul_f32 v29, v29, v%d" % (21 + 2 * i))
            a("v_cvt_pk_bf16_f32 v28, v28, v29")
            a("v_and_b32 v29, s40, v28")
            a("v_lshlrev_b32 v28, 16, v28")
            if i == 0: a("v_add_f32 v%d, v28, v29" % acc)
            else:
                a("v_add_f32 v28, v28, v29")
                a("v_add_f32 v%d, v%d, v28" % (acc, acc))
    for m in ("row_shr:1", "row_shr:2", "row_shr:4", "row_shr:8"):
        a("s_nop 0")
        for t in range(2): a("v_add_f32_dpp v%d, v%d, v%d %s row_mask:0xf bank_mask:0xf bound_ctrl:0" % (40 + t, 40 + t, 40 + t, m))
    a("s_nop 0")
    for t in range(2): a("v_add_f32_dpp v%d, v%d, v%d row_bcast:15 row_mask:0xa bank_mask:0xf" % (40 + t, 40 + t, 40 + t))
    a("s_nop 0")
    for t in range(2): a("v_add_f32_dpp v%d, v%d, v%d row_bcast:31 row_mask:0xc bank_mask:0xf" % (40 + t, 40 + t, 40 + t))
    a("s_mov_b32 s41, %s" % hx(f2u(-LOG2E)))
    for t in range(2):
        z = 40 + t; o = 44 + 2 * t
        a("v_cvt_pk_bf16_f32 v%d, v%d, v%d" % (z, z, z))
        a("v_and_b32 v%d, s40, v%d" % (z, z))
        a("v_mul_f32 v%d, s41, v%d" % (z, z))
        a("v_exp_f32 v%d, v%d" % (z, z))
        a("s_nop 0")
        a("v_add_f32 v%d, 1.0, v%d" % (z, z))
        a("v_rcp_f32 v%d, v%d" % (z, z))
        a("s_nop 0")
        a("v_cvt_pk_bf16_f32 v%d, v%d, v%d" % (z, z, z))
        a("v_and_b32 v%d, s40, v%d" % (o, z))
        a("v_sub_f32 v%d, 1.0, v%d" % (z, o))
        a("v_cvt_pk_bf16_f32 v%d, v%d, v%d" % (z, z, z))
        a("v_and_b32 v%d, s40, v%d" % (o + 1, z))
    a("s_lshl_b32 s39, s18, 7")
    a("s_add_u32 s38, s38, s39")
    a("s_lshl_b32 s38, s38, 3")
    a("v_mov_b32 v2, 0")
    a("s_mov_b32 exec_lo, 0")
    a("s_mov_b32 exec_hi, 0x80000000")
    a("buffer_store_dwordx4 v[44:47], v2, s[28:31], s38 offen")
    stamp(a, 4)
    stamp_end(a, 0, 14, 5)
    a.label("K1_END")
    a("s_endpgm")
    return name, 256, "grid=(256,1,1) block=(512,1,1) lds=%d" % (NSLOT * SLOT)

def k2(a):
    name = "k2_kernel"
    header(a, name)
    Q = 8; S = [24, 40]; K = [56, 60]; V = [64, 72]; O = 80
    a("s_cmp_ge_u32 s2, 256")
    a("s_cbranch_scc1 K2_END")
    stamp_begin(a)
    a("s_load_dwordx2 s[4:5], s[0:1], 80")
    a("v_lshrrev_b32 v1, 6, v0")
    a("v_and_b32 v0, 63, v0")
    a("s_and_b32 s20, s2, 7")
    a("v_readfirstlane_b32 s3, v1")
    a("s_lshl_b32 s20, s20, 2")
    a("s_bfe_u32 s21, s2, 0x20003")
    a("s_add_u32 s20, s20, s21")
    a("s_lshr_b32 s21, s2, 5")
    a("s_and_b32 s22, s3, 1")
    a("s_lshr_b32 s23, s3, 1")
    a("v_lshlrev_b32 v1, 4, v0")
    a("v_and_b32 v2, 15, v0")
    a("v_lshlrev_b32 v2, 4, v2")
    a("v_lshrrev_b32 v4, 5, v0")
    a("v_lshl_add_u32 v2, v4, 8, v2")
    a("v_mov_b32 v3, 0xdddddddd")
    a("s_lshl_b32 s24, s20, 16")
    a("s_lshl_b32 s25, s21, 3")
    a("s_lshl_b32 s26, s22, 2")
    a("s_add_u32 s25, s25, s26")
    a("s_lshl_b32 s27, s23, 14")
    a("s_add_u32 s27, s27, s24")
    a("s_add_u32 s26, s27, %s" % hx(KF))
    a("s_mov_b32 s30, 0x0000ffff"); a("s_mov_b32 s31, 0x0000ffff")
    for i in range(16): a("v_mov_b32 v%d, 0x3f803f80" % (V[0] + i))
    a("s_waitcnt lgkmcnt(0)")
    srd(a, 8, 4, 0, 4 * MB)
    srd(a, 12, 4, VF, 2 * MB)
    srd(a, 16, 4, OF, 2 * MB)
    for s in range(4):
        a("s_add_u32 s28, s23, %d" % s)
        a("s_and_b32 s28, s28, 3")
        a("s_add_u32 s28, s28, s25")
        if s == 0: a("s_mov_b32 s29, s28")
        a("s_lshl_b32 s28, s28, 10")
        a("s_add_u32 s28, s28, s24")
        a("buffer_load_dwordx4 %s, v1, s[8:11], s28 offen" % vr(Q + 4 * s, 4))
    def ldK(b):
        a("buffer_load_dwordx4 %s, v1, s[8:11], s26 offen" % vr(K[b], 4))
        a("s_add_u32 s26, s26, 1024")
    def ldV(b):
        a("s_mov_b64 exec, s[30:31]")
        a("buffer_load_dwordx4 %s, v2, s[12:15], s27 offen" % vr(V[b], 4))
        a("buffer_load_dwordx4 %s, v2, s[12:15], s27 offen offset:512" % vr(V[b] + 4, 4))
        a("s_mov_b64 exec, -1")
        a("s_add_u32 s27, s27, 1024")
    ldK(0); ldV(0); ldK(1)
    for i in range(64): a("v_mov_b32 v%d, 0" % (O + i))
    for i in range(8): a("v_mov_b32 v%d, 0" % (S[1] + 8 + i))
    def QK(sl, kb, sb): a("v_mfma_f32_32x32x16_bf16 %s, %s, %s, 0" % (vr(S[sb], 16), vr(K[kb], 4), vr(Q + 4 * sl, 4)))
    def PV(sl, vb, sb, j): a("v_smfmac_f32_32x32x32_bf16 %s, %s, %s, v3" % (vr(O + 16 * sl, 16), vr(V[vb] + 4 * j, 4), vr(S[sb] + 8 * j, 8)))
    a("s_mov_b32 s32, 8")
    stamp(a, 1)
    a("s_waitcnt vmcnt(3)")
    stamp(a, 2)
    QK(0, 0, 0)
    a("s_nop 15")
    a(".p2align 6")
    a.label("K2_LOOP")
    for b in range(2):
        for sl in range(4):
            sb = sl % 2
            def E(i): a("v_exp_f32 v%d, v%d" % (S[sb] + i, S[sb] + i))
            E(0); E(1)
            if sl == 0: PV(3, 1 - b, 1, 1); ldV(1 - b)
            else: PV(sl - 1, b, 1 - sb, 1)
            E(2); E(3); E(4)
            if sl == 3:
                a("s_waitcnt vmcnt(3)")
                QK(0, 1 - b, 0)
            else:
                QK(sl + 1, b, 1 - sb)
                if sl == 2: ldK(b)
            for i in range(5, 10): E(i)
            if sl == 0: a("s_waitcnt vmcnt(3)")
            PV(sl, b, sb, 0)
            if b == 1 and sl == 3:
                a("s_sub_u32 s32, s32, 1"); a("s_cmp_lg_u32 s32, 0")
            for i in range(10, 16): E(i)
    a("s_cbranch_scc1 K2_LOOP")
    a("s_nop 1")
    PV(3, 1, 1, 1)
    stamp(a, 3)
    for s in range(1, 4):
        a("s_add_u32 s28, s23, %d" % s)
        a("s_and_b32 s28, s28, 3")
        a("s_lshl_b32 s28, s28, 1")
        a("s_add_u32 s28, s28, s22")
        a("s_mul_i32 s28, s28, 3")
        a("s_add_u32 s28, s28, %d" % (s - 1))
        a("s_mul_i32 s28, s28, 2304")
        a("v_add_u32 v%d, s28, v1" % (S[0] + 2 * s))
        a("v_lshl_add_u32 v%d, v0, 2, s28" % (S[0] + 2 * s + 1))
    for s in range(1, 4):
        if s == 3: a("s_nop 7")
        a("ds_write_b128 v%d, %s" % (S[0] + 2 * s, vr(O + 16 * s, 4)))
        a("ds_write_b128 v%d, %s offset:1024" % (S[0] + 2 * s, vr(O + 16 * s + 4, 4)))
        a("ds_write_b32 v%d, v%d offset:2048" % (S[0] + 2 * s + 1, O + 16 * s + 8))
    a("s_mul_i32 s28, s3, %d" % (3 * 2304))
    a("v_add_u32 v4, s28, v1")
    a("v_lshl_add_u32 v5, v0, 2, s28")
    a("s_waitcnt lgkmcnt(0)")
    a("s_barrier")
    stamp(a, 4)
    for s in range(3):
        a("ds_read_b128 %s, v4 offset:%d" % (vr(O + 16 * (s + 1), 4), s * 2304))
        a("ds_read_b128 %s, v4 offset:%d" % (vr(O + 16 * (s + 1) + 4, 4), s * 2304 + 1024))
        a("ds_read_b32 v%d, v5 offset:%d" % (O + 16 * (s + 1) + 8, s * 2304 + 2048))
    for s in range(3):
        a("s_waitcnt lgkmcnt(%d)" % (6 - 3 * s))
        for i in range(9): a("v_add_f32 v%d, v%d, v%d" % (O + i, O + i, O + 16 * (s + 1) + i))
    a("s_mov_b32 s34, %s" % hx(f2u(2.0 ** -60)))
    a("v_mov_b32 v5, %s" % hx(f2u(2.0 ** 40)))
    a("v_mul_f32 v4, 0, v%d" % O)
    for i in range(1, 8): a("v_fmac_f32 v4, 0, v%d" % (O + i))
    a("v_med3_f32 v5, v%d, s34, v5" % (O + 8))
    a("v_add_f32 v5, v5, v4")
    a("v_cmp_eq_f32 vcc, v5, v%d" % (O + 8))
    a("s_nop 1")
    a("s_cmp_eq_u64 vcc, -1")
    a("s_cbranch_scc0 K2_SLOW")
    a.label("K2_NORM")
    a("v_rcp_f32 v4, v%d" % (O + 8))
    a("s_lshl_b32 s28, s29, 5")
    a("s_add_u32 s28, s28, s20")
    a("s_lshl_b32 s28, s28, 10")
    for i in range(8): a("v_mul_f32 v%d, v%d, v4" % (O + i, O + i))
    for i in range(4): a("v_cvt_pk_bf16_f32 v%d, v%d, v%d" % (S[0] + i, O + 2 * i, O + 2 * i + 1))
    a("buffer_store_dwordx4 %s, v1, s[16:19], s28 offen" % vr(S[0], 4))
    stamp_end(a, 1, 4, 5)
    a.label("K2_END")
    a("s_endpgm")
    a.label("K2_SLOW")
    CB = O + 16
    a("s_waitcnt vmcnt(0)")
    a("s_add_u32 s26, s24, %s" % hx(KF))
    a("v_mov_b32 v4, 0xff800000")
    a("s_mov_b32 s32, 64")
    a.label("K2_SL1")
    ldK(0)
    a("s_waitcnt vmcnt(0)")
    QK(0, 0, 0)
    a("s_nop 15")
    for i in range(8): a("v_max3_f32 v4, v4, v%d, v%d" % (S[0] + 2 * i, S[0] + 2 * i + 1))
    a("s_sub_u32 s32, s32, 1"); a("s_cmp_lg_u32 s32, 0")
    a("s_cbranch_scc1 K2_SL1")
    a("v_mov_b32 v5, v4")
    a("s_nop 1")
    a("v_permlane32_swap_b32 v4, v5")
    a("s_nop 1")
    a("v_max_f32 v4, v4, v5")
    for i in range(16): a("v_sub_f32 v%d, 0, v4" % (CB + i))
    for i in range(16): a("v_mov_b32 v%d, 0" % (O + i))
    a("s_add_u32 s26, s24, %s" % hx(KF))
    a("s_mov_b32 s27, s24")
    a("s_mov_b32 s32, 64")
    a.label("K2_SL2")
    ldK(0); ldV(0)
    a("s_waitcnt vmcnt(0)")
    a("v_mfma_f32_32x32x16_bf16 %s, %s, %s, %s" % (vr(S[0], 16), vr(K[0], 4), vr(Q, 4), vr(CB, 16)))
    a("s_nop 15")
    for i in range(16): a("v_exp_f32 v%d, v%d" % (S[0] + i, S[0] + i))
    a("s_nop 1")
    PV(0, 0, 0, 0); PV(0, 0, 0, 1)
    a("s_sub_u32 s32, s32, 1"); a("s_cmp_lg_u32 s32, 0")
    a("s_cbranch_scc1 K2_SL2")
    a("s_nop 15")
    a("s_branch K2_NORM")
    a("s_endpgm")
    return name, 144, "grid=(256,1,1) block=(512,1,1) lds=%d" % (8 * 3 * 2304)

RED = 16896
def kgemm(a, name, P, wptr_off, actoff, NK, D, final):
    header(a, name)
    nk = NK // 4
    ACC = 16; ACT = 80; WF = 8
    RING = 4 * RED
    a("s_cmp_ge_u32 s2, 256")
    a("s_cbranch_scc1 %s_END" % P)
    stamp_begin(a)
    a("s_load_dwordx2 s[4:5], s[0:1], 80")
    a("s_load_dwordx2 s[6:7], s[0:1], %d" % wptr_off)
    a("s_load_dwordx2 s[36:37], s[0:1], 64")
    a("v_lshrrev_b32 v1, 6, v0")
    a("v_and_b32 v0, 63, v0")
    a("s_and_b32 s20, s2, 7")
    a("v_readfirstlane_b32 s3, v1")
    a("s_lshl_b32 s20, s20, 2")
    a("s_bfe_u32 s21, s2, 0x20003")
    a("s_add_u32 s20, s20, s21")
    a("s_lshr_b32 s21, s2, 5")
    a("v_lshlrev_b32 v1, 4, v0")
    a("v_add_u32 v2, %d, v1" % (NK * 1024))
    a("v_bfe_u32 v7, v0, 4, 1")
    a("v_lshlrev_b32 v8, 2, v7")
    a("v_and_b32 v9, 7, v0")
    a("v_xor_b32 v8, v8, v9")
    a("v_lshlrev_b32 v8, 4, v8")
    a("v_lshrrev_b32 v9, 3, v0")
    a("v_lshl_add_u32 v3, v9, 10, v8")
    a("v_add_u32 v4, %d, v3" % (8192 - 1024))
    a("v_lshrrev_b32 v8, 5, v0")
    a("v_bfe_u32 v9, v0, 2, 2")
    a("v_lshl_add_u32 v8, v8, 2, v9")
    a("v_bfe_u32 v9, v0, 1, 1")
    a("v_lshl_add_u32 v9, v7, 1, v9")
    a("v_bfe_u32 v10, v0, 3, 1")
    a("v_lshl_add_u32 v9, v10, 2, v9")
    a("v_lshlrev_b32 v9, 4, v9")
    a("v_and_b32 v10, 1, v0")
    a("v_lshl_add_u32 v9, v10, 3, v9")
    a("v_lshl_add_u32 v9, v8, 7, v9")
    a("s_mul_i32 s22, s3, %d" % (D * 2048))
    a("s_add_u32 s22, s22, %d" % RING)
    a("v_add_u32 v5, s22, v9")
    a("v_xor_b32 v6, 64, v5")
    a("s_mul_i32 s24, s20, %d" % (2 * NK))
    a("s_mul_i32 s25, s3, %d" % nk)
    a("s_add_u32 s24, s24, s25")
    a("s_lshl_b32 s24, s24, 10")
    a("s_lshl_b32 s25, s25, 14")
    a("s_lshl_b32 s26, s21, 7")
    a("s_add_u32 s25, s25, s26")
    a("s_waitcnt lgkmcnt(0)")
    srd(a, 8, 4, actoff, 64 * NK * 1024)
    srd(a, 12, 6, 0, NK * 16 * 1024)
    def issue(sl):
        a("s_add_u32 m0, s22, %d" % (sl * 2048))
        a("buffer_load_dwordx4 %s, v1, s[8:11], s24 offen" % vr(ACT + 8 * sl, 4))
        a("buffer_load_dwordx4 %s, v2, s[8:11], s24 offen" % vr(ACT + 8 * sl + 4, 4))
        a("buffer_load_dwordx4 v3, s[12:15], s25 offen lds")
        a("buffer_load_dwordx4 v4, s[12:15], s25 offen offset:1024 lds")
        a("s_add_u32 s24, s24, 1024")
        a("s_add_u32 s25, s25, 16384")
    def step(sl, vm):
        a("s_waitcnt vmcnt(%d)" % vm)
        for ft in range(2):
            for q in range(2):
                a("ds_read_b64_tr_b16 %s, v%d offset:%d" % (vr(WF + 4 * ft + 2 * q, 2), 5 + ft, sl * 2048 + q * 1024))
        for ft in range(2):
            a("s_waitcnt lgkmcnt(%d)" % (2 - 2 * ft))
            for tt in range(2):
                d = vr(ACC + 16 * (2 * tt + ft), 16)
                a("v_mfma_f32_32x32x16_bf16 %s, %s, %s, %s" % (d, vr(WF + 4 * ft, 4), vr(ACT + 8 * sl + 4 * tt, 4), d))
    for sl in range(D): issue(sl)
    for r in range(ACC, ACC + 64): a("v_mov_b32 v%d, 0" % r)
    rounds = nk // D
    stamp(a, 1)
    if STAMP: a("s_waitcnt vmcnt(%d)" % (4 * (D - 1)))
    stamp(a, 2)
    if rounds > 1:
        a("s_mov_b32 s32, %d" % (rounds - 1))
        a.label("%s_LOOP" % P)
        for sl in range(D):
            step(sl, 4 * (D - 1)); issue(sl)
        a("s_sub_u32 s32, s32, 1"); a("s_cmp_lg_u32 s32, 0")
        a("s_cbranch_scc1 %s_LOOP" % P)
    for sl in range(D): step(sl, 4 * (D - 1 - sl))
    stamp(a, 3)
    a("v_lshrrev_b32 v8, 3, v0")
    a("v_and_b32 v9, 7, v0")
    a("s_lshl_b32 s26, s20, 6")
    a("s_lshl_b32 s27, s3, 4")
    a("s_add_u32 s26, s26, s27")
    a("v_lshlrev_b32 v10, 10, v8")
    a("v_lshl_add_u32 v10, v9, 4, v10")
    a("s_lshl_b32 s27, s26, 10")
    a("s_lshl_b32 s28, s21, 7")
    a("s_add_u32 s27, s27, s28")
    a("s_add_u32 s28, s27, 8192")
    if final:
        srd(a, 8, 4, BB, 2 * MB)
        srd(a, 12, 4, GG, 16384)
        srd(a, 16, 36, 0, 2 * MB)
        a("v_lshlrev_b32 v11, 3, v8")
        a("s_lshl_b32 s29, s26, 3")
        a("buffer_load_dwordx4 v[80:83], v10, s[8:11], s27 offen")
        a("buffer_load_dwordx4 v[84:87], v10, s[8:11], s28 offen")
        a("buffer_load_dwordx2 v[88:89], v11, s[12:15], s29 offen")
        a("buffer_load_dwordx2 v[90:91], v11, s[12:15], s29 offen offset:64")
    else:
        srd(a, 16, 4, BB, 2 * MB)
    a("s_mul_i32 s29, s3, %d" % RED)
    a("v_add_u32 v2, s29, v1")
    a("s_nop 7")
    for t in range(4):
        for g in range(4):
            a("ds_write_b128 v2, %s offset:%d" % (vr(ACC + 16 * t + 4 * g, 4), (t * 4 + g) * 1056))
    a("s_lshr_b32 s29, s3, 1")
    a("s_mul_i32 s29, s29, %d" % (8 * 1056))
    a("s_and_b32 s30, s3, 1")
    a("s_lshl_b32 s30, s30, 8")
    a("s_add_u32 s29, s29, s30")
    a("v_mul_u32_u24 v3, 1056, v9")
    a("v_lshl_add_u32 v3, v8, 4, v3")
    a("v_add_u32 v3, s29, v3")
    a("s_waitcnt lgkmcnt(0)")
    a("s_barrier")
    stamp(a, 4)
    for p in range(2):
        for sw in range(4):
            for h in range(2):
                a("ds_read_b128 %s, v3 offset:%d" % (vr(ACC + 32 * p + 8 * sw + 4 * h, 4), sw * RED + h * 512 + p * 128))
    a("s_mov_b32 s30, 0xffff0000")
    for p in range(2):
        b = ACC + 32 * p
        a("s_waitcnt lgkmcnt(%d)" % (8 - 8 * p))
        for i in range(8): a("v_add_f32 v%d, v%d, v%d" % (b + i, b + i, b + 8 + i))
        for i in range(8): a("v_add_f32 v%d, v%d, v%d" % (b + 16 + i, b + 16 + i, b + 24 + i))
        for i in range(8): a("v_add_f32 v%d, v%d, v%d" % (b + i, b + i, b + 16 + i))
        if final:
            if p == 0: a("s_waitcnt vmcnt(0)")
            for i in range(4):
                a("v_lshlrev_b32 v%d, 16, v%d" % (b + 8 + 2 * i, 80 + 4 * p + i))
                a("v_and_b32 v%d, s30, v%d" % (b + 9 + 2 * i, 80 + 4 * p + i))
            for i in range(8): a("v_mul_f32 v%d, v%d, v%d" % (b + i, b + i, 88 + 2 * p))
            for i in range(8): a("v_fmac_f32 v%d, v%d, v%d" % (b + i, b + 8 + i, 89 + 2 * p))
        for i in range(4): a("v_cvt_pk_bf16_f32 v%d, v%d, v%d" % (b + 16 + i, b + 2 * i, b + 2 * i + 1))
        a("buffer_store_dwordx4 %s, v10, s[16:19], s%d offen" % (vr(b + 16, 4), 27 + p))
    stamp_end(a, 3 if final else 2, 4, 5)
    a.label("%s_END" % P)
    a("s_endpgm")
    return name, ACT + 8 * D, "grid=(256,1,1) block=(256,1,1) lds=%d" % (RING + 4 * D * 2048)

def build(out):
    a = Asm()
    ks = []
    a('.amdgcn_target "amdgcn-amd-amdhsa--gfx950"')
    a(".text")
    ks.append(k1(a))
    ks.append(k2(a))
    ks.append(kgemm(a, "kd_kernel", "KD", 48, HF, 112, 4, False))
    ks.append(kgemm(a, "k3_kernel", "K3", 16, OF, 32, 8, True))
    body = a.text()
    errs = check_text(body)
    for e in errs: print("CHECK:", e)
    hdr = "; gated mix of softmax attention and SwiGLU FFN; generated by gen/gen1.py\n"
    for (n, nv, l) in ks: hdr += "; @launch kernel=%s %s\n" % (n, l)
    txt = hdr + body + '.section .rodata,"a"\n' + "".join(descriptor(n, nv) for (n, nv, l) in ks)
    open(out, "w").write(txt)
    print("wrote", out, len(txt), "bytes;", len(errs), "check errors")

if __name__ == "__main__":
    if "stamp" in sys.argv: STAMP = True
    build(sys.argv[1] if len(sys.argv) > 1 else "gated_mix__softmax_full_mha__swiglu_ffn__prompt.s")
```

```python
import sys
sys.path.insert(0, "gen")
import gen1
from gen1 import *
from asmlib import *
from gen2 import gate_code, build
SC = " sc1"
ASLOT = 32768; ANS = 5
GST = [16, 32, 40, 48, 56]
ROT = 8
GCG = 5
PUBB = 11
HOOKG = False
POLLG = 58
QSC = SC
NOST = False

def ab_prologue(a, endlabel):
    a("s_load_dwordx4 s[4:7], s[0:1], 0")
    a("s_cmp_ge_u32 s2, 256")
    a("s_cbranch_scc1 %s" % endlabel)
    a("s_load_dwordx4 s[8:11], s[0:1], 32")
    a("s_load_dwordx2 s[12:13], s[0:1], 56")
    a("s_load_dwordx2 s[14:15], s[0:1], 80")
    gen1.stamp_begin(a)
    a("v_lshrrev_b32 v1, 6, v0")
    a("v_and_b32 v0, 63, v0")
    a("s_and_b32 s16, s2, 7")
    a("v_readfirstlane_b32 s3, v1")
    a("s_lshr_b32 s17, s2, 3")
    a("s_and_b32 s18, s16, 1")
    a("s_lshl_b32 s18, s18, 3")
    a("s_and_b32 s19, s17, 7")
    a("s_add_u32 s18, s18, s19")
    a("s_lshr_b32 s54, s16, 1")
    a("s_lshl_b32 s19, s54, 2")
    a("s_lshr_b32 s55, s17, 3")
    a("s_add_u32 s19, s19, s55")
    a("s_and_b32 s36, s3, 3")
    a("s_lshr_b32 s37, s3, 2")
    a("v_lshlrev_b32 v1, 4, v0")

def phase_ab(a, tail, hook=None):
    X = 128; ACC = 64; WF = 32
    vAX, vT, vST, vAW1, vAW2, vD = 2, 3, 4, 5, 7, 11
    a("v_lshrrev_b32 v20, 4, v0")
    a("v_and_b32 v21, 7, v0")
    a("v_xor_b32 v22, v21, v20")
    a("v_lshlrev_b32 v22, 4, v22")
    a("v_lshrrev_b32 v23, 3, v0")
    a("v_lshl_add_u32 v22, v23, 10, v22")
    a("s_lshl_b32 s58, s3, 14")
    a("v_add_u32 v%d, s58, v22" % vD)
    a("v_xor_b32 v%d, 64, v%d" % (vD + 1, vD))
    a("v_add_u32 v%d, %d, v%d" % (vD + 1, 7168, vD + 1))
    a("v_and_b32 v22, 1, v20")
    a("v_lshlrev_b32 v22, 2, v22")
    a("v_xor_b32 v22, v22, v21")
    a("s_lshl_b32 s58, s3, 3")
    a("v_add_u32 v23, s58, v23")
    a("v_mul_u32_u24 v23, 3072, v23")
    a("v_lshl_add_u32 v%d, v22, 4, v23" % (vD + 2))
    a("s_lshl_b32 s56, s3, 11")
    a("s_lshl_b32 s57, s3, 10")
    a("s_add_u32 s57, s57, 16384")
    a("s_lshl_b32 s44, s18, 17")
    a("s_lshl_b32 s45, s19, 7")
    a("s_sub_u32 s46, %d, s45" % (512 * 3072))
    a("s_lshl_b32 s50, s55, 1")
    a("s_add_u32 s50, s50, s18")
    if ROT != 8:
        a("s_add_u32 s50, s55, s18")
        a("s_and_b32 s50, s50, %d" % (ROT - 1))
        a("s_mul_i32 s50, s50, %d" % (8 // ROT))
    a("s_lshl_b32 s51, s54, 8")
    a("s_sub_u32 s51, 1920, s51")
    a("s_add_u32 s58, s55, 1")
    a("s_bitcmp1_b32 s58, 1")
    a("s_cselect_b32 s52, 1, 0")
    a("s_waitcnt lgkmcnt(0)")
    gen1.stamp(a, 1)
    srd(a, 20, 4, "s44", 128 * 1024)
    srd(a, 24, 6, "s45", "s46")
    a("s_cmp_eq_u32 s52, 0")
    a("s_cbranch_scc1 AB_P")
    a("s_cmp_eq_u32 s37, 0")
    a("s_cbranch_scc0 AB_R1")

    def stream(kind):
        P = kind == "P"
        vm = VM(a); lg = VM(a, "lgkmcnt", 15)
        def dma(s):
            slot = (s % ANS) * ASLOT
            tag = ("d", s)
            G = []
            pre = [("s", "s_add_u32 s48, s50, %d" % (s % 8)), ("s", "s_and_b32 s48, s48, 7"),
                   ("s", "s_mul_i32 s49, s48, %d" % (64 * (3072 if s < 8 else 3584)))]
            def grp(m0, off, txt): G.append([("s", "s_add_u32 m0, %s, %d" % (m0, off)), ("s", "s_nop 0"), ("v", txt)])
            if s < 8:
                pre.append(("s", "s_lshl_b32 s48, s48, 7"))
                for i in range(2):
                    grp("s56", slot, "buffer_load_dwordx4 v%d, s[20:23], s48 offen offset:%d lds" % (vD + i, 1024 * i))
                grp("s57", slot, "buffer_load_dwordx4 v%d, s[24:27], s49 offen lds" % (vD + 2))
                if not P:
                    grp("s57", slot + 8192, "buffer_load_dwordx4 v%d, s[24:27], s49 offen lds" % (vD + 2))
                    G[-1][1] = ("s", "s_add_u32 s49, s49, s51")
            elif P:
                for i in range(4):
                    up = i // 2
                    grp("s56", slot + up * 16384, "buffer_load_dwordx4 v%d, s[%d:%d], s49 offen offset:%d lds" % (vD + 3 + i, 40 + 4 * up, 43 + 4 * up, 1024 * (i % 2)))
            else:
                for i in range(3):
                    grp("s59", slot, "buffer_load_dwordx4 v%d, s[40:43], s49 offen offset:%d lds" % (vD + 3 + i, 1024 * i))
            last = None
            for g in G:
                if g[0][1] == last: del g[0:2]
                else: last = g[0][1]
            G[0] = [G[0][0]] + pre + G[0][2:]
            return [[(k, t, tag) for (k, t) in g] for g in G]
        def flat(G): return [x for g in G for x in g]
        def emit(it):
            k, t, tag = it
            if k == "v": vm.issue(t, tag)
            elif k == "l": lg.issue(t, tag)
            elif k == "f": t()
            else: a(t)
        gi0, gc0 = gate_code(a, vm, "s[28:31]", "s[20:23]", "s39", X + 112)
        for it in flat(dma(0)): emit(it)
        srd(a, 28, 12, 0, 1024)
        a("s_lshl_b32 s60, s19, 3")
        a("s_add_u32 s60, s60, s3")
        a("s_lshl_b32 s39, s60, 10")
        gi0()
        a("s_barrier")
        for it in flat(dma(1)): emit(it)
        if hook and HOOKG: hook(kind, vm, "early")
        a("s_mul_i32 s53, s54, 28")
        if P:
            a("s_cmp_eq_u32 s55, 0")
            a("s_cselect_b32 s38, 0, 20")
        else:
            a("s_cmp_eq_u32 s55, 1")
            a("s_cselect_b32 s38, 8, 14")
        a("s_add_u32 s53, s53, s38")
        a("s_lshl_b32 s38, s53, 5")
        a("s_sub_u32 s39, %d, s38" % (512 * 3584))
        if P:
            srd(a, 40, 8, "s38", "s39")
            srd(a, 44, 10, "s38", "s39")
            a("v_lshlrev_b32 v21, 1, v20")
            a("v_and_b32 v22, 15, v0")
            a("v_xor_b32 v21, v21, v22")
            a("s_lshl_b32 s58, s3, 3")
            a("v_add_u32 v22, s58, v20")
            a("v_mul_u32_u24 v22, 3584, v22")
            a("v_lshl_add_u32 v%d, v21, 4, v22" % (vD + 3))
            a("v_xor_b32 v21, 8, v21")
            a("v_lshl_add_u32 v%d, v21, 4, v22" % (vD + 5))
            a("v_add_u32 v%d, %d, v%d" % (vD + 4, 4 * 3584 - 1024, vD + 3))
            a("v_add_u32 v%d, %d, v%d" % (vD + 6, 4 * 3584 - 1024, vD + 5))
        else:
            up = 1 if kind == "R1" else 0
            srd(a, 40, 8 + 2 * up, "s38", "s39")
            a("s_mul_i32 s59, s36, 3072")
            if up: a("s_add_u32 s59, s59, 12320")
            a("s_mul_i32 s38, s36, 192")
            for i in range(3):
                a("v_add_u32 v21, s38, v0")
                if i: a("v_add_u32 v21, %d, v21" % (64 * i))
                a("v_mul_u32_u24 v22, 5462, v21")
                a("v_lshrrev_b32 v22, 16, v22")
                a("v_mul_u32_u24 v22, %d, v22" % (3584 - 192))
                a("v_lshl_add_u32 v%d, v21, 4, v22" % (vD + 3 + i))
                if i: a("v_subrev_u32 v%d, %d, v%d" % (vD + 3 + i, 1024 * i, vD + 3 + i))
        a("v_and_b32 v24, 31, v0")
        a("v_lshrrev_b32 v25, 5, v0")
        a("v_bfe_u32 v26, v0, 1, 3")
        a("v_xor_b32 v26, v25, v26")
        a("v_lshlrev_b32 v26, 4, v26")
        a("v_lshl_add_u32 v26, v24, 7, v26")
        a("s_lshl_b32 s38, s36, 12")
        a("v_add_u32 v%d, s38, v26" % vAX)
        a("v_bfe_u32 v21, v0, 2, 2")
        a("v_lshl_add_u32 v26, v25, 3, v21")
        a("v_bfe_u32 v27, v0, 4, 1")
        a("v_and_b32 v28, 3, v0")
        a("v_lshlrev_b32 v28, 3, v28")
        a("v_lshl_add_u32 v29, v26, 7, v28")
        a("v_lshl_add_u32 v29, v27, 5, v29")
        a("v_bfe_u32 v30, v0, 3, 1")
        if P: a("v_xor_b32 v30, s37, v30")
        a("v_lshl_add_u32 v29, v30, 6, v29")
        a("v_add_u32 v%d, %d, v29" % (vAW1, 16384 + (8192 if kind == "R1" else 0)))
        if not P: a("v_xor_b32 v%d, 64, v%d" % (vAW1 + 1, vAW1))
        s8 = (8 % ANS) * ASLOT
        if P:
            a("v_xor_b32 v30, s37, v27")
            a("v_lshl_add_u32 v30, v30, 2, v21")
            a("v_lshl_add_u32 v29, v30, 5, v28")
            a("v_lshl_add_u32 v29, v26, 8, v29")
            a("v_lshl_add_u32 v29, v27, 14, v29")
            a("v_add_u32 v%d, %d, v29" % (vAW2, s8))
            for n in range(1, 4): a("v_xor_b32 v%d, %d, v%d" % (vAW2 + n, 32 * n, vAW2))
        else:
            a("v_mul_u32_u24 v29, 192, v26")
            a("v_add_u32 v29, v29, v28")
            a("v_mul_u32_u24 v30, 12320, v27")
            a("v_add_u32 v29, v29, v30")
            a("v_add_u32 v%d, %d, v29" % (vAW2, s8 + (96 if kind == "R1" else 0)))
        a("s_lshl_b32 s90, s18, 2")
        a("s_add_u32 s90, s90, s36")
        a("s_lshl_b32 s91, s90, 10")
        if kind != "R1":
            a("s_cmp_lt_u32 s19, 8")
            a("s_cselect_b32 s92, %s, 1.0" % hx(f2u(0.25 * LOG2E)))
            a("s_cselect_b32 s38, 0, 12")
            a("s_mov_b32 s93, s92")
            a("v_lshrrev_b32 v29, 1, v24")
            a("v_xor_b32 v29, v24, v29")
            a("v_and_b32 v29, 4, v29")
            a("v_mul_u32_u24 v29, 3, v29")
            a("v_and_b32 v29, s38, v29")
            a("v_xor_b32 v29, v24, v29")
            a("v_lshlrev_b32 v29, 4, v29")
            a("v_lshl_add_u32 v%d, v25, 9, v29" % vST)
            a("s_lshl_b32 s38, s19, 18")
            a("s_add_u32 s91, s91, s38")
            if P:
                a("s_lshl_b32 s38, s37, 17")
                a("s_add_u32 s91, s91, s38")
        else:
            a("v_and_b32 v29, 15, v0")
            a("v_lshlrev_b32 v29, 4, v29")
            a("v_lshl_add_u32 v29, v25, 8, v29")
            a("v_lshl_add_u32 v%d, v27, 16, v29" % vST)
            a("s_lshl_b32 s38, s54, 1")
            a("s_add_u32 s38, s38, s55")
            a("s_sub_u32 s38, s38, 1")
            a("s_lshl_b32 s38, s38, 18")
            a("s_add_u32 s91, s91, s38")
            a("s_add_u32 s91, s91, %s" % hx(VF))
        def gc():
            o = gc0()
            srd(a, 28, 14, GG, 16384)
            a("s_lshl_b32 s39, s18, 7")
            a("s_add_u32 s38, s60, s39")
            a("s_lshl_b32 s38, s38, 3")
            a("v_mov_b32 v20, 0")
            a("s_mov_b32 exec_lo, 0")
            a("s_mov_b32 exec_hi, 0x80000000")
            vm.issue("buffer_store_dwordx2 %s, v20, s[28:31], s38 offen%s" % (vr(o, 2), SC), "gst")
            a("s_mov_b64 exec, -1")
            srd(a, 28, 14, 0, 6 * MB)
        if P: P1 = [3]; P2 = [0, 1, 2, 3]
        else: P1 = [0, 1]; P2 = [2, 3, 0]
        def wf(g, n):
            if g < 32: return WF + 8 * (g % 4) + 4 * n
            return WF + 16 * (g % 2) + 4 * n
        def reads(g):
            s, ks = g // 4, g % 4
            L = []
            if ks == 0 and s not in (0, 8):
                d = (s % ANS - (s - 1) % ANS) * ASLOT
                if s < 8: R = [vAX] + [vAW1 + n for n in range(len(P1))]
                else: R = [vAW2 + n for n in range(4 if P else 1)]
                for r in R: L.append(("s", "v_add_u32 v%d, %s, v%d" % (r, hx(d), r), None))
            if g < 32:
                if ks: L.append(("s", "v_xor_b32 v%d, %d, v%d" % (vT, 32 * ks, vAX), None))
                L.append(("l", "ds_read_b128 %s, v%d" % (vr(X + 4 * g, 4), vT if ks else vAX), g))
                for n in range(len(P1)):
                    for q in range(2):
                        L.append(("l", "ds_read_b64_tr_b16 %s, v%d offset:%d" % (vr(wf(g, n) + 2 * q, 2), vAW1 + n, (16 * ks + 4 * q) * 128), g))
            else:
                for n in range(len(P2)):
                    for q in range(2):
                        if P: ad, off = vAW2 + n, (16 * ks + 4 * q) * 256
                        else: ad, off = vAW2, (16 * ks + 4 * q) * 192 + n * 32
                        L.append(("l", "ds_read_b64_tr_b16 %s, v%d offset:%d" % (vr(wf(g, n) + 2 * q, 2), ad, off), g))
            return L
        def mfmas(g):
            L = []
            x = vr(X + 4 * (g % 32), 4)
            for n, ac in enumerate(P1 if g < 32 else P2):
                d = vr(ACC + 16 * ac, 16); w = vr(wf(g, n), 4)
                A, B = (x, w) if (kind == "R1" and g < 32) else (w, x)
                L.append("v_mfma_f32_32x32x16_bf16 %s, %s, %s, %s" % (d, A, B, "0" if g in (0, 32) else d))
            return L
        def epi1():
            a("s_nop 7")
            for n, ac in enumerate(P1):
                b = ACC + 16 * ac
                if kind != "R1":
                    for i in range(8): a("v_pk_mul_f32 %s, %s, s[92:93]" % (vr(b + 2 * i, 2), vr(b + 2 * i, 2)))
                for i in range(8): a("v_cvt_pk_bf16_f32 v%d, v%d, v%d" % (b + i, b + 2 * i, b + 2 * i + 1))
                if kind != "R1":
                    a("s_add_u32 s94, s91, 0x10000")
                    vm.issue("buffer_store_dwordx4 %s, v%d, s[28:31], s91 offen%s" % (vr(b, 4), vST, QSC), "qkv") if not NOST else None
                    vm.issue("buffer_store_dwordx4 %s, v%d, s[28:31], s94 offen%s" % (vr(b + 4, 4), vST, QSC), "qkv") if not NOST else None
                else:
                    for j in range(2):
                        vm.issue("buffer_store_dwordx4 %s, v%d, s[28:31], s91 offen offset:%d%s" % (vr(b + 4 * j, 4), vST, j * 512, QSC), "qkv") if not NOST else None
                if n + 1 < len(P1): a("s_add_u32 s91, s91, 0x20000")
        def barrier(s):
            if hook and s == PUBB: vm.wait(("d", s), "qkv", "gst", "sent")
            else: vm.wait(("d", s))
            a("s_barrier")
            if hook and s == PUBB: hook(kind, vm, "pub")
        barrier(0)
        gen1.stamp(a, 2)
        for it in reads(0) + reads(1): emit(it)
        pend = dma(2) + dma(3)
        for g in range(64):
            nxt = []
            if g < 30: nxt = [g + 2]
            elif g == 30: nxt = []
            elif g < 63: nxt = [g + 1]
            O = []
            bar = None
            for g2 in nxt:
                if g2 % 4 == 0: bar = g2 // 4
                O += reads(g2)
            if bar is not None:
                assert not any(it[2] == ("d", bar) for grp in pend for it in grp), (g, bar)
                pend += dma(bar + 3) if bar + 3 <= 15 else []
            for _ in range(2 if len(pend) > 4 else 1):
                if pend: O += pend.pop(0)
            if g == GCG: O.append(("f", gc, None))
            if hook and g == 40: O.append(("f", lambda: hook(kind, vm, "setup"), None))
            if hook and g == POLLG: O.append(("f", lambda: hook(kind, vm, "poll"), None))
            if hook and HOOKG: O += hook(kind, vm, g) or []
            M = mfmas(g)
            lg.wait(g)
            if g in GST and gen1.SMAP is None: gen1.stamp(a, 3 + GST.index(g))
            gen1.stamp(a, "g%d" % g)
            if g == 32:
                for m in M[:-1]: a(m)
                for it in O: emit(it)
                epi1()
                a("s_nop 1")
                a(M[-1])
                continue
            n = len(M); per = max(1, -(-len(O) // n))
            for i, m in enumerate(M):
                a(m)
                if i == 0 and bar is not None: barrier(bar)
                for it in O[i * per:(i + 1) * per]: emit(it)
        gen1.stamp(a, 8 if not hook else 4)
        if hook: hook(kind, vm, "pre_h")
        srd(a, 32, 14, HF, 7 * MB)
        a("s_mul_i32 s94, s90, 112")
        a("s_add_u32 s94, s94, s53")
        if P:
            a("s_lshl_b32 s95, s37, 2")
            a("s_add_u32 s94, s94, s95")
        elif kind == "R1": a("s_add_u32 s94, s94, 3")
        a("s_lshl_b32 s94, s94, 10")
        a("s_mov_b32 s92, %s" % hx(f2u(-LOG2E))); a("s_mov_b32 s93, s92")
        a("s_mov_b32 s96, 1.0"); a("s_mov_b32 s97, 1.0")
        a("s_nop 2")
        for n, ac in enumerate(P2):
            G = ACC + 16 * ac; U = G + 8; E = WF + 8 * n
            for i in range(4): a("v_pk_mul_f32 %s, %s, s[92:93]" % (vr(E + 2 * i, 2), vr(G + 2 * i, 2)))
            for i in range(8): a("v_exp_f32 v%d, v%d" % (E + i, E + i))
            for i in range(4): a("v_pk_mul_f32 %s, %s, %s" % (vr(G + 2 * i, 2), vr(G + 2 * i, 2), vr(U + 2 * i, 2)))
            for i in range(4): a("v_pk_add_f32 %s, %s, s[96:97]" % (vr(E + 2 * i, 2), vr(E + 2 * i, 2)))
            for i in range(8): a("v_rcp_f32 v%d, v%d" % (E + i, E + i))
            a("s_nop 0")
            for i in range(4): a("v_pk_mul_f32 %s, %s, %s" % (vr(G + 2 * i, 2), vr(G + 2 * i, 2), vr(E + 2 * i, 2)))
            for i in range(4): a("v_cvt_pk_bf16_f32 v%d, v%d, v%d" % (G + i, G + 2 * i, G + 2 * i + 1))
            vm.issue("buffer_store_dwordx4 %s, v1, s[32:35], s94 offen offset:%d%s" % (vr(G, 4), n * 1024, SC), "h")
        tail(kind, vm)
    stream("R0")
    a.label("AB_R1")
    stream("R1")
    a.label("AB_P")
    stream("P")

def ka(a):
    name = "ka_kernel"
    header(a, name)
    ab_prologue(a, "KA_END")
    def tail(kind, vm):
        gen1.stamp_end(a, 0, 14, 5)
        a("s_endpgm")
    phase_ab(a, tail)
    a.label("KA_END")
    a("s_endpgm")
    return name, 256, "grid=(256,1,1) block=(512,1,1) lds=%d" % (ANS * ASLOT)

if __name__ == "__main__":
    if "stamp" in sys.argv: gen1.STAMP = True
    for x in sys.argv:
        if x.startswith("rot="): ROT = int(x[4:])
    if "nosc" in sys.argv: QSC = ""
    if "nost" in sys.argv: NOST = True
    for x in sys.argv:
        if x.startswith("gst="): GST = [int(y) for y in x[4:].split(",")]
    build(sys.argv[1], [ka, k2, lambda a: kgemm(a, "kd_kernel", "KD", 48, HF, 112, 4, False), lambda a: kgemm(a, "k3_kernel", "K3", 16, OF, 32, 8, True)])
```

```python
import sys
sys.path.insert(0, "gen")
import gen1, gen3
from gen1 import *
from asmlib import *
from gen3 import ab_prologue, phase_ab, SC, ANS, ASLOT

NLOOP_B = 5
WRING = 131072; SCR = 65536
KVROT = True
NOWO = False
OSC = ""
NAME = "gated_mix__softmax_full_mha__swiglu_ffn__prompt_kernel"

def kf(a):
    header(a, NAME)
    Q = 128; K = [144, 148]; V = [152, 160]; S = [32, 48]; O = 64
    WF = 168; DA = 176; ACT = 240
    vV, vIX, vP, vPO, vLD = 18, 19, 20, 21, 22
    vH1, vW0, vW1, vT0, vT1, vZ = 23, 24, 25, 26, 27, 28
    ab_prologue(a, "KF_END")
    def spin(lab, expect, vm):
        vm.wait("poll")
        a("v_cmp_eq_u32 vcc, %d, v%d" % (expect, vP))
        a("s_mov_b32 s38, 0x40000")
        a("s_cmp_eq_u64 vcc, -1")
        a("s_cbranch_scc1 %s_OK" % lab)
        a.label(lab)
        a("s_sleep 4")
        a("buffer_load_dword v%d, v%d, s[84:87], 0 offen sc1" % (vP, vPO))
        a("s_sub_u32 s38, s38, 1")
        a("s_waitcnt vmcnt(0)")
        a("v_cmp_eq_u32 vcc, %d, v%d" % (expect, vP))
        a("s_cselect_b32 s39, 1, 0")
        a("s_cmp_eq_u64 vcc, -1")
        a("s_cselect_b32 s39, 1, s39")
        a("s_cmp_eq_u32 s39, 0")
        a("s_cbranch_scc1 %s" % lab)
        a.label(lab + "_OK")
    def poll(vm): vm.issue("buffer_load_dword v%d, v%d, s[84:87], 0 offen sc1" % (vP, vPO), "poll")
    def publish(vm, soff):
        a("v_mov_b32 v%d, 1" % vP)
        a("s_mov_b64 exec, 1")
        vm.issue("buffer_atomic_add v%d, v%d, s[84:87], %s offen sc1" % (vP, vLD, soff), "atom")
        a("s_mov_b64 exec, -1")
    def ldK(vm, b, wrap=True):
        vm.issue("buffer_load_dwordx4 %s, v1, s[8:11], s26 offen%s" % (vr(K[b], 4), SC), ("K", b))
        a("s_add_u32 s26, s26, 1024")
        if wrap: a("s_and_b32 s26, s26, 0x3fff")
    def ldV(vm, b, wrap=True):
        a("s_mov_b64 exec, s[30:31]")
        vm.issue("buffer_load_dwordx4 %s, v%d, s[4:7], s27 offen%s" % (vr(V[b], 4), vV, SC), ("V", b))
        vm.issue("buffer_load_dwordx4 %s, v%d, s[4:7], s27 offen offset:512%s" % (vr(V[b] + 4, 4), vV, SC), ("V", b))
        a("s_mov_b64 exec, -1")
        a("s_add_u32 s27, s27, 1024")
        if wrap: a("s_and_b32 s27, s27, 0x3fff")
    def cap(fn):
        save = a.lines; a.lines = []
        fn(); L = a.lines; a.lines = save
        return [("s", l.strip(), None) for l in L]
    def setup1():
        srd(a, 84, 100, 0, 256)
        a("s_and_b32 s89, s2, 7")
        a("s_lshl_b32 s89, s89, 2")
        a("s_bfe_u32 s38, s2, 0x20003")
        a("s_add_u32 s89, s89, s38")
        a("s_lshr_b32 s88, s2, 5")
        a("s_cmp_eq_u32 s3, 0")
        a("s_cselect_b32 s38, 0, 0x1000")
        a("v_mov_b32 v%d, s38" % vLD)
        a("s_lshr_b32 s38, s89, 2")
        a("s_lshr_b32 s39, s38, 1")
        a("s_lshl_b32 s39, s39, 2")
        a("s_and_b32 s58, s38, 1")
        a("s_add_u32 s39, s39, s58")
        a("s_add_u32 s39, s39, 1")
        a("v_and_b32 v%d, 1, v0" % vPO)
        a("v_lshlrev_b32 v%d, 3, v%d" % (vPO, vPO))
        a("v_add_u32 v%d, s38, v%d" % (vPO, vPO))
        a("v_cmp_gt_u32 vcc, 32, v0")
        a("v_mov_b32 v%d, s39" % vP)
        a("s_nop 0")
        a("v_cndmask_b32 v%d, v%d, v%d, vcc" % (vPO, vP, vPO))
        a("v_lshlrev_b32 v%d, 4, v%d" % (vPO, vPO))
    def setup2():
        a("s_and_b32 s22, s3, 1")
        a("s_lshr_b32 s23, s3, 1")
        a("v_and_b32 v%d, 15, v0" % vV)
        a("v_lshlrev_b32 v%d, 4, v%d" % (vV, vV))
        a("v_lshrrev_b32 v%d, 5, v0" % vIX)
        a("v_lshl_add_u32 v%d, v%d, 8, v%d" % (vV, vIX, vV))
        a("s_lshl_b32 s24, s89, 16")
        a("s_lshl_b32 s25, s88, 3")
        a("s_lshl_b32 s26, s22, 2")
        a("s_add_u32 s25, s25, s26")
        a("s_lshl_b32 s27, s23, 14")
        a("s_add_u32 s27, s27, s24")
        a("s_add_u32 s26, s27, %s" % hx(KF))
        srd(a, 8, 14, "s26", 16384)
        a("s_add_u32 s26, s27, %s" % hx(VF))
        srd(a, 4, 14, "s26", 16384)
        a("s_lshl_b32 s26, s88, 11")
        if not KVROT: a("s_mov_b32 s26, 0")
        a("s_mov_b32 s27, s26")
        srd(a, 92, 14, "s24", 65536)
        a("v_and_b32 v%d, 31, v0" % vIX)
        a("v_cmp_eq_u32 vcc, 16, v%d" % vIX)
        a("v_mov_b32 v%d, 0x3f803f80" % vIX)
        a("s_mov_b32 s30, 0x0000ffff"); a("s_mov_b32 s31, 0x0000ffff")
        a("v_cndmask_b32 v%d, 0, v%d, vcc" % (V[0], vIX))
        for i in range(1, 16): a("v_mov_b32 v%d, v%d" % (V[0] + i, V[0]))
        a("v_mov_b32 v%d, 0xdddddddd" % vIX)
        for i in range(4): a("v_mov_b32 v%d, 0" % (vZ + i))
    def setup3():
        a("v_add_u32 v%d, %d, v1" % (vH1, 112 * 1024))
        a("v_bfe_u32 v2, v0, 4, 1")
        a("v_lshlrev_b32 v5, 2, v2")
        a("v_and_b32 v6, 7, v0")
        a("v_xor_b32 v5, v5, v6")
        a("v_lshlrev_b32 v5, 4, v5")
        a("v_lshrrev_b32 v6, 3, v0")
        a("v_lshl_add_u32 v%d, v6, 10, v5" % vW0)
        a("v_add_u32 v%d, %d, v%d" % (vW1, 8192 - 1024, vW0))
        a("v_lshrrev_b32 v5, 5, v0")
        a("v_bfe_u32 v6, v0, 2, 2")
        a("v_lshl_add_u32 v5, v5, 2, v6")
        a("v_bfe_u32 v6, v0, 1, 1")
        a("v_lshl_add_u32 v6, v2, 1, v6")
        a("v_bfe_u32 v3, v0, 3, 1")
        a("v_lshl_add_u32 v6, v3, 2, v6")
        a("v_lshlrev_b32 v6, 4, v6")
        a("v_and_b32 v3, 1, v0")
        a("v_lshl_add_u32 v6, v3, 3, v6")
        a("v_lshl_add_u32 v6, v5, 7, v6")
        a("s_lshl_b32 s16, s3, 12")
        a("s_add_u32 s16, s16, %d" % WRING)
        a("v_add_u32 v%d, s16, v6" % vT0)
        a("v_xor_b32 v%d, 64, v%d" % (vT1, vT0))
        a("s_lshl_b32 s17, s88, 1")
        a("s_and_b32 s20, s89, 3")
        a("s_mul_i32 s20, s20, 3")
        a("s_add_u32 s17, s17, s20")
        a("s_cmp_ge_u32 s17, 14")
        a("s_cselect_b32 s20, 14, 0")
        a("s_sub_u32 s17, s17, s20")
        a("s_mul_i32 s20, s3, 14")
        a("s_add_u32 s21, s20, s17")
        a("s_mul_i32 s20, s89, 224")
        a("s_add_u32 s20, s20, s21")
        a("s_lshl_b32 s20, s20, 10")
        a("s_lshl_b32 s21, s21, 14")
        a("s_lshl_b32 s38, s88, 7")
        a("s_add_u32 s21, s21, s38")
    chunks = {}
    def hook(kind, vm, where):
        if where == "pub":
            a("s_lshl_b32 s38, s19, 4")
            publish(vm, "s38")
        elif where == "poll": poll(vm)
        elif isinstance(where, int):
            g = where
            if g == 34: chunks["L"] = cap(setup1)
            if g == 44: chunks["L"] = cap(setup2) + cap(setup3)
            if 34 <= g < 43 or 44 <= g < 58:
                n = 4 if g < 43 else 8
                while n < len(chunks["L"]) and chunks["L"][n][1].startswith(("s_cselect", "s_addc")): n += 1
                L = chunks["L"][:n]; chunks["L"] = chunks["L"][n:]
                if g in (42, 57): assert not chunks["L"], len(chunks["L"])
                return L
            if g == 61:
                def ld():
                    spin("KF_SQ_" + kind, 16, vm)
                    gen1.stamp(a, "sq1")
                    for s in range(4):
                        a("s_add_u32 s28, s23, %d" % s)
                        a("s_and_b32 s28, s28, 3")
                        a("s_add_u32 s28, s28, s25")
                        if s == 0: a("s_mov_b32 s29, s28")
                        a("s_lshl_b32 s28, s28, 10")
                        vm.issue("buffer_load_dwordx4 %s, v1, s[92:95], s28 offen%s" % (vr(Q + 4 * s, 4), SC), "Q")
                        if s == 0: ldK(vm, 0)
                    ldV(vm, 0); ldK(vm, 1); ldV(vm, 1)
                return [("f", ld, None)]
        elif where == "pre_h":
            a("s_setprio 3")
    ENTRY = ["Q", ("K", 0), "Q", "Q", "Q", ("V", 0), ("V", 0), ("K", 1), ("V", 1), ("V", 1), "h", "h", "h", "h"]
    def tail(kind, vm):
        if kind != "P":
            a("v_mov_b32 v4, 0x1000")
            vm.issue("buffer_store_dword v4, v4, s[84:87], 0 offen", "h")
        assert vm.ops[-14:] == ENTRY, vm.ops
        if kind != "P": a("s_branch KF_C")
    a("s_load_dwordx2 s[100:101], s[0:1], 72")
    gen3.HOOKG = True
    phase_ab(a, tail, hook)
    a.label("KF_C")
    gen1.stamp(a, 5)
    vm = VM(a); vm.ops = list(ENTRY)
    lg = VM(a, "lgkmcnt", 15)
    a("s_load_dwordx2 s[12:13], s[0:1], 48")
    a("s_load_dwordx2 s[56:57], s[0:1], 16")
    a("s_load_dwordx2 s[58:59], s[0:1], 64")
    def QK(sl, kb, sb): a("v_mfma_f32_32x32x16_bf16 %s, %s, %s, 0" % (vr(S[sb], 16), vr(K[kb], 4), vr(Q + 4 * sl, 4)))
    def PV(sl, vb, sb, j): a("v_smfmac_f32_32x32x32_bf16 %s, %s, %s, v%d" % (vr(O + 16 * sl, 16), vr(V[vb] + 4 * j, 4), vr(S[sb] + 8 * j, 8), vIX))
    def ZERO(r): a("v_mfma_f32_32x32x16_bf16 %s, %s, %s, 0" % (vr(r, 16), vr(vZ, 4), vr(vZ, 4)))
    vm.wait(("K", 0))
    QK(0, 0, 0)
    for i in range(4): ZERO(O + 16 * i)
    a("s_setprio 0")
    a("s_lshr_b32 s38, s89, 1")
    a("s_lshl_b32 s38, s38, 4")
    a("s_add_u32 s38, s38, 4")
    a("v_mov_b32 v%d, s38" % vPO)
    a("s_waitcnt lgkmcnt(0)")
    srd(a, 48, 12, 0, 1792 * 1024)
    srd(a, 40, 56, 0, 512 * 1024)
    def ldD(vm, b):
        a("s_add_u32 m0, s16, %d" % (b * 2048))
        vm.issue("buffer_load_dwordx4 %s, v1, s[32:35], s20 offen%s" % (vr(ACT + 8 * b, 4), SC), ("D", b))
        vm.issue("buffer_load_dwordx4 %s, v%d, s[32:35], s20 offen%s" % (vr(ACT + 8 * b + 4, 4), vH1, SC), ("D", b))
        vm.issue("buffer_load_dwordx4 v%d, s[48:51], s21 offen lds ; W:w%d" % (vW0, b), ("D", b))
        vm.issue("buffer_load_dwordx4 v%d, s[48:51], s21 offen offset:1024 lds ; W:w%d" % (vW1, b), ("D", b))
        a("s_add_u32 s17, s17, 1")
        a("s_cmp_eq_u32 s17, 14")
        a("s_cselect_b32 s44, %d, 1" % (-13))
        a("s_cselect_b32 s17, 0, s17")
        a("s_lshl_b32 s45, s44, 10")
        a("s_add_u32 s20, s20, s45")
        a("s_lshl_b32 s45, s44, 14")
        a("s_add_u32 s21, s21, s45")
    def rdW(b):
        for ft in range(2):
            for q in range(2):
                lg.issue("ds_read_b64_tr_b16 %s, v%d offset:%d ; R:w%d" % (vr(WF + 4 * ft + 2 * q, 2), vT0 + ft, b * 2048 + q * 1024, b), ("w", ft))
    def DM(b, n):
        ft, tt = n // 2, n % 2
        lg.wait(("w", ft))
        d = vr(DA + 16 * (2 * tt + ft), 16)
        a("v_mfma_f32_32x32x16_bf16 %s, %s, %s, %s" % (d, vr(WF + 4 * ft, 4), vr(ACT + 8 * b + 4 * tt, 4), d))
    def iteration(first=False, down=False, loop=None, extra=None):
        for b in range(2):
            for sl in range(4):
                sb = sl % 2
                def E(i): a("v_exp_f32 v%d, v%d" % (S[sb] + i, S[sb] + i))
                if down and sl == 0:
                    vm.wait(("D", b)); rdW(b)
                E(0); E(1)
                if sl == 0:
                    if not (first and b == 0):
                        PV(3, 1 - b, 1, 1); ldV(vm, 1 - b)
                else: PV(sl - 1, b, 1 - sb, 1)
                E(2); E(3); E(4)
                if sl == 3:
                    vm.wait(("K", 1 - b))
                    QK(0, 1 - b, 0)
                else:
                    if first and b == 0: vm.wait("Q")
                    QK(sl + 1, b, 1 - sb)
                    if sl == 2: ldK(vm, b)
                for i in range(5, 10): E(i)
                if sl == 0: vm.wait(("V", b))
                PV(sl, b, sb, 0)
                for i in range(10, 13): E(i)
                if extra: extra(b, sl)
                if down:
                    DM(b, sl)
                    if sl == 3: ldD(vm, b)
                if loop and b == 1 and sl == 3:
                    a("s_sub_u32 s46, s46, 1"); a("s_cmp_lg_u32 s46, 0")
                for i in range(13, 16): E(i)
        if loop: a("s_cbranch_scc1 %s" % loop)
    def ex0(b, sl):
        if b == 1: ZERO(DA + 16 * sl)
    iteration(first=True, extra=ex0)
    gen1.stamp(a, "i0")
    vm.wait("h")
    a("s_barrier")
    gen1.stamp(a, "b0")
    a("s_lshl_b32 s38, s18, 4")
    a("s_add_u32 s38, s38, 4")
    publish(vm, "s38")
    a("s_lshl_b32 s60, s3, 13")
    a("s_lshl_b32 s61, s3, 16")
    a("s_lshl_b32 s38, s88, 7")
    a("s_add_u32 s61, s61, s38")
    for it in range(1, 8 - NLOOP_B):
        def ex(b, sl):
            if it == 1 and b == 0 and sl == 3: gen1.stamp(a, "h1")
            if it == 1 and sl % 2 == 0 and not NOWO:
                i = 2 * b + sl // 2
                a("s_add_u32 m0, s60, %d" % (i * 2048))
                a("s_add_u32 s38, s61, %d" % (i * 16384))
                vm.issue("buffer_load_dwordx4 v%d, s[40:43], s38 offen lds" % vW0, "wo")
                vm.issue("buffer_load_dwordx4 v%d, s[40:43], s38 offen offset:1024 lds" % vW1, "wo")
            if it == 7 - NLOOP_B and b == 0 and sl == 0: poll(vm)
            if it == 7 - NLOOP_B and sl == 3:
                if b == 0:
                    gen1.stamp(a, "sh0")
                    spin("KF_SH", 16, vm)
                    gen1.stamp(a, "sh1")
                ldD(vm, b)
        iteration(extra=ex)
        gen1.stamp(a, "i%d" % it)
    gen1.stamp(a, 6)
    a("s_mov_b32 s46, %d" % NLOOP_B)
    body = steady_loop(a, [vm, lg], lambda: iteration(down=True, loop="KF_LB"))
    a(".p2align 6")
    a.label("KF_LB")
    a.lines += body
    a("s_nop 1")
    PV(3, 1, 1, 1)
    gen1.stamp(a, 7)
    for s in range(1, 4):
        a("s_add_u32 s28, s23, %d" % s)
        a("s_and_b32 s28, s28, 3")
        a("s_lshl_b32 s28, s28, 1")
        a("s_add_u32 s28, s28, s22")
        a("s_mul_i32 s28, s28, 3")
        a("s_add_u32 s28, s28, %d" % (s - 1))
        a("s_mul_i32 s28, s28, 2304")
        a("s_add_u32 s28, s28, %d" % SCR)
        a("v_add_u32 v%d, s28, v1" % (S[0] + 2 * s))
        a("v_lshl_add_u32 v%d, v0, 2, s28" % (S[0] + 2 * s + 1))
    for s in range(1, 4):
        if s == 3: a("s_nop 7")
        a("ds_write_b128 v%d, %s" % (S[0] + 2 * s, vr(O + 16 * s, 4)))
        a("ds_write_b128 v%d, %s offset:1024" % (S[0] + 2 * s, vr(O + 16 * s + 4, 4)))
        a("ds_write_b32 v%d, v%d offset:2048" % (S[0] + 2 * s + 1, O + 16 * s + 8))
    a("s_mul_i32 s28, s3, %d" % (3 * 2304))
    a("s_add_u32 s28, s28, %d" % SCR)
    a("v_add_u32 v4, s28, v1")
    a("v_lshl_add_u32 v5, v0, 2, s28")
    srd(a, 52, 14, OF, 2 * MB)
    a("s_and_b32 s36, s3, 1")
    a("s_bfe_u32 s37, s3, 0x10001")
    a("s_lshr_b32 s47, s3, 2")
    a("s_waitcnt lgkmcnt(0)")
    a("s_barrier")
    gen1.stamp(a, "rb")
    for s in range(3):
        a("ds_read_b128 %s, v4 offset:%d" % (vr(O + 16 * (s + 1), 4), s * 2304))
        a("ds_read_b128 %s, v4 offset:%d" % (vr(O + 16 * (s + 1) + 4, 4), s * 2304 + 1024))
        a("ds_read_b32 v%d, v5 offset:%d" % (O + 16 * (s + 1) + 8, s * 2304 + 2048))
    for s in range(3):
        a("s_waitcnt lgkmcnt(%d)" % (6 - 3 * s))
        for i in (8, 0, 1, 2, 3, 4, 5, 6, 7): a("v_add_f32 v%d, v%d, v%d" % (O + i, O + i, O + 16 * (s + 1) + i))
    a.label("KF_CHK")
    a("v_mov_b32 v4, v%d" % (O + 8))
    a("s_nop 1")
    a("v_permlane32_swap_b32 v%d, v4" % (O + 8))
    a("s_cmp_eq_u32 s46, 1")
    a("s_cbranch_scc1 KF_NORM")
    a("s_mov_b32 s38, %s" % hx(f2u(2.0 ** -60)))
    a("v_mov_b32 v5, %s" % hx(f2u(2.0 ** 40)))
    a("v_mul_f32 v4, 0, v%d" % O)
    for i in range(1, 8): a("v_fmac_f32 v4, 0, v%d" % (O + i))
    a("v_med3_f32 v5, v%d, s38, v5" % (O + 8))
    a("v_add_f32 v5, v5, v4")
    a("v_cmp_eq_f32 vcc, v5, v%d" % (O + 8))
    a("s_nop 1")
    a("s_cmp_eq_u64 vcc, -1")
    a("s_cbranch_scc0 KF_SLOW")
    a.label("KF_NORM")
    a("v_rcp_f32 v4, v%d" % (O + 8))
    a("s_lshl_b32 s28, s29, 5")
    a("s_add_u32 s28, s28, s89")
    a("s_lshl_b32 s28, s28, 10")
    for i in range(8): a("v_mul_f32 v%d, v%d, v4" % (O + i, O + i))
    for i in range(4): a("v_cvt_pk_bf16_f32 v%d, v%d, v%d" % (S[0] + i, O + 2 * i, O + 2 * i + 1))
    vm.issue("buffer_store_dwordx4 %s, v1, s[52:55], s28 offen%s" % (vr(S[0], 4), SC), "o")
    gen1.stamp(a, "ost")
    rem = 14 - 2 * NLOOP_B
    WO = 64; OFR = 128; B16 = 36; YA = 192; vG = 52
    def step(i):
        b = i % 2
        vm.wait(("D", b)); rdW(b)
        for n in range(4): DM(b, n)
        if i + 2 < rem: ldD(vm, b)
    for i in range(min(2, rem)): step(i)
    srd(a, 8, 14, GG, 16384)
    a("s_lshl_b32 s38, s89, 1")
    a("s_add_u32 s38, s38, s36")
    a("s_lshl_b32 s39, s38, 8")
    a("v_and_b32 v4, 31, v0")
    a("v_lshlrev_b32 v5, 3, v4")
    vm.issue("buffer_load_dwordx2 %s, v5, s[8:11], s39 offen%s" % (vr(vG, 2), SC), "g")
    a("s_lshl_b32 s60, s38, 15")
    a("s_lshl_b32 s39, s47, 14")
    a("s_add_u32 s60, s60, s39")
    a("v_lshlrev_b32 v6, 10, v4")
    a("v_lshrrev_b32 v7, 5, v0")
    a("v_lshl_add_u32 v6, v7, 4, v6")
    a("s_lshl_b32 s61, s38, 15")
    a("s_lshl_b32 s39, s88, 7")
    a("s_add_u32 s61, s61, s39")
    a("s_lshl_b32 s39, s37, 6")
    a("s_add_u32 s61, s61, s39")
    a("s_lshl_b32 s39, s47, 5")
    a("s_add_u32 s61, s61, s39")
    a("s_lshl_b32 s39, s37, 6")
    a("v_subrev_u32 v7, s16, v%d" % vT0)
    a("v_xor_b32 v7, s39, v7")
    a("s_lshl_b32 s39, s47, 15")
    a("v_add_u32 v7, s39, v7")
    for i in range(16):
        for q in range(2):
            lg.issue("ds_read_b64_tr_b16 %s, v7 offset:%d" % (vr(WO + 4 * i + 2 * q, 2), i * 2048 + q * 1024), "wof")
        if i % 4 == 3 and i < 15: lg.wait("wof")
    a("s_lshr_b32 s38, s89, 2")
    a("s_lshl_b32 s38, s38, 5")
    a("s_add_u32 s38, s38, 8")
    a("v_mov_b32 v%d, s38" % vPO)
    lg.wait("wof")
    vm.wait("o")
    a("s_barrier")
    a("s_lshl_b32 s38, s88, 5")
    a("s_add_u32 s38, s38, 8")
    publish(vm, "s38")
    gen1.stamp(a, "pub")
    for i in range(2, rem): step(i)
    a("s_lshl_b32 s38, s3, 14")
    a("v_add_u32 v2, s38, v1")
    a("s_lshl_b32 s38, s36, 1")
    a("s_add_u32 s38, s38, s37")
    a("s_lshl_b32 s39, s38, 12")
    a("s_lshl_b32 s44, s47, 16")
    a("s_add_u32 s39, s39, s44")
    a("v_add_u32 v3, s39, v1")
    a("s_nop 6")
    for t in range(4):
        for g in range(4):
            a("ds_write_b128 v2, %s offset:%d" % (vr(DA + 16 * t + 4 * g, 4), (t * 4 + g) * 1024))
    poll(vm)
    srd(a, 4, 58, 0, 2 * MB)
    a("s_lshl_b32 s38, s38, 12")
    a("s_lshl_b32 s39, s47, 11")
    a("s_add_u32 s38, s38, s39")
    a("s_add_u32 s38, s38, %d" % WRING)
    a("v_add_u32 v8, s38, v1")
    a("v_xor_b32 v9, 2048, v8")
    a("s_waitcnt lgkmcnt(0)")
    a("s_barrier")
    gen1.stamp(a, "db")
    for sw in range(4):
        for g in range(4):
            a("ds_read_b128 %s, v3 offset:%d" % (vr(OFR + 16 * sw + 4 * g, 4), sw * 16384 + g * 1024))
    a("s_waitcnt lgkmcnt(8)")
    for i in range(16): a("v_add_f32 v%d, v%d, v%d" % (B16 + i, OFR + i, OFR + 16 + i))
    a("s_waitcnt lgkmcnt(0)")
    for i in range(16): a("v_add_f32 v%d, v%d, v%d" % (OFR + 32 + i, OFR + 32 + i, OFR + 48 + i))
    for i in range(16): a("v_add_f32 v%d, v%d, v%d" % (B16 + i, B16 + i, OFR + 32 + i))
    vm.wait("g")
    for i in range(16): a("v_mul_f32 v%d, v%d, v%d" % (B16 + i, B16 + i, vG + 1))
    gen1.stamp(a, "so0")
    spin("KF_SO", 32, vm)
    gen1.stamp(a, "so1")
    for i in range(16):
        if i and i % 4 == 0: a("s_add_u32 s60, s60, 4096")
        vm.issue("buffer_load_dwordx4 %s, v1, s[52:55], s60 offen offset:%d%s" % (vr(OFR + 4 * i, 4), (i % 4) * 1024, SC), ("of", i))
    for i in range(16):
        vm.wait(("of", i))
        d = vr(YA, 16)
        a("v_mfma_f32_32x32x16_bf16 %s, %s, %s, %s" % (d, vr(WO + 4 * i, 4), vr(OFR + 4 * i, 4), "0" if i == 0 else d))
    a("s_cmp_eq_u32 s47, 0")
    a("s_nop 10")
    for i in range(16): a("v_fmac_f32 v%d, v%d, v%d" % (B16 + i, YA + i, vG))
    a("s_cbranch_scc0 KF_F1")
    for kh in range(2):
        give = B16 + 8 * (1 - kh); keep = B16 + 8 * kh
        a("ds_write_b128 v8, %s" % vr(give, 4))
        a("ds_write_b128 v8, %s offset:1024" % vr(give + 4, 4))
        a("s_waitcnt lgkmcnt(0)")
        a("s_barrier")
        a("ds_read_b128 %s, v9" % vr(YA, 4))
        a("ds_read_b128 %s, v9 offset:1024" % vr(YA + 4, 4))
        a("s_waitcnt lgkmcnt(0)")
        for i in range(8): a("v_add_f32 v%d, v%d, v%d" % (YA + i, YA + i, keep + i))
        for i in range(4): a("v_cvt_pk_bf16_f32 v%d, v%d, v%d" % (YA + 8 + i, YA + 2 * i, YA + 2 * i + 1))
        a("s_nop 1")
        a("v_permlane32_swap_b32 v%d, v%d" % (YA + 8, YA + 10))
        a("v_permlane32_swap_b32 v%d, v%d" % (YA + 9, YA + 11))
        a("buffer_store_dwordx4 %s, v6, s[4:7], s61 offen%s" % (vr(YA + 8, 4), OSC))
        gen1.stamp(a, "fin")
        gen1.stamp_end(a, 0, 14, 5)
        if kh == 0:
            a("s_endpgm")
            a.label("KF_F1")
    a.label("KF_END")
    a("s_endpgm")
    a.label("KF_SLOW")
    vm2 = VM(a)
    CB = O + 16
    a("s_waitcnt vmcnt(0)")
    a("s_add_u32 s26, s24, %s" % hx(KF))
    srd(a, 8, 14, "s26", 65536)
    a("s_add_u32 s26, s24, %s" % hx(VF))
    srd(a, 4, 14, "s26", 65536)
    a("s_mov_b32 s26, 0")
    a("v_mov_b32 v4, 0xff800000")
    a("s_mov_b32 s46, 64")
    a.label("KF_SL1")
    ldK(vm2, 0, False)
    a("s_waitcnt vmcnt(0)")
    QK(0, 0, 0)
    a("s_nop 15")
    for i in range(8): a("v_max3_f32 v4, v4, v%d, v%d" % (S[0] + 2 * i, S[0] + 2 * i + 1))
    a("s_sub_u32 s46, s46, 1"); a("s_cmp_lg_u32 s46, 0")
    a("s_cbranch_scc1 KF_SL1")
    a("v_mov_b32 v5, v4")
    a("s_nop 1")
    a("v_permlane32_swap_b32 v4, v5")
    a("s_nop 1")
    a("v_max_f32 v4, v4, v5")
    for i in range(16): a("v_sub_f32 v%d, 0, v4" % (CB + i))
    for i in range(16): a("v_mov_b32 v%d, 0" % (O + i))
    a("s_mov_b32 s26, 0")
    a("s_mov_b32 s27, 0")
    a("s_mov_b32 s46, 65")
    a.label("KF_SL2")
    ldK(vm2, 0, False); ldV(vm2, 0, False)
    a("s_waitcnt vmcnt(0)")
    a("v_mfma_f32_32x32x16_bf16 %s, %s, %s, %s" % (vr(S[0], 16), vr(K[0], 4), vr(Q, 4), vr(CB, 16)))
    a("s_nop 15")
    for i in range(16): a("v_exp_f32 v%d, v%d" % (S[0] + i, S[0] + i))
    a("s_nop 1")
    PV(0, 0, 0, 0); PV(0, 0, 0, 1)
    a("s_sub_u32 s46, s46, 1"); a("s_cmp_lg_u32 s46, 1")
    a("s_cbranch_scc1 KF_SL2")
    a("s_nop 15")
    a("s_branch KF_CHK")
    a("s_endpgm")
    return NAME, 256, "grid=(256,1,1) block=(512,1,1) lds=%d" % (ANS * ASLOT)

DOC = """;
"""
def build1(out, k, extra=[], aslist=False):
    a = Asm()
    a('.amdgcn_target "amdgcn-amd-amdhsa--gfx950"')
    a(".text")
    ks = [k(a)] + [e(a) for e in extra]
    body = a.text()
    errs = check_text(body)
    for e in errs[:40]: print("CHECK:", e)
    hdr = "; gated mix of softmax attention and SwiGLU FFN in one launch; generated by the scripts in gen/\n"
    if len(ks) == 1 and not aslist: hdr += "; @launch %s\n" % ks[0][2]
    else:
        for (n, nv, l) in ks: hdr += "; @launch kernel=%s %s\n" % (n, l)
    hdr += DOC
    txt = hdr + body + '.section .rodata,"a"\n' + "".join(descriptor(n, nv) for (n, nv, l) in ks)
    open(out, "w").write(txt)
    print("wrote", out, len(txt), "bytes;", len(errs), "check errors")

def parse(argv):
    global NLOOP_B, KVROT, OSC, NOWO
    if "nowo" in argv: NOWO = True
    if "stamp" in argv: gen1.STAMP = True
    gen3.GST = [32]
    for x in argv:
        if x.startswith("rot="): gen3.ROT = int(x[4:])
        if x.startswith("smap="): gen1.SMAP = [int(y) if y.isdigit() else y for y in x[5:].split(",")]
        if x.startswith("nb="): NLOOP_B = int(x[3:])
        if x == "nokvrot": KVROT = False
        if x.startswith("osc="): OSC = " " + x[4:]
if __name__ == "__main__":
    parse(sys.argv)
    build1(sys.argv[1], kf, aslist=("list" in sys.argv))
```

```python
import sys
sys.path.insert(0, "gen")
import gen1, gen3
from gen1 import *
from asmlib import *
from gen3 import ab_prologue, phase_ab, SC, ANS, ASLOT
from gen5 import build1

RING = 65536; SCR = 98304
KVROT = True
OSC = ""
LADDER = True
XP = []
HPUB = 1
NAME = "gated_mix__softmax_full_mha__swiglu_ffn__prompt_kernel"

def kf(a):
    header(a, NAME)
    Q = 128; K = [144, 148]; V = [152, 160]; S = [32, 48]; O = 64
    WF = 168; DA = 184; HB_ = 216
    vV, vIX, vP, vPO, vLD = 18, 19, 20, 21, 22
    vWA, vWB, vT0, vT1, vZ = 24, 25, 26, 27, 28
    vW0 = 23
    ab_prologue(a, "KF_END")
    def spin(lab, expect, vm, leader_only=False):
        vm.wait("poll")
        a("v_cmp_eq_u32 vcc, %d, v%d" % (expect, vP))
        a("s_mov_b32 s38, 0x40000")
        if leader_only:
            a("s_cmp_lg_u32 s3, 0")
            a("s_cbranch_scc1 %s_OK" % lab)
        a("s_cmp_eq_u64 vcc, -1")
        a("s_cbranch_scc1 %s_OK" % lab)
        a.label(lab)
        a("s_sleep 4")
        a("buffer_load_dword v%d, v%d, s[84:87], 0 offen sc1" % (vP, vPO))
        a("s_sub_u32 s38, s38, 1")
        a("s_waitcnt vmcnt(0)")
        a("v_cmp_eq_u32 vcc, %d, v%d" % (expect, vP))
        a("s_cselect_b32 s39, 1, 0")
        a("s_cmp_eq_u64 vcc, -1")
        a("s_cselect_b32 s39, 1, s39")
        a("s_cmp_eq_u32 s39, 0")
        a("s_cbranch_scc1 %s" % lab)
        a.label(lab + "_OK")
    def poll(vm): vm.issue("buffer_load_dword v%d, v%d, s[84:87], 0 offen sc1" % (vP, vPO), "poll")
    def publish(vm, soff):
        a("v_mov_b32 v%d, 1" % vP)
        a("s_mov_b64 exec, 1")
        vm.issue("buffer_atomic_add v%d, v%d, s[84:87], %s offen sc1" % (vP, vLD, soff), "atom")
        a("s_mov_b64 exec, -1")
    def ldK(vm, b, wrap=True):
        vm.issue("buffer_load_dwordx4 %s, v1, s[8:11], s26 offen%s" % (vr(K[b], 4), SC), ("K", b))
        a("s_add_u32 s26, s26, 1024")
        if wrap: a("s_and_b32 s26, s26, 0x3fff")
    def ldV(vm, b, wrap=True):
        a("s_mov_b64 exec, s[30:31]")
        vm.issue("buffer_load_dwordx4 %s, v%d, s[4:7], s27 offen%s" % (vr(V[b], 4), vV, SC), ("V", b))
        vm.issue("buffer_load_dwordx4 %s, v%d, s[4:7], s27 offen offset:512%s" % (vr(V[b] + 4, 4), vV, SC), ("V", b))
        a("s_mov_b64 exec, -1")
        a("s_add_u32 s27, s27, 1024")
        if wrap: a("s_and_b32 s27, s27, 0x3fff")
    def cap(fn):
        save = a.lines; a.lines = []
        fn(); L = a.lines; a.lines = save
        return [("s", l.strip(), None) for l in L]
    def early(vm):
        a("s_and_b32 s89, s2, 7")
        a("s_lshl_b32 s89, s89, 2")
        a("s_bfe_u32 s38, s2, 0x20003")
        a("s_add_u32 s89, s89, s38")
        a("s_lshr_b32 s88, s2, 5")
        a("s_lshl_b32 s39, s88, 3")
        a("s_add_u32 s38, s3, s39")
        a("s_lshl_b32 s38, s38, 5")
        a("s_add_u32 s38, s38, s89")
        a("s_lshl_b32 s61, s38, 10")
        srd(a, 84, 14, OF, 2 * MB)
        for i in range(4): a("v_mov_b32 v%d, -1" % (O + i))
        vm.issue("buffer_store_dwordx4 %s, v1, s[84:87], s61 offen%s" % (vr(O, 4), SC), "sent")
    def setup1():
        srd(a, 84, 100, 0, 256)
        a("s_cmp_eq_u32 s3, 0")
        a("s_cselect_b32 s38, 0, 0x1000")
        a("v_mov_b32 v%d, s38" % vLD)
        a("v_and_b32 v%d, 15, v0" % vPO)
        a("v_lshlrev_b32 v%d, 4, v%d" % (vPO, vPO))
    def setup2():
        a("s_lshr_b32 s22, s3, 2")
        a("s_and_b32 s23, s3, 3")
        a("v_and_b32 v%d, 15, v0" % vV)
        a("v_lshlrev_b32 v%d, 4, v%d" % (vV, vV))
        a("v_lshrrev_b32 v%d, 5, v0" % vIX)
        a("v_lshl_add_u32 v%d, v%d, 8, v%d" % (vV, vIX, vV))
        a("s_lshl_b32 s24, s89, 16")
        a("s_lshl_b32 s25, s88, 3")
        a("s_lshl_b32 s26, s22, 2")
        a("s_add_u32 s25, s25, s26")
        a("s_lshl_b32 s27, s23, 14")
        a("s_add_u32 s27, s27, s24")
        a("s_add_u32 s26, s27, %s" % hx(KF))
        srd(a, 8, 14, "s26", 16384)
        a("s_add_u32 s26, s27, %s" % hx(VF))
        srd(a, 4, 14, "s26", 16384)
        a("s_lshl_b32 s26, s88, 11")
        if not KVROT: a("s_mov_b32 s26, 0")
        a("s_mov_b32 s27, s26")
        srd(a, 92, 14, "s24", 65536)
        a("v_and_b32 v%d, 31, v0" % vIX)
        a("v_cmp_eq_u32 vcc, 16, v%d" % vIX)
        a("v_mov_b32 v%d, 0x3f803f80" % vIX)
        a("s_mov_b32 s30, 0x0000ffff"); a("s_mov_b32 s31, 0x0000ffff")
        a("v_cndmask_b32 v%d, 0, v%d, vcc" % (V[0], vIX))
        for i in range(1, 16): a("v_mov_b32 v%d, v%d" % (V[0] + i, V[0]))
        a("v_mov_b32 v%d, 0xdddddddd" % vIX)
        for i in range(4): a("v_mov_b32 v%d, 0" % (vZ + i))
    def setup3():
        a("v_bfe_u32 v2, v0, 4, 1")
        a("v_lshlrev_b32 v5, 2, v2")
        a("v_and_b32 v6, 7, v0")
        a("v_xor_b32 v5, v5, v6")
        a("v_lshlrev_b32 v5, 4, v5")
        a("v_lshrrev_b32 v6, 3, v0")
        a("v_lshl_add_u32 v%d, v6, 10, v5" % vW0)
        a("s_lshl_b32 s38, s22, 13")
        a("v_add_u32 v%d, s38, v%d" % (vWA, vW0))
        a("v_add_u32 v%d, %d, v%d" % (vWB, 16384 - 2048, vWA))
        a("v_lshrrev_b32 v5, 5, v0")
        a("v_bfe_u32 v6, v0, 2, 2")
        a("v_lshl_add_u32 v5, v5, 2, v6")
        a("v_bfe_u32 v6, v0, 1, 1")
        a("v_lshl_add_u32 v6, v2, 1, v6")
        a("v_bfe_u32 v3, v0, 3, 1")
        a("v_lshl_add_u32 v6, v3, 2, v6")
        a("v_lshlrev_b32 v6, 4, v6")
        a("v_and_b32 v3, 1, v0")
        a("v_lshl_add_u32 v6, v3, 3, v6")
        a("v_lshl_add_u32 v6, v5, 7, v6")
        a("s_lshl_b32 s16, s23, 12")
        a("s_add_u32 s16, s16, %d" % RING)
        a("v_add_u32 v%d, s16, v6" % vT0)
        a("v_xor_b32 v%d, 64, v%d" % (vT1, vT0))
        a("s_lshl_b32 s38, s22, 10")
        a("s_add_u32 s17, s16, s38")
        a("s_lshl_b32 s20, s88, 1")
        a("s_and_b32 s21, s89, 3")
        a("s_mul_i32 s21, s21, 3")
        a("s_add_u32 s20, s20, s21")
        a("s_cmp_ge_u32 s20, 14")
        a("s_cselect_b32 s21, 14, 0")
        a("s_sub_u32 s20, s20, s21")
        a("s_lshl_b32 s20, s20, 11")
        a("s_lshl_b32 s21, s20, 4")
    chunks = {}
    def hook(kind, vm, where):
        if where == "early": early(vm)
        elif where == "pub":
            a("s_lshl_b32 s38, s19, 4")
            publish(vm, "s38")
        elif where == "poll": poll(vm)
        elif isinstance(where, int):
            g = where
            if g == 40: chunks["L"] = cap(setup1)
            if g == 44: chunks["L"] = cap(setup2) + cap(setup3)
            if 40 <= g < 43 or 44 <= g < 58:
                n = 4 if g < 43 else 8
                while n < len(chunks["L"]) and chunks["L"][n][1].startswith(("s_cselect", "s_addc")): n += 1
                L = chunks["L"][:n]; chunks["L"] = chunks["L"][n:]
                if g in (42, 57): assert not chunks["L"], len(chunks["L"])
                return L
            if g == 61:
                def ld():
                    spin("KF_SQ_" + kind, 16, vm)
                    gen1.stamp(a, "sq1")
                    for s in range(4):
                        a("s_add_u32 s28, s23, %d" % s)
                        a("s_and_b32 s28, s28, 3")
                        a("s_add_u32 s28, s28, s25")
                        a("s_lshl_b32 s28, s28, 10")
                        vm.issue("buffer_load_dwordx4 %s, v1, s[92:95], s28 offen%s" % (vr(Q + 4 * s, 4), SC), "Q")
                        if s == 0: ldK(vm, 0)
                    ldV(vm, 0); ldK(vm, 1); ldV(vm, 1)
                return [("f", ld, None)]
        elif where == "pre_h":
            a("s_setprio 3")
    ENTRY = ["Q", ("K", 0), "Q", "Q", "Q", ("V", 0), ("V", 0), ("K", 1), ("V", 1), ("V", 1), "h", "h", "h", "h"]
    def tail(kind, vm):
        if kind != "P":
            a("v_mov_b32 v4, 0x1000")
            vm.issue("buffer_store_dword v4, v4, s[84:87], 0 offen", "h")
        assert vm.ops[-14:] == ENTRY, vm.ops
        if kind != "P": a("s_branch KF_C")
    a("s_load_dwordx2 s[100:101], s[0:1], 72")
    gen3.HOOKG = True
    phase_ab(a, tail, hook)
    a.label("KF_C")
    gen1.stamp(a, 5)
    vm = VM(a); vm.ops = list(ENTRY)
    lg = VM(a, "lgkmcnt", 15)
    a("s_load_dwordx2 s[12:13], s[0:1], 48")
    a("s_load_dwordx2 s[56:57], s[0:1], 16")
    a("s_load_dwordx2 s[58:59], s[0:1], 64")
    def QK(sl, kb, sb): a("v_mfma_f32_32x32x16_bf16 %s, %s, %s, 0" % (vr(S[sb], 16), vr(K[kb], 4), vr(Q + 4 * sl, 4)))
    def PV(sl, vb, sb, j): a("v_smfmac_f32_32x32x32_bf16 %s, %s, %s, v%d" % (vr(O + 16 * sl, 16), vr(V[vb] + 4 * j, 4), vr(S[sb] + 8 * j, 8), vIX))
    def ZERO(r): a("v_mfma_f32_32x32x16_bf16 %s, %s, %s, 0" % (vr(r, 16), vr(vZ, 4), vr(vZ, 4)))
    vm.wait(("K", 0))
    QK(0, 0, 0)
    for i in range(4): ZERO(O + 16 * i)
    a("s_lshr_b32 s38, s89, 1")
    a("s_lshl_b32 s38, s38, 4")
    a("s_add_u32 s38, s38, 4")
    a("v_add_u32 v%d, s38, v%d" % (vPO, vLD))
    a("s_lshl_b32 s44, s89, 1")
    a("s_add_u32 s44, s44, s22")
    a("s_mul_i32 s38, s44, 112")
    a("s_mul_i32 s39, s23, 28")
    a("s_add_u32 s38, s38, s39")
    a("s_lshl_b32 s38, s38, 10")
    a("s_add_u32 s38, s38, %s" % hx(HF))
    srd(a, 32, 14, "s38", 28 * 1024)
    a("s_lshl_b32 s38, s39, 14")
    a("s_lshl_b32 s45, s88, 7")
    a("s_add_u32 s38, s38, s45")
    a("s_sub_u32 s39, %d, s38" % (1792 * 1024))
    a("s_waitcnt lgkmcnt(0)")
    srd(a, 48, 12, "s38", "s39")
    srd(a, 40, 56, 0, 512 * 1024)
    FLG = 161792
    vF, vFA, vFB, vFR = 232, 233, 234, 235
    vRW = 236
    def ldH(b, k):
        vm.issue("buffer_load_dwordx4 %s, v1, s[32:35], s20 offen offset:%d%s" % (vr(HB_ + 8 * b + 4 * k, 4), 1024 * k, SC), ("H", b, k))
    def ldW(b, k):
        if k == 0:
            a("s_add_u32 m0, s17, %d" % (b * 16384))
            a("s_lshl_b32 s21, s36, 4")
        vm.issue("buffer_load_dwordx4 v%d, s[48:51], s21 offen offset:%d lds" % (vWA + k, 2048 * k), ("W", b))
        if k == 1: adv("s36")
    def adv(r0):
        a("s_add_u32 %s, %s, 2048" % (r0, r0))
        a("s_cmp_eq_u32 %s, %d" % (r0, 14 * 2048))
        a("s_cselect_b32 %s, 0, %s" % (r0, r0))
    def rdW(b, k):
        for ft in range(2):
            for q in range(2):
                lg.issue("ds_read_b64_tr_b16 %s, v%d offset:%d" % (vr(WF + 8 * k + 4 * ft + 2 * q, 2), vT0 + ft, b * 16384 + k * 2048 + q * 1024), ("w", k, ft))
    def DM(b, n):
        k, ft = n // 2, n % 2
        lg.wait(("w", k, ft))
        vm.wait(("H", b, k))
        d = vr(DA + 16 * ft, 16)
        a("v_mfma_f32_32x32x16_bf16 %s, %s, %s, %s" % (d, vr(WF + 8 * k + 4 * ft, 4), vr(HB_ + 8 * b + 4 * k, 4), d))
    def signal(b):
        a("v_add_u32 v%d, 1, v%d" % (vF, vF))
        vm.wait(("W", b))
        lg.issue("ds_write_b32 v%d, v%d" % (vFA, vF), "fw")
    def peek(): lg.issue("ds_read_b32 v%d, v%d" % (vFR, vFB), "fr")
    def check(lab):
        lg.wait("fr")
        a("v_cmp_lt_u32 vcc, v%d, v%d" % (vFR, vF))
        a("s_mov_b32 s38, 0x100000")
        a("s_cbranch_vccnz %s" % lab)
        a.label(lab + "_OK")
        def slow():
            a.label(lab)
            a("s_setprio 0")
            a("s_sleep 1")
            a("ds_read_b32 v%d, v%d" % (vFR, vFB))
            a("s_sub_u32 s38, s38, 1")
            a("s_waitcnt lgkmcnt(0)")
            a("v_cmp_lt_u32 vcc, v%d, v%d" % (vFR, vF))
            a("s_cbranch_scc1 %s_GO" % lab)
            a("s_cbranch_vccnz %s" % lab)
            a.label(lab + "_GO")
            a("s_setprio 3")
            a("s_branch %s_OK" % lab)
        outl[lab] = slow
    outl = {}
    def keytile(b, first=False, down=False, loop=None, top=None, extra=None, pre=False, lab=None):
        if top:
            top("pre"); a("s_barrier"); top("post")
        for sl in range(4):
            sb = sl % 2
            def E(i): a("v_exp_f32 v%d, v%d" % (S[sb] + i, S[sb] + i))
            if LADDER: a("s_setprio %d" % (3 - sl))
            elif first and sl == 0: a("s_setprio 0")
            if down and sl == 0:
                check(lab); rdW(b, 0)
            E(0); E(1)
            if sl == 0:
                if not first:
                    PV(3, 1 - b, 1, 1)
                    ldV(vm, 1 - b)
            else: PV(sl - 1, b, 1 - sb, 1)
            if down and sl == 1: rdW(b, 1)
            E(2); E(3); E(4)
            if sl == 3:
                vm.wait(("K", 1 - b))
                QK(0, 1 - b, 0)
            else:
                if first: vm.wait("Q")
                QK(sl + 1, b, 1 - sb)
                if sl == 2: ldK(vm, b)
            if (down or pre) and sl < 2: ldW(b, sl)
            if (down or pre == 2) and sl == 2: signal(1 - b)
            if (down or pre == 2) and sl == 3: peek()
            for i in range(5, 10): E(i)
            if sl == 0: vm.wait(("V", b))
            PV(sl, b, sb, 0)
            for i in range(10, 13): E(i)
            if extra: extra(sl)
            if down:
                DM(b, sl)
                if sl % 2 == 1: ldH(b, sl // 2)
                if sl == 3:
                    adv("s20")
                    if b == 1:
                        a("v_xor_b32 v%d, 0x8000, v%d" % (vT0, vT0))
                        a("v_xor_b32 v%d, 0x8000, v%d" % (vT1, vT1))
                        a("s_xor_b32 s17, s17, 0x8000")
            if loop and sl == 3:
                a("s_sub_u32 s46, s46, 1"); a("s_cmp_lg_u32 s46, 0")
            for i in range(13, 16): E(i)
    def pubH(when):
        if when == "pre":
            vm.wait("h"); lg.wait("fw")
        else:
            a("s_lshl_b32 s38, s18, 4")
            a("s_add_u32 s38, s38, 4")
            publish(vm, "s38")
    def wo_stage(i):
        a("s_add_u32 m0, s60, %d" % (i * 2048))
        a("s_add_u32 s38, s47, %d" % (i * 16384))
        vm.issue("buffer_load_dwordx4 v%d, s[40:43], s38 offen lds" % vW0, "wo")
        a("s_add_u32 s38, s38, %d" % (8192 - 1024))
        vm.issue("buffer_load_dwordx4 v%d, s[40:43], s38 offen offset:1024 lds" % vW0, "wo")
    a("s_lshl_b32 s60, s3, 13")
    a("s_lshl_b32 s47, s3, 16")
    a("s_add_u32 s47, s47, s45")
    a("s_mov_b32 s36, s20")
    def ex0(sl):
        if sl < 2: ZERO(DA + 16 * sl)
        if sl == 2:
            a("s_lshl_b32 s38, s3, 8")
            a("s_add_u32 s38, s38, %d" % FLG)
            a("v_lshl_add_u32 v%d, v0, 2, s38" % vFA)
            a("v_xor_b32 v%d, 1024, v%d" % (vFB, vFA))
            a("v_mov_b32 v%d, 0" % vF)
            lg.issue("ds_write_b32 v%d, v%d" % (vFA, vF), "fw")
    keytile(0, first=True, extra=ex0)
    gen1.stamp(a, "k0")
    keytile(1, top=pubH, extra=wo_stage)
    gen1.stamp(a, "k1")
    def ex2(sl):
        if sl == 2: poll(vm)
        if sl < 3:
            s = sl + 1
            a("s_add_u32 s28, s23, %d" % s)
            a("s_and_b32 s28, s28, 3")
            a("s_lshl_b32 s38, s22, 2")
            a("s_add_u32 s28, s28, s38")
            a("s_mul_i32 s28, s28, 3")
            a("s_add_u32 s28, s28, %d" % (s - 1))
            a("s_mul_i32 s28, s28, 2304")
            a("s_add_u32 s28, s28, %d" % SCR)
            a("v_add_u32 v%d, s28, v1" % (vRW + 2 * sl))
            a("v_lshl_add_u32 v%d, v0, 2, s28" % (vRW + 2 * sl + 1))
        else:
            a("s_mul_i32 s28, s3, %d" % (3 * 2304))
            a("s_add_u32 s28, s28, %d" % SCR)
            a("v_add_u32 v%d, s28, v1" % (vRW + 6))
            a("v_lshl_add_u32 v%d, v0, 2, s28" % (vRW + 7))
    keytile(0, pre=1, extra=ex2)
    gen1.stamp(a, "k2")
    def top3(when):
        if when == "pre":
            spin("KF_SH", 16, vm, True)
            gen1.stamp(a, "sh1")
        else:
            ldH(0, 0); ldH(0, 1); adv("s20")
    def ex3(sl):
        if sl % 2 == 1: ldH(1, sl // 2)
        if sl == 0: srd(a, 52, 14, OF, 2 * MB)
        if sl == 3:
            adv("s20")
            a("s_xor_b32 s17, s17, 0x8000")
    keytile(1, top=top3, pre=2, extra=ex3)
    gen1.stamp(a, "k3")
    a("s_mov_b32 s46, 6")
    def it():
        keytile(0, down=True, lab="KF_P0"); keytile(1, down=True, loop=True, lab="KF_P1")
        a("s_cbranch_scc1 KF_LB")
    body = steady_loop(a, [vm, lg], it)
    a(".p2align 6")
    a.label("KF_LB")
    a.lines += body
    a("s_nop 1")
    PV(3, 1, 1, 1)
    if LADDER: a("s_setprio 3")
    gen1.stamp(a, 7)
    lg.wait("fr")
    a("s_barrier")
    a("s_nop 4")
    for s in range(1, 4):
        if s == 3: a("s_nop 1")
        a("ds_write_b128 v%d, %s" % (vRW + 2 * s - 2, vr(O + 16 * s, 4)))
        a("ds_write_b128 v%d, %s offset:1024" % (vRW + 2 * s - 2, vr(O + 16 * s + 4, 4)))
        a("ds_write_b32 v%d, v%d offset:2048" % (vRW + 2 * s - 1, O + 16 * s + 8))
    vm.wait(("W", 0), ("W", 1))
    a("s_waitcnt lgkmcnt(0)")
    a("s_barrier")
    gen1.stamp(a, "rb")
    for s in range(3):
        a("ds_read_b128 %s, v%d offset:%d" % (vr(O + 16 * (s + 1), 4), vRW + 6, s * 2304))
        a("ds_read_b128 %s, v%d offset:%d" % (vr(O + 16 * (s + 1) + 4, 4), vRW + 6, s * 2304 + 1024))
        a("ds_read_b32 v%d, v%d offset:%d" % (O + 16 * (s + 1) + 8, vRW + 7, s * 2304 + 2048))
    for s in range(3):
        a("s_waitcnt lgkmcnt(%d)" % (6 - 3 * s))
        for i in (8, 0, 1, 2, 3, 4, 5, 6, 7): a("v_add_f32 v%d, v%d, v%d" % (O + i, O + i, O + 16 * (s + 1) + i))
    a.label("KF_CHK")
    a("v_mov_b32 v4, v%d" % (O + 8))
    a("s_nop 1")
    a("v_permlane32_swap_b32 v%d, v4" % (O + 8))
    a("s_cmp_eq_u32 s46, 1")
    a("s_cbranch_scc1 KF_NORM")
    a("s_mov_b32 s38, %s" % hx(f2u(2.0 ** -60)))
    a("v_mov_b32 v5, %s" % hx(f2u(2.0 ** 40)))
    a("v_mul_f32 v4, 0, v%d" % O)
    for i in range(1, 8): a("v_fmac_f32 v4, 0, v%d" % (O + i))
    a("v_med3_f32 v5, v%d, s38, v5" % (O + 8))
    a("v_add_f32 v5, v5, v4")
    a("v_cmp_eq_f32 vcc, v5, v%d" % (O + 8))
    a("s_nop 1")
    a("s_cmp_eq_u64 vcc, -1")
    a("s_cbranch_scc0 KF_SLOW")
    a.label("KF_NORM")
    a("v_rcp_f32 v4, v%d" % (O + 8))
    a("s_nop 0")
    for i in range(8): a("v_mul_f32 v%d, v%d, v4" % (O + i, O + i))
    for i in range(4): a("v_cvt_pk_bf16_f32 v%d, v%d, v%d" % (S[0] + i, O + 2 * i, O + 2 * i + 1))
    for i in range(4): a("v_min_u32 v%d, -2, v%d" % (S[0] + i, S[0] + i))
    vm.issue("buffer_store_dwordx4 %s, v1, s[52:55], s61 offen%s" % (vr(S[0], 4), SC), "o")
    gen1.stamp(a, "ost")
    WO = 64; OFR = 128; YA = 36 - 4; vG = 2
    YA = 200 + 32
    YA = 160 - 0
    srd(a, 8, 14, GG, 16384)
    a("s_lshl_b32 s39, s44, 8")
    a("v_and_b32 v4, 31, v0")
    a("v_lshlrev_b32 v5, 3, v4")
    vm.issue("buffer_load_dwordx2 %s, v5, s[8:11], s39 offen%s" % (vr(vG, 2), SC), "g")
    a("s_lshl_b32 s60, s44, 15")
    a("s_lshl_b32 s39, s23, 13")
    a("s_add_u32 s60, s60, s39")
    a("s_add_u32 s47, s60, 4096")
    def ldO(i): return "buffer_load_dwordx4 %s, v1, s[52:55], %s offen offset:%d%s" % (vr(OFR + 4 * i, 4), "s60" if i < 4 else "s47", (i % 4) * 1024, SC)
    for b in range(2):
        rdW(b, 0); rdW(b, 1)
        for n in range(4): DM(b, n)
    for i in range(8): vm.issue(ldO(i), ("of", i))
    a("v_and_b32 v7, 0xfff, v%d" % vT0)
    a("s_lshl_b32 s39, s23, 14")
    a("v_add_u32 v7, s39, v7")
    a("v_xor_b32 v8, 64, v7")
    for i in range(8):
        for ft in range(2):
            for q in range(2):
                lg.issue("ds_read_b64_tr_b16 %s, v%d offset:%d" % (vr(WO + 8 * i + 4 * ft + 2 * q, 2), 7 + ft, i * 2048 + q * 1024), "wof")
        if i % 2 == 1 and i < 7: lg.wait("wof")
    a("v_lshlrev_b32 v6, 10, v4")
    a("v_lshrrev_b32 v9, 5, v0")
    a("v_lshl_add_u32 v6, v9, 4, v6")
    a("s_lshl_b32 s61, s44, 15")
    a("s_add_u32 s61, s61, s45")
    a("s_lshl_b32 s39, s23, 5")
    a("s_add_u32 s61, s61, s39")
    srd(a, 4, 58, 0, 2 * MB)
    a("s_lshl_b32 s38, s22, 15")
    a("s_lshl_b32 s39, s23, 11")
    a("s_add_u32 s39, s39, s38")
    a("v_add_u32 v9, s39, v1")
    a("s_lshl_b32 s39, s23, 13")
    a("s_add_u32 s39, s39, s38")
    a("v_add_u32 v10, s39, v1")
    vm.wait("g")
    for i in range(32): a("v_mul_f32 v%d, v%d, v%d" % (DA + i, DA + i, vG + 1))
    lg.wait("wof")
    a("s_barrier")
    gen1.stamp(a, "so0")
    YA = 32
    for i in range(8):
        vm.wait(("of", i))
        r = OFR + 4 * i
        lab = "KF_O%d" % i
        a("s_mov_b32 s38, 0x40000")
        a.label(lab)
        a("v_max3_u32 v11, v%d, v%d, v%d" % (r, r + 1, r + 2))
        a("v_max_u32 v11, v11, v%d" % (r + 3))
        a("v_cmp_eq_u32 vcc, -1, v11")
        a("s_sub_u32 s38, s38, 1")
        a("s_cselect_b64 s[90:91], 0, vcc" if False else "s_cbranch_scc1 %s_OK" % lab)
        a("s_cbranch_vccz %s_OK" % lab)
        a("s_sleep 2")
        a(ldO(i))
        a("s_waitcnt vmcnt(0)")
        a("s_branch %s" % lab)
        a.label(lab + "_OK")
        for ft in range(2):
            d = vr(YA + 16 * ft, 16)
            a("v_mfma_f32_32x32x16_bf16 %s, %s, %s, %s" % (d, vr(WO + 8 * i + 4 * ft, 4), vr(r, 4), "0" if i == 0 else d))
    gen1.stamp(a, "so1")
    a("s_cmp_ge_u32 s23, 2")
    a("s_nop 10")
    for i in range(32): a("v_fmac_f32 v%d, v%d, v%d" % (DA + i, YA + i, vG))
    a("s_cbranch_scc1 KF_X2")
    a("s_cmp_eq_u32 s23, 1")
    a("s_cbranch_scc1 KF_X1")
    def fin(kq):
        for p in range(4):
            if p == kq: continue
            a("ds_write_b128 v9, %s offset:%d" % (vr(DA + 8 * p, 4), p * 8192))
            a("ds_write_b128 v9, %s offset:%d" % (vr(DA + 8 * p + 4, 4), p * 8192 + 1024))
        a("s_waitcnt lgkmcnt(0)")
        a("s_barrier")
        srcs = [s for s in range(4) if s != kq]
        for n, s in enumerate(srcs):
            a("ds_read_b128 %s, v10 offset:%d" % (vr(YA + 8 * n, 4), s * 2048))
            a("ds_read_b128 %s, v10 offset:%d" % (vr(YA + 8 * n + 4, 4), s * 2048 + 1024))
        a("s_waitcnt lgkmcnt(4)")
        for i in range(8): a("v_add_f32 v%d, v%d, v%d" % (YA + i, YA + i, DA + 8 * kq + i))
        a("s_waitcnt lgkmcnt(0)")
        for i in range(8): a("v_add_f32 v%d, v%d, v%d" % (YA + 8 + i, YA + 8 + i, YA + 16 + i))
        for i in range(8): a("v_add_f32 v%d, v%d, v%d" % (YA + i, YA + i, YA + 8 + i))
        for i in range(4): a("v_cvt_pk_bf16_f32 v%d, v%d, v%d" % (YA + 24 + i, YA + 2 * i, YA + 2 * i + 1))
        a("s_nop 1")
        a("v_permlane32_swap_b32 v%d, v%d" % (YA + 24, YA + 26))
        a("v_permlane32_swap_b32 v%d, v%d" % (YA + 25, YA + 27))
        a("buffer_store_dwordx4 %s, v6, s[4:7], s61 offen%s" % (vr(YA + 24, 4), OSC))
        gen1.stamp(a, "fin")
        gen1.stamp_end(a, 0, 14, 5)
        a("s_endpgm")
    fin(0)
    a.label("KF_X1"); fin(1)
    a.label("KF_X2")
    a("s_cmp_eq_u32 s23, 3")
    a("s_cbranch_scc1 KF_X3")
    fin(2)
    a.label("KF_X3"); fin(3)
    a.label("KF_END")
    a("s_endpgm")
    for f in outl.values(): f()
    a("s_endpgm")
    a.label("KF_SLOW")
    vm2 = VM(a)
    CB = O + 16
    a("s_waitcnt vmcnt(0)")
    a("s_add_u32 s26, s24, %s" % hx(KF))
    srd(a, 8, 14, "s26", 65536)
    a("s_add_u32 s26, s24, %s" % hx(VF))
    srd(a, 4, 14, "s26", 65536)
    a("s_mov_b32 s26, 0")
    a("v_mov_b32 v4, 0xff800000")
    a("s_mov_b32 s46, 64")
    a.label("KF_SL1")
    ldK(vm2, 0, False)
    a("s_waitcnt vmcnt(0)")
    QK(0, 0, 0)
    a("s_nop 15")
    for i in range(8): a("v_max3_f32 v4, v4, v%d, v%d" % (S[0] + 2 * i, S[0] + 2 * i + 1))
    a("s_sub_u32 s46, s46, 1"); a("s_cmp_lg_u32 s46, 0")
    a("s_cbranch_scc1 KF_SL1")
    a("v_mov_b32 v5, v4")
    a("s_nop 1")
    a("v_permlane32_swap_b32 v4, v5")
    a("s_nop 1")
    a("v_max_f32 v4, v4, v5")
    for i in range(16): a("v_sub_f32 v%d, 0, v4" % (CB + i))
    for i in range(16): a("v_mov_b32 v%d, 0" % (O + i))
    a("s_mov_b32 s26, 0")
    a("s_mov_b32 s27, 0")
    a("s_mov_b32 s46, 65")
    a.label("KF_SL2")
    ldK(vm2, 0, False); ldV(vm2, 0, False)
    a("s_waitcnt vmcnt(0)")
    a("v_mfma_f32_32x32x16_bf16 %s, %s, %s, %s" % (vr(S[0], 16), vr(K[0], 4), vr(Q, 4), vr(CB, 16)))
    a("s_nop 15")
    for i in range(16): a("v_exp_f32 v%d, v%d" % (S[0] + i, S[0] + i))
    a("s_nop 1")
    PV(0, 0, 0, 0); PV(0, 0, 0, 1)
    a("s_sub_u32 s46, s46, 1"); a("s_cmp_lg_u32 s46, 1")
    a("s_cbranch_scc1 KF_SL2")
    a("s_nop 15")
    a("s_branch KF_CHK")
    a("s_endpgm")
    return NAME, 256, "grid=(256,1,1) block=(512,1,1) lds=%d" % (ANS * ASLOT)

def parse(argv):
    global KVROT, OSC, LADDER, HPUB
    if "stamp" in argv: gen1.STAMP = True
    gen3.GST = [32]
    for x in argv:
        if x.startswith("rot="): gen3.ROT = int(x[4:])
        if x.startswith("smap="): gen1.SMAP = [int(y) if y.isdigit() else y for y in x[5:].split(",")]
        if x == "nokvrot": KVROT = False
        if x == "noladder": LADDER = False
        if x.startswith("xp="): XP.extend(x[3:].split(","))
        if x.startswith("hpub="): HPUB = int(x[5:])
        if x.startswith("osc="): OSC = " " + x[4:]
if __name__ == "__main__":
    parse(sys.argv)
    build1(sys.argv[1], kf, aslist=("list" in sys.argv))
```

```python
import sys
sys.path.insert(0, "gen")
import gen1, gen3
from gen1 import *
from asmlib import *
from gen3 import ab_prologue, phase_ab, SC, ANS, ASLOT
from gen5 import build1

RING = 65536; SCR = 98304
KVROT = True
OSC = ""
LADDER = True
XP = []
HPUB = 1
NAME = "gated_mix__softmax_full_mha__swiglu_ffn__prompt_kernel"

def kf(a):
    header(a, NAME)
    Q = 128; K = [144, 148]; V = [152, 160]; S = [32, 48]; O = 64
    WF = 168; DA = 184; HB_ = 216
    vV, vIX, vP, vPO, vLD = 18, 19, 20, 21, 22
    vWA, vWB, vT0, vT1, vZ = 24, 25, 26, 27, 28
    vW0 = 23
    ab_prologue(a, "KF_END")
    def spin(lab, expect, vm, leader_only=False):
        vm.wait("poll")
        a("v_cmp_le_u32 vcc, %d, v%d" % (expect, vP))
        a("s_mov_b32 s38, 0x8000")
        if leader_only:
            a("s_cmp_lg_u32 s3, 0")
            a("s_cbranch_scc1 %s_OK" % lab)
        a("s_cmp_eq_u64 vcc, -1")
        a("s_cbranch_scc1 %s_OK" % lab)
        a.label(lab)
        a("s_sleep 4")
        a("buffer_load_dword v%d, v%d, s[84:87], 0 offen sc1" % (vP, vPO))
        a("s_sub_u32 s38, s38, 1")
        a("s_waitcnt vmcnt(0)")
        a("v_cmp_le_u32 vcc, %d, v%d" % (expect, vP))
        a("s_cselect_b32 s39, 1, 0")
        a("s_cmp_eq_u64 vcc, -1")
        a("s_cselect_b32 s39, 1, s39")
        a("s_cmp_eq_u32 s39, 0")
        a("s_cbranch_scc1 %s" % lab)
        a.label(lab + "_OK")
    def poll(vm): vm.issue("buffer_load_dword v%d, v%d, s[84:87], 0 offen sc1" % (vP, vPO), "poll")
    def publish(vm, soff):
        a("v_mov_b32 v%d, 1" % vP)
        a("s_mov_b64 exec, 1")
        vm.issue("buffer_atomic_add v%d, v%d, s[84:87], %s offen sc1" % (vP, vLD, soff), "atom")
        a("s_mov_b64 exec, -1")
    def ldK(vm, b, wrap=True):
        vm.issue("buffer_load_dwordx4 %s, v1, s[8:11], s26 offen%s" % (vr(K[b], 4), SC), ("K", b))
        a("s_add_u32 s26, s26, 1024")
        if wrap: a("s_and_b32 s26, s26, 0x3fff")
    def ldV(vm, b, wrap=True):
        a("s_mov_b64 exec, s[30:31]")
        vm.issue("buffer_load_dwordx4 %s, v%d, s[4:7], s27 offen%s" % (vr(V[b], 4), vV, SC), ("V", b))
        vm.issue("buffer_load_dwordx4 %s, v%d, s[4:7], s27 offen offset:512%s" % (vr(V[b] + 4, 4), vV, SC), ("V", b))
        a("s_mov_b64 exec, -1")
        a("s_add_u32 s27, s27, 1024")
        if wrap: a("s_and_b32 s27, s27, 0x3fff")
    def cap(fn):
        save = a.lines; a.lines = []
        fn(); L = a.lines; a.lines = save
        return [("s", l.strip(), None) for l in L]
    def early(vm):
        a("s_and_b32 s89, s2, 7")
        a("s_lshl_b32 s89, s89, 2")
        a("s_bfe_u32 s38, s2, 0x20003")
        a("s_add_u32 s89, s89, s38")
        a("s_lshr_b32 s88, s2, 5")
        a("s_lshl_b32 s39, s88, 3")
        a("s_add_u32 s38, s3, s39")
        a("s_lshl_b32 s38, s38, 5")
        a("s_add_u32 s38, s38, s89")
        a("s_lshl_b32 s61, s38, 10")
        srd(a, 84, 14, OF, 2 * MB)
        for i in range(4): a("v_mov_b32 v%d, -1" % (O + i))
        vm.issue("buffer_store_dwordx4 %s, v1, s[84:87], s61 offen%s" % (vr(O, 4), SC), "sent")
    def setup1():
        srd(a, 84, 100, 0, 256)
        a("s_cmp_eq_u32 s3, 0")
        a("s_cselect_b32 s38, 0, 0x1000")
        a("v_mov_b32 v%d, s38" % vLD)
        a("v_and_b32 v%d, 15, v0" % vPO)
        a("v_lshlrev_b32 v%d, 4, v%d" % (vPO, vPO))
    def setup2():
        a("s_lshr_b32 s22, s3, 2")
        a("s_and_b32 s23, s3, 3")
        a("v_and_b32 v%d, 15, v0" % vV)
        a("v_lshlrev_b32 v%d, 4, v%d" % (vV, vV))
        a("v_lshrrev_b32 v%d, 5, v0" % vIX)
        a("v_lshl_add_u32 v%d, v%d, 8, v%d" % (vV, vIX, vV))
        a("s_lshl_b32 s24, s89, 16")
        a("s_lshl_b32 s25, s88, 3")
        a("s_lshl_b32 s26, s22, 2")
        a("s_add_u32 s25, s25, s26")
        a("s_lshl_b32 s27, s23, 14")
        a("s_add_u32 s27, s27, s24")
        a("s_add_u32 s26, s27, %s" % hx(KF))
        srd(a, 8, 14, "s26", 16384)
        a("s_add_u32 s26, s27, %s" % hx(VF))
        srd(a, 4, 14, "s26", 16384)
        a("s_lshl_b32 s26, s88, 11")
        if not KVROT: a("s_mov_b32 s26, 0")
        a("s_mov_b32 s27, s26")
        srd(a, 92, 14, "s24", 65536)
        a("v_and_b32 v%d, 31, v0" % vIX)
        a("v_cmp_eq_u32 vcc, 16, v%d" % vIX)
        a("v_mov_b32 v%d, 0x3f803f80" % vIX)
        a("s_mov_b32 s30, 0x0000ffff"); a("s_mov_b32 s31, 0x0000ffff")
        a("v_cndmask_b32 v%d, 0, v%d, vcc" % (V[0], vIX))
        for i in range(1, 16): a("v_mov_b32 v%d, v%d" % (V[0] + i, V[0]))
        a("v_mov_b32 v%d, 0xdddddddd" % vIX)
        for i in range(4): a("v_mov_b32 v%d, 0" % (vZ + i))
    def setup3():
        a("v_bfe_u32 v2, v0, 4, 1")
        a("v_lshlrev_b32 v5, 2, v2")
        a("v_and_b32 v6, 7, v0")
        a("v_xor_b32 v5, v5, v6")
        a("v_lshlrev_b32 v5, 4, v5")
        a("v_lshrrev_b32 v6, 3, v0")
        a("v_lshl_add_u32 v%d, v6, 10, v5" % vW0)
        a("s_lshl_b32 s38, s22, 13")
        a("v_add_u32 v%d, s38, v%d" % (vWA, vW0))
        a("v_add_u32 v%d, %d, v%d" % (vWB, 16384 - 2048, vWA))
        a("v_lshrrev_b32 v5, 5, v0")
        a("v_bfe_u32 v6, v0, 2, 2")
        a("v_lshl_add_u32 v5, v5, 2, v6")
        a("v_bfe_u32 v6, v0, 1, 1")
        a("v_lshl_add_u32 v6, v2, 1, v6")
        a("v_bfe_u32 v3, v0, 3, 1")
        a("v_lshl_add_u32 v6, v3, 2, v6")
        a("v_lshlrev_b32 v6, 4, v6")
        a("v_and_b32 v3, 1, v0")
        a("v_lshl_add_u32 v6, v3, 3, v6")
        a("v_lshl_add_u32 v6, v5, 7, v6")
        a("s_lshl_b32 s16, s23, 12")
        a("s_add_u32 s16, s16, %d" % RING)
        a("v_add_u32 v%d, s16, v6" % vT0)
        a("v_xor_b32 v%d, 64, v%d" % (vT1, vT0))
        a("s_lshl_b32 s38, s22, 10")
        a("s_add_u32 s17, s16, s38")
        a("s_lshl_b32 s20, s88, 1")
        a("s_and_b32 s21, s89, 3")
        a("s_mul_i32 s21, s21, 3")
        a("s_add_u32 s20, s20, s21")
        a("s_cmp_ge_u32 s20, 14")
        a("s_cselect_b32 s21, 14, 0")
        a("s_sub_u32 s20, s20, s21")
        a("s_lshl_b32 s20, s20, 11")
        a("s_lshl_b32 s21, s20, 4")
    chunks = {}
    def hook(kind, vm, where):
        if where == "early": early(vm)
        elif where == "pub":
            a("s_lshl_b32 s38, s19, 4")
            publish(vm, "s38")
        elif where == "poll": poll(vm)
        elif isinstance(where, int):
            g = where
            if g == 40: chunks["L"] = cap(setup1)
            if g == 44: chunks["L"] = cap(setup2) + cap(setup3)
            if 40 <= g < 43 or 44 <= g < 58:
                n = 4 if g < 43 else 8
                while n < len(chunks["L"]) and chunks["L"][n][1].startswith(("s_cselect", "s_addc")): n += 1
                L = chunks["L"][:n]; chunks["L"] = chunks["L"][n:]
                if g in (42, 57): assert not chunks["L"], len(chunks["L"])
                return L
            if g == 61:
                def ld():
                    spin("KF_SQ_" + kind, 16, vm)
                    gen1.stamp(a, "sq1")
                    for s in range(4):
                        a("s_add_u32 s28, s23, %d" % s)
                        a("s_and_b32 s28, s28, 3")
                        a("s_add_u32 s28, s28, s25")
                        a("s_lshl_b32 s28, s28, 10")
                        vm.issue("buffer_load_dwordx4 %s, v1, s[92:95], s28 offen%s" % (vr(Q + 4 * s, 4), SC), "Q")
                        if s == 0: ldK(vm, 0)
                    ldV(vm, 0); ldK(vm, 1); ldV(vm, 1)
                return [("f", ld, None)]
        elif where == "pre_h":
            a("s_setprio 3")
    ENTRY = ["Q", ("K", 0), "Q", "Q", "Q", ("V", 0), ("V", 0), ("K", 1), ("V", 1), ("V", 1), "h", "h", "h", "h"]
    def tail(kind, vm):
        if kind != "P":
            a("v_mov_b32 v4, 0x1000")
            vm.issue("buffer_store_dword v4, v4, s[84:87], 0 offen", "h")
        assert vm.ops[-14:] == ENTRY, vm.ops
        if kind != "P": a("s_branch KF_C")
    a("s_load_dwordx2 s[100:101], s[0:1], 72")
    gen3.HOOKG = True
    phase_ab(a, tail, hook)
    a.label("KF_C")
    gen1.stamp(a, 5)
    vm = VM(a); vm.ops = list(ENTRY)
    lg = VM(a, "lgkmcnt", 15)
    a("s_load_dwordx2 s[12:13], s[0:1], 48")
    a("s_load_dwordx2 s[56:57], s[0:1], 16")
    a("s_load_dwordx2 s[58:59], s[0:1], 64")
    def QK(sl, kb, sb): a("v_mfma_f32_32x32x16_bf16 %s, %s, %s, 0" % (vr(S[sb], 16), vr(K[kb], 4), vr(Q + 4 * sl, 4)))
    def PV(sl, vb, sb, j): a("v_smfmac_f32_32x32x32_bf16 %s, %s, %s, v%d" % (vr(O + 16 * sl, 16), vr(V[vb] + 4 * j, 4), vr(S[sb] + 8 * j, 8), vIX))
    def ZERO(r): a("v_mfma_f32_32x32x16_bf16 %s, %s, %s, 0" % (vr(r, 16), vr(vZ, 4), vr(vZ, 4)))
    vm.wait(("K", 0))
    QK(0, 0, 0)
    for i in range(4): ZERO(O + 16 * i)
    a("s_lshr_b32 s38, s89, 1")
    a("s_lshl_b32 s38, s38, 4")
    a("s_add_u32 s38, s38, 4")
    a("v_add_u32 v%d, s38, v%d" % (vPO, vLD))
    a("s_lshl_b32 s44, s89, 1")
    a("s_add_u32 s44, s44, s22")
    a("s_mul_i32 s38, s44, 112")
    a("s_mul_i32 s39, s23, 28")
    a("s_add_u32 s38, s38, s39")
    a("s_lshl_b32 s38, s38, 10")
    a("s_add_u32 s38, s38, %s" % hx(HF))
    srd(a, 32, 14, "s38", 28 * 1024)
    a("s_lshl_b32 s38, s39, 14")
    a("s_lshl_b32 s45, s88, 7")
    a("s_add_u32 s38, s38, s45")
    a("s_sub_u32 s39, %d, s38" % (1792 * 1024))
    a("s_waitcnt lgkmcnt(0)")
    srd(a, 48, 12, "s38", "s39")
    srd(a, 40, 56, 0, 512 * 1024)
    FLG = 161792
    vF, vFA, vFB, vFR = 232, 233, 234, 235
    vRW = 236
    def ldH(b, k):
        vm.issue("buffer_load_dwordx4 %s, v1, s[32:35], s20 offen offset:%d%s" % (vr(HB_ + 8 * b + 4 * k, 4), 1024 * k, SC), ("H", b, k))
    def ldW(b, k):
        if k == 0:
            a("s_add_u32 m0, s17, %d" % (b * 16384))
            a("s_lshl_b32 s21, s36, 4")
        vm.issue("buffer_load_dwordx4 v%d, s[48:51], s21 offen offset:%d lds" % (vWA + k, 2048 * k), ("W", b))
        if k == 1: adv("s36")
    def adv(r0):
        a("s_add_u32 %s, %s, 2048" % (r0, r0))
        a("s_cmp_eq_u32 %s, %d" % (r0, 14 * 2048))
        a("s_cselect_b32 %s, 0, %s" % (r0, r0))
    def rdW(b, k):
        for ft in range(2):
            for q in range(2):
                lg.issue("ds_read_b64_tr_b16 %s, v%d offset:%d" % (vr(WF + 8 * k + 4 * ft + 2 * q, 2), vT0 + ft, b * 16384 + k * 2048 + q * 1024), ("w", k, ft))
    def DM(b, n):
        k, ft = n // 2, n % 2
        lg.wait(("w", k, ft))
        vm.wait(("H", b, k))
        d = vr(DA + 16 * ft, 16)
        a("v_mfma_f32_32x32x16_bf16 %s, %s, %s, %s" % (d, vr(WF + 8 * k + 4 * ft, 4), vr(HB_ + 8 * b + 4 * k, 4), d))
    def signal(b):
        a("v_add_u32 v%d, 1, v%d" % (vF, vF))
        vm.wait(("W", b))
        lg.issue("ds_write_b32 v%d, v%d" % (vFA, vF), "fw")
    def peek(): lg.issue("ds_read_b32 v%d, v%d" % (vFR, vFB), "fr")
    def check(lab):
        lg.wait("fr")
        a("v_cmp_lt_u32 vcc, v%d, v%d" % (vFR, vF))
        a("s_mov_b32 s38, 0x40000")
        a("s_cbranch_vccnz %s" % lab)
        a.label(lab + "_OK")
        def slow():
            a.label(lab)
            a("s_setprio 0")
            a("s_sleep 1")
            a("ds_read_b32 v%d, v%d" % (vFR, vFB))
            a("s_sub_u32 s38, s38, 1")
            a("s_waitcnt lgkmcnt(0)")
            a("v_cmp_lt_u32 vcc, v%d, v%d" % (vFR, vF))
            a("s_cbranch_scc1 %s_GO" % lab)
            a("s_cbranch_vccnz %s" % lab)
            a.label(lab + "_GO")
            a("s_setprio 3")
            a("s_branch %s_OK" % lab)
        outl[lab] = slow
    outl = {}
    def keytile(b, first=False, down=False, loop=None, top=None, extra=None, pre=False, lab=None):
        if top:
            top("pre"); a("s_barrier"); top("post")
        for sl in range(4):
            sb = sl % 2
            def E(i): a("v_exp_f32 v%d, v%d" % (S[sb] + i, S[sb] + i))
            if LADDER: a("s_setprio %d" % (3 - sl))
            elif first and sl == 0: a("s_setprio 0")
            if down and sl == 0:
                check(lab); rdW(b, 0)
            E(0); E(1)
            if sl == 0:
                if not first:
                    PV(3, 1 - b, 1, 1)
                    ldV(vm, 1 - b)
            else: PV(sl - 1, b, 1 - sb, 1)
            if down and sl == 1: rdW(b, 1)
            E(2); E(3); E(4)
            if sl == 3:
                vm.wait(("K", 1 - b))
                QK(0, 1 - b, 0)
            else:
                if first: vm.wait("Q")
                QK(sl + 1, b, 1 - sb)
                if sl == 2: ldK(vm, b)
            if (down or pre) and sl < 2: ldW(b, sl)
            if (down or pre == 2) and sl == 2: signal(1 - b)
            if (down or pre == 2) and sl == 3: peek()
            for i in range(5, 10): E(i)
            if sl == 0: vm.wait(("V", b))
            PV(sl, b, sb, 0)
            for i in range(10, 13): E(i)
            if extra: extra(sl)
            if down:
                DM(b, sl)
                if sl % 2 == 1: ldH(b, sl // 2)
                if sl == 3:
                    adv("s20")
                    if b == 1:
                        a("v_xor_b32 v%d, 0x8000, v%d" % (vT0, vT0))
                        a("v_xor_b32 v%d, 0x8000, v%d" % (vT1, vT1))
                        a("s_xor_b32 s17, s17, 0x8000")
            if loop and sl == 3:
                a("s_sub_u32 s46, s46, 1"); a("s_cmp_lg_u32 s46, 0")
            for i in range(13, 16): E(i)
    def pubH(when):
        if when == "pre":
            vm.wait("h"); lg.wait("fw")
        else:
            a("s_lshl_b32 s38, s18, 4")
            a("s_add_u32 s38, s38, 4")
            publish(vm, "s38")
    def wo_stage(i):
        a("s_add_u32 m0, s60, %d" % (i * 2048))
        a("s_add_u32 s38, s47, %d" % (i * 16384))
        vm.issue("buffer_load_dwordx4 v%d, s[40:43], s38 offen lds" % vW0, "wo")
        a("s_add_u32 s38, s38, %d" % (8192 - 1024))
        vm.issue("buffer_load_dwordx4 v%d, s[40:43], s38 offen offset:1024 lds" % vW0, "wo")
    a("s_lshl_b32 s60, s3, 13")
    a("s_lshl_b32 s47, s3, 16")
    a("s_add_u32 s47, s47, s45")
    a("s_mov_b32 s36, s20")
    def ex0(sl):
        if sl < 2: ZERO(DA + 16 * sl)
        if sl == 2:
            a("s_lshl_b32 s38, s3, 8")
            a("s_add_u32 s38, s38, %d" % FLG)
            a("v_lshl_add_u32 v%d, v0, 2, s38" % vFA)
            a("v_xor_b32 v%d, 1024, v%d" % (vFB, vFA))
            a("v_mov_b32 v%d, 0" % vF)
            lg.issue("ds_write_b32 v%d, v%d" % (vFA, vF), "fw")
    keytile(0, first=True, extra=ex0)
    gen1.stamp(a, "k0")
    def bar_only(when):
        if when == "pre": lg.wait("fw")
    keytile(1, top=pubH if HPUB == 1 else bar_only, extra=wo_stage)
    gen1.stamp(a, "k1")
    def ex2(sl):
        if sl == 2: poll(vm)
        if sl < 3:
            s = sl + 1
            a("s_add_u32 s28, s23, %d" % s)
            a("s_and_b32 s28, s28, 3")
            a("s_lshl_b32 s38, s22, 2")
            a("s_add_u32 s28, s28, s38")
            a("s_mul_i32 s28, s28, 3")
            a("s_add_u32 s28, s28, %d" % (s - 1))
            a("s_mul_i32 s28, s28, 2304")
            a("s_add_u32 s28, s28, %d" % SCR)
            a("v_add_u32 v%d, s28, v1" % (vRW + 2 * sl))
            a("v_lshl_add_u32 v%d, v0, 2, s28" % (vRW + 2 * sl + 1))
        else:
            a("s_mul_i32 s28, s3, %d" % (3 * 2304))
            a("s_add_u32 s28, s28, %d" % SCR)
            a("v_add_u32 v%d, s28, v1" % (vRW + 6))
            a("v_lshl_add_u32 v%d, v0, 2, s28" % (vRW + 7))
    keytile(0, top=pubH if HPUB == 2 else None, pre=1, extra=ex2)
    gen1.stamp(a, "k2")
    def top3(when):
        if when == "pre":
            spin("KF_SH", 16, vm, True)
            gen1.stamp(a, "sh1")
        else:
            ldH(0, 0); ldH(0, 1); adv("s20")
    def ex3(sl):
        if sl % 2 == 1: ldH(1, sl // 2)
        if sl == 0: srd(a, 52, 14, OF, 2 * MB)
        if sl == 3:
            adv("s20")
            a("s_xor_b32 s17, s17, 0x8000")
    keytile(1, top=top3, pre=2, extra=ex3)
    gen1.stamp(a, "k3")
    a("s_mov_b32 s46, 6")
    def it():
        keytile(0, down=True, lab="KF_P0"); keytile(1, down=True, loop=True, lab="KF_P1")
        a("s_cbranch_scc1 KF_LB")
    body = steady_loop(a, [vm, lg], it)
    a(".p2align 6")
    a.label("KF_LB")
    a.lines += body
    a("s_nop 1")
    PV(3, 1, 1, 1)
    if LADDER: a("s_setprio 3")
    gen1.stamp(a, 7)
    lg.wait("fr")
    a("s_barrier")
    a("s_nop 4")
    for s in range(1, 4):
        if s == 3: a("s_nop 1")
        a("ds_write_b128 v%d, %s" % (vRW + 2 * s - 2, vr(O + 16 * s, 4)))
        a("ds_write_b128 v%d, %s offset:1024" % (vRW + 2 * s - 2, vr(O + 16 * s + 4, 4)))
        a("ds_write_b32 v%d, v%d offset:2048" % (vRW + 2 * s - 1, O + 16 * s + 8))
    vm.wait(("W", 0), ("W", 1))
    a("s_waitcnt lgkmcnt(0)")
    a("s_barrier")
    gen1.stamp(a, "rb")
    for s in range(3):
        a("ds_read_b128 %s, v%d offset:%d" % (vr(O + 16 * (s + 1), 4), vRW + 6, s * 2304))
        a("ds_read_b128 %s, v%d offset:%d" % (vr(O + 16 * (s + 1) + 4, 4), vRW + 6, s * 2304 + 1024))
        a("ds_read_b32 v%d, v%d offset:%d" % (O + 16 * (s + 1) + 8, vRW + 7, s * 2304 + 2048))
    for s in range(3):
        a("s_waitcnt lgkmcnt(%d)" % (6 - 3 * s))
        for i in (8, 0, 1, 2, 3, 4, 5, 6, 7): a("v_add_f32 v%d, v%d, v%d" % (O + i, O + i, O + 16 * (s + 1) + i))
    a.label("KF_CHK")
    a("v_mov_b32 v4, v%d" % (O + 8))
    a("s_nop 1")
    a("v_permlane32_swap_b32 v%d, v4" % (O + 8))
    a("s_cmp_eq_u32 s46, 1")
    a("s_cbranch_scc1 KF_NORM")
    a("s_mov_b32 s38, %s" % hx(f2u(2.0 ** -60)))
    a("v_mov_b32 v5, %s" % hx(f2u(2.0 ** 40)))
    a("v_mul_f32 v4, 0, v%d" % O)
    for i in range(1, 8): a("v_fmac_f32 v4, 0, v%d" % (O + i))
    a("v_med3_f32 v5, v%d, s38, v5" % (O + 8))
    a("v_add_f32 v5, v5, v4")
    a("v_cmp_eq_f32 vcc, v5, v%d" % (O + 8))
    a("s_nop 1")
    a("s_cmp_eq_u64 vcc, -1")
    a("s_cbranch_scc0 KF_SLOW")
    a.label("KF_NORM")
    a("v_rcp_f32 v4, v%d" % (O + 8))
    a("s_nop 0")
    for i in range(8): a("v_mul_f32 v%d, v%d, v4" % (O + i, O + i))
    for i in range(4): a("v_cvt_pk_bf16_f32 v%d, v%d, v%d" % (S[0] + i, O + 2 * i, O + 2 * i + 1))
    for i in range(4): a("v_min_u32 v%d, -2, v%d" % (S[0] + i, S[0] + i))
    vm.issue("buffer_store_dwordx4 %s, v1, s[52:55], s61 offen%s" % (vr(S[0], 4), SC), "o")
    gen1.stamp(a, "ost")
    WO = 64; OFR = 128; vG = 2; YA = 32
    a("s_lshl_b32 s60, s44, 15")
    a("s_lshl_b32 s39, s23, 13")
    a("s_add_u32 s60, s60, s39")
    a("s_add_u32 s47, s60, 4096")
    def ldO(i): return "buffer_load_dwordx4 %s, v1, s[52:55], %s offen offset:%d%s" % (vr(OFR + 4 * i, 4), "s60" if i < 4 else "s47", (i % 4) * 1024, SC)
    rdW(0, 0); rdW(0, 1)
    srd(a, 8, 14, GG, 16384)
    a("s_lshl_b32 s39, s44, 8")
    a("v_and_b32 v4, 31, v0")
    a("v_lshlrev_b32 v5, 3, v4")
    vm.issue("buffer_load_dwordx2 %s, v5, s[8:11], s39 offen%s" % (vr(vG, 2), SC), "g")
    a("v_and_b32 v7, 0xfff, v%d" % vT0)
    a("s_lshl_b32 s39, s23, 14")
    a("v_add_u32 v7, s39, v7")
    a("v_xor_b32 v8, 64, v7")
    def rdWo(i):
        for ft in range(2):
            for q in range(2):
                lg.issue("ds_read_b64_tr_b16 %s, v%d offset:%d" % (vr(WO + 8 * i + 4 * ft + 2 * q, 2), 7 + ft, i * 2048 + q * 1024), ("wof", i))
    DM(0, 0); DM(0, 1); rdW(1, 0)
    DM(0, 2); DM(0, 3); rdW(1, 1)
    rdWo(0)
    DM(1, 0); DM(1, 1)
    rdWo(1); rdWo(2)
    DM(1, 2); DM(1, 3)
    for i in range(8): vm.issue(ldO(i), ("of", i))
    for i in range(3, 8):
        lg.wait(("wof", i - 3)); rdWo(i)
    a("v_lshlrev_b32 v6, 10, v4")
    a("v_lshrrev_b32 v9, 5, v0")
    a("v_lshl_add_u32 v6, v9, 4, v6")
    a("s_lshl_b32 s61, s44, 15")
    a("s_add_u32 s61, s61, s45")
    a("s_lshl_b32 s39, s23, 5")
    a("s_add_u32 s61, s61, s39")
    srd(a, 4, 58, 0, 2 * MB)
    a("s_mul_i32 s38, s22, %d" % (4 * 6912))
    a("s_add_u32 s38, s38, %d" % SCR)
    a("v_add_u32 v10, s38, v1")
    vm.wait("g")
    for i in range(32): a("v_mul_f32 v%d, v%d, v%d" % (DA + i, DA + i, vG + 1))
    lg.wait(("wof", 7))
    gen1.stamp(a, "so0")
    a("s_mov_b32 s38, 0x8000")
    for i in range(8):
        vm.wait(("of", i))
        r = OFR + 4 * i
        lab = "KF_O%d" % i
        a.label(lab)
        a("v_max3_u32 v11, v%d, v%d, v%d" % (r, r + 1, r + 2))
        a("v_max_u32 v11, v11, v%d" % (r + 3))
        a("v_cmp_eq_u32 vcc, -1, v11")
        a("s_nop 0")
        a("s_cbranch_vccnz %s_RE" % lab)
        a.label(lab + "_OK")
        def slow(i=i, lab=lab):
            a.label(lab + "_RE")
            a("s_sub_u32 s38, s38, 1")
            a("s_cbranch_scc1 %s_GU" % lab)
            a("s_sleep 1")
            for j in range(i, 8): a(ldO(j))
            a("s_waitcnt vmcnt(0)")
            a("s_branch %s" % lab)
            a.label(lab + "_GU")
            a("s_mov_b32 s38, 0")
            a("s_branch %s_OK" % lab)
        outl[lab] = slow
        for ft in range(2):
            d = vr(YA + 16 * ft, 16)
            a("v_mfma_f32_32x32x16_bf16 %s, %s, %s, %s" % (d, vr(WO + 8 * i + 4 * ft, 4), vr(r, 4), "0" if i == 0 else d))
    gen1.stamp(a, "so1")
    a("s_cmp_ge_u32 s23, 2")
    a("s_nop 10")
    for i in range(32): a("v_fmac_f32 v%d, v%d, v%d" % (DA + i, YA + i, vG))
    a("s_cbranch_scc1 KF_X2")
    a("s_cmp_eq_u32 s23, 1")
    a("s_cbranch_scc1 KF_X1")
    def fin(kq):
        idx = lambda src, dst: dst if dst < src else dst - 1
        for p in range(4):
            if p == kq: continue
            a("ds_write_b128 v%d, %s offset:%d" % (vRW + 6, vr(DA + 8 * p, 4), idx(kq, p) * 2048))
            a("ds_write_b128 v%d, %s offset:%d" % (vRW + 6, vr(DA + 8 * p + 4, 4), idx(kq, p) * 2048 + 1024))
        a("s_waitcnt lgkmcnt(0)")
        a("s_barrier")
        srcs = [s for s in range(4) if s != kq]
        for n, s in enumerate(srcs):
            a("ds_read_b128 %s, v10 offset:%d" % (vr(YA + 8 * n, 4), s * 6912 + idx(s, kq) * 2048))
            a("ds_read_b128 %s, v10 offset:%d" % (vr(YA + 8 * n + 4, 4), s * 6912 + idx(s, kq) * 2048 + 1024))
        a("s_waitcnt lgkmcnt(4)")
        for i in range(8): a("v_add_f32 v%d, v%d, v%d" % (YA + i, YA + i, DA + 8 * kq + i))
        a("s_waitcnt lgkmcnt(0)")
        for i in range(8): a("v_add_f32 v%d, v%d, v%d" % (YA + 8 + i, YA + 8 + i, YA + 16 + i))
        for i in range(8): a("v_add_f32 v%d, v%d, v%d" % (YA + i, YA + i, YA + 8 + i))
        for i in range(4): a("v_cvt_pk_bf16_f32 v%d, v%d, v%d" % (YA + 24 + i, YA + 2 * i, YA + 2 * i + 1))
        a("s_nop 1")
        a("v_permlane32_swap_b32 v%d, v%d" % (YA + 24, YA + 26))
        a("v_permlane32_swap_b32 v%d, v%d" % (YA + 25, YA + 27))
        a("buffer_store_dwordx4 %s, v6, s[4:7], s61 offen%s" % (vr(YA + 24, 4), OSC))
        gen1.stamp(a, "fin")
        gen1.stamp_end(a, 0, 14, 5)
        a("s_endpgm")
    fin(0)
    a.label("KF_X1"); fin(1)
    a.label("KF_X2")
    a("s_cmp_eq_u32 s23, 3")
    a("s_cbranch_scc1 KF_X3")
    fin(2)
    a.label("KF_X3"); fin(3)
    a.label("KF_END")
    a("s_endpgm")
    for f in outl.values(): f()
    a("s_endpgm")
    a.label("KF_SLOW")
    vm2 = VM(a)
    CB = O + 16
    a("s_waitcnt vmcnt(0)")
    a("s_add_u32 s26, s24, %s" % hx(KF))
    srd(a, 8, 14, "s26", 65536)
    a("s_add_u32 s26, s24, %s" % hx(VF))
    srd(a, 4, 14, "s26", 65536)
    a("s_mov_b32 s26, 0")
    a("v_mov_b32 v4, 0xff800000")
    a("s_mov_b32 s46, 64")
    a.label("KF_SL1")
    ldK(vm2, 0, False)
    a("s_waitcnt vmcnt(0)")
    QK(0, 0, 0)
    a("s_nop 15")
    for i in range(8): a("v_max3_f32 v4, v4, v%d, v%d" % (S[0] + 2 * i, S[0] + 2 * i + 1))
    a("s_sub_u32 s46, s46, 1"); a("s_cmp_lg_u32 s46, 0")
    a("s_cbranch_scc1 KF_SL1")
    a("v_mov_b32 v5, v4")
    a("s_nop 1")
    a("v_permlane32_swap_b32 v4, v5")
    a("s_nop 1")
    a("v_max_f32 v4, v4, v5")
    for i in range(16): a("v_sub_f32 v%d, 0, v4" % (CB + i))
    for i in range(16): a("v_mov_b32 v%d, 0" % (O + i))
    a("s_mov_b32 s26, 0")
    a("s_mov_b32 s27, 0")
    a("s_mov_b32 s46, 65")
    a.label("KF_SL2")
    ldK(vm2, 0, False); ldV(vm2, 0, False)
    a("s_waitcnt vmcnt(0)")
    a("v_mfma_f32_32x32x16_bf16 %s, %s, %s, %s" % (vr(S[0], 16), vr(K[0], 4), vr(Q, 4), vr(CB, 16)))
    a("s_nop 15")
    for i in range(16): a("v_exp_f32 v%d, v%d" % (S[0] + i, S[0] + i))
    a("s_nop 1")
    PV(0, 0, 0, 0); PV(0, 0, 0, 1)
    a("s_sub_u32 s46, s46, 1"); a("s_cmp_lg_u32 s46, 1")
    a("s_cbranch_scc1 KF_SL2")
    a("s_nop 15")
    a("s_branch KF_CHK")
    a("s_endpgm")
    return NAME, 256, "grid=(256,1,1) block=(512,1,1) lds=%d" % (ANS * ASLOT)

def parse(argv):
    global KVROT, OSC, LADDER, HPUB
    if "stamp" in argv: gen1.STAMP = True
    if "rt" in argv: gen1.RT = True
    gen3.GST = [32]
    for x in argv:
        if x.startswith("rot="): gen3.ROT = int(x[4:])
        if x.startswith("gst="): gen3.GST = [int(y) for y in x[4:].split(",")]
        if x.startswith("smap="): gen1.SMAP = [int(y) if y.isdigit() else y for y in x[5:].split(",")]
        if x == "nokvrot": KVROT = False
        if x == "noladder": LADDER = False
        if x.startswith("xp="): XP.extend(x[3:].split(","))
        if x.startswith("hpub="): HPUB = int(x[5:])
        if x.startswith("osc="): OSC = " " + x[4:]
if __name__ == "__main__":
    parse(sys.argv)
    build1(sys.argv[1], kf, aslist=("list" in sys.argv))
```

```python
import sys
sys.path.insert(0, "gen")
import gen1
from gen1 import *
from asmlib import *
from gen2 import gate_code
SC = " sc1"
SLOT = 32768
GCG = 5
EPR = 7
PUBS = {"P": 12, "R0": 12, "R1": 12}
ROT = 8
STG = 3
XP = []
PK = False
CH = 3
D2 = 3
POLLG = 88; LDG = 93; WARMG = 68
EARLY = {"P": 34, "R0": 34, "R1": 34}
EPRR = 7

def phase_ab(a, tail, hook):
    X = 128; WF = 32; E = 128
    SET = [64, 80, 96, 112]
    vAX, vT, vST, vAW1, vA2, vAM, vD, vDM = 2, 3, 4, 5, 7, 9, 11, 16
    a("v_lshrrev_b32 v20, 4, v0")
    a("v_and_b32 v21, 7, v0")
    a("v_xor_b32 v22, v21, v20")
    a("v_lshlrev_b32 v22, 4, v22")
    a("v_lshrrev_b32 v23, 3, v0")
    a("v_lshl_add_u32 v22, v23, 10, v22")
    a("s_lshl_b32 s58, s3, 14")
    a("v_add_u32 v%d, s58, v22" % vD)
    a("v_xor_b32 v%d, 64, v%d" % (vD + 1, vD))
    a("v_add_u32 v%d, %d, v%d" % (vD + 1, 7168, vD + 1))
    a("v_and_b32 v22, 1, v20")
    a("v_lshlrev_b32 v22, 2, v22")
    a("v_xor_b32 v22, v22, v21")
    a("v_lshlrev_b32 v22, 4, v22")
    a("s_lshl_b32 s58, s3, 3")
    a("v_add_u32 v23, s58, v23")
    a("v_mul_u32_u24 v24, 3072, v23")
    a("v_add_u32 v%d, v24, v22" % (vD + 2))
    a("s_lshl_b32 s56, s3, 11")
    a("s_lshl_b32 s57, s3, 10")
    a("s_lshl_b32 s44, s18, 17")
    a("s_lshl_b32 s45, s19, 7")
    a("s_sub_u32 s46, %d, s45" % (512 * 3072))
    a("s_lshl_b32 s50, s55, 1")
    a("s_add_u32 s50, s50, s18")
    if ROT != 8:
        a("s_add_u32 s50, s55, s18")
        a("s_and_b32 s50, s50, %d" % (ROT - 1))
        a("s_mul_i32 s50, s50, %d" % (8 // ROT))
    a("s_lshl_b32 s51, s54, 8")
    a("s_sub_u32 s51, 1920, s51")
    a("s_add_u32 s28, s55, 1")
    a("s_waitcnt lgkmcnt(0)")
    gen1.stamp(a, 1)
    srd(a, 20, 4, "s44", 128 * 1024)
    srd(a, 24, 6, "s45", "s46")
    a("s_bitcmp1_b32 s28, 1")
    a("s_cbranch_scc0 AB_P")
    a("s_cmp_eq_u32 s37, 0")
    a("s_cbranch_scc0 AB_R1")

    def stream(kind):
        P = kind == "P"
        vm = VM(a); lg = VM(a, "lgkmcnt", 15)
        def base(s): return (s % 5) * SLOT
        def dma(s):
            b = base(s); tag = ("d", s)
            G = []
            def grp(m0, off, txt, pre=None):
                G.append([("s", "s_add_u32 m0, %s, %s" % (m0, hx(off)))] + (pre or [("s", "s_nop 0")]) + [("v", txt)])
            ld = "buffer_load_dwordx4 v%d, s[%d:%d], %s offen offset:%d lds"
            if s < 8:
                pre = [("s", "s_add_u32 s48, s50, %d" % s), ("s", "s_and_b32 s48, s48, 7"),
                       ("s", "s_mul_i32 s49, s48, %d" % (64 * 3072)), ("s", "s_lshl_b32 s48, s48, 7")]
                grp("s56", b, ld % (vD, 20, 23, "s48", 0), pre)
                G.append([("v", ld % (vD + 1, 20, 23, "s48", 1024))])
                grp("s57", b + 16384, ld % (vD + 2, 24, 27, "s49", 0))
                if not P: grp("s57", b + 24576, ld % (vD + 2, 24, 27, "s49", 0), [("s", "s_add_u32 s49, s49, s51")])
            else:
                for c in range(2):
                    pos = (2 * (s - 8) + c) % 8
                    pre = [("s", "s_add_u32 s48, s50, %d" % pos), ("s", "s_and_b32 s48, s48, 7"),
                           ("s", "s_mul_i32 s49, s48, %d" % (64 * 3584)), ("s", "s_add_u32 s49, s49, s%d" % (52 if s < 12 else 97))]
                    if P or s < 12:
                        grp("s57", b + c * 16384, ld % (vD + 3, 40, 43, "s49", 0), pre)
                        grp("s57", b + c * 16384 + 8192, ld % (vD + 4, 44, 47, "s49", 0))
                    else:
                        u = 4 if kind == "R1" else 0
                        grp("s57", b + c * 8192, ld % (vDM, 40 + u, 43 + u, "s49", 0), pre)
            return [[(k, t, tag) for (k, t) in g] for g in G]
        def flat(G): return [x for g in G for x in g]
        def emit(it):
            k, t, tag = it
            if k == "v": vm.issue(t, tag)
            elif k == "l": lg.issue(t, tag)
            elif k == "f": t()
            else: a(t)
        gi0, gc0 = gate_code(a, vm, "s[28:31]", "s[20:23]", "s39", X + 112)
        for it in flat(dma(0)): emit(it)
        srd(a, 28, 12, 0, 1024)
        a("s_lshl_b32 s60, s19, 3")
        a("s_add_u32 s60, s60, s3")
        a("s_lshl_b32 s39, s60, 10")
        gi0()
        a("s_barrier")
        for it in flat(dma(1)): emit(it)
        hook(kind, vm, "init")
        a("s_lshl_b32 s58, s55, 3")
        a("s_lshr_b32 s38, 0x140e0800, s58")
        a("s_and_b32 s38, s38, 0xff")
        a("s_lshr_b32 s52, 0x00400000, s58")
        a("s_and_b32 s52, s52, 0xff")
        a("s_lshr_b32 s97, 0x80008080, s58")
        a("s_and_b32 s97, s97, 0xff")
        a("s_mul_i32 s58, s54, 28")
        a("s_add_u32 s58, s58, s38")
        a("s_lshl_b32 s38, s58, 5")
        a("s_sub_u32 s39, %d, s38" % (512 * 3584))
        srd(a, 40, 8, "s38", "s39")
        srd(a, 44, 10, "s38", "s39")
        a("v_mul_u32_u24 v24, 3584, v23")
        a("v_add_u32 v%d, v24, v22" % (vD + 3))
        a("v_xor_b32 v%d, 32, v%d" % (vD + 4, vD + 3))
        if not P:
            a("v_lshrrev_b32 v23, 2, v0")
            a("s_lshl_b32 s38, s36, 4")
            a("v_add_u32 v23, s38, v23")
            a("v_mul_u32_u24 v23, 3584, v23")
            a("v_and_b32 v24, 3, v0")
            if kind == "R1": a("v_xor_b32 v24, 2, v24")
            a("v_lshl_add_u32 v%d, v24, 4, v23" % vDM)
        a("v_and_b32 v24, 31, v0")
        a("v_lshrrev_b32 v25, 5, v0")
        a("v_bfe_u32 v26, v0, 1, 3")
        a("v_xor_b32 v26, v25, v26")
        a("v_lshlrev_b32 v26, 4, v26")
        a("v_lshl_add_u32 v26, v24, 7, v26")
        a("s_lshl_b32 s38, s36, 12")
        a("v_add_u32 v%d, s38, v26" % vAX)
        a("v_bfe_u32 v21, v0, 2, 2")
        a("v_lshl_add_u32 v26, v25, 3, v21")
        a("v_bfe_u32 v27, v0, 4, 1")
        a("v_and_b32 v28, 3, v0")
        a("v_lshlrev_b32 v28, 3, v28")
        a("v_bfe_u32 v30, v0, 3, 1")
        a("v_lshl_add_u32 v22, v26, 7, v28")
        a("v_lshl_add_u32 v29, v27, 5, v22")
        a("v_xor_b32 v23, s37, v30")
        a("v_lshl_add_u32 v29, v%d, 6, v29" % (23 if P else 30))
        a("v_add_u32 v%d, %d, v29" % (vAW1, 16384 + (8192 if kind == "R1" else 0)))
        if not P: a("v_xor_b32 v%d, 64, v%d" % (vAW1 + 1, vAW1))
        a("v_lshl_add_u32 v23, v23, 1, v27")
        a("v_lshl_add_u32 v29, v23, 5, v22")
        a("v_lshl_add_u32 v29, v27, 13, v29")
        a("v_add_u32 v%d, %d, v29" % (vA2, base(8)))
        a("v_xor_b32 v%d, 32, v%d" % (vA2 + 1, vA2))
        if not P:
            a("v_xor_b32 v23, %d, v27" % (1 if kind == "R1" else 0))
            a("v_lshl_add_u32 v29, v23, 5, v28")
            a("v_lshl_add_u32 v29, v26, 6, v29")
            a("v_lshl_add_u32 v29, v27, 12, v29")
            a("v_add_u32 v%d, %d, v29" % (vAM, base(12)))
        a("s_lshl_b32 s90, s18, 2")
        a("s_add_u32 s90, s90, s36")
        a("s_lshl_b32 s91, s90, 10")
        a("s_mul_i32 s90, s90, 112")
        a("s_add_u32 s90, s90, s58")
        a("s_lshr_b32 s38, s52, 5")
        a("s_add_u32 s95, s90, s38")
        a("s_lshr_b32 s38, s97, 5")
        a("s_add_u32 s58, s90, s38")
        a("s_lshl_b32 s38, s37, 1")
        a("s_add_u32 s58, s58, %s" % ("s38" if P else "s37"))
        a("s_lshl_b32 s58, s58, 10")
        a("s_add_u32 s95, s95, s38")
        a("s_lshl_b32 s95, s95, 10")
        if kind != "R1":
            a("s_cmp_lt_u32 s19, 8")
            a("s_cselect_b32 s92, %s, 1.0" % hx(f2u(0.25 * LOG2E)))
            a("s_cselect_b32 s38, 0, 12")
            a("s_mov_b32 s93, s92")
            a("v_lshrrev_b32 v29, 1, v24")
            a("v_xor_b32 v29, v24, v29")
            a("v_and_b32 v29, 4, v29")
            a("v_mul_u32_u24 v29, 3, v29")
            a("v_and_b32 v29, s38, v29")
            a("v_xor_b32 v29, v24, v29")
            a("v_lshlrev_b32 v29, 4, v29")
            a("v_lshl_add_u32 v%d, v25, 9, v29" % vST)
            a("s_lshl_b32 s38, s19, 18")
            a("s_add_u32 s91, s91, s38")
            if P:
                a("s_lshl_b32 s38, s37, 17")
                a("s_add_u32 s91, s91, s38")
        else:
            a("v_and_b32 v29, 15, v0")
            a("v_lshlrev_b32 v29, 4, v29")
            a("v_lshl_add_u32 v29, v25, 8, v29")
            a("v_lshl_add_u32 v%d, v27, 16, v29" % vST)
            a("s_lshl_b32 s38, s54, 1")
            a("s_add_u32 s38, s38, s55")
            a("s_sub_u32 s38, s38, 1")
            a("s_lshl_b32 s38, s38, 18")
            a("s_add_u32 s91, s91, s38")
            a("s_add_u32 s91, s91, %s" % hx(VF))
        def gc():
            o = gc0()
            a("v_mov_b32 v30, v%d" % o); a("v_mov_b32 v31, v%d" % (o + 1))
            srd(a, 28, 14, 0, 6 * MB)
        def gst():
            srd(a, 28, 14, GG, 16384)
            a("s_lshl_b32 s39, s18, 7")
            a("s_add_u32 s38, s60, s39")
            a("s_lshl_b32 s38, s38, 3")
            a("v_mov_b32 v29, 0")
            a("s_mov_b32 exec_lo, 0")
            a("s_mov_b32 exec_hi, 0x80000000")
            vm.issue("buffer_store_dwordx2 v[30:31], v29, s[28:31], s38 offen%s" % SC, "gst")
            a("s_mov_b64 exec, -1")
        T = [[3], [0, 1], [2, 3]] if P else [[0, 1], [2, 3], [0]]
        DIST = [2, D2, D2] if P else [2, D2, 4]
        def ph(g): return g // 32
        def stage(g): return g // 4 if g < 32 else 8 + (g - 32) // 8
        def first(g): return g % 4 == 0 if g < 32 else g % 8 == 0
        def wf(g, n):
            if len(T[ph(g)]) == 1 and ph(g) == 2: return WF + 4 * (g % 8)
            return WF + 8 * (g % 4) + 4 * n
        def reads(g):
            s = stage(g); p = ph(g); L = []
            if p == 0: R = [vAX] + [vAW1 + n for n in range(len(T[0]))]
            elif p == 2 and not P: R = [vAM]
            else: R = [vA2, vA2 + 1]
            if first(g) and s not in (0, 8) and not (s == 12 and not P):
                d = base(s) - base(s - 1)
                for r in R: L.append(("s", "v_add_u32 v%d, %s, v%d" % (r, hx(d), r), None))
            ks = g % 4
            if p == 0:
                if ks: L.append(("s", "v_xor_b32 v%d, %d, v%d" % (vT, 32 * ks, vAX), None))
                L.append(("l", "ds_read_b128 %s, v%d" % (vr(X + 4 * g, 4), vT if ks else vAX), g))
                R = R[1:]
            c = 0 if p == 0 else (g % 8) // 4
            for n in range(len(T[p])):
                rb_ = 64 if R[n] == vAM else 128
                for q in range(2):
                    L.append(("l", "ds_read_b64_tr_b16 %s, v%d offset:%d" % (vr(wf(g, n) + 2 * q, 2), R[n], c * 128 * rb_ + (16 * ks + 4 * q) * rb_), g))
            return L
        def mfmas(g):
            L = []
            x = vr(X + 4 * (g % 32), 4)
            for n, ac in enumerate(T[ph(g)]):
                d = vr(SET[ac], 16); w = vr(wf(g, n), 4)
                A, B = (x, w) if (kind == "R1" and g < 32) else (w, x)
                L.append("v_mfma_f32_32x32x16_bf16 %s, %s, %s, %s" % (d, A, B, "0" if g % 32 == 0 else d))
            return L
        def qkv_epi(n):
            b = SET[T[0][n]]; L = []
            if kind != "R1":
                if PK:
                    for i in range(8): L.append(("s", "v_pk_mul_f32 %s, %s, s[92:93]" % (vr(b + 2 * i, 2), vr(b + 2 * i, 2)), None))
                else:
                    for i in range(16): L.append(("s", "v_mul_f32 v%d, s92, v%d" % (b + i, b + i), None))
            for i in range(8): L.append(("s", "v_cvt_pk_bf16_f32 v%d, v%d, v%d" % (b + i, b + 2 * i, b + 2 * i + 1), None))
            if kind != "R1":
                L.append(("s", "s_add_u32 s94, s91, 0x10000", None))
                L.append(("v", "buffer_store_dwordx4 %s, v%d, s[28:31], s91 offen%s" % (vr(b, 4), vST, SC), "qkv"))
                L.append(("v", "buffer_store_dwordx4 %s, v%d, s[28:31], s94 offen%s" % (vr(b + 4, 4), vST, SC), "qkv"))
            else:
                for j in range(2):
                    L.append(("v", "buffer_store_dwordx4 %s, v%d, s[28:31], s91 offen offset:%d%s" % (vr(b + 4 * j, 4), vST, j * 512, SC), "qkv"))
            if n + 1 < len(T[0]): L.append(("s", "s_add_u32 s91, s91, 0x20000", None))
            return L
        def silu(G, Tm, so, off, tag, pk=True):
            U = G + 8; L = []
            def op(o, d, x, y):
                if pk:
                    for i in range(4): L.append("v_pk_%s_f32 %s, %s, %s" % (o, vr(d + 2 * i, 2), vr(x + 2 * i, 2), y if isinstance(y, str) else vr(y + 2 * i, 2)))
                else:
                    for i in range(8): L.append("v_%s_f32 v%d, %s, v%d" % (o, d + i, {"s[92:93]": "s92", "s[12:13]": "1.0"}.get(y, None) or "v%d" % (y + i), x + i))
            op("mul", Tm, G, "s[92:93]")
            for i in range(8): L.append("v_exp_f32 v%d, v%d" % (Tm + i, Tm + i))
            op("mul", G, G, U)
            op("add", Tm, Tm, "s[12:13]")
            for i in range(8): L.append("v_rcp_f32 v%d, v%d" % (Tm + i, Tm + i))
            L.append("s_nop 0")
            op("mul", G, G, Tm)
            for i in range(4): L.append("v_cvt_pk_bf16_f32 v%d, v%d, v%d" % (G + i, G + 2 * i, G + 2 * i + 1))
            L = [("s", t, None) for t in L]
            L.append(("v", "buffer_store_dwordx4 %s, v1, s[32:35], %s offen offset:%d%s" % (vr(G, 4), so, off, SC), tag))
            return L
        def consts():
            a("s_mov_b32 s92, %s" % hx(f2u(-LOG2E))); a("s_mov_b32 s93, s92")
            a("s_mov_b32 s12, 1.0"); a("s_mov_b32 s13, 1.0")
            srd(a, 32, 14, HF, 7 * MB)
        ep1 = []
        for n in range(len(T[0])): ep1 += qkv_epi(n)
        ep1b = [("f", gst, None), ("f", lambda: hook(kind, vm, "early"), None), ("f", consts, None)]
        if "noqst" in XP: ep1 = [x for x in ep1 if x[0] != "v"]
        if "noep1" in XP: ep1 = [x for x in ep1 if x[0] == "v"]
        if "plainq" in XP: ep1 = [(k, t.replace(SC, ""), g) if k == "v" else (k, t, g) for (k, t, g) in ep1]
        ep2 = []
        for n, ac in enumerate(T[1]): ep2 += silu(SET[ac], E, "s95", n * 1024, "h1", PK)
        islot = {}
        last = -1
        for g in range(96):
            want = g - DIST[ph(g)]
            regs = set(r for n in range(len(T[ph(g)])) for r in range(wf(g, n), wf(g, n) + 4))
            for g2 in range(g - 1, max(-1, g - 10), -1):
                r2 = set(r for n in range(len(T[ph(g2)])) for r in range(wf(g2, n), wf(g2, n) + 4))
                if regs & r2: want = max(want, g2 + 1); break
            want = max(want, last)
            assert want < g or g == 0, g
            islot[g] = want; last = want
        syncs = {islot[g]: stage(g) for g in range(1, 96) if first(g)}
        def barrier(s):
            if s == PUBS[kind]: vm.wait(("d", s), "qkv", "gst", "sent")
            else: vm.wait(("d", s))
            if s == 15: a("s_waitcnt lgkmcnt(0)"); lg.ops = []
            a("s_barrier")
            if s == PUBS[kind]: hook(kind, vm, "pub")
        barrier(0)
        gen1.stamp(a, 2)
        for g in range(96):
            if islot[g] < 0:
                for it in reads(g): emit(it)
        stq = []; nst = [0]
        pend = dma(2) + dma(3)
        for g in range(96):
            O = []
            for g2 in range(g + 1, 96):
                if islot[g2] == g: O += reads(g2)
            bar = syncs.get(g)
            if bar is not None:
                assert not any(it[2] == ("d", bar) for grp in pend for it in grp), (g, bar)
                if bar + 3 <= 15: pend += dma(bar + 3)
            if pend and (g < 32 or g % 2 == 0 or len(pend) > 4):
                for _ in range(2 if len(pend) > 4 and g < 32 else 1): O += pend.pop(0)
            if g == GCG: O.append(("f", gc, None))
            if g >= 34 and stq and g >= nst[0] and None not in stq[:2]:
                O += stq.pop(0); nst[0] = g + STG
            if g >= 34 and ep1:
                n = EPR + 2
                for it in ep1[:n]:
                    if it[0] == "v": stq.append([it])
                    elif it[1].startswith("s_add_u32 s9"): stq.append([it]) ; stq.append(None)
                    else: O.append(it)
                ep1 = ep1[n:]
                i = 0
                while i < len(stq):
                    if stq[i] is None and i + 1 < len(stq):
                        stq[i - 1] = stq[i - 1] + stq[i + 1]
                        del stq[i:i + 2]
                    else: i += 1
            elif stq: pass
            elif g >= EARLY[kind] and ep1b and g >= nst[0]: O.append(ep1b.pop(0)); nst[0] = g + 2
            elif g >= 67 and ep2:
                n = EPR if P else EPRR
                O += ep2[:n]; ep2 = ep2[n:]
                O += hook(kind, vm, (g, CH if P else 1)) or []
            elif g >= 34 and not ep1b:
                O += hook(kind, vm, (g, 6 if g < 64 else 10)) or []
            if g == WARMG: O.append(("f", lambda: hook(kind, vm, "warm"), None))
            if g == POLLG: O.append(("f", lambda: hook(kind, vm, "poll"), None))
            if g == LDG: assert not ep2
            if g == LDG: O.append(("f", lambda: hook(kind, vm, "ld"), None))
            if bar == PUBS[kind]: assert not ep1 and not stq and not ep1b and not any(it[0] == "f" for it in O), (kind, g)
            M = mfmas(g)
            lg.wait(g)
            gen1.stamp(a, "g%d" % g)
            n = len(M); per = max(1, -(-len(O) // n))
            for i, m in enumerate(M):
                a(m)
                if i == 0 and bar is not None: barrier(bar)
                for it in O[i * per:(i + 1) * per]: emit(it)
        assert not ep1 and not ep2 and not pend
        gen1.stamp(a, 4)
        hook(kind, vm, "pre_h")
        a("s_nop 10")
        L0 = silu(SET[T[2][0]], WF, "s58", 0, "h")
        if P:
            L1 = silu(SET[T[2][1]], WF + 8, "s58", 1024, "h")
            for it in L0[:12] + L1[:12] + L0[12:28] + L1[12:28] + L0[29:] + L1[29:]: emit(it)
        else:
            for it in L0: emit(it)
            a("v_mov_b32 v4, 0x1000")
            vm.issue("buffer_store_dword v4, v4, s[84:87], 0 offen", "h")
        tail(kind, vm)
    stream("R0")
    a.label("AB_R1")
    stream("R1")
    a.label("AB_P")
    stream("P")
```

```python
import sys
sys.path.insert(0, "gen")
from asmlib import *

MB = 1 << 20
QF = 0; KF = 2*MB; VF = 4*MB; HF = 6*MB; OF = 14*MB; GG = 16*MB; BB = 17*MB
LOG2E = 1.4426950408889634
import struct
def f2u(x): return struct.unpack("<I", struct.pack("<f", x))[0]
def hx(x): return "0x%x" % (x & 0xffffffff)

def vr(b, n): return "v[%d:%d]" % (b, b + n - 1) if n > 1 else "v%d" % b
def sr(b, n): return "s[%d:%d]" % (b, b + n - 1) if n > 1 else "s%d" % b

def srd(a, d, base, off, size):
    if off == 0:
        a("s_mov_b32 s%d, s%d" % (d, base)); a("s_mov_b32 s%d, s%d" % (d + 1, base + 1))
    else:
        a("s_add_u32 s%d, s%d, %s" % (d, base, off if isinstance(off, str) else hx(off)))
        a("s_addc_u32 s%d, s%d, 0" % (d + 1, base + 1))
    a("s_mov_b32 s%d, %s" % (d + 2, size if isinstance(size, str) else hx(size)))
    a("s_mov_b32 s%d, 0x20000" % (d + 3))

STAMP = False
TS = 32 * MB
NST = 10
NUSE = 7
SMAP = None
def stamp(a, i):
    if not STAMP: return
    if SMAP is not None:
        if i not in SMAP: return
        i = SMAP.index(i) + 1
        assert i < NUSE
    elif not isinstance(i, int): return
    a("%s s[%d:%d]" % ("s_memrealtime" if RT else "s_memtime", 62 + 2 * i, 63 + 2 * i))
    a("s_waitcnt lgkmcnt(0)")
RT = False
def stamp_begin(a):
    if not STAMP: return
    a("s_memrealtime s[98:99]")
    a("s_memtime s[62:63]")
    for i in range(1, NUSE): a("s_mov_b32 s%d, 0" % (62 + 2 * i))
def stamp_end(a, kid, wsreg, n):
    if not STAMP: return
    a("s_mov_b64 exec, -1")
    a("s_waitcnt vmcnt(0)")
    a("s_memtime s[26:27]")
    a("s_memrealtime s[28:29]")
    a("s_waitcnt lgkmcnt(0)")
    srd(a, 20, wsreg, TS + kid * MB, MB)
    a("s_lshl_b32 s24, s2, 4")
    a("s_add_u32 s24, s24, s3")
    a("s_lshl_b32 s24, s24, 6")
    vals = ["s98", "s28"] + ["s%d" % (62 + 2 * i) if i < NUSE else "0" for i in range(NST - 1)] + ["s26"]
    a("v_mov_b32 v0, 0")
    for i, v in enumerate(vals):
        a("v_mov_b32 v1, %s" % v)
        a("buffer_store_dword v1, v0, s[20:23], s24 offen offset:%d" % (4 * i))
    a("s_waitcnt vmcnt(0)")

def header(a, name):
    a(".globl %s" % name); a(".p2align 8"); a(".type %s,@function" % name); a.label(name)

def descriptor(name, nv, ns=102):
    acc = (nv + 3) // 4 * 4
    return """.p2align 6
.amdhsa_kernel %s
  .amdhsa_next_free_vgpr %d
  .amdhsa_next_free_sgpr %d
  .amdhsa_accum_offset %d
  .amdhsa_group_segment_fixed_size 0
  .amdhsa_kernarg_size 88
  .amdhsa_user_sgpr_count 2
  .amdhsa_user_sgpr_kernarg_segment_ptr 1
  .amdhsa_system_sgpr_workgroup_id_x 1
  .amdhsa_float_denorm_mode_32 3
.end_amdhsa_kernel
""" % (name, nv, ns, acc)

SLOT = 28672; NSLOT = 5
def k1(a):
    name = "k1_kernel"
    header(a, name)
    a("s_cmp_ge_u32 s2, 256")
    a("s_cbranch_scc1 K1_END")
    stamp_begin(a)
    a("s_load_dwordx4 s[4:7], s[0:1], 0")
    a("s_load_dwordx4 s[8:11], s[0:1], 32")
    a("s_load_dwordx2 s[12:13], s[0:1], 56")
    a("s_load_dwordx2 s[14:15], s[0:1], 80")
    a("v_lshrrev_b32 v1, 6, v0")
    a("v_and_b32 v0, 63, v0")
    a("s_and_b32 s16, s2, 7")
    a("v_readfirstlane_b32 s3, v1")
    a("s_lshr_b32 s17, s2, 3")
    a("s_and_b32 s18, s16, 1")
    a("s_lshl_b32 s18, s18, 3")
    a("s_and_b32 s19, s17, 7")
    a("s_add_u32 s18, s18, s19")
    a("s_lshr_b32 s19, s16, 1")
    a("s_lshl_b32 s19, s19, 2")
    a("s_lshr_b32 s17, s17, 3")
    a("s_add_u32 s19, s19, s17")
    a("s_mov_b32 s58, %d" % SLOT)
    a("s_cmp_ge_u32 s3, 4")
    a("s_cbranch_scc1 K1_LOADER")
    a("s_and_b32 s36, s3, 1")
    a("s_lshr_b32 s37, s3, 1")
    AX0, AX1, AQ, AG0, AG1 = 2, 3, 4, 5, 6
    F = [12, 40]; ACC = 68
    def T(tt, c): return ACC + 16 * (2 * c + tt)
    a("v_and_b32 v7, 31, v0")
    a("v_lshrrev_b32 v8, 5, v0")
    a("v_and_b32 v9, 15, v0")
    a("v_bfe_u32 v10, v0, 4, 1")
    a("v_bfe_u32 v11, v0, 2, 2")
    a("v_xor_b32 v11, v8, v11")
    a("v_lshlrev_b32 v11, 4, v11")
    a("s_lshl_b32 s38, s36, 12")
    a("v_lshl_add_u32 v%d, v7, 6, v11" % AX0)
    a("v_add_u32 v%d, s38, v%d" % (AX0, AX0))
    a("v_xor_b32 v%d, 32, v%d" % (AX1, AX0))
    a("v_lshrrev_b32 v15, 2, v9")
    a("v_lshl_add_u32 v12, v8, 3, v15")
    a("v_bfe_u32 v13, v9, 1, 1")
    a("v_lshl_add_u32 v13, v10, 1, v13")
    a("v_and_b32 v14, 1, v9")
    a("v_lshlrev_b32 v14, 3, v14")
    a("v_lshrrev_b32 v16, 3, v9")
    a("v_xor_b32 v16, s37, v16")
    a("v_lshl_add_u32 v16, v16, 2, v13")
    a("v_lshl_add_u32 v16, v16, 4, v14")
    a("v_lshl_add_u32 v16, v12, 7, v16")
    a("v_add_u32 v%d, 8192, v16" % AQ)
    a("s_lshl_b32 s38, s37, 1")
    for u, R in ((0, AG0), (1, AG1)):
        if u: a("s_add_u32 s38, s38, 1")
        a("v_xor_b32 v16, s38, v15")
        a("v_lshl_add_u32 v16, v16, 2, v13")
        a("v_lshl_add_u32 v16, v16, 4, v14")
        a("v_lshl_add_u32 v16, v12, 8, v16")
        a("v_add_u32 v%d, 12288, v16" % R)
    for r in range(ACC, ACC + 160): a("v_mov_b32 v%d, 0" % r)
    a("s_mov_b32 s40, 0")
    a("s_mov_b32 s41, 16")
    def reads(f, ks):
        b = F[f]; L = []
        ax = AX0 if ks == 0 else AX1
        def X(tt): return "ds_read_b128 %s, v%d offset:%d" % (vr(b + 4 * tt, 4), ax, tt * 2048)
        def W(c, q):
            d = vr(b + 8 + 4 * c + 2 * q, 2)
            if c == 0: return "ds_read_b64_tr_b16 %s, v%d offset:%d" % (d, AQ, (16 * ks + 4 * q) * 128)
            u = (c - 1) % 2; up = (c - 1) // 2
            return "ds_read_b64_tr_b16 %s, v%d offset:%d" % (d, AG0 + u, (16 * ks + 4 * q) * 256 + up * 8192)
        return [X(0), W(0, 0), W(0, 1), X(1), W(1, 0), W(1, 1), W(2, 0), W(2, 1), W(3, 0), W(3, 1), W(4, 0), W(4, 1)]
    def mf(f, tt, c, swap):
        b = F[f]; x = vr(b + 4 * tt, 4); w = vr(b + 8 + 4 * c, 4); d = vr(T(tt, c), 16)
        if swap and c > 0: return "v_mfma_f32_32x32x16_bf16 %s, %s, %s, %s" % (d, x, w, d)
        return "v_mfma_f32_32x32x16_bf16 %s, %s, %s, %s" % (d, w, x, d)
    stamp(a, 1)
    a("s_barrier")
    stamp(a, 2)
    for r in reads(0, 0): a(r)
    a("s_cmp_ge_u32 s19, 14")
    a("s_cbranch_scc1 K1_ZLOOP")
    def loop(lab, swap):
        a(".p2align 6")
        a.label(lab)
        for ph in range(2):
            R = reads(1 - ph, 1 - ph)
            a("s_waitcnt lgkmcnt(0)")
            n = 0
            for c in range(5):
                for tt in range(2):
                    a(mf(ph, tt, c, swap))
                    if ph == 1 and n == 0: a("s_barrier")
                    if n < 6:
                        a(R[2 * n]); a(R[2 * n + 1])
                    if ph == 0 and n == 6:
                        a("s_add_u32 s40, s40, 1")
                        a("s_cmp_eq_u32 s40, %d" % NSLOT)
                        a("s_cselect_b32 s42, %s, s58" % (hx(-(NSLOT - 1) * SLOT)))
                        a("s_cselect_b32 s40, 0, s40")
                    if ph == 0 and n == 7:
                        for R_ in (AX0, AX1, AQ): a("v_add_u32 v%d, s42, v%d" % (R_, R_))
                    if ph == 0 and n == 8:
                        for R_ in (AG0, AG1): a("v_add_u32 v%d, s42, v%d" % (R_, R_))
                    if ph == 1 and n == 7:
                        a("s_sub_u32 s41, s41, 1")
                        a("s_cmp_lg_u32 s41, 0")
                    n += 1
        a("s_cbranch_scc1 %s" % lab)
    def epi_common():
        a("s_waitcnt lgkmcnt(0)")
        stamp(a, 3)
        srd(a, 20, 14, 0, 6 * MB)
        srd(a, 24, 14, HF, 7 * MB)
        a("s_lshl_b32 s44, s18, 2")
        a("s_lshl_b32 s45, s36, 1")
        a("s_add_u32 s44, s44, s45")
        a("s_lshl_b32 s46, s19, 1")
        a("s_add_u32 s46, s46, s37")
        a("s_lshl_b32 s46, s46, 17")
        a("s_lshl_b32 s45, s44, 10")
        a("s_add_u32 s46, s46, s45")
        a("s_cmp_lt_u32 s19, 8")
        a("s_cselect_b32 s48, %s, 1.0" % hx(f2u(0.25 * LOG2E)))
        a("s_mov_b32 s49, s48")
        a("s_cselect_b32 s50, 0, 12")
        a("v_lshrrev_b32 v11, 1, v7")
        a("v_xor_b32 v11, v7, v11")
        a("v_and_b32 v11, 4, v11")
        a("v_mul_u32_u24 v11, 3, v11")
        a("v_and_b32 v11, s50, v11")
        a("v_xor_b32 v11, v7, v11")
        a("v_lshlrev_b32 v11, 4, v11")
        a("v_lshl_add_u32 v11, v8, 9, v11")
        a("v_lshlrev_b32 v2, 4, v0")
        a("s_nop 7")
        TMP = 12
        for tt in range(2):
            b = T(tt, 0)
            for i in range(8): a("v_pk_mul_f32 %s, %s, s[48:49]" % (vr(b + 2 * i, 2), vr(b + 2 * i, 2)))
            for i in range(8): a("v_cvt_pk_bf16_f32 v%d, v%d, v%d" % (TMP + 8 * tt + i, b + 2 * i, b + 2 * i + 1))
            a("s_add_u32 s47, s46, 0x10000")
            a("buffer_store_dwordx4 %s, v11, s[20:23], s46 offen offset:%d" % (vr(TMP + 8 * tt, 4), tt * 1024))
            a("buffer_store_dwordx4 %s, v11, s[20:23], s47 offen offset:%d" % (vr(TMP + 8 * tt + 4, 4), tt * 1024))
    loop("K1_XLOOP", False)
    epi_common()
    a("s_mov_b32 s52, %s" % hx(f2u(-LOG2E))); a("s_mov_b32 s53, s52")
    a("s_mov_b32 s54, 1.0"); a("s_mov_b32 s55, 1.0")
    a("s_mul_i32 s56, s44, 112")
    a("s_lshl_b32 s57, s19, 3")
    a("s_add_u32 s56, s56, s57")
    a("s_lshl_b32 s57, s37, 2")
    a("s_add_u32 s56, s56, s57")
    a("s_lshl_b32 s56, s56, 10")
    a("s_add_u32 s57, s56, %d" % (112 * 1024))
    E = 228
    for tt in range(2):
        for u in range(2):
            G = T(tt, 1 + u); U = T(tt, 3 + u); P = 28 + 8 * (2 * tt + u)
            for i in range(8): a("v_pk_mul_f32 %s, %s, s[52:53]" % (vr(E + 2 * i, 2), vr(G + 2 * i, 2)))
            for i in range(16): a("v_exp_f32 v%d, v%d" % (E + i, E + i))
            for i in range(8): a("v_pk_mul_f32 %s, %s, %s" % (vr(G + 2 * i, 2), vr(G + 2 * i, 2), vr(U + 2 * i, 2)))
            for i in range(8): a("v_pk_add_f32 %s, %s, s[54:55]" % (vr(E + 2 * i, 2), vr(E + 2 * i, 2)))
            for i in range(16): a("v_rcp_f32 v%d, v%d" % (E + i, E + i))
            a("s_nop 0")
            for i in range(8): a("v_pk_mul_f32 %s, %s, %s" % (vr(G + 2 * i, 2), vr(G + 2 * i, 2), vr(E + 2 * i, 2)))
            for i in range(8): a("v_cvt_pk_bf16_f32 v%d, v%d, v%d" % (P + i, G + 2 * i, G + 2 * i + 1))
            for jj in range(2):
                a("buffer_store_dwordx4 %s, v2, s[24:27], s%d offen offset:%d" % (vr(P + 4 * jj, 4), 56 + tt, u * 2048 + jj * 1024))
    stamp(a, 4)
    stamp_end(a, 0, 14, 5)
    a("s_endpgm")
    loop("K1_ZLOOP", True)
    epi_common()
    a("v_lshlrev_b32 v3, 16, v10")
    a("v_lshl_add_u32 v3, v8, 8, v3")
    a("v_lshl_add_u32 v3, v9, 4, v3")
    a("s_sub_u32 s56, s19, 14")
    a("s_lshl_b32 s56, s56, 3")
    a("s_lshl_b32 s57, s37, 1")
    a("s_add_u32 s56, s56, s57")
    a("s_lshl_b32 s56, s56, 17")
    a("s_add_u32 s56, s56, s45")
    a("s_add_u32 s56, s56, %s" % hx(VF))
    n = 0
    for part in range(2):
        for u in range(2):
            a("s_add_u32 s57, s56, %s" % hx((4 * part + u) << 17))
            for tt in range(2):
                b = T(tt, 1 + 2 * part + u); P = 28 + 8 * (n % 4); n += 1
                for i in range(8): a("v_cvt_pk_bf16_f32 v%d, v%d, v%d" % (P + i, b + 2 * i, b + 2 * i + 1))
                for j in range(2):
                    a("buffer_store_dwordx4 %s, v3, s[20:23], s57 offen offset:%d" % (vr(P + 4 * j, 4), tt * 1024 + j * 512))
    stamp(a, 4)
    stamp_end(a, 0, 14, 5)
    a("s_endpgm")
    a.label("K1_LOADER")
    a("s_sub_u32 s36, s3, 4")
    a("s_waitcnt lgkmcnt(0)")
    a("s_lshl_b32 s38, s18, 17")
    srd(a, 20, 4, "s38", 128 * 1024)
    a("s_lshl_b32 s38, s19, 7")
    a("s_sub_u32 s39, %d, s38" % (512 * 3072))
    srd(a, 24, 6, "s38", "s39")
    a("s_cmp_ge_u32 s19, 14")
    a("s_cbranch_scc1 K1_LZ")
    a("s_lshl_b32 s38, s19, 8")
    a("s_sub_u32 s39, %d, s38" % (512 * 3584))
    srd(a, 28, 8, "s38", "s39")
    srd(a, 32, 10, "s38", "s39")
    a("s_mov_b32 s37, 3584")
    a("s_branch K1_LGO")
    a.label("K1_LZ")
    a("s_sub_u32 s38, s19, 14")
    a("s_lshl_b32 s38, s38, 9")
    a("s_add_u32 s38, s38, 2048")
    a("s_sub_u32 s39, %d, s38" % (512 * 3072))
    srd(a, 28, 6, "s38", "s39")
    a("s_add_u32 s38, s38, 256")
    a("s_sub_u32 s39, s39, 256")
    srd(a, 32, 6, "s38", "s39")
    a("s_mov_b32 s37, 3072")
    a.label("K1_LGO")
    a("v_lshrrev_b32 v8, 4, v0")
    a("v_and_b32 v9, 3, v0")
    a("v_xor_b32 v9, v9, v8")
    a("v_lshlrev_b32 v9, 4, v9")
    a("v_lshrrev_b32 v10, 2, v0")
    a("v_lshl_add_u32 v2, v10, 10, v9")
    a("s_lshl_b32 s38, s36, 15")
    a("v_add_u32 v2, s38, v2")
    a("v_add_u32 v3, %d, v2" % (16384 - 1024))
    a("v_and_b32 v9, 1, v8")
    a("v_lshlrev_b32 v9, 2, v9")
    a("v_and_b32 v10, 7, v0")
    a("v_xor_b32 v9, v9, v10")
    a("v_lshlrev_b32 v9, 4, v9")
    a("v_lshrrev_b32 v10, 3, v0")
    a("s_lshl_b32 s38, s36, 3")
    a("v_add_u32 v10, s38, v10")
    a("v_mul_u32_u24 v10, 3072, v10")
    a("v_add_u32 v4, v10, v9")
    a("v_lshlrev_b32 v9, 2, v8")
    a("v_and_b32 v10, 15, v0")
    a("v_xor_b32 v9, v9, v10")
    a("v_lshlrev_b32 v9, 4, v9")
    a("v_add_u32 v10, s38, v8")
    a("v_mul_u32_u24 v10, s37, v10")
    a("v_add_u32 v5, v10, v9")
    a("s_lshl_b32 s38, s37, 2")
    a("s_sub_u32 s38, s38, 1024")
    a("v_add_u32 v6, s38, v5")
    a("s_lshl_b32 s40, s36, 11")
    a("s_lshl_b32 s41, s36, 10")
    a("s_add_u32 s41, s41, 8192")
    a("s_add_u32 s42, s40, 12288")
    a("s_add_u32 s43, s40, 20480")
    a("s_mov_b32 s44, 0")
    a("s_mov_b32 s45, 0"); a("s_mov_b32 s46, 0"); a("s_mov_b32 s47, 0")
    a("s_lshl_b32 s48, s37, 5")
    def issue():
        a("s_mov_b32 m0, s40")
        a("s_add_u32 s44, s44, 1")
        a("buffer_load_dwordx4 v2, s[20:23], s45 offen lds")
        a("buffer_load_dwordx4 v3, s[20:23], s45 offen offset:1024 lds")
        a("s_mov_b32 m0, s41")
        a("s_cmp_eq_u32 s44, %d" % NSLOT)
        a("buffer_load_dwordx4 v4, s[24:27], s46 offen lds")
        a("s_mov_b32 m0, s42")
        a("s_cselect_b32 s49, %s, s58" % (hx(-(NSLOT - 1) * SLOT)))
        a("buffer_load_dwordx4 v5, s[28:31], s47 offen lds")
        a("buffer_load_dwordx4 v6, s[28:31], s47 offen offset:1024 lds")
        a("s_mov_b32 m0, s43")
        a("s_cselect_b32 s44, 0, s44")
        a("buffer_load_dwordx4 v5, s[32:35], s47 offen lds")
        a("buffer_load_dwordx4 v6, s[32:35], s47 offen offset:1024 lds")
        for r in (40, 41, 42, 43): a("s_add_u32 s%d, s%d, s49" % (r, r))
        a("s_add_u32 s45, s45, 64")
        a("s_add_u32 s46, s46, %d" % (32 * 3072))
        a("s_add_u32 s47, s47, s48")
    a("s_mov_b32 s50, 5")
    a.label("K1_LPRO")
    issue()
    a("s_sub_u32 s50, s50, 1")
    a("s_cmp_lg_u32 s50, 0")
    a("s_cbranch_scc1 K1_LPRO")
    stamp(a, 1)
    a("s_waitcnt vmcnt(28)")
    stamp(a, 2)
    a("s_barrier")
    a("s_waitcnt vmcnt(21)"); a("s_barrier")
    a("s_mov_b32 s50, 11")
    a.label("K1_LLOOP")
    a("s_waitcnt vmcnt(14)"); a("s_barrier")
    issue()
    a("s_sub_u32 s50, s50, 1")
    a("s_cmp_lg_u32 s50, 0")
    a("s_cbranch_scc1 K1_LLOOP")
    a("s_waitcnt vmcnt(14)"); a("s_barrier")
    a("s_waitcnt vmcnt(7)"); a("s_barrier")
    a("s_waitcnt vmcnt(0)")
    stamp(a, 3)
    a("s_barrier")
    srd(a, 24, 12, 0, 1024)
    srd(a, 28, 14, GG, 16384)
    a("s_lshl_b32 s38, s19, 3")
    a("s_lshl_b32 s39, s36, 1")
    a("s_add_u32 s38, s38, s39")
    a("s_lshl_b32 s39, s38, 10")
    a("v_lshlrev_b32 v2, 4, v0")
    a("buffer_load_dwordx4 v[8:11], v2, s[24:27], 0 offen")
    a("buffer_load_dwordx4 v[12:15], v2, s[20:23], s39 offen")
    a("buffer_load_dwordx4 v[16:19], v2, s[20:23], s39 offen offset:1024")
    a("s_barrier")
    a("s_mov_b32 s40, 0xffff0000")
    a("s_waitcnt vmcnt(0)")
    for i in range(4):
        a("v_lshlrev_b32 v%d, 16, v%d" % (20 + 2 * i, 8 + i))
        a("v_and_b32 v%d, s40, v%d" % (21 + 2 * i, 8 + i))
    for t in range(2):
        x = 12 + 4 * t; acc = 40 + t
        for i in range(4):
            a("v_lshlrev_b32 v28, 16, v%d" % (x + i))
            a("v_and_b32 v29, s40, v%d" % (x + i))
            a("v_mul_f32 v28, v28, v%d" % (20 + 2 * i))
            a("v_mul_f32 v29, v29, v%d" % (21 + 2 * i))
            a("v_cvt_pk_bf16_f32 v28, v28, v29")
            a("v_and_b32 v29, s40, v28")
            a("v_lshlrev_b32 v28, 16, v28")
            if i == 0: a("v_add_f32 v%d, v28, v29" % acc)
            else:
                a("v_add_f32 v28, v28, v29")
                a("v_add_f32 v%d, v%d, v28" % (acc, acc))
    for m in ("row_shr:1", "row_shr:2", "row_shr:4", "row_shr:8"):
        a("s_nop 0")
        for t in range(2): a("v_add_f32_dpp v%d, v%d, v%d %s row_mask:0xf bank_mask:0xf bound_ctrl:0" % (40 + t, 40 + t, 40 + t, m))
    a("s_nop 0")
    for t in range(2): a("v_add_f32_dpp v%d, v%d, v%d row_bcast:15 row_mask:0xa bank_mask:0xf" % (40 + t, 40 + t, 40 + t))
    a("s_nop 0")
    for t in range(2): a("v_add_f32_dpp v%d, v%d, v%d row_bcast:31 row_mask:0xc bank_mask:0xf" % (40 + t, 40 + t, 40 + t))
    a("s_mov_b32 s41, %s" % hx(f2u(-LOG2E)))
    for t in range(2):
        z = 40 + t; o = 44 + 2 * t
        a("v_cvt_pk_bf16_f32 v%d, v%d, v%d" % (z, z, z))
        a("v_and_b32 v%d, s40, v%d" % (z, z))
        a("v_mul_f32 v%d, s41, v%d" % (z, z))
        a("v_exp_f32 v%d, v%d" % (z, z))
        a("s_nop 0")
        a("v_add_f32 v%d, 1.0, v%d" % (z, z))
        a("v_rcp_f32 v%d, v%d" % (z, z))
        a("s_nop 0")
        a("v_cvt_pk_bf16_f32 v%d, v%d, v%d" % (z, z, z))
        a("v_and_b32 v%d, s40, v%d" % (o, z))
        a("v_sub_f32 v%d, 1.0, v%d" % (z, o))
        a("v_cvt_pk_bf16_f32 v%d, v%d, v%d" % (z, z, z))
        a("v_and_b32 v%d, s40, v%d" % (o + 1, z))
    a("s_lshl_b32 s39, s18, 7")
    a("s_add_u32 s38, s38, s39")
    a("s_lshl_b32 s38, s38, 3")
    a("v_mov_b32 v2, 0")
    a("s_mov_b32 exec_lo, 0")
    a("s_mov_b32 exec_hi, 0x80000000")
    a("buffer_store_dwordx4 v[44:47], v2, s[28:31], s38 offen")
    stamp(a, 4)
    stamp_end(a, 0, 14, 5)
    a.label("K1_END")
    a("s_endpgm")
    return name, 256, "grid=(256,1,1) block=(512,1,1) lds=%d" % (NSLOT * SLOT)

def k2(a):
    name = "k2_kernel"
    header(a, name)
    Q = 8; S = [24, 40]; K = [56, 60]; V = [64, 72]; O = 80
    a("s_cmp_ge_u32 s2, 256")
    a("s_cbranch_scc1 K2_END")
    stamp_begin(a)
    a("s_load_dwordx2 s[4:5], s[0:1], 80")
    a("v_lshrrev_b32 v1, 6, v0")
    a("v_and_b32 v0, 63, v0")
    a("s_and_b32 s20, s2, 7")
    a("v_readfirstlane_b32 s3, v1")
    a("s_lshl_b32 s20, s20, 2")
    a("s_bfe_u32 s21, s2, 0x20003")
    a("s_add_u32 s20, s20, s21")
    a("s_lshr_b32 s21, s2, 5")
    a("s_and_b32 s22, s3, 1")
    a("s_lshr_b32 s23, s3, 1")
    a("v_lshlrev_b32 v1, 4, v0")
    a("v_and_b32 v2, 15, v0")
    a("v_lshlrev_b32 v2, 4, v2")
    a("v_lshrrev_b32 v4, 5, v0")
    a("v_lshl_add_u32 v2, v4, 8, v2")
    a("v_mov_b32 v3, 0xdddddddd")
    a("s_lshl_b32 s24, s20, 16")
    a("s_lshl_b32 s25, s21, 3")
    a("s_lshl_b32 s26, s22, 2")
    a("s_add_u32 s25, s25, s26")
    a("s_lshl_b32 s27, s23, 14")
    a("s_add_u32 s27, s27, s24")
    a("s_add_u32 s26, s27, %s" % hx(KF))
    a("s_mov_b32 s30, 0x0000ffff"); a("s_mov_b32 s31, 0x0000ffff")
    for i in range(16): a("v_mov_b32 v%d, 0x3f803f80" % (V[0] + i))
    a("s_waitcnt lgkmcnt(0)")
    srd(a, 8, 4, 0, 4 * MB)
    srd(a, 12, 4, VF, 2 * MB)
    srd(a, 16, 4, OF, 2 * MB)
    for s in range(4):
        a("s_add_u32 s28, s23, %d" % s)
        a("s_and_b32 s28, s28, 3")
        a("s_add_u32 s28, s28, s25")
        if s == 0: a("s_mov_b32 s29, s28")
        a("s_lshl_b32 s28, s28, 10")
        a("s_add_u32 s28, s28, s24")
        a("buffer_load_dwordx4 %s, v1, s[8:11], s28 offen" % vr(Q + 4 * s, 4))
    def ldK(b):
        a("buffer_load_dwordx4 %s, v1, s[8:11], s26 offen" % vr(K[b], 4))
        a("s_add_u32 s26, s26, 1024")
    def ldV(b):
        a("s_mov_b64 exec, s[30:31]")
        a("buffer_load_dwordx4 %s, v2, s[12:15], s27 offen" % vr(V[b], 4))
        a("buffer_load_dwordx4 %s, v2, s[12:15], s27 offen offset:512" % vr(V[b] + 4, 4))
        a("s_mov_b64 exec, -1")
        a("s_add_u32 s27, s27, 1024")
    ldK(0); ldV(0); ldK(1)
    for i in range(64): a("v_mov_b32 v%d, 0" % (O + i))
    for i in range(8): a("v_mov_b32 v%d, 0" % (S[1] + 8 + i))
    def QK(sl, kb, sb): a("v_mfma_f32_32x32x16_bf16 %s, %s, %s, 0" % (vr(S[sb], 16), vr(K[kb], 4), vr(Q + 4 * sl, 4)))
    def PV(sl, vb, sb, j): a("v_smfmac_f32_32x32x32_bf16 %s, %s, %s, v3" % (vr(O + 16 * sl, 16), vr(V[vb] + 4 * j, 4), vr(S[sb] + 8 * j, 8)))
    a("s_mov_b32 s32, 8")
    stamp(a, 1)
    a("s_waitcnt vmcnt(3)")
    stamp(a, 2)
    QK(0, 0, 0)
    a("s_nop 15")
    a(".p2align 6")
    a.label("K2_LOOP")
    for b in range(2):
        for sl in range(4):
            sb = sl % 2
            def E(i): a("v_exp_f32 v%d, v%d" % (S[sb] + i, S[sb] + i))
            E(0); E(1)
            if sl == 0: PV(3, 1 - b, 1, 1); ldV(1 - b)
            else: PV(sl - 1, b, 1 - sb, 1)
            E(2); E(3); E(4)
            if sl == 3:
                a("s_waitcnt vmcnt(3)")
                QK(0, 1 - b, 0)
            else:
                QK(sl + 1, b, 1 - sb)
                if sl == 2: ldK(b)
            for i in range(5, 10): E(i)
            if sl == 0: a("s_waitcnt vmcnt(3)")
            PV(sl, b, sb, 0)
            if b == 1 and sl == 3:
                a("s_sub_u32 s32, s32, 1"); a("s_cmp_lg_u32 s32, 0")
            for i in range(10, 16): E(i)
    a("s_cbranch_scc1 K2_LOOP")
    a("s_nop 1")
    PV(3, 1, 1, 1)
    stamp(a, 3)
    for s in range(1, 4):
        a("s_add_u32 s28, s23, %d" % s)
        a("s_and_b32 s28, s28, 3")
        a("s_lshl_b32 s28, s28, 1")
        a("s_add_u32 s28, s28, s22")
        a("s_mul_i32 s28, s28, 3")
        a("s_add_u32 s28, s28, %d" % (s - 1))
        a("s_mul_i32 s28, s28, 2304")
        a("v_add_u32 v%d, s28, v1" % (S[0] + 2 * s))
        a("v_lshl_add_u32 v%d, v0, 2, s28" % (S[0] + 2 * s + 1))
    for s in range(1, 4):
        if s == 3: a("s_nop 7")
        a("ds_write_b128 v%d, %s" % (S[0] + 2 * s, vr(O + 16 * s, 4)))
        a("ds_write_b128 v%d, %s offset:1024" % (S[0] + 2 * s, vr(O + 16 * s + 4, 4)))
        a("ds_write_b32 v%d, v%d offset:2048" % (S[0] + 2 * s + 1, O + 16 * s + 8))
    a("s_mul_i32 s28, s3, %d" % (3 * 2304))
    a("v_add_u32 v4, s28, v1")
    a("v_lshl_add_u32 v5, v0, 2, s28")
    a("s_waitcnt lgkmcnt(0)")
    a("s_barrier")
    stamp(a, 4)
    for s in range(3):
        a("ds_read_b128 %s, v4 offset:%d" % (vr(O + 16 * (s + 1), 4), s * 2304))
        a("ds_read_b128 %s, v4 offset:%d" % (vr(O + 16 * (s + 1) + 4, 4), s * 2304 + 1024))
        a("ds_read_b32 v%d, v5 offset:%d" % (O + 16 * (s + 1) + 8, s * 2304 + 2048))
    for s in range(3):
        a("s_waitcnt lgkmcnt(%d)" % (6 - 3 * s))
        for i in range(9): a("v_add_f32 v%d, v%d, v%d" % (O + i, O + i, O + 16 * (s + 1) + i))
    a("s_mov_b32 s34, %s" % hx(f2u(2.0 ** -60)))
    a("v_mov_b32 v5, %s" % hx(f2u(2.0 ** 40)))
    a("v_mul_f32 v4, 0, v%d" % O)
    for i in range(1, 8): a("v_fmac_f32 v4, 0, v%d" % (O + i))
    a("v_med3_f32 v5, v%d, s34, v5" % (O + 8))
    a("v_add_f32 v5, v5, v4")
    a("v_cmp_eq_f32 vcc, v5, v%d" % (O + 8))
    a("s_nop 1")
    a("s_cmp_eq_u64 vcc, -1")
    a("s_cbranch_scc0 K2_SLOW")
    a.label("K2_NORM")
    a("v_rcp_f32 v4, v%d" % (O + 8))
    a("s_lshl_b32 s28, s29, 5")
    a("s_add_u32 s28, s28, s20")
    a("s_lshl_b32 s28, s28, 10")
    for i in range(8): a("v_mul_f32 v%d, v%d, v4" % (O + i, O + i))
    for i in range(4): a("v_cvt_pk_bf16_f32 v%d, v%d, v%d" % (S[0] + i, O + 2 * i, O + 2 * i + 1))
    a("buffer_store_dwordx4 %s, v1, s[16:19], s28 offen" % vr(S[0], 4))
    stamp_end(a, 1, 4, 5)
    a.label("K2_END")
    a("s_endpgm")
    a.label("K2_SLOW")
    CB = O + 16
    a("s_waitcnt vmcnt(0)")
    a("s_add_u32 s26, s24, %s" % hx(KF))
    a("v_mov_b32 v4, 0xff800000")
    a("s_mov_b32 s32, 64")
    a.label("K2_SL1")
    ldK(0)
    a("s_waitcnt vmcnt(0)")
    QK(0, 0, 0)
    a("s_nop 15")
    for i in range(8): a("v_max3_f32 v4, v4, v%d, v%d" % (S[0] + 2 * i, S[0] + 2 * i + 1))
    a("s_sub_u32 s32, s32, 1"); a("s_cmp_lg_u32 s32, 0")
    a("s_cbranch_scc1 K2_SL1")
    a("v_mov_b32 v5, v4")
    a("s_nop 1")
    a("v_permlane32_swap_b32 v4, v5")
    a("s_nop 1")
    a("v_max_f32 v4, v4, v5")
    for i in range(16): a("v_sub_f32 v%d, 0, v4" % (CB + i))
    for i in range(16): a("v_mov_b32 v%d, 0" % (O + i))
    a("s_add_u32 s26, s24, %s" % hx(KF))
    a("s_mov_b32 s27, s24")
    a("s_mov_b32 s32, 64")
    a.label("K2_SL2")
    ldK(0); ldV(0)
    a("s_waitcnt vmcnt(0)")
    a("v_mfma_f32_32x32x16_bf16 %s, %s, %s, %s" % (vr(S[0], 16), vr(K[0], 4), vr(Q, 4), vr(CB, 16)))
    a("s_nop 15")
    for i in range(16): a("v_exp_f32 v%d, v%d" % (S[0] + i, S[0] + i))
    a("s_nop 1")
    PV(0, 0, 0, 0); PV(0, 0, 0, 1)
    a("s_sub_u32 s32, s32, 1"); a("s_cmp_lg_u32 s32, 0")
    a("s_cbranch_scc1 K2_SL2")
    a("s_nop 15")
    a("s_branch K2_NORM")
    a("s_endpgm")
    return name, 144, "grid=(256,1,1) block=(512,1,1) lds=%d" % (8 * 3 * 2304)

RED = 16896
def kgemm(a, name, P, wptr_off, actoff, NK, D, final):
    header(a, name)
    nk = NK // 4
    ACC = 16; ACT = 80; WF = 8
    RING = 4 * RED
    a("s_cmp_ge_u32 s2, 256")
    a("s_cbranch_scc1 %s_END" % P)
    stamp_begin(a)
    a("s_load_dwordx2 s[4:5], s[0:1], 80")
    a("s_load_dwordx2 s[6:7], s[0:1], %d" % wptr_off)
    a("s_load_dwordx2 s[36:37], s[0:1], 64")
    a("v_lshrrev_b32 v1, 6, v0")
    a("v_and_b32 v0, 63, v0")
    a("s_and_b32 s20, s2, 7")
    a("v_readfirstlane_b32 s3, v1")
    a("s_lshl_b32 s20, s20, 2")
    a("s_bfe_u32 s21, s2, 0x20003")
    a("s_add_u32 s20, s20, s21")
    a("s_lshr_b32 s21, s2, 5")
    a("v_lshlrev_b32 v1, 4, v0")
    a("v_add_u32 v2, %d, v1" % (NK * 1024))
    a("v_bfe_u32 v7, v0, 4, 1")
    a("v_lshlrev_b32 v8, 2, v7")
    a("v_and_b32 v9, 7, v0")
    a("v_xor_b32 v8, v8, v9")
    a("v_lshlrev_b32 v8, 4, v8")
    a("v_lshrrev_b32 v9, 3, v0")
    a("v_lshl_add_u32 v3, v9, 10, v8")
    a("v_add_u32 v4, %d, v3" % (8192 - 1024))
    a("v_lshrrev_b32 v8, 5, v0")
    a("v_bfe_u32 v9, v0, 2, 2")
    a("v_lshl_add_u32 v8, v8, 2, v9")
    a("v_bfe_u32 v9, v0, 1, 1")
    a("v_lshl_add_u32 v9, v7, 1, v9")
    a("v_bfe_u32 v10, v0, 3, 1")
    a("v_lshl_add_u32 v9, v10, 2, v9")
    a("v_lshlrev_b32 v9, 4, v9")
    a("v_and_b32 v10, 1, v0")
    a("v_lshl_add_u32 v9, v10, 3, v9")
    a("v_lshl_add_u32 v9, v8, 7, v9")
    a("s_mul_i32 s22, s3, %d" % (D * 2048))
    a("s_add_u32 s22, s22, %d" % RING)
    a("v_add_u32 v5, s22, v9")
    a("v_xor_b32 v6, 64, v5")
    a("s_mul_i32 s24, s20, %d" % (2 * NK))
    a("s_mul_i32 s25, s3, %d" % nk)
    a("s_add_u32 s24, s24, s25")
    a("s_lshl_b32 s24, s24, 10")
    a("s_lshl_b32 s25, s25, 14")
    a("s_lshl_b32 s26, s21, 7")
    a("s_add_u32 s25, s25, s26")
    a("s_waitcnt lgkmcnt(0)")
    srd(a, 8, 4, actoff, 64 * NK * 1024)
    srd(a, 12, 6, 0, NK * 16 * 1024)
    def issue(sl):
        a("s_add_u32 m0, s22, %d" % (sl * 2048))
        a("buffer_load_dwordx4 %s, v1, s[8:11], s24 offen" % vr(ACT + 8 * sl, 4))
        a("buffer_load_dwordx4 %s, v2, s[8:11], s24 offen" % vr(ACT + 8 * sl + 4, 4))
        a("buffer_load_dwordx4 v3, s[12:15], s25 offen lds")
        a("buffer_load_dwordx4 v4, s[12:15], s25 offen offset:1024 lds")
        a("s_add_u32 s24, s24, 1024")
        a("s_add_u32 s25, s25, 16384")
    def step(sl, vm):
        a("s_waitcnt vmcnt(%d)" % vm)
        for ft in range(2):
            for q in range(2):
                a("ds_read_b64_tr_b16 %s, v%d offset:%d" % (vr(WF + 4 * ft + 2 * q, 2), 5 + ft, sl * 2048 + q * 1024))
        for ft in range(2):
            a("s_waitcnt lgkmcnt(%d)" % (2 - 2 * ft))
            for tt in range(2):
                d = vr(ACC + 16 * (2 * tt + ft), 16)
                a("v_mfma_f32_32x32x16_bf16 %s, %s, %s, %s" % (d, vr(WF + 4 * ft, 4), vr(ACT + 8 * sl + 4 * tt, 4), d))
    for sl in range(D): issue(sl)
    for r in range(ACC, ACC + 64): a("v_mov_b32 v%d, 0" % r)
    rounds = nk // D
    stamp(a, 1)
    if STAMP: a("s_waitcnt vmcnt(%d)" % (4 * (D - 1)))
    stamp(a, 2)
    if rounds > 1:
        a("s_mov_b32 s32, %d" % (rounds - 1))
        a.label("%s_LOOP" % P)
        for sl in range(D):
            step(sl, 4 * (D - 1)); issue(sl)
        a("s_sub_u32 s32, s32, 1"); a("s_cmp_lg_u32 s32, 0")
        a("s_cbranch_scc1 %s_LOOP" % P)
    for sl in range(D): step(sl, 4 * (D - 1 - sl))
    stamp(a, 3)
    a("v_lshrrev_b32 v8, 3, v0")
    a("v_and_b32 v9, 7, v0")
    a("s_lshl_b32 s26, s20, 6")
    a("s_lshl_b32 s27, s3, 4")
    a("s_add_u32 s26, s26, s27")
    a("v_lshlrev_b32 v10, 10, v8")
    a("v_lshl_add_u32 v10, v9, 4, v10")
    a("s_lshl_b32 s27, s26, 10")
    a("s_lshl_b32 s28, s21, 7")
    a("s_add_u32 s27, s27, s28")
    a("s_add_u32 s28, s27, 8192")
    if final:
        srd(a, 8, 4, BB, 2 * MB)
        srd(a, 12, 4, GG, 16384)
        srd(a, 16, 36, 0, 2 * MB)
        a("v_lshlrev_b32 v11, 3, v8")
        a("s_lshl_b32 s29, s26, 3")
        a("buffer_load_dwordx4 v[80:83], v10, s[8:11], s27 offen")
        a("buffer_load_dwordx4 v[84:87], v10, s[8:11], s28 offen")
        a("buffer_load_dwordx2 v[88:89], v11, s[12:15], s29 offen")
        a("buffer_load_dwordx2 v[90:91], v11, s[12:15], s29 offen offset:64")
    else:
        srd(a, 16, 4, BB, 2 * MB)
    a("s_mul_i32 s29, s3, %d" % RED)
    a("v_add_u32 v2, s29, v1")
    a("s_nop 7")
    for t in range(4):
        for g in range(4):
            a("ds_write_b128 v2, %s offset:%d" % (vr(ACC + 16 * t + 4 * g, 4), (t * 4 + g) * 1056))
    a("s_lshr_b32 s29, s3, 1")
    a("s_mul_i32 s29, s29, %d" % (8 * 1056))
    a("s_and_b32 s30, s3, 1")
    a("s_lshl_b32 s30, s30, 8")
    a("s_add_u32 s29, s29, s30")
    a("v_mul_u32_u24 v3, 1056, v9")
    a("v_lshl_add_u32 v3, v8, 4, v3")
    a("v_add_u32 v3, s29, v3")
    a("s_waitcnt lgkmcnt(0)")
    a("s_barrier")
    stamp(a, 4)
    for p in range(2):
        for sw in range(4):
            for h in range(2):
                a("ds_read_b128 %s, v3 offset:%d" % (vr(ACC + 32 * p + 8 * sw + 4 * h, 4), sw * RED + h * 512 + p * 128))
    a("s_mov_b32 s30, 0xffff0000")
    for p in range(2):
        b = ACC + 32 * p
        a("s_waitcnt lgkmcnt(%d)" % (8 - 8 * p))
        for i in range(8): a("v_add_f32 v%d, v%d, v%d" % (b + i, b + i, b + 8 + i))
        for i in range(8): a("v_add_f32 v%d, v%d, v%d" % (b + 16 + i, b + 16 + i, b + 24 + i))
        for i in range(8): a("v_add_f32 v%d, v%d, v%d" % (b + i, b + i, b + 16 + i))
        if final:
            if p == 0: a("s_waitcnt vmcnt(0)")
            for i in range(4):
                a("v_lshlrev_b32 v%d, 16, v%d" % (b + 8 + 2 * i, 80 + 4 * p + i))
                a("v_and_b32 v%d, s30, v%d" % (b + 9 + 2 * i, 80 + 4 * p + i))
            for i in range(8): a("v_mul_f32 v%d, v%d, v%d" % (b + i, b + i, 88 + 2 * p))
            for i in range(8): a("v_fmac_f32 v%d, v%d, v%d" % (b + i, b + 8 + i, 89 + 2 * p))
        for i in range(4): a("v_cvt_pk_bf16_f32 v%d, v%d, v%d" % (b + 16 + i, b + 2 * i, b + 2 * i + 1))
        a("buffer_store_dwordx4 %s, v10, s[16:19], s%d offen" % (vr(b + 16, 4), 27 + p))
    stamp_end(a, 3 if final else 2, 4, 5)
    a.label("%s_END" % P)
    a("s_endpgm")
    return name, ACT + 8 * D, "grid=(256,1,1) block=(256,1,1) lds=%d" % (RING + 4 * D * 2048)

def build(out):
    a = Asm()
    ks = []
    a('.amdgcn_target "amdgcn-amd-amdhsa--gfx950"')
    a(".text")
    ks.append(k1(a))
    ks.append(k2(a))
    ks.append(kgemm(a, "kd_kernel", "KD", 48, HF, 112, 4, False))
    ks.append(kgemm(a, "k3_kernel", "K3", 16, OF, 32, 8, True))
    body = a.text()
    errs = check_text(body)
    for e in errs: print("CHECK:", e)
    hdr = "; gated mix of softmax attention and SwiGLU FFN; generated by gen/gen1.py\n"
    for (n, nv, l) in ks: hdr += "; @launch kernel=%s %s\n" % (n, l)
    txt = hdr + body + '.section .rodata,"a"\n' + "".join(descriptor(n, nv) for (n, nv, l) in ks)
    open(out, "w").write(txt)
    print("wrote", out, len(txt), "bytes;", len(errs), "check errors")

if __name__ == "__main__":
    if "stamp" in sys.argv: STAMP = True
    build(sys.argv[1] if len(sys.argv) > 1 else "gated_mix__softmax_full_mha__swiglu_ffn__prompt.s")
```

```python
import sys
sys.path.insert(0, "gen")
import gen1
from gen1 import *
from asmlib import *
from gen2 import gate_code, build
SC = " sc1"
ASLOT = 32768; ANS = 5
GST = [16, 32, 40, 48, 56]
ROT = 8
GCG = 5
PUBB = 11
HOOKG = False
FSYNC = False
SIG1 = 2
SIG2 = 2
NS4 = False
LATE = False
D8AT = -1
LEAD2 = 2
AFLG = 161792
POLLG = 58
QSC = SC
NOST = False

def ab_prologue(a, endlabel):
    a("s_load_dwordx4 s[4:7], s[0:1], 0")
    a("s_cmp_ge_u32 s2, 256")
    a("s_cbranch_scc1 %s" % endlabel)
    a("s_load_dwordx4 s[8:11], s[0:1], 32")
    a("s_load_dwordx2 s[12:13], s[0:1], 56")
    a("s_load_dwordx2 s[14:15], s[0:1], 80")
    gen1.stamp_begin(a)
    a("v_lshrrev_b32 v1, 6, v0")
    a("v_and_b32 v0, 63, v0")
    a("s_and_b32 s16, s2, 7")
    a("v_readfirstlane_b32 s3, v1")
    a("s_lshr_b32 s17, s2, 3")
    a("s_and_b32 s18, s16, 1")
    a("s_lshl_b32 s18, s18, 3")
    a("s_and_b32 s19, s17, 7")
    a("s_add_u32 s18, s18, s19")
    a("s_lshr_b32 s54, s16, 1")
    a("s_lshl_b32 s19, s54, 2")
    a("s_lshr_b32 s55, s17, 3")
    a("s_add_u32 s19, s19, s55")
    a("s_and_b32 s36, s3, 3")
    a("s_lshr_b32 s37, s3, 2")
    a("v_lshlrev_b32 v1, 4, v0")

OUTL = []
def phase_ab(a, tail, hook=None):
    X = 128; ACC = 64; WF = 32
    vAX, vT, vST, vAW1, vAW2, vD = 2, 3, 4, 5, 7, 11
    a("v_lshrrev_b32 v20, 4, v0")
    a("v_and_b32 v21, 7, v0")
    a("v_xor_b32 v22, v21, v20")
    a("v_lshlrev_b32 v22, 4, v22")
    a("v_lshrrev_b32 v23, 3, v0")
    a("v_lshl_add_u32 v22, v23, 10, v22")
    a("s_lshl_b32 s58, s3, 14")
    a("v_add_u32 v%d, s58, v22" % vD)
    a("v_xor_b32 v%d, 64, v%d" % (vD + 1, vD))
    a("v_add_u32 v%d, %d, v%d" % (vD + 1, 7168, vD + 1))
    a("v_and_b32 v22, 1, v20")
    a("v_lshlrev_b32 v22, 2, v22")
    a("v_xor_b32 v22, v22, v21")
    a("s_lshl_b32 s58, s3, 3")
    a("v_add_u32 v23, s58, v23")
    a("v_mul_u32_u24 v23, 3072, v23")
    a("v_lshl_add_u32 v%d, v22, 4, v23" % (vD + 2))
    a("s_lshl_b32 s56, s3, 11")
    a("s_lshl_b32 s57, s3, 10")
    a("s_add_u32 s57, s57, 16384")
    a("s_lshl_b32 s44, s18, 17")
    a("s_lshl_b32 s45, s19, 7")
    a("s_sub_u32 s46, %d, s45" % (512 * 3072))
    a("s_lshl_b32 s50, s55, 1")
    a("s_add_u32 s50, s50, s18")
    if ROT != 8:
        a("s_add_u32 s50, s55, s18")
        a("s_and_b32 s50, s50, %d" % (ROT - 1))
        a("s_mul_i32 s50, s50, %d" % (8 // ROT))
    a("s_lshl_b32 s51, s54, 8")
    a("s_sub_u32 s51, 1920, s51")
    a("s_add_u32 s58, s55, 1")
    a("s_bitcmp1_b32 s58, 1")
    a("s_cselect_b32 s52, 1, 0")
    a("s_waitcnt lgkmcnt(0)")
    gen1.stamp(a, 1)
    srd(a, 20, 4, "s44", 128 * 1024)
    srd(a, 24, 6, "s45", "s46")
    a("s_cmp_eq_u32 s52, 0")
    a("s_cbranch_scc1 AB_P")
    a("s_cmp_eq_u32 s37, 0")
    a("s_cbranch_scc0 AB_R1")

    def stream(kind):
        P = kind == "P"
        vm = VM(a); lg = VM(a, "lgkmcnt", 15)
        if not (FSYNC or NS4): SL = [s % 5 for s in range(16)]
        elif NS4 and D8AT >= 0: SL = [0, 1, 2, 3, 0, 1, 2, 3, 4, 0, 1, 2, 3, 4, 0, 1]
        elif NS4: SL = [s % 4 for s in range(16)]
        elif P: SL = [0, 1, 2, 3, 4, 0, 1, 2, 3, 0, 1, 2, 3, 0, 1, 2]
        else: SL = [0, 1, 2, 3, 0, 1, 2, 3, 4, 0, 1, 2, 3, 4, 0, 1]
        def free_after(s):
            if s == 8 and D8AT >= 0: return -1
            prev = [t for t in range(s) if SL[t] == SL[s]]
            if NS4 and D8AT >= 0: return max(prev[-1] + 2, s - LEAD2) if prev else max(0, s - 2)
            return max(prev[-1] + 2, s - 3) if prev else max(0, s - 3)
        vF, vFA, vFB, vFR = 28, 29, 30, 31
        def dma(s):
            slot = SL[s] * ASLOT
            tag = ("d", s)
            G = []
            pre = [("s", "s_add_u32 s48, s50, %d" % (s % 8)), ("s", "s_and_b32 s48, s48, 7"),
                   ("s", "s_mul_i32 s49, s48, %d" % (64 * (3072 if s < 8 else 3584)))]
            def grp(m0, off, txt): G.append([("s", "s_add_u32 m0, %s, %d" % (m0, off)), ("s", "s_nop 0"), ("v", txt)])
            if s < 8:
                pre.append(("s", "s_lshl_b32 s48, s48, 7"))
                for i in range(2):
                    grp("s56", slot, "buffer_load_dwordx4 v%d, s[20:23], s48 offen offset:%d lds" % (vD + i, 1024 * i))
                grp("s57", slot, "buffer_load_dwordx4 v%d, s[24:27], s49 offen lds" % (vD + 2))
                if not P:
                    grp("s57", slot + 8192, "buffer_load_dwordx4 v%d, s[24:27], s49 offen lds" % (vD + 2))
                    G[-1][1] = ("s", "s_add_u32 s49, s49, s51")
            elif P:
                for i in range(4):
                    up = i // 2
                    grp("s56", slot + up * 16384, "buffer_load_dwordx4 v%d, s[%d:%d], s49 offen offset:%d lds" % (vD + 3 + i, 40 + 4 * up, 43 + 4 * up, 1024 * (i % 2)))
            else:
                for i in range(3):
                    grp("s59", slot, "buffer_load_dwordx4 v%d, s[40:43], s49 offen offset:%d lds" % (vD + 3 + i, 1024 * i))
            last = None
            for g in G:
                if g[0][1] == last: del g[0:2]
                else: last = g[0][1]
            G[0] = [G[0][0]] + pre + G[0][2:]
            return [[(k, t, tag) for (k, t) in g] for g in G]
        def flat(G): return [x for g in G for x in g]
        def emit(it):
            k, t, tag = it
            if k == "v": vm.issue(t, tag)
            elif k == "l": lg.issue(t, tag)
            elif k == "f": t()
            else: a(t)
        gi0, gc0 = gate_code(a, vm, "s[28:31]", "s[20:23]", "s39", X + 112)
        for it in flat(dma(0)): emit(it)
        srd(a, 28, 12, 0, 1024)
        a("s_lshl_b32 s60, s19, 3")
        a("s_add_u32 s60, s60, s3")
        a("s_lshl_b32 s39, s60, 10")
        gi0()
        a("s_barrier")
        for it in flat(dma(1)): emit(it)
        if hook and HOOKG and not LATE: hook(kind, vm, "early")
        a("s_mul_i32 s53, s54, 28")
        if P:
            a("s_cmp_eq_u32 s55, 0")
            a("s_cselect_b32 s38, 0, 20")
        else:
            a("s_cmp_eq_u32 s55, 1")
            a("s_cselect_b32 s38, 8, 14")
        a("s_add_u32 s53, s53, s38")
        a("s_lshl_b32 s38, s53, 5")
        a("s_sub_u32 s39, %d, s38" % (512 * 3584))
        if P:
            srd(a, 40, 8, "s38", "s39")
            srd(a, 44, 10, "s38", "s39")
            a("v_lshlrev_b32 v21, 1, v20")
            a("v_and_b32 v22, 15, v0")
            a("v_xor_b32 v21, v21, v22")
            a("s_lshl_b32 s58, s3, 3")
            a("v_add_u32 v22, s58, v20")
            a("v_mul_u32_u24 v22, 3584, v22")
            a("v_lshl_add_u32 v%d, v21, 4, v22" % (vD + 3))
            a("v_xor_b32 v21, 8, v21")
            a("v_lshl_add_u32 v%d, v21, 4, v22" % (vD + 5))
            a("v_add_u32 v%d, %d, v%d" % (vD + 4, 4 * 3584 - 1024, vD + 3))
            a("v_add_u32 v%d, %d, v%d" % (vD + 6, 4 * 3584 - 1024, vD + 5))
        else:
            up = 1 if kind == "R1" else 0
            srd(a, 40, 8 + 2 * up, "s38", "s39")
            a("s_mul_i32 s59, s36, 3072")
            if up: a("s_add_u32 s59, s59, 12320")
            a("s_mul_i32 s38, s36, 192")
            for i in range(3):
                a("v_add_u32 v21, s38, v0")
                if i: a("v_add_u32 v21, %d, v21" % (64 * i))
                a("v_mul_u32_u24 v22, 5462, v21")
                a("v_lshrrev_b32 v22, 16, v22")
                a("v_mul_u32_u24 v22, %d, v22" % (3584 - 192))
                a("v_lshl_add_u32 v%d, v21, 4, v22" % (vD + 3 + i))
                if i: a("v_subrev_u32 v%d, %d, v%d" % (vD + 3 + i, 1024 * i, vD + 3 + i))
        if D8AT == 1:
            a("s_barrier")
            for it in flat(dma(8)): emit(it)
        a("v_and_b32 v24, 31, v0")
        a("v_lshrrev_b32 v25, 5, v0")
        a("v_bfe_u32 v26, v0, 1, 3")
        a("v_xor_b32 v26, v25, v26")
        a("v_lshlrev_b32 v26, 4, v26")
        a("v_lshl_add_u32 v26, v24, 7, v26")
        a("s_lshl_b32 s38, s36, 12")
        a("v_add_u32 v%d, s38, v26" % vAX)
        a("v_bfe_u32 v21, v0, 2, 2")
        a("v_lshl_add_u32 v26, v25, 3, v21")
        a("v_bfe_u32 v27, v0, 4, 1")
        a("v_and_b32 v28, 3, v0")
        a("v_lshlrev_b32 v28, 3, v28")
        a("v_lshl_add_u32 v29, v26, 7, v28")
        a("v_lshl_add_u32 v29, v27, 5, v29")
        a("v_bfe_u32 v30, v0, 3, 1")
        if P: a("v_xor_b32 v30, s37, v30")
        a("v_lshl_add_u32 v29, v30, 6, v29")
        a("v_add_u32 v%d, %d, v29" % (vAW1, 16384 + (8192 if kind == "R1" else 0)))
        if not P: a("v_xor_b32 v%d, 64, v%d" % (vAW1 + 1, vAW1))
        s8 = SL[8] * ASLOT
        if P:
            a("v_xor_b32 v30, s37, v27")
            a("v_lshl_add_u32 v30, v30, 2, v21")
            a("v_lshl_add_u32 v29, v30, 5, v28")
            a("v_lshl_add_u32 v29, v26, 8, v29")
            a("v_lshl_add_u32 v29, v27, 14, v29")
            a("v_add_u32 v%d, %d, v29" % (vAW2, s8))
            for n in range(1, 4): a("v_xor_b32 v%d, %d, v%d" % (vAW2 + n, 32 * n, vAW2))
        else:
            a("v_mul_u32_u24 v29, 192, v26")
            a("v_add_u32 v29, v29, v28")
            a("v_mul_u32_u24 v30, 12320, v27")
            a("v_add_u32 v29, v29, v30")
            a("v_add_u32 v%d, %d, v29" % (vAW2, s8 + (96 if kind == "R1" else 0)))
        a("s_lshl_b32 s90, s18, 2")
        a("s_add_u32 s90, s90, s36")
        a("s_lshl_b32 s91, s90, 10")
        if kind != "R1":
            a("s_cmp_lt_u32 s19, 8")
            a("s_cselect_b32 s92, %s, 1.0" % hx(f2u(0.25 * LOG2E)))
            a("s_cselect_b32 s38, 0, 12")
            a("s_mov_b32 s93, s92")
            a("v_lshrrev_b32 v29, 1, v24")
            a("v_xor_b32 v29, v24, v29")
            a("v_and_b32 v29, 4, v29")
            a("v_mul_u32_u24 v29, 3, v29")
            a("v_and_b32 v29, s38, v29")
            a("v_xor_b32 v29, v24, v29")
            a("v_lshlrev_b32 v29, 4, v29")
            a("v_lshl_add_u32 v%d, v25, 9, v29" % vST)
            a("s_lshl_b32 s38, s19, 18")
            a("s_add_u32 s91, s91, s38")
            if P:
                a("s_lshl_b32 s38, s37, 17")
                a("s_add_u32 s91, s91, s38")
        else:
            a("v_and_b32 v29, 15, v0")
            a("v_lshlrev_b32 v29, 4, v29")
            a("v_lshl_add_u32 v29, v25, 8, v29")
            a("v_lshl_add_u32 v%d, v27, 16, v29" % vST)
            a("s_lshl_b32 s38, s54, 1")
            a("s_add_u32 s38, s38, s55")
            a("s_sub_u32 s38, s38, 1")
            a("s_lshl_b32 s38, s38, 18")
            a("s_add_u32 s91, s91, s38")
            a("s_add_u32 s91, s91, %s" % hx(VF))
        def gc():
            o = gc0()
            if LATE:
                a("v_mov_b32 v30, v%d" % o); a("v_mov_b32 v31, v%d" % (o + 1))
                srd(a, 28, 14, 0, 6 * MB)
            else: gst(o)
        def gst(o):
            srd(a, 28, 14, GG, 16384)
            a("s_lshl_b32 s39, s18, 7")
            a("s_add_u32 s38, s60, s39")
            a("s_lshl_b32 s38, s38, 3")
            a("v_mov_b32 v20, 0")
            a("s_mov_b32 exec_lo, 0")
            a("s_mov_b32 exec_hi, 0x80000000")
            vm.issue("buffer_store_dwordx2 %s, v20, s[28:31], s38 offen%s" % (vr(o, 2), SC), "gst")
            a("s_mov_b64 exec, -1")
            srd(a, 28, 14, 0, 6 * MB)
        if P: P1 = [3]; P2 = [0, 1, 2, 3]
        else: P1 = [0, 1]; P2 = [2, 3, 0]
        def wf(g, n):
            if g < 32: return WF + 8 * (g % 4) + 4 * n
            return WF + 16 * (g % 2) + 4 * n
        def reads(g):
            s, ks = g // 4, g % 4
            L = []
            if ks == 0 and s not in (0, 8):
                d = (SL[s] - SL[s - 1]) * ASLOT
                if s < 8: R = [vAX] + [vAW1 + n for n in range(len(P1))]
                else: R = [vAW2 + n for n in range(4 if P else 1)]
                for r in R: L.append(("s", "v_add_u32 v%d, %s, v%d" % (r, hx(d), r), None))
            if g < 32:
                if ks: L.append(("s", "v_xor_b32 v%d, %d, v%d" % (vT, 32 * ks, vAX), None))
                L.append(("l", "ds_read_b128 %s, v%d" % (vr(X + 4 * g, 4), vT if ks else vAX), g))
                for n in range(len(P1)):
                    for q in range(2):
                        L.append(("l", "ds_read_b64_tr_b16 %s, v%d offset:%d" % (vr(wf(g, n) + 2 * q, 2), vAW1 + n, (16 * ks + 4 * q) * 128), g))
            else:
                for n in range(len(P2)):
                    for q in range(2):
                        if P: ad, off = vAW2 + n, (16 * ks + 4 * q) * 256
                        else: ad, off = vAW2, (16 * ks + 4 * q) * 192 + n * 32
                        L.append(("l", "ds_read_b64_tr_b16 %s, v%d offset:%d" % (vr(wf(g, n) + 2 * q, 2), ad, off), g))
            return L
        def mfmas(g):
            L = []
            x = vr(X + 4 * (g % 32), 4)
            for n, ac in enumerate(P1 if g < 32 else P2):
                d = vr(ACC + 16 * ac, 16); w = vr(wf(g, n), 4)
                A, B = (x, w) if (kind == "R1" and g < 32) else (w, x)
                L.append("v_mfma_f32_32x32x16_bf16 %s, %s, %s, %s" % (d, A, B, "0" if g in (0, 32) else d))
            return L
        def epi1():
            a("s_nop 7")
            for n, ac in enumerate(P1):
                b = ACC + 16 * ac
                if kind != "R1":
                    for i in range(8): a("v_pk_mul_f32 %s, %s, s[92:93]" % (vr(b + 2 * i, 2), vr(b + 2 * i, 2)))
                for i in range(8): a("v_cvt_pk_bf16_f32 v%d, v%d, v%d" % (b + i, b + 2 * i, b + 2 * i + 1))
                if kind != "R1":
                    a("s_add_u32 s94, s91, 0x10000")
                    vm.issue("buffer_store_dwordx4 %s, v%d, s[28:31], s91 offen%s" % (vr(b, 4), vST, QSC), "qkv") if not NOST else None
                    vm.issue("buffer_store_dwordx4 %s, v%d, s[28:31], s94 offen%s" % (vr(b + 4, 4), vST, QSC), "qkv") if not NOST else None
                else:
                    for j in range(2):
                        vm.issue("buffer_store_dwordx4 %s, v%d, s[28:31], s91 offen offset:%d%s" % (vr(b + 4 * j, 4), vST, j * 512, QSC), "qkv") if not NOST else None
                if n + 1 < len(P1): a("s_add_u32 s91, s91, 0x20000")
        def barrier(s):
            if hook and s == PUBB: vm.wait(("d", s), "qkv", "gst", "sent")
            else: vm.wait(("d", s))
            a("s_barrier")
            if hook and s == PUBB: hook(kind, vm, "pub")
        def signal(s):
            a("v_mov_b32 v%d, %d" % (vF, s))
            if hook and s == PUBB: vm.wait(("d", s), "qkv", "gst", "sent")
            else: vm.wait(("d", s))
            lg.issue("ds_write_b32 v%d, v%d" % (vFA, vF), "fw")
        def peek(): lg.issue("ds_read_b32 v%d, v%d" % (vFR, vFB), "fr")
        def check(s):
            lab = "AB_%s_F%d" % (kind, s)
            lg.wait("fr")
            a("v_cmp_gt_u32 vcc, %d, v%d" % (s, vFR))
            a("s_mov_b32 s58, 0x40000")
            a("s_cbranch_vccnz %s" % lab)
            a.label(lab + "_OK")
            if hook and s == PUBB: hook(kind, vm, "pub")
            def slow():
                a.label(lab)
                a("ds_read_b32 v%d, v%d" % (vFR, vFB))
                a("s_sub_u32 s58, s58, 1")
                a("s_waitcnt lgkmcnt(0)")
                a("v_cmp_gt_u32 vcc, %d, v%d" % (s, vFR))
                a("s_cbranch_scc1 %s_OK" % lab)
                a("s_cbranch_vccnz %s" % lab)
                a("s_branch %s_OK" % lab)
            OUTL.append(slow)
        if FSYNC:
            a("s_lshl_b32 s38, s3, 8")
            a("s_add_u32 s38, s38, %d" % AFLG)
            a("v_lshl_add_u32 v%d, v0, 2, s38" % vFA)
            a("v_and_b32 v%d, 7, v0" % vFB)
            a("v_lshlrev_b32 v%d, 8, v%d" % (vFB, vFB))
            a("v_lshl_add_u32 v%d, v0, 2, v%d" % (vFB, vFB))
            a("v_add_u32 v%d, %d, v%d" % (vFB, AFLG, vFB))
            a("v_mov_b32 v%d, 0" % vF)
            a("ds_write_b32 v%d, v%d" % (vFA, vF))
            a("s_waitcnt lgkmcnt(0)")
        barrier(0)
        gen1.stamp(a, 2)
        for it in reads(0) + reads(1): emit(it)
        pend = []
        for t in range(2, 16):
            if free_after(t) == 0: pend += dma(t)
            if t == D8AT and free_after(t) == 0: pend += dma(8)
        chk = {s: (4 * s - 2 if s < 8 else 4 * s - 1) for s in range(1, 16)}
        sig = {chk[s] - (SIG1 if s < 8 else SIG2): s for s in chk}
        pk = {chk[s] - 1: s for s in chk}
        for g in range(64):
            nxt = []
            if g < 30: nxt = [g + 2]
            elif g == 30: nxt = []
            elif g < 63: nxt = [g + 1]
            O = []
            bar = None
            for g2 in nxt:
                if g2 % 4 == 0: bar = g2 // 4
                O += reads(g2)
            if bar is not None:
                assert not any(it[2] == ("d", bar) for grp in pend for it in grp), (g, bar)
                for t in range(2, 16):
                    if free_after(t) == bar:
                        pend += dma(t)
                        if t == D8AT and bar > 0: pend += dma(8)
            for _ in range(2 if len(pend) > 4 else 1):
                if pend: O += pend.pop(0)
            if g == GCG: O.append(("f", gc, None))
            if hook and g == 40: O.append(("f", lambda: hook(kind, vm, "setup"), None))
            if hook and g == POLLG: O.append(("f", lambda: hook(kind, vm, "poll"), None))
            if hook and HOOKG: O += hook(kind, vm, g) or []
            if FSYNC and g in sig:
                assert not any(it[2] == ("d", sig[g]) for grp in pend for it in grp), (g, sig[g])
                assert not any(it[2] == ("d", sig[g]) for it in O), (g, sig[g])
                O = [("f", lambda s=sig[g]: signal(s), None)] + O
            if FSYNC and g in pk: O.append(("f", peek, None))
            M = mfmas(g)
            lg.wait(g)
            if g in GST and gen1.SMAP is None: gen1.stamp(a, 3 + GST.index(g))
            gen1.stamp(a, "g%d" % g)
            if g == 32:
                for m in M[:-1]: a(m)
                for it in O: emit(it)
                epi1()
                a("s_nop 1")
                a(M[-1])
                if LATE:
                    gst(30); hook(kind, vm, "early")
                continue
            n = len(M); per = max(1, -(-len(O) // n))
            for i, m in enumerate(M):
                a(m)
                if i == 0 and bar is not None:
                    if FSYNC: check(bar)
                    else: barrier(bar)
                for it in O[i * per:(i + 1) * per]: emit(it)
        gen1.stamp(a, 8 if not hook else 4)
        if hook: hook(kind, vm, "pre_h")
        srd(a, 32, 14, HF, 7 * MB)
        a("s_mul_i32 s94, s90, 112")
        a("s_add_u32 s94, s94, s53")
        if P:
            a("s_lshl_b32 s95, s37, 2")
            a("s_add_u32 s94, s94, s95")
        elif kind == "R1": a("s_add_u32 s94, s94, 3")
        a("s_lshl_b32 s94, s94, 10")
        a("s_mov_b32 s92, %s" % hx(f2u(-LOG2E))); a("s_mov_b32 s93, s92")
        a("s_mov_b32 s96, 1.0"); a("s_mov_b32 s97, 1.0")
        a("s_nop 2")
        for n, ac in enumerate(P2):
            G = ACC + 16 * ac; U = G + 8; E = WF + 8 * n
            for i in range(4): a("v_pk_mul_f32 %s, %s, s[92:93]" % (vr(E + 2 * i, 2), vr(G + 2 * i, 2)))
            for i in range(8): a("v_exp_f32 v%d, v%d" % (E + i, E + i))
            for i in range(4): a("v_pk_mul_f32 %s, %s, %s" % (vr(G + 2 * i, 2), vr(G + 2 * i, 2), vr(U + 2 * i, 2)))
            for i in range(4): a("v_pk_add_f32 %s, %s, s[96:97]" % (vr(E + 2 * i, 2), vr(E + 2 * i, 2)))
            for i in range(8): a("v_rcp_f32 v%d, v%d" % (E + i, E + i))
            a("s_nop 0")
            for i in range(4): a("v_pk_mul_f32 %s, %s, %s" % (vr(G + 2 * i, 2), vr(G + 2 * i, 2), vr(E + 2 * i, 2)))
            for i in range(4): a("v_cvt_pk_bf16_f32 v%d, v%d, v%d" % (G + i, G + 2 * i, G + 2 * i + 1))
            vm.issue("buffer_store_dwordx4 %s, v1, s[32:35], s94 offen offset:%d%s" % (vr(G, 4), n * 1024, SC), "h")
        tail(kind, vm)
    stream("R0")
    a.label("AB_R1")
    stream("R1")
    a.label("AB_P")
    stream("P")

def ka(a):
    name = "ka_kernel"
    header(a, name)
    ab_prologue(a, "KA_END")
    def tail(kind, vm):
        gen1.stamp_end(a, 0, 14, 5)
        a("s_endpgm")
    phase_ab(a, tail)
    a.label("KA_END")
    a("s_endpgm")
    return name, 256, "grid=(256,1,1) block=(512,1,1) lds=%d" % (ANS * ASLOT)

if __name__ == "__main__":
    if "stamp" in sys.argv: gen1.STAMP = True
    for x in sys.argv:
        if x.startswith("rot="): ROT = int(x[4:])
    if "nosc" in sys.argv: QSC = ""
    if "nost" in sys.argv: NOST = True
    for x in sys.argv:
        if x.startswith("gst="): GST = [int(y) for y in x[4:].split(",")]
    build(sys.argv[1], [ka, k2, lambda a: kgemm(a, "kd_kernel", "KD", 48, HF, 112, 4, False), lambda a: kgemm(a, "k3_kernel", "K3", 16, OF, 32, 8, True)])
```

```python
import sys
sys.path.insert(0, "gen")
import gen1, gen3
from gen1 import *
from asmlib import *
import ab3
from gen3 import ab_prologue, SC
from ab3 import phase_ab
from gen5 import build1

FL = 17 * MB
RING = 65536; SCR = 98304
KVROT = True
LATE = True
WARM = True
OSC = ""
LADDER = True
XP = []
HPUB = 1
NAME = "gated_mix__softmax_full_mha__swiglu_ffn__prompt_kernel"

def kf(a):
    header(a, NAME)
    Q = 128; K = [144, 148]; V = [152, 160]; S = [32, 48]; O = 64
    WF = 168; DA = 184; HB_ = 216
    vV, vIX, vP, vPO, vLD = 18, 19, 20, 21, 22
    vWA, vWB, vT0, vT1, vZ = 24, 25, 26, 27, 28
    vW0 = 23
    ab_prologue(a, "KF_END")
    def spin(lab, expect, vm, leader_only=False, sr_="s[84:87]", so="0"):
        if vm: vm.wait("poll")
        a("v_cmp_le_u32 vcc, %d, v%d" % (expect, vP))
        a("s_mov_b32 s38, 0x8000")
        if leader_only:
            a("s_cmp_lg_u32 s3, 0")
            a("s_cbranch_scc1 %s_OK" % lab)
        a("s_cmp_eq_u64 vcc, -1")
        a("s_cbranch_scc1 %s_OK" % lab)
        a.label(lab)
        a("s_sleep 4")
        a("buffer_load_dword v%d, v%d, %s, %s offen sc1" % (vP, vPO, sr_, so))
        a("s_sub_u32 s38, s38, 1")
        a("s_waitcnt vmcnt(0)")
        a("v_cmp_le_u32 vcc, %d, v%d" % (expect, vP))
        a("s_cselect_b32 s39, 1, 0")
        a("s_cmp_eq_u64 vcc, -1")
        a("s_cselect_b32 s39, 1, s39")
        a("s_cmp_eq_u32 s39, 0")
        a("s_cbranch_scc1 %s" % lab)
        a.label(lab + "_OK")
    def poll(vm, sr_="s[84:87]"): vm.issue("buffer_load_dword v%d, v%d, %s, 0 offen sc1" % (vP, vPO, sr_), "poll")
    def publish(vm, soff):
        a("v_mov_b32 v%d, 1" % vP)
        a("s_mov_b64 exec, 1")
        vm.issue("buffer_atomic_add v%d, v%d, s[84:87], %s offen sc1" % (vP, vLD, soff), "atom")
        a("s_mov_b64 exec, -1")
    def ldK(vm, b, wrap=True):
        vm.issue("buffer_load_dwordx4 %s, v1, s[8:11], s26 offen%s" % (vr(K[b], 4), SC), ("K", b))
        a("s_add_u32 s26, s26, 1024")
        if wrap: a("s_and_b32 s26, s26, 0x3fff")
    def ldV(vm, b, wrap=True):
        a("s_mov_b64 exec, s[30:31]")
        vm.issue("buffer_load_dwordx4 %s, v%d, s[4:7], s27 offen%s" % (vr(V[b], 4), vV, SC), ("V", b))
        vm.issue("buffer_load_dwordx4 %s, v%d, s[4:7], s27 offen offset:512%s" % (vr(V[b] + 4, 4), vV, SC), ("V", b))
        a("s_mov_b64 exec, -1")
        a("s_add_u32 s27, s27, 1024")
        if wrap: a("s_and_b32 s27, s27, 0x3fff")
    def cap(fn):
        save = a.lines; a.lines = []
        fn(); L = a.lines; a.lines = save
        return [("s", l.strip(), None) for l in L]
    def early(vm):
        a("s_and_b32 s89, s2, 7")
        a("s_lshl_b32 s89, s89, 2")
        a("s_bfe_u32 s38, s2, 0x20003")
        a("s_add_u32 s89, s89, s38")
        a("s_lshr_b32 s88, s2, 5")
        a("s_lshl_b32 s39, s88, 3")
        a("s_add_u32 s38, s3, s39")
        a("s_lshl_b32 s38, s38, 5")
        a("s_add_u32 s38, s38, s89")
        a("s_lshl_b32 s61, s38, 10")
        srd(a, 84, 14, OF, 2 * MB)
        for i in range(4): a("v_mov_b32 v%d, -1" % (24 + i))
        vm.issue("buffer_store_dwordx4 v[24:27], v1, s[84:87], s61 offen%s" % SC, "sent")
        srd(a, 80, 14, FL, 65536)
        a("s_lshl_b32 s39, s18, 4")
        a("s_add_u32 s39, s39, s19")
        a("s_lshl_b32 s39, s39, 7")
        a("s_cmp_eq_u32 s3, 0")
        a("s_cselect_b32 s38, 0, 0x10000")
        a("v_mov_b32 v28, 0")
        a("v_mov_b32 v%d, s38" % vLD)
        a("s_mov_b64 exec, 1")
        vm.issue("buffer_store_dword v28, v%d, s[80:83], s39 offen%s" % (vLD, SC), "sent")
        a("s_add_u32 s39, s39, 32768")
        vm.issue("buffer_store_dword v28, v%d, s[80:83], s39 offen%s" % (vLD, SC), "sent")
        a("s_mov_b64 exec, -1")
        srd(a, 84, 100, 0, 256)
    def setup1():
        a("v_and_b32 v%d, 15, v0" % vPO)
        a("v_lshlrev_b32 v%d, 4, v%d" % (vPO, vPO))
    def setup2():
        a("v_and_b32 v%d, 15, v0" % vV)
        a("v_lshlrev_b32 v%d, 4, v%d" % (vV, vV))
        a("v_lshrrev_b32 v%d, 5, v0" % vIX)
        a("v_lshl_add_u32 v%d, v%d, 8, v%d" % (vV, vIX, vV))
        a("s_lshl_b32 s24, s89, 16")
        a("s_lshl_b32 s25, s88, 3")
        a("s_lshl_b32 s26, s22, 2")
        a("s_add_u32 s25, s25, s26")
        a("s_lshl_b32 s27, s23, 14")
        a("s_add_u32 s27, s27, s24")
        a("s_add_u32 s26, s27, %s" % hx(KF))
        srd(a, 8, 14, "s26", 16384)
        a("s_add_u32 s26, s27, %s" % hx(VF))
        srd(a, 4, 14, "s26", 16384)
        a("s_lshl_b32 s26, s88, 11")
        if not KVROT: a("s_mov_b32 s26, 0")
        a("s_mov_b32 s27, s26")
        srd(a, 52, 14, "s24", 65536)
    def setup2b():
        a("v_and_b32 v%d, 31, v0" % vIX)
        a("v_cmp_eq_u32 s[96:97], 16, v%d" % vIX)
        a("v_mov_b32 v%d, 0x3f803f80" % vIX)
        a("s_mov_b32 s30, 0x0000ffff"); a("s_mov_b32 s31, 0x0000ffff")
        a("v_cndmask_b32 v%d, 0, v%d, s[96:97]" % (V[0], vIX))
        for i in range(1, 16): a("v_mov_b32 v%d, v%d" % (V[0] + i, V[0]))
        a("v_mov_b32 v%d, 0xdddddddd" % vIX)
    def setup3():
        a("s_lshr_b32 s22, s3, 2")
        a("s_and_b32 s23, s3, 3")
        a("v_bfe_u32 v2, v0, 4, 1")
        a("v_lshlrev_b32 v5, 2, v2")
        a("v_and_b32 v6, 7, v0")
        a("v_xor_b32 v5, v5, v6")
        a("v_lshlrev_b32 v5, 4, v5")
        a("v_lshrrev_b32 v6, 3, v0")
        a("v_lshl_add_u32 v%d, v6, 10, v5" % vW0)
        a("s_lshl_b32 s38, s22, 13")
        a("v_add_u32 v%d, s38, v%d" % (vWA, vW0))
        a("v_add_u32 v%d, %d, v%d" % (vWB, 16384 - 2048, vWA))
        a("v_lshrrev_b32 v5, 5, v0")
        a("v_bfe_u32 v6, v0, 2, 2")
        a("v_lshl_add_u32 v5, v5, 2, v6")
        a("v_bfe_u32 v6, v0, 1, 1")
        a("v_lshl_add_u32 v6, v2, 1, v6")
        a("v_bfe_u32 v3, v0, 3, 1")
        a("v_lshl_add_u32 v6, v3, 2, v6")
        a("v_lshlrev_b32 v6, 4, v6")
        a("v_and_b32 v3, 1, v0")
        a("v_lshl_add_u32 v6, v3, 3, v6")
        a("v_lshl_add_u32 v6, v5, 7, v6")
        a("s_lshl_b32 s16, s23, 12")
        a("s_add_u32 s16, s16, %d" % RING)
        a("v_add_u32 v%d, s16, v6" % vT0)
        a("v_xor_b32 v%d, 64, v%d" % (vT1, vT0))
        a("s_lshl_b32 s38, s22, 10")
        a("s_add_u32 s17, s16, s38")
        a("s_and_b32 s20, s89, 3")
        a("s_add_u32 s21, s20, s88")
        a("s_cmp_ge_u32 s21, 6")
        a("s_cselect_b32 s90, 6, 0")
        a("s_sub_u32 s21, s21, s90")
        a("s_lshl_b32 s21, s21, 2")
        a("s_mov_b32 s90, 0x32dc7632")
        a("s_mov_b32 s91, 0xdc76")
        a("s_lshr_b64 s[90:91], s[90:91], s21")
        a("s_and_b32 s36, s90, 0xffffff")
        a("s_lshl_b32 s20, s20, 1")
        a("s_add_u32 s21, s20, s88")
        a("s_and_b32 s21, s21, 7")
        a("s_lshl_b32 s21, s21, 2")
        a("s_mov_b32 s90, 0xba985410")
        a("s_mov_b32 s91, s90")
        a("s_lshr_b64 s[90:91], s[90:91], s21")
        a("s_mov_b32 s91, s36")
    chunks = {}
    def hook(kind, vm, where):
        if where == "init": chunks.clear()
        elif where == "early": early(vm)
        elif where == "pub":
            a("s_lshl_b32 s94, s19, 4")
            publish(vm, "s94")
        elif where == "poll":
            assert not chunks["L"] and not chunks["V"], (len(chunks["L"]), len(chunks["V"]))
            poll(vm)
        elif where == "ld":
            spin("KF_SQ_" + kind, 16, vm)
            gen1.stamp(a, "sq1")
            for s in range(4):
                a("s_add_u32 s28, s23, %d" % s)
                a("s_and_b32 s28, s28, 3")
                a("s_add_u32 s28, s28, s25")
                a("s_lshl_b32 s28, s28, 10")
                vm.issue("buffer_load_dwordx4 %s, v1, s[52:55], s28 offen%s" % (vr(Q + 4 * s, 4), SC), "Q")
                if s == 0: ldK(vm, 0)
            ldV(vm, 0); ldK(vm, 1); ldV(vm, 1)
        elif where == "warm":
            if not WARM: return
            srd(a, 28, 76, 0, 1792 * 1024)
            a("s_lshl_b32 s94, s2, 3")
            a("s_add_u32 s94, s94, s3")
            a("s_mul_i32 s96, s94, 896")
            a("v_lshlrev_b32 v29, 7, v0")
            a("s_mov_b64 exec, 0x7f")
            vm.issue("buffer_load_dword v17, v29, s[28:31], s96 offen ; dummy", "pf")
            srd(a, 28, 78, 0, 512 * 1024)
            a("s_lshl_b32 s96, s94, 8")
            a("s_mov_b64 exec, 3")
            vm.issue("buffer_load_dword v17, v29, s[28:31], s96 offen ; dummy", "pf")
            a("s_mov_b64 exec, -1")
        elif isinstance(where, tuple):
            g, n = where
            if g < 44: return []
            if "L" not in chunks:
                chunks["L"] = cap(setup3) + cap(setup2); chunks["V"] = cap(setup2b) + cap(setup1)
            key = "L" if chunks["L"] else "V"
            if key == "V" and g < 74: return []
            while n < len(chunks[key]) and chunks[key][n][1].startswith(("s_cselect", "s_addc")): n += 1
            L = chunks[key][:n]; chunks[key] = chunks[key][n:]
            return L
        elif where == "pre_h":
            a("s_setprio 3")
    ENTRY = ["Q", ("K", 0), "Q", "Q", "Q", ("V", 0), ("V", 0), ("K", 1), ("V", 1), ("V", 1), "h", "h"]
    def tail(kind, vm):
        assert vm.ops[-12:] == ENTRY, vm.ops
        if kind != "P": a("s_branch KF_C")
    a("s_load_dwordx2 s[100:101], s[0:1], 72")
    a("s_load_dwordx2 s[76:77], s[0:1], 48")
    a("s_load_dwordx2 s[78:79], s[0:1], 16")
    phase_ab(a, tail, hook)
    a.label("KF_C")
    gen1.stamp(a, 5)
    vm = VM(a); vm.ops = list(ENTRY)
    lg = VM(a, "lgkmcnt", 15)
    a("s_load_dwordx2 s[58:59], s[0:1], 64")
    def QK(sl, kb, sb): a("v_mfma_f32_32x32x16_bf16 %s, %s, %s, 0" % (vr(S[sb], 16), vr(K[kb], 4), vr(Q + 4 * sl, 4)))
    def PV(sl, vb, sb, j): a("v_smfmac_f32_32x32x32_bf16 %s, %s, %s, v%d" % (vr(O + 16 * sl, 16), vr(V[vb] + 4 * j, 4), vr(S[sb] + 8 * j, 8), vIX))
    def ZERO(r): a("v_mfma_f32_32x32x16_bf16 %s, %s, %s, 0" % (vr(r, 16), vr(vZ, 4), vr(vZ, 4)))
    for i in range(4): a("v_mov_b32 v%d, 0" % (vZ + i))
    vm.wait(("K", 0))
    QK(0, 0, 0)
    for i in range(4): ZERO(O + 16 * i)
    a("s_lshr_b32 s38, s89, 1")
    a("s_lshl_b32 s38, s38, 11")
    a("v_and_b32 v%d, 15, v0" % vPO)
    a("v_lshl_add_u32 v%d, v%d, 7, s38" % (vPO, vPO))
    a("s_mov_b32 s96, 32768")
    a("s_lshl_b32 s44, s89, 1")
    a("s_add_u32 s44, s44, s22")
    a("s_mul_i32 s38, s44, 112")
    a("s_mul_i32 s39, s23, 28")
    a("s_add_u32 s38, s38, s39")
    a("s_lshl_b32 s38, s38, 10")
    a("s_add_u32 s38, s38, %s" % hx(HF))
    srd(a, 32, 14, "s38", 28 * 1024)
    a("s_lshl_b32 s38, s39, 14")
    a("s_lshl_b32 s45, s88, 7")
    a("s_add_u32 s38, s38, s45")
    a("s_sub_u32 s39, %d, s38" % (1792 * 1024))
    a("s_waitcnt lgkmcnt(0)")
    srd(a, 48, 76, "s38", "s39")
    srd(a, 40, 78, 0, 512 * 1024)
    FLG = 161792
    vF, vFA, vFB, vFR = 232, 233, 234, 235
    vRW = 236
    def ldH(b, k, so="s20"):
        vm.issue("buffer_load_dwordx4 %s, v1, s[32:35], %s offen offset:%d%s" % (vr(HB_ + 8 * b + 4 * k, 4), so, 1024 * k, SC), ("H", b, k))
    def ldW(b, k):
        if k == 0:
            a("s_and_b32 s20, s90, 15")
            a("s_lshr_b64 s[90:91], s[90:91], 4")
            a("s_add_u32 m0, s17, %d" % (b * 16384))
            a("s_lshl_b32 s21, s20, 15")
            a("s_lshl_b32 s20, s20, 11")
        vm.issue("buffer_load_dwordx4 v%d, s[48:51], s21 offen offset:%d lds" % (vWA + k, 2048 * k), ("W", b))
    def rdW(b, k):
        for ft in range(2):
            for q in range(2):
                lg.issue("ds_read_b64_tr_b16 %s, v%d offset:%d" % (vr(WF + 8 * k + 4 * ft + 2 * q, 2), vT0 + ft, b * 16384 + k * 2048 + q * 1024), ("w", k, ft))
    def DM(b, n):
        k, ft = n // 2, n % 2
        lg.wait(("w", k, ft))
        vm.wait(("H", b, k))
        d = vr(DA + 16 * ft, 16)
        a("v_mfma_f32_32x32x16_bf16 %s, %s, %s, %s" % (d, vr(WF + 8 * k + 4 * ft, 4), vr(HB_ + 8 * b + 4 * k, 4), d))
    def signal(b):
        a("v_add_u32 v%d, 1, v%d" % (vF, vF))
        vm.wait(("W", b))
        lg.issue("ds_write_b32 v%d, v%d" % (vFA, vF), "fw")
    def peek(): lg.issue("ds_read_b32 v%d, v%d" % (vFR, vFB), "fr")
    def check(lab):
        lg.wait("fr")
        a("v_cmp_lt_u32 vcc, v%d, v%d" % (vFR, vF))
        a("s_mov_b32 s38, 0x40000")
        a("s_cbranch_vccnz %s" % lab)
        a.label(lab + "_OK")
        def slow():
            a.label(lab)
            a("s_setprio 0")
            a("s_sleep 1")
            a("ds_read_b32 v%d, v%d" % (vFR, vFB))
            a("s_sub_u32 s38, s38, 1")
            a("s_waitcnt lgkmcnt(0)")
            a("v_cmp_lt_u32 vcc, v%d, v%d" % (vFR, vF))
            a("s_cbranch_scc1 %s_GO" % lab)
            a("s_cbranch_vccnz %s" % lab)
            a.label(lab + "_GO")
            a("s_setprio 3")
            a("s_branch %s_OK" % lab)
        outl[lab] = slow
    outl = {}
    def keytile(b, first=False, down=False, loop=None, top=None, extra=None, pre=False, lab=None):
        if top:
            top("pre"); a("s_barrier"); top("post")
        for sl in range(4):
            sb = sl % 2
            def E(i): a("v_exp_f32 v%d, v%d" % (S[sb] + i, S[sb] + i))
            if LADDER: a("s_setprio %d" % (3 - sl))
            elif first and sl == 0: a("s_setprio 0")
            if down and sl == 0:
                check(lab); rdW(b, 0)
            E(0); E(1)
            if sl == 0:
                if not first:
                    PV(3, 1 - b, 1, 1)
                    ldV(vm, 1 - b)
            else: PV(sl - 1, b, 1 - sb, 1)
            if down and sl == 1: rdW(b, 1)
            E(2); E(3); E(4)
            if sl == 3:
                vm.wait(("K", 1 - b))
                QK(0, 1 - b, 0)
            else:
                if first: vm.wait("Q")
                QK(sl + 1, b, 1 - sb)
                if sl == 2: ldK(vm, b)
            if (down or pre) and sl < 2: ldW(b, sl)
            if (down or pre == 2) and sl == 2: signal(1 - b)
            if (down or pre == 2) and sl == 3: peek()
            for i in range(5, 10): E(i)
            if sl == 0: vm.wait(("V", b))
            PV(sl, b, sb, 0)
            for i in range(10, 13): E(i)
            if extra: extra(sl)
            if down:
                DM(b, sl)
                if sl % 2 == 1: ldH(b, sl // 2)
                if sl == 3:
                    if b == 1:
                        a("v_xor_b32 v%d, 0x8000, v%d" % (vT0, vT0))
                        a("v_xor_b32 v%d, 0x8000, v%d" % (vT1, vT1))
                        a("s_xor_b32 s17, s17, 0x8000")
            if loop and sl == 3:
                a("s_sub_u32 s46, s46, 1"); a("s_cmp_lg_u32 s46, 0")
            for i in range(13, 16): E(i)
    def pubH(tag, off):
        def f(when):
            if when == "pre":
                vm.wait(tag); lg.wait("fw")
            else:
                a("s_lshl_b32 s38, s18, 4")
                a("s_add_u32 s38, s38, s19")
                a("s_lshl_b32 s38, s38, 7")
                if off: a("s_add_u32 s38, s38, %d" % off)
                a("v_mov_b32 v4, 1")
                a("s_mov_b64 exec, 1")
                vm.issue("buffer_store_dword v4, v%d, s[80:83], s38 offen sc1" % vLD, "flag")
                a("s_mov_b64 exec, -1")
        return f
    def wo_stage(i):
        a("s_add_u32 m0, s60, %d" % (i * 2048))
        a("s_add_u32 s38, s47, %d" % (i * 16384))
        vm.issue("buffer_load_dwordx4 v%d, s[40:43], s38 offen lds" % vW0, "wo")
        a("s_add_u32 s38, s38, %d" % (8192 - 1024))
        vm.issue("buffer_load_dwordx4 v%d, s[40:43], s38 offen offset:1024 lds" % vW0, "wo")
    a("s_lshl_b32 s60, s3, 13")
    a("s_lshl_b32 s47, s3, 16")
    a("s_add_u32 s47, s47, s45")
    def ex0(sl):
        if sl < 2: ZERO(DA + 16 * sl)
        if sl == 2:
            a("s_lshl_b32 s38, s3, 8")
            a("s_add_u32 s38, s38, %d" % FLG)
            a("v_lshl_add_u32 v%d, v0, 2, s38" % vFA)
            a("v_xor_b32 v%d, 1024, v%d" % (vFB, vFA))
            a("v_mov_b32 v%d, 0" % vF)
            lg.issue("ds_write_b32 v%d, v%d" % (vFA, vF), "fw")
    keytile(0, first=True, extra=ex0)
    gen1.stamp(a, "k0")
    keytile(1, top=pubH("Q", 0), extra=wo_stage)
    gen1.stamp(a, "k1")
    def ex2(sl):
        if sl == 2: poll(vm, "s[80:83]")
        if sl < 3:
            s = sl + 1
            a("s_add_u32 s28, s23, %d" % s)
            a("s_and_b32 s28, s28, 3")
            a("s_lshl_b32 s38, s22, 2")
            a("s_add_u32 s28, s28, s38")
            a("s_mul_i32 s28, s28, 3")
            a("s_add_u32 s28, s28, %d" % (s - 1))
            a("s_mul_i32 s28, s28, 2304")
            a("s_add_u32 s28, s28, %d" % SCR)
            a("v_add_u32 v%d, s28, v1" % (vRW + 2 * sl))
            a("v_lshl_add_u32 v%d, v0, 2, s28" % (vRW + 2 * sl + 1))
        else:
            a("s_mul_i32 s28, s3, %d" % (3 * 2304))
            a("s_add_u32 s28, s28, %d" % SCR)
            a("v_add_u32 v%d, s28, v1" % (vRW + 6))
            a("v_lshl_add_u32 v%d, v0, 2, s28" % (vRW + 7))
    keytile(0, pre=1, extra=ex2)
    a("s_mov_b32 s36, s20")
    gen1.stamp(a, "k2")
    def top3(when):
        pubH("h", 32768)(when)
        if when == "post":
            spin("KF_SH", 1, vm, False, "s[80:83]")
            gen1.stamp(a, "sh1")
            ldH(0, 0, "s36"); ldH(0, 1, "s36")
    def ex3(sl):
        if sl % 2 == 1: ldH(1, sl // 2)
        if sl == 0: srd(a, 52, 14, OF, 2 * MB)
        if sl == 3:
            a("s_xor_b32 s17, s17, 0x8000")
    keytile(1, top=top3, pre=2, extra=ex3)
    gen1.stamp(a, "k3")
    a("s_mov_b32 s46, 6")
    a("s_mov_b32 s37, 4")
    def ev():
        a.label("KF_EV")
        a("s_sub_u32 s37, s37, 1")
        a("s_cmp_eq_u32 s37, 3")
        a("s_cbranch_scc0 KF_EV2")
        a("buffer_load_dword v%d, v%d, s[80:83], s96 offen sc1" % (vP, vPO))
        a("s_branch KF_EVR")
        a.label("KF_EV2")
        a("s_mov_b32 s37, 0")
        a("s_waitcnt vmcnt(14)")
        spin("KF_S2", 1, None, False, "s[80:83]", "s96")
        a("s_branch KF_EVR")
    outl["ev"] = ev
    def it():
        a("s_cmp_eq_u32 s46, s37")
        a("s_cbranch_scc1 KF_EV")
        a.label("KF_EVR")
        keytile(0, down=True, lab="KF_P0"); keytile(1, down=True, loop=True, lab="KF_P1")
        a("s_cbranch_scc1 KF_LB")
    body = steady_loop(a, [vm, lg], it)
    a(".p2align 6")
    a.label("KF_LB")
    a.lines += body
    a("s_nop 1")
    PV(3, 1, 1, 1)
    if LADDER: a("s_setprio 3")
    gen1.stamp(a, 7)
    lg.wait("fr")
    a("s_barrier")
    a("s_nop 4")
    for s in range(1, 4):
        if s == 3: a("s_nop 1")
        a("ds_write_b128 v%d, %s" % (vRW + 2 * s - 2, vr(O + 16 * s, 4)))
        a("ds_write_b128 v%d, %s offset:1024" % (vRW + 2 * s - 2, vr(O + 16 * s + 4, 4)))
        a("ds_write_b32 v%d, v%d offset:2048" % (vRW + 2 * s - 1, O + 16 * s + 8))
    vm.wait(("W", 0), ("W", 1))
    a("s_waitcnt lgkmcnt(0)")
    a("s_barrier")
    gen1.stamp(a, "rb")
    for s in range(3):
        a("ds_read_b128 %s, v%d offset:%d" % (vr(O + 16 * (s + 1), 4), vRW + 6, s * 2304))
        a("ds_read_b128 %s, v%d offset:%d" % (vr(O + 16 * (s + 1) + 4, 4), vRW + 6, s * 2304 + 1024))
        a("ds_read_b32 v%d, v%d offset:%d" % (O + 16 * (s + 1) + 8, vRW + 7, s * 2304 + 2048))
    for s in range(3):
        a("s_waitcnt lgkmcnt(%d)" % (6 - 3 * s))
        for i in (8, 0, 1, 2, 3, 4, 5, 6, 7): a("v_add_f32 v%d, v%d, v%d" % (O + i, O + i, O + 16 * (s + 1) + i))
    a.label("KF_CHK")
    a("v_mov_b32 v4, v%d" % (O + 8))
    a("s_nop 1")
    a("v_permlane32_swap_b32 v%d, v4" % (O + 8))
    a("s_cmp_eq_u32 s46, 1")
    a("s_cbranch_scc1 KF_NORM")
    a("s_mov_b32 s38, %s" % hx(f2u(2.0 ** -60)))
    a("v_mov_b32 v5, %s" % hx(f2u(2.0 ** 40)))
    a("v_mul_f32 v4, 0, v%d" % O)
    for i in range(1, 8): a("v_fmac_f32 v4, 0, v%d" % (O + i))
    a("v_med3_f32 v5, v%d, s38, v5" % (O + 8))
    a("v_add_f32 v5, v5, v4")
    a("v_cmp_eq_f32 vcc, v5, v%d" % (O + 8))
    a("s_nop 1")
    a("s_cmp_eq_u64 vcc, -1")
    a("s_cbranch_scc0 KF_SLOW")
    a.label("KF_NORM")
    a("v_rcp_f32 v4, v%d" % (O + 8))
    a("s_nop 0")
    for i in range(8): a("v_mul_f32 v%d, v%d, v4" % (O + i, O + i))
    for i in range(4): a("v_cvt_pk_bf16_f32 v%d, v%d, v%d" % (S[0] + i, O + 2 * i, O + 2 * i + 1))
    for i in range(4): a("v_min_u32 v%d, -2, v%d" % (S[0] + i, S[0] + i))
    vm.issue("buffer_store_dwordx4 %s, v1, s[52:55], s61 offen%s" % (vr(S[0], 4), SC), "o")
    gen1.stamp(a, "ost")
    WO = 64; OFR = 128; vG = 2; YA = 32
    a("s_lshl_b32 s60, s44, 15")
    a("s_lshl_b32 s39, s23, 13")
    a("s_add_u32 s60, s60, s39")
    a("s_add_u32 s47, s60, 4096")
    def ldO(i): return "buffer_load_dwordx4 %s, v1, s[52:55], %s offen offset:%d%s" % (vr(OFR + 4 * i, 4), "s60" if i < 4 else "s47", (i % 4) * 1024, SC)
    rdW(0, 0); rdW(0, 1)
    srd(a, 8, 14, GG, 16384)
    a("s_lshl_b32 s39, s44, 8")
    a("v_and_b32 v4, 31, v0")
    a("v_lshlrev_b32 v5, 3, v4")
    vm.issue("buffer_load_dwordx2 %s, v5, s[8:11], s39 offen%s" % (vr(vG, 2), SC), "g")
    a("v_and_b32 v7, 0xfff, v%d" % vT0)
    a("s_lshl_b32 s39, s23, 14")
    a("v_add_u32 v7, s39, v7")
    a("v_xor_b32 v8, 64, v7")
    def rdWo(i):
        for ft in range(2):
            for q in range(2):
                lg.issue("ds_read_b64_tr_b16 %s, v%d offset:%d" % (vr(WO + 8 * i + 4 * ft + 2 * q, 2), 7 + ft, i * 2048 + q * 1024), ("wof", i))
    DM(0, 0); DM(0, 1); rdW(1, 0)
    DM(0, 2); DM(0, 3); rdW(1, 1)
    rdWo(0)
    DM(1, 0); DM(1, 1)
    rdWo(1); rdWo(2)
    DM(1, 2); DM(1, 3)
    for i in range(8): vm.issue(ldO(i), ("of", i))
    for i in range(3, 8):
        lg.wait(("wof", i - 3)); rdWo(i)
    a("v_lshlrev_b32 v6, 10, v4")
    a("v_lshrrev_b32 v9, 5, v0")
    a("v_lshl_add_u32 v6, v9, 4, v6")
    a("s_lshl_b32 s61, s44, 15")
    a("s_add_u32 s61, s61, s45")
    a("s_lshl_b32 s39, s23, 5")
    a("s_add_u32 s61, s61, s39")
    srd(a, 4, 58, 0, 2 * MB)
    a("s_mul_i32 s38, s22, %d" % (4 * 6912))
    a("s_add_u32 s38, s38, %d" % SCR)
    a("v_add_u32 v10, s38, v1")
    vm.wait("g")
    for i in range(32): a("v_mul_f32 v%d, v%d, v%d" % (DA + i, DA + i, vG + 1))
    lg.wait(("wof", 7))
    gen1.stamp(a, "so0")
    a("s_mov_b32 s38, 0x8000")
    for i in range(8):
        vm.wait(("of", i))
        r = OFR + 4 * i
        lab = "KF_O%d" % i
        a.label(lab)
        a("v_max3_u32 v11, v%d, v%d, v%d" % (r, r + 1, r + 2))
        a("v_max_u32 v11, v11, v%d" % (r + 3))
        a("v_cmp_eq_u32 vcc, -1, v11")
        a("s_nop 0")
        a("s_cbranch_vccnz %s_RE" % lab)
        a.label(lab + "_OK")
        def slow(i=i, lab=lab):
            a.label(lab + "_RE")
            a("s_sub_u32 s38, s38, 1")
            a("s_cbranch_scc1 %s_GU" % lab)
            a("s_sleep 1")
            for j in range(i, 8): a(ldO(j))
            a("s_waitcnt vmcnt(0)")
            a("s_branch %s" % lab)
            a.label(lab + "_GU")
            a("s_mov_b32 s38, 0")
            a("s_branch %s_OK" % lab)
        outl[lab] = slow
        for ft in range(2):
            d = vr(YA + 16 * ft, 16)
            a("v_mfma_f32_32x32x16_bf16 %s, %s, %s, %s" % (d, vr(WO + 8 * i + 4 * ft, 4), vr(r, 4), "0" if i == 0 else d))
    gen1.stamp(a, "so1")
    a("s_cmp_ge_u32 s23, 2")
    a("s_nop 10")
    for i in range(32): a("v_fmac_f32 v%d, v%d, v%d" % (DA + i, YA + i, vG))
    a("s_cbranch_scc1 KF_X2")
    a("s_cmp_eq_u32 s23, 1")
    a("s_cbranch_scc1 KF_X1")
    def fin(kq):
        idx = lambda src, dst: dst if dst < src else dst - 1
        for p in range(4):
            if p == kq: continue
            a("ds_write_b128 v%d, %s offset:%d" % (vRW + 6, vr(DA + 8 * p, 4), idx(kq, p) * 2048))
            a("ds_write_b128 v%d, %s offset:%d" % (vRW + 6, vr(DA + 8 * p + 4, 4), idx(kq, p) * 2048 + 1024))
        a("s_waitcnt lgkmcnt(0)")
        a("s_barrier")
        srcs = [s for s in range(4) if s != kq]
        for n, s in enumerate(srcs):
            a("ds_read_b128 %s, v10 offset:%d" % (vr(YA + 8 * n, 4), s * 6912 + idx(s, kq) * 2048))
            a("ds_read_b128 %s, v10 offset:%d" % (vr(YA + 8 * n + 4, 4), s * 6912 + idx(s, kq) * 2048 + 1024))
        a("s_waitcnt lgkmcnt(4)")
        for i in range(8): a("v_add_f32 v%d, v%d, v%d" % (YA + i, YA + i, DA + 8 * kq + i))
        a("s_waitcnt lgkmcnt(0)")
        for i in range(8): a("v_add_f32 v%d, v%d, v%d" % (YA + 8 + i, YA + 8 + i, YA + 16 + i))
        for i in range(8): a("v_add_f32 v%d, v%d, v%d" % (YA + i, YA + i, YA + 8 + i))
        for i in range(4): a("v_cvt_pk_bf16_f32 v%d, v%d, v%d" % (YA + 24 + i, YA + 2 * i, YA + 2 * i + 1))
        a("s_nop 1")
        a("v_permlane32_swap_b32 v%d, v%d" % (YA + 24, YA + 26))
        a("v_permlane32_swap_b32 v%d, v%d" % (YA + 25, YA + 27))
        a("buffer_store_dwordx4 %s, v6, s[4:7], s61 offen%s" % (vr(YA + 24, 4), OSC))
        gen1.stamp(a, "fin")
        gen1.stamp_end(a, 0, 14, 5)
        a("s_endpgm")
    fin(0)
    a.label("KF_X1"); fin(1)
    a.label("KF_X2")
    a("s_cmp_eq_u32 s23, 3")
    a("s_cbranch_scc1 KF_X3")
    fin(2)
    a.label("KF_X3"); fin(3)
    a.label("KF_END")
    a("s_endpgm")
    for f in list(outl.values()): f()
    a("s_endpgm")
    a.label("KF_SLOW")
    vm2 = VM(a)
    CB = O + 16
    a("s_waitcnt vmcnt(0)")
    a("s_add_u32 s26, s24, %s" % hx(KF))
    srd(a, 8, 14, "s26", 65536)
    a("s_add_u32 s26, s24, %s" % hx(VF))
    srd(a, 4, 14, "s26", 65536)
    a("s_mov_b32 s26, 0")
    a("v_mov_b32 v4, 0xff800000")
    a("s_mov_b32 s46, 64")
    a.label("KF_SL1")
    ldK(vm2, 0, False)
    a("s_waitcnt vmcnt(0)")
    QK(0, 0, 0)
    a("s_nop 15")
    for i in range(8): a("v_max3_f32 v4, v4, v%d, v%d" % (S[0] + 2 * i, S[0] + 2 * i + 1))
    a("s_sub_u32 s46, s46, 1"); a("s_cmp_lg_u32 s46, 0")
    a("s_cbranch_scc1 KF_SL1")
    a("v_mov_b32 v5, v4")
    a("s_nop 1")
    a("v_permlane32_swap_b32 v4, v5")
    a("s_nop 1")
    a("v_max_f32 v4, v4, v5")
    for i in range(16): a("v_sub_f32 v%d, 0, v4" % (CB + i))
    for i in range(16): a("v_mov_b32 v%d, 0" % (O + i))
    a("s_mov_b32 s26, 0")
    a("s_mov_b32 s27, 0")
    a("s_mov_b32 s46, 65")
    a.label("KF_SL2")
    ldK(vm2, 0, False); ldV(vm2, 0, False)
    a("s_waitcnt vmcnt(0)")
    a("v_mfma_f32_32x32x16_bf16 %s, %s, %s, %s" % (vr(S[0], 16), vr(K[0], 4), vr(Q, 4), vr(CB, 16)))
    a("s_nop 15")
    for i in range(16): a("v_exp_f32 v%d, v%d" % (S[0] + i, S[0] + i))
    a("s_nop 1")
    PV(0, 0, 0, 0); PV(0, 0, 0, 1)
    a("s_sub_u32 s46, s46, 1"); a("s_cmp_lg_u32 s46, 1")
    a("s_cbranch_scc1 KF_SL2")
    a("s_nop 15")
    a("s_branch KF_CHK")
    a("s_endpgm")
    return NAME, 256, "grid=(256,1,1) block=(512,1,1) lds=163840"

def parse(argv):
    global KVROT, OSC, LADDER, HPUB, LATE
    global WARM
    if 'nowarm' in argv: WARM = False
    if "stamp" in argv: gen1.STAMP = True
    if "rt" in argv: gen1.RT = True
    gen3.GST = [32]
    for x in argv:
        if x.startswith("rot="): ab3.ROT = int(x[4:])
        if x.startswith("epr="): ab3.EPR = int(x[4:])
        if x == "pk": ab3.PK = True
        if x.startswith("stg="): ab3.STG = int(x[4:])
        if x.startswith("eprr="): ab3.EPRR = int(x[5:])
        if x.startswith("ch="): ab3.CH = int(x[3:])
        if x.startswith("ldg="): ab3.LDG = int(x[4:]); ab3.POLLG = ab3.LDG - 5
        if x.startswith("early="): ab3.EARLY = dict(zip(("P", "R0", "R1"), [int(y) for y in x[6:].split(",")]))
        if x.startswith("d2="): ab3.D2 = int(x[3:])
        if x.startswith("pubs="): ab3.PUBS = dict(zip(("P", "R0", "R1"), [int(y) for y in x[5:].split(",")]))
        if x.startswith("gst="): gen3.GST = [int(y) for y in x[4:].split(",")]
        if x.startswith("smap="): gen1.SMAP = [int(y) if y.isdigit() else y for y in x[5:].split(",")]
        if x == "nokvrot": KVROT = False
        if x == "noladder": LADDER = False
        if x == "ns4": gen3.NS4 = True
        if x.startswith("d8="): gen3.D8AT = int(x[3:])
        if x.startswith("lead2="): gen3.LEAD2 = int(x[6:])
        if x == "fsync": gen3.FSYNC = True
        if x.startswith("sig="): gen3.SIG1, gen3.SIG2 = [int(y) for y in x[4:].split(",")]
        if x.startswith("xp="): XP.extend(x[3:].split(",")); ab3.XP = XP
        if x.startswith("hpub="): HPUB = int(x[5:])
        if x.startswith("osc="): OSC = " " + x[4:]
if __name__ == "__main__":
    parse(sys.argv)
    build1(sys.argv[1], kf, aslist=("list" in sys.argv))
```

```python
import sys
sys.path.insert(0, "gen")
import gen1
from gen1 import *
from asmlib import *
from gen2 import gate_code
SC = " sc1"
SLOT = 32768
GCG = 5
EPR = 7
PUBS = {"P": 12, "R0": 12, "R1": 12}
ROT = 8
PRIO = 0
PRG = 32
STG = 3
XP = []
PK = False
CH = 3
D2 = 3
POLLG = 88; LDG = 93; WARMG = 68
EARLY = {"P": 31, "R0": 31, "R1": 31}
EPRR = 7

def phase_ab(a, tail, hook):
    X = 128; WF = 32; E = 128
    SET = [64, 80, 96, 112]
    vAX, vT, vST, vAW1, vA2, vAM, vD, vDM = 2, 3, 4, 5, 7, 9, 11, 16
    a("v_lshrrev_b32 v20, 4, v0")
    a("v_and_b32 v21, 7, v0")
    a("v_xor_b32 v22, v21, v20")
    a("v_lshlrev_b32 v22, 4, v22")
    a("v_lshrrev_b32 v23, 3, v0")
    a("v_lshl_add_u32 v22, v23, 10, v22")
    a("s_lshl_b32 s58, s3, 14")
    a("v_add_u32 v%d, s58, v22" % vD)
    a("v_xor_b32 v%d, 64, v%d" % (vD + 1, vD))
    a("v_add_u32 v%d, %d, v%d" % (vD + 1, 7168, vD + 1))
    a("v_and_b32 v22, 1, v20")
    a("v_lshlrev_b32 v22, 2, v22")
    a("v_xor_b32 v22, v22, v21")
    a("v_lshlrev_b32 v22, 4, v22")
    a("s_lshl_b32 s58, s3, 3")
    a("v_add_u32 v23, s58, v23")
    a("v_mul_u32_u24 v24, 3072, v23")
    a("v_add_u32 v%d, v24, v22" % (vD + 2))
    a("s_lshl_b32 s56, s3, 11")
    a("s_lshl_b32 s57, s3, 10")
    a("s_lshl_b32 s44, s18, 17")
    a("s_lshl_b32 s45, s19, 7")
    a("s_sub_u32 s46, %d, s45" % (512 * 3072))
    a("s_lshl_b32 s50, s55, 1")
    a("s_add_u32 s50, s50, s18")
    if ROT != 8:
        a("s_add_u32 s50, s55, s18")
        a("s_and_b32 s50, s50, %d" % (ROT - 1))
        a("s_mul_i32 s50, s50, %d" % (8 // ROT))
    a("s_lshl_b32 s51, s54, 8")
    a("s_sub_u32 s51, 1920, s51")
    a("s_add_u32 s28, s55, 1")
    a("s_waitcnt lgkmcnt(0)")
    gen1.stamp(a, 1)
    srd(a, 20, 4, "s44", 128 * 1024)
    srd(a, 24, 6, "s45", "s46")
    a("s_bitcmp1_b32 s28, 1")
    a("s_cbranch_scc0 AB_P")
    a("s_cmp_eq_u32 s37, 0")
    a("s_cbranch_scc0 AB_R1")

    def stream(kind):
        P = kind == "P"
        vm = VM(a); lg = VM(a, "lgkmcnt", 15)
        def base(s): return (s % 5) * SLOT
        def dma(s):
            b = base(s); tag = ("d", s)
            G = []
            def grp(m0, off, txt, pre=None):
                G.append([("s", "s_add_u32 m0, %s, %s" % (m0, hx(off)))] + (pre or [("s", "s_nop 0")]) + [("v", txt)])
            ld = "buffer_load_dwordx4 v%d, s[%d:%d], %s offen offset:%d lds"
            if s < 8:
                pre = [("s", "s_add_u32 s48, s50, %d" % s), ("s", "s_and_b32 s48, s48, 7"),
                       ("s", "s_mul_i32 s49, s48, %d" % (64 * 3072)), ("s", "s_lshl_b32 s48, s48, 7")]
                grp("s56", b, ld % (vD, 20, 23, "s48", 0), pre)
                G.append([("v", ld % (vD + 1, 20, 23, "s48", 1024))])
                grp("s57", b + 16384, ld % (vD + 2, 24, 27, "s49", 0))
                if not P: grp("s57", b + 24576, ld % (vD + 2, 24, 27, "s49", 0), [("s", "s_add_u32 s49, s49, s51")])
            else:
                for c in range(2):
                    pos = (2 * (s - 8) + c) % 8
                    pre = [("s", "s_add_u32 s48, s50, %d" % pos), ("s", "s_and_b32 s48, s48, 7"),
                           ("s", "s_mul_i32 s49, s48, %d" % (64 * 3584)), ("s", "s_add_u32 s49, s49, s%d" % (52 if s < 12 else 97))]
                    if P or s < 12:
                        grp("s57", b + c * 16384, ld % (vD + 3, 40, 43, "s49", 0), pre)
                        grp("s57", b + c * 16384 + 8192, ld % (vD + 4, 44, 47, "s49", 0))
                    else:
                        u = 4 if kind == "R1" else 0
                        grp("s57", b + c * 8192, ld % (vDM, 40 + u, 43 + u, "s49", 0), pre)
            return [[(k, t, tag) for (k, t) in g] for g in G]
        def flat(G): return [x for g in G for x in g]
        def emit(it):
            k, t, tag = it
            if k == "v": vm.issue(t, tag)
            elif k == "l": lg.issue(t, tag)
            elif k == "f": t()
            else: a(t)
        gi0, gc0 = gate_code(a, vm, "s[28:31]", "s[20:23]", "s39", X + 112)
        for it in flat(dma(0)): emit(it)
        srd(a, 28, 12, 0, 1024)
        a("s_lshl_b32 s60, s19, 3")
        a("s_add_u32 s60, s60, s3")
        a("s_lshl_b32 s39, s60, 10")
        gi0()
        a("s_barrier")
        for it in flat(dma(1)): emit(it)
        hook(kind, vm, "init")
        a("s_lshl_b32 s58, s55, 3")
        a("s_lshr_b32 s38, 0x140e0800, s58")
        a("s_and_b32 s38, s38, 0xff")
        a("s_lshr_b32 s52, 0x00400000, s58")
        a("s_and_b32 s52, s52, 0xff")
        a("s_lshr_b32 s97, 0x80008080, s58")
        a("s_and_b32 s97, s97, 0xff")
        a("s_mul_i32 s58, s54, 28")
        a("s_add_u32 s58, s58, s38")
        a("s_lshl_b32 s38, s58, 5")
        a("s_sub_u32 s39, %d, s38" % (512 * 3584))
        srd(a, 40, 8, "s38", "s39")
        srd(a, 44, 10, "s38", "s39")
        a("v_mul_u32_u24 v24, 3584, v23")
        a("v_add_u32 v%d, v24, v22" % (vD + 3))
        a("v_xor_b32 v%d, 32, v%d" % (vD + 4, vD + 3))
        if not P:
            a("v_lshrrev_b32 v23, 2, v0")
            a("s_lshl_b32 s38, s36, 4")
            a("v_add_u32 v23, s38, v23")
            a("v_mul_u32_u24 v23, 3584, v23")
            a("v_and_b32 v24, 3, v0")
            if kind == "R1": a("v_xor_b32 v24, 2, v24")
            a("v_lshl_add_u32 v%d, v24, 4, v23" % vDM)
        a("v_and_b32 v24, 31, v0")
        a("v_lshrrev_b32 v25, 5, v0")
        a("v_bfe_u32 v26, v0, 1, 3")
        a("v_xor_b32 v26, v25, v26")
        a("v_lshlrev_b32 v26, 4, v26")
        a("v_lshl_add_u32 v26, v24, 7, v26")
        a("s_lshl_b32 s38, s36, 12")
        a("v_add_u32 v%d, s38, v26" % vAX)
        a("v_bfe_u32 v21, v0, 2, 2")
        a("v_lshl_add_u32 v26, v25, 3, v21")
        a("v_bfe_u32 v27, v0, 4, 1")
        a("v_and_b32 v28, 3, v0")
        a("v_lshlrev_b32 v28, 3, v28")
        a("v_bfe_u32 v30, v0, 3, 1")
        a("v_lshl_add_u32 v22, v26, 7, v28")
        a("v_lshl_add_u32 v29, v27, 5, v22")
        a("v_xor_b32 v23, s37, v30")
        a("v_lshl_add_u32 v29, v%d, 6, v29" % (23 if P else 30))
        a("v_add_u32 v%d, %d, v29" % (vAW1, 16384 + (8192 if kind == "R1" else 0)))
        if not P: a("v_xor_b32 v%d, 64, v%d" % (vAW1 + 1, vAW1))
        a("v_lshl_add_u32 v23, v23, 1, v27")
        a("v_lshl_add_u32 v29, v23, 5, v22")
        a("v_lshl_add_u32 v29, v27, 13, v29")
        a("v_add_u32 v%d, %d, v29" % (vA2, base(8)))
        a("v_xor_b32 v%d, 32, v%d" % (vA2 + 1, vA2))
        if not P:
            a("v_xor_b32 v23, %d, v27" % (1 if kind == "R1" else 0))
            a("v_lshl_add_u32 v29, v23, 5, v28")
            a("v_lshl_add_u32 v29, v26, 6, v29")
            a("v_lshl_add_u32 v29, v27, 12, v29")
            a("v_add_u32 v%d, %d, v29" % (vAM, base(12)))
        a("s_lshl_b32 s90, s18, 2")
        a("s_add_u32 s90, s90, s36")
        a("s_lshl_b32 s91, s90, 10")
        a("s_mul_i32 s90, s90, 112")
        a("s_add_u32 s90, s90, s58")
        a("s_lshr_b32 s38, s52, 5")
        a("s_add_u32 s95, s90, s38")
        a("s_lshr_b32 s38, s97, 5")
        a("s_add_u32 s58, s90, s38")
        a("s_lshl_b32 s38, s37, 1")
        a("s_add_u32 s58, s58, %s" % ("s38" if P else "s37"))
        a("s_lshl_b32 s58, s58, 10")
        a("s_add_u32 s95, s95, s38")
        a("s_lshl_b32 s95, s95, 10")
        if kind != "R1":
            a("s_cmp_lt_u32 s19, 8")
            a("s_cselect_b32 s92, %s, 1.0" % hx(f2u(0.25 * LOG2E)))
            a("s_cselect_b32 s38, 0, 12")
            a("s_mov_b32 s93, s92")
            a("v_lshrrev_b32 v29, 1, v24")
            a("v_xor_b32 v29, v24, v29")
            a("v_and_b32 v29, 4, v29")
            a("v_mul_u32_u24 v29, 3, v29")
            a("v_and_b32 v29, s38, v29")
            a("v_xor_b32 v29, v24, v29")
            a("v_lshlrev_b32 v29, 4, v29")
            a("v_lshl_add_u32 v%d, v25, 9, v29" % vST)
            a("s_lshl_b32 s38, s19, 18")
            a("s_add_u32 s91, s91, s38")
            if P:
                a("s_lshl_b32 s38, s37, 17")
                a("s_add_u32 s91, s91, s38")
        else:
            a("v_and_b32 v29, 15, v0")
            a("v_lshlrev_b32 v29, 4, v29")
            a("v_lshl_add_u32 v29, v25, 8, v29")
            a("v_lshl_add_u32 v%d, v27, 16, v29" % vST)
            a("s_lshl_b32 s38, s54, 1")
            a("s_add_u32 s38, s38, s55")
            a("s_sub_u32 s38, s38, 1")
            a("s_lshl_b32 s38, s38, 18")
            a("s_add_u32 s91, s91, s38")
            a("s_add_u32 s91, s91, %s" % hx(VF))
        def gc():
            o = gc0()
            a("v_mov_b32 v30, v%d" % o); a("v_mov_b32 v31, v%d" % (o + 1))
            srd(a, 28, 14, 0, 6 * MB)
        def gst():
            srd(a, 28, 14, GG, 16384)
            a("s_lshl_b32 s39, s18, 7")
            a("s_add_u32 s38, s60, s39")
            a("s_lshl_b32 s38, s38, 3")
            a("v_mov_b32 v29, 0")
            a("s_mov_b32 exec_lo, 0")
            a("s_mov_b32 exec_hi, 0x80000000")
            vm.issue("buffer_store_dwordx2 v[30:31], v29, s[28:31], s38 offen%s" % SC, "gst")
            a("s_mov_b64 exec, -1")
            srd(a, 28, 14, 0, 6 * MB)
        T = [[3], [0, 1], [2, 3]] if P else [[0, 1], [2, 3], [0]]
        DIST = [2, D2, D2] if P else [2, D2, 4]
        def ph(g): return g // 32
        def stage(g): return g // 4 if g < 32 else 8 + (g - 32) // 8
        def first(g): return g % 4 == 0 if g < 32 else g % 8 == 0
        def wf(g, n):
            if len(T[ph(g)]) == 1 and ph(g) == 2: return WF + 4 * (g % 8)
            return WF + 8 * (g % 4) + 4 * n
        def reads(g):
            s = stage(g); p = ph(g); L = []
            if p == 0: R = [vAX] + [vAW1 + n for n in range(len(T[0]))]
            elif p == 2 and not P: R = [vAM]
            else: R = [vA2, vA2 + 1]
            if first(g) and s not in (0, 8) and not (s == 12 and not P):
                d = base(s) - base(s - 1)
                for r in R: L.append(("s", "v_add_u32 v%d, %s, v%d" % (r, hx(d), r), None))
            ks = g % 4
            if p == 0:
                if ks: L.append(("s", "v_xor_b32 v%d, %d, v%d" % (vT, 32 * ks, vAX), None))
                L.append(("l", "ds_read_b128 %s, v%d" % (vr(X + 4 * g, 4), vT if ks else vAX), g))
                R = R[1:]
            c = 0 if p == 0 else (g % 8) // 4
            for n in range(len(T[p])):
                rb_ = 64 if R[n] == vAM else 128
                for q in range(2):
                    L.append(("l", "ds_read_b64_tr_b16 %s, v%d offset:%d" % (vr(wf(g, n) + 2 * q, 2), R[n], c * 128 * rb_ + (16 * ks + 4 * q) * rb_), g))
            return L
        def mfmas(g):
            L = []
            x = vr(X + 4 * (g % 32), 4)
            for n, ac in enumerate(T[ph(g)]):
                d = vr(SET[ac], 16); w = vr(wf(g, n), 4)
                A, B = (x, w) if (kind == "R1" and g < 32) else (w, x)
                L.append("v_mfma_f32_32x32x16_bf16 %s, %s, %s, %s" % (d, A, B, "0" if g % 32 == 0 else d))
            return L
        def qkv_epi(n):
            b = SET[T[0][n]]; L = []
            if kind != "R1":
                if PK:
                    for i in range(8): L.append(("s", "v_pk_mul_f32 %s, %s, s[92:93]" % (vr(b + 2 * i, 2), vr(b + 2 * i, 2)), None))
                else:
                    for i in range(16): L.append(("s", "v_mul_f32 v%d, s92, v%d" % (b + i, b + i), None))
            for i in range(8): L.append(("s", "v_cvt_pk_bf16_f32 v%d, v%d, v%d" % (b + i, b + 2 * i, b + 2 * i + 1), None))
            if kind != "R1":
                L.append(("s", "s_add_u32 s94, s91, 0x10000", None))
                L.append(("v", "buffer_store_dwordx4 %s, v%d, s[28:31], s91 offen%s" % (vr(b, 4), vST, SC), "qkv"))
                L.append(("v", "buffer_store_dwordx4 %s, v%d, s[28:31], s94 offen%s" % (vr(b + 4, 4), vST, SC), "qkv"))
            else:
                for j in range(2):
                    L.append(("v", "buffer_store_dwordx4 %s, v%d, s[28:31], s91 offen offset:%d%s" % (vr(b + 4 * j, 4), vST, j * 512, SC), "qkv"))
            if n + 1 < len(T[0]): L.append(("s", "s_add_u32 s91, s91, 0x20000", None))
            return L
        def silu(G, Tm, so, off, tag, pk=True):
            U = G + 8; L = []
            def op(o, d, x, y):
                if pk:
                    for i in range(4): L.append("v_pk_%s_f32 %s, %s, %s" % (o, vr(d + 2 * i, 2), vr(x + 2 * i, 2), y if isinstance(y, str) else vr(y + 2 * i, 2)))
                else:
                    for i in range(8): L.append("v_%s_f32 v%d, %s, v%d" % (o, d + i, {"s[92:93]": "s92", "s[12:13]": "1.0"}.get(y, None) or "v%d" % (y + i), x + i))
            op("mul", Tm, G, "s[92:93]")
            for i in range(8): L.append("v_exp_f32 v%d, v%d" % (Tm + i, Tm + i))
            op("mul", G, G, U)
            op("add", Tm, Tm, "s[12:13]")
            for i in range(8): L.append("v_rcp_f32 v%d, v%d" % (Tm + i, Tm + i))
            L.append("s_nop 0")
            op("mul", G, G, Tm)
            for i in range(4): L.append("v_cvt_pk_bf16_f32 v%d, v%d, v%d" % (G + i, G + 2 * i, G + 2 * i + 1))
            L = [("s", t, None) for t in L]
            L.append(("v", "buffer_store_dwordx4 %s, v1, s[32:35], %s offen offset:%d%s" % (vr(G, 4), so, off, SC), tag))
            return L
        def consts():
            a("s_mov_b32 s92, %s" % hx(f2u(-LOG2E))); a("s_mov_b32 s93, s92")
            a("s_mov_b32 s12, 1.0"); a("s_mov_b32 s13, 1.0")
            srd(a, 32, 14, HF, 7 * MB)
        ep1 = []
        for n in range(len(T[0])): ep1 += qkv_epi(n)
        ep0 = [("f", gst, None), ("f", lambda: hook(kind, vm, "early"), None)]
        ep1b = [("f", consts, None)]
        if EARLY[kind] >= 34: ep1b = ep0 + ep1b; ep0 = []
        if "noqst" in XP: ep1 = [x for x in ep1 if x[0] != "v"]
        if "noep1" in XP: ep1 = [x for x in ep1 if x[0] == "v"]
        if "plainq" in XP: ep1 = [(k, t.replace(SC, ""), g) if k == "v" else (k, t, g) for (k, t, g) in ep1]
        ep2 = []
        for n, ac in enumerate(T[1]): ep2 += silu(SET[ac], E, "s95", n * 1024, "h1", PK)
        islot = {}
        last = -1
        for g in range(96):
            want = g - DIST[ph(g)]
            regs = set(r for n in range(len(T[ph(g)])) for r in range(wf(g, n), wf(g, n) + 4))
            for g2 in range(g - 1, max(-1, g - 10), -1):
                r2 = set(r for n in range(len(T[ph(g2)])) for r in range(wf(g2, n), wf(g2, n) + 4))
                if regs & r2: want = max(want, g2 + 1); break
            want = max(want, last)
            assert want < g or g == 0, g
            islot[g] = want; last = want
        syncs = {islot[g]: stage(g) for g in range(1, 96) if first(g)}
        def barrier(s):
            if s == PUBS[kind]: vm.wait(("d", s), "qkv", "gst", "sent")
            else: vm.wait(("d", s))
            if s == 15: a("s_waitcnt lgkmcnt(0)"); lg.ops = []
            a("s_barrier")
            if s == PUBS[kind]: hook(kind, vm, "pub")
        barrier(0)
        gen1.stamp(a, 2)
        for g in range(96):
            if islot[g] < 0:
                for it in reads(g): emit(it)
        stq = []; nst = [0]
        pend = dma(2) + dma(3)
        for g in range(96):
            O = []
            for g2 in range(g + 1, 96):
                if islot[g2] == g: O += reads(g2)
            bar = syncs.get(g)
            if bar is not None:
                assert not any(it[2] == ("d", bar) for grp in pend for it in grp), (g, bar)
                if bar + 3 <= 15: pend += dma(bar + 3)
            if pend and (g < 32 or g % 2 == 0 or len(pend) > 4):
                for _ in range(2 if len(pend) > 4 and g < 32 else 1): O += pend.pop(0)
            if g == GCG: O.append(("f", gc, None))
            if ep0 and g >= EARLY[kind]: O.append(ep0.pop(0))
            if g >= 34 and stq and g >= nst[0] and None not in stq[:2]:
                O += stq.pop(0); nst[0] = g + STG
            if g >= 34 and ep1:
                n = EPR + 2
                for it in ep1[:n]:
                    if it[0] == "v": stq.append([it])
                    elif it[1].startswith("s_add_u32 s9"): stq.append([it]) ; stq.append(None)
                    else: O.append(it)
                ep1 = ep1[n:]
                i = 0
                while i < len(stq):
                    if stq[i] is None and i + 1 < len(stq):
                        stq[i - 1] = stq[i - 1] + stq[i + 1]
                        del stq[i:i + 2]
                    else: i += 1
            elif stq: pass
            elif g >= max(34, EARLY[kind]) and ep1b and g >= nst[0]: O.append(ep1b.pop(0)); nst[0] = g + 2
            elif g >= 67 and ep2:
                n = EPR if P else EPRR
                O += ep2[:n]; ep2 = ep2[n:]
                O += hook(kind, vm, (g, CH if P else 1)) or []
            elif g >= 34 and not ep1b:
                O += hook(kind, vm, (g, 6 if g < 64 else 10)) or []
            if g == WARMG: O.append(("f", lambda: hook(kind, vm, "warm"), None))
            if g == POLLG: O.append(("f", lambda: hook(kind, vm, "poll"), None))
            if g == LDG: assert not ep2
            if g == LDG: O.append(("f", lambda: hook(kind, vm, "ld"), None))
            if bar == PUBS[kind]: assert not ep1 and not stq and not ep1b and not any(it[0] == "f" for it in O), (kind, g)
            M = mfmas(g)
            pr = PRIO if g >= PRG else 0
            if pr: a("s_setprio 1")
            lg.wait(g)
            gen1.stamp(a, "g%d" % g)
            n = len(M); per = max(1, -(-len(O) // n))
            if pr == 2:
                for m in M: a(m)
                a("s_setprio 0")
                if bar is not None: barrier(bar)
                for it in O: emit(it)
                continue
            for i, m in enumerate(M):
                if pr and i: a("s_setprio 1")
                a(m)
                if pr: a("s_setprio 0")
                if i == 0 and bar is not None: barrier(bar)
                for it in O[i * per:(i + 1) * per]: emit(it)
        assert not ep1 and not ep2 and not pend
        gen1.stamp(a, 4)
        hook(kind, vm, "pre_h")
        a("s_nop 10")
        L0 = silu(SET[T[2][0]], WF, "s58", 0, "h")
        if P:
            L1 = silu(SET[T[2][1]], WF + 8, "s58", 1024, "h")
            for it in L0[:12] + L1[:12] + L0[12:28]: emit(it)
            hook(kind, vm, "mid_h")
            for it in L1[12:28] + L0[29:] + L1[29:]: emit(it)
        else:
            for it in L0[:28]: emit(it)
            hook(kind, vm, "mid_h")
            for it in L0[28:]: emit(it)
            a("v_mov_b32 v4, 0x1000")
            vm.issue("buffer_store_dword v4, v4, s[84:87], 0 offen", "h")
        tail(kind, vm)
    stream("R0")
    a.label("AB_R1")
    stream("R1")
    a.label("AB_P")
    stream("P")
```

```python
import sys
sys.path.insert(0, "gen")
import gen1, gen3
from gen1 import *
from asmlib import *
import ab3
from gen3 import ab_prologue, SC
from ab3 import phase_ab
from gen5 import build1

FL = 17 * MB
RING = 65536; SCR = 98304
KVROT = True
LATE = True
WARM = True
NOWAIT = False
SPLIT = 1
OSC = ""
LADDER = True
XP = []
HPUB = 1
NAME = "gated_mix__softmax_full_mha__swiglu_ffn__prompt_kernel"

def kf(a):
    header(a, NAME)
    Q = 128; K = [144, 148]; V = [152, 160]; S = [32, 48]; O = 64
    WF = 168; DA = 184; HB_ = 216
    vV, vIX, vP, vPO, vLD = 18, 19, 20, 21, 22
    vWA, vWB, vT0, vT1, vZ = 24, 25, 26, 27, 28
    vW0 = 23
    ab_prologue(a, "KF_END")
    def spin(lab, expect, vm, leader_only=False, sr_="s[84:87]", so="0", note=""):
        if vm: vm.wait("poll")
        a("v_cmp_le_u32 vcc, %d, v%d%s" % (expect, vP, note))
        a("s_mov_b32 s38, 0x8000")
        if leader_only:
            a("s_cmp_lg_u32 s3, 0")
            a("s_cbranch_scc1 %s_OK" % lab)
        a("s_cmp_eq_u64 vcc, -1")
        a("s_cbranch_scc1 %s_OK" % lab)
        a.label(lab)
        a("s_sleep 4")
        a("buffer_load_dword v%d, v%d, %s, %s offen sc1%s" % (vP, vPO, sr_, so, note))
        a("s_sub_u32 s38, s38, 1")
        a("s_waitcnt vmcnt(0)")
        a("v_cmp_le_u32 vcc, %d, v%d" % (expect, vP))
        a("s_cselect_b32 s39, 1, 0")
        a("s_cmp_eq_u64 vcc, -1")
        a("s_cselect_b32 s39, 1, s39")
        a("s_cmp_eq_u32 s39, 0")
        a("s_cbranch_scc1 %s" % lab)
        a.label(lab + "_OK")
    def poll(vm, sr_="s[84:87]"): vm.issue("buffer_load_dword v%d, v%d, %s, 0 offen sc1" % (vP, vPO, sr_), "poll")
    def publish(vm, soff):
        a("v_mov_b32 v%d, 1" % vP)
        a("s_mov_b64 exec, 1")
        vm.issue("buffer_atomic_add v%d, v%d, s[84:87], %s offen sc1" % (vP, vLD, soff), "atom")
        a("s_mov_b64 exec, -1")
    def ldK(vm, b):
        vm.issue("buffer_load_dwordx4 %s, v1, s[8:11], s26 offen%s" % (vr(K[b], 4), SC), ("K", b))
    def ldV(vm, b, wrap=True):
        a("s_mov_b64 exec, s[30:31]")
        vm.issue("buffer_load_dwordx4 %s, v%d, s[4:7], s26 offen%s" % (vr(V[b], 4), vV, SC), ("V", b))
        vm.issue("buffer_load_dwordx4 %s, v%d, s[4:7], s26 offen offset:512%s" % (vr(V[b] + 4, 4), vV, SC), ("V", b))
        a("s_mov_b64 exec, -1")
        a("s_add_u32 s26, s26, 1024")
        if wrap: a("s_and_b32 s26, s26, 0x3fff")
    def cap(fn):
        save = a.lines; a.lines = []
        fn(); L = a.lines; a.lines = save
        return [("s", l.strip(), None) for l in L]
    def early(vm):
        a("s_and_b32 s89, s2, 7")
        a("s_lshl_b32 s89, s89, 2")
        a("s_bfe_u32 s38, s2, 0x20003")
        a("s_add_u32 s89, s89, s38")
        a("s_lshr_b32 s88, s2, 5")
        a("s_lshl_b32 s39, s88, 3")
        a("s_add_u32 s38, s3, s39")
        a("s_lshl_b32 s38, s38, 5")
        a("s_add_u32 s38, s38, s89")
        a("s_lshl_b32 s61, s38, 10")
        srd(a, 84, 14, OF, 2 * MB)
        for i in range(4): a("v_mov_b32 v%d, -1" % (24 + i))
        vm.issue("buffer_store_dwordx4 v[24:27], v1, s[84:87], s61 offen%s" % SC, "sent")
        srd(a, 80, 14, FL, 65536)
        a("s_lshl_b32 s39, s18, 4")
        a("s_add_u32 s39, s39, s19")
        a("s_lshl_b32 s39, s39, 7")
        a("s_cmp_eq_u32 s3, 0")
        a("s_cselect_b32 s38, 0, 0x10000")
        a("v_mov_b32 v28, 0")
        a("v_mov_b32 v%d, s38" % vLD)
        a("s_mov_b64 exec, 1")
        vm.issue("buffer_store_dword v28, v%d, s[80:83], s39 offen%s" % (vLD, SC), "sent")
        a("s_add_u32 s39, s39, 32768")
        vm.issue("buffer_store_dword v28, v%d, s[80:83], s39 offen%s" % (vLD, SC), "sent")
        a("s_mov_b64 exec, -1")
        srd(a, 84, 100, 0, 256)
    def setup1():
        a("v_and_b32 v%d, 15, v0" % vPO)
        a("v_lshlrev_b32 v%d, 4, v%d" % (vPO, vPO))
    def setup2():
        a("v_and_b32 v%d, 15, v0" % vV)
        a("v_lshlrev_b32 v%d, 4, v%d" % (vV, vV))
        a("v_lshrrev_b32 v%d, 5, v0" % vIX)
        a("v_lshl_add_u32 v%d, v%d, 8, v%d" % (vV, vIX, vV))
        a("s_lshl_b32 s24, s89, 16")
        a("s_lshl_b32 s25, s88, 3")
        a("s_lshl_b32 s26, s22, 2")
        a("s_add_u32 s25, s25, s26")
        a("s_lshl_b32 s27, s23, 14")
        a("s_add_u32 s27, s27, s24")
        a("s_add_u32 s26, s27, %s" % hx(KF))
        srd(a, 8, 14, "s26", 16384)
        a("s_add_u32 s26, s27, %s" % hx(VF))
        srd(a, 4, 14, "s26", 16384)
        a("s_lshl_b32 s26, s88, 11")
        if not KVROT: a("s_mov_b32 s26, 0")
        srd(a, 52, 14, "s24", 65536)
    def setup2b():
        a("v_and_b32 v%d, 31, v0" % vIX)
        a("v_cmp_eq_u32 s[96:97], 16, v%d" % vIX)
        a("v_mov_b32 v%d, 0x3f803f80" % vIX)
        a("s_mov_b32 s30, 0x0000ffff"); a("s_mov_b32 s31, 0x0000ffff")
        a("v_cndmask_b32 v%d, 0, v%d, s[96:97]" % (V[0], vIX))
        for i in range(1, 16): a("v_mov_b32 v%d, v%d" % (V[0] + i, V[0]))
        a("v_mov_b32 v%d, 0xdddddddd" % vIX)
    def setup3():
        a("s_lshr_b32 s22, s3, 2")
        a("s_and_b32 s23, s3, 3")
        a("v_bfe_u32 v2, v0, 4, 1")
        a("v_lshlrev_b32 v5, 2, v2")
        a("v_and_b32 v6, 7, v0")
        a("v_xor_b32 v5, v5, v6")
        a("v_lshlrev_b32 v5, 4, v5")
        a("v_lshrrev_b32 v6, 3, v0")
        a("v_lshl_add_u32 v%d, v6, 10, v5" % vW0)
        a("s_lshl_b32 s38, s22, 13")
        a("v_add_u32 v%d, s38, v%d" % (vWA, vW0))
        a("v_add_u32 v%d, %d, v%d" % (vWB, 16384 - 2048, vWA))
        a("v_lshrrev_b32 v5, 5, v0")
        a("v_bfe_u32 v6, v0, 2, 2")
        a("v_lshl_add_u32 v5, v5, 2, v6")
        a("v_bfe_u32 v6, v0, 1, 1")
        a("v_lshl_add_u32 v6, v2, 1, v6")
        a("v_bfe_u32 v3, v0, 3, 1")
        a("v_lshl_add_u32 v6, v3, 2, v6")
        a("v_lshlrev_b32 v6, 4, v6")
        a("v_and_b32 v3, 1, v0")
        a("v_lshl_add_u32 v6, v3, 3, v6")
        a("v_lshl_add_u32 v6, v5, 7, v6")
        a("s_lshl_b32 s16, s23, 12")
        a("s_add_u32 s16, s16, %d" % RING)
        a("v_add_u32 v%d, s16, v6" % vT0)
        a("v_xor_b32 v%d, 64, v%d" % (vT1, vT0))
        a("s_lshl_b32 s38, s22, 10")
        a("s_add_u32 s17, s16, s38")
        a("s_and_b32 s20, s89, 3")
        a("s_add_u32 s21, s20, s88")
        a("s_cmp_ge_u32 s21, 6")
        a("s_cselect_b32 s90, 6, 0")
        a("s_sub_u32 s21, s21, s90")
        a("s_lshl_b32 s21, s21, 2")
        a("s_mov_b32 s90, 0x32dc7632")
        a("s_mov_b32 s91, 0xdc76")
        a("s_lshr_b64 s[90:91], s[90:91], s21")
        a("s_and_b32 s36, s90, 0xffffff")
        a("s_lshl_b32 s20, s20, 1")
        a("s_add_u32 s21, s20, s88")
        a("s_and_b32 s21, s21, 7")
        a("s_lshl_b32 s21, s21, 2")
        a("s_mov_b32 s90, 0xba985410")
        a("s_mov_b32 s91, s90")
        a("s_lshr_b64 s[90:91], s[90:91], s21")
        a("s_mov_b32 s91, s36")
    chunks = {}
    def ldq(vm, s):
        a("s_add_u32 s28, s23, %d" % s)
        a("s_and_b32 s28, s28, 3")
        a("s_add_u32 s28, s28, s25")
        a("s_lshl_b32 s28, s28, 10")
        vm.issue("buffer_load_dwordx4 %s, v1, s[52:55], s28 offen%s" % (vr(Q + 4 * s, 4), SC), "Q")
    def hook(kind, vm, where):
        if where == "init": chunks.clear()
        elif where == "early": early(vm)
        elif where == "pub":
            a("s_lshl_b32 s94, s19, 4")
            publish(vm, "s94")
        elif where == "poll":
            assert not chunks["L"] and not chunks["V"], (len(chunks["L"]), len(chunks["V"]))
            if NOWAIT: a("v_mov_b32 v%d, 0" % vP)
            poll(vm)
        elif where == "ld":
            spin("KF_SQ_" + kind, 16, None if NOWAIT else vm, note=" ; kv-ok")
            gen1.stamp(a, "sq1")
            ldq(vm, 0); ldK(vm, 0); ldq(vm, 1)
            if SPLIT == 0: ldq(vm, 2); ldq(vm, 3); ldV(vm, 0); ldK(vm, 1); ldV(vm, 1)
        elif where == "mid_h":
            if SPLIT: ldK(vm, 1); ldV(vm, 1)
        elif where == "warm":
            if not WARM: return
            srd(a, 28, 76, 0, 1792 * 1024)
            a("s_lshl_b32 s94, s2, 3")
            a("s_add_u32 s94, s94, s3")
            a("s_mul_i32 s96, s94, 896")
            a("v_lshlrev_b32 v29, 7, v0")
            a("s_mov_b64 exec, 0x7f")
            vm.issue("buffer_load_dword v17, v29, s[28:31], s96 offen ; dummy", "pf")
            srd(a, 28, 78, 0, 512 * 1024)
            a("s_lshl_b32 s96, s94, 8")
            a("s_mov_b64 exec, 3")
            vm.issue("buffer_load_dword v17, v29, s[28:31], s96 offen ; dummy", "pf")
            a("s_mov_b64 exec, -1")
        elif isinstance(where, tuple):
            g, n = where
            if g < 44: return []
            if "L" not in chunks:
                chunks["L"] = cap(setup3) + cap(setup2); chunks["V"] = cap(setup2b) + cap(setup1)
            key = "L" if chunks["L"] else "V"
            if key == "V" and g < 74: return []
            while n < len(chunks[key]) and chunks[key][n][1].startswith(("s_cselect", "s_addc")): n += 1
            L = chunks[key][:n]; chunks[key] = chunks[key][n:]
            return L
        elif where == "pre_h":
            a("s_setprio 3")
            if SPLIT: ldq(vm, 2); ldq(vm, 3); ldV(vm, 0)
    ENTRY = ["Q", ("K", 0), "Q", "Q", "Q", ("V", 0), ("V", 0), ("K", 1), ("V", 1), ("V", 1), "h", "h"]
    def tail(kind, vm):
        assert vm.ops[-12:] == ENTRY, vm.ops
        if kind != "P": a("s_branch KF_C")
    a("s_load_dwordx2 s[100:101], s[0:1], 72")
    a("s_load_dwordx2 s[76:77], s[0:1], 48")
    a("s_load_dwordx2 s[78:79], s[0:1], 16")
    phase_ab(a, tail, hook)
    a.label("KF_C")
    gen1.stamp(a, 5)
    vm = VM(a); vm.ops = list(ENTRY)
    lg = VM(a, "lgkmcnt", 15)
    a("s_load_dwordx2 s[12:13], s[0:1], 64")
    def QK(sl, kb, sb): a("v_mfma_f32_32x32x16_bf16 %s, %s, %s, 0" % (vr(S[sb], 16), vr(K[kb], 4), vr(Q + 4 * sl, 4)))
    def PV(sl, vb, sb, j): a("v_smfmac_f32_32x32x32_bf16 %s, %s, %s, v%d" % (vr(O + 16 * sl, 16), vr(V[vb] + 4 * j, 4), vr(S[sb] + 8 * j, 8), vIX))
    def ZERO(r): a("v_mfma_f32_32x32x16_bf16 %s, %s, %s, 0" % (vr(r, 16), vr(vZ, 4), vr(vZ, 4)))
    for i in range(4): a("v_mov_b32 v%d, 0" % (vZ + i))
    vm.wait(("K", 0))
    QK(0, 0, 0)
    for i in range(4): ZERO(O + 16 * i)
    a("s_lshr_b32 s38, s89, 1")
    a("s_lshl_b32 s38, s38, 11")
    a("v_and_b32 v%d, 15, v0" % vPO)
    a("v_lshl_add_u32 v%d, v%d, 7, s38" % (vPO, vPO))
    a("s_mov_b32 s96, 32768")
    a("s_lshl_b32 s44, s89, 1")
    a("s_add_u32 s44, s44, s22")
    a("s_mul_i32 s38, s44, 112")
    a("s_mul_i32 s39, s23, 28")
    a("s_add_u32 s38, s38, s39")
    a("s_lshl_b32 s38, s38, 10")
    a("s_add_u32 s38, s38, %s" % hx(HF))
    srd(a, 32, 14, "s38", 28 * 1024)
    a("s_lshl_b32 s38, s39, 14")
    a("s_lshl_b32 s45, s88, 7")
    a("s_add_u32 s38, s38, s45")
    a("s_sub_u32 s39, %d, s38" % (1792 * 1024))
    a("s_waitcnt lgkmcnt(0)")
    srd(a, 48, 76, "s38", "s39")
    srd(a, 40, 78, 0, 512 * 1024)
    FLG = 161792
    vF, vFA, vFB, vFR = 232, 233, 234, 235
    vRW = 236
    def ldH(b, k, so="s20"):
        vm.issue("buffer_load_dwordx4 %s, v1, s[32:35], %s offen offset:%d%s" % (vr(HB_ + 8 * b + 4 * k, 4), so, 1024 * k, SC), ("H", b, k))
    def ldW(b, k):
        if k == 0:
            a("s_and_b32 s20, s90, 15")
            a("s_lshr_b64 s[90:91], s[90:91], 4")
            a("s_add_u32 m0, s17, %d" % (b * 16384))
            a("s_lshl_b32 s21, s20, 15")
            a("s_lshl_b32 s20, s20, 11")
        vm.issue("buffer_load_dwordx4 v%d, s[48:51], s21 offen offset:%d lds" % (vWA + k, 2048 * k), ("W", b))
    def rdW(b, k):
        for ft in range(2):
            for q in range(2):
                lg.issue("ds_read_b64_tr_b16 %s, v%d offset:%d" % (vr(WF + 8 * k + 4 * ft + 2 * q, 2), vT0 + ft, b * 16384 + k * 2048 + q * 1024), ("w", k, ft))
    def DM(b, n):
        k, ft = n // 2, n % 2
        lg.wait(("w", k, ft))
        vm.wait(("H", b, k))
        d = vr(DA + 16 * ft, 16)
        a("v_mfma_f32_32x32x16_bf16 %s, %s, %s, %s" % (d, vr(WF + 8 * k + 4 * ft, 4), vr(HB_ + 8 * b + 4 * k, 4), d))
    def signal(b):
        a("v_add_u32 v%d, 1, v%d" % (vF, vF))
        vm.wait(("W", b))
        lg.issue("ds_write_b32 v%d, v%d" % (vFA, vF), "fw")
    def peek(): lg.issue("ds_read_b32 v%d, v%d" % (vFR, vFB), "fr")
    def precheck():
        lg.wait("fr")
        a("v_cmp_lt_u32 vcc, v%d, v%d" % (vFR, vF))
    def check(lab):
        a("s_cbranch_vccnz %s" % lab)
        a.label(lab + "_OK")
        def slow():
            a.label(lab)
            a("s_mov_b32 s38, 0x40000")
            a("s_setprio 0")
            a.label(lab + "_L")
            a("s_sleep 1")
            a("ds_read_b32 v%d, v%d" % (vFR, vFB))
            a("s_sub_u32 s38, s38, 1")
            a("s_waitcnt lgkmcnt(0)")
            a("v_cmp_lt_u32 vcc, v%d, v%d" % (vFR, vF))
            a("s_cbranch_scc1 %s_GO" % lab)
            a("s_cbranch_vccnz %s_L" % lab)
            a.label(lab + "_GO")
            a("s_setprio 3")
            a("s_branch %s_OK" % lab)
        outl[lab] = slow
    outl = {}
    def keytile(b, first=False, down=False, loop=None, top=None, extra=None, pre=False, lab=None):
        if top:
            top("pre"); a("s_barrier"); top("post")
        for sl in range(4):
            sb = sl % 2
            def E(i): a("v_exp_f32 v%d, v%d" % (S[sb] + i, S[sb] + i))
            if LADDER == 2:
                if sl % 2 == 0: a("s_setprio %d" % (3 - 2 * b - sl // 2))
            elif LADDER: a("s_setprio %d" % (3 - sl))
            elif first and sl == 0: a("s_setprio 0")
            if down and sl == 0:
                if "nosync" not in XP: check(lab)
                if "nord" not in XP: rdW(b, 0)
            E(0); E(1)
            if sl == 0:
                if not first:
                    PV(3, 1 - b, 1, 1)
                    ldV(vm, 1 - b)
            else: PV(sl - 1, b, 1 - sb, 1)
            if down and sl == 1 and "nord" not in XP: rdW(b, 1)
            E(2); E(3); E(4)
            if sl == 3:
                vm.wait(("K", 1 - b))
                QK(0, 1 - b, 0)
            else:
                if first: vm.wait("Q")
                QK(sl + 1, b, 1 - sb)
                if sl == 2: ldK(vm, b)
            if (down or pre) and sl < 2 and not (down and "nold" in XP): ldW(b, sl)
            if (down or pre == 2) and sl == 2 and not (down and "nosync" in XP): signal(1 - b)
            if (down or pre == 2) and sl == 3 and not (down and "nosync" in XP): peek()
            for i in range(5, 10): E(i)
            if sl == 0: vm.wait(("V", b))
            PV(sl, b, sb, 0)
            for i in range(10, 13): E(i)
            if extra: extra(sl)
            if down:
                if "nodm" not in XP: DM(b, sl)
                if sl % 2 == 1 and "nold" not in XP: ldH(b, sl // 2)
                if sl == 3:
                    if b == 1:
                        a("v_xor_b32 v%d, 0x8000, v%d" % (vT0, vT0))
                        a("v_xor_b32 v%d, 0x8000, v%d" % (vT1, vT1))
                        a("s_xor_b32 s17, s17, 0x8000")
            if loop and sl == 3:
                a("s_sub_u32 s46, s46, 1"); a("s_cmp_lg_u32 s46, 0")
            E(13)
            if (down or pre == 2) and sl == 3 and not (down and "nosync" in XP): precheck()
            E(14); E(15)
    def pubH(tag, off):
        def f(when):
            if when == "pre":
                vm.wait(tag); lg.wait("fw")
            else:
                a("s_lshl_b32 s38, s18, 4")
                a("s_add_u32 s38, s38, s19")
                a("s_lshl_b32 s38, s38, 7")
                if off: a("s_add_u32 s38, s38, %d" % off)
                a("v_mov_b32 v4, 1")
                a("s_mov_b64 exec, 1")
                vm.issue("buffer_store_dword v4, v%d, s[80:83], s38 offen sc1" % vLD, "flag")
                a("s_mov_b64 exec, -1")
        return f
    def wo_stage(i):
        a("s_add_u32 m0, s60, %d" % (i * 2048))
        a("s_add_u32 s38, s47, %d" % (i * 16384))
        vm.issue("buffer_load_dwordx4 v%d, s[40:43], s38 offen lds" % vW0, "wo")
        a("s_add_u32 s38, s38, %d" % (8192 - 1024))
        vm.issue("buffer_load_dwordx4 v%d, s[40:43], s38 offen offset:1024 lds" % vW0, "wo")
    a("s_lshl_b32 s60, s3, 13")
    a("s_lshl_b32 s47, s3, 16")
    a("s_add_u32 s47, s47, s45")
    def ex0(sl):
        if sl < 2: ZERO(DA + 16 * sl)
        if sl == 2:
            a("s_lshl_b32 s38, s3, 8")
            a("s_add_u32 s38, s38, %d" % FLG)
            a("v_lshl_add_u32 v%d, v0, 2, s38" % vFA)
            a("v_xor_b32 v%d, 1024, v%d" % (vFB, vFA))
            a("v_mov_b32 v%d, 0" % vF)
            lg.issue("ds_write_b32 v%d, v%d" % (vFA, vF), "fw")
    keytile(0, first=True, extra=ex0)
    gen1.stamp(a, "k0")
    keytile(1, top=pubH("Q", 0), extra=wo_stage)
    gen1.stamp(a, "k1")
    def ex2(sl):
        if sl == 2: poll(vm, "s[80:83]")
        if sl < 3:
            s = sl + 1
            a("s_add_u32 s28, s23, %d" % s)
            a("s_and_b32 s28, s28, 3")
            a("s_lshl_b32 s38, s22, 2")
            a("s_add_u32 s28, s28, s38")
            a("s_mul_i32 s28, s28, 3")
            a("s_add_u32 s28, s28, %d" % (s - 1))
            a("s_mul_i32 s28, s28, 2304")
            a("s_add_u32 s28, s28, %d" % SCR)
            a("v_add_u32 v%d, s28, v1" % (vRW + 2 * sl))
            a("v_lshl_add_u32 v%d, v0, 2, s28" % (vRW + 2 * sl + 1))
        else:
            a("s_mul_i32 s28, s3, %d" % (3 * 2304))
            a("s_add_u32 s28, s28, %d" % SCR)
            a("v_add_u32 v%d, s28, v1" % (vRW + 6))
            a("v_lshl_add_u32 v%d, v0, 2, s28" % (vRW + 7))
    keytile(0, pre=1, extra=ex2)
    a("s_mov_b32 s36, s20")
    gen1.stamp(a, "k2")
    def top3(when):
        pubH("h", 32768)(when)
        if when == "post":
            spin("KF_SH", 1, vm, False, "s[80:83]")
            gen1.stamp(a, "sh1")
            ldH(0, 0, "s36"); ldH(0, 1, "s36")
    def ex3(sl):
        if sl % 2 == 1: ldH(1, sl // 2)
        if sl == 0: srd(a, 52, 14, OF, 2 * MB)
        if sl == 2:
            srd(a, 56, 14, GG, 16384)
            a("s_lshl_b32 s39, s44, 8")
            a("v_and_b32 v4, 31, v0")
            a("v_lshlrev_b32 v4, 3, v4")
            vm.issue("buffer_load_dwordx2 v[244:245], v4, s[56:59], s39 offen%s" % SC, "g")
        if sl == 3:
            a("s_xor_b32 s17, s17, 0x8000")
    keytile(1, top=top3, pre=2, extra=ex3)
    gen1.stamp(a, "k3")
    a("s_mov_b32 s46, 6")
    a("s_mov_b32 s37, 4")
    def ev():
        a.label("KF_EV")
        a("s_sub_u32 s37, s37, 1")
        a("s_cmp_eq_u32 s37, 3")
        a("s_cbranch_scc0 KF_EV2")
        a("buffer_load_dword v%d, v%d, s[80:83], s96 offen sc1" % (vP, vPO))
        a("s_branch KF_EVR")
        a.label("KF_EV2")
        a("s_mov_b32 s37, 0")
        a("s_waitcnt vmcnt(14)")
        spin("KF_S2", 1, None, False, "s[80:83]", "s96", " ; kv-ok")
        a("v_cmp_lt_u32 vcc, v%d, v%d" % (vFR, vF))
        a("s_nop 4")
        a("s_branch KF_EVR")
    outl["ev"] = ev
    def it():
        a("s_cmp_eq_u32 s46, s37")
        a("s_cbranch_scc1 KF_EV")
        a.label("KF_EVR")
        keytile(0, down=True, lab="KF_P0"); keytile(1, down=True, loop=True, lab="KF_P1")
        a("s_cbranch_scc1 KF_LB")
    body = steady_loop(a, [vm, lg], it)
    a(".p2align 6")
    a.label("KF_LB")
    a.lines += body
    a("s_nop 1")
    PV(3, 1, 1, 1)
    if LADDER: a("s_setprio 3")
    gen1.stamp(a, 7)
    a("s_barrier")
    a("s_nop 4")
    for s in range(1, 4):
        if s == 3: a("s_nop 1")
        a("ds_write_b128 v%d, %s" % (vRW + 2 * s - 2, vr(O + 16 * s, 4)))
        a("ds_write_b128 v%d, %s offset:1024" % (vRW + 2 * s - 2, vr(O + 16 * s + 4, 4)))
        a("ds_write_b32 v%d, v%d offset:2048" % (vRW + 2 * s - 1, O + 16 * s + 8))
    vm.wait(("W", 0), ("W", 1))
    a("s_waitcnt lgkmcnt(0)")
    a("s_barrier")
    gen1.stamp(a, "rb")
    for s in range(3):
        a("ds_read_b128 %s, v%d offset:%d" % (vr(O + 16 * (s + 1), 4), vRW + 6, s * 2304))
        a("ds_read_b128 %s, v%d offset:%d" % (vr(O + 16 * (s + 1) + 4, 4), vRW + 6, s * 2304 + 1024))
        a("ds_read_b32 v%d, v%d offset:%d" % (O + 16 * (s + 1) + 8, vRW + 7, s * 2304 + 2048))
    for s in range(3):
        a("s_waitcnt lgkmcnt(%d)" % (6 - 3 * s))
        for i in (8, 0, 1, 2, 3, 4, 5, 6, 7): a("v_add_f32 v%d, v%d, v%d" % (O + i, O + i, O + 16 * (s + 1) + i))
    a.label("KF_CHK")
    a("v_mov_b32 v4, v%d" % (O + 8))
    a("s_nop 1")
    a("v_permlane32_swap_b32 v%d, v4" % (O + 8))
    a("s_cmp_eq_u32 s46, 1")
    a("s_cbranch_scc1 KF_NORM")
    a("s_mov_b32 s38, %s" % hx(f2u(2.0 ** -60)))
    a("v_mov_b32 v5, %s" % hx(f2u(2.0 ** 40)))
    a("v_mul_f32 v4, 0, v%d" % O)
    for i in range(1, 8): a("v_fmac_f32 v4, 0, v%d" % (O + i))
    a("v_med3_f32 v5, v%d, s38, v5" % (O + 8))
    a("v_add_f32 v5, v5, v4")
    a("v_cmp_eq_f32 vcc, v5, v%d" % (O + 8))
    a("s_nop 1")
    a("s_cmp_eq_u64 vcc, -1")
    a("s_cbranch_scc0 KF_SLOW")
    a.label("KF_NORM")
    a("v_rcp_f32 v4, v%d" % (O + 8))
    a("s_nop 0")
    for i in range(8): a("v_mul_f32 v%d, v%d, v4" % (O + i, O + i))
    for i in range(4): a("v_cvt_pk_bf16_f32 v%d, v%d, v%d" % (S[0] + i, O + 2 * i, O + 2 * i + 1))
    for i in range(4): a("v_min_u32 v%d, -2, v%d" % (S[0] + i, S[0] + i))
    vm.issue("buffer_store_dwordx4 %s, v1, s[52:55], s61 offen%s" % (vr(S[0], 4), SC), "o")
    gen1.stamp(a, "ost")
    WO = 64; OFR = 128; vG = 244; YA = 32
    a("s_lshl_b32 s60, s44, 15")
    a("s_lshl_b32 s39, s23, 13")
    a("s_add_u32 s60, s60, s39")
    a("s_add_u32 s47, s60, 4096")
    def ldO(i): return "buffer_load_dwordx4 %s, v1, s[52:55], %s offen offset:%d%s" % (vr(OFR + 4 * i, 4), "s60" if i < 4 else "s47", (i % 4) * 1024, SC)
    rdW(0, 0); rdW(0, 1)
    a("v_and_b32 v4, 31, v0")
    a("v_and_b32 v7, 0xfff, v%d" % vT0)
    a("s_lshl_b32 s39, s23, 14")
    a("v_add_u32 v7, s39, v7")
    a("v_xor_b32 v8, 64, v7")
    def rdWo(i):
        for ft in range(2):
            for q in range(2):
                lg.issue("ds_read_b64_tr_b16 %s, v%d offset:%d" % (vr(WO + 8 * i + 4 * ft + 2 * q, 2), 7 + ft, i * 2048 + q * 1024), ("wof", i))
    DM(0, 0); DM(0, 1); rdW(1, 0)
    DM(0, 2); DM(0, 3); rdW(1, 1)
    rdWo(0)
    DM(1, 0); DM(1, 1)
    rdWo(1); rdWo(2)
    DM(1, 2); DM(1, 3)
    for i in range(8): vm.issue(ldO(i), ("of", i))
    for i in range(3, 8):
        lg.wait(("wof", i - 3)); rdWo(i)
    a("v_lshlrev_b32 v6, 10, v4")
    a("v_lshrrev_b32 v9, 5, v0")
    a("v_lshl_add_u32 v6, v9, 4, v6")
    a("s_lshl_b32 s61, s44, 15")
    a("s_add_u32 s61, s61, s45")
    a("s_lshl_b32 s39, s23, 5")
    a("s_add_u32 s61, s61, s39")
    srd(a, 4, 12, 0, 2 * MB)
    a("s_mul_i32 s38, s22, %d" % (4 * 6912))
    a("s_add_u32 s38, s38, %d" % SCR)
    a("v_add_u32 v10, s38, v1")
    vm.wait("g")
    for i in range(32): a("v_mul_f32 v%d, v%d, v%d" % (DA + i, DA + i, vG + 1))
    lg.wait(("wof", 7))
    gen1.stamp(a, "so0")
    a("s_mov_b32 s38, 0x8000")
    for i in range(8):
        vm.wait(("of", i))
        r = OFR + 4 * i
        lab = "KF_O%d" % i
        a.label(lab)
        a("v_max3_u32 v11, v%d, v%d, v%d" % (r, r + 1, r + 2))
        a("v_max_u32 v11, v11, v%d" % (r + 3))
        a("v_cmp_eq_u32 vcc, -1, v11")
        a("s_nop 0")
        a("s_cbranch_vccnz %s_RE" % lab)
        a.label(lab + "_OK")
        def slow(i=i, lab=lab):
            a.label(lab + "_RE")
            a("s_sub_u32 s38, s38, 1")
            a("s_cbranch_scc1 %s_GU" % lab)
            a("s_sleep 1")
            for j in range(i, 8): a(ldO(j))
            a("s_waitcnt vmcnt(0)")
            a("s_branch %s" % lab)
            a.label(lab + "_GU")
            a("s_mov_b32 s38, 0")
            a("s_branch %s_OK" % lab)
        outl[lab] = slow
        for ft in range(2):
            d = vr(YA + 16 * ft, 16)
            a("v_mfma_f32_32x32x16_bf16 %s, %s, %s, %s" % (d, vr(WO + 8 * i + 4 * ft, 4), vr(r, 4), "0" if i == 0 else d))
    gen1.stamp(a, "so1")
    a("s_cmp_ge_u32 s23, 2")
    a("s_nop 10")
    for i in range(32): a("v_fmac_f32 v%d, v%d, v%d" % (DA + i, YA + i, vG))
    a("s_cbranch_scc1 KF_X2")
    a("s_cmp_eq_u32 s23, 1")
    a("s_cbranch_scc1 KF_X1")
    def fin(kq):
        idx = lambda src, dst: dst if dst < src else dst - 1
        for p in range(4):
            if p == kq: continue
            a("ds_write_b128 v%d, %s offset:%d" % (vRW + 6, vr(DA + 8 * p, 4), idx(kq, p) * 2048))
            a("ds_write_b128 v%d, %s offset:%d" % (vRW + 6, vr(DA + 8 * p + 4, 4), idx(kq, p) * 2048 + 1024))
        a("s_waitcnt lgkmcnt(0)")
        a("s_barrier")
        srcs = [s for s in range(4) if s != kq]
        for n, s in enumerate(srcs):
            a("ds_read_b128 %s, v10 offset:%d" % (vr(YA + 8 * n, 4), s * 6912 + idx(s, kq) * 2048))
            a("ds_read_b128 %s, v10 offset:%d" % (vr(YA + 8 * n + 4, 4), s * 6912 + idx(s, kq) * 2048 + 1024))
        a("s_waitcnt lgkmcnt(4)")
        for i in range(8): a("v_add_f32 v%d, v%d, v%d" % (YA + i, YA + i, DA + 8 * kq + i))
        a("s_waitcnt lgkmcnt(0)")
        for i in range(8): a("v_add_f32 v%d, v%d, v%d" % (YA + 8 + i, YA + 8 + i, YA + 16 + i))
        for i in range(8): a("v_add_f32 v%d, v%d, v%d" % (YA + i, YA + i, YA + 8 + i))
        for i in range(4): a("v_cvt_pk_bf16_f32 v%d, v%d, v%d" % (YA + 24 + i, YA + 2 * i, YA + 2 * i + 1))
        a("s_nop 1")
        a("v_permlane32_swap_b32 v%d, v%d" % (YA + 24, YA + 26))
        a("v_permlane32_swap_b32 v%d, v%d" % (YA + 25, YA + 27))
        a("buffer_store_dwordx4 %s, v6, s[4:7], s61 offen%s" % (vr(YA + 24, 4), OSC))
        gen1.stamp(a, "fin")
        gen1.stamp_end(a, 0, 14, 5)
        a("s_endpgm")
    fin(0)
    a.label("KF_X1"); fin(1)
    a.label("KF_X2")
    a("s_cmp_eq_u32 s23, 3")
    a("s_cbranch_scc1 KF_X3")
    fin(2)
    a.label("KF_X3"); fin(3)
    a.label("KF_END")
    a("s_endpgm")
    for f in list(outl.values()): f()
    a("s_endpgm")
    a.label("KF_SLOW")
    vm2 = VM(a)
    CB = O + 16
    a("s_waitcnt vmcnt(0)")
    a("s_add_u32 s26, s24, %s" % hx(KF))
    srd(a, 8, 14, "s26", 65536)
    a("s_add_u32 s26, s24, %s" % hx(VF))
    srd(a, 4, 14, "s26", 65536)
    a("s_mov_b32 s26, 0")
    a("v_mov_b32 v4, 0xff800000")
    a("s_mov_b32 s46, 64")
    a.label("KF_SL1")
    ldK(vm2, 0)
    a("s_add_u32 s26, s26, 1024")
    a("s_waitcnt vmcnt(0)")
    QK(0, 0, 0)
    a("s_nop 15")
    for i in range(8): a("v_max3_f32 v4, v4, v%d, v%d" % (S[0] + 2 * i, S[0] + 2 * i + 1))
    a("s_sub_u32 s46, s46, 1"); a("s_cmp_lg_u32 s46, 0")
    a("s_cbranch_scc1 KF_SL1")
    a("v_mov_b32 v5, v4")
    a("s_nop 1")
    a("v_permlane32_swap_b32 v4, v5")
    a("s_nop 1")
    a("v_max_f32 v4, v4, v5")
    for i in range(16): a("v_sub_f32 v%d, 0, v4" % (CB + i))
    for i in range(16): a("v_mov_b32 v%d, 0" % (O + i))
    a("s_mov_b32 s26, 0")
    a("s_mov_b32 s46, 65")
    a.label("KF_SL2")
    ldK(vm2, 0); ldV(vm2, 0, False)
    a("s_waitcnt vmcnt(0)")
    a("v_mfma_f32_32x32x16_bf16 %s, %s, %s, %s" % (vr(S[0], 16), vr(K[0], 4), vr(Q, 4), vr(CB, 16)))
    a("s_nop 15")
    for i in range(16): a("v_exp_f32 v%d, v%d" % (S[0] + i, S[0] + i))
    a("s_nop 1")
    PV(0, 0, 0, 0); PV(0, 0, 0, 1)
    a("s_sub_u32 s46, s46, 1"); a("s_cmp_lg_u32 s46, 1")
    a("s_cbranch_scc1 KF_SL2")
    a("s_nop 15")
    a("s_branch KF_CHK")
    a("s_endpgm")
    return NAME, 256, "grid=(256,1,1) block=(512,1,1) lds=163840"

def parse(argv):
    global KVROT, OSC, LADDER, HPUB, LATE
    global WARM, NOWAIT, SPLIT
    if 'nosplit' in argv: SPLIT = 0
    if 'wait' in argv: NOWAIT = False
    if 'nowarm' in argv: WARM = False
    if "stamp" in argv: gen1.STAMP = True
    if "rt" in argv: gen1.RT = True
    gen3.GST = [32]
    for x in argv:
        if x.startswith("rot="): ab3.ROT = int(x[4:])
        if x.startswith("epr="): ab3.EPR = int(x[4:])
        if x == "pk": ab3.PK = True
        if x.startswith("prio="): ab3.PRIO, ab3.PRG = [int(y) for y in x[5:].split(",")]
        if x.startswith("stg="): ab3.STG = int(x[4:])
        if x.startswith("eprr="): ab3.EPRR = int(x[5:])
        if x.startswith("ch="): ab3.CH = int(x[3:])
        if x.startswith("ldg="): ab3.LDG = int(x[4:]); ab3.POLLG = ab3.LDG - 5
        if x.startswith("early="): ab3.EARLY = dict(zip(("P", "R0", "R1"), [int(y) for y in x[6:].split(",")]))
        if x.startswith("d2="): ab3.D2 = int(x[3:])
        if x.startswith("pubs="): ab3.PUBS = dict(zip(("P", "R0", "R1"), [int(y) for y in x[5:].split(",")]))
        if x.startswith("gst="): gen3.GST = [int(y) for y in x[4:].split(",")]
        if x.startswith("smap="): gen1.SMAP = [int(y) if y.isdigit() else y for y in x[5:].split(",")]
        if x == "nokvrot": KVROT = False
        if x == "noladder": LADDER = False
        if x == "ladder2": LADDER = 2
        if x == "ns4": gen3.NS4 = True
        if x.startswith("d8="): gen3.D8AT = int(x[3:])
        if x.startswith("lead2="): gen3.LEAD2 = int(x[6:])
        if x == "fsync": gen3.FSYNC = True
        if x.startswith("sig="): gen3.SIG1, gen3.SIG2 = [int(y) for y in x[4:].split(",")]
        if x.startswith("xp="): XP.extend(x[3:].split(",")); ab3.XP = XP
        if x.startswith("hpub="): HPUB = int(x[5:])
        if x.startswith("osc="): OSC = " " + x[4:]
if __name__ == "__main__":
    parse(sys.argv)
    build1(sys.argv[1], kf, aslist=("list" in sys.argv))
```

```python
import sys
sys.path.insert(0, "gen")
import gen1
from gen1 import *
from asmlib import *
from gen2 import gate_code
SC = " sc1"
SLOT = 32768
GCG = -1
EPR = 7
PUBS = {"P": 12, "R": 12}
ROT = 8
IWARM = False
PRIO = 0
PRG = 32
STG = 3
XP = []
PK = False
CH = 3
D2 = 3
POLLG = 88; LDG = 93; WARMG = 68
EARLY = {"P": 31, "R": 31}
EPRR = 7

def phase_ab(a, tail, hook):
    X = 128; WF = 32; E = 128
    SET = [64, 80, 96, 112]
    vAX, vT, vST, vAW1, vA2, vAM, vSV, vD, vDM = 2, 3, 4, 5, 7, 9, 10, 11, 16
    a("v_lshrrev_b32 v20, 4, v0")
    a("v_and_b32 v21, 7, v0")
    a("v_xor_b32 v22, v21, v20")
    a("v_lshlrev_b32 v22, 4, v22")
    a("v_lshrrev_b32 v23, 3, v0")
    a("v_lshl_add_u32 v22, v23, 10, v22")
    a("s_lshl_b32 s58, s3, 14")
    a("v_add_u32 v%d, s58, v22" % vD)
    a("v_xor_b32 v%d, 64, v%d" % (vD + 1, vD))
    a("v_add_u32 v%d, %d, v%d" % (vD + 1, 7168, vD + 1))
    a("v_and_b32 v22, 1, v20")
    a("v_lshlrev_b32 v22, 2, v22")
    a("v_xor_b32 v22, v22, v21")
    a("v_lshlrev_b32 v22, 4, v22")
    a("s_lshl_b32 s58, s3, 3")
    a("v_add_u32 v23, s58, v23")
    a("v_mul_u32_u24 v24, 3072, v23")
    a("v_add_u32 v%d, v24, v22" % (vD + 2))
    a("s_lshl_b32 s56, s3, 11")
    a("s_lshl_b32 s57, s3, 10")
    a("s_lshl_b32 s44, s18, 17")
    a("s_lshl_b32 s45, s19, 7")
    a("s_sub_u32 s46, %d, s45" % (512 * 3072))
    a("s_lshl_b32 s50, s55, 1")
    a("s_add_u32 s50, s50, s18")
    if ROT != 8:
        a("s_add_u32 s50, s55, s18")
        a("s_and_b32 s50, s50, %d" % (ROT - 1))
        a("s_mul_i32 s50, s50, %d" % (8 // ROT))
    a("s_lshl_b32 s51, s54, 8")
    a("s_sub_u32 s51, 1920, s51")
    a("s_add_u32 s28, s55, 1")
    a("s_waitcnt lgkmcnt(0)")
    gen1.stamp(a, 1)
    if IWARM:
        a("s_getpc_b64 s[90:91]")
        a.label("AB_PC")
        a("s_lshl_b32 s92, s17, 3")
        a("s_add_u32 s92, s92, s3")
        a("s_lshl_b32 s92, s92, 7")
        a("s_add_u32 s93, s92, 32768")
        a("s_min_u32 s93, s93, KF_LAST-AB_PC")
        a("s_load_dword s53, s[90:91], s92")
        a("s_load_dword s59, s[90:91], s93")
    srd(a, 20, 4, "s44", 128 * 1024)
    srd(a, 24, 6, "s45", "s46")
    a("s_bitcmp1_b32 s28, 1")
    a("s_cbranch_scc0 AB_P")

    def stream(kind):
        P = kind == "P"
        vm = VM(a); lg = VM(a, "lgkmcnt", 15)
        def base(s): return (s % 5) * SLOT
        def dma(s):
            b = base(s); tag = ("d", s)
            G = []
            def grp(m0, off, txt, pre=None):
                G.append([("s", "s_add_u32 m0, %s, %s" % (m0, hx(off)))] + (pre or [("s", "s_nop 0")]) + [("v", txt)])
            ld = "buffer_load_dwordx4 v%d, s[%d:%d], %s offen offset:%d lds"
            if s < 8:
                pre = [("s", "s_add_u32 s48, s50, %d" % s), ("s", "s_and_b32 s48, s48, 7"),
                       ("s", "s_mul_i32 s49, s48, %d" % (64 * 3072)), ("s", "s_lshl_b32 s48, s48, 7")]
                grp("s56", b, ld % (vD, 20, 23, "s48", 0), pre)
                G.append([("v", ld % (vD + 1, 20, 23, "s48", 1024))])
                grp("s57", b + 16384, ld % (vD + 2, 24, 27, "s49", 0))
                if not P: grp("s57", b + 24576, ld % (vD + 2, 24, 27, "s49", 0), [("s", "s_add_u32 s49, s49, s51")])
            else:
                for c in range(2):
                    pos = (2 * (s - 8) + c) % 8
                    pre = [("s", "s_add_u32 s48, s50, %d" % pos), ("s", "s_and_b32 s48, s48, 7"),
                           ("s", "s_mul_i32 s49, s48, %d" % (64 * 3584)), ("s", "s_add_u32 s49, s49, s%d" % (52 if s < 12 else 97))]
                    if P or s < 12:
                        grp("s57", b + c * 16384, ld % (vD + 3, 40, 43, "s49", 0), pre)
                        grp("s57", b + c * 16384 + 8192, ld % (vD + 4, 44, 47, "s49", 0))
                    else:
                        grp("s57", b + c * 8192, ld % (vDM, 4, 7, "s49", 0), pre)
            return [[(k, t, tag) for (k, t) in g] for g in G]
        def flat(G): return [x for g in G for x in g]
        def emit(it):
            k, t, tag = it
            if k == "v": vm.issue(t, tag)
            elif k == "l": lg.issue(t, tag)
            elif k == "f": t()
            else: a(t)
        gi0, gc0 = gate_code(a, vm, "s[28:31]", "s[20:23]", "s39", X + 112)
        if GCG >= 0:
            for it in flat(dma(0)): emit(it)
        srd(a, 28, 12, 0, 1024)
        a("s_lshl_b32 s60, s19, 3")
        a("s_add_u32 s60, s60, s3")
        a("s_lshl_b32 s39, s60, 10")
        gi0()
        if GCG < 0:
            for it in flat(dma(0)): emit(it)
        a("s_barrier")
        for it in flat(dma(1)): emit(it)
        hook(kind, vm, "init")
        a("s_lshl_b32 s58, s55, 3")
        a("s_lshr_b32 s38, 0x140e0800, s58")
        a("s_and_b32 s38, s38, 0xff")
        a("s_lshr_b32 s52, 0x00400000, s58")
        a("s_and_b32 s52, s52, 0xff")
        a("s_lshr_b32 s97, 0x80008080, s58")
        a("s_and_b32 s97, s97, 0xff")
        a("s_mul_i32 s58, s54, 28")
        a("s_add_u32 s58, s58, s38")
        a("s_lshl_b32 s38, s58, 5")
        a("s_sub_u32 s39, %d, s38" % (512 * 3584))
        srd(a, 40, 8, "s38", "s39")
        srd(a, 44, 10, "s38", "s39")
        a("v_mul_u32_u24 v24, 3584, v23")
        a("v_add_u32 v%d, v24, v22" % (vD + 3))
        a("v_xor_b32 v%d, 32, v%d" % (vD + 4, vD + 3))
        if not P:
            a("v_lshrrev_b32 v23, 2, v0")
            a("s_lshl_b32 s38, s36, 4")
            a("v_add_u32 v23, s38, v23")
            a("v_mul_u32_u24 v23, 3584, v23")
            a("v_and_b32 v24, 3, v0")
            a("s_lshl_b32 s38, s37, 1")
            a("v_xor_b32 v24, s38, v24")
            a("s_cmp_eq_u32 s37, 0")
            a("s_cselect_b32 s4, s40, s44")
            a("s_cselect_b32 s5, s41, s45")
            a("s_mov_b32 s6, s42")
            a("s_mov_b32 s7, 0x20000")
            a("v_lshl_add_u32 v%d, v24, 4, v23" % vDM)
        a("v_and_b32 v24, 31, v0")
        a("v_lshrrev_b32 v25, 5, v0")
        a("v_bfe_u32 v26, v0, 1, 3")
        a("v_xor_b32 v26, v25, v26")
        a("v_lshlrev_b32 v26, 4, v26")
        a("v_lshl_add_u32 v26, v24, 7, v26")
        a("s_lshl_b32 s38, s36, 12")
        a("v_add_u32 v%d, s38, v26" % vAX)
        a("v_bfe_u32 v21, v0, 2, 2")
        a("v_lshl_add_u32 v26, v25, 3, v21")
        a("v_bfe_u32 v27, v0, 4, 1")
        a("v_and_b32 v28, 3, v0")
        a("v_lshlrev_b32 v28, 3, v28")
        a("v_bfe_u32 v30, v0, 3, 1")
        a("v_lshl_add_u32 v22, v26, 7, v28")
        a("v_lshl_add_u32 v29, v27, 5, v22")
        a("v_xor_b32 v23, s37, v30")
        a("v_lshl_add_u32 v29, v23, 6, v29")
        a("v_add_u32 v%d, 16384, v29" % vAW1)
        if not P: a("v_add_u32 v%d, 24576, v29" % (vAW1 + 1))
        a("v_lshl_add_u32 v23, v23, 1, v27")
        a("v_lshl_add_u32 v29, v23, 5, v22")
        a("v_lshl_add_u32 v29, v27, 13, v29")
        a("v_add_u32 v%d, %d, v29" % (vA2, base(8)))
        a("v_xor_b32 v%d, 32, v%d" % (vA2 + 1, vA2))
        if not P:
            a("v_xor_b32 v23, s37, v27")
            a("v_lshl_add_u32 v29, v23, 5, v28")
            a("v_lshl_add_u32 v29, v26, 6, v29")
            a("v_lshl_add_u32 v29, v27, 12, v29")
            a("v_add_u32 v%d, %d, v29" % (vAM, base(12)))
        a("s_lshl_b32 s90, s18, 2")
        a("s_add_u32 s90, s90, s36")
        a("s_lshl_b32 s91, s90, 10")
        a("s_mul_i32 s90, s90, 112")
        a("s_add_u32 s90, s90, s58")
        a("s_lshr_b32 s38, s52, 5")
        a("s_add_u32 s95, s90, s38")
        a("s_lshr_b32 s38, s97, 5")
        a("s_add_u32 s58, s90, s38")
        a("s_lshl_b32 s38, s37, 1")
        a("s_add_u32 s58, s58, %s" % ("s38" if P else "s37"))
        a("s_lshl_b32 s58, s58, 10")
        a("s_add_u32 s95, s95, s38")
        a("s_lshl_b32 s95, s95, 10")
        if not P:
            a("v_and_b32 v29, 15, v0")
            a("v_lshlrev_b32 v29, 4, v29")
            a("v_lshl_add_u32 v29, v25, 8, v29")
            a("v_lshl_add_u32 v%d, v27, 16, v29" % vSV)
            a("s_lshl_b32 s38, s54, 1")
            a("s_add_u32 s38, s38, s55")
            a("s_sub_u32 s38, s38, 1")
            a("s_lshl_b32 s38, s38, 18")
            a("s_add_u32 s96, s91, s38")
            a("s_lshl_b32 s38, s37, 17")
            a("s_add_u32 s96, s96, s38")
            a("s_add_u32 s96, s96, %s" % hx(VF))
        a("s_cmp_lt_u32 s19, 8")
        a("s_cselect_b32 s92, %s, 1.0" % hx(f2u(0.25 * LOG2E)))
        a("s_cselect_b32 s38, 0, 12")
        a("s_mov_b32 s93, s92")
        a("v_lshrrev_b32 v29, 1, v24")
        a("v_xor_b32 v29, v24, v29")
        a("v_and_b32 v29, 4, v29")
        a("v_mul_u32_u24 v29, 3, v29")
        a("v_and_b32 v29, s38, v29")
        a("v_xor_b32 v29, v24, v29")
        a("v_lshlrev_b32 v29, 4, v29")
        a("v_lshl_add_u32 v%d, v25, 9, v29" % vST)
        a("s_lshl_b32 s38, s19, 18")
        a("s_add_u32 s91, s91, s38")
        a("s_lshl_b32 s38, s37, 17")
        a("s_add_u32 s91, s91, s38")
        a("s_add_u32 s94, s91, 0x10000")
        def gc():
            o = gc0()
            a("v_mov_b32 v30, v%d" % o); a("v_mov_b32 v31, v%d" % (o + 1))
            srd(a, 28, 14, 0, 6 * MB)
        def gst():
            srd(a, 28, 14, GG, 16384)
            a("s_lshl_b32 s39, s18, 7")
            a("s_add_u32 s38, s60, s39")
            a("s_lshl_b32 s38, s38, 3")
            a("v_mov_b32 v29, 0")
            a("s_mov_b32 exec_lo, 0")
            a("s_mov_b32 exec_hi, 0x80000000")
            vm.issue("buffer_store_dwordx2 v[30:31], v29, s[28:31], s38 offen%s" % SC, "gst")
            a("s_mov_b64 exec, -1")
            srd(a, 28, 14, 0, 6 * MB)
        T = [[3], [0, 1], [2, 3]] if P else [[0, 1], [2, 3], [0]]
        DIST = [2, D2, D2] if P else [2, D2, 4]
        def ph(g): return g // 32
        def stage(g): return g // 4 if g < 32 else 8 + (g - 32) // 8
        def first(g): return g % 4 == 0 if g < 32 else g % 8 == 0
        def wf(g, n):
            if len(T[ph(g)]) == 1 and ph(g) == 2: return WF + 4 * (g % 8)
            return WF + 8 * (g % 4) + 4 * n
        def reads(g):
            s = stage(g); p = ph(g); L = []
            if p == 0: R = [vAX] + [vAW1 + n for n in range(len(T[0]))]
            elif p == 2 and not P: R = [vAM]
            else: R = [vA2, vA2 + 1]
            if first(g) and s not in (0, 8) and not (s == 12 and not P):
                d = base(s) - base(s - 1)
                for r in R: L.append(("s", "v_add_u32 v%d, %s, v%d" % (r, hx(d), r), None))
            ks = g % 4
            if p == 0:
                if ks: L.append(("s", "v_xor_b32 v%d, %d, v%d" % (vT, 32 * ks, vAX), None))
                L.append(("l", "ds_read_b128 %s, v%d" % (vr(X + 4 * g, 4), vT if ks else vAX), g))
                R = R[1:]
            c = 0 if p == 0 else (g % 8) // 4
            for n in range(len(T[p])):
                rb_ = 64 if R[n] == vAM else 128
                for q in range(2):
                    L.append(("l", "ds_read_b64_tr_b16 %s, v%d offset:%d" % (vr(wf(g, n) + 2 * q, 2), R[n], c * 128 * rb_ + (16 * ks + 4 * q) * rb_), g))
            return L
        def mfmas(g):
            L = []
            x = vr(X + 4 * (g % 32), 4)
            for n, ac in enumerate(T[ph(g)]):
                d = vr(SET[ac], 16); w = vr(wf(g, n), 4)
                A, B = (x, w) if (g < 32 and n == 1) else (w, x)
                L.append("v_mfma_f32_32x32x16_bf16 %s, %s, %s, %s" % (d, A, B, "0" if g % 32 == 0 else d))
            return L
        def qkv_epi(n):
            b = SET[T[0][n]]; L = []
            if n == 0:
                for i in range(16): L.append(("s", "v_mul_f32 v%d, s92, v%d" % (b + i, b + i), None))
            for i in range(8): L.append(("s", "v_cvt_pk_bf16_f32 v%d, v%d, v%d" % (b + i, b + 2 * i, b + 2 * i + 1), None))
            if n == 0:
                L.append(("v", "buffer_store_dwordx4 %s, v%d, s[28:31], s91 offen%s" % (vr(b, 4), vST, SC), "qkv"))
                L.append(("v", "buffer_store_dwordx4 %s, v%d, s[28:31], s94 offen%s" % (vr(b + 4, 4), vST, SC), "qkv"))
            else:
                for j in range(2):
                    L.append(("v", "buffer_store_dwordx4 %s, v%d, s[28:31], s96 offen offset:%d%s" % (vr(b + 4 * j, 4), vSV, j * 512, SC), "qkv"))
            return L
        def silu(G, Tm, so, off, tag, pk=True):
            U = G + 8; L = []
            def op(o, d, x, y):
                if pk:
                    for i in range(4): L.append("v_pk_%s_f32 %s, %s, %s" % (o, vr(d + 2 * i, 2), vr(x + 2 * i, 2), y if isinstance(y, str) else vr(y + 2 * i, 2)))
                else:
                    for i in range(8): L.append("v_%s_f32 v%d, %s, v%d" % (o, d + i, {"s[92:93]": "s92", "s[12:13]": "1.0"}.get(y, None) or "v%d" % (y + i), x + i))
            op("mul", Tm, G, "s[92:93]")
            for i in range(8): L.append("v_exp_f32 v%d, v%d" % (Tm + i, Tm + i))
            op("mul", G, G, U)
            op("add", Tm, Tm, "s[12:13]")
            for i in range(8): L.append("v_rcp_f32 v%d, v%d" % (Tm + i, Tm + i))
            L.append("s_nop 0")
            op("mul", G, G, Tm)
            for i in range(4): L.append("v_cvt_pk_bf16_f32 v%d, v%d, v%d" % (G + i, G + 2 * i, G + 2 * i + 1))
            L = [("s", t, None) for t in L]
            L.append(("v", "buffer_store_dwordx4 %s, v1, s[32:35], %s offen offset:%d%s" % (vr(G, 4), so, off, SC), tag))
            return L
        def consts():
            a("s_mov_b32 s92, %s" % hx(f2u(-LOG2E))); a("s_mov_b32 s93, s92")
            a("s_mov_b32 s12, 1.0"); a("s_mov_b32 s13, 1.0")
            srd(a, 32, 14, HF, 7 * MB)
        ep1 = []
        for n in reversed(range(len(T[0]))): ep1 += qkv_epi(n)
        ep0 = [("f", gst, None), ("f", lambda: hook(kind, vm, "early"), None)]
        ep1b = [("f", consts, None)]
        if EARLY[kind] >= 34: ep1b = ep0 + ep1b; ep0 = []
        if "noqst" in XP: ep1 = [x for x in ep1 if x[0] != "v"]
        if "noep1" in XP: ep1 = [x for x in ep1 if x[0] == "v"]
        if "plainq" in XP: ep1 = [(k, t.replace(SC, ""), g) if k == "v" else (k, t, g) for (k, t, g) in ep1]
        ep2 = []
        for n, ac in enumerate(T[1]): ep2 += silu(SET[ac], E, "s95", n * 1024, "h1", PK)
        islot = {}
        last = -1
        for g in range(96):
            want = g - DIST[ph(g)]
            regs = set(r for n in range(len(T[ph(g)])) for r in range(wf(g, n), wf(g, n) + 4))
            for g2 in range(g - 1, max(-1, g - 10), -1):
                r2 = set(r for n in range(len(T[ph(g2)])) for r in range(wf(g2, n), wf(g2, n) + 4))
                if regs & r2: want = max(want, g2 + 1); break
            want = max(want, last)
            assert want < g or g == 0, g
            islot[g] = want; last = want
        syncs = {islot[g]: stage(g) for g in range(1, 96) if first(g)}
        def barrier(s):
            if s == PUBS[kind]: vm.wait(("d", s), "qkv", "gst", "sent")
            else: vm.wait(("d", s))
            if s == 15: a("s_waitcnt lgkmcnt(0)"); lg.ops = []
            a("s_barrier")
            if s == PUBS[kind]: hook(kind, vm, "pub")
        if GCG < 0: gc()
        barrier(0)
        gen1.stamp(a, 2)
        for g in range(96):
            if islot[g] < 0:
                for it in reads(g): emit(it)
        stq = []; nst = [0]
        pend = dma(2) + dma(3)
        for g in range(96):
            O = []
            for g2 in range(g + 1, 96):
                if islot[g2] == g: O += reads(g2)
            bar = syncs.get(g)
            if bar is not None:
                assert not any(it[2] == ("d", bar) for grp in pend for it in grp), (g, bar)
                if bar + 3 <= 15: pend += dma(bar + 3)
            if pend and (g < 32 or g % 2 == 0 or len(pend) > 4):
                for _ in range(2 if len(pend) > 4 and g < 32 else 1): O += pend.pop(0)
            if g == GCG: O.append(("f", gc, None))
            if ep0 and g >= EARLY[kind]: O.append(ep0.pop(0))
            if g >= 34 and stq and g >= nst[0] and None not in stq[:2]:
                O += stq.pop(0); nst[0] = g + STG
            if g >= 34 and ep1:
                n = EPR + 2
                for it in ep1[:n]:
                    if it[0] == "v": stq.append([it])
                    elif it[1].startswith("s_add_u32 s9"): stq.append([it]) ; stq.append(None)
                    else: O.append(it)
                ep1 = ep1[n:]
                i = 0
                while i < len(stq):
                    if stq[i] is None and i + 1 < len(stq):
                        stq[i - 1] = stq[i - 1] + stq[i + 1]
                        del stq[i:i + 2]
                    else: i += 1
            elif stq: pass
            elif g >= max(34, EARLY[kind]) and ep1b and g >= nst[0]: O.append(ep1b.pop(0)); nst[0] = g + 2
            elif g >= 67 and ep2:
                n = EPR if P else EPRR
                O += ep2[:n]; ep2 = ep2[n:]
                O += hook(kind, vm, (g, CH if P else 1)) or []
            elif g >= 34 and not ep1b:
                O += hook(kind, vm, (g, 6 if g < 64 else 10)) or []
            if g == WARMG: O.append(("f", lambda: hook(kind, vm, "warm"), None))
            if g == POLLG: O.append(("f", lambda: hook(kind, vm, "poll"), None))
            if g == LDG: assert not ep2
            if g == LDG: O.append(("f", lambda: hook(kind, vm, "ld"), None))
            if bar == PUBS[kind]: assert not ep1 and not stq and not ep1b and not any(it[0] == "f" for it in O), (kind, g)
            M = mfmas(g)
            pr = PRIO if g >= PRG else 0
            if pr: a("s_setprio 1")
            lg.wait(g)
            gen1.stamp(a, "g%d" % g)
            n = len(M); per = max(1, -(-len(O) // n))
            if pr == 2:
                for m in M: a(m)
                a("s_setprio 0")
                if bar is not None: barrier(bar)
                for it in O: emit(it)
                continue
            for i, m in enumerate(M):
                if pr and i: a("s_setprio 1")
                a(m)
                if pr: a("s_setprio 0")
                if i == 0 and bar is not None: barrier(bar)
                for it in O[i * per:(i + 1) * per]: emit(it)
        assert not ep1 and not ep2 and not pend
        gen1.stamp(a, 4)
        hook(kind, vm, "pre_h")
        a("s_nop 10")
        L0 = silu(SET[T[2][0]], WF, "s58", 0, "h")
        if P:
            L1 = silu(SET[T[2][1]], WF + 8, "s58", 1024, "h")
            for it in L0[:12] + L1[:12] + L0[12:28]: emit(it)
            hook(kind, vm, "mid_h")
            for it in L1[12:28] + L0[29:] + L1[29:]: emit(it)
        else:
            for it in L0[:28]: emit(it)
            hook(kind, vm, "mid_h")
            for it in L0[28:]: emit(it)
            a("v_mov_b32 v4, 0x1000")
            vm.issue("buffer_store_dword v4, v4, s[84:87], 0 offen", "h")
        tail(kind, vm)
    stream("R")
    a.label("AB_P")
    stream("P")
```

```python
import sys
sys.path.insert(0, "gen")
import gen1, gen3
from gen1 import *
from asmlib import *
import ab3
from gen3 import ab_prologue, SC
from ab3 import phase_ab
from gen5 import build1

FL = 17 * MB
RING = 65536; SCR = 98304
KVROT = True
LATE = True
WARM = True
NOWAIT = False
SPLIT = 1
OSC = ""
LADDER = True
XP = []
HPUB = 1
NAME = "gated_mix__softmax_full_mha__swiglu_ffn__prompt_kernel"

def kf(a):
    header(a, NAME)
    Q = 128; K = [144, 148]; V = [152, 160]; S = [32, 48]; O = 64
    WF = 168; DA = 184; HB_ = 216
    vV, vIX, vP, vPO, vLD = 18, 19, 20, 21, 22
    vWA, vWB, vT0, vT1, vZ = 24, 25, 26, 27, 28
    vW0 = 23
    ab_prologue(a, "KF_END")
    def spin(lab, expect, vm, leader_only=False, sr_="s[84:87]", so="0", note=""):
        if vm: vm.wait("poll")
        a("v_cmp_le_u32 vcc, %d, v%d%s" % (expect, vP, note))
        a("s_mov_b32 s38, 0x8000")
        if leader_only:
            a("s_cmp_lg_u32 s3, 0")
            a("s_cbranch_scc1 %s_OK" % lab)
        a("s_cmp_eq_u64 vcc, -1")
        a("s_cbranch_scc1 %s_OK" % lab)
        a.label(lab)
        a("s_sleep 4")
        a("buffer_load_dword v%d, v%d, %s, %s offen sc1%s" % (vP, vPO, sr_, so, note))
        a("s_sub_u32 s38, s38, 1")
        a("s_waitcnt vmcnt(0)")
        a("v_cmp_le_u32 vcc, %d, v%d" % (expect, vP))
        a("s_cselect_b32 s39, 1, 0")
        a("s_cmp_eq_u64 vcc, -1")
        a("s_cselect_b32 s39, 1, s39")
        a("s_cmp_eq_u32 s39, 0")
        a("s_cbranch_scc1 %s" % lab)
        a.label(lab + "_OK")
    def poll(vm, sr_="s[84:87]"): vm.issue("buffer_load_dword v%d, v%d, %s, 0 offen sc1" % (vP, vPO, sr_), "poll")
    def publish(vm, soff):
        a("v_mov_b32 v%d, 1" % vP)
        a("s_mov_b64 exec, 1")
        vm.issue("buffer_atomic_add v%d, v%d, s[84:87], %s offen sc1" % (vP, vLD, soff), "atom")
        a("s_mov_b64 exec, -1")
    def ldK(vm, b):
        vm.issue("buffer_load_dwordx4 %s, v1, s[8:11], s26 offen%s" % (vr(K[b], 4), SC), ("K", b))
    def ldV(vm, b, wrap=True):
        a("s_mov_b64 exec, s[30:31]")
        vm.issue("buffer_load_dwordx4 %s, v%d, s[4:7], s26 offen%s" % (vr(V[b], 4), vV, SC), ("V", b))
        vm.issue("buffer_load_dwordx4 %s, v%d, s[4:7], s26 offen offset:512%s" % (vr(V[b] + 4, 4), vV, SC), ("V", b))
        a("s_mov_b64 exec, -1")
        a("s_add_u32 s26, s26, 1024")
        if wrap: a("s_and_b32 s26, s26, 0x3fff")
    def cap(fn):
        save = a.lines; a.lines = []
        fn(); L = a.lines; a.lines = save
        return [("s", l.strip(), None) for l in L]
    def early(vm):
        a("s_and_b32 s89, s2, 7")
        a("s_lshl_b32 s89, s89, 2")
        a("s_bfe_u32 s38, s2, 0x20003")
        a("s_add_u32 s89, s89, s38")
        a("s_lshr_b32 s88, s2, 5")
        a("s_lshl_b32 s39, s88, 3")
        a("s_add_u32 s38, s3, s39")
        a("s_lshl_b32 s38, s38, 5")
        a("s_add_u32 s38, s38, s89")
        a("s_lshl_b32 s61, s38, 10")
        srd(a, 84, 14, OF, 2 * MB)
        for i in range(4): a("v_mov_b32 v%d, -1" % (24 + i))
        vm.issue("buffer_store_dwordx4 v[24:27], v1, s[84:87], s61 offen%s" % SC, "sent")
        srd(a, 80, 14, FL, 65536)
        a("s_lshl_b32 s39, s18, 4")
        a("s_add_u32 s39, s39, s19")
        a("s_lshl_b32 s39, s39, 7")
        a("s_cmp_eq_u32 s3, 0")
        a("s_cselect_b32 s38, 0, 0x10000")
        a("v_mov_b32 v28, 0")
        a("v_mov_b32 v%d, s38" % vLD)
        a("s_mov_b64 exec, 1")
        vm.issue("buffer_store_dword v28, v%d, s[80:83], s39 offen%s" % (vLD, SC), "sent")
        a("s_add_u32 s39, s39, 32768")
        vm.issue("buffer_store_dword v28, v%d, s[80:83], s39 offen%s" % (vLD, SC), "sent")
        a("s_mov_b64 exec, -1")
        srd(a, 84, 100, 0, 256)
    def setup1():
        a("v_and_b32 v%d, 15, v0" % vPO)
        a("v_lshlrev_b32 v%d, 4, v%d" % (vPO, vPO))
    def setup2():
        a("v_and_b32 v%d, 15, v0" % vV)
        a("v_lshlrev_b32 v%d, 4, v%d" % (vV, vV))
        a("v_lshrrev_b32 v%d, 5, v0" % vIX)
        a("v_lshl_add_u32 v%d, v%d, 8, v%d" % (vV, vIX, vV))
        a("s_lshl_b32 s24, s89, 16")
        a("s_lshl_b32 s25, s88, 3")
        a("s_lshl_b32 s26, s22, 2")
        a("s_add_u32 s25, s25, s26")
        a("s_lshl_b32 s27, s23, 14")
        a("s_add_u32 s27, s27, s24")
        a("s_add_u32 s26, s27, %s" % hx(KF))
        srd(a, 8, 14, "s26", 16384)
        a("s_add_u32 s26, s27, %s" % hx(VF))
        srd(a, 4, 14, "s26", 16384)
        a("s_lshl_b32 s26, s88, 11")
        if not KVROT: a("s_mov_b32 s26, 0")
        srd(a, 52, 14, "s24", 65536)
    def setup2b():
        a("v_and_b32 v%d, 31, v0" % vIX)
        a("v_cmp_eq_u32 s[96:97], 16, v%d" % vIX)
        a("v_mov_b32 v%d, 0x3f803f80" % vIX)
        a("s_mov_b32 s30, 0x0000ffff"); a("s_mov_b32 s31, 0x0000ffff")
        a("v_cndmask_b32 v%d, 0, v%d, s[96:97]" % (V[0], vIX))
        for i in range(1, 16): a("v_mov_b32 v%d, v%d" % (V[0] + i, V[0]))
        a("v_mov_b32 v%d, 0xdddddddd" % vIX)
    def setup3():
        a("s_lshr_b32 s22, s3, 2")
        a("s_and_b32 s23, s3, 3")
        a("v_bfe_u32 v2, v0, 4, 1")
        a("v_lshlrev_b32 v5, 2, v2")
        a("v_and_b32 v6, 7, v0")
        a("v_xor_b32 v5, v5, v6")
        a("v_lshlrev_b32 v5, 4, v5")
        a("v_lshrrev_b32 v6, 3, v0")
        a("v_lshl_add_u32 v%d, v6, 10, v5" % vW0)
        a("s_lshl_b32 s38, s22, 13")
        a("v_add_u32 v%d, s38, v%d" % (vWA, vW0))
        a("v_add_u32 v%d, %d, v%d" % (vWB, 16384 - 2048, vWA))
        a("v_lshrrev_b32 v5, 5, v0")
        a("v_bfe_u32 v6, v0, 2, 2")
        a("v_lshl_add_u32 v5, v5, 2, v6")
        a("v_bfe_u32 v6, v0, 1, 1")
        a("v_lshl_add_u32 v6, v2, 1, v6")
        a("v_bfe_u32 v3, v0, 3, 1")
        a("v_lshl_add_u32 v6, v3, 2, v6")
        a("v_lshlrev_b32 v6, 4, v6")
        a("v_and_b32 v3, 1, v0")
        a("v_lshl_add_u32 v6, v3, 3, v6")
        a("v_lshl_add_u32 v6, v5, 7, v6")
        a("s_lshl_b32 s16, s23, 12")
        a("s_add_u32 s16, s16, %d" % RING)
        a("v_add_u32 v%d, s16, v6" % vT0)
        a("v_xor_b32 v%d, 64, v%d" % (vT1, vT0))
        a("s_lshl_b32 s38, s22, 10")
        a("s_add_u32 s17, s16, s38")
        a("s_and_b32 s20, s89, 3")
        a("s_add_u32 s21, s20, s88")
        a("s_cmp_ge_u32 s21, 6")
        a("s_cselect_b32 s90, 6, 0")
        a("s_sub_u32 s21, s21, s90")
        a("s_lshl_b32 s21, s21, 2")
        a("s_mov_b32 s90, 0x32dc7632")
        a("s_mov_b32 s91, 0xdc76")
        a("s_lshr_b64 s[90:91], s[90:91], s21")
        a("s_and_b32 s36, s90, 0xffffff")
        a("s_lshl_b32 s20, s20, 1")
        a("s_add_u32 s21, s20, s88")
        a("s_and_b32 s21, s21, 7")
        a("s_lshl_b32 s21, s21, 2")
        a("s_mov_b32 s90, 0xba985410")
        a("s_mov_b32 s91, s90")
        a("s_lshr_b64 s[90:91], s[90:91], s21")
        a("s_mov_b32 s91, s36")
    chunks = {}
    def ldq(vm, s):
        a("s_add_u32 s28, s23, %d" % s)
        a("s_and_b32 s28, s28, 3")
        a("s_add_u32 s28, s28, s25")
        a("s_lshl_b32 s28, s28, 10")
        vm.issue("buffer_load_dwordx4 %s, v1, s[52:55], s28 offen%s" % (vr(Q + 4 * s, 4), SC), "Q")
    def hook(kind, vm, where):
        if where == "init": chunks.clear()
        elif where == "early": early(vm)
        elif where == "pub":
            a("s_lshl_b32 s94, s19, 4")
            publish(vm, "s94")
        elif where == "poll":
            assert not chunks["L"] and not chunks["V"], (len(chunks["L"]), len(chunks["V"]))
            if NOWAIT: a("v_mov_b32 v%d, 0" % vP)
            poll(vm)
        elif where == "ld":
            spin("KF_SQ_" + kind, 16, None if NOWAIT else vm, note=" ; kv-ok")
            gen1.stamp(a, "sq1")
            ldq(vm, 0); ldK(vm, 0); ldq(vm, 1)
            if SPLIT == 0: ldq(vm, 2); ldq(vm, 3); ldV(vm, 0); ldK(vm, 1); ldV(vm, 1)
        elif where == "mid_h":
            if SPLIT: ldK(vm, 1); ldV(vm, 1)
        elif where == "warm":
            if not WARM: return
            srd(a, 28, 76, 0, 1792 * 1024)
            a("s_lshl_b32 s94, s2, 3")
            a("s_add_u32 s94, s94, s3")
            a("s_mul_i32 s96, s94, 896")
            a("v_lshlrev_b32 v29, 7, v0")
            a("s_mov_b64 exec, 0x7f")
            vm.issue("buffer_load_dword v17, v29, s[28:31], s96 offen ; dummy", "pf")
            srd(a, 28, 78, 0, 512 * 1024)
            a("s_lshl_b32 s96, s94, 8")
            a("s_mov_b64 exec, 3")
            vm.issue("buffer_load_dword v17, v29, s[28:31], s96 offen ; dummy", "pf")
            a("s_mov_b64 exec, -1")
        elif isinstance(where, tuple):
            g, n = where
            if g < 44: return []
            if "L" not in chunks:
                if kind == "P": chunks["L"] = cap(setup3) + cap(setup2); chunks["V"] = cap(setup2b) + cap(setup1)
                else: chunks["L"] = cap(setup3); chunks["V"] = cap(setup2) + cap(setup2b) + cap(setup1)
            key = "L" if chunks["L"] else "V"
            if key == "V" and g < 74: return []
            while n < len(chunks[key]) and chunks[key][n][1].startswith(("s_cselect", "s_addc")): n += 1
            L = chunks[key][:n]; chunks[key] = chunks[key][n:]
            return L
        elif where == "pre_h":
            a("s_setprio 3")
            if SPLIT: ldq(vm, 2); ldq(vm, 3); ldV(vm, 0)
    ENTRY = ["Q", ("K", 0), "Q", "Q", "Q", ("V", 0), ("V", 0), ("K", 1), ("V", 1), ("V", 1), "h", "h"]
    def tail(kind, vm):
        assert vm.ops[-12:] == ENTRY, vm.ops
        if kind != "P": a("s_branch KF_C")
    a("s_load_dwordx2 s[100:101], s[0:1], 72")
    a("s_load_dwordx2 s[76:77], s[0:1], 48")
    a("s_load_dwordx2 s[78:79], s[0:1], 16")
    phase_ab(a, tail, hook)
    a.label("KF_C")
    gen1.stamp(a, 5)
    vm = VM(a); vm.ops = list(ENTRY)
    lg = VM(a, "lgkmcnt", 15)
    a("s_load_dwordx2 s[12:13], s[0:1], 64")
    def QK(sl, kb, sb): a("v_mfma_f32_32x32x16_bf16 %s, %s, %s, 0" % (vr(S[sb], 16), vr(K[kb], 4), vr(Q + 4 * sl, 4)))
    def PV(sl, vb, sb, j): a("v_smfmac_f32_32x32x32_bf16 %s, %s, %s, v%d" % (vr(O + 16 * sl, 16), vr(V[vb] + 4 * j, 4), vr(S[sb] + 8 * j, 8), vIX))
    def ZERO(r): a("v_mfma_f32_32x32x16_bf16 %s, %s, %s, 0" % (vr(r, 16), vr(vZ, 4), vr(vZ, 4)))
    for i in range(4): a("v_mov_b32 v%d, 0" % (vZ + i))
    vm.wait(("K", 0))
    QK(0, 0, 0)
    for i in range(4): ZERO(O + 16 * i)
    a("s_lshr_b32 s38, s89, 1")
    a("s_lshl_b32 s38, s38, 11")
    a("v_and_b32 v%d, 15, v0" % vPO)
    a("v_lshl_add_u32 v%d, v%d, 7, s38" % (vPO, vPO))
    a("s_mov_b32 s96, 32768")
    a("s_lshl_b32 s44, s89, 1")
    a("s_add_u32 s44, s44, s22")
    a("s_mul_i32 s38, s44, 112")
    a("s_mul_i32 s39, s23, 28")
    a("s_add_u32 s38, s38, s39")
    a("s_lshl_b32 s38, s38, 10")
    a("s_add_u32 s38, s38, %s" % hx(HF))
    srd(a, 32, 14, "s38", 28 * 1024)
    a("s_lshl_b32 s38, s39, 14")
    a("s_lshl_b32 s45, s88, 7")
    a("s_add_u32 s38, s38, s45")
    a("s_sub_u32 s39, %d, s38" % (1792 * 1024))
    a("s_waitcnt lgkmcnt(0)")
    srd(a, 48, 76, "s38", "s39")
    srd(a, 40, 78, 0, 512 * 1024)
    FLG = 161792
    vF, vFA, vFB, vFR = 232, 233, 234, 235
    vRW = 236
    def ldH(b, k, so="s20"):
        vm.issue("buffer_load_dwordx4 %s, v1, s[32:35], %s offen offset:%d%s" % (vr(HB_ + 8 * b + 4 * k, 4), so, 1024 * k, SC), ("H", b, k))
    def ldW(b, k):
        if k == 0:
            a("s_and_b32 s20, s90, 15")
            a("s_lshr_b64 s[90:91], s[90:91], 4")
            a("s_add_u32 m0, s17, %d" % (b * 16384))
            a("s_lshl_b32 s21, s20, 15")
            a("s_lshl_b32 s20, s20, 11")
        vm.issue("buffer_load_dwordx4 v%d, s[48:51], s21 offen offset:%d lds" % (vWA + k, 2048 * k), ("W", b))
    def rdW(b, k):
        for ft in range(2):
            for q in range(2):
                lg.issue("ds_read_b64_tr_b16 %s, v%d offset:%d" % (vr(WF + 8 * k + 4 * ft + 2 * q, 2), vT0 + ft, b * 16384 + k * 2048 + q * 1024), ("w", k, ft))
    def DM(b, n):
        k, ft = n // 2, n % 2
        lg.wait(("w", k, ft))
        vm.wait(("H", b, k))
        d = vr(DA + 16 * ft, 16)
        a("v_mfma_f32_32x32x16_bf16 %s, %s, %s, %s" % (d, vr(WF + 8 * k + 4 * ft, 4), vr(HB_ + 8 * b + 4 * k, 4), d))
    def signal(b):
        a("v_add_u32 v%d, 1, v%d" % (vF, vF))
        vm.wait(("W", b))
        lg.issue("ds_write_b32 v%d, v%d" % (vFA, vF), "fw")
    def peek(): lg.issue("ds_read_b32 v%d, v%d" % (vFR, vFB), "fr")
    def precheck():
        lg.wait("fr")
        a("v_cmp_lt_u32 vcc, v%d, v%d" % (vFR, vF))
    def check(lab):
        a("s_cbranch_vccnz %s" % lab)
        a.label(lab + "_OK")
        def slow():
            a.label(lab)
            a("s_mov_b32 s38, 0x40000")
            a("s_setprio 0")
            a.label(lab + "_L")
            a("s_sleep 1")
            a("ds_read_b32 v%d, v%d" % (vFR, vFB))
            a("s_sub_u32 s38, s38, 1")
            a("s_waitcnt lgkmcnt(0)")
            a("v_cmp_lt_u32 vcc, v%d, v%d" % (vFR, vF))
            a("s_cbranch_scc1 %s_GO" % lab)
            a("s_cbranch_vccnz %s_L" % lab)
            a.label(lab + "_GO")
            a("s_setprio 3")
            a("s_branch %s_OK" % lab)
        outl[lab] = slow
    outl = {}
    def keytile(b, first=False, down=False, loop=None, top=None, extra=None, pre=False, lab=None):
        if top:
            top("pre"); a("s_barrier"); top("post")
        for sl in range(4):
            sb = sl % 2
            def E(i): a("v_exp_f32 v%d, v%d" % (S[sb] + i, S[sb] + i))
            if LADDER == 2:
                if sl % 2 == 0: a("s_setprio %d" % (3 - 2 * b - sl // 2))
            elif LADDER: a("s_setprio %d" % (3 - sl))
            elif first and sl == 0: a("s_setprio 0")
            if down and sl == 0:
                if "nosync" not in XP: check(lab)
                if "nord" not in XP: rdW(b, 0)
            E(0); E(1)
            if sl == 0:
                if not first:
                    PV(3, 1 - b, 1, 1)
                    ldV(vm, 1 - b)
            else: PV(sl - 1, b, 1 - sb, 1)
            if down and sl == 1 and "nord" not in XP: rdW(b, 1)
            E(2); E(3); E(4)
            if sl == 3:
                vm.wait(("K", 1 - b))
                QK(0, 1 - b, 0)
            else:
                if first: vm.wait("Q")
                QK(sl + 1, b, 1 - sb)
                if sl == 2: ldK(vm, b)
            if (down or pre) and sl < 2 and not (down and "nold" in XP): ldW(b, sl)
            if (down or pre == 2) and sl == 2 and not (down and "nosync" in XP): signal(1 - b)
            if (down or pre == 2) and sl == 3 and not (down and "nosync" in XP): peek()
            for i in range(5, 10): E(i)
            if sl == 0: vm.wait(("V", b))
            PV(sl, b, sb, 0)
            for i in range(10, 13): E(i)
            if extra: extra(sl)
            if down:
                if "nodm" not in XP: DM(b, sl)
                if sl % 2 == 1 and "nold" not in XP: ldH(b, sl // 2)
                if sl == 3:
                    if b == 1:
                        a("v_xor_b32 v%d, 0x8000, v%d" % (vT0, vT0))
                        a("v_xor_b32 v%d, 0x8000, v%d" % (vT1, vT1))
                        a("s_xor_b32 s17, s17, 0x8000")
            if loop and sl == 3:
                a("s_sub_u32 s46, s46, 1"); a("s_cmp_lg_u32 s46, 0")
            E(13)
            if (down or pre == 2) and sl == 3 and not (down and "nosync" in XP): precheck()
            E(14); E(15)
    def pubH(tag, off):
        def f(when):
            if when == "pre":
                vm.wait(tag); lg.wait("fw")
            else:
                a("s_lshl_b32 s38, s18, 4")
                a("s_add_u32 s38, s38, s19")
                a("s_lshl_b32 s38, s38, 7")
                if off: a("s_add_u32 s38, s38, %d" % off)
                a("v_mov_b32 v4, 1")
                a("s_mov_b64 exec, 1")
                vm.issue("buffer_store_dword v4, v%d, s[80:83], s38 offen sc1" % vLD, "flag")
                a("s_mov_b64 exec, -1")
        return f
    def wo_stage(i):
        a("s_add_u32 m0, s60, %d" % (i * 2048))
        a("s_add_u32 s38, s47, %d" % (i * 16384))
        vm.issue("buffer_load_dwordx4 v%d, s[40:43], s38 offen lds" % vW0, "wo")
        a("s_add_u32 s38, s38, %d" % (8192 - 1024))
        vm.issue("buffer_load_dwordx4 v%d, s[40:43], s38 offen offset:1024 lds" % vW0, "wo")
    a("s_lshl_b32 s60, s3, 13")
    a("s_lshl_b32 s47, s3, 16")
    a("s_add_u32 s47, s47, s45")
    def ex0(sl):
        if sl < 2: ZERO(DA + 16 * sl)
        if sl == 2:
            a("s_lshl_b32 s38, s3, 8")
            a("s_add_u32 s38, s38, %d" % FLG)
            a("v_lshl_add_u32 v%d, v0, 2, s38" % vFA)
            a("v_xor_b32 v%d, 1024, v%d" % (vFB, vFA))
            a("v_mov_b32 v%d, 0" % vF)
            lg.issue("ds_write_b32 v%d, v%d" % (vFA, vF), "fw")
    keytile(0, first=True, extra=ex0)
    gen1.stamp(a, "k0")
    keytile(1, top=pubH("Q", 0), extra=wo_stage)
    gen1.stamp(a, "k1")
    def ex2(sl):
        if sl == 2: poll(vm, "s[80:83]")
        if sl < 3:
            s = sl + 1
            a("s_add_u32 s28, s23, %d" % s)
            a("s_and_b32 s28, s28, 3")
            a("s_lshl_b32 s38, s22, 2")
            a("s_add_u32 s28, s28, s38")
            a("s_mul_i32 s28, s28, 3")
            a("s_add_u32 s28, s28, %d" % (s - 1))
            a("s_mul_i32 s28, s28, 2304")
            a("s_add_u32 s28, s28, %d" % SCR)
            a("v_add_u32 v%d, s28, v1" % (vRW + 2 * sl))
            a("v_lshl_add_u32 v%d, v0, 2, s28" % (vRW + 2 * sl + 1))
        else:
            a("s_mul_i32 s28, s3, %d" % (3 * 2304))
            a("s_add_u32 s28, s28, %d" % SCR)
            a("v_add_u32 v%d, s28, v1" % (vRW + 6))
            a("v_lshl_add_u32 v%d, v0, 2, s28" % (vRW + 7))
    keytile(0, pre=1, extra=ex2)
    a("s_mov_b32 s36, s20")
    gen1.stamp(a, "k2")
    def top3(when):
        pubH("h", 32768)(when)
        if when == "post":
            spin("KF_SH", 1, vm, False, "s[80:83]")
            gen1.stamp(a, "sh1")
            ldH(0, 0, "s36"); ldH(0, 1, "s36")
    def ex3(sl):
        if sl % 2 == 1: ldH(1, sl // 2)
        if sl == 0: srd(a, 52, 14, OF, 2 * MB)
        if sl == 2:
            srd(a, 56, 14, GG, 16384)
            a("s_lshl_b32 s39, s44, 8")
            a("v_and_b32 v4, 31, v0")
            a("v_lshlrev_b32 v4, 3, v4")
            vm.issue("buffer_load_dwordx2 v[244:245], v4, s[56:59], s39 offen%s" % SC, "g")
        if sl == 3:
            a("s_xor_b32 s17, s17, 0x8000")
    keytile(1, top=top3, pre=2, extra=ex3)
    gen1.stamp(a, "k3")
    a("s_mov_b32 s46, 6")
    a("s_mov_b32 s37, 4")
    def ev():
        a.label("KF_EV")
        a("s_sub_u32 s37, s37, 1")
        a("s_cmp_eq_u32 s37, 3")
        a("s_cbranch_scc0 KF_EV2")
        a("buffer_load_dword v%d, v%d, s[80:83], s96 offen sc1" % (vP, vPO))
        a("s_branch KF_EVR")
        a.label("KF_EV2")
        a("s_mov_b32 s37, 0")
        a("s_waitcnt vmcnt(14)")
        spin("KF_S2", 1, None, False, "s[80:83]", "s96", " ; kv-ok")
        a("v_cmp_lt_u32 vcc, v%d, v%d" % (vFR, vF))
        a("s_nop 4")
        a("s_branch KF_EVR")
    outl["ev"] = ev
    def it():
        a("s_cmp_eq_u32 s46, s37")
        a("s_cbranch_scc1 KF_EV")
        a.label("KF_EVR")
        keytile(0, down=True, lab="KF_P0"); keytile(1, down=True, loop=True, lab="KF_P1")
        a("s_cbranch_scc1 KF_LB")
    body = steady_loop(a, [vm, lg], it)
    a(".p2align 6")
    a.label("KF_LB")
    a.lines += body
    a("s_nop 1")
    PV(3, 1, 1, 1)
    if LADDER: a("s_setprio 3")
    gen1.stamp(a, 7)
    a("s_barrier")
    a("s_nop 4")
    for s in range(1, 4):
        if s == 3: a("s_nop 1")
        a("ds_write_b128 v%d, %s" % (vRW + 2 * s - 2, vr(O + 16 * s, 4)))
        a("ds_write_b128 v%d, %s offset:1024" % (vRW + 2 * s - 2, vr(O + 16 * s + 4, 4)))
        a("ds_write_b32 v%d, v%d offset:2048" % (vRW + 2 * s - 1, O + 16 * s + 8))
    vm.wait(("W", 0), ("W", 1))
    a("s_waitcnt lgkmcnt(0)")
    a("s_barrier")
    gen1.stamp(a, "rb")
    for s in range(3):
        a("ds_read_b128 %s, v%d offset:%d" % (vr(O + 16 * (s + 1), 4), vRW + 6, s * 2304))
        a("ds_read_b128 %s, v%d offset:%d" % (vr(O + 16 * (s + 1) + 4, 4), vRW + 6, s * 2304 + 1024))
        a("ds_read_b32 v%d, v%d offset:%d" % (O + 16 * (s + 1) + 8, vRW + 7, s * 2304 + 2048))
    for s in range(3):
        a("s_waitcnt lgkmcnt(%d)" % (6 - 3 * s))
        for i in (8, 0, 1, 2, 3, 4, 5, 6, 7): a("v_add_f32 v%d, v%d, v%d" % (O + i, O + i, O + 16 * (s + 1) + i))
    a.label("KF_CHK")
    a("v_mov_b32 v4, v%d" % (O + 8))
    a("s_nop 1")
    a("v_permlane32_swap_b32 v%d, v4" % (O + 8))
    a("s_cmp_eq_u32 s46, 1")
    a("s_cbranch_scc1 KF_NORM")
    a("s_mov_b32 s38, %s" % hx(f2u(2.0 ** -60)))
    a("v_mov_b32 v5, %s" % hx(f2u(2.0 ** 40)))
    a("v_mul_f32 v4, 0, v%d" % O)
    for i in range(1, 8): a("v_fmac_f32 v4, 0, v%d" % (O + i))
    a("v_med3_f32 v5, v%d, s38, v5" % (O + 8))
    a("v_add_f32 v5, v5, v4")
    a("v_cmp_eq_f32 vcc, v5, v%d" % (O + 8))
    a("s_nop 1")
    a("s_cmp_eq_u64 vcc, -1")
    a("s_cbranch_scc0 KF_SLOW")
    a.label("KF_NORM")
    a("v_rcp_f32 v4, v%d" % (O + 8))
    a("s_nop 0")
    for i in range(8): a("v_mul_f32 v%d, v%d, v4" % (O + i, O + i))
    for i in range(4): a("v_cvt_pk_bf16_f32 v%d, v%d, v%d" % (S[0] + i, O + 2 * i, O + 2 * i + 1))
    for i in range(4): a("v_min_u32 v%d, -2, v%d" % (S[0] + i, S[0] + i))
    vm.issue("buffer_store_dwordx4 %s, v1, s[52:55], s61 offen%s" % (vr(S[0], 4), SC), "o")
    gen1.stamp(a, "ost")
    WO = 64; OFR = 128; vG = 244; YA = 32
    a("s_lshl_b32 s60, s44, 15")
    a("s_lshl_b32 s39, s23, 13")
    a("s_add_u32 s60, s60, s39")
    a("s_add_u32 s47, s60, 4096")
    def ldO(i): return "buffer_load_dwordx4 %s, v1, s[52:55], %s offen offset:%d%s" % (vr(OFR + 4 * i, 4), "s60" if i < 4 else "s47", (i % 4) * 1024, SC)
    rdW(0, 0); rdW(0, 1)
    a("v_and_b32 v4, 31, v0")
    a("v_and_b32 v7, 0xfff, v%d" % vT0)
    a("s_lshl_b32 s39, s23, 14")
    a("v_add_u32 v7, s39, v7")
    a("v_xor_b32 v8, 64, v7")
    def rdWo(i):
        for ft in range(2):
            for q in range(2):
                lg.issue("ds_read_b64_tr_b16 %s, v%d offset:%d" % (vr(WO + 8 * i + 4 * ft + 2 * q, 2), 7 + ft, i * 2048 + q * 1024), ("wof", i))
    DM(0, 0); DM(0, 1); rdW(1, 0)
    DM(0, 2); DM(0, 3); rdW(1, 1)
    rdWo(0)
    DM(1, 0); DM(1, 1)
    rdWo(1); rdWo(2)
    DM(1, 2); DM(1, 3)
    for i in range(8): vm.issue(ldO(i), ("of", i))
    for i in range(3, 8):
        lg.wait(("wof", i - 3)); rdWo(i)
    a("v_lshlrev_b32 v6, 10, v4")
    a("v_lshrrev_b32 v9, 5, v0")
    a("v_lshl_add_u32 v6, v9, 4, v6")
    a("s_lshl_b32 s61, s44, 15")
    a("s_add_u32 s61, s61, s45")
    a("s_lshl_b32 s39, s23, 5")
    a("s_add_u32 s61, s61, s39")
    srd(a, 4, 12, 0, 2 * MB)
    a("s_mul_i32 s38, s22, %d" % (4 * 6912))
    a("s_add_u32 s38, s38, %d" % SCR)
    a("v_add_u32 v10, s38, v1")
    vm.wait("g")
    for i in range(32): a("v_mul_f32 v%d, v%d, v%d" % (DA + i, DA + i, vG + 1))
    lg.wait(("wof", 7))
    gen1.stamp(a, "so0")
    a("s_mov_b32 s38, 0x8000")
    for i in range(8):
        vm.wait(("of", i))
        r = OFR + 4 * i
        lab = "KF_O%d" % i
        a.label(lab)
        a("v_max3_u32 v11, v%d, v%d, v%d" % (r, r + 1, r + 2))
        a("v_max_u32 v11, v11, v%d" % (r + 3))
        a("v_cmp_eq_u32 vcc, -1, v11")
        a("s_nop 0")
        a("s_cbranch_vccnz %s_RE" % lab)
        a.label(lab + "_OK")
        def slow(i=i, lab=lab):
            a.label(lab + "_RE")
            a("s_sub_u32 s38, s38, 1")
            a("s_cbranch_scc1 %s_GU" % lab)
            a("s_sleep 1")
            for j in range(i, 8): a(ldO(j))
            a("s_waitcnt vmcnt(0)")
            a("s_branch %s" % lab)
            a.label(lab + "_GU")
            a("s_mov_b32 s38, 0")
            a("s_branch %s_OK" % lab)
        outl[lab] = slow
        for ft in range(2):
            d = vr(YA + 16 * ft, 16)
            a("v_mfma_f32_32x32x16_bf16 %s, %s, %s, %s" % (d, vr(WO + 8 * i + 4 * ft, 4), vr(r, 4), "0" if i == 0 else d))
    gen1.stamp(a, "so1")
    a("s_cmp_ge_u32 s23, 2")
    a("s_nop 10")
    for i in range(32): a("v_fmac_f32 v%d, v%d, v%d" % (DA + i, YA + i, vG))
    a("s_cbranch_scc1 KF_X2")
    a("s_cmp_eq_u32 s23, 1")
    a("s_cbranch_scc1 KF_X1")
    def fin(kq):
        idx = lambda src, dst: dst if dst < src else dst - 1
        for p in range(4):
            if p == kq: continue
            a("ds_write_b128 v%d, %s offset:%d" % (vRW + 6, vr(DA + 8 * p, 4), idx(kq, p) * 2048))
            a("ds_write_b128 v%d, %s offset:%d" % (vRW + 6, vr(DA + 8 * p + 4, 4), idx(kq, p) * 2048 + 1024))
        a("s_waitcnt lgkmcnt(0)")
        a("s_barrier")
        srcs = [s for s in range(4) if s != kq]
        for n, s in enumerate(srcs):
            a("ds_read_b128 %s, v10 offset:%d" % (vr(YA + 8 * n, 4), s * 6912 + idx(s, kq) * 2048))
            a("ds_read_b128 %s, v10 offset:%d" % (vr(YA + 8 * n + 4, 4), s * 6912 + idx(s, kq) * 2048 + 1024))
        a("s_waitcnt lgkmcnt(4)")
        for i in range(8): a("v_add_f32 v%d, v%d, v%d" % (YA + i, YA + i, DA + 8 * kq + i))
        a("s_waitcnt lgkmcnt(0)")
        for i in range(8): a("v_add_f32 v%d, v%d, v%d" % (YA + 8 + i, YA + 8 + i, YA + 16 + i))
        for i in range(8): a("v_add_f32 v%d, v%d, v%d" % (YA + i, YA + i, YA + 8 + i))
        for i in range(4): a("v_cvt_pk_bf16_f32 v%d, v%d, v%d" % (YA + 24 + i, YA + 2 * i, YA + 2 * i + 1))
        a("s_nop 1")
        a("v_permlane32_swap_b32 v%d, v%d" % (YA + 24, YA + 26))
        a("v_permlane32_swap_b32 v%d, v%d" % (YA + 25, YA + 27))
        a("buffer_store_dwordx4 %s, v6, s[4:7], s61 offen%s" % (vr(YA + 24, 4), OSC))
        gen1.stamp(a, "fin")
        gen1.stamp_end(a, 0, 14, 5)
        a("s_endpgm")
    fin(0)
    a.label("KF_X1"); fin(1)
    a.label("KF_X2")
    a("s_cmp_eq_u32 s23, 3")
    a("s_cbranch_scc1 KF_X3")
    fin(2)
    a.label("KF_X3"); fin(3)
    a.label("KF_END")
    a("s_endpgm")
    for f in list(outl.values()): f()
    a("s_endpgm")
    a.label("KF_SLOW")
    vm2 = VM(a)
    CB = O + 16
    a("s_waitcnt vmcnt(0)")
    a("s_add_u32 s26, s24, %s" % hx(KF))
    srd(a, 8, 14, "s26", 65536)
    a("s_add_u32 s26, s24, %s" % hx(VF))
    srd(a, 4, 14, "s26", 65536)
    a("s_mov_b32 s26, 0")
    a("v_mov_b32 v4, 0xff800000")
    a("s_mov_b32 s46, 64")
    a.label("KF_SL1")
    ldK(vm2, 0)
    a("s_add_u32 s26, s26, 1024")
    a("s_waitcnt vmcnt(0)")
    QK(0, 0, 0)
    a("s_nop 15")
    for i in range(8): a("v_max3_f32 v4, v4, v%d, v%d" % (S[0] + 2 * i, S[0] + 2 * i + 1))
    a("s_sub_u32 s46, s46, 1"); a("s_cmp_lg_u32 s46, 0")
    a("s_cbranch_scc1 KF_SL1")
    a("v_mov_b32 v5, v4")
    a("s_nop 1")
    a("v_permlane32_swap_b32 v4, v5")
    a("s_nop 1")
    a("v_max_f32 v4, v4, v5")
    for i in range(16): a("v_sub_f32 v%d, 0, v4" % (CB + i))
    for i in range(16): a("v_mov_b32 v%d, 0" % (O + i))
    a("s_mov_b32 s26, 0")
    a("s_mov_b32 s46, 65")
    a.label("KF_SL2")
    ldK(vm2, 0); ldV(vm2, 0, False)
    a("s_waitcnt vmcnt(0)")
    a("v_mfma_f32_32x32x16_bf16 %s, %s, %s, %s" % (vr(S[0], 16), vr(K[0], 4), vr(Q, 4), vr(CB, 16)))
    a("s_nop 15")
    for i in range(16): a("v_exp_f32 v%d, v%d" % (S[0] + i, S[0] + i))
    a("s_nop 1")
    PV(0, 0, 0, 0); PV(0, 0, 0, 1)
    a("s_sub_u32 s46, s46, 1"); a("s_cmp_lg_u32 s46, 1")
    a("s_cbranch_scc1 KF_SL2")
    a("s_nop 15")
    a("s_branch KF_CHK")
    a.label("KF_LAST")
    a("s_endpgm")
    return NAME, 256, "grid=(256,1,1) block=(512,1,1) lds=163840"

def parse(argv):
    global KVROT, OSC, LADDER, HPUB, LATE
    global WARM, NOWAIT, SPLIT
    if 'nosplit' in argv: SPLIT = 0
    if 'wait' in argv: NOWAIT = False
    if 'nowarm' in argv: WARM = False
    if "stamp" in argv: gen1.STAMP = True
    if "rt" in argv: gen1.RT = True
    gen3.GST = [32]
    for x in argv:
        if x.startswith("rot="): ab3.ROT = int(x[4:])
        if x.startswith("epr="): ab3.EPR = int(x[4:])
        if x == "pk": ab3.PK = True
        if x == "swarm": ab3.SWARM = True
        if x.startswith("warmg="): ab3.WARMG = int(x[6:])
        if x.startswith("gcg="): ab3.GCG = int(x[4:])
        if x == "noiwarm": ab3.IWARM = False
        if x.startswith("prio="): ab3.PRIO, ab3.PRG = [int(y) for y in x[5:].split(",")]
        if x.startswith("stg="): ab3.STG = int(x[4:])
        if x.startswith("eprr="): ab3.EPRR = int(x[5:])
        if x.startswith("ch="): ab3.CH = int(x[3:])
        if x.startswith("ldg="): ab3.LDG = int(x[4:]); ab3.POLLG = ab3.LDG - 5
        if x.startswith("early="): ab3.EARLY = dict(zip(("P", "R"), [int(y) for y in x[6:].split(",")]))
        if x.startswith("d2="): ab3.D2 = int(x[3:])
        if x.startswith("pubs="): ab3.PUBS = dict(zip(("P", "R"), [int(y) for y in x[5:].split(",")]))
        if x.startswith("gst="): gen3.GST = [int(y) for y in x[4:].split(",")]
        if x.startswith("smap="): gen1.SMAP = [int(y) if y.isdigit() else y for y in x[5:].split(",")]
        if x == "nokvrot": KVROT = False
        if x == "noladder": LADDER = False
        if x == "ladder2": LADDER = 2
        if x == "ns4": gen3.NS4 = True
        if x.startswith("d8="): gen3.D8AT = int(x[3:])
        if x.startswith("lead2="): gen3.LEAD2 = int(x[6:])
        if x == "fsync": gen3.FSYNC = True
        if x.startswith("sig="): gen3.SIG1, gen3.SIG2 = [int(y) for y in x[4:].split(",")]
        if x.startswith("xp="): XP.extend(x[3:].split(",")); ab3.XP = XP
        if x.startswith("hpub="): HPUB = int(x[5:])
        if x.startswith("osc="): OSC = " " + x[4:]
if __name__ == "__main__":
    parse(sys.argv)
    build1(sys.argv[1], kf, aslist=("list" in sys.argv))
```

```python
import sys
sys.path.insert(0, "gen")
import gen1
from gen1 import *
from asmlib import *
from gen2 import gate_code
SC = " sc1"
SLOT = 32768
GCG = -1
EPR = 7
PUBS = {"P": 12, "R": 12}
ROT = 8
SWARM = False
IWARM = False
PRIO = 0
PRG = 32
STG = 3
XP = []
PK = False
CH = 3
D2 = 3
POLLG = 88; LDG = 93; WARMG = 68
EARLY = {"P": 31, "R": 31}
EPRR = 7

def phase_ab(a, tail, hook):
    X = 128; WF = 32; E = 128
    SET = [64, 80, 96, 112]
    vAX, vT, vST, vAW1, vA2, vAM, vSV, vD, vDM = 2, 3, 4, 5, 7, 9, 10, 11, 16
    a("v_lshrrev_b32 v20, 4, v0")
    a("v_and_b32 v21, 7, v0")
    a("v_xor_b32 v22, v21, v20")
    a("v_lshlrev_b32 v22, 4, v22")
    a("v_lshrrev_b32 v23, 3, v0")
    a("v_lshl_add_u32 v22, v23, 10, v22")
    a("s_lshl_b32 s58, s3, 14")
    a("v_add_u32 v%d, s58, v22" % vD)
    a("v_xor_b32 v%d, 64, v%d" % (vD + 1, vD))
    a("v_add_u32 v%d, %d, v%d" % (vD + 1, 7168, vD + 1))
    a("v_and_b32 v22, 1, v20")
    a("v_lshlrev_b32 v22, 2, v22")
    a("v_xor_b32 v22, v22, v21")
    a("v_lshlrev_b32 v22, 4, v22")
    a("s_lshl_b32 s58, s3, 3")
    a("v_add_u32 v23, s58, v23")
    a("v_mul_u32_u24 v24, 3072, v23")
    a("v_add_u32 v%d, v24, v22" % (vD + 2))
    a("s_lshl_b32 s56, s3, 11")
    a("s_lshl_b32 s57, s3, 10")
    a("s_lshl_b32 s44, s18, 17")
    a("s_lshl_b32 s45, s19, 7")
    a("s_sub_u32 s46, %d, s45" % (512 * 3072))
    a("s_lshl_b32 s50, s55, 1")
    a("s_add_u32 s50, s50, s18")
    if ROT != 8:
        a("s_add_u32 s50, s55, s18")
        a("s_and_b32 s50, s50, %d" % (ROT - 1))
        a("s_mul_i32 s50, s50, %d" % (8 // ROT))
    a("s_lshl_b32 s51, s54, 8")
    a("s_sub_u32 s51, 1920, s51")
    a("s_add_u32 s28, s55, 1")
    a("s_waitcnt lgkmcnt(0)")
    gen1.stamp(a, 1)
    if IWARM:
        a("s_getpc_b64 s[90:91]")
        a.label("AB_PC")
        a("s_lshl_b32 s92, s17, 3")
        a("s_add_u32 s92, s92, s3")
        a("s_lshl_b32 s92, s92, 7")
        a("s_add_u32 s93, s92, 32768")
        a("s_min_u32 s93, s93, KF_LAST-AB_PC")
        a("s_load_dword s53, s[90:91], s92")
        a("s_load_dword s59, s[90:91], s93")
    srd(a, 20, 4, "s44", 128 * 1024)
    srd(a, 24, 6, "s45", "s46")
    a("s_bitcmp1_b32 s28, 1")
    a("s_cbranch_scc0 AB_P")

    def stream(kind):
        P = kind == "P"
        vm = VM(a); lg = VM(a, "lgkmcnt", 15)
        def base(s): return (s % 5) * SLOT
        def dma(s):
            b = base(s); tag = ("d", s)
            G = []
            def grp(m0, off, txt, pre=None):
                G.append([("s", "s_add_u32 m0, %s, %s" % (m0, hx(off)))] + (pre or [("s", "s_nop 0")]) + [("v", txt)])
            ld = "buffer_load_dwordx4 v%d, s[%d:%d], %s offen offset:%d lds"
            if s < 8:
                pre = [("s", "s_add_u32 s48, s50, %d" % s), ("s", "s_and_b32 s48, s48, 7"),
                       ("s", "s_mul_i32 s49, s48, %d" % (64 * 3072)), ("s", "s_lshl_b32 s48, s48, 7")]
                grp("s56", b, ld % (vD, 20, 23, "s48", 0), pre)
                G.append([("v", ld % (vD + 1, 20, 23, "s48", 1024))])
                grp("s57", b + 16384, ld % (vD + 2, 24, 27, "s49", 0))
                if not P: grp("s57", b + 24576, ld % (vD + 2, 24, 27, "s49", 0), [("s", "s_add_u32 s49, s49, s51")])
            else:
                for c in range(2):
                    pos = (2 * (s - 8) + c) % 8
                    pre = [("s", "s_add_u32 s48, s50, %d" % pos), ("s", "s_and_b32 s48, s48, 7"),
                           ("s", "s_mul_i32 s49, s48, %d" % (64 * 3584)), ("s", "s_add_u32 s49, s49, s%d" % (52 if s < 12 else 97))]
                    if P or s < 12:
                        grp("s57", b + c * 16384, ld % (vD + 3, 40, 43, "s49", 0), pre)
                        grp("s57", b + c * 16384 + 8192, ld % (vD + 4, 44, 47, "s49", 0))
                    else:
                        grp("s57", b + c * 8192, ld % (vDM, 4, 7, "s49", 0), pre)
            return [[(k, t, tag) for (k, t) in g] for g in G]
        def flat(G): return [x for g in G for x in g]
        def emit(it):
            k, t, tag = it
            if k == "v": vm.issue(t, tag)
            elif k == "l": lg.issue(t, tag)
            elif k == "f": t()
            else: a(t)
        gi0, gc0 = gate_code(a, vm, "s[28:31]", "s[20:23]", "s39", X + 112)
        if GCG >= 0:
            for it in flat(dma(0)): emit(it)
        srd(a, 28, 12, 0, 1024)
        a("s_lshl_b32 s60, s19, 3")
        a("s_add_u32 s60, s60, s3")
        a("s_lshl_b32 s39, s60, 10")
        gi0()
        if GCG < 0:
            for it in flat(dma(0)): emit(it)
        a("s_barrier")
        for it in flat(dma(1)): emit(it)
        hook(kind, vm, "init")
        if SWARM:
            a("s_lshl_b32 s38, s2, 3")
            a("s_add_u32 s38, s38, s3")
            a("s_mul_i32 s38, s38, 896")
            a("s_add_u32 s90, s8, s38"); a("s_addc_u32 s91, s9, 0")
            a("s_add_u32 s92, s10, s38"); a("s_addc_u32 s93, s11, 0")
            for i in range(7):
                a("s_load_dword s53, s[90:91], %d" % (128 * i))
                a("s_load_dword s53, s[92:93], %d" % (128 * i))
        a("s_lshl_b32 s58, s55, 3")
        a("s_lshr_b32 s38, 0x140e0800, s58")
        a("s_and_b32 s38, s38, 0xff")
        a("s_lshr_b32 s52, 0x00400000, s58")
        a("s_and_b32 s52, s52, 0xff")
        a("s_lshr_b32 s97, 0x80008080, s58")
        a("s_and_b32 s97, s97, 0xff")
        a("s_mul_i32 s58, s54, 28")
        a("s_add_u32 s58, s58, s38")
        a("s_lshl_b32 s38, s58, 5")
        a("s_sub_u32 s39, %d, s38" % (512 * 3584))
        srd(a, 40, 8, "s38", "s39")
        srd(a, 44, 10, "s38", "s39")
        a("v_mul_u32_u24 v24, 3584, v23")
        a("v_add_u32 v%d, v24, v22" % (vD + 3))
        a("v_xor_b32 v%d, 32, v%d" % (vD + 4, vD + 3))
        if not P:
            a("v_lshrrev_b32 v23, 2, v0")
            a("s_lshl_b32 s38, s36, 4")
            a("v_add_u32 v23, s38, v23")
            a("v_mul_u32_u24 v23, 3584, v23")
            a("v_and_b32 v24, 3, v0")
            a("s_lshl_b32 s38, s37, 1")
            a("v_xor_b32 v24, s38, v24")
            a("s_cmp_eq_u32 s37, 0")
            a("s_cselect_b32 s4, s40, s44")
            a("s_cselect_b32 s5, s41, s45")
            a("s_mov_b32 s6, s42")
            a("s_mov_b32 s7, 0x20000")
            a("v_lshl_add_u32 v%d, v24, 4, v23" % vDM)
        a("v_and_b32 v24, 31, v0")
        a("v_lshrrev_b32 v25, 5, v0")
        a("v_bfe_u32 v26, v0, 1, 3")
        a("v_xor_b32 v26, v25, v26")
        a("v_lshlrev_b32 v26, 4, v26")
        a("v_lshl_add_u32 v26, v24, 7, v26")
        a("s_lshl_b32 s38, s36, 12")
        a("v_add_u32 v%d, s38, v26" % vAX)
        a("v_bfe_u32 v21, v0, 2, 2")
        a("v_lshl_add_u32 v26, v25, 3, v21")
        a("v_bfe_u32 v27, v0, 4, 1")
        a("v_and_b32 v28, 3, v0")
        a("v_lshlrev_b32 v28, 3, v28")
        a("v_bfe_u32 v30, v0, 3, 1")
        a("v_lshl_add_u32 v22, v26, 7, v28")
        a("v_lshl_add_u32 v29, v27, 5, v22")
        a("v_xor_b32 v23, s37, v30")
        a("v_lshl_add_u32 v29, v23, 6, v29")
        a("v_add_u32 v%d, 16384, v29" % vAW1)
        if not P: a("v_add_u32 v%d, 24576, v29" % (vAW1 + 1))
        a("v_lshl_add_u32 v23, v23, 1, v27")
        a("v_lshl_add_u32 v29, v23, 5, v22")
        a("v_lshl_add_u32 v29, v27, 13, v29")
        a("v_add_u32 v%d, %d, v29" % (vA2, base(8)))
        a("v_xor_b32 v%d, 32, v%d" % (vA2 + 1, vA2))
        if not P:
            a("v_xor_b32 v23, s37, v27")
            a("v_lshl_add_u32 v29, v23, 5, v28")
            a("v_lshl_add_u32 v29, v26, 6, v29")
            a("v_lshl_add_u32 v29, v27, 12, v29")
            a("v_add_u32 v%d, %d, v29" % (vAM, base(12)))
        a("s_lshl_b32 s90, s18, 2")
        a("s_add_u32 s90, s90, s36")
        a("s_lshl_b32 s91, s90, 10")
        a("s_mul_i32 s90, s90, 112")
        a("s_add_u32 s90, s90, s58")
        a("s_lshr_b32 s38, s52, 5")
        a("s_add_u32 s95, s90, s38")
        a("s_lshr_b32 s38, s97, 5")
        a("s_add_u32 s58, s90, s38")
        a("s_lshl_b32 s38, s37, 1")
        a("s_add_u32 s58, s58, %s" % ("s38" if P else "s37"))
        a("s_lshl_b32 s58, s58, 10")
        a("s_add_u32 s95, s95, s38")
        a("s_lshl_b32 s95, s95, 10")
        if not P:
            a("v_and_b32 v29, 15, v0")
            a("v_lshlrev_b32 v29, 4, v29")
            a("v_lshl_add_u32 v29, v25, 8, v29")
            a("v_lshl_add_u32 v%d, v27, 16, v29" % vSV)
            a("s_lshl_b32 s38, s54, 1")
            a("s_add_u32 s38, s38, s55")
            a("s_sub_u32 s38, s38, 1")
            a("s_lshl_b32 s38, s38, 18")
            a("s_add_u32 s96, s91, s38")
            a("s_lshl_b32 s38, s37, 17")
            a("s_add_u32 s96, s96, s38")
            a("s_add_u32 s96, s96, %s" % hx(VF))
        a("s_cmp_lt_u32 s19, 8")
        a("s_cselect_b32 s92, %s, 1.0" % hx(f2u(0.25 * LOG2E)))
        a("s_cselect_b32 s38, 0, 12")
        a("s_mov_b32 s93, s92")
        a("v_lshrrev_b32 v29, 1, v24")
        a("v_xor_b32 v29, v24, v29")
        a("v_and_b32 v29, 4, v29")
        a("v_mul_u32_u24 v29, 3, v29")
        a("v_and_b32 v29, s38, v29")
        a("v_xor_b32 v29, v24, v29")
        a("v_lshlrev_b32 v29, 4, v29")
        a("v_lshl_add_u32 v%d, v25, 9, v29" % vST)
        a("s_lshl_b32 s38, s19, 18")
        a("s_add_u32 s91, s91, s38")
        a("s_lshl_b32 s38, s37, 17")
        a("s_add_u32 s91, s91, s38")
        a("s_add_u32 s94, s91, 0x10000")
        def gc():
            o = gc0()
            a("v_mov_b32 v30, v%d" % o); a("v_mov_b32 v31, v%d" % (o + 1))
            srd(a, 28, 14, 0, 6 * MB)
        def gst():
            srd(a, 28, 14, GG, 16384)
            a("s_lshl_b32 s39, s18, 7")
            a("s_add_u32 s38, s60, s39")
            a("s_lshl_b32 s38, s38, 3")
            a("v_mov_b32 v29, 0")
            a("s_mov_b32 exec_lo, 0")
            a("s_mov_b32 exec_hi, 0x80000000")
            vm.issue("buffer_store_dwordx2 v[30:31], v29, s[28:31], s38 offen%s" % SC, "gst")
            a("s_mov_b64 exec, -1")
            srd(a, 28, 14, 0, 6 * MB)
        T = [[3], [0, 1], [2, 3]] if P else [[0, 1], [2, 3], [0]]
        DIST = [2, D2, D2] if P else [2, D2, 4]
        def ph(g): return g // 32
        def stage(g): return g // 4 if g < 32 else 8 + (g - 32) // 8
        def first(g): return g % 4 == 0 if g < 32 else g % 8 == 0
        def wf(g, n):
            if len(T[ph(g)]) == 1 and ph(g) == 2: return WF + 4 * (g % 8)
            return WF + 8 * (g % 4) + 4 * n
        def reads(g):
            s = stage(g); p = ph(g); L = []
            if p == 0: R = [vAX] + [vAW1 + n for n in range(len(T[0]))]
            elif p == 2 and not P: R = [vAM]
            else: R = [vA2, vA2 + 1]
            if first(g) and s not in (0, 8) and not (s == 12 and not P):
                d = base(s) - base(s - 1)
                for r in R: L.append(("s", "v_add_u32 v%d, %s, v%d" % (r, hx(d), r), None))
            ks = g % 4
            if p == 0:
                if ks: L.append(("s", "v_xor_b32 v%d, %d, v%d" % (vT, 32 * ks, vAX), None))
                L.append(("l", "ds_read_b128 %s, v%d" % (vr(X + 4 * g, 4), vT if ks else vAX), g))
                R = R[1:]
            c = 0 if p == 0 else (g % 8) // 4
            for n in range(len(T[p])):
                rb_ = 64 if R[n] == vAM else 128
                for q in range(2):
                    L.append(("l", "ds_read_b64_tr_b16 %s, v%d offset:%d" % (vr(wf(g, n) + 2 * q, 2), R[n], c * 128 * rb_ + (16 * ks + 4 * q) * rb_), g))
            return L
        def mfmas(g):
            L = []
            x = vr(X + 4 * (g % 32), 4)
            for n, ac in enumerate(T[ph(g)]):
                d = vr(SET[ac], 16); w = vr(wf(g, n), 4)
                A, B = (x, w) if (g < 32 and n == 1) else (w, x)
                L.append("v_mfma_f32_32x32x16_bf16 %s, %s, %s, %s" % (d, A, B, "0" if g % 32 == 0 else d))
            return L
        def qkv_epi(n):
            b = SET[T[0][n]]; L = []
            if n == 0:
                for i in range(16): L.append(("s", "v_mul_f32 v%d, s92, v%d" % (b + i, b + i), None))
            for i in range(8): L.append(("s", "v_cvt_pk_bf16_f32 v%d, v%d, v%d" % (b + i, b + 2 * i, b + 2 * i + 1), None))
            if n == 0:
                L.append(("v", "buffer_store_dwordx4 %s, v%d, s[28:31], s91 offen%s" % (vr(b, 4), vST, SC), "qkv"))
                L.append(("v", "buffer_store_dwordx4 %s, v%d, s[28:31], s94 offen%s" % (vr(b + 4, 4), vST, SC), "qkv"))
            else:
                for j in range(2):
                    L.append(("v", "buffer_store_dwordx4 %s, v%d, s[28:31], s96 offen offset:%d%s" % (vr(b + 4 * j, 4), vSV, j * 512, SC), "qkv"))
            return L
        def silu(G, Tm, so, off, tag, pk=True):
            U = G + 8; L = []
            def op(o, d, x, y):
                if pk:
                    for i in range(4): L.append("v_pk_%s_f32 %s, %s, %s" % (o, vr(d + 2 * i, 2), vr(x + 2 * i, 2), y if isinstance(y, str) else vr(y + 2 * i, 2)))
                else:
                    for i in range(8): L.append("v_%s_f32 v%d, %s, v%d" % (o, d + i, {"s[92:93]": "s92", "s[12:13]": "1.0"}.get(y, None) or "v%d" % (y + i), x + i))
            op("mul", Tm, G, "s[92:93]")
            for i in range(8): L.append("v_exp_f32 v%d, v%d" % (Tm + i, Tm + i))
            op("mul", G, G, U)
            op("add", Tm, Tm, "s[12:13]")
            for i in range(8): L.append("v_rcp_f32 v%d, v%d" % (Tm + i, Tm + i))
            L.append("s_nop 0")
            op("mul", G, G, Tm)
            for i in range(4): L.append("v_cvt_pk_bf16_f32 v%d, v%d, v%d" % (G + i, G + 2 * i, G + 2 * i + 1))
            L = [("s", t, None) for t in L]
            L.append(("v", "buffer_store_dwordx4 %s, v1, s[32:35], %s offen offset:%d%s" % (vr(G, 4), so, off, SC), tag))
            return L
        def consts():
            a("s_mov_b32 s92, %s" % hx(f2u(-LOG2E))); a("s_mov_b32 s93, s92")
            a("s_mov_b32 s12, 1.0"); a("s_mov_b32 s13, 1.0")
            srd(a, 32, 14, HF, 7 * MB)
        ep1 = []
        for n in reversed(range(len(T[0]))): ep1 += qkv_epi(n)
        ep0 = [("f", gst, None), ("f", lambda: hook(kind, vm, "early"), None)]
        ep1b = [("f", consts, None)]
        if EARLY[kind] >= 34: ep1b = ep0 + ep1b; ep0 = []
        if "noqst" in XP: ep1 = [x for x in ep1 if x[0] != "v"]
        if "noep1" in XP: ep1 = [x for x in ep1 if x[0] == "v"]
        if "plainq" in XP: ep1 = [(k, t.replace(SC, ""), g) if k == "v" else (k, t, g) for (k, t, g) in ep1]
        ep2 = []
        for n, ac in enumerate(T[1]): ep2 += silu(SET[ac], E, "s95", n * 1024, "h1", PK)
        islot = {}
        last = -1
        for g in range(96):
            want = g - DIST[ph(g)]
            regs = set(r for n in range(len(T[ph(g)])) for r in range(wf(g, n), wf(g, n) + 4))
            for g2 in range(g - 1, max(-1, g - 10), -1):
                r2 = set(r for n in range(len(T[ph(g2)])) for r in range(wf(g2, n), wf(g2, n) + 4))
                if regs & r2: want = max(want, g2 + 1); break
            want = max(want, last)
            assert want < g or g == 0, g
            islot[g] = want; last = want
        syncs = {islot[g]: stage(g) for g in range(1, 96) if first(g)}
        def barrier(s):
            if s == PUBS[kind]: vm.wait(("d", s), "qkv", "gst", "sent")
            else: vm.wait(("d", s))
            if s == 15: a("s_waitcnt lgkmcnt(0)"); lg.ops = []
            a("s_barrier")
            if s == PUBS[kind]: hook(kind, vm, "pub")
        if GCG < 0: gc()
        barrier(0)
        if SWARM: a("s_waitcnt lgkmcnt(0)")
        gen1.stamp(a, 2)
        for g in range(96):
            if islot[g] < 0:
                for it in reads(g): emit(it)
        stq = []; nst = [0]
        pend = dma(2) + dma(3)
        for g in range(96):
            O = []
            for g2 in range(g + 1, 96):
                if islot[g2] == g: O += reads(g2)
            bar = syncs.get(g)
            if bar is not None:
                assert not any(it[2] == ("d", bar) for grp in pend for it in grp), (g, bar)
                if bar + 3 <= 15: pend += dma(bar + 3)
            if pend and (g < 32 or g % 2 == 0 or len(pend) > 4):
                for _ in range(2 if len(pend) > 4 and g < 32 else 1): O += pend.pop(0)
            if g == GCG: O.append(("f", gc, None))
            if ep0 and g >= EARLY[kind]: O.append(ep0.pop(0))
            if g >= 34 and stq and g >= nst[0] and None not in stq[:2]:
                O += stq.pop(0); nst[0] = g + STG
            if g >= 34 and ep1:
                n = EPR + 2
                for it in ep1[:n]:
                    if it[0] == "v": stq.append([it])
                    elif it[1].startswith("s_add_u32 s9"): stq.append([it]) ; stq.append(None)
                    else: O.append(it)
                ep1 = ep1[n:]
                i = 0
                while i < len(stq):
                    if stq[i] is None and i + 1 < len(stq):
                        stq[i - 1] = stq[i - 1] + stq[i + 1]
                        del stq[i:i + 2]
                    else: i += 1
            elif stq: pass
            elif g >= max(34, EARLY[kind]) and ep1b and g >= nst[0]: O.append(ep1b.pop(0)); nst[0] = g + 2
            elif g >= 67 and ep2:
                n = EPR if P else EPRR
                O += ep2[:n]; ep2 = ep2[n:]
                O += hook(kind, vm, (g, CH if P else 1)) or []
            elif g >= 34 and not ep1b:
                O += hook(kind, vm, (g, 6 if g < 64 else 10)) or []
            if g == WARMG: O.append(("f", lambda: hook(kind, vm, "warm"), None))
            if g == POLLG: O.append(("f", lambda: hook(kind, vm, "poll"), None))
            if g == LDG: assert not ep2
            if g == LDG: O.append(("f", lambda: hook(kind, vm, "ld"), None))
            if bar == PUBS[kind]: assert not ep1 and not stq and not ep1b and not any(it[0] == "f" for it in O), (kind, g)
            M = mfmas(g)
            pr = PRIO if g >= PRG else 0
            if pr: a("s_setprio 1")
            lg.wait(g)
            gen1.stamp(a, "g%d" % g)
            n = len(M); per = max(1, -(-len(O) // n))
            if pr == 2:
                for m in M: a(m)
                a("s_setprio 0")
                if bar is not None: barrier(bar)
                for it in O: emit(it)
                continue
            for i, m in enumerate(M):
                if pr and i: a("s_setprio 1")
                a(m)
                if pr: a("s_setprio 0")
                if i == 0 and bar is not None: barrier(bar)
                for it in O[i * per:(i + 1) * per]: emit(it)
        assert not ep1 and not ep2 and not pend
        gen1.stamp(a, 4)
        hook(kind, vm, "pre_h")
        a("s_nop 10")
        L0 = silu(SET[T[2][0]], WF, "s58", 0, "h")
        if P:
            L1 = silu(SET[T[2][1]], WF + 8, "s58", 1024, "h")
            for it in L0[:12] + L1[:12] + L0[12:28]: emit(it)
            hook(kind, vm, "mid_h")
            for it in L1[12:28] + L0[29:] + L1[29:]: emit(it)
        else:
            for it in L0[:28]: emit(it)
            hook(kind, vm, "mid_h")
            for it in L0[28:]: emit(it)
            a("v_mov_b32 v4, 0x1000")
            vm.issue("buffer_store_dword v4, v4, s[84:87], 0 offen", "h")
        tail(kind, vm)
    stream("R")
    a.label("AB_P")
    stream("P")
```

```python
import gen1
from gen1 import *
def amp(kidA, fA, kidB, fB, K):
    def k(a):
        name = "amp_kernel"
        header(a, name)
        a("s_cmp_ge_u32 s2, 1")
        a("s_cbranch_scc1 AMP_END")
        a("s_load_dwordx2 s[4:5], s[0:1], 80")
        a("s_memrealtime s[30:31]")
        a("s_waitcnt lgkmcnt(0)")
        srd(a, 8, 4, TS, 8 * MB)
        a("v_lshlrev_b32 v1, 10, v0")
        a("s_mov_b32 s20, %d" % (kidA * MB + fA * 4))
        a("s_mov_b32 s21, %d" % (kidB * MB + fB * 4))
        a("buffer_load_dword v2, v1, s[8:11], s20 offen")
        a("buffer_load_dword v3, v1, s[8:11], s21 offen")
        a("s_waitcnt vmcnt(0)")
        a("v_sub_u32 v2, s30, v2")
        a("v_sub_u32 v3, s30, v3")
        a("v_lshlrev_b32 v4, 2, v0")
        a("ds_write_b32 v4, v2")
        a("ds_write_b32 v4, v3 offset:1024")
        a("s_waitcnt lgkmcnt(0)")
        a("s_barrier")
        a("v_mov_b32 v4, 0")
        a("s_mov_b32 s22, 256")
        a.label("AMP_L")
        a("ds_read_b32 v5, v4")
        a("ds_read_b32 v6, v4 offset:1024")
        a("s_waitcnt lgkmcnt(0)")
        a("v_max_u32 v2, v2, v5")
        a("v_min_u32 v3, v3, v6")
        a("v_add_u32 v4, 4, v4")
        a("s_sub_u32 s22, s22, 1"); a("s_cmp_lg_u32 s22, 0"); a("s_cbranch_scc1 AMP_L")
        a("v_sub_u32 v2, v2, v3")
        a("s_nop 1")
        a("v_readfirstlane_b32 s23, v2")
        a("s_nop 3")
        a("s_min_u32 s23, s23, 20000")
        a("s_mul_i32 s23, s23, %d" % K)
        a("s_memrealtime s[30:31]")
        a("s_waitcnt lgkmcnt(0)")
        a.label("AMP_S")
        a("s_memrealtime s[32:33]")
        a("s_waitcnt lgkmcnt(0)")
        a("s_sub_u32 s32, s32, s30")
        a("s_cmp_lt_u32 s32, s23")
        a("s_cbranch_scc1 AMP_S")
        a.label("AMP_END")
        a("s_endpgm")
        return name, 8, "grid=(1,1,1) block=(256,1,1) lds=2048"
    return k
```

```python
import sys
sys.path.insert(0, "gen")
import gen1, gen10
from gen5 import build1
from amp import amp
gen10.parse(["stamp", "rt", sys.argv[1]] + sys.argv[2:])
for i, f in enumerate([None, 1, 3, 4, 5]):
    build1("am%d.s" % i, gen10.kf, [amp(0, 0, 0, f or 1, 0 if f is None else 2)])

build1("am5.s", gen10.kf, aslist=True)
```

```python
import sys
sys.path.insert(0, "gen")
from asmlib import *

MB = 1 << 20
QF = 0; KF = 2*MB; VF = 4*MB; HF = 6*MB; OF = 14*MB; GG = 16*MB; BB = 17*MB
LOG2E = 1.4426950408889634
import struct
def f2u(x): return struct.unpack("<I", struct.pack("<f", x))[0]
def hx(x): return "0x%x" % (x & 0xffffffff)

def vr(b, n): return "v[%d:%d]" % (b, b + n - 1) if n > 1 else "v%d" % b
def sr(b, n): return "s[%d:%d]" % (b, b + n - 1) if n > 1 else "s%d" % b

def srd(a, d, base, off, size):
    if off == 0:
        a("s_mov_b32 s%d, s%d" % (d, base)); a("s_mov_b32 s%d, s%d" % (d + 1, base + 1))
    else:
        a("s_add_u32 s%d, s%d, %s" % (d, base, off if isinstance(off, str) else hx(off)))
        a("s_addc_u32 s%d, s%d, 0" % (d + 1, base + 1))
    a("s_mov_b32 s%d, %s" % (d + 2, size if isinstance(size, str) else hx(size)))
    a("s_mov_b32 s%d, 0x20000" % (d + 3))

STAMP = False
TS = 32 * MB
SMAP = None
RT = False
VST = 17
def _put(a, op, lane):
    a("%s s[38:39]" % op)
    a("s_waitcnt lgkmcnt(0)")
    a("v_writelane_b32 v%d, s38, %d" % (VST, lane))
def stamp(a, i):
    if not STAMP: return
    if SMAP is None or i not in SMAP: return
    _put(a, "s_memrealtime" if RT else "s_memtime", 3 + SMAP.index(i))
def stamp_begin(a):
    if not STAMP: return
    a("v_mov_b32 v%d, 0" % VST)
    _put(a, "s_memrealtime", 0)
    _put(a, "s_memtime", 2)
def stamp_end(a, kid, wsreg, n):
    if not STAMP: return
    a("s_mov_b64 exec, -1")
    a("s_waitcnt vmcnt(0)")
    _put(a, "s_memrealtime", 1)
    _put(a, "s_memtime", 11)
    srd(a, 20, wsreg, TS + kid * MB, MB)
    a("s_lshl_b32 s24, s2, 4")
    a("s_add_u32 s24, s24, s3")
    a("s_lshl_b32 s24, s24, 6")
    a("v_lshlrev_b32 v1, 2, v0")
    a("s_mov_b64 exec, 0xffff")
    a("buffer_store_dword v%d, v1, s[20:23], s24 offen" % VST)
    a("s_waitcnt vmcnt(0)")

def header(a, name):
    a(".globl %s" % name); a(".p2align 8"); a(".type %s,@function" % name); a.label(name)

def descriptor(name, nv, ns=102):
    acc = (nv + 3) // 4 * 4
    return """.p2align 6
.amdhsa_kernel %s
  .amdhsa_next_free_vgpr %d
  .amdhsa_next_free_sgpr %d
  .amdhsa_accum_offset %d
  .amdhsa_group_segment_fixed_size 0
  .amdhsa_kernarg_size 88
  .amdhsa_user_sgpr_count 2
  .amdhsa_user_sgpr_kernarg_segment_ptr 1
  .amdhsa_system_sgpr_workgroup_id_x 1
  .amdhsa_float_denorm_mode_32 3
.end_amdhsa_kernel
""" % (name, nv, ns, acc)

SLOT = 28672; NSLOT = 5
def k1(a):
    name = "k1_kernel"
    header(a, name)
    a("s_cmp_ge_u32 s2, 256")
    a("s_cbranch_scc1 K1_END")
    stamp_begin(a)
    a("s_load_dwordx4 s[4:7], s[0:1], 0")
    a("s_load_dwordx4 s[8:11], s[0:1], 32")
    a("s_load_dwordx2 s[12:13], s[0:1], 56")
    a("s_load_dwordx2 s[14:15], s[0:1], 80")
    a("v_lshrrev_b32 v1, 6, v0")
    a("v_and_b32 v0, 63, v0")
    a("s_and_b32 s16, s2, 7")
    a("v_readfirstlane_b32 s3, v1")
    a("s_lshr_b32 s17, s2, 3")
    a("s_and_b32 s18, s16, 1")
    a("s_lshl_b32 s18, s18, 3")
    a("s_and_b32 s19, s17, 7")
    a("s_add_u32 s18, s18, s19")
    a("s_lshr_b32 s19, s16, 1")
    a("s_lshl_b32 s19, s19, 2")
    a("s_lshr_b32 s17, s17, 3")
    a("s_add_u32 s19, s19, s17")
    a("s_mov_b32 s58, %d" % SLOT)
    a("s_cmp_ge_u32 s3, 4")
    a("s_cbranch_scc1 K1_LOADER")
    a("s_and_b32 s36, s3, 1")
    a("s_lshr_b32 s37, s3, 1")
    AX0, AX1, AQ, AG0, AG1 = 2, 3, 4, 5, 6
    F = [12, 40]; ACC = 68
    def T(tt, c): return ACC + 16 * (2 * c + tt)
    a("v_and_b32 v7, 31, v0")
    a("v_lshrrev_b32 v8, 5, v0")
    a("v_and_b32 v9, 15, v0")
    a("v_bfe_u32 v10, v0, 4, 1")
    a("v_bfe_u32 v11, v0, 2, 2")
    a("v_xor_b32 v11, v8, v11")
    a("v_lshlrev_b32 v11, 4, v11")
    a("s_lshl_b32 s38, s36, 12")
    a("v_lshl_add_u32 v%d, v7, 6, v11" % AX0)
    a("v_add_u32 v%d, s38, v%d" % (AX0, AX0))
    a("v_xor_b32 v%d, 32, v%d" % (AX1, AX0))
    a("v_lshrrev_b32 v15, 2, v9")
    a("v_lshl_add_u32 v12, v8, 3, v15")
    a("v_bfe_u32 v13, v9, 1, 1")
    a("v_lshl_add_u32 v13, v10, 1, v13")
    a("v_and_b32 v14, 1, v9")
    a("v_lshlrev_b32 v14, 3, v14")
    a("v_lshrrev_b32 v16, 3, v9")
    a("v_xor_b32 v16, s37, v16")
    a("v_lshl_add_u32 v16, v16, 2, v13")
    a("v_lshl_add_u32 v16, v16, 4, v14")
    a("v_lshl_add_u32 v16, v12, 7, v16")
    a("v_add_u32 v%d, 8192, v16" % AQ)
    a("s_lshl_b32 s38, s37, 1")
    for u, R in ((0, AG0), (1, AG1)):
        if u: a("s_add_u32 s38, s38, 1")
        a("v_xor_b32 v16, s38, v15")
        a("v_lshl_add_u32 v16, v16, 2, v13")
        a("v_lshl_add_u32 v16, v16, 4, v14")
        a("v_lshl_add_u32 v16, v12, 8, v16")
        a("v_add_u32 v%d, 12288, v16" % R)
    for r in range(ACC, ACC + 160): a("v_mov_b32 v%d, 0" % r)
    a("s_mov_b32 s40, 0")
    a("s_mov_b32 s41, 16")
    def reads(f, ks):
        b = F[f]; L = []
        ax = AX0 if ks == 0 else AX1
        def X(tt): return "ds_read_b128 %s, v%d offset:%d" % (vr(b + 4 * tt, 4), ax, tt * 2048)
        def W(c, q):
            d = vr(b + 8 + 4 * c + 2 * q, 2)
            if c == 0: return "ds_read_b64_tr_b16 %s, v%d offset:%d" % (d, AQ, (16 * ks + 4 * q) * 128)
            u = (c - 1) % 2; up = (c - 1) // 2
            return "ds_read_b64_tr_b16 %s, v%d offset:%d" % (d, AG0 + u, (16 * ks + 4 * q) * 256 + up * 8192)
        return [X(0), W(0, 0), W(0, 1), X(1), W(1, 0), W(1, 1), W(2, 0), W(2, 1), W(3, 0), W(3, 1), W(4, 0), W(4, 1)]
    def mf(f, tt, c, swap):
        b = F[f]; x = vr(b + 4 * tt, 4); w = vr(b + 8 + 4 * c, 4); d = vr(T(tt, c), 16)
        if swap and c > 0: return "v_mfma_f32_32x32x16_bf16 %s, %s, %s, %s" % (d, x, w, d)
        return "v_mfma_f32_32x32x16_bf16 %s, %s, %s, %s" % (d, w, x, d)
    stamp(a, 1)
    a("s_barrier")
    stamp(a, 2)
    for r in reads(0, 0): a(r)
    a("s_cmp_ge_u32 s19, 14")
    a("s_cbranch_scc1 K1_ZLOOP")
    def loop(lab, swap):
        a(".p2align 6")
        a.label(lab)
        for ph in range(2):
            R = reads(1 - ph, 1 - ph)
            a("s_waitcnt lgkmcnt(0)")
            n = 0
            for c in range(5):
                for tt in range(2):
                    a(mf(ph, tt, c, swap))
                    if ph == 1 and n == 0: a("s_barrier")
                    if n < 6:
                        a(R[2 * n]); a(R[2 * n + 1])
                    if ph == 0 and n == 6:
                        a("s_add_u32 s40, s40, 1")
                        a("s_cmp_eq_u32 s40, %d" % NSLOT)
                        a("s_cselect_b32 s42, %s, s58" % (hx(-(NSLOT - 1) * SLOT)))
                        a("s_cselect_b32 s40, 0, s40")
                    if ph == 0 and n == 7:
                        for R_ in (AX0, AX1, AQ): a("v_add_u32 v%d, s42, v%d" % (R_, R_))
                    if ph == 0 and n == 8:
                        for R_ in (AG0, AG1): a("v_add_u32 v%d, s42, v%d" % (R_, R_))
                    if ph == 1 and n == 7:
                        a("s_sub_u32 s41, s41, 1")
                        a("s_cmp_lg_u32 s41, 0")
                    n += 1
        a("s_cbranch_scc1 %s" % lab)
    def epi_common():
        a("s_waitcnt lgkmcnt(0)")
        stamp(a, 3)
        srd(a, 20, 14, 0, 6 * MB)
        srd(a, 24, 14, HF, 7 * MB)
        a("s_lshl_b32 s44, s18, 2")
        a("s_lshl_b32 s45, s36, 1")
        a("s_add_u32 s44, s44, s45")
        a("s_lshl_b32 s46, s19, 1")
        a("s_add_u32 s46, s46, s37")
        a("s_lshl_b32 s46, s46, 17")
        a("s_lshl_b32 s45, s44, 10")
        a("s_add_u32 s46, s46, s45")
        a("s_cmp_lt_u32 s19, 8")
        a("s_cselect_b32 s48, %s, 1.0" % hx(f2u(0.25 * LOG2E)))
        a("s_mov_b32 s49, s48")
        a("s_cselect_b32 s50, 0, 12")
        a("v_lshrrev_b32 v11, 1, v7")
        a("v_xor_b32 v11, v7, v11")
        a("v_and_b32 v11, 4, v11")
        a("v_mul_u32_u24 v11, 3, v11")
        a("v_and_b32 v11, s50, v11")
        a("v_xor_b32 v11, v7, v11")
        a("v_lshlrev_b32 v11, 4, v11")
        a("v_lshl_add_u32 v11, v8, 9, v11")
        a("v_lshlrev_b32 v2, 4, v0")
        a("s_nop 7")
        TMP = 12
        for tt in range(2):
            b = T(tt, 0)
            for i in range(8): a("v_pk_mul_f32 %s, %s, s[48:49]" % (vr(b + 2 * i, 2), vr(b + 2 * i, 2)))
            for i in range(8): a("v_cvt_pk_bf16_f32 v%d, v%d, v%d" % (TMP + 8 * tt + i, b + 2 * i, b + 2 * i + 1))
            a("s_add_u32 s47, s46, 0x10000")
            a("buffer_store_dwordx4 %s, v11, s[20:23], s46 offen offset:%d" % (vr(TMP + 8 * tt, 4), tt * 1024))
            a("buffer_store_dwordx4 %s, v11, s[20:23], s47 offen offset:%d" % (vr(TMP + 8 * tt + 4, 4), tt * 1024))
    loop("K1_XLOOP", False)
    epi_common()
    a("s_mov_b32 s52, %s" % hx(f2u(-LOG2E))); a("s_mov_b32 s53, s52")
    a("s_mov_b32 s54, 1.0"); a("s_mov_b32 s55, 1.0")
    a("s_mul_i32 s56, s44, 112")
    a("s_lshl_b32 s57, s19, 3")
    a("s_add_u32 s56, s56, s57")
    a("s_lshl_b32 s57, s37, 2")
    a("s_add_u32 s56, s56, s57")
    a("s_lshl_b32 s56, s56, 10")
    a("s_add_u32 s57, s56, %d" % (112 * 1024))
    E = 228
    for tt in range(2):
        for u in range(2):
            G = T(tt, 1 + u); U = T(tt, 3 + u); P = 28 + 8 * (2 * tt + u)
            for i in range(8): a("v_pk_mul_f32 %s, %s, s[52:53]" % (vr(E + 2 * i, 2), vr(G + 2 * i, 2)))
            for i in range(16): a("v_exp_f32 v%d, v%d" % (E + i, E + i))
            for i in range(8): a("v_pk_mul_f32 %s, %s, %s" % (vr(G + 2 * i, 2), vr(G + 2 * i, 2), vr(U + 2 * i, 2)))
            for i in range(8): a("v_pk_add_f32 %s, %s, s[54:55]" % (vr(E + 2 * i, 2), vr(E + 2 * i, 2)))
            for i in range(16): a("v_rcp_f32 v%d, v%d" % (E + i, E + i))
            a("s_nop 0")
            for i in range(8): a("v_pk_mul_f32 %s, %s, %s" % (vr(G + 2 * i, 2), vr(G + 2 * i, 2), vr(E + 2 * i, 2)))
            for i in range(8): a("v_cvt_pk_bf16_f32 v%d, v%d, v%d" % (P + i, G + 2 * i, G + 2 * i + 1))
            for jj in range(2):
                a("buffer_store_dwordx4 %s, v2, s[24:27], s%d offen offset:%d" % (vr(P + 4 * jj, 4), 56 + tt, u * 2048 + jj * 1024))
    stamp(a, 4)
    stamp_end(a, 0, 14, 5)
    a("s_endpgm")
    loop("K1_ZLOOP", True)
    epi_common()
    a("v_lshlrev_b32 v3, 16, v10")
    a("v_lshl_add_u32 v3, v8, 8, v3")
    a("v_lshl_add_u32 v3, v9, 4, v3")
    a("s_sub_u32 s56, s19, 14")
    a("s_lshl_b32 s56, s56, 3")
    a("s_lshl_b32 s57, s37, 1")
    a("s_add_u32 s56, s56, s57")
    a("s_lshl_b32 s56, s56, 17")
    a("s_add_u32 s56, s56, s45")
    a("s_add_u32 s56, s56, %s" % hx(VF))
    n = 0
    for part in range(2):
        for u in range(2):
            a("s_add_u32 s57, s56, %s" % hx((4 * part + u) << 17))
            for tt in range(2):
                b = T(tt, 1 + 2 * part + u); P = 28 + 8 * (n % 4); n += 1
                for i in range(8): a("v_cvt_pk_bf16_f32 v%d, v%d, v%d" % (P + i, b + 2 * i, b + 2 * i + 1))
                for j in range(2):
                    a("buffer_store_dwordx4 %s, v3, s[20:23], s57 offen offset:%d" % (vr(P + 4 * j, 4), tt * 1024 + j * 512))
    stamp(a, 4)
    stamp_end(a, 0, 14, 5)
    a("s_endpgm")
    a.label("K1_LOADER")
    a("s_sub_u32 s36, s3, 4")
    a("s_waitcnt lgkmcnt(0)")
    a("s_lshl_b32 s38, s18, 17")
    srd(a, 20, 4, "s38", 128 * 1024)
    a("s_lshl_b32 s38, s19, 7")
    a("s_sub_u32 s39, %d, s38" % (512 * 3072))
    srd(a, 24, 6, "s38", "s39")
    a("s_cmp_ge_u32 s19, 14")
    a("s_cbranch_scc1 K1_LZ")
    a("s_lshl_b32 s38, s19, 8")
    a("s_sub_u32 s39, %d, s38" % (512 * 3584))
    srd(a, 28, 8, "s38", "s39")
    srd(a, 32, 10, "s38", "s39")
    a("s_mov_b32 s37, 3584")
    a("s_branch K1_LGO")
    a.label("K1_LZ")
    a("s_sub_u32 s38, s19, 14")
    a("s_lshl_b32 s38, s38, 9")
    a("s_add_u32 s38, s38, 2048")
    a("s_sub_u32 s39, %d, s38" % (512 * 3072))
    srd(a, 28, 6, "s38", "s39")
    a("s_add_u32 s38, s38, 256")
    a("s_sub_u32 s39, s39, 256")
    srd(a, 32, 6, "s38", "s39")
    a("s_mov_b32 s37, 3072")
    a.label("K1_LGO")
    a("v_lshrrev_b32 v8, 4, v0")
    a("v_and_b32 v9, 3, v0")
    a("v_xor_b32 v9, v9, v8")
    a("v_lshlrev_b32 v9, 4, v9")
    a("v_lshrrev_b32 v10, 2, v0")
    a("v_lshl_add_u32 v2, v10, 10, v9")
    a("s_lshl_b32 s38, s36, 15")
    a("v_add_u32 v2, s38, v2")
    a("v_add_u32 v3, %d, v2" % (16384 - 1024))
    a("v_and_b32 v9, 1, v8")
    a("v_lshlrev_b32 v9, 2, v9")
    a("v_and_b32 v10, 7, v0")
    a("v_xor_b32 v9, v9, v10")
    a("v_lshlrev_b32 v9, 4, v9")
    a("v_lshrrev_b32 v10, 3, v0")
    a("s_lshl_b32 s38, s36, 3")
    a("v_add_u32 v10, s38, v10")
    a("v_mul_u32_u24 v10, 3072, v10")
    a("v_add_u32 v4, v10, v9")
    a("v_lshlrev_b32 v9, 2, v8")
    a("v_and_b32 v10, 15, v0")
    a("v_xor_b32 v9, v9, v10")
    a("v_lshlrev_b32 v9, 4, v9")
    a("v_add_u32 v10, s38, v8")
    a("v_mul_u32_u24 v10, s37, v10")
    a("v_add_u32 v5, v10, v9")
    a("s_lshl_b32 s38, s37, 2")
    a("s_sub_u32 s38, s38, 1024")
    a("v_add_u32 v6, s38, v5")
    a("s_lshl_b32 s40, s36, 11")
    a("s_lshl_b32 s41, s36, 10")
    a("s_add_u32 s41, s41, 8192")
    a("s_add_u32 s42, s40, 12288")
    a("s_add_u32 s43, s40, 20480")
    a("s_mov_b32 s44, 0")
    a("s_mov_b32 s45, 0"); a("s_mov_b32 s46, 0"); a("s_mov_b32 s47, 0")
    a("s_lshl_b32 s48, s37, 5")
    def issue():
        a("s_mov_b32 m0, s40")
        a("s_add_u32 s44, s44, 1")
        a("buffer_load_dwordx4 v2, s[20:23], s45 offen lds")
        a("buffer_load_dwordx4 v3, s[20:23], s45 offen offset:1024 lds")
        a("s_mov_b32 m0, s41")
        a("s_cmp_eq_u32 s44, %d" % NSLOT)
        a("buffer_load_dwordx4 v4, s[24:27], s46 offen lds")
        a("s_mov_b32 m0, s42")
        a("s_cselect_b32 s49, %s, s58" % (hx(-(NSLOT - 1) * SLOT)))
        a("buffer_load_dwordx4 v5, s[28:31], s47 offen lds")
        a("buffer_load_dwordx4 v6, s[28:31], s47 offen offset:1024 lds")
        a("s_mov_b32 m0, s43")
        a("s_cselect_b32 s44, 0, s44")
        a("buffer_load_dwordx4 v5, s[32:35], s47 offen lds")
        a("buffer_load_dwordx4 v6, s[32:35], s47 offen offset:1024 lds")
        for r in (40, 41, 42, 43): a("s_add_u32 s%d, s%d, s49" % (r, r))
        a("s_add_u32 s45, s45, 64")
        a("s_add_u32 s46, s46, %d" % (32 * 3072))
        a("s_add_u32 s47, s47, s48")
    a("s_mov_b32 s50, 5")
    a.label("K1_LPRO")
    issue()
    a("s_sub_u32 s50, s50, 1")
    a("s_cmp_lg_u32 s50, 0")
    a("s_cbranch_scc1 K1_LPRO")
    stamp(a, 1)
    a("s_waitcnt vmcnt(28)")
    stamp(a, 2)
    a("s_barrier")
    a("s_waitcnt vmcnt(21)"); a("s_barrier")
    a("s_mov_b32 s50, 11")
    a.label("K1_LLOOP")
    a("s_waitcnt vmcnt(14)"); a("s_barrier")
    issue()
    a("s_sub_u32 s50, s50, 1")
    a("s_cmp_lg_u32 s50, 0")
    a("s_cbranch_scc1 K1_LLOOP")
    a("s_waitcnt vmcnt(14)"); a("s_barrier")
    a("s_waitcnt vmcnt(7)"); a("s_barrier")
    a("s_waitcnt vmcnt(0)")
    stamp(a, 3)
    a("s_barrier")
    srd(a, 24, 12, 0, 1024)
    srd(a, 28, 14, GG, 16384)
    a("s_lshl_b32 s38, s19, 3")
    a("s_lshl_b32 s39, s36, 1")
    a("s_add_u32 s38, s38, s39")
    a("s_lshl_b32 s39, s38, 10")
    a("v_lshlrev_b32 v2, 4, v0")
    a("buffer_load_dwordx4 v[8:11], v2, s[24:27], 0 offen")
    a("buffer_load_dwordx4 v[12:15], v2, s[20:23], s39 offen")
    a("buffer_load_dwordx4 v[16:19], v2, s[20:23], s39 offen offset:1024")
    a("s_barrier")
    a("s_mov_b32 s40, 0xffff0000")
    a("s_waitcnt vmcnt(0)")
    for i in range(4):
        a("v_lshlrev_b32 v%d, 16, v%d" % (20 + 2 * i, 8 + i))
        a("v_and_b32 v%d, s40, v%d" % (21 + 2 * i, 8 + i))
    for t in range(2):
        x = 12 + 4 * t; acc = 40 + t
        for i in range(4):
            a("v_lshlrev_b32 v28, 16, v%d" % (x + i))
            a("v_and_b32 v29, s40, v%d" % (x + i))
            a("v_mul_f32 v28, v28, v%d" % (20 + 2 * i))
            a("v_mul_f32 v29, v29, v%d" % (21 + 2 * i))
            a("v_cvt_pk_bf16_f32 v28, v28, v29")
            a("v_and_b32 v29, s40, v28")
            a("v_lshlrev_b32 v28, 16, v28")
            if i == 0: a("v_add_f32 v%d, v28, v29" % acc)
            else:
                a("v_add_f32 v28, v28, v29")
                a("v_add_f32 v%d, v%d, v28" % (acc, acc))
    for m in ("row_shr:1", "row_shr:2", "row_shr:4", "row_shr:8"):
        a("s_nop 0")
        for t in range(2): a("v_add_f32_dpp v%d, v%d, v%d %s row_mask:0xf bank_mask:0xf bound_ctrl:0" % (40 + t, 40 + t, 40 + t, m))
    a("s_nop 0")
    for t in range(2): a("v_add_f32_dpp v%d, v%d, v%d row_bcast:15 row_mask:0xa bank_mask:0xf" % (40 + t, 40 + t, 40 + t))
    a("s_nop 0")
    for t in range(2): a("v_add_f32_dpp v%d, v%d, v%d row_bcast:31 row_mask:0xc bank_mask:0xf" % (40 + t, 40 + t, 40 + t))
    a("s_mov_b32 s41, %s" % hx(f2u(-LOG2E)))
    for t in range(2):
        z = 40 + t; o = 44 + 2 * t
        a("v_cvt_pk_bf16_f32 v%d, v%d, v%d" % (z, z, z))
        a("v_and_b32 v%d, s40, v%d" % (z, z))
        a("v_mul_f32 v%d, s41, v%d" % (z, z))
        a("v_exp_f32 v%d, v%d" % (z, z))
        a("s_nop 0")
        a("v_add_f32 v%d, 1.0, v%d" % (z, z))
        a("v_rcp_f32 v%d, v%d" % (z, z))
        a("s_nop 0")
        a("v_cvt_pk_bf16_f32 v%d, v%d, v%d" % (z, z, z))
        a("v_and_b32 v%d, s40, v%d" % (o, z))
        a("v_sub_f32 v%d, 1.0, v%d" % (z, o))
        a("v_cvt_pk_bf16_f32 v%d, v%d, v%d" % (z, z, z))
        a("v_and_b32 v%d, s40, v%d" % (o + 1, z))
    a("s_lshl_b32 s39, s18, 7")
    a("s_add_u32 s38, s38, s39")
    a("s_lshl_b32 s38, s38, 3")
    a("v_mov_b32 v2, 0")
    a("s_mov_b32 exec_lo, 0")
    a("s_mov_b32 exec_hi, 0x80000000")
    a("buffer_store_dwordx4 v[44:47], v2, s[28:31], s38 offen")
    stamp(a, 4)
    stamp_end(a, 0, 14, 5)
    a.label("K1_END")
    a("s_endpgm")
    return name, 256, "grid=(256,1,1) block=(512,1,1) lds=%d" % (NSLOT * SLOT)

def k2(a):
    name = "k2_kernel"
    header(a, name)
    Q = 8; S = [24, 40]; K = [56, 60]; V = [64, 72]; O = 80
    a("s_cmp_ge_u32 s2, 256")
    a("s_cbranch_scc1 K2_END")
    stamp_begin(a)
    a("s_load_dwordx2 s[4:5], s[0:1], 80")
    a("v_lshrrev_b32 v1, 6, v0")
    a("v_and_b32 v0, 63, v0")
    a("s_and_b32 s20, s2, 7")
    a("v_readfirstlane_b32 s3, v1")
    a("s_lshl_b32 s20, s20, 2")
    a("s_bfe_u32 s21, s2, 0x20003")
    a("s_add_u32 s20, s20, s21")
    a("s_lshr_b32 s21, s2, 5")
    a("s_and_b32 s22, s3, 1")
    a("s_lshr_b32 s23, s3, 1")
    a("v_lshlrev_b32 v1, 4, v0")
    a("v_and_b32 v2, 15, v0")
    a("v_lshlrev_b32 v2, 4, v2")
    a("v_lshrrev_b32 v4, 5, v0")
    a("v_lshl_add_u32 v2, v4, 8, v2")
    a("v_mov_b32 v3, 0xdddddddd")
    a("s_lshl_b32 s24, s20, 16")
    a("s_lshl_b32 s25, s21, 3")
    a("s_lshl_b32 s26, s22, 2")
    a("s_add_u32 s25, s25, s26")
    a("s_lshl_b32 s27, s23, 14")
    a("s_add_u32 s27, s27, s24")
    a("s_add_u32 s26, s27, %s" % hx(KF))
    a("s_mov_b32 s30, 0x0000ffff"); a("s_mov_b32 s31, 0x0000ffff")
    for i in range(16): a("v_mov_b32 v%d, 0x3f803f80" % (V[0] + i))
    a("s_waitcnt lgkmcnt(0)")
    srd(a, 8, 4, 0, 4 * MB)
    srd(a, 12, 4, VF, 2 * MB)
    srd(a, 16, 4, OF, 2 * MB)
    for s in range(4):
        a("s_add_u32 s28, s23, %d" % s)
        a("s_and_b32 s28, s28, 3")
        a("s_add_u32 s28, s28, s25")
        if s == 0: a("s_mov_b32 s29, s28")
        a("s_lshl_b32 s28, s28, 10")
        a("s_add_u32 s28, s28, s24")
        a("buffer_load_dwordx4 %s, v1, s[8:11], s28 offen" % vr(Q + 4 * s, 4))
    def ldK(b):
        a("buffer_load_dwordx4 %s, v1, s[8:11], s26 offen" % vr(K[b], 4))
        a("s_add_u32 s26, s26, 1024")
    def ldV(b):
        a("s_mov_b64 exec, s[30:31]")
        a("buffer_load_dwordx4 %s, v2, s[12:15], s27 offen" % vr(V[b], 4))
        a("buffer_load_dwordx4 %s, v2, s[12:15], s27 offen offset:512" % vr(V[b] + 4, 4))
        a("s_mov_b64 exec, -1")
        a("s_add_u32 s27, s27, 1024")
    ldK(0); ldV(0); ldK(1)
    for i in range(64): a("v_mov_b32 v%d, 0" % (O + i))
    for i in range(8): a("v_mov_b32 v%d, 0" % (S[1] + 8 + i))
    def QK(sl, kb, sb): a("v_mfma_f32_32x32x16_bf16 %s, %s, %s, 0" % (vr(S[sb], 16), vr(K[kb], 4), vr(Q + 4 * sl, 4)))
    def PV(sl, vb, sb, j): a("v_smfmac_f32_32x32x32_bf16 %s, %s, %s, v3" % (vr(O + 16 * sl, 16), vr(V[vb] + 4 * j, 4), vr(S[sb] + 8 * j, 8)))
    a("s_mov_b32 s32, 8")
    stamp(a, 1)
    a("s_waitcnt vmcnt(3)")
    stamp(a, 2)
    QK(0, 0, 0)
    a("s_nop 15")
    a(".p2align 6")
    a.label("K2_LOOP")
    for b in range(2):
        for sl in range(4):
            sb = sl % 2
            def E(i): a("v_exp_f32 v%d, v%d" % (S[sb] + i, S[sb] + i))
            E(0); E(1)
            if sl == 0: PV(3, 1 - b, 1, 1); ldV(1 - b)
            else: PV(sl - 1, b, 1 - sb, 1)
            E(2); E(3); E(4)
            if sl == 3:
                a("s_waitcnt vmcnt(3)")
                QK(0, 1 - b, 0)
            else:
                QK(sl + 1, b, 1 - sb)
                if sl == 2: ldK(b)
            for i in range(5, 10): E(i)
            if sl == 0: a("s_waitcnt vmcnt(3)")
            PV(sl, b, sb, 0)
            if b == 1 and sl == 3:
                a("s_sub_u32 s32, s32, 1"); a("s_cmp_lg_u32 s32, 0")
            for i in range(10, 16): E(i)
    a("s_cbranch_scc1 K2_LOOP")
    a("s_nop 1")
    PV(3, 1, 1, 1)
    stamp(a, 3)
    for s in range(1, 4):
        a("s_add_u32 s28, s23, %d" % s)
        a("s_and_b32 s28, s28, 3")
        a("s_lshl_b32 s28, s28, 1")
        a("s_add_u32 s28, s28, s22")
        a("s_mul_i32 s28, s28, 3")
        a("s_add_u32 s28, s28, %d" % (s - 1))
        a("s_mul_i32 s28, s28, 2304")
        a("v_add_u32 v%d, s28, v1" % (S[0] + 2 * s))
        a("v_lshl_add_u32 v%d, v0, 2, s28" % (S[0] + 2 * s + 1))
    for s in range(1, 4):
        if s == 3: a("s_nop 7")
        a("ds_write_b128 v%d, %s" % (S[0] + 2 * s, vr(O + 16 * s, 4)))
        a("ds_write_b128 v%d, %s offset:1024" % (S[0] + 2 * s, vr(O + 16 * s + 4, 4)))
        a("ds_write_b32 v%d, v%d offset:2048" % (S[0] + 2 * s + 1, O + 16 * s + 8))
    a("s_mul_i32 s28, s3, %d" % (3 * 2304))
    a("v_add_u32 v4, s28, v1")
    a("v_lshl_add_u32 v5, v0, 2, s28")
    a("s_waitcnt lgkmcnt(0)")
    a("s_barrier")
    stamp(a, 4)
    for s in range(3):
        a("ds_read_b128 %s, v4 offset:%d" % (vr(O + 16 * (s + 1), 4), s * 2304))
        a("ds_read_b128 %s, v4 offset:%d" % (vr(O + 16 * (s + 1) + 4, 4), s * 2304 + 1024))
        a("ds_read_b32 v%d, v5 offset:%d" % (O + 16 * (s + 1) + 8, s * 2304 + 2048))
    for s in range(3):
        a("s_waitcnt lgkmcnt(%d)" % (6 - 3 * s))
        for i in range(9): a("v_add_f32 v%d, v%d, v%d" % (O + i, O + i, O + 16 * (s + 1) + i))
    a("s_mov_b32 s34, %s" % hx(f2u(2.0 ** -60)))
    a("v_mov_b32 v5, %s" % hx(f2u(2.0 ** 40)))
    a("v_mul_f32 v4, 0, v%d" % O)
    for i in range(1, 8): a("v_fmac_f32 v4, 0, v%d" % (O + i))
    a("v_med3_f32 v5, v%d, s34, v5" % (O + 8))
    a("v_add_f32 v5, v5, v4")
    a("v_cmp_eq_f32 vcc, v5, v%d" % (O + 8))
    a("s_nop 1")
    a("s_cmp_eq_u64 vcc, -1")
    a("s_cbranch_scc0 K2_SLOW")
    a.label("K2_NORM")
    a("v_rcp_f32 v4, v%d" % (O + 8))
    a("s_lshl_b32 s28, s29, 5")
    a("s_add_u32 s28, s28, s20")
    a("s_lshl_b32 s28, s28, 10")
    for i in range(8): a("v_mul_f32 v%d, v%d, v4" % (O + i, O + i))
    for i in range(4): a("v_cvt_pk_bf16_f32 v%d, v%d, v%d" % (S[0] + i, O + 2 * i, O + 2 * i + 1))
    a("buffer_store_dwordx4 %s, v1, s[16:19], s28 offen" % vr(S[0], 4))
    stamp_end(a, 1, 4, 5)
    a.label("K2_END")
    a("s_endpgm")
    a.label("K2_SLOW")
    CB = O + 16
    a("s_waitcnt vmcnt(0)")
    a("s_add_u32 s26, s24, %s" % hx(KF))
    a("v_mov_b32 v4, 0xff800000")
    a("s_mov_b32 s32, 64")
    a.label("K2_SL1")
    ldK(0)
    a("s_waitcnt vmcnt(0)")
    QK(0, 0, 0)
    a("s_nop 15")
    for i in range(8): a("v_max3_f32 v4, v4, v%d, v%d" % (S[0] + 2 * i, S[0] + 2 * i + 1))
    a("s_sub_u32 s32, s32, 1"); a("s_cmp_lg_u32 s32, 0")
    a("s_cbranch_scc1 K2_SL1")
    a("v_mov_b32 v5, v4")
    a("s_nop 1")
    a("v_permlane32_swap_b32 v4, v5")
    a("s_nop 1")
    a("v_max_f32 v4, v4, v5")
    for i in range(16): a("v_sub_f32 v%d, 0, v4" % (CB + i))
    for i in range(16): a("v_mov_b32 v%d, 0" % (O + i))
    a("s_add_u32 s26, s24, %s" % hx(KF))
    a("s_mov_b32 s27, s24")
    a("s_mov_b32 s32, 64")
    a.label("K2_SL2")
    ldK(0); ldV(0)
    a("s_waitcnt vmcnt(0)")
    a("v_mfma_f32_32x32x16_bf16 %s, %s, %s, %s" % (vr(S[0], 16), vr(K[0], 4), vr(Q, 4), vr(CB, 16)))
    a("s_nop 15")
    for i in range(16): a("v_exp_f32 v%d, v%d" % (S[0] + i, S[0] + i))
    a("s_nop 1")
    PV(0, 0, 0, 0); PV(0, 0, 0, 1)
    a("s_sub_u32 s32, s32, 1"); a("s_cmp_lg_u32 s32, 0")
    a("s_cbranch_scc1 K2_SL2")
    a("s_nop 15")
    a("s_branch K2_NORM")
    a("s_endpgm")
    return name, 144, "grid=(256,1,1) block=(512,1,1) lds=%d" % (8 * 3 * 2304)

RED = 16896
def kgemm(a, name, P, wptr_off, actoff, NK, D, final):
    header(a, name)
    nk = NK // 4
    ACC = 16; ACT = 80; WF = 8
    RING = 4 * RED
    a("s_cmp_ge_u32 s2, 256")
    a("s_cbranch_scc1 %s_END" % P)
    stamp_begin(a)
    a("s_load_dwordx2 s[4:5], s[0:1], 80")
    a("s_load_dwordx2 s[6:7], s[0:1], %d" % wptr_off)
    a("s_load_dwordx2 s[36:37], s[0:1], 64")
    a("v_lshrrev_b32 v1, 6, v0")
    a("v_and_b32 v0, 63, v0")
    a("s_and_b32 s20, s2, 7")
    a("v_readfirstlane_b32 s3, v1")
    a("s_lshl_b32 s20, s20, 2")
    a("s_bfe_u32 s21, s2, 0x20003")
    a("s_add_u32 s20, s20, s21")
    a("s_lshr_b32 s21, s2, 5")
    a("v_lshlrev_b32 v1, 4, v0")
    a("v_add_u32 v2, %d, v1" % (NK * 1024))
    a("v_bfe_u32 v7, v0, 4, 1")
    a("v_lshlrev_b32 v8, 2, v7")
    a("v_and_b32 v9, 7, v0")
    a("v_xor_b32 v8, v8, v9")
    a("v_lshlrev_b32 v8, 4, v8")
    a("v_lshrrev_b32 v9, 3, v0")
    a("v_lshl_add_u32 v3, v9, 10, v8")
    a("v_add_u32 v4, %d, v3" % (8192 - 1024))
    a("v_lshrrev_b32 v8, 5, v0")
    a("v_bfe_u32 v9, v0, 2, 2")
    a("v_lshl_add_u32 v8, v8, 2, v9")
    a("v_bfe_u32 v9, v0, 1, 1")
    a("v_lshl_add_u32 v9, v7, 1, v9")
    a("v_bfe_u32 v10, v0, 3, 1")
    a("v_lshl_add_u32 v9, v10, 2, v9")
    a("v_lshlrev_b32 v9, 4, v9")
    a("v_and_b32 v10, 1, v0")
    a("v_lshl_add_u32 v9, v10, 3, v9")
    a("v_lshl_add_u32 v9, v8, 7, v9")
    a("s_mul_i32 s22, s3, %d" % (D * 2048))
    a("s_add_u32 s22, s22, %d" % RING)
    a("v_add_u32 v5, s22, v9")
    a("v_xor_b32 v6, 64, v5")
    a("s_mul_i32 s24, s20, %d" % (2 * NK))
    a("s_mul_i32 s25, s3, %d" % nk)
    a("s_add_u32 s24, s24, s25")
    a("s_lshl_b32 s24, s24, 10")
    a("s_lshl_b32 s25, s25, 14")
    a("s_lshl_b32 s26, s21, 7")
    a("s_add_u32 s25, s25, s26")
    a("s_waitcnt lgkmcnt(0)")
    srd(a, 8, 4, actoff, 64 * NK * 1024)
    srd(a, 12, 6, 0, NK * 16 * 1024)
    def issue(sl):
        a("s_add_u32 m0, s22, %d" % (sl * 2048))
        a("buffer_load_dwordx4 %s, v1, s[8:11], s24 offen" % vr(ACT + 8 * sl, 4))
        a("buffer_load_dwordx4 %s, v2, s[8:11], s24 offen" % vr(ACT + 8 * sl + 4, 4))
        a("buffer_load_dwordx4 v3, s[12:15], s25 offen lds")
        a("buffer_load_dwordx4 v4, s[12:15], s25 offen offset:1024 lds")
        a("s_add_u32 s24, s24, 1024")
        a("s_add_u32 s25, s25, 16384")
    def step(sl, vm):
        a("s_waitcnt vmcnt(%d)" % vm)
        for ft in range(2):
            for q in range(2):
                a("ds_read_b64_tr_b16 %s, v%d offset:%d" % (vr(WF + 4 * ft + 2 * q, 2), 5 + ft, sl * 2048 + q * 1024))
        for ft in range(2):
            a("s_waitcnt lgkmcnt(%d)" % (2 - 2 * ft))
            for tt in range(2):
                d = vr(ACC + 16 * (2 * tt + ft), 16)
                a("v_mfma_f32_32x32x16_bf16 %s, %s, %s, %s" % (d, vr(WF + 4 * ft, 4), vr(ACT + 8 * sl + 4 * tt, 4), d))
    for sl in range(D): issue(sl)
    for r in range(ACC, ACC + 64): a("v_mov_b32 v%d, 0" % r)
    rounds = nk // D
    stamp(a, 1)
    if STAMP: a("s_waitcnt vmcnt(%d)" % (4 * (D - 1)))
    stamp(a, 2)
    if rounds > 1:
        a("s_mov_b32 s32, %d" % (rounds - 1))
        a.label("%s_LOOP" % P)
        for sl in range(D):
            step(sl, 4 * (D - 1)); issue(sl)
        a("s_sub_u32 s32, s32, 1"); a("s_cmp_lg_u32 s32, 0")
        a("s_cbranch_scc1 %s_LOOP" % P)
    for sl in range(D): step(sl, 4 * (D - 1 - sl))
    stamp(a, 3)
    a("v_lshrrev_b32 v8, 3, v0")
    a("v_and_b32 v9, 7, v0")
    a("s_lshl_b32 s26, s20, 6")
    a("s_lshl_b32 s27, s3, 4")
    a("s_add_u32 s26, s26, s27")
    a("v_lshlrev_b32 v10, 10, v8")
    a("v_lshl_add_u32 v10, v9, 4, v10")
    a("s_lshl_b32 s27, s26, 10")
    a("s_lshl_b32 s28, s21, 7")
    a("s_add_u32 s27, s27, s28")
    a("s_add_u32 s28, s27, 8192")
    if final:
        srd(a, 8, 4, BB, 2 * MB)
        srd(a, 12, 4, GG, 16384)
        srd(a, 16, 36, 0, 2 * MB)
        a("v_lshlrev_b32 v11, 3, v8")
        a("s_lshl_b32 s29, s26, 3")
        a("buffer_load_dwordx4 v[80:83], v10, s[8:11], s27 offen")
        a("buffer_load_dwordx4 v[84:87], v10, s[8:11], s28 offen")
        a("buffer_load_dwordx2 v[88:89], v11, s[12:15], s29 offen")
        a("buffer_load_dwordx2 v[90:91], v11, s[12:15], s29 offen offset:64")
    else:
        srd(a, 16, 4, BB, 2 * MB)
    a("s_mul_i32 s29, s3, %d" % RED)
    a("v_add_u32 v2, s29, v1")
    a("s_nop 7")
    for t in range(4):
        for g in range(4):
            a("ds_write_b128 v2, %s offset:%d" % (vr(ACC + 16 * t + 4 * g, 4), (t * 4 + g) * 1056))
    a("s_lshr_b32 s29, s3, 1")
    a("s_mul_i32 s29, s29, %d" % (8 * 1056))
    a("s_and_b32 s30, s3, 1")
    a("s_lshl_b32 s30, s30, 8")
    a("s_add_u32 s29, s29, s30")
    a("v_mul_u32_u24 v3, 1056, v9")
    a("v_lshl_add_u32 v3, v8, 4, v3")
    a("v_add_u32 v3, s29, v3")
    a("s_waitcnt lgkmcnt(0)")
    a("s_barrier")
    stamp(a, 4)
    for p in range(2):
        for sw in range(4):
            for h in range(2):
                a("ds_read_b128 %s, v3 offset:%d" % (vr(ACC + 32 * p + 8 * sw + 4 * h, 4), sw * RED + h * 512 + p * 128))
    a("s_mov_b32 s30, 0xffff0000")
    for p in range(2):
        b = ACC + 32 * p
        a("s_waitcnt lgkmcnt(%d)" % (8 - 8 * p))
        for i in range(8): a("v_add_f32 v%d, v%d, v%d" % (b + i, b + i, b + 8 + i))
        for i in range(8): a("v_add_f32 v%d, v%d, v%d" % (b + 16 + i, b + 16 + i, b + 24 + i))
        for i in range(8): a("v_add_f32 v%d, v%d, v%d" % (b + i, b + i, b + 16 + i))
        if final:
            if p == 0: a("s_waitcnt vmcnt(0)")
            for i in range(4):
                a("v_lshlrev_b32 v%d, 16, v%d" % (b + 8 + 2 * i, 80 + 4 * p + i))
                a("v_and_b32 v%d, s30, v%d" % (b + 9 + 2 * i, 80 + 4 * p + i))
            for i in range(8): a("v_mul_f32 v%d, v%d, v%d" % (b + i, b + i, 88 + 2 * p))
            for i in range(8): a("v_fmac_f32 v%d, v%d, v%d" % (b + i, b + 8 + i, 89 + 2 * p))
        for i in range(4): a("v_cvt_pk_bf16_f32 v%d, v%d, v%d" % (b + 16 + i, b + 2 * i, b + 2 * i + 1))
        a("buffer_store_dwordx4 %s, v10, s[16:19], s%d offen" % (vr(b + 16, 4), 27 + p))
    stamp_end(a, 3 if final else 2, 4, 5)
    a.label("%s_END" % P)
    a("s_endpgm")
    return name, ACT + 8 * D, "grid=(256,1,1) block=(256,1,1) lds=%d" % (RING + 4 * D * 2048)

def build(out):
    a = Asm()
    ks = []
    a('.amdgcn_target "amdgcn-amd-amdhsa--gfx950"')
    a(".text")
    ks.append(k1(a))
    ks.append(k2(a))
    ks.append(kgemm(a, "kd_kernel", "KD", 48, HF, 112, 4, False))
    ks.append(kgemm(a, "k3_kernel", "K3", 16, OF, 32, 8, True))
    body = a.text()
    errs = check_text(body)
    for e in errs: print("CHECK:", e)
    hdr = "; gated mix of softmax attention and SwiGLU FFN; generated by gen/gen1.py\n"
    for (n, nv, l) in ks: hdr += "; @launch kernel=%s %s\n" % (n, l)
    txt = hdr + body + '.section .rodata,"a"\n' + "".join(descriptor(n, nv) for (n, nv, l) in ks)
    open(out, "w").write(txt)
    print("wrote", out, len(txt), "bytes;", len(errs), "check errors")

if __name__ == "__main__":
    if "stamp" in sys.argv: STAMP = True
    build(sys.argv[1] if len(sys.argv) > 1 else "gated_mix__softmax_full_mha__swiglu_ffn__prompt.s")
```

```python
import sys
sys.path.insert(0, "gen")
import gen1, gen3
from gen1 import *
from asmlib import *
import ab3
from gen3 import ab_prologue, SC
from ab3 import phase_ab
from gen5 import build1

FL = 17 * MB
RING = 65536; SCR = 98304
KVROT = True
LATE = True
WARM = True
NOWAIT = False
SPLIT = 1
DMP = 12
ORDERED = True
EARLYO = False
NOB3 = False
SHT = 1
OSC = ""
LADDER = True
XP = []
HPUB = 1
NAME = "gated_mix__softmax_full_mha__swiglu_ffn__prompt_kernel"

def kf(a):
    header(a, NAME)
    Q = 128; K = [144, 148]; V = [152, 160]; S = [32, 48]; O = 64
    WF = 168; DA = 184; HB_ = 216
    vV, vIX, vP, vPO, vLD = 18, 19, 20, 21, 22
    vWA, vWB, vT0, vT1, vZ = 24, 25, 26, 27, 28
    vW0 = 23
    ab_prologue(a, "KF_END")
    def spin(lab, expect, vm, leader_only=False, sr_="s[84:87]", so="0", note=""):
        if vm: vm.wait("poll")
        a("v_cmp_le_u32 vcc, %d, v%d%s" % (expect, vP, note))
        a("s_mov_b32 s38, 0x8000")
        if leader_only:
            a("s_cmp_lg_u32 s3, 0")
            a("s_cbranch_scc1 %s_OK" % lab)
        a("s_cmp_eq_u64 vcc, -1")
        a("s_cbranch_scc1 %s_OK" % lab)
        a.label(lab)
        a("s_sleep 4")
        a("buffer_load_dword v%d, v%d, %s, %s offen sc1%s" % (vP, vPO, sr_, so, note))
        a("s_sub_u32 s38, s38, 1")
        a("s_waitcnt vmcnt(0)")
        a("v_cmp_le_u32 vcc, %d, v%d" % (expect, vP))
        a("s_cselect_b32 s39, 1, 0")
        a("s_cmp_eq_u64 vcc, -1")
        a("s_cselect_b32 s39, 1, s39")
        a("s_cmp_eq_u32 s39, 0")
        a("s_cbranch_scc1 %s" % lab)
        a.label(lab + "_OK")
    def poll(vm, sr_="s[84:87]"): vm.issue("buffer_load_dword v%d, v%d, %s, 0 offen sc1" % (vP, vPO, sr_), "poll")
    def publish(vm, soff):
        a("v_mov_b32 v%d, 1" % vP)
        a("s_mov_b64 exec, 1")
        vm.issue("buffer_atomic_add v%d, v%d, s[84:87], %s offen sc1" % (vP, vLD, soff), "atom")
        a("s_mov_b64 exec, -1")
    def ldK(vm, b):
        vm.issue("buffer_load_dwordx4 %s, v1, s[8:11], s26 offen%s" % (vr(K[b], 4), SC), ("K", b))
    def ldV(vm, b, wrap=True):
        a("s_mov_b64 exec, s[30:31]")
        vm.issue("buffer_load_dwordx4 %s, v%d, s[4:7], s26 offen%s" % (vr(V[b], 4), vV, SC), ("V", b))
        vm.issue("buffer_load_dwordx4 %s, v%d, s[4:7], s26 offen offset:512%s" % (vr(V[b] + 4, 4), vV, SC), ("V", b))
        a("s_mov_b64 exec, -1")
        a("s_add_u32 s26, s26, 1024")
        if wrap: a("s_and_b32 s26, s26, 0x3fff")
    def cap(fn):
        save = a.lines; a.lines = []
        fn(); L = a.lines; a.lines = save
        return [("s", l.strip(), None) for l in L]
    def early(vm):
        a("s_and_b32 s89, s2, 7")
        a("s_lshl_b32 s89, s89, 2")
        a("s_bfe_u32 s38, s2, 0x20003")
        a("s_add_u32 s89, s89, s38")
        a("s_lshr_b32 s88, s2, 5")
        a("s_lshl_b32 s39, s88, 3")
        a("s_add_u32 s38, s3, s39")
        a("s_lshl_b32 s38, s38, 5")
        a("s_add_u32 s38, s38, s89")
        a("s_lshl_b32 s61, s38, 10")
        srd(a, 84, 14, OF, 2 * MB)
        for i in range(4): a("v_mov_b32 v%d, -1" % (24 + i))
        vm.issue("buffer_store_dwordx4 v[24:27], v1, s[84:87], s61 offen%s" % SC, "sent")
        srd(a, 80, 14, FL, 65536)
        a("s_lshl_b32 s39, s18, 4")
        a("s_add_u32 s39, s39, s19")
        a("s_lshl_b32 s39, s39, 7")
        a("s_cmp_eq_u32 s3, 0")
        a("s_cselect_b32 s38, 0, 0x10000")
        a("v_mov_b32 v28, 0")
        a("v_mov_b32 v%d, s38" % vLD)
        a("s_mov_b64 exec, 1")
        vm.issue("buffer_store_dword v28, v%d, s[80:83], s39 offen%s" % (vLD, SC), "sent")
        a("s_add_u32 s39, s39, 32768")
        vm.issue("buffer_store_dword v28, v%d, s[80:83], s39 offen%s" % (vLD, SC), "sent")
        a("s_mov_b64 exec, -1")
        srd(a, 84, 100, 0, 256)
    def setup1():
        a("v_and_b32 v%d, 15, v0" % vPO)
        a("v_lshlrev_b32 v%d, 4, v%d" % (vPO, vPO))
    def setup2():
        a("v_and_b32 v%d, 15, v0" % vV)
        a("v_lshlrev_b32 v%d, 4, v%d" % (vV, vV))
        a("v_lshrrev_b32 v%d, 5, v0" % vIX)
        a("v_lshl_add_u32 v%d, v%d, 8, v%d" % (vV, vIX, vV))
        a("s_lshl_b32 s24, s89, 16")
        a("s_lshl_b32 s25, s88, 3")
        a("s_lshl_b32 s26, s22, 2")
        a("s_add_u32 s25, s25, s26")
        a("s_lshl_b32 s27, s23, 14")
        a("s_add_u32 s27, s27, s24")
        a("s_add_u32 s26, s27, %s" % hx(KF))
        srd(a, 8, 14, "s26", 16384)
        a("s_add_u32 s26, s27, %s" % hx(VF))
        srd(a, 4, 14, "s26", 16384)
        a("s_lshl_b32 s26, s88, 11")
        if not KVROT: a("s_mov_b32 s26, 0")
        srd(a, 52, 14, "s24", 65536)
    def setup2b():
        a("v_and_b32 v%d, 31, v0" % vIX)
        a("v_cmp_eq_u32 s[96:97], 16, v%d" % vIX)
        a("v_mov_b32 v%d, 0x3f803f80" % vIX)
        a("s_mov_b32 s30, 0x0000ffff"); a("s_mov_b32 s31, 0x0000ffff")
        a("v_cndmask_b32 v%d, 0, v%d, s[96:97]" % (V[0], vIX))
        for i in range(1, 16): a("v_mov_b32 v%d, v%d" % (V[0] + i, V[0]))
        a("v_mov_b32 v%d, 0xdddddddd" % vIX)
    def setup3():
        a("s_lshr_b32 s22, s3, 2")
        a("s_and_b32 s23, s3, 3")
        a("v_bfe_u32 v2, v0, 4, 1")
        a("v_lshlrev_b32 v5, 2, v2")
        a("v_and_b32 v6, 7, v0")
        a("v_xor_b32 v5, v5, v6")
        a("v_lshlrev_b32 v5, 4, v5")
        a("v_lshrrev_b32 v6, 3, v0")
        a("v_lshl_add_u32 v%d, v6, 10, v5" % vW0)
        a("s_lshl_b32 s38, s22, 13")
        a("v_add_u32 v%d, s38, v%d" % (vWA, vW0))
        a("v_add_u32 v%d, %d, v%d" % (vWB, 16384 - 2048, vWA))
        a("v_lshrrev_b32 v5, 5, v0")
        a("v_bfe_u32 v6, v0, 2, 2")
        a("v_lshl_add_u32 v5, v5, 2, v6")
        a("v_bfe_u32 v6, v0, 1, 1")
        a("v_lshl_add_u32 v6, v2, 1, v6")
        a("v_bfe_u32 v3, v0, 3, 1")
        a("v_lshl_add_u32 v6, v3, 2, v6")
        a("v_lshlrev_b32 v6, 4, v6")
        a("v_and_b32 v3, 1, v0")
        a("v_lshl_add_u32 v6, v3, 3, v6")
        a("v_lshl_add_u32 v6, v5, 7, v6")
        a("s_lshl_b32 s16, s23, 12")
        a("s_add_u32 s16, s16, %d" % RING)
        a("v_add_u32 v%d, s16, v6" % vT0)
        a("v_xor_b32 v%d, 64, v%d" % (vT1, vT0))
        a("s_lshl_b32 s38, s22, 10")
        a("s_add_u32 s17, s16, s38")
        a("s_and_b32 s20, s89, 3")
        a("s_add_u32 s21, s20, s88")
        a("s_cmp_ge_u32 s21, 6")
        a("s_cselect_b32 s90, 6, 0")
        a("s_sub_u32 s21, s21, s90")
        a("s_lshl_b32 s21, s21, 2")
        a("s_mov_b32 s90, 0x32dc7632")
        a("s_mov_b32 s91, 0xdc76")
        a("s_lshr_b64 s[90:91], s[90:91], s21")
        a("s_and_b32 s36, s90, 0xffffff")
        a("s_lshl_b32 s20, s20, 1")
        a("s_add_u32 s21, s20, s88")
        a("s_and_b32 s21, s21, 7")
        a("s_lshl_b32 s21, s21, 2")
        a("s_mov_b32 s90, 0xba985410")
        a("s_mov_b32 s91, s90")
        a("s_lshr_b64 s[90:91], s[90:91], s21")
        a("s_mov_b32 s91, s36")
    chunks = {}
    def ldq(vm, s):
        a("s_add_u32 s28, s23, %d" % (s + 1))
        a("s_and_b32 s28, s28, 3")
        a("s_add_u32 s28, s28, s25")
        a("s_lshl_b32 s28, s28, 10")
        vm.issue("buffer_load_dwordx4 %s, v1, s[52:55], s28 offen%s" % (vr(Q + 4 * s, 4), SC), "Q")
    def hook(kind, vm, where):
        if where == "init": chunks.clear()
        elif where == "early": early(vm)
        elif where == "pub":
            a("s_lshl_b32 s94, s19, 4")
            publish(vm, "s94")
        elif where == "poll":
            assert not chunks["L"] and not chunks["V"], (len(chunks["L"]), len(chunks["V"]))
            if NOWAIT: a("v_mov_b32 v%d, 0" % vP)
            poll(vm)
        elif where == "ld":
            spin("KF_SQ_" + kind, 16, None if NOWAIT else vm, note=" ; kv-ok")
            gen1.stamp(a, "sq1")
            ldq(vm, 0); ldK(vm, 0); ldq(vm, 1)
            if SPLIT == 0: ldq(vm, 2); ldq(vm, 3); ldV(vm, 0); ldK(vm, 1); ldV(vm, 1)
        elif where == "mid_h":
            if SPLIT: ldK(vm, 1); ldV(vm, 1)
        elif where == "warm":
            if not WARM: return
            srd(a, 28, 76, 0, 1792 * 1024)
            a("s_lshl_b32 s94, s2, 3")
            a("s_add_u32 s94, s94, s3")
            a("s_mul_i32 s96, s94, 896")
            a("v_lshlrev_b32 v29, 7, v0")
            a("s_mov_b64 exec, 0x7f")
            vm.issue("buffer_load_dword v17, v29, s[28:31], s96 offen ; dummy", "pf")
            srd(a, 28, 78, 0, 512 * 1024)
            a("s_lshl_b32 s96, s94, 8")
            a("s_mov_b64 exec, 3")
            vm.issue("buffer_load_dword v17, v29, s[28:31], s96 offen ; dummy", "pf")
            a("s_mov_b64 exec, -1")
        elif isinstance(where, tuple):
            g, n = where
            if g < 44: return []
            if "L" not in chunks:
                if kind == "P": chunks["L"] = cap(setup3) + cap(setup2); chunks["V"] = cap(setup2b) + cap(setup1)
                else: chunks["L"] = cap(setup3); chunks["V"] = cap(setup2) + cap(setup2b) + cap(setup1)
                if "dup" in XP: chunks["L"] = chunks["L"] * 2 + (cap(setup2) if kind != "P" and False else [])
            if "dup" in XP and g < 64: n = 2 * n
            key = "L" if chunks["L"] else "V"
            if key == "V" and g < 74: return []
            while n < len(chunks[key]) and chunks[key][n][1].startswith(("s_cselect", "s_addc")): n += 1
            L = chunks[key][:n]; chunks[key] = chunks[key][n:]
            return L
        elif where == "pre_h":
            a("s_setprio 3")
            if SPLIT: ldq(vm, 2); ldq(vm, 3); ldV(vm, 0)
    ENTRY = ["Q", ("K", 0), "Q", "Q", "Q", ("V", 0), ("V", 0), ("K", 1), ("V", 1), ("V", 1), "h", "h"]
    def tail(kind, vm):
        assert vm.ops[-12:] == ENTRY, vm.ops
        if kind != "P": a("s_branch KF_C")
    a("s_load_dwordx2 s[100:101], s[0:1], 72")
    a("s_load_dwordx2 s[76:77], s[0:1], 48")
    a("s_load_dwordx2 s[78:79], s[0:1], 16")
    phase_ab(a, tail, hook)
    a.label("KF_C")
    gen1.stamp(a, 5)
    vm = VM(a); vm.ops = list(ENTRY)
    lg = VM(a, "lgkmcnt", 15)
    a("s_load_dwordx2 s[12:13], s[0:1], 64")
    def QK(sl, kb, sb): a("v_mfma_f32_32x32x16_bf16 %s, %s, %s, 0" % (vr(S[sb], 16), vr(K[kb], 4), vr(Q + 4 * sl, 4)))
    def PV(sl, vb, sb, j): a("v_smfmac_f32_32x32x32_bf16 %s, %s, %s, v%d" % (vr(O + 16 * sl, 16), vr(V[vb] + 4 * j, 4), vr(S[sb] + 8 * j, 8), vIX))
    def ZERO(r): a("v_mfma_f32_32x32x16_bf16 %s, %s, %s, 0" % (vr(r, 16), vr(vZ, 4), vr(vZ, 4)))
    for i in range(4): a("v_mov_b32 v%d, 0" % (vZ + i))
    vm.wait(("K", 0))
    QK(0, 0, 0)
    for i in range(4): ZERO(O + 16 * i)
    a("s_lshr_b32 s38, s89, 1")
    a("s_lshl_b32 s38, s38, 11")
    a("v_and_b32 v%d, 15, v0" % vPO)
    a("v_lshl_add_u32 v%d, v%d, 7, s38" % (vPO, vPO))
    a("s_mov_b32 s96, 32768")
    a("s_lshl_b32 s44, s89, 1")
    a("s_add_u32 s44, s44, s22")
    a("s_mul_i32 s38, s44, 112")
    a("s_mul_i32 s39, s23, 28")
    a("s_add_u32 s38, s38, s39")
    a("s_lshl_b32 s38, s38, 10")
    a("s_add_u32 s38, s38, %s" % hx(HF))
    srd(a, 32, 14, "s38", 28 * 1024)
    a("s_lshl_b32 s38, s39, 14")
    a("s_lshl_b32 s45, s88, 7")
    a("s_add_u32 s38, s38, s45")
    a("s_sub_u32 s39, %d, s38" % (1792 * 1024))
    a("s_waitcnt lgkmcnt(0)")
    srd(a, 48, 76, "s38", "s39")
    srd(a, 40, 78, 0, 512 * 1024)
    FLG = 161792
    vF, vFA, vFB, vFR = 232, 233, 234, 235
    vRW = 236
    def ldH(b, k, so="s20"):
        vm.issue("buffer_load_dwordx4 %s, v1, s[32:35], %s offen offset:%d%s" % (vr(HB_ + 8 * b + 4 * k, 4), so, 1024 * k, SC), ("H", b, k))
    def ldW(b, k):
        if k == 0:
            a("s_and_b32 s20, s90, 15")
            a("s_lshr_b64 s[90:91], s[90:91], 4")
            a("s_add_u32 m0, s17, %d" % (b * 16384))
            a("s_lshl_b32 s21, s20, 15")
            a("s_lshl_b32 s20, s20, 11")
        vm.issue("buffer_load_dwordx4 v%d, s[48:51], s21 offen offset:%d lds" % (vWA + k, 2048 * k), ("W", b))
    def rdW(b, k):
        for ft in range(2):
            for q in range(2):
                lg.issue("ds_read_b64_tr_b16 %s, v%d offset:%d" % (vr(WF + 8 * k + 4 * ft + 2 * q, 2), vT0 + ft, b * 16384 + k * 2048 + q * 1024), ("w", k, ft))
    def DM(b, n):
        k, ft = n // 2, n % 2
        lg.wait(("w", k, ft))
        vm.wait(("H", b, k))
        d = vr(DA + 16 * ft, 16)
        a("v_mfma_f32_32x32x16_bf16 %s, %s, %s, %s" % (d, vr(WF + 8 * k + 4 * ft, 4), vr(HB_ + 8 * b + 4 * k, 4), d))
    def signal(b):
        a("v_add_u32 v%d, 1, v%d" % (vF, vF))
        vm.wait(("W", b))
        lg.issue("ds_write_b32 v%d, v%d" % (vFA, vF), "fw")
    def peek(): lg.issue("ds_read_b32 v%d, v%d" % (vFR, vFB), "fr")
    def precheck():
        lg.wait("fr")
        a("v_cmp_lt_u32 vcc, v%d, v%d" % (vFR, vF))
    def check(lab):
        a("s_cbranch_vccnz %s" % lab)
        a.label(lab + "_OK")
        def slow():
            a.label(lab)
            a("s_mov_b32 s38, 0x40000")
            a("s_setprio 0")
            a.label(lab + "_L")
            a("s_sleep 1")
            a("ds_read_b32 v%d, v%d" % (vFR, vFB))
            a("s_sub_u32 s38, s38, 1")
            a("s_waitcnt lgkmcnt(0)")
            a("v_cmp_lt_u32 vcc, v%d, v%d" % (vFR, vF))
            a("s_cbranch_scc1 %s_GO" % lab)
            a("s_cbranch_vccnz %s_L" % lab)
            a.label(lab + "_GO")
            a("s_setprio 3")
            a("s_branch %s_OK" % lab)
        outl[lab] = slow
    outl = {}
    def give(s):
        lg.issue("ds_write_b128 v%d, %s" % (vRW + 2 * s, vr(O + 16 * s, 4)), "gv")
        lg.issue("ds_write_b128 v%d, %s offset:1024" % (vRW + 2 * s, vr(O + 16 * s + 4, 4)), "gv")
        lg.issue("ds_write_b32 v%d, v%d offset:2048" % (vRW + 2 * s + 1, O + 16 * s + 8), "gv")
    def keytile(b, first=False, down=False, loop=None, top=None, extra=None, pre=False, lab=None, last=False, nobar=False):
        if top:
            top("pre")
            if not nobar: a("s_barrier")
            top("post")
        for sl in range(4):
            sb = sl % 2
            def E(i): a("v_exp_f32 v%d, v%d" % (S[sb] + i, S[sb] + i))
            if LADDER == 3:
                a("s_setprio %d" % (1 - sl % 2 if sl < 2 else 0)) if sl in (0, 1) else None
            elif LADDER == 4:
                if sl % 2 == 0: a("s_setprio %d" % (1 - sl // 2))
            elif LADDER == 2:
                if sl % 2 == 0: a("s_setprio %d" % (3 - 2 * b - sl // 2))
            elif LADDER: a("s_setprio %d" % (3 - sl))
            elif first and sl == 0: a("s_setprio 0")
            if down and sl == 0:
                if "nosync" not in XP: check(lab)
                if "nord" not in XP: rdW(b, 0)
            E(0); E(1)
            if sl == 0:
                if not first:
                    PV(3, 1 - b, 1, 1)
                    if not (last and b == 1): ldV(vm, 1 - b)
            else: PV(sl - 1, b, 1 - sb, 1)
            if down and sl == 1 and "nord" not in XP: rdW(b, 1)
            E(2); E(3); E(4)
            if sl == 3:
                if not (last and b == 1):
                    vm.wait(("K", 1 - b))
                    QK(0, 1 - b, 0)
            else:
                if first: vm.wait("Q")
                QK(sl + 1, b, 1 - sb)
                if sl == 2 and not last: ldK(vm, b)
            if (down or pre) and sl < 2 and not (down and "nold" in XP): ldW(b, sl)
            fin_ = last and b == 1
            if (down or pre == 2) and sl == 2 and not fin_: signal(1 - b)
            if (down or pre == 2) and sl == 3 and not fin_: peek()
            if fin_ and sl == 2:
                lg.wait(("w", 1, 1))
                a("s_barrier")
                give(0)
            for i in range(5, 10): E(i)
            if sl == 0: vm.wait(("V", b))
            if last and b == 1 and sl == 3: give(1)
            PV(sl, b, sb, 0)
            for i in range(10, DMP): E(i)
            if extra: extra(sl)
            if down:
                if "nodm" not in XP: DM(b, sl)
                if sl % 2 == 1 and "nold" not in XP: ldH(b, sl // 2)
                if sl == 3:
                    if b == 1:
                        a("v_xor_b32 v%d, 0x8000, v%d" % (vT0, vT0))
                        a("v_xor_b32 v%d, 0x8000, v%d" % (vT1, vT1))
                        a("s_xor_b32 s17, s17, 0x8000")
            if loop and sl == 3:
                a("s_sub_u32 s46, s46, 1"); a("s_cmp_lg_u32 s46, 0")
            for i in range(DMP, 14): E(i)
            if (down or pre == 2) and sl == 3 and not fin_: precheck()
            if fin_ and sl == 2: pass
            E(14); E(15)
            if fin_ and sl == 2: give(1) if False else None
            if fin_ and sl == 3: give(2)
    def pubH(tag, off):
        def f(when):
            if when == "pre":
                vm.wait(tag); lg.wait("fw")
            else:
                a("s_lshl_b32 s38, s18, 4")
                a("s_add_u32 s38, s38, s19")
                a("s_lshl_b32 s38, s38, 7")
                if off: a("s_add_u32 s38, s38, %d" % off)
                a("v_mov_b32 v4, 1")
                a("s_mov_b64 exec, 1")
                vm.issue("buffer_store_dword v4, v%d, s[80:83], s38 offen sc1" % vLD, "flag")
                a("s_mov_b64 exec, -1")
        return f
    def wo_stage(i):
        a("s_add_u32 m0, s60, %d" % (i * 2048))
        a("s_add_u32 s38, s47, %d" % (i * 16384))
        vm.issue("buffer_load_dwordx4 v%d, s[40:43], s38 offen lds" % vW0, "wo")
        a("s_add_u32 s38, s38, %d" % (8192 - 1024))
        vm.issue("buffer_load_dwordx4 v%d, s[40:43], s38 offen offset:1024 lds" % vW0, "wo")
    a("s_lshl_b32 s60, s3, 13")
    a("s_lshl_b32 s47, s3, 16")
    a("s_add_u32 s47, s47, s45")
    def ex0(sl):
        if sl < 2: ZERO(DA + 16 * sl)
        if sl == 2:
            a("s_lshl_b32 s38, s3, 8")
            a("s_add_u32 s38, s38, %d" % FLG)
            a("v_lshl_add_u32 v%d, v0, 2, s38" % vFA)
            a("v_xor_b32 v%d, 1024, v%d" % (vFB, vFA))
            a("v_mov_b32 v%d, 0" % vF)
            lg.issue("ds_write_b32 v%d, v%d" % (vFA, vF), "fw")
            if NOB3:
                a("v_mov_b32 v247, 153600")
                lg.issue("ds_write_b32 v247, v%d" % vF, "fw")
    keytile(0, first=True, extra=ex0)
    gen1.stamp(a, "k0")
    keytile(1, top=pubH("Q", 0), extra=wo_stage)
    gen1.stamp(a, "k1")
    def ex2(sl):
        if sl == 2: poll(vm, "s[80:83]")
        if sl < 3:
            s = sl + 1
            a("s_add_u32 s28, s23, %d" % s)
            a("s_and_b32 s28, s28, 3")
            a("s_lshl_b32 s38, s22, 2")
            a("s_add_u32 s28, s28, s38")
            a("s_mul_i32 s28, s28, 3")
            a("s_add_u32 s28, s28, %d" % (s - 1))
            a("s_mul_i32 s28, s28, 2304")
            a("s_add_u32 s28, s28, %d" % SCR)
            a("v_add_u32 v%d, s28, v1" % (vRW + 2 * sl))
            a("v_lshl_add_u32 v%d, v0, 2, s28" % (vRW + 2 * sl + 1))
        else:
            a("s_mul_i32 s28, s3, %d" % (3 * 2304))
            a("s_add_u32 s28, s28, %d" % SCR)
            a("v_add_u32 v%d, s28, v1" % (vRW + 6))
            a("v_lshl_add_u32 v%d, v0, 2, s28" % (vRW + 7))
    keytile(0, pre=1, extra=ex2)
    a("s_mov_b32 s36, s20")
    gen1.stamp(a, "k2")
    def top3(when):
        if not NOB3 and when != "now": pubH("h", 32768)(when)
        if when == "post" and SHT < 0 or when == "now":
            spin("KF_SH", 1, vm, False, "s[80:83]")
            gen1.stamp(a, "sh1")
            ldH(0, 0, "s36"); ldH(0, 1, "s36")
    def ex3(sl):
        if sl == SHT: top3("now")
        if NOB3 and sl == 0:
            vm.wait("h")
            a("v_mov_b32 v5, 1")
            a("s_mov_b64 exec, 1")
            lg.issue("ds_add_rtn_u32 v6, v247, v5", "cnt")
            a("s_mov_b64 exec, -1")
        if NOB3 and sl == 1:
            a("s_lshl_b32 s38, s18, 4")
            a("s_add_u32 s38, s38, s19")
            a("s_lshl_b32 s38, s38, 7")
            a("s_add_u32 s38, s38, 32768")
            lg.wait("cnt")
            a("v_xor_b32 v6, 7, v6")
            a("v_lshlrev_b32 v6, 16, v6")
            a("s_mov_b64 exec, 1")
            vm.issue("buffer_store_dword v5, v6, s[80:83], s38 offen sc1", "flag")
            a("s_mov_b64 exec, -1")
        if sl % 2 == 1: ldH(1, sl // 2)
        if sl == 0: srd(a, 52, 14, OF, 2 * MB)
        if sl == 2:
            srd(a, 56, 14, GG, 16384)
            a("s_lshl_b32 s39, s44, 8")
            a("v_and_b32 v4, 31, v0")
            a("v_lshlrev_b32 v4, 3, v4")
            vm.issue("buffer_load_dword v245, v4, s[56:59], s39 offen offset:4%s" % SC, "g")
            a("s_lshl_b32 s39, s88, 3")
            a("s_add_u32 s39, s39, s3")
            a("s_lshl_b32 s39, s39, 8")
            vm.issue("buffer_load_dword v246, v4, s[56:59], s39 offen%s" % SC, "g")
        if sl == 3:
            a("s_xor_b32 s17, s17, 0x8000")
    keytile(1, top=top3, pre=2, extra=ex3, nobar=NOB3)
    gen1.stamp(a, "k3")
    a("s_mov_b32 s46, 5")
    a("s_mov_b32 s37, 3")
    def ev():
        a.label("KF_EV")
        a("s_sub_u32 s37, s37, 1")
        a("s_cmp_eq_u32 s37, 2")
        a("s_cbranch_scc0 KF_EV2")
        a("buffer_load_dword v%d, v%d, s[80:83], s96 offen sc1" % (vP, vPO))
        a("s_branch KF_EVR")
        a.label("KF_EV2")
        a("s_mov_b32 s37, 0")
        a("s_waitcnt vmcnt(14)")
        spin("KF_S2", 1, None, False, "s[80:83]", "s96", " ; kv-ok")
        a("v_cmp_lt_u32 vcc, v%d, v%d" % (vFR, vF))
        a("s_nop 4")
        a("s_branch KF_EVR")
    outl["ev"] = ev
    def it():
        a("s_cmp_eq_u32 s46, s37")
        a("s_cbranch_scc1 KF_EV")
        a.label("KF_EVR")
        keytile(0, down=True, lab="KF_P0"); keytile(1, down=True, loop=True, lab="KF_P1")
        a("s_cbranch_scc1 KF_LB")
    body = steady_loop(a, [vm, lg], it)
    a(".p2align 6")
    a.label("KF_LB")
    a.lines += body
    keytile(0, down=True, lab="KF_P2", last=True); keytile(1, down=True, lab="KF_P3", last=True)
    PV(3, 1, 1, 1)
    if LADDER: a("s_setprio 3")
    gen1.stamp(a, 7)
    OW = O + 48
    vm.wait(("W", 0), ("W", 1))
    a("s_waitcnt lgkmcnt(0)"); lg.ops = []
    a("s_barrier")
    gen1.stamp(a, "rb")
    for s in range(3):
        a("ds_read_b128 %s, v%d offset:%d" % (vr(O + 16 * s, 4), vRW + 6, s * 2304))
        a("ds_read_b128 %s, v%d offset:%d" % (vr(O + 16 * s + 4, 4), vRW + 6, s * 2304 + 1024))
        a("ds_read_b32 v%d, v%d offset:%d" % (O + 16 * s + 8, vRW + 7, s * 2304 + 2048))
    a("s_mov_b32 s38, %s" % hx(f2u(2.0 ** -60)))
    a("v_mov_b32 v5, %s" % hx(f2u(2.0 ** 40)))
    for s in range(3):
        a("s_waitcnt lgkmcnt(%d)" % (6 - 3 * s))
        for i in (8, 0, 1, 2, 3, 4, 5, 6, 7): a("v_add_f32 v%d, v%d, v%d" % (OW + i, OW + i, O + 16 * s + i))
    a.label("KF_CHK")
    a("v_mov_b32 v4, v%d" % (OW + 8))
    a("v_pk_add_f32 v[6:7], %s, %s" % (vr(OW, 2), vr(OW + 2, 2)))
    a("v_pk_add_f32 v[8:9], %s, %s" % (vr(OW + 4, 2), vr(OW + 6, 2)))
    a("v_permlane32_swap_b32 v%d, v4" % (OW + 8))
    a("v_pk_add_f32 v[6:7], v[6:7], v[8:9]")
    a("s_cmp_eq_u32 s46, 1")
    a("v_rcp_f32 v4, v%d" % (OW + 8))
    a("s_cbranch_scc1 KF_NORM")
    a("v_add_f32 v6, v6, v7")
    a("v_med3_f32 v5, v%d, s38, v5" % (OW + 8))
    a("v_fmac_f32 v5, 0, v6")
    a("v_cmp_eq_f32 vcc, v5, v%d" % (OW + 8))
    a("s_nop 1")
    a("s_cmp_eq_u64 vcc, -1")
    a("s_cbranch_scc0 KF_SLOW")
    a.label("KF_NORM")
    a("v_mul_f32 v4, v4, v246")
    for i in range(8): a("v_mul_f32 v%d, v%d, v4" % (OW + i, OW + i))
    for i in range(4): a("v_cvt_pk_bf16_f32 v%d, v%d, v%d" % (S[0] + i, OW + 2 * i, OW + 2 * i + 1))
    for i in range(4): a("v_min_u32 v%d, -2, v%d" % (S[0] + i, S[0] + i))
    vm.issue("buffer_store_dwordx4 %s, v1, s[52:55], s61 offen%s" % (vr(S[0], 4), SC), "o")
    gen1.stamp(a, "ost")
    WO = 64; OFR = 128; vG = 244; YA = 32
    a("s_lshl_b32 s60, s44, 15")
    a("s_lshl_b32 s39, s23, 13")
    a("s_add_u32 s60, s60, s39")
    a("s_add_u32 s47, s60, 4096")
    def ldO(i): return "buffer_load_dwordx4 %s, v1, s[52:55], %s offen offset:%d%s" % (vr(OFR + 4 * i, 4), "s60" if i < 4 else "s47", (i % 4) * 1024, SC)
    rdW(0, 0); rdW(0, 1)
    a("v_and_b32 v4, 31, v0")
    a("v_and_b32 v7, 0xfff, v%d" % vT0)
    a("s_lshl_b32 s39, s23, 14")
    a("v_add_u32 v7, s39, v7")
    a("v_xor_b32 v8, 64, v7")
    def rdWo(i):
        for ft in range(2):
            for q in range(2):
                lg.issue("ds_read_b64_tr_b16 %s, v%d offset:%d" % (vr(WO + 8 * i + 4 * ft + 2 * q, 2), 7 + ft, i * 2048 + q * 1024), ("wof", i))
    def lo(i): vm.issue(ldO(i), ("of", i))
    if EARLYO:
        vm.wait(("H", 1, 1))
        lo(0); DM(0, 0); lo(1); DM(0, 1); rdW(1, 0)
        lo(2); DM(0, 2); lo(3); DM(0, 3); rdW(1, 1)
        rdWo(0)
        lo(4); DM(1, 0); lo(5); DM(1, 1)
        rdWo(1); rdWo(2)
        lo(6); DM(1, 2); lo(7); DM(1, 3)
    else:
        DM(0, 0); DM(0, 1); rdW(1, 0)
        DM(0, 2); DM(0, 3); rdW(1, 1)
        rdWo(0)
        DM(1, 0); DM(1, 1)
        rdWo(1); rdWo(2)
        DM(1, 2); DM(1, 3)
        for i in range(8): lo(i)
    for i in range(3, 8):
        lg.wait(("wof", i - 3)); rdWo(i)
    a("v_lshlrev_b32 v6, 10, v4")
    a("v_lshrrev_b32 v9, 5, v0")
    a("v_lshl_add_u32 v6, v9, 4, v6")
    a("s_lshl_b32 s61, s44, 15")
    a("s_add_u32 s61, s61, s45")
    a("s_lshl_b32 s39, s23, 5")
    a("s_add_u32 s61, s61, s39")
    srd(a, 4, 12, 0, 2 * MB)
    a("s_mul_i32 s38, s22, %d" % (4 * 6912))
    a("s_add_u32 s38, s38, %d" % SCR)
    a("v_add_u32 v10, s38, v1")
    vm.wait("g")
    for i in range(32): a("v_mul_f32 v%d, v%d, v%d" % (DA + i, DA + i, vG + 1))
    lg.wait(("wof", 7))
    gen1.stamp(a, "so0")
    a("s_mov_b32 s38, 0x8000")
    def val(i):
        r = OFR + 4 * i
        a("v_max3_u32 v11, v%d, v%d, v%d" % (r, r + 1, r + 2))
        a("v_max_u32 v11, v11, v%d" % (r + 3))
        a("v_cmp_eq_u32 vcc, -1, v11")
    def mm(i):
        for ft in range(2):
            d = vr(DA + 16 * ft, 16)
            a("v_mfma_f32_32x32x16_bf16 %s, %s, %s, %s" % (d, vr(WO + 8 * i + 4 * ft, 4), vr(OFR + 4 * i, 4), d))
    if ORDERED:
        for i in range(8):
            vm.wait(("of", i))
            lab = "KF_O%d" % i
            a.label(lab)
            val(i)
            a("s_nop 0")
            a("s_cbranch_vccnz %s_RE" % lab)
            a.label(lab + "_OK")
            def slow(i=i, lab=lab):
                a.label(lab + "_RE")
                a("s_sub_u32 s38, s38, 1")
                a("s_cbranch_scc1 %s_GU" % lab)
                a("s_sleep 1")
                for j in range(i, 8): a(ldO(j))
                a("s_waitcnt vmcnt(0)")
                a("s_branch %s" % lab)
                a.label(lab + "_GU")
                a("s_mov_b32 s38, 0")
                a("s_branch %s_OK" % lab)
            outl[lab] = slow
            mm(i)
    else:
        a("s_mov_b32 s39, 0")
        for i in range(8):
            vm.wait(("of", i))
            val(i)
            a("s_nop 0")
            a("s_cbranch_vccnz KF_O%d_LATE" % i)
            mm(i)
            a.label("KF_O%d_NEXT" % i)
            def late(i=i):
                a.label("KF_O%d_LATE" % i)
                a("s_bitset1_b32 s39, %d" % i)
                a("s_branch KF_O%d_NEXT" % i)
            outl["late%d" % i] = late
        a("s_cmp_lg_u32 s39, 0")
        a("s_cbranch_scc1 KF_OR")
        a.label("KF_OD")
        def retry():
            a.label("KF_OR")
            for i in range(8):
                a("s_bitcmp1_b32 s39, %d" % i)
                a("s_cbranch_scc0 KF_OL%d" % i)
                a(ldO(i))
                a.label("KF_OL%d" % i)
            a("s_sub_u32 s38, s38, 1")
            a("s_cbranch_scc1 KF_OD")
            a("s_waitcnt vmcnt(0)")
            for i in range(8):
                a("s_bitcmp1_b32 s39, %d" % i)
                a("s_cbranch_scc0 KF_OM%d" % i)
                val(i)
                a("s_nop 0")
                a("s_cbranch_vccnz KF_OM%d" % i)
                mm(i)
                a("s_bitset0_b32 s39, %d" % i)
                a.label("KF_OM%d" % i)
            a("s_cmp_lg_u32 s39, 0")
            a("s_cbranch_scc1 KF_OR")
            a("s_branch KF_OD")
        outl["retry"] = retry
    gen1.stamp(a, "so1")
    a("s_cmp_ge_u32 s23, 2")
    a("s_nop 9")
    a("s_cbranch_scc1 KF_X2")
    a("s_cmp_eq_u32 s23, 1")
    a("s_cbranch_scc1 KF_X1")
    def fin(kq):
        idx = lambda src, dst: dst if dst < src else dst - 1
        for p in range(4):
            if p == kq: continue
            a("ds_write_b128 v%d, %s offset:%d" % (vRW + 6, vr(DA + 8 * p, 4), idx(kq, p) * 2048))
            a("ds_write_b128 v%d, %s offset:%d" % (vRW + 6, vr(DA + 8 * p + 4, 4), idx(kq, p) * 2048 + 1024))
        a("s_waitcnt lgkmcnt(0)")
        a("s_barrier")
        srcs = [s for s in range(4) if s != kq]
        for n, s in enumerate(srcs):
            a("ds_read_b128 %s, v10 offset:%d" % (vr(YA + 8 * n, 4), s * 6912 + idx(s, kq) * 2048))
            a("ds_read_b128 %s, v10 offset:%d" % (vr(YA + 8 * n + 4, 4), s * 6912 + idx(s, kq) * 2048 + 1024))
        a("s_waitcnt lgkmcnt(4)")
        for i in range(8): a("v_add_f32 v%d, v%d, v%d" % (YA + i, YA + i, DA + 8 * kq + i))
        a("s_waitcnt lgkmcnt(0)")
        for i in range(8): a("v_add_f32 v%d, v%d, v%d" % (YA + 8 + i, YA + 8 + i, YA + 16 + i))
        for i in range(8): a("v_add_f32 v%d, v%d, v%d" % (YA + i, YA + i, YA + 8 + i))
        for i in range(4): a("v_cvt_pk_bf16_f32 v%d, v%d, v%d" % (YA + 24 + i, YA + 2 * i, YA + 2 * i + 1))
        a("s_nop 1")
        a("v_permlane32_swap_b32 v%d, v%d" % (YA + 24, YA + 26))
        a("v_permlane32_swap_b32 v%d, v%d" % (YA + 25, YA + 27))
        a("buffer_store_dwordx4 %s, v6, s[4:7], s61 offen%s" % (vr(YA + 24, 4), OSC))
        gen1.stamp(a, "fin")
        gen1.stamp_end(a, 0, 14, 5)
        a("s_endpgm")
    fin(0)
    a.label("KF_X1"); fin(1)
    a.label("KF_X2")
    a("s_cmp_eq_u32 s23, 3")
    a("s_cbranch_scc1 KF_X3")
    fin(2)
    a.label("KF_X3"); fin(3)
    a.label("KF_END")
    a("s_endpgm")
    for f in list(outl.values()): f()
    a("s_endpgm")
    a.label("KF_SLOW")
    vm2 = VM(a)
    CB = O
    a("s_waitcnt vmcnt(0)")
    a("s_add_u32 s26, s24, %s" % hx(KF))
    srd(a, 8, 14, "s26", 65536)
    a("s_add_u32 s26, s24, %s" % hx(VF))
    srd(a, 4, 14, "s26", 65536)
    a("s_mov_b32 s26, 0")
    a("v_mov_b32 v4, 0xff800000")
    a("s_mov_b32 s46, 64")
    a.label("KF_SL1")
    ldK(vm2, 0)
    a("s_add_u32 s26, s26, 1024")
    a("s_waitcnt vmcnt(0)")
    QK(3, 0, 0)
    a("s_nop 15")
    for i in range(8): a("v_max3_f32 v4, v4, v%d, v%d" % (S[0] + 2 * i, S[0] + 2 * i + 1))
    a("s_sub_u32 s46, s46, 1"); a("s_cmp_lg_u32 s46, 0")
    a("s_cbranch_scc1 KF_SL1")
    a("v_mov_b32 v5, v4")
    a("s_nop 1")
    a("v_permlane32_swap_b32 v4, v5")
    a("s_nop 1")
    a("v_max_f32 v4, v4, v5")
    for i in range(16): a("v_sub_f32 v%d, 0, v4" % (CB + i))
    for i in range(16): a("v_mov_b32 v%d, 0" % (O + 48 + i))
    a("s_mov_b32 s26, 0")
    a("s_mov_b32 s46, 65")
    a.label("KF_SL2")
    ldK(vm2, 0); ldV(vm2, 0, False)
    a("s_waitcnt vmcnt(0)")
    a("v_mfma_f32_32x32x16_bf16 %s, %s, %s, %s" % (vr(S[0], 16), vr(K[0], 4), vr(Q + 12, 4), vr(CB, 16)))
    a("s_nop 15")
    for i in range(16): a("v_exp_f32 v%d, v%d" % (S[0] + i, S[0] + i))
    a("s_nop 1")
    PV(3, 0, 0, 0); PV(3, 0, 0, 1)
    a("s_sub_u32 s46, s46, 1"); a("s_cmp_lg_u32 s46, 1")
    a("s_cbranch_scc1 KF_SL2")
    a("s_nop 15")
    a("s_branch KF_CHK")
    a.label("KF_LAST")
    a("s_endpgm")
    return NAME, 256, "grid=(256,1,1) block=(512,1,1) lds=163840"

def parse(argv):
    global KVROT, OSC, LADDER, HPUB, LATE
    global WARM, NOWAIT, SPLIT, DMP, ORDERED, EARLYO, NOB3, SHT
    for x in argv:
        if x.startswith('sht='): SHT = int(x[4:])
    if 'b3' in argv: NOB3 = False
    if 'lateo' in argv: EARLYO = False
    if 'ordered' in argv: ORDERED = True
    for x in argv:
        if x.startswith('dmp='): DMP = int(x[4:])
    if 'nosplit' in argv: SPLIT = 0
    if 'wait' in argv: NOWAIT = False
    if 'nowarm' in argv: WARM = False
    if "stamp" in argv: gen1.STAMP = True
    if "rt" in argv: gen1.RT = True
    gen3.GST = [32]
    for x in argv:
        if x.startswith("rot="): ab3.ROT = int(x[4:])
        if x.startswith("epr="): ab3.EPR = int(x[4:])
        if x == "pk": ab3.PK = True
        if x == "swarm": ab3.SWARM = True
        if x.startswith("warmg="): ab3.WARMG = int(x[6:])
        if x.startswith("gcg="): ab3.GCG = int(x[4:])
        if x == "noiwarm": ab3.IWARM = False
        if x.startswith("prio="): ab3.PRIO, ab3.PRG = [int(y) for y in x[5:].split(",")]
        if x.startswith("stg="): ab3.STG = int(x[4:])
        if x.startswith("eprr="): ab3.EPRR = int(x[5:])
        if x.startswith("ch="): ab3.CH = int(x[3:])
        if x.startswith("ldg="): ab3.LDG = int(x[4:]); ab3.POLLG = ab3.LDG - 5
        if x.startswith("early="): ab3.EARLY = dict(zip(("P", "R"), [int(y) for y in x[6:].split(",")]))
        if x.startswith("d2="): ab3.D2 = int(x[3:])
        if x.startswith("pubs="): ab3.PUBS = dict(zip(("P", "R"), [int(y) for y in x[5:].split(",")]))
        if x.startswith("gst="): gen3.GST = [int(y) for y in x[4:].split(",")]
        if x.startswith("smap="): gen1.SMAP = [int(y) if y.isdigit() else y for y in x[5:].split(",")]
        if x == "nokvrot": KVROT = False
        if x == "noladder": LADDER = False
        if x.startswith("ladder="): LADDER = int(x[7:])
        if x == "ns4": gen3.NS4 = True
        if x.startswith("d8="): gen3.D8AT = int(x[3:])
        if x.startswith("lead2="): gen3.LEAD2 = int(x[6:])
        if x == "fsync": gen3.FSYNC = True
        if x.startswith("sig="): gen3.SIG1, gen3.SIG2 = [int(y) for y in x[4:].split(",")]
        if x.startswith("xp="): XP.extend(x[3:].split(",")); ab3.XP = XP
        if x.startswith("hpub="): HPUB = int(x[5:])
        if x.startswith("osc="): OSC = " " + x[4:]
if __name__ == "__main__":
    parse(sys.argv)
    build1(sys.argv[1], kf, aslist=("list" in sys.argv))
```

```python
import sys
sys.path.insert(0, "gen")
import gen1
from gen1 import *
from asmlib import *
from gen2 import gate_code
SC = " sc1"
SLOT = 32768
GCG = -1
EPR = 7
PUBS = {"P": 12, "R": 12}
ROT = 8
BASES = -1
ALTP = False
ALTR = True
CHR = 2
SWARM = False
IWARM = False
PRIO = 0
PRG = 32
STG = 3
XP = []
PK = False
CH = 3
D2 = 3
PLD = 5; LDG = {"P": 93, "R": 93}; WARMG = 68
EARLY = {"P": 30, "R": 30}
EPRR = 7

def phase_ab(a, tail, hook):
    X = 128; WF = 32; E = 128
    SET = [64, 80, 96, 112]
    vAX, vT, vST, vAW1, vA2, vAM, vSV, vD, vDM = 2, 3, 4, 5, 7, 9, 10, 11, 16
    a("v_lshrrev_b32 v20, 4, v0")
    a("v_and_b32 v21, 7, v0")
    a("v_xor_b32 v22, v21, v20")
    a("v_lshlrev_b32 v22, 4, v22")
    a("v_lshrrev_b32 v23, 3, v0")
    a("v_lshl_add_u32 v22, v23, 10, v22")
    a("s_lshl_b32 s58, s3, 14")
    a("v_add_u32 v%d, s58, v22" % vD)
    a("v_xor_b32 v%d, 64, v%d" % (vD + 1, vD))
    a("v_add_u32 v%d, %d, v%d" % (vD + 1, 7168, vD + 1))
    a("v_and_b32 v22, 1, v20")
    a("v_lshlrev_b32 v22, 2, v22")
    a("v_xor_b32 v22, v22, v21")
    a("v_lshlrev_b32 v22, 4, v22")
    a("s_lshl_b32 s58, s3, 3")
    a("v_add_u32 v23, s58, v23")
    a("v_mul_u32_u24 v24, 3072, v23")
    a("v_add_u32 v%d, v24, v22" % (vD + 2))
    a("s_lshl_b32 s56, s3, 11")
    a("s_lshl_b32 s57, s3, 10")
    a("s_lshl_b32 s44, s18, 17")
    a("s_lshl_b32 s45, s19, 7")
    a("s_sub_u32 s46, %d, s45" % (512 * 3072))
    a("s_lshl_b32 s50, s55, 1")
    a("s_add_u32 s50, s50, s18")
    if ROT != 8:
        a("s_add_u32 s50, s55, s18")
        a("s_and_b32 s50, s50, %d" % (ROT - 1))
        a("s_mul_i32 s50, s50, %d" % (8 // ROT))
    a("s_lshl_b32 s51, s54, 8")
    a("s_sub_u32 s51, 1920, s51")
    a("s_add_u32 s28, s55, 1")
    a("s_waitcnt lgkmcnt(0)")
    gen1.stamp(a, 1)
    if IWARM:
        a("s_getpc_b64 s[90:91]")
        a.label("AB_PC")
        a("s_lshl_b32 s92, s17, 3")
        a("s_add_u32 s92, s92, s3")
        a("s_lshl_b32 s92, s92, 7")
        a("s_add_u32 s93, s92, 32768")
        a("s_min_u32 s93, s93, KF_LAST-AB_PC")
        a("s_load_dword s53, s[90:91], s92")
        a("s_load_dword s59, s[90:91], s93")
    srd(a, 20, 4, "s44", 128 * 1024)
    srd(a, 24, 6, "s45", "s46")
    a("s_bitcmp1_b32 s28, 1")
    a("s_cbranch_scc0 AB_P")

    def stream(kind):
        P = kind == "P"
        vm = VM(a); lg = VM(a, "lgkmcnt", 15)
        def base(s): return (s % 5) * SLOT
        def dma(s):
            b = base(s); tag = ("d", s)
            G = []
            def grp(m0, off, txt, pre=None):
                G.append([("s", "s_add_u32 m0, %s, %s" % (m0, hx(off)))] + (pre or [("s", "s_nop 0")]) + [("v", txt)])
            ld = "buffer_load_dwordx4 v%d, s[%d:%d], %s offen offset:%d lds"
            if s < 8:
                pre = [("s", "s_add_u32 s48, s50, %d" % s), ("s", "s_and_b32 s48, s48, 7"),
                       ("s", "s_mul_i32 s49, s48, %d" % (64 * 3072)), ("s", "s_lshl_b32 s48, s48, 7")]
                grp("s56", b, ld % (vD, 20, 23, "s48", 0), pre)
                G.append([("v", ld % (vD + 1, 20, 23, "s48", 1024))])
                grp("s57", b + 16384, ld % (vD + 2, 24, 27, "s49", 0))
                if not P: grp("s57", b + 24576, ld % (vD + 2, 24, 27, "s49", 0), [("s", "s_add_u32 s49, s49, s51")])
            else:
                for c in range(2):
                    pos = (2 * (s - 8) + c) % 8
                    pre = [("s", "s_add_u32 s48, s50, %d" % pos), ("s", "s_and_b32 s48, s48, 7"),
                           ("s", "s_mul_i32 s49, s48, %d" % (64 * 3584)), ("s", "s_add_u32 s49, s49, s%d" % (52 if s < 12 else 97))]
                    if P or s < 12:
                        grp("s57", b + c * 16384, ld % (vD + 3, 40, 43, "s49", 0), pre)
                        grp("s57", b + c * 16384 + 8192, ld % (vD + 4, 44, 47, "s49", 0))
                    else:
                        grp("s57", b + c * 8192, ld % (vDM, 4, 7, "s49", 0), pre)
            return [[(k, t, tag) for (k, t) in g] for g in G]
        def flat(G): return [x for g in G for x in g]
        def emit(it):
            k, t, tag = it
            if k == "v": vm.issue(t, tag)
            elif k == "l": lg.issue(t, tag)
            elif k == "f": t()
            else: a(t)
        gi0, gc0 = gate_code(a, vm, "s[28:31]", "s[20:23]", "s39", X + 112)
        if GCG >= 0:
            for it in flat(dma(0)): emit(it)
        srd(a, 28, 12, 0, 1024)
        a("s_lshl_b32 s60, s19, 3")
        a("s_add_u32 s60, s60, s3")
        a("s_lshl_b32 s39, s60, 10")
        gi0()
        if GCG < 0:
            for it in flat(dma(0)): emit(it)
        a("s_barrier")
        for it in flat(dma(1)): emit(it)
        hook(kind, vm, "init")
        if SWARM:
            a("s_lshl_b32 s38, s2, 3")
            a("s_add_u32 s38, s38, s3")
            a("s_mul_i32 s38, s38, 896")
            a("s_add_u32 s90, s8, s38"); a("s_addc_u32 s91, s9, 0")
            a("s_add_u32 s92, s10, s38"); a("s_addc_u32 s93, s11, 0")
            for i in range(7):
                a("s_load_dword s53, s[90:91], %d" % (128 * i))
                a("s_load_dword s53, s[92:93], %d" % (128 * i))
        a("s_lshl_b32 s58, s55, 3")
        a("s_lshr_b32 s38, 0x140e0800, s58")
        a("s_and_b32 s38, s38, 0xff")
        a("s_lshr_b32 s52, 0x00400000, s58")
        a("s_and_b32 s52, s52, 0xff")
        a("s_lshr_b32 s97, 0x80008080, s58")
        a("s_and_b32 s97, s97, 0xff")
        a("s_mul_i32 s58, s54, 28")
        a("s_add_u32 s58, s58, s38")
        a("s_lshl_b32 s38, s58, 5")
        a("s_sub_u32 s39, %d, s38" % (512 * 3584))
        srd(a, 40, 8, "s38", "s39")
        srd(a, 44, 10, "s38", "s39")
        a("v_mul_u32_u24 v24, 3584, v23")
        a("v_add_u32 v%d, v24, v22" % (vD + 3))
        a("v_xor_b32 v%d, 32, v%d" % (vD + 4, vD + 3))
        if not P:
            a("v_lshrrev_b32 v23, 2, v0")
            a("s_lshl_b32 s38, s36, 4")
            a("v_add_u32 v23, s38, v23")
            a("v_mul_u32_u24 v23, 3584, v23")
            a("v_and_b32 v24, 3, v0")
            a("s_lshl_b32 s38, s37, 1")
            a("v_xor_b32 v24, s38, v24")
            a("s_cmp_eq_u32 s37, 0")
            a("s_cselect_b32 s4, s40, s44")
            a("s_cselect_b32 s5, s41, s45")
            a("s_mov_b32 s6, s42")
            a("s_mov_b32 s7, 0x20000")
            a("v_lshl_add_u32 v%d, v24, 4, v23" % vDM)
        a("v_and_b32 v24, 31, v0")
        a("v_lshrrev_b32 v25, 5, v0")
        a("v_bfe_u32 v26, v0, 1, 3")
        a("v_xor_b32 v26, v25, v26")
        a("v_lshlrev_b32 v26, 4, v26")
        a("v_lshl_add_u32 v26, v24, 7, v26")
        a("s_lshl_b32 s38, s36, 12")
        a("v_add_u32 v%d, s38, v26" % vAX)
        a("v_bfe_u32 v21, v0, 2, 2")
        a("v_lshl_add_u32 v26, v25, 3, v21")
        a("v_bfe_u32 v27, v0, 4, 1")
        a("v_and_b32 v28, 3, v0")
        a("v_lshlrev_b32 v28, 3, v28")
        a("v_bfe_u32 v30, v0, 3, 1")
        a("v_lshl_add_u32 v22, v26, 7, v28")
        a("v_lshl_add_u32 v29, v27, 5, v22")
        a("v_xor_b32 v23, s37, v30")
        a("v_lshl_add_u32 v29, v23, 6, v29")
        a("v_add_u32 v%d, 16384, v29" % vAW1)
        if not P: a("v_add_u32 v%d, 24576, v29" % (vAW1 + 1))
        a("v_lshl_add_u32 v23, v23, 1, v27")
        a("v_lshl_add_u32 v29, v23, 5, v22")
        a("v_lshl_add_u32 v29, v27, 13, v29")
        a("v_add_u32 v%d, %d, v29" % (vA2, base(8)))
        a("v_xor_b32 v%d, 32, v%d" % (vA2 + 1, vA2))
        if not P:
            a("v_xor_b32 v23, s37, v27")
            a("v_lshl_add_u32 v29, v23, 5, v28")
            a("v_lshl_add_u32 v29, v26, 6, v29")
            a("v_lshl_add_u32 v29, v27, 12, v29")
            a("v_add_u32 v%d, %d, v29" % (vAM, base(12)))
        a("s_lshl_b32 s90, s18, 2")
        a("s_add_u32 s90, s90, s36")
        a("s_lshl_b32 s91, s90, 10")
        a("s_mul_i32 s90, s90, 112")
        a("s_add_u32 s90, s90, s58")
        a("s_lshr_b32 s38, s52, 5")
        a("s_add_u32 s95, s90, s38")
        a("s_lshr_b32 s38, s97, 5")
        a("s_add_u32 s58, s90, s38")
        a("s_lshl_b32 s38, s37, 1")
        a("s_add_u32 s58, s58, %s" % ("s38" if P else "s37"))
        a("s_lshl_b32 s58, s58, 10")
        a("s_add_u32 s95, s95, s38")
        a("s_lshl_b32 s95, s95, 10")
        if not P:
            a("v_and_b32 v29, 15, v0")
            a("v_lshlrev_b32 v29, 4, v29")
            a("v_lshl_add_u32 v29, v25, 8, v29")
            a("v_lshl_add_u32 v%d, v27, 16, v29" % vSV)
            a("s_lshl_b32 s38, s54, 1")
            a("s_add_u32 s38, s38, s55")
            a("s_sub_u32 s38, s38, 1")
            a("s_lshl_b32 s38, s38, 18")
            a("s_add_u32 s96, s91, s38")
            a("s_lshl_b32 s38, s37, 17")
            a("s_add_u32 s96, s96, s38")
            a("s_add_u32 s96, s96, %s" % hx(VF))
        a("s_cmp_lt_u32 s19, 8")
        a("s_cselect_b32 s92, %s, 1.0" % hx(f2u(0.25 * LOG2E)))
        a("s_cselect_b32 s38, 0, 12")
        a("s_mov_b32 s93, s92")
        a("v_lshrrev_b32 v29, 1, v24")
        a("v_xor_b32 v29, v24, v29")
        a("v_and_b32 v29, 4, v29")
        a("v_mul_u32_u24 v29, 3, v29")
        a("v_and_b32 v29, s38, v29")
        a("v_xor_b32 v29, v24, v29")
        a("v_lshlrev_b32 v29, 4, v29")
        a("v_lshl_add_u32 v%d, v25, 9, v29" % vST)
        a("s_lshl_b32 s38, s19, 18")
        a("s_add_u32 s91, s91, s38")
        a("s_lshl_b32 s38, s37, 17")
        a("s_add_u32 s91, s91, s38")
        a("s_add_u32 s94, s91, 0x10000")
        def gc():
            o = gc0()
            a("v_mov_b32 v30, v%d" % o); a("v_mov_b32 v31, v%d" % (o + 1))
            srd(a, 28, 14, 0, 17 * MB)
            a("s_lshl_b32 s39, s18, 7")
            a("s_add_u32 s60, s60, s39")
            a("s_lshl_b32 s60, s60, 3")
            a("s_add_u32 s60, s60, %s" % hx(GG))
            a("v_mov_b32 v29, 0")
        def gst():
            a("s_mov_b32 exec_lo, 0")
            a("s_mov_b32 exec_hi, 0x80000000")
            vm.issue("buffer_store_dwordx2 v[30:31], v29, s[28:31], s60 offen%s" % SC, "gst")
            a("s_mov_b64 exec, -1")
        T = [[3], [0, 1], [2, 3]] if P else [[0, 1], [2, 3], [0]]
        ALT = [2 if ALTP else None, None, None] if P else [None, None, 1 if ALTR else None]
        DIST = [2, D2, D2] if P else [2, D2, 4]
        def ph(g): return g // 32
        def stage(g): return g // 4 if g < 32 else 8 + (g - 32) // 8
        def first(g): return g % 4 == 0 if g < 32 else g % 8 == 0
        def wf(g, n):
            if len(T[ph(g)]) == 1 and ph(g) == 2: return WF + 4 * (g % 6)
            return WF + 8 * (g % 4) + 4 * n
        def reads(g):
            s = stage(g); p = ph(g); L = []
            if p == 0: R = [vAX] + [vAW1 + n for n in range(len(T[0]))]
            elif p == 2 and not P: R = [vAM]
            else: R = [vA2, vA2 + 1]
            if first(g) and s not in (0, 8) and not (s == 12 and not P):
                d = base(s) - base(s - 1)
                for r in R: L.append(("s", "v_add_u32 v%d, %s, v%d" % (r, hx(d), r), None))
            ks = g % 4
            if p == 0:
                if ks: L.append(("s", "v_xor_b32 v%d, %d, v%d" % (vT, 32 * ks, vAX), None))
                L.append(("l", "ds_read_b128 %s, v%d" % (vr(X + 4 * g, 4), vT if ks else vAX), g))
                R = R[1:]
            c = 0 if p == 0 else (g % 8) // 4
            for n in range(len(T[p])):
                rb_ = 64 if R[n] == vAM else 128
                for q in range(2):
                    L.append(("l", "ds_read_b64_tr_b16 %s, v%d offset:%d" % (vr(wf(g, n) + 2 * q, 2), R[n], c * 128 * rb_ + (16 * ks + 4 * q) * rb_), g))
            return L
        def mfmas(g):
            L = []
            x = vr(X + 4 * (g % 32), 4)
            for n, ac in enumerate(T[ph(g)]):
                first_ = g % 32 == 0
                if len(T[ph(g)]) == 1 and ALT[ph(g)] is not None:
                    if g % 2: ac = ALT[ph(g)]
                    first_ = g % 32 < 2
                d = vr(SET[ac], 16); w = vr(wf(g, n), 4)
                A, B = (x, w) if (g < 32 and n == 1) else (w, x)
                L.append("v_mfma_f32_32x32x16_bf16 %s, %s, %s, %s" % (d, A, B, "0" if first_ else d))
            return L
        def qkv_epi(n):
            b = SET[T[0][n]]; L = []
            if ALT[0] is not None:
                for i in range(16): L.append(("s", "v_add_f32 v%d, v%d, v%d" % (b + i, b + i, SET[ALT[0]] + i), None))
            if n == 0:
                for i in range(16): L.append(("s", "v_mul_f32 v%d, s92, v%d" % (b + i, b + i), None))
            for i in range(8): L.append(("s", "v_cvt_pk_bf16_f32 v%d, v%d, v%d" % (b + i, b + 2 * i, b + 2 * i + 1), None))
            if n == 0:
                L.append(("v", "buffer_store_dwordx4 %s, v%d, s[28:31], s91 offen%s" % (vr(b, 4), vST, SC), "qkv"))
                L.append(("v", "buffer_store_dwordx4 %s, v%d, s[28:31], s94 offen%s" % (vr(b + 4, 4), vST, SC), "qkv"))
            else:
                for j in range(2):
                    L.append(("v", "buffer_store_dwordx4 %s, v%d, s[28:31], s96 offen offset:%d%s" % (vr(b + 4 * j, 4), vSV, j * 512, SC), "qkv"))
            return L
        def silu(G, Tm, so, off, tag, pk=True):
            U = G + 8; L = []
            def op(o, d, x, y):
                if pk:
                    for i in range(4): L.append("v_pk_%s_f32 %s, %s, %s" % (o, vr(d + 2 * i, 2), vr(x + 2 * i, 2), y if isinstance(y, str) else vr(y + 2 * i, 2)))
                else:
                    for i in range(8): L.append("v_%s_f32 v%d, %s, v%d" % (o, d + i, {"s[92:93]": "s92", "s[12:13]": "1.0"}.get(y, None) or "v%d" % (y + i), x + i))
            op("mul", Tm, G, "s[92:93]")
            for i in range(8): L.append("v_exp_f32 v%d, v%d" % (Tm + i, Tm + i))
            op("mul", G, G, U)
            op("add", Tm, Tm, "s[12:13]")
            for i in range(8): L.append("v_rcp_f32 v%d, v%d" % (Tm + i, Tm + i))
            L.append("s_nop 0")
            op("mul", G, G, Tm)
            for i in range(4): L.append("v_cvt_pk_bf16_f32 v%d, v%d, v%d" % (G + i, G + 2 * i, G + 2 * i + 1))
            L = [("s", t, None) for t in L]
            L.append(("v", "buffer_store_dwordx4 %s, v1, s[32:35], %s offen offset:%d%s" % (vr(G, 4), so, off, SC), tag))
            return L
        def consts():
            a("s_mov_b32 s92, %s" % hx(f2u(-LOG2E))); a("s_mov_b32 s93, s92")
            a("s_mov_b32 s12, 1.0"); a("s_mov_b32 s13, 1.0")
            srd(a, 32, 14, HF, 7 * MB)
        ep1 = []
        for n in reversed(range(len(T[0]))): ep1 += qkv_epi(n)
        ep0 = [("f", lambda: hook(kind, vm, "early"), None), ("f", gst, None)]
        ep1b = [("f", consts, None)]
        assert EARLY[kind] <= 30
        if "noqst" in XP: ep1 = [x for x in ep1 if x[0] != "v"]
        if "noep1" in XP: ep1 = [x for x in ep1 if x[0] == "v"]
        if "plainq" in XP: ep1 = [(k, t.replace(SC, ""), g) if k == "v" else (k, t, g) for (k, t, g) in ep1]
        ep2 = []
        for n, ac in enumerate(T[1]): ep2 += silu(SET[ac], E if P else 56, "s95", n * 1024, "h1", PK)
        if "noep2" in XP: ep2 = []
        if "ep2nost" in XP: ep2 = [x for x in ep2 if x[0] != "v"]
        islot = {}
        last = -1
        for g in range(96):
            want = g - DIST[ph(g)]
            regs = set(r for n in range(len(T[ph(g)])) for r in range(wf(g, n), wf(g, n) + 4))
            for g2 in range(g - 1, max(-1, g - 10), -1):
                r2 = set(r for n in range(len(T[ph(g2)])) for r in range(wf(g2, n), wf(g2, n) + 4))
                if regs & r2: want = max(want, g2 + 1); break
            want = max(want, last)
            assert want < g or g == 0, g
            islot[g] = want; last = want
        syncs = {islot[g]: stage(g) for g in range(1, 96) if first(g)}
        def barrier(s):
            if s == PUBS[kind]: vm.wait(("d", s), "qkv", "gst", "sent")
            elif s == BASES: vm.wait(("d", s), "gst", "sent")
            else: vm.wait(("d", s))
            if s == 15: a("s_waitcnt lgkmcnt(0)"); lg.ops = []
            a("s_barrier")
            if s == BASES: hook(kind, vm, "base")
            if s == PUBS[kind]: hook(kind, vm, "pub")
        hook(kind, vm, "setup")
        if GCG < 0: gc()
        barrier(0)
        if SWARM or IWARM: a("s_waitcnt lgkmcnt(0)")
        gen1.stamp(a, 2)
        for g in range(96):
            if islot[g] < 0:
                for it in reads(g): emit(it)
        stq = []; nst = [0]
        pend = dma(2) + dma(3)
        for g in range(96):
            O = []
            for g2 in range(g + 1, 96):
                if islot[g2] == g: O += reads(g2)
            bar = syncs.get(g)
            if bar is not None:
                assert not any(it[2] == ("d", bar) for grp in pend for it in grp), (g, bar)
                if bar + 3 <= 15: pend += dma(bar + 3)
            if pend and (g < 32 or g % 2 == 0 or len(pend) > 4):
                for _ in range(2 if len(pend) > 4 and g < 32 else 1): O += pend.pop(0)
            if g == GCG: O.append(("f", gc, None))
            if ep0 and g >= EARLY[kind]: O.append(ep0.pop(0))
            if g >= 34 and stq and g >= nst[0] and None not in stq[:2]:
                O += stq.pop(0); nst[0] = g + STG
            if g >= 34 and ep1:
                n = EPR + 2
                for it in ep1[:n]:
                    if it[0] == "v": stq.append([it])
                    elif it[1].startswith("s_add_u32 s9"): stq.append([it]) ; stq.append(None)
                    else: O.append(it)
                ep1 = ep1[n:]
                i = 0
                while i < len(stq):
                    if stq[i] is None and i + 1 < len(stq):
                        stq[i - 1] = stq[i - 1] + stq[i + 1]
                        del stq[i:i + 2]
                    else: i += 1
            elif stq: pass
            elif g >= max(34, EARLY[kind]) and ep1b and g >= nst[0]: O.append(ep1b.pop(0)); nst[0] = g + 2
            elif g >= (67 if P else 66) and ep2:
                n = EPR if P else EPRR
                O += ep2[:n]; ep2 = ep2[n:]
                O += hook(kind, vm, (g, CH if P else CHR)) or []
            elif g >= 34 and not ep1b:
                O += hook(kind, vm, (g, 6 if g < 64 else 10)) or []
            if g < 30: O += hook(kind, vm, (g, 0)) or []
            if g == WARMG: O.append(("f", lambda: hook(kind, vm, "warm"), None))
            if bar == BASES: assert not ep0
            if BASES > 0 and g == LDG[kind] - 2 * PLD: O.append(("f", lambda: hook(kind, vm, "bpoll"), None))
            if g == LDG[kind] - PLD: O.append(("f", lambda: hook(kind, vm, "poll"), None))
            if g == LDG[kind]: assert not ep2 or not P
            if g == LDG[kind]: O.append(("f", lambda: hook(kind, vm, "ld"), None))
            if bar == PUBS[kind]: assert not ep1 and not stq and not ep1b and not any(it[0] == "f" for it in O), (kind, g)
            M = mfmas(g)
            pr = PRIO if g >= PRG else 0
            if pr: a("s_setprio 1")
            lg.wait(g)
            gen1.stamp(a, "g%d" % g)
            n = len(M); per = max(1, -(-len(O) // n))
            if pr == 2:
                for m in M: a(m)
                a("s_setprio 0")
                if bar is not None: barrier(bar)
                for it in O: emit(it)
                continue
            for i, m in enumerate(M):
                if pr and i: a("s_setprio 1")
                a(m)
                if pr: a("s_setprio 0")
                if i == 0 and bar is not None: barrier(bar)
                for it in O[i * per:(i + 1) * per]: emit(it)
        assert not ep1 and not ep2 and not pend
        gen1.stamp(a, 4)
        hook(kind, vm, "pre_h")
        a("s_nop 10")
        L0 = silu(SET[T[2][0]], WF, "s58", 0, "h")
        if P:
            L1 = silu(SET[T[2][1]], WF + 8, "s58", 1024, "h")
            for it in L0[:12] + L1[:12] + L0[12:28]: emit(it)
            hook(kind, vm, "mid_h")
            for it in L1[12:28] + L0[29:] + L1[29:]: emit(it)
        else:
            if ALT[2] is not None:
                b = SET[T[2][0]]; c = SET[ALT[2]]
                for i in range(8): a("v_pk_add_f32 %s, %s, %s" % (vr(b + 2 * i, 2), vr(b + 2 * i, 2), vr(c + 2 * i, 2)))
            for it in L0[:28]: emit(it)
            hook(kind, vm, "mid_h")
            for it in L0[28:]: emit(it)
            a("v_mov_b32 v4, 0x1000")
            vm.issue("buffer_store_dword v4, v4, s[84:87], 0 offen", "h")
        tail(kind, vm)
    stream("R")
    a.label("AB_P")
    stream("P")
```

```python
import sys
sys.path.insert(0, "gen")
import gen1, gen3
from gen1 import *
from asmlib import *
import ab4 as ab3
from gen3 import ab_prologue, SC
from ab4 import phase_ab
from gen5 import build1

FL = 17 * MB
RING = 65536; SCR = 98304
KVROT = True
LATE = True
WARM = True
NOWAIT = False
SPLIT = 1
DMP = 12
ORDERED = True
EARLYO = False
NOB3 = False
SHT = 1
SETG = 10
OWNQ = False
SETN = 0
OSC = ""
LADDER = True
XP = []
HPUB = 1
NAME = "gated_mix__softmax_full_mha__swiglu_ffn__prompt_kernel"

def kf(a):
    header(a, NAME)
    Q = 128; K = [144, 148]; V = [152, 160]; S = [32, 48]; O = 64
    WF = 168; DA = 184; HB_ = 216
    vV, vIX, vP, vPO, vLD = 18, 19, 20, 21, 22
    vWA, vWB, vT0, vT1, vZ = 24, 25, 26, 27, 28
    vW0 = 23
    ab_prologue(a, "KF_END")
    def spin(lab, expect, vm, leader_only=False, sr_="s[84:87]", so="0", note=""):
        if vm: vm.wait("poll")
        a("v_cmp_le_u32 vcc, %d, v%d%s" % (expect, vP, note))
        a("s_mov_b32 s38, 0x8000")
        if leader_only:
            a("s_cmp_lg_u32 s3, 0")
            a("s_cbranch_scc1 %s_OK" % lab)
        a("s_cmp_eq_u64 vcc, -1")
        a("s_cbranch_scc1 %s_OK" % lab)
        a.label(lab)
        a("s_sleep 4")
        a("buffer_load_dword v%d, v%d, %s, %s offen sc1%s" % (vP, vPO, sr_, so, note))
        a("s_sub_u32 s38, s38, 1")
        a("s_waitcnt vmcnt(0)")
        a("v_cmp_le_u32 vcc, %d, v%d" % (expect, vP))
        a("s_cselect_b32 s39, 1, 0")
        a("s_cmp_eq_u64 vcc, -1")
        a("s_cselect_b32 s39, 1, s39")
        a("s_cmp_eq_u32 s39, 0")
        a("s_cbranch_scc1 %s" % lab)
        a.label(lab + "_OK")
    def poll(vm, sr_="s[84:87]"): vm.issue("buffer_load_dword v%d, v%d, %s, 0 offen sc1" % (vP, vPO, sr_), "poll")
    def publish(vm, soff):
        a("v_mov_b32 v%d, 1" % vP)
        a("s_mov_b64 exec, 1")
        vm.issue("buffer_atomic_add v%d, v%d, s[84:87], %s offen sc1" % (vP, vLD, soff), "atom")
        a("s_mov_b64 exec, -1")
    def ldK(vm, b):
        vm.issue("buffer_load_dwordx4 %s, v1, s[8:11], s72 offen%s" % (vr(K[b], 4), SC), ("K", b))
    def ldV(vm, b, wrap=True):
        a("s_mov_b64 exec, s[74:75]")
        vm.issue("buffer_load_dwordx4 %s, v%d, s[64:67], s72 offen%s" % (vr(V[b], 4), vV, SC), ("V", b))
        vm.issue("buffer_load_dwordx4 %s, v%d, s[64:67], s72 offen offset:512%s" % (vr(V[b] + 4, 4), vV, SC), ("V", b))
        a("s_mov_b64 exec, -1")
        a("s_add_u32 s72, s72, 1024")
        if wrap: a("s_and_b32 s72, s72, 0x3fff")
    def cap(fn):
        save = a.lines; a.lines = []
        fn(); L = a.lines; a.lines = save
        return [("s", l.strip(), None) for l in L]
    def early(vm):
        for i in range(4): a("v_mov_b32 v%d, -1" % (96 + i))
        vm.issue("buffer_store_dwordx4 v[96:99], v1, s[28:31], s53 offen%s" % SC, "sent")
        a("s_add_u32 s53, s59, 32768")
        a("s_mov_b64 exec, 1")
        vm.issue("buffer_store_dword v29, v%d, s[80:83], s59 offen%s" % (vLD, SC), "sent")
        vm.issue("buffer_store_dword v29, v%d, s[80:83], s53 offen%s" % (vLD, SC), "sent")
        if OWNQ: vm.issue("buffer_store_dword v29, v%d, s[80:83], s90 offen%s" % (vLD, SC), "sent")
        a("s_mov_b64 exec, -1")
    def setup():
        a("s_and_b32 s89, s2, 7")
        a("s_lshl_b32 s89, s89, 2")
        a("s_bfe_u32 s38, s2, 0x20003")
        a("s_add_u32 s89, s89, s38")
        a("s_lshr_b32 s88, s2, 5")
        a("s_lshr_b32 s62, s3, 2")
        a("s_and_b32 s63, s3, 3")
        a("s_cmp_eq_u32 s3, 0")
        a("s_cselect_b32 s38, 0, 0x20000")
        a("v_mov_b32 v%d, s38" % vLD)
        a("v_and_b32 v%d, 15, v0" % vV)
        a("v_lshlrev_b32 v%d, 4, v%d" % (vV, vV))
        a("v_mov_b32 v%d, v%d" % (vPO, vV))
        a("v_lshrrev_b32 v104, 5, v0")
        a("v_lshl_add_u32 v%d, v104, 8, v%d" % (vV, vV))
        a("v_mov_b32 v%d, 0xdddddddd" % vIX)
        a("s_mov_b32 s74, 0x0000ffff"); a("s_mov_b32 s75, 0x0000ffff")
        srd(a, 80, 14, FL, 98304)
        srd(a, 84, 100, 0, 256)
        a("s_lshl_b32 s73, s89, 16")
        srd(a, 68, 14, "s73", 65536)
        a("s_lshl_b32 s38, s63, 14")
        a("s_add_u32 s38, s38, s73")
        a("s_add_u32 s39, s38, %s" % hx(KF))
        srd(a, 8, 14, "s39", 16384)
        a("s_add_u32 s39, s38, %s" % hx(VF))
        srd(a, 64, 14, "s39", 16384)
        a("s_lshl_b32 s72, s88, 11")
        a("s_lshl_b32 s39, s88, 3")
        a("s_add_u32 s38, s3, s39")
        a("s_lshl_b32 s38, s38, 5")
        a("s_add_u32 s38, s38, s89")
        a("s_lshl_b32 s61, s38, 10")
        a("s_lshl_b32 s38, s62, 2")
        a("s_add_u32 s39, s39, s38")
        for i, r in enumerate(QS):
            a("s_add_u32 s38, s63, %d" % (i + 1))
            a("s_and_b32 s38, s38, 3")
            a("s_add_u32 s38, s38, s39")
            a("s_lshl_b32 %s, s38, 10" % r)
        a("v_bfe_u32 v105, v0, 4, 1")
        a("v_lshlrev_b32 v106, 2, v105")
        a("v_and_b32 v107, 7, v0")
        a("v_xor_b32 v106, v106, v107")
        a("v_lshlrev_b32 v106, 4, v106")
        a("v_lshrrev_b32 v107, 3, v0")
        a("v_lshl_add_u32 v%d, v107, 10, v106" % vW0)
        a("s_lshl_b32 s38, s62, 13")
        a("v_add_u32 v%d, s38, v%d" % (vWA, vW0))
        a("v_add_u32 v%d, %d, v%d" % (vWB, 16384 - 2048, vWA))
        a("v_bfe_u32 v107, v0, 2, 2")
        a("v_lshl_add_u32 v106, v104, 2, v107")
        a("v_bfe_u32 v107, v0, 1, 1")
        a("v_lshl_add_u32 v107, v105, 1, v107")
        a("v_bfe_u32 v108, v0, 3, 1")
        a("v_lshl_add_u32 v107, v108, 2, v107")
        a("v_lshlrev_b32 v107, 4, v107")
        a("v_and_b32 v108, 1, v0")
        a("v_lshl_add_u32 v107, v108, 3, v107")
        a("v_lshl_add_u32 v107, v106, 7, v107")
        a("s_lshl_b32 s16, s63, 12")
        a("s_add_u32 s16, s16, %d" % RING)
        a("v_add_u32 v%d, s16, v107" % vT0)
        a("v_xor_b32 v%d, 64, v%d" % (vT1, vT0))
        a("s_lshl_b32 s38, s62, 10")
        a("s_add_u32 s17, s16, s38")
        a("s_and_b32 s53, s89, 3")
        a("s_add_u32 s59, s53, s88")
        a("s_cmp_ge_u32 s59, 6")
        a("s_cselect_b32 s38, 6, 0")
        a("s_sub_u32 s59, s59, s38")
        a("s_lshl_b32 s59, s59, 2")
        a("s_mov_b32 s38, 0x32dc7632")
        a("s_mov_b32 s39, 0xdc76")
        a("s_lshr_b64 s[38:39], s[38:39], s59")
        a("s_and_b32 s99, s38, 0xffffff")
        a("s_lshl_b32 s53, s53, 1")
        a("s_add_u32 s59, s53, s88")
        a("s_and_b32 s59, s59, 7")
        a("s_lshl_b32 s59, s59, 2")
        a("s_mov_b32 s38, 0xba985410")
        a("s_mov_b32 s39, s38")
        a("s_lshr_b64 s[38:39], s[38:39], s59")
        a("s_mov_b32 s98, s38")
        a("s_add_u32 s53, s61, %s" % hx(OF))
        a("s_lshl_b32 s59, s18, 4")
        a("s_add_u32 s59, s59, s19")
        a("s_lshl_b32 s59, s59, 7")
        if OWNQ:
            a("s_lshl_b32 s90, s19, 4")
            a("s_add_u32 s90, s90, s18")
            a("s_lshl_b32 s90, s90, 7")
            a("s_add_u32 s90, s90, 65536")
            a("s_lshr_b32 s38, s89, 2")
            a("v_lshlrev_b32 v106, 3, v105")
            a("v_add_u32 v106, s38, v106")
            a("s_lshr_b32 s39, s38, 1")
            a("s_lshl_b32 s39, s39, 2")
            a("s_and_b32 s38, s38, 1")
            a("s_add_u32 s39, s39, s38")
            a("s_add_u32 s39, s39, 1")
            a("v_sub_u32 v107, s39, v106")
            a("v_mad_u32_u24 v106, v107, v104, v106") if False else None
            a("v_mul_i32_i24 v107, v107, v104")
            a("v_add_u32 v106, v106, v107")
            a("v_and_b32 v107, 15, v0")
            a("v_lshl_add_u32 v106, v106, 4, v107")
            a("v_lshlrev_b32 v106, 7, v106")
            a("v_add_u32 v28, 65536, v106")
    QS = ["s36", "s37", "s54", "s55"]
    def setup2b():
        a("v_and_b32 v3, 31, v0")
        a("v_cmp_eq_u32 s[20:21], 16, v3")
        a("v_mov_b32 v3, 0x3f803f80")
        a("s_nop 0")
        a("v_cndmask_b32 v%d, 0, v3, s[20:21]" % V[0])
        for i in range(1, 16): a("v_mov_b32 v%d, v%d" % (V[0] + i, V[0]))
    chunks = {}
    def ldq(vm, s):
        vm.issue("buffer_load_dwordx4 %s, v1, s[68:71], %s offen%s" % (vr(Q + 4 * s, 4), QS[s], SC), "Q")
    def hook(kind, vm, where):
        if where == "init": chunks.clear()
        elif where == "early": early(vm)
        elif where == "setup":
            if SETG < 0: setup()
            else: chunks["S"] = cap(setup)
        elif where == "base" and OWNQ or where == "pub" and not OWNQ:
            a("s_lshl_b32 s38, s19, 4")
            publish(vm, "s38")
        elif where == "pub":
            a("v_mov_b32 v%d, 1" % vP)
            a("s_mov_b64 exec, 1")
            vm.issue("buffer_store_dword v%d, v%d, s[80:83], s90 offen sc1" % (vP, vLD), "flag")
            a("s_mov_b64 exec, -1")
        elif where == "bpoll":
            if OWNQ: poll(vm)
        elif where == "poll":
            if OWNQ:
                spin("KF_SB_" + kind, 16, vm)
                a("v_mov_b32 v%d, v28" % vPO)
                poll(vm, "s[80:83]")
            else: poll(vm)
        elif where == "ld":
            if OWNQ: spin("KF_SQ_" + kind, 1, vm, False, "s[80:83]")
            else: spin("KF_SQ_" + kind, 16, vm)
            assert not chunks["V"]
            gen1.stamp(a, "sq1")
            ldq(vm, 0); ldK(vm, 0); ldq(vm, 1)
            if SPLIT == 0: ldq(vm, 2); ldq(vm, 3); ldV(vm, 0); ldK(vm, 1); ldV(vm, 1)
        elif where == "mid_h":
            if SPLIT: ldK(vm, 1); ldV(vm, 1)
        elif where == "warm":
            if not WARM: return
            srd(a, 28, 76, 0, 1792 * 1024)
            a("s_lshl_b32 s94, s2, 3")
            a("s_add_u32 s94, s94, s3")
            a("s_mul_i32 s96, s94, 896")
            a("v_lshlrev_b32 v29, 7, v0")
            a("s_mov_b64 exec, 0x7f")
            vm.issue("buffer_load_dword v30, v29, s[28:31], s96 offen ; dummy", "pf")
            srd(a, 28, 78, 0, 512 * 1024)
            a("s_lshl_b32 s96, s94, 8")
            a("s_mov_b64 exec, 3")
            vm.issue("buffer_load_dword v30, v29, s[28:31], s96 offen ; dummy", "pf")
            a("s_mov_b64 exec, -1")
        elif isinstance(where, tuple):
            g, n = where
            if g < 30:
                E_ = min(ab3.EARLY.values())
                if SETG < 0 or g < SETG or g >= E_: return []
                n = -(-len(chunks["S"]) // (E_ - g))
                while n < len(chunks["S"]) and chunks["S"][n][1].startswith(("s_cselect", "s_addc")): n += 1
                L = chunks["S"][:n]; chunks["S"] = chunks["S"][n:]
                if g == E_ - 1: assert not chunks["S"]
                return L
            if g < 44: return []
            if "L" not in chunks: chunks["L"] = []; chunks["V"] = cap(setup2b)
            key = "V"
            if key == "V" and g < 74: return []
            while n < len(chunks[key]) and chunks[key][n][1].startswith(("s_cselect", "s_addc")): n += 1
            L = chunks[key][:n]; chunks[key] = chunks[key][n:]
            return L
        elif where == "pre_h":
            a("s_setprio 3")
            if SPLIT: ldq(vm, 2); ldq(vm, 3); ldV(vm, 0)
    ENTRY = ["Q", ("K", 0), "Q", "Q", "Q", ("V", 0), ("V", 0), ("K", 1), ("V", 1), ("V", 1), "h", "h"]
    def tail(kind, vm):
        assert vm.ops[-12:] == ENTRY, vm.ops
        if kind != "P": a("s_branch KF_C")
    a("s_load_dwordx2 s[100:101], s[0:1], 72")
    a("s_load_dwordx2 s[76:77], s[0:1], 48")
    a("s_load_dwordx2 s[78:79], s[0:1], 16")
    phase_ab(a, tail, hook)
    a.label("KF_C")
    gen1.stamp(a, 5)
    vm = VM(a); vm.ops = list(ENTRY)
    lg = VM(a, "lgkmcnt", 15)
    a("s_load_dwordx2 s[12:13], s[0:1], 64")
    def QK(sl, kb, sb): a("v_mfma_f32_32x32x16_bf16 %s, %s, %s, 0" % (vr(S[sb], 16), vr(K[kb], 4), vr(Q + 4 * sl, 4)))
    def PV(sl, vb, sb, j): a("v_smfmac_f32_32x32x32_bf16 %s, %s, %s, v%d" % (vr(O + 16 * sl, 16), vr(V[vb] + 4 * j, 4), vr(S[sb] + 8 * j, 8), vIX))
    def ZERO(r): a("v_mfma_f32_32x32x16_bf16 %s, %s, %s, 0" % (vr(r, 16), vr(vZ, 4), vr(vZ, 4)))
    for i in range(4): a("v_mov_b32 v%d, 0" % (vZ + i))
    vm.wait(("K", 0))
    QK(0, 0, 0)
    for i in range(4): ZERO(O + 16 * i)
    a("s_lshr_b32 s38, s89, 1")
    a("s_lshl_b32 s38, s38, 11")
    a("v_and_b32 v%d, 15, v0" % vPO)
    a("v_lshl_add_u32 v%d, v%d, 7, s38" % (vPO, vPO))
    a("s_mov_b32 s96, 32768")
    a("s_lshl_b32 s44, s89, 1")
    a("s_add_u32 s44, s44, s62")
    a("s_mul_i32 s38, s44, 112")
    a("s_mul_i32 s39, s63, 28")
    a("s_add_u32 s38, s38, s39")
    a("s_lshl_b32 s38, s38, 10")
    a("s_add_u32 s38, s38, %s" % hx(HF))
    srd(a, 32, 14, "s38", 28 * 1024)
    a("s_lshl_b32 s38, s39, 14")
    a("s_lshl_b32 s45, s88, 7")
    a("s_add_u32 s38, s38, s45")
    a("s_sub_u32 s39, %d, s38" % (1792 * 1024))
    a("s_waitcnt lgkmcnt(0)")
    srd(a, 48, 76, "s38", "s39")
    srd(a, 40, 78, 0, 512 * 1024)
    FLG = 161792
    vF, vFA, vFB, vFR = 232, 233, 234, 235
    vRW = 236
    def ldH(b, k, so="s20"):
        vm.issue("buffer_load_dwordx4 %s, v1, s[32:35], %s offen offset:%d%s" % (vr(HB_ + 8 * b + 4 * k, 4), so, 1024 * k, SC), ("H", b, k))
    def ldW(b, k):
        if k == 0:
            a("s_and_b32 s20, s98, 15")
            a("s_lshr_b64 s[98:99], s[98:99], 4")
            a("s_add_u32 m0, s17, %d" % (b * 16384))
            a("s_lshl_b32 s21, s20, 15")
            a("s_lshl_b32 s20, s20, 11")
        vm.issue("buffer_load_dwordx4 v%d, s[48:51], s21 offen offset:%d lds" % (vWA + k, 2048 * k), ("W", b))
    def rdW(b, k):
        for ft in range(2):
            for q in range(2):
                lg.issue("ds_read_b64_tr_b16 %s, v%d offset:%d" % (vr(WF + 8 * k + 4 * ft + 2 * q, 2), vT0 + ft, b * 16384 + k * 2048 + q * 1024), ("w", k, ft))
    def DM(b, n):
        k, ft = n // 2, n % 2
        lg.wait(("w", k, ft))
        vm.wait(("H", b, k))
        d = vr(DA + 16 * ft, 16)
        a("v_mfma_f32_32x32x16_bf16 %s, %s, %s, %s" % (d, vr(WF + 8 * k + 4 * ft, 4), vr(HB_ + 8 * b + 4 * k, 4), d))
    def signal(b):
        a("v_add_u32 v%d, 1, v%d" % (vF, vF))
        vm.wait(("W", b))
        lg.issue("ds_write_b32 v%d, v%d" % (vFA, vF), "fw")
    def peek(): lg.issue("ds_read_b32 v%d, v%d" % (vFR, vFB), "fr")
    def precheck():
        lg.wait("fr")
        a("v_cmp_lt_u32 vcc, v%d, v%d" % (vFR, vF))
    def check(lab):
        a("s_cbranch_vccnz %s" % lab)
        a.label(lab + "_OK")
        def slow():
            a.label(lab)
            a("s_mov_b32 s38, 0x40000")
            a("s_setprio 0")
            a.label(lab + "_L")
            a("s_sleep 1")
            a("ds_read_b32 v%d, v%d" % (vFR, vFB))
            a("s_sub_u32 s38, s38, 1")
            a("s_waitcnt lgkmcnt(0)")
            a("v_cmp_lt_u32 vcc, v%d, v%d" % (vFR, vF))
            a("s_cbranch_scc1 %s_GO" % lab)
            a("s_cbranch_vccnz %s_L" % lab)
            a.label(lab + "_GO")
            a("s_setprio 3")
            a("s_branch %s_OK" % lab)
        outl[lab] = slow
    outl = {}
    def give(s):
        lg.issue("ds_write_b128 v%d, %s" % (vRW + 2 * s, vr(O + 16 * s, 4)), "gv")
        lg.issue("ds_write_b128 v%d, %s offset:1024" % (vRW + 2 * s, vr(O + 16 * s + 4, 4)), "gv")
        lg.issue("ds_write_b32 v%d, v%d offset:2048" % (vRW + 2 * s + 1, O + 16 * s + 8), "gv")
    def keytile(b, first=False, down=False, loop=None, top=None, extra=None, pre=False, lab=None, last=False, nobar=False):
        if top:
            top("pre")
            if not nobar: a("s_barrier")
            top("post")
        for sl in range(4):
            sb = sl % 2
            def E(i): a("v_exp_f32 v%d, v%d" % (S[sb] + i, S[sb] + i))
            if LADDER == 3:
                a("s_setprio %d" % (1 - sl % 2 if sl < 2 else 0)) if sl in (0, 1) else None
            elif LADDER == 4:
                if sl % 2 == 0: a("s_setprio %d" % (1 - sl // 2))
            elif LADDER == 2:
                if sl % 2 == 0: a("s_setprio %d" % (3 - 2 * b - sl // 2))
            elif LADDER: a("s_setprio %d" % (3 - sl))
            elif first and sl == 0: a("s_setprio 0")
            if down and sl == 0:
                if "nosync" not in XP: check(lab)
                if "nord" not in XP: rdW(b, 0)
            E(0); E(1)
            if sl == 0:
                if not first:
                    PV(3, 1 - b, 1, 1)
                    if not (last and b == 1): ldV(vm, 1 - b)
            else: PV(sl - 1, b, 1 - sb, 1)
            if down and sl == 1 and "nord" not in XP: rdW(b, 1)
            E(2); E(3); E(4)
            if sl == 3:
                if not (last and b == 1):
                    vm.wait(("K", 1 - b))
                    QK(0, 1 - b, 0)
            else:
                if first: vm.wait("Q")
                QK(sl + 1, b, 1 - sb)
                if sl == 2 and not last: ldK(vm, b)
            if (down or pre) and sl < 2 and not (down and "nold" in XP): ldW(b, sl)
            fin_ = last and b == 1
            if (down or pre == 2) and sl == 2 and not fin_: signal(1 - b)
            if (down or pre == 2) and sl == 3 and not fin_: peek()
            if fin_ and sl == 2:
                lg.wait(("w", 1, 1))
                a("s_barrier")
                give(0)
            for i in range(5, 10): E(i)
            if sl == 0: vm.wait(("V", b))
            if last and b == 1 and sl == 3: give(1)
            PV(sl, b, sb, 0)
            for i in range(10, DMP): E(i)
            if extra: extra(sl)
            if down:
                if "nodm" not in XP: DM(b, sl)
                if sl % 2 == 1 and "nold" not in XP: ldH(b, sl // 2)
                if sl == 3:
                    if b == 1:
                        a("v_xor_b32 v%d, 0x8000, v%d" % (vT0, vT0))
                        a("v_xor_b32 v%d, 0x8000, v%d" % (vT1, vT1))
                        a("s_xor_b32 s17, s17, 0x8000")
            if loop and sl == 3:
                a("s_sub_u32 s46, s46, 1"); a("s_cmp_lg_u32 s46, 0")
            for i in range(DMP, 14): E(i)
            if (down or pre == 2) and sl == 3 and not fin_: precheck()
            if fin_ and sl == 2: pass
            E(14); E(15)
            if fin_ and sl == 2: give(1) if False else None
            if fin_ and sl == 3: give(2)
    def pubH(tag, off):
        def f(when):
            if when == "pre":
                vm.wait(tag); lg.wait("fw")
            else:
                a("s_add_u32 s38, s59, %d" % off)
                a("v_mov_b32 v4, 1")
                a("s_mov_b64 exec, 1")
                vm.issue("buffer_store_dword v4, v%d, s[80:83], s38 offen sc1" % vLD, "flag")
                a("s_mov_b64 exec, -1")
        return f
    def wo_stage(i):
        a("s_add_u32 m0, s60, %d" % (i * 2048))
        a("s_add_u32 s38, s47, %d" % (i * 16384))
        vm.issue("buffer_load_dwordx4 v%d, s[40:43], s38 offen lds" % vW0, "wo")
        a("s_add_u32 s38, s38, %d" % (8192 - 1024))
        vm.issue("buffer_load_dwordx4 v%d, s[40:43], s38 offen offset:1024 lds" % vW0, "wo")
    a("s_lshl_b32 s60, s3, 13")
    a("s_lshl_b32 s47, s3, 16")
    a("s_add_u32 s47, s47, s45")
    def ex0(sl):
        if sl < 2: ZERO(DA + 16 * sl)
        if sl == 2:
            a("s_lshl_b32 s38, s3, 8")
            a("s_add_u32 s38, s38, %d" % FLG)
            a("v_lshl_add_u32 v%d, v0, 2, s38" % vFA)
            a("v_xor_b32 v%d, 1024, v%d" % (vFB, vFA))
            a("v_mov_b32 v%d, 0" % vF)
            lg.issue("ds_write_b32 v%d, v%d" % (vFA, vF), "fw")
            if NOB3:
                a("v_mov_b32 v247, 153600")
                lg.issue("ds_write_b32 v247, v%d" % vF, "fw")
    keytile(0, first=True, extra=ex0)
    gen1.stamp(a, "k0")
    keytile(1, top=pubH("Q", 0), extra=wo_stage)
    gen1.stamp(a, "k1")
    def ex2(sl):
        if sl == 2: poll(vm, "s[80:83]")
        if sl < 3:
            s = sl + 1
            a("s_add_u32 s28, s63, %d" % s)
            a("s_and_b32 s28, s28, 3")
            a("s_lshl_b32 s38, s62, 2")
            a("s_add_u32 s28, s28, s38")
            a("s_mul_i32 s28, s28, 3")
            a("s_add_u32 s28, s28, %d" % (s - 1))
            a("s_mul_i32 s28, s28, 2304")
            a("s_add_u32 s28, s28, %d" % SCR)
            a("v_add_u32 v%d, s28, v1" % (vRW + 2 * sl))
            a("v_lshl_add_u32 v%d, v0, 2, s28" % (vRW + 2 * sl + 1))
        else:
            a("s_mul_i32 s28, s3, %d" % (3 * 2304))
            a("s_add_u32 s28, s28, %d" % SCR)
            a("v_add_u32 v%d, s28, v1" % (vRW + 6))
            a("v_lshl_add_u32 v%d, v0, 2, s28" % (vRW + 7))
    keytile(0, pre=1, extra=ex2)
    a("s_mov_b32 s36, s20")
    gen1.stamp(a, "k2")
    def top3(when):
        if not NOB3 and when != "now": pubH("h", 32768)(when)
        if when == "post" and SHT < 0 or when == "now":
            spin("KF_SH", 1, vm, False, "s[80:83]")
            gen1.stamp(a, "sh1")
            ldH(0, 0, "s36"); ldH(0, 1, "s36")
    def ex3(sl):
        if sl == SHT: top3("now")
        if NOB3 and sl == 0:
            vm.wait("h")
            a("v_mov_b32 v5, 1")
            a("s_mov_b64 exec, 1")
            lg.issue("ds_add_rtn_u32 v6, v247, v5", "cnt")
            a("s_mov_b64 exec, -1")
        if NOB3 and sl == 1:
            a("s_lshl_b32 s38, s18, 4")
            a("s_add_u32 s38, s38, s19")
            a("s_lshl_b32 s38, s38, 7")
            a("s_add_u32 s38, s38, 32768")
            lg.wait("cnt")
            a("v_xor_b32 v6, 7, v6")
            a("v_lshlrev_b32 v6, 16, v6")
            a("s_mov_b64 exec, 1")
            vm.issue("buffer_store_dword v5, v6, s[80:83], s38 offen sc1", "flag")
            a("s_mov_b64 exec, -1")
        if sl % 2 == 1: ldH(1, sl // 2)
        if sl == 0: srd(a, 52, 14, OF, 2 * MB)
        if sl == 2:
            srd(a, 24, 14, GG, 16384)
            a("s_lshl_b32 s39, s44, 8")
            a("v_and_b32 v4, 31, v0")
            a("v_lshlrev_b32 v4, 3, v4")
            vm.issue("buffer_load_dword v245, v4, s[24:27], s39 offen offset:4%s" % SC, "g")
            a("s_lshl_b32 s39, s88, 3")
            a("s_add_u32 s39, s39, s3")
            a("s_lshl_b32 s39, s39, 8")
            vm.issue("buffer_load_dword v246, v4, s[24:27], s39 offen%s" % SC, "g")
        if sl == 3:
            a("s_xor_b32 s17, s17, 0x8000")
    keytile(1, top=top3, pre=2, extra=ex3, nobar=NOB3)
    gen1.stamp(a, "k3")
    a("s_mov_b32 s46, 5")
    a("s_mov_b32 s37, 3")
    def ev():
        a.label("KF_EV")
        a("s_sub_u32 s37, s37, 1")
        a("s_cmp_eq_u32 s37, 2")
        a("s_cbranch_scc0 KF_EV2")
        a("buffer_load_dword v%d, v%d, s[80:83], s96 offen sc1" % (vP, vPO))
        a("s_branch KF_EVR")
        a.label("KF_EV2")
        a("s_mov_b32 s37, 0")
        a("s_waitcnt vmcnt(14)")
        spin("KF_S2", 1, None, False, "s[80:83]", "s96", " ; kv-ok")
        a("v_cmp_lt_u32 vcc, v%d, v%d" % (vFR, vF))
        a("s_nop 4")
        a("s_branch KF_EVR")
    outl["ev"] = ev
    def it():
        a("s_cmp_eq_u32 s46, s37")
        a("s_cbranch_scc1 KF_EV")
        a.label("KF_EVR")
        keytile(0, down=True, lab="KF_P0"); keytile(1, down=True, loop=True, lab="KF_P1")
        a("s_cbranch_scc1 KF_LB")
    body = steady_loop(a, [vm, lg], it)
    a(".p2align 6")
    a.label("KF_LB")
    a.lines += body
    keytile(0, down=True, lab="KF_P2", last=True); keytile(1, down=True, lab="KF_P3", last=True)
    PV(3, 1, 1, 1)
    if LADDER: a("s_setprio 3")
    gen1.stamp(a, 7)
    OW = O + 48
    vm.wait(("W", 0), ("W", 1))
    a("s_waitcnt lgkmcnt(0)"); lg.ops = []
    a("s_barrier")
    gen1.stamp(a, "rb")
    for s in range(3):
        a("ds_read_b128 %s, v%d offset:%d" % (vr(O + 16 * s, 4), vRW + 6, s * 2304))
        a("ds_read_b128 %s, v%d offset:%d" % (vr(O + 16 * s + 4, 4), vRW + 6, s * 2304 + 1024))
        a("ds_read_b32 v%d, v%d offset:%d" % (O + 16 * s + 8, vRW + 7, s * 2304 + 2048))
    a("s_mov_b32 s38, %s" % hx(f2u(2.0 ** -60)))
    a("v_mov_b32 v5, %s" % hx(f2u(2.0 ** 40)))
    for s in range(3):
        a("s_waitcnt lgkmcnt(%d)" % (6 - 3 * s))
        for i in (8, 0, 1, 2, 3, 4, 5, 6, 7): a("v_add_f32 v%d, v%d, v%d" % (OW + i, OW + i, O + 16 * s + i))
    a.label("KF_CHK")
    a("v_mov_b32 v4, v%d" % (OW + 8))
    a("v_pk_add_f32 v[6:7], %s, %s" % (vr(OW, 2), vr(OW + 2, 2)))
    a("v_pk_add_f32 v[8:9], %s, %s" % (vr(OW + 4, 2), vr(OW + 6, 2)))
    a("v_permlane32_swap_b32 v%d, v4" % (OW + 8))
    a("v_pk_add_f32 v[6:7], v[6:7], v[8:9]")
    a("s_cmp_eq_u32 s46, 1")
    a("v_rcp_f32 v4, v%d" % (OW + 8))
    a("s_cbranch_scc1 KF_NORM")
    a("v_add_f32 v6, v6, v7")
    a("v_med3_f32 v5, v%d, s38, v5" % (OW + 8))
    a("v_fmac_f32 v5, 0, v6")
    a("v_cmp_eq_f32 vcc, v5, v%d" % (OW + 8))
    a("s_nop 1")
    a("s_cmp_eq_u64 vcc, -1")
    a("s_cbranch_scc0 KF_SLOW")
    a.label("KF_NORM")
    a("v_mul_f32 v4, v4, v246")
    for i in range(8): a("v_mul_f32 v%d, v%d, v4" % (OW + i, OW + i))
    for i in range(4): a("v_cvt_pk_bf16_f32 v%d, v%d, v%d" % (S[0] + i, OW + 2 * i, OW + 2 * i + 1))
    for i in range(4): a("v_min_u32 v%d, -2, v%d" % (S[0] + i, S[0] + i))
    vm.issue("buffer_store_dwordx4 %s, v1, s[52:55], s61 offen%s" % (vr(S[0], 4), SC), "o")
    gen1.stamp(a, "ost")
    WO = 64; OFR = 128; vG = 244; YA = 32
    a("s_lshl_b32 s60, s44, 15")
    a("s_lshl_b32 s39, s63, 13")
    a("s_add_u32 s60, s60, s39")
    a("s_add_u32 s47, s60, 4096")
    def ldO(i): return "buffer_load_dwordx4 %s, v1, s[52:55], %s offen offset:%d%s" % (vr(OFR + 4 * i, 4), "s60" if i < 4 else "s47", (i % 4) * 1024, SC)
    rdW(0, 0); rdW(0, 1)
    a("v_and_b32 v4, 31, v0")
    a("v_and_b32 v7, 0xfff, v%d" % vT0)
    a("s_lshl_b32 s39, s63, 14")
    a("v_add_u32 v7, s39, v7")
    a("v_xor_b32 v8, 64, v7")
    def rdWo(i):
        for ft in range(2):
            for q in range(2):
                lg.issue("ds_read_b64_tr_b16 %s, v%d offset:%d" % (vr(WO + 8 * i + 4 * ft + 2 * q, 2), 7 + ft, i * 2048 + q * 1024), ("wof", i))
    def lo(i): vm.issue(ldO(i), ("of", i))
    if EARLYO:
        vm.wait(("H", 1, 1))
        lo(0); DM(0, 0); lo(1); DM(0, 1); rdW(1, 0)
        lo(2); DM(0, 2); lo(3); DM(0, 3); rdW(1, 1)
        rdWo(0)
        lo(4); DM(1, 0); lo(5); DM(1, 1)
        rdWo(1); rdWo(2)
        lo(6); DM(1, 2); lo(7); DM(1, 3)
    else:
        DM(0, 0); DM(0, 1); rdW(1, 0)
        DM(0, 2); DM(0, 3); rdW(1, 1)
        rdWo(0)
        DM(1, 0); DM(1, 1)
        rdWo(1); rdWo(2)
        DM(1, 2); DM(1, 3)
        for i in range(8): lo(i)
    for i in range(3, 8):
        lg.wait(("wof", i - 3)); rdWo(i)
    a("v_lshlrev_b32 v6, 10, v4")
    a("v_lshrrev_b32 v9, 5, v0")
    a("v_lshl_add_u32 v6, v9, 4, v6")
    a("s_lshl_b32 s61, s44, 15")
    a("s_add_u32 s61, s61, s45")
    a("s_lshl_b32 s39, s63, 5")
    a("s_add_u32 s61, s61, s39")
    srd(a, 4, 12, 0, 2 * MB)
    a("s_mul_i32 s38, s62, %d" % (4 * 6912))
    a("s_add_u32 s38, s38, %d" % SCR)
    a("v_add_u32 v10, s38, v1")
    vm.wait("g")
    for i in range(32): a("v_mul_f32 v%d, v%d, v%d" % (DA + i, DA + i, vG + 1))
    lg.wait(("wof", 7))
    gen1.stamp(a, "so0")
    a("s_mov_b32 s38, 0x8000")
    def val(i):
        r = OFR + 4 * i
        a("v_max3_u32 v11, v%d, v%d, v%d" % (r, r + 1, r + 2))
        a("v_max_u32 v11, v11, v%d" % (r + 3))
        a("v_cmp_eq_u32 vcc, -1, v11")
    def mm(i):
        for ft in range(2):
            d = vr(DA + 16 * ft, 16)
            a("v_mfma_f32_32x32x16_bf16 %s, %s, %s, %s" % (d, vr(WO + 8 * i + 4 * ft, 4), vr(OFR + 4 * i, 4), d))
    if ORDERED:
        for i in range(8):
            vm.wait(("of", i))
            lab = "KF_O%d" % i
            a.label(lab)
            val(i)
            a("s_nop 0")
            a("s_cbranch_vccnz %s_RE" % lab)
            a.label(lab + "_OK")
            def slow(i=i, lab=lab):
                a.label(lab + "_RE")
                a("s_sub_u32 s38, s38, 1")
                a("s_cbranch_scc1 %s_GU" % lab)
                a("s_sleep 1")
                for j in range(i, 8): a(ldO(j))
                a("s_waitcnt vmcnt(0)")
                a("s_branch %s" % lab)
                a.label(lab + "_GU")
                a("s_mov_b32 s38, 0")
                a("s_branch %s_OK" % lab)
            outl[lab] = slow
            mm(i)
    else:
        a("s_mov_b32 s39, 0")
        for i in range(8):
            vm.wait(("of", i))
            val(i)
            a("s_nop 0")
            a("s_cbranch_vccnz KF_O%d_LATE" % i)
            mm(i)
            a.label("KF_O%d_NEXT" % i)
            def late(i=i):
                a.label("KF_O%d_LATE" % i)
                a("s_bitset1_b32 s39, %d" % i)
                a("s_branch KF_O%d_NEXT" % i)
            outl["late%d" % i] = late
        a("s_cmp_lg_u32 s39, 0")
        a("s_cbranch_scc1 KF_OR")
        a.label("KF_OD")
        def retry():
            a.label("KF_OR")
            for i in range(8):
                a("s_bitcmp1_b32 s39, %d" % i)
                a("s_cbranch_scc0 KF_OL%d" % i)
                a(ldO(i))
                a.label("KF_OL%d" % i)
            a("s_sub_u32 s38, s38, 1")
            a("s_cbranch_scc1 KF_OD")
            a("s_waitcnt vmcnt(0)")
            for i in range(8):
                a("s_bitcmp1_b32 s39, %d" % i)
                a("s_cbranch_scc0 KF_OM%d" % i)
                val(i)
                a("s_nop 0")
                a("s_cbranch_vccnz KF_OM%d" % i)
                mm(i)
                a("s_bitset0_b32 s39, %d" % i)
                a.label("KF_OM%d" % i)
            a("s_cmp_lg_u32 s39, 0")
            a("s_cbranch_scc1 KF_OR")
            a("s_branch KF_OD")
        outl["retry"] = retry
    gen1.stamp(a, "so1")
    a("s_cmp_ge_u32 s63, 2")
    a("s_nop 9")
    a("s_cbranch_scc1 KF_X2")
    a("s_cmp_eq_u32 s63, 1")
    a("s_cbranch_scc1 KF_X1")
    def fin(kq):
        idx = lambda src, dst: dst if dst < src else dst - 1
        for p in range(4):
            if p == kq: continue
            a("ds_write_b128 v%d, %s offset:%d" % (vRW + 6, vr(DA + 8 * p, 4), idx(kq, p) * 2048))
            a("ds_write_b128 v%d, %s offset:%d" % (vRW + 6, vr(DA + 8 * p + 4, 4), idx(kq, p) * 2048 + 1024))
        a("s_waitcnt lgkmcnt(0)")
        a("s_barrier")
        srcs = [s for s in range(4) if s != kq]
        for n, s in enumerate(srcs):
            a("ds_read_b128 %s, v10 offset:%d" % (vr(YA + 8 * n, 4), s * 6912 + idx(s, kq) * 2048))
            a("ds_read_b128 %s, v10 offset:%d" % (vr(YA + 8 * n + 4, 4), s * 6912 + idx(s, kq) * 2048 + 1024))
        a("s_waitcnt lgkmcnt(4)")
        for i in range(8): a("v_add_f32 v%d, v%d, v%d" % (YA + i, YA + i, DA + 8 * kq + i))
        a("s_waitcnt lgkmcnt(0)")
        for i in range(8): a("v_add_f32 v%d, v%d, v%d" % (YA + 8 + i, YA + 8 + i, YA + 16 + i))
        for i in range(8): a("v_add_f32 v%d, v%d, v%d" % (YA + i, YA + i, YA + 8 + i))
        for i in range(4): a("v_cvt_pk_bf16_f32 v%d, v%d, v%d" % (YA + 24 + i, YA + 2 * i, YA + 2 * i + 1))
        a("s_nop 1")
        a("v_permlane32_swap_b32 v%d, v%d" % (YA + 24, YA + 26))
        a("v_permlane32_swap_b32 v%d, v%d" % (YA + 25, YA + 27))
        a("buffer_store_dwordx4 %s, v6, s[4:7], s61 offen%s" % (vr(YA + 24, 4), OSC))
        gen1.stamp(a, "fin")
        gen1.stamp_end(a, 0, 14, 5)
        a("s_endpgm")
    fin(0)
    a.label("KF_X1"); fin(1)
    a.label("KF_X2")
    a("s_cmp_eq_u32 s63, 3")
    a("s_cbranch_scc1 KF_X3")
    fin(2)
    a.label("KF_X3"); fin(3)
    a.label("KF_END")
    a("s_endpgm")
    for f in list(outl.values()): f()
    a("s_endpgm")
    a.label("KF_SLOW")
    vm2 = VM(a)
    CB = O
    a("s_waitcnt vmcnt(0)")
    a("s_add_u32 s72, s73, %s" % hx(KF))
    srd(a, 8, 14, "s72", 65536)
    a("s_add_u32 s72, s73, %s" % hx(VF))
    srd(a, 64, 14, "s72", 65536)
    a("s_mov_b32 s72, 0")
    a("v_mov_b32 v4, 0xff800000")
    a("s_mov_b32 s46, 64")
    a.label("KF_SL1")
    ldK(vm2, 0)
    a("s_add_u32 s72, s72, 1024")
    a("s_waitcnt vmcnt(0)")
    QK(3, 0, 0)
    a("s_nop 15")
    for i in range(8): a("v_max3_f32 v4, v4, v%d, v%d" % (S[0] + 2 * i, S[0] + 2 * i + 1))
    a("s_sub_u32 s46, s46, 1"); a("s_cmp_lg_u32 s46, 0")
    a("s_cbranch_scc1 KF_SL1")
    a("v_mov_b32 v5, v4")
    a("s_nop 1")
    a("v_permlane32_swap_b32 v4, v5")
    a("s_nop 1")
    a("v_max_f32 v4, v4, v5")
    for i in range(16): a("v_sub_f32 v%d, 0, v4" % (CB + i))
    for i in range(16): a("v_mov_b32 v%d, 0" % (O + 48 + i))
    a("s_mov_b32 s72, 0")
    a("s_mov_b32 s46, 65")
    a.label("KF_SL2")
    ldK(vm2, 0); ldV(vm2, 0, False)
    a("s_waitcnt vmcnt(0)")
    a("v_mfma_f32_32x32x16_bf16 %s, %s, %s, %s" % (vr(S[0], 16), vr(K[0], 4), vr(Q + 12, 4), vr(CB, 16)))
    a("s_nop 15")
    for i in range(16): a("v_exp_f32 v%d, v%d" % (S[0] + i, S[0] + i))
    a("s_nop 1")
    PV(3, 0, 0, 0); PV(3, 0, 0, 1)
    a("s_sub_u32 s46, s46, 1"); a("s_cmp_lg_u32 s46, 1")
    a("s_cbranch_scc1 KF_SL2")
    a("s_nop 15")
    a("s_branch KF_CHK")
    a.label("KF_LAST")
    a("s_endpgm")
    return NAME, 256, "grid=(256,1,1) block=(512,1,1) lds=163840"

def parse(argv):
    global KVROT, OSC, LADDER, HPUB, LATE
    global WARM, NOWAIT, SPLIT, DMP, ORDERED, EARLYO, NOB3, SHT, SETG, OWNQ
    if 'noownq' in argv: OWNQ = False; ab3.BASES = -1
    for x in argv:
        if x.startswith('setg='): SETG = int(x[5:])
    for x in argv:
        if x.startswith('sht='): SHT = int(x[4:])
    if 'b3' in argv: NOB3 = False
    if 'lateo' in argv: EARLYO = False
    if 'ordered' in argv: ORDERED = True
    for x in argv:
        if x.startswith('dmp='): DMP = int(x[4:])
    if 'nosplit' in argv: SPLIT = 0
    if 'wait' in argv: NOWAIT = False
    if 'nowarm' in argv: WARM = False
    if "stamp" in argv: gen1.STAMP = True
    if "rt" in argv: gen1.RT = True
    gen3.GST = [32]
    for x in argv:
        if x.startswith("rot="): ab3.ROT = int(x[4:])
        if x.startswith("epr="): ab3.EPR = int(x[4:])
        if x == "pk": ab3.PK = True
        if x.startswith("bases="): ab3.BASES = int(x[6:])
        if x == "noaltr": ab3.ALTR = False
        if x == "swarm": ab3.SWARM = True
        if x.startswith("warmg="): ab3.WARMG = int(x[6:])
        if x.startswith("gcg="): ab3.GCG = int(x[4:])
        if x == "iwarm": ab3.IWARM = True
        if x.startswith("prio="): ab3.PRIO, ab3.PRG = [int(y) for y in x[5:].split(",")]
        if x.startswith("stg="): ab3.STG = int(x[4:])
        if x.startswith("eprr="): ab3.EPRR = int(x[5:])
        if x.startswith("ch="): ab3.CH = int(x[3:])
        if x.startswith("ldg="): ab3.LDG = dict(zip(("P", "R"), [int(y) for y in x[4:].split(",")]))
        if x.startswith("pld="): ab3.PLD = int(x[4:])
        if x.startswith("early="): ab3.EARLY = dict(zip(("P", "R"), [int(y) for y in x[6:].split(",")]))
        if x.startswith("d2="): ab3.D2 = int(x[3:])
        if x.startswith("pubs="): ab3.PUBS = dict(zip(("P", "R"), [int(y) for y in x[5:].split(",")]))
        if x.startswith("gst="): gen3.GST = [int(y) for y in x[4:].split(",")]
        if x.startswith("smap="): gen1.SMAP = [int(y) if y.isdigit() else y for y in x[5:].split(",")]
        if x == "nokvrot": KVROT = False
        if x == "noladder": LADDER = False
        if x.startswith("ladder="): LADDER = int(x[7:])
        if x == "ns4": gen3.NS4 = True
        if x.startswith("d8="): gen3.D8AT = int(x[3:])
        if x.startswith("lead2="): gen3.LEAD2 = int(x[6:])
        if x == "fsync": gen3.FSYNC = True
        if x.startswith("sig="): gen3.SIG1, gen3.SIG2 = [int(y) for y in x[4:].split(",")]
        if x.startswith("xp="): XP.extend(x[3:].split(",")); ab3.XP = XP
        if x.startswith("hpub="): HPUB = int(x[5:])
        if x.startswith("osc="): OSC = " " + x[4:]
if __name__ == "__main__":
    parse(sys.argv)
    build1(sys.argv[1], kf, aslist=("list" in sys.argv))
```

```python
import sys
sys.path.insert(0, "gen")
import gen1
from gen1 import *
from asmlib import *
from gen2 import gate_code
SC = " sc1"
SLOT = 32768
GCG = -1
EPR = 7
PUBS = {"P": 12, "R": 12}
ROT = 8
D8AT = {"P": -1, "R": -1}
HP = 2
BASES = -1
ALTP = False
ALTR = True
CHR = 2
EP1R = 4
SWARM = False
IWARM = True
PRIO = 0
PRG = 32
STG = 3
XP = []
PK = False
CH = 3
D2 = 3
PLD = 5; LDG = {"P": 93, "R": 93}; WARMG = 68
EARLY = {"P": 30, "R": 30}
EPRR = 7

def phase_ab(a, tail, hook):
    X = 128; WF = 32; E = 128
    SET = [64, 80, 96, 112]
    vAX, vT, vST, vAW1, vA2, vAM, vSV, vD, vDM = 2, 3, 4, 5, 7, 9, 10, 11, 16
    a("v_lshrrev_b32 v20, 4, v0")
    a("v_and_b32 v21, 7, v0")
    a("v_xor_b32 v22, v21, v20")
    a("v_lshlrev_b32 v22, 4, v22")
    a("v_lshrrev_b32 v23, 3, v0")
    a("v_lshl_add_u32 v22, v23, 10, v22")
    a("s_lshl_b32 s58, s3, 14")
    a("v_add_u32 v%d, s58, v22" % vD)
    a("v_xor_b32 v%d, 64, v%d" % (vD + 1, vD))
    a("v_add_u32 v%d, %d, v%d" % (vD + 1, 7168, vD + 1))
    a("v_and_b32 v22, 1, v20")
    a("v_lshlrev_b32 v22, 2, v22")
    a("v_xor_b32 v22, v22, v21")
    a("v_lshlrev_b32 v22, 4, v22")
    a("s_lshl_b32 s58, s3, 3")
    a("v_add_u32 v23, s58, v23")
    a("v_mul_u32_u24 v24, 3072, v23")
    a("v_add_u32 v%d, v24, v22" % (vD + 2))
    a("s_lshl_b32 s56, s3, 11")
    a("s_lshl_b32 s57, s3, 10")
    a("s_lshl_b32 s44, s18, 17")
    a("s_lshl_b32 s45, s19, 7")
    a("s_sub_u32 s46, %d, s45" % (512 * 3072))
    a("s_lshl_b32 s50, s55, 1")
    a("s_add_u32 s50, s50, s18")
    if ROT != 8:
        a("s_add_u32 s50, s55, s18")
        a("s_and_b32 s50, s50, %d" % (ROT - 1))
        a("s_mul_i32 s50, s50, %d" % (8 // ROT))
    a("s_lshl_b32 s51, s54, 8")
    a("s_sub_u32 s51, 1920, s51")
    a("s_add_u32 s28, s55, 1")
    a("s_waitcnt lgkmcnt(0)")
    gen1.stamp(a, 1)
    if IWARM:
        a("s_getpc_b64 s[90:91]")
        a.label("AB_PC")
        a("s_lshl_b32 s92, s17, 3")
        a("s_add_u32 s92, s92, s3")
        a("s_lshl_b32 s92, s92, 7")
        a("s_min_u32 s92, s92, KF_LAST-AB_PC")
        a("s_load_dword s53, s[90:91], s92")
    srd(a, 20, 4, "s44", 128 * 1024)
    srd(a, 24, 6, "s45", "s46")
    a("s_bitcmp1_b32 s28, 1")
    a("s_cbranch_scc0 AB_P")

    def stream(kind):
        P = kind == "P"
        vm = VM(a); lg = VM(a, "lgkmcnt", 15)
        d8 = D8AT[kind]
        SL = [t % 5 for t in range(16)] if d8 < 0 else [0, 1, 2, 3, 0, 1, 2, 3, 4, 0, 1, 2, 3, 4, 0, 1]
        def base(s): return SL[s] * SLOT
        def after(t):
            prev = [u for u in range(t) if SL[u] == SL[t]]
            return max(prev[-1] + 2 if prev else 0, t - 3, 0)
        def dma(s):
            b = base(s); tag = ("d", s)
            G = []
            def grp(m0, off, txt, pre=None):
                G.append([("s", "s_add_u32 m0, %s, %s" % (m0, hx(off)))] + (pre or [("s", "s_nop 0")]) + [("v", txt)])
            ld = "buffer_load_dwordx4 v%d, s[%d:%d], %s offen offset:%d lds"
            if s < 8:
                pre = [("s", "s_add_u32 s48, s50, %d" % s), ("s", "s_and_b32 s48, s48, 7"),
                       ("s", "s_mul_i32 s49, s48, %d" % (64 * 3072)), ("s", "s_lshl_b32 s48, s48, 7")]
                grp("s56", b, ld % (vD, 20, 23, "s48", 0), pre)
                G.append([("v", ld % (vD + 1, 20, 23, "s48", 1024))])
                grp("s57", b + 16384, ld % (vD + 2, 24, 27, "s49", 0))
                if not P: grp("s57", b + 24576, ld % (vD + 2, 24, 27, "s49", 0), [("s", "s_add_u32 s49, s49, s51")])
            else:
                for c in range(2):
                    pos = (2 * (s - 8) + c) % 8
                    pre = [("s", "s_add_u32 s48, s50, %d" % pos), ("s", "s_and_b32 s48, s48, 7"),
                           ("s", "s_mul_i32 s49, s48, %d" % (64 * 3584)), ("s", "s_add_u32 s49, s49, s%d" % (52 if s < 12 else 97))]
                    if P or (s < 12) == (HP == 2):
                        grp("s57", b + c * 16384, ld % (vD + 3, 40, 43, "s49", 0), pre)
                        grp("s57", b + c * 16384 + 8192, ld % (vD + 4, 44, 47, "s49", 0))
                    else:
                        grp("s57", b + c * 8192, ld % (vDM, 4, 7, "s49", 0), pre)
            return [[(k, t, tag) for (k, t) in g] for g in G]
        def flat(G): return [x for g in G for x in g]
        def emit(it):
            k, t, tag = it
            if k == "v": vm.issue(t, tag)
            elif k == "l": lg.issue(t, tag)
            elif k == "f": t()
            else: a(t)
        gi0, gc0 = gate_code(a, vm, "s[28:31]", "s[20:23]", "s39", X + 112)
        if GCG >= 0:
            for it in flat(dma(0)): emit(it)
        srd(a, 28, 12, 0, 1024)
        a("s_lshl_b32 s60, s19, 3")
        a("s_add_u32 s60, s60, s3")
        a("s_lshl_b32 s39, s60, 10")
        gi0()
        if GCG < 0:
            for it in flat(dma(0)): emit(it)
        a("s_barrier")
        for it in flat(dma(1)): emit(it)
        hook(kind, vm, "init")
        if SWARM:
            a("s_lshl_b32 s38, s2, 3")
            a("s_add_u32 s38, s38, s3")
            a("s_mul_i32 s38, s38, 896")
            a("s_add_u32 s90, s8, s38"); a("s_addc_u32 s91, s9, 0")
            a("s_add_u32 s92, s10, s38"); a("s_addc_u32 s93, s11, 0")
            for i in range(7):
                a("s_load_dword s53, s[90:91], %d" % (128 * i))
                a("s_load_dword s53, s[92:93], %d" % (128 * i))
        a("s_lshl_b32 s58, s55, 3")
        a("s_lshr_b32 s38, 0x140e0800, s58")
        a("s_and_b32 s38, s38, 0xff")
        a("s_lshr_b32 s52, %s, s58" % ("0x00400000" if HP == 2 else "0x00008000"))
        a("s_and_b32 s52, s52, 0xff")
        a("s_lshr_b32 s97, %s, s58" % ("0x80008080" if HP == 2 else "0x80400080"))
        a("s_and_b32 s97, s97, 0xff")
        a("s_mul_i32 s58, s54, 28")
        a("s_add_u32 s58, s58, s38")
        a("s_lshl_b32 s38, s58, 5")
        a("s_sub_u32 s39, %d, s38" % (512 * 3584))
        srd(a, 40, 8, "s38", "s39")
        srd(a, 44, 10, "s38", "s39")
        a("v_mul_u32_u24 v24, 3584, v23")
        a("v_add_u32 v%d, v24, v22" % (vD + 3))
        a("v_xor_b32 v%d, 32, v%d" % (vD + 4, vD + 3))
        if not P:
            a("v_lshrrev_b32 v23, 2, v0")
            a("s_lshl_b32 s38, s36, 4")
            a("v_add_u32 v23, s38, v23")
            a("v_mul_u32_u24 v23, 3584, v23")
            a("v_and_b32 v24, 3, v0")
            a("s_lshl_b32 s38, s37, 1")
            a("v_xor_b32 v24, s38, v24")
            a("s_cmp_eq_u32 s37, 0")
            a("s_cselect_b32 s4, s40, s44")
            a("s_cselect_b32 s5, s41, s45")
            a("s_mov_b32 s6, s42")
            a("s_mov_b32 s7, 0x20000")
            a("v_lshl_add_u32 v%d, v24, 4, v23" % vDM)
        a("v_and_b32 v24, 31, v0")
        a("v_lshrrev_b32 v25, 5, v0")
        a("v_bfe_u32 v26, v0, 1, 3")
        a("v_xor_b32 v26, v25, v26")
        a("v_lshlrev_b32 v26, 4, v26")
        a("v_lshl_add_u32 v26, v24, 7, v26")
        a("s_lshl_b32 s38, s36, 12")
        a("v_add_u32 v%d, s38, v26" % vAX)
        a("v_bfe_u32 v21, v0, 2, 2")
        a("v_lshl_add_u32 v26, v25, 3, v21")
        a("v_bfe_u32 v27, v0, 4, 1")
        a("v_and_b32 v28, 3, v0")
        a("v_lshlrev_b32 v28, 3, v28")
        a("v_bfe_u32 v30, v0, 3, 1")
        a("v_lshl_add_u32 v22, v26, 7, v28")
        a("v_lshl_add_u32 v29, v27, 5, v22")
        a("v_xor_b32 v23, s37, v30")
        a("v_lshl_add_u32 v29, v23, 6, v29")
        a("v_add_u32 v%d, 16384, v29" % vAW1)
        if not P: a("v_add_u32 v%d, 24576, v29" % (vAW1 + 1))
        a("v_lshl_add_u32 v23, v23, 1, v27")
        a("v_lshl_add_u32 v29, v23, 5, v22")
        a("v_lshl_add_u32 v29, v27, 13, v29")
        a("v_add_u32 v%d, %d, v29" % (vA2, base(8 if P or HP == 2 else 12)))
        a("v_xor_b32 v%d, 32, v%d" % (vA2 + 1, vA2))
        if not P:
            a("v_xor_b32 v23, s37, v27")
            a("v_lshl_add_u32 v29, v23, 5, v28")
            a("v_lshl_add_u32 v29, v26, 6, v29")
            a("v_lshl_add_u32 v29, v27, 12, v29")
            a("v_add_u32 v%d, %d, v29" % (vAM, base(12 if HP == 2 else 8)))
        a("s_lshl_b32 s90, s18, 2")
        a("s_add_u32 s90, s90, s36")
        a("s_lshl_b32 s91, s90, 10")
        a("s_mul_i32 s90, s90, 112")
        a("s_add_u32 s90, s90, s58")
        a("s_lshr_b32 s38, s52, 5")
        a("s_add_u32 s95, s90, s38")
        a("s_lshr_b32 s38, s97, 5")
        a("s_add_u32 s58, s90, s38")
        a("s_lshl_b32 s38, s37, 1")
        a("s_add_u32 s58, s58, %s" % ("s38" if P or HP == 1 else "s37"))
        a("s_lshl_b32 s58, s58, 10")
        a("s_add_u32 s95, s95, %s" % ("s38" if P or HP == 2 else "s37"))
        a("s_lshl_b32 s95, s95, 10")
        if not P:
            a("v_and_b32 v29, 15, v0")
            a("v_lshlrev_b32 v29, 4, v29")
            a("v_lshl_add_u32 v29, v25, 8, v29")
            a("v_lshl_add_u32 v%d, v27, 16, v29" % vSV)
            a("s_lshl_b32 s38, s54, 1")
            a("s_add_u32 s38, s38, s55")
            a("s_sub_u32 s38, s38, 1")
            a("s_lshl_b32 s38, s38, 18")
            a("s_add_u32 s96, s91, s38")
            a("s_lshl_b32 s38, s37, 17")
            a("s_add_u32 s96, s96, s38")
            a("s_add_u32 s96, s96, %s" % hx(VF))
        a("s_cmp_lt_u32 s19, 8")
        a("s_cselect_b32 s92, %s, 1.0" % hx(f2u(0.25 * LOG2E)))
        a("s_cselect_b32 s38, 0, 12")
        a("s_mov_b32 s93, s92")
        a("v_lshrrev_b32 v29, 1, v24")
        a("v_xor_b32 v29, v24, v29")
        a("v_and_b32 v29, 4, v29")
        a("v_mul_u32_u24 v29, 3, v29")
        a("v_and_b32 v29, s38, v29")
        a("v_xor_b32 v29, v24, v29")
        a("v_lshlrev_b32 v29, 4, v29")
        a("v_lshl_add_u32 v%d, v25, 9, v29" % vST)
        a("s_lshl_b32 s38, s19, 18")
        a("s_add_u32 s91, s91, s38")
        a("s_lshl_b32 s38, s37, 17")
        a("s_add_u32 s91, s91, s38")
        a("s_add_u32 s94, s91, 0x10000")
        def gc():
            o = gc0()
            a("v_mov_b32 v30, v%d" % o); a("v_mov_b32 v31, v%d" % (o + 1))
            srd(a, 28, 14, 0, 17 * MB)
            a("s_lshl_b32 s39, s18, 7")
            a("s_add_u32 s60, s60, s39")
            a("s_lshl_b32 s60, s60, 3")
            a("s_add_u32 s60, s60, %s" % hx(GG))
            a("v_mov_b32 v29, 0")
        def gst():
            a("s_mov_b32 exec_lo, 0")
            a("s_mov_b32 exec_hi, 0x80000000")
            vm.issue("buffer_store_dwordx2 v[30:31], v29, s[28:31], s60 offen%s" % SC, "gst")
            a("s_mov_b64 exec, -1")
        T = [[3], [0, 1], [2, 3]] if P else [[0, 1], [2, 3], [0]] if HP == 2 else [[0, 1], [2], [0, 1]]
        ALT = [2 if ALTP else None, None, None] if P else [None, None, 1 if ALTR else None] if HP == 2 else [None, 3 if ALTR else None, None]
        DIST = [2, D2, D2] if P else [2, D2, 4] if HP == 2 else [2, 4, D2]
        def ph(g): return g // 32
        def stage(g): return g // 4 if g < 32 else 8 + (g - 32) // 8
        def first(g): return g % 4 == 0 if g < 32 else g % 8 == 0
        def wf(g, n):
            if len(T[ph(g)]) == 1 and ph(g) > 0: return WF + 4 * (g % 6)
            return WF + 8 * (g % 4) + 4 * n
        def reads(g):
            s = stage(g); p = ph(g); L = []
            if p == 0: R = [vAX] + [vAW1 + n for n in range(len(T[0]))]
            elif p == HP and not P: R = [vAM]
            else: R = [vA2, vA2 + 1]
            if first(g) and s not in (0, 8) and not (s == 12 and not P):
                d = base(s) - base(s - 1)
                for r in R: L.append(("s", "v_add_u32 v%d, %s, v%d" % (r, hx(d), r), None))
            ks = g % 4
            if p == 0:
                if ks: L.append(("s", "v_xor_b32 v%d, %d, v%d" % (vT, 32 * ks, vAX), None))
                L.append(("l", "ds_read_b128 %s, v%d" % (vr(X + 4 * g, 4), vT if ks else vAX), g))
                R = R[1:]
            c = 0 if p == 0 else (g % 8) // 4
            for n in range(len(T[p])):
                rb_ = 64 if R[n] == vAM else 128
                for q in range(2):
                    L.append(("l", "ds_read_b64_tr_b16 %s, v%d offset:%d" % (vr(wf(g, n) + 2 * q, 2), R[n], c * 128 * rb_ + (16 * ks + 4 * q) * rb_), g))
            return L
        def mfmas(g):
            L = []
            x = vr(X + 4 * (g % 32), 4)
            for n, ac in enumerate(T[ph(g)]):
                first_ = g % 32 == 0
                if len(T[ph(g)]) == 1 and ALT[ph(g)] is not None:
                    if g % 2: ac = ALT[ph(g)]
                    first_ = g % 32 < 2
                d = vr(SET[ac], 16); w = vr(wf(g, n), 4)
                A, B = (x, w) if (g < 32 and n == 1) else (w, x)
                L.append("v_mfma_f32_32x32x16_bf16 %s, %s, %s, %s" % (d, A, B, "0" if first_ else d))
            return L
        def qkv_epi(n):
            b = SET[T[0][n]]; L = []
            if ALT[0] is not None:
                for i in range(16): L.append(("s", "v_add_f32 v%d, v%d, v%d" % (b + i, b + i, SET[ALT[0]] + i), None))
            if n == 0:
                for i in range(16): L.append(("s", "v_mul_f32 v%d, s92, v%d" % (b + i, b + i), None))
            for i in range(8): L.append(("s", "v_cvt_pk_bf16_f32 v%d, v%d, v%d" % (b + i, b + 2 * i, b + 2 * i + 1), None))
            if n == 0:
                L.append(("v", "buffer_store_dwordx4 %s, v%d, s[28:31], s91 offen%s" % (vr(b, 4), vST, SC), "qkv"))
                L.append(("v", "buffer_store_dwordx4 %s, v%d, s[28:31], s94 offen%s" % (vr(b + 4, 4), vST, SC), "qkv"))
            else:
                for j in range(2):
                    L.append(("v", "buffer_store_dwordx4 %s, v%d, s[28:31], s96 offen offset:%d%s" % (vr(b + 4 * j, 4), vSV, j * 512, SC), "qkv"))
            return L
        def silu(G, Tm, so, off, tag, pk=True):
            U = G + 8; L = []
            def op(o, d, x, y):
                if pk:
                    for i in range(4): L.append("v_pk_%s_f32 %s, %s, %s" % (o, vr(d + 2 * i, 2), vr(x + 2 * i, 2), y if isinstance(y, str) else vr(y + 2 * i, 2)))
                else:
                    for i in range(8): L.append("v_%s_f32 v%d, %s, v%d" % (o, d + i, {"s[92:93]": "s92", "s[12:13]": "1.0"}.get(y, None) or "v%d" % (y + i), x + i))
            op("mul", Tm, G, "s[92:93]")
            for i in range(8): L.append("v_exp_f32 v%d, v%d" % (Tm + i, Tm + i))
            op("mul", G, G, U)
            op("add", Tm, Tm, "s[12:13]")
            for i in range(8): L.append("v_rcp_f32 v%d, v%d" % (Tm + i, Tm + i))
            L.append("s_nop 0")
            op("mul", G, G, Tm)
            for i in range(4): L.append("v_cvt_pk_bf16_f32 v%d, v%d, v%d" % (G + i, G + 2 * i, G + 2 * i + 1))
            L = [("s", t, None) for t in L]
            L.append(("v", "buffer_store_dwordx4 %s, v1, s[32:35], %s offen offset:%d%s" % (vr(G, 4), so, off, SC), tag))
            return L
        def consts():
            a("s_mov_b32 s92, %s" % hx(f2u(-LOG2E))); a("s_mov_b32 s93, s92")
            a("s_mov_b32 s12, 1.0"); a("s_mov_b32 s13, 1.0")
            srd(a, 32, 14, HF, 7 * MB)
        ep1 = []
        for n in reversed(range(len(T[0]))): ep1 += qkv_epi(n)
        ep0 = [("f", lambda: hook(kind, vm, "early"), None), ("f", gst, None)]
        if "noearly" in XP: ep0 = []
        ep1b = [("f", consts, None)]
        assert EARLY[kind] <= 30
        if "noqst" in XP: ep1 = [x for x in ep1 if x[0] != "v"]
        if "noep1" in XP: ep1 = [x for x in ep1 if x[0] == "v"]
        if "plainq" in XP: ep1 = [(k, t.replace(SC, ""), g) if k == "v" else (k, t, g) for (k, t, g) in ep1]
        ep2 = []
        if ALT[1] is not None:
            for i in range(16): ep2.append(("s", "v_add_f32 v%d, v%d, v%d" % (SET[T[1][0]] + i, SET[T[1][0]] + i, SET[ALT[1]] + i), None))
        for n, ac in enumerate(T[1]): ep2 += silu(SET[ac], E if P or HP == 1 else 56, "s95", n * 1024, "h1", PK)
        if "noep2" in XP: ep2 = []
        if "ep2nost" in XP: ep2 = [x for x in ep2 if x[0] != "v"]
        islot = {}
        last = -1
        for g in range(96):
            want = g - DIST[ph(g)]
            regs = set(r for n in range(len(T[ph(g)])) for r in range(wf(g, n), wf(g, n) + 4))
            for g2 in range(g - 1, max(-1, g - 10), -1):
                r2 = set(r for n in range(len(T[ph(g2)])) for r in range(wf(g2, n), wf(g2, n) + 4))
                if regs & r2: want = max(want, g2 + 1); break
            want = max(want, last)
            assert want < g or g == 0, g
            islot[g] = want; last = want
        syncs = {islot[g]: stage(g) for g in range(1, 96) if first(g)}
        def barrier(s):
            if s == PUBS[kind]: vm.wait(("d", s), "qkv", "gst", "sent")
            elif s == BASES: vm.wait(("d", s), "gst", "sent")
            else: vm.wait(("d", s))
            if s == 15: a("s_waitcnt lgkmcnt(0)"); lg.ops = []
            a("s_barrier")
            if s == BASES: hook(kind, vm, "base")
            if s == PUBS[kind]: hook(kind, vm, "pub")
        hook(kind, vm, "setup")
        if GCG < 0: gc()
        barrier(0)
        if SWARM or IWARM: a("s_waitcnt lgkmcnt(0)")
        gen1.stamp(a, 2)
        for g in range(96):
            if islot[g] < 0:
                for it in reads(g): emit(it)
        stq = []; nst = [0]
        pend = []
        for t in range(2, 16):
            if after(t) == 0 and not (t == 8 and d8 >= 0): pend += dma(t)
            if t == d8 and after(t) == 0: pend += dma(8)
        for g in range(96):
            O = []
            for g2 in range(g + 1, 96):
                if islot[g2] == g: O += reads(g2)
            bar = syncs.get(g)
            if bar is not None:
                assert not any(it[2] == ("d", bar) for grp in pend for it in grp), (g, bar)
                for t in range(2, 16):
                    if after(t) == bar and not (t == 8 and d8 >= 0): pend += dma(t)
                    if t == d8 and after(t) == bar: pend += dma(8)
            if pend and (g < 32 or g % 2 == 0 or len(pend) > 4):
                for _ in range(2 if len(pend) > 3 and g < 32 else 1): O += pend.pop(0)
            if g == GCG: O.append(("f", gc, None))
            if ep0 and g >= EARLY[kind]: O.append(ep0.pop(0))
            if g >= 34 and stq and g >= nst[0] and None not in stq[:2]:
                O += stq.pop(0); nst[0] = g + STG
            if g >= 34 and ep1:
                n = EPR + 2 if P or HP == 2 else EP1R
                for it in ep1[:n]:
                    if it[0] == "v": stq.append([it])
                    elif it[1].startswith("s_add_u32 s9"): stq.append([it]) ; stq.append(None)
                    else: O.append(it)
                ep1 = ep1[n:]
                i = 0
                while i < len(stq):
                    if stq[i] is None and i + 1 < len(stq):
                        stq[i - 1] = stq[i - 1] + stq[i + 1]
                        del stq[i:i + 2]
                    else: i += 1
            elif stq: pass
            elif g >= max(34, EARLY[kind]) and ep1b and g >= nst[0]: O.append(ep1b.pop(0)); nst[0] = g + 2
            elif g >= (67 if P or HP == 1 else 66) and ep2:
                n = EPR if P else EPRR
                O += ep2[:n]; ep2 = ep2[n:]
                O += hook(kind, vm, (g, CH if P else CHR)) or []
            elif g >= 34 and not ep1b:
                O += hook(kind, vm, (g, 6 if g < 64 else 10)) or []
            if g < 30: O += hook(kind, vm, (g, 0)) or []
            if g == WARMG: O.append(("f", lambda: hook(kind, vm, "warm"), None))
            if bar == BASES: assert not ep0
            if BASES > 0 and g == LDG[kind] - 2 * PLD: O.append(("f", lambda: hook(kind, vm, "bpoll"), None))
            if g == LDG[kind] - PLD: O.append(("f", lambda: hook(kind, vm, "poll"), None))
            if g == LDG[kind]: assert not ep2 or (not P and HP == 2)
            if g == LDG[kind]: O.append(("f", lambda: hook(kind, vm, "ld"), None))
            if bar == PUBS[kind]: assert not ep1 and not stq and not ep1b and not any(it[0] == "f" for it in O), (kind, g)
            M = mfmas(g)
            pr = PRIO if g >= PRG else 0
            if pr: a("s_setprio 1")
            lg.wait(g)
            assert not (gen1.STAMP and "g%d" % g in gen1.SMAP and 10 < g < 30), "stamp would clobber the set-up temporaries"
            gen1.stamp(a, "g%d" % g)
            n = len(M); per = max(1, -(-len(O) // n))
            if pr == 2:
                for m in M: a(m)
                a("s_setprio 0")
                if bar is not None: barrier(bar)
                for it in O: emit(it)
                continue
            for i, m in enumerate(M):
                if pr and i: a("s_setprio 1")
                a(m)
                if pr: a("s_setprio 0")
                if i == 0 and bar is not None: barrier(bar)
                for it in O[i * per:(i + 1) * per]: emit(it)
        assert not ep1 and not ep2 and not pend
        gen1.stamp(a, 4)
        hook(kind, vm, "pre_h")
        a("s_nop 10")
        L0 = silu(SET[T[2][0]], WF, "s58", 0, "h")
        if len(T[2]) == 2:
            L1 = silu(SET[T[2][1]], WF + 8, "s58", 1024, "h")
            for it in L0[:12] + L1[:12] + L0[12:28]: emit(it)
            hook(kind, vm, "mid_h")
            for it in L1[12:28] + L0[29:] + L1[29:]: emit(it)
        else:
            if ALT[2] is not None:
                b = SET[T[2][0]]; c = SET[ALT[2]]
                for i in range(8): a("v_pk_add_f32 %s, %s, %s" % (vr(b + 2 * i, 2), vr(b + 2 * i, 2), vr(c + 2 * i, 2)))
            for it in L0[:28]: emit(it)
            hook(kind, vm, "mid_h")
            for it in L0[28:]: emit(it)
            a("v_mov_b32 v4, 0x1000")
            vm.issue("buffer_store_dword v4, v4, s[84:87], 0 offen", "h")
        tail(kind, vm)
    stream("R")
    a.label("AB_P")
    stream("P")
```

```python
import sys
sys.path.insert(0, "gen")
import gen1, gen3
from gen1 import *
from asmlib import *
import ab4 as ab3
from gen3 import ab_prologue, SC
from ab4 import phase_ab
from gen5 import build1

FL = 17 * MB
RING = 65536; SCR = 98304
KVROT = True
LATE = True
WARM = True
NOWAIT = False
SPLIT = 1
DMP = 12
ORDERED = True
EARLYO = False
NOB3 = False
SHT = 1
SETG = 10
OWNQ = False
SETN = 0
OSC = ""
LADDER = True
XP = []
HPUB = 1
NAME = "gated_mix__softmax_full_mha__swiglu_ffn__prompt_kernel"

def kf(a):
    header(a, NAME)
    Q = 128; K = [144, 148]; V = [152, 160]; S = [32, 48]; O = 64
    WF = 168; DA = 184; HB_ = 216
    vV, vIX, vP, vPO, vLD = 18, 19, 20, 21, 22
    vWA, vWB, vT0, vT1, vZ = 24, 25, 26, 27, 28
    vW0 = 23
    ab_prologue(a, "KF_END")
    def spin(lab, expect, vm, leader_only=False, sr_="s[84:87]", so="0", note=""):
        if vm: vm.wait("poll")
        a("v_cmp_le_u32 vcc, %d, v%d%s" % (expect, vP, note))
        a("s_mov_b32 s38, 0x8000")
        if leader_only:
            a("s_cmp_lg_u32 s3, 0")
            a("s_cbranch_scc1 %s_OK" % lab)
        a("s_cmp_eq_u64 vcc, -1")
        a("s_cbranch_scc1 %s_OK" % lab)
        a.label(lab)
        a("s_sleep 4")
        a("buffer_load_dword v%d, v%d, %s, %s offen sc1%s" % (vP, vPO, sr_, so, note))
        a("s_sub_u32 s38, s38, 1")
        a("s_waitcnt vmcnt(0)")
        a("v_cmp_le_u32 vcc, %d, v%d" % (expect, vP))
        a("s_cselect_b32 s39, 1, 0")
        a("s_cmp_eq_u64 vcc, -1")
        a("s_cselect_b32 s39, 1, s39")
        a("s_cmp_eq_u32 s39, 0")
        a("s_cbranch_scc1 %s" % lab)
        a.label(lab + "_OK")
    def poll(vm, sr_="s[84:87]"): vm.issue("buffer_load_dword v%d, v%d, %s, 0 offen sc1" % (vP, vPO, sr_), "poll")
    def publish(vm, soff):
        a("v_mov_b32 v%d, 1" % vP)
        a("s_mov_b64 exec, 1")
        vm.issue("buffer_atomic_add v%d, v%d, s[84:87], %s offen sc1" % (vP, vLD, soff), "atom")
        a("s_mov_b64 exec, -1")
    def ldK(vm, b):
        vm.issue("buffer_load_dwordx4 %s, v1, s[8:11], s72 offen%s" % (vr(K[b], 4), SC), ("K", b))
    def ldV(vm, b, wrap=True):
        a("s_mov_b64 exec, s[74:75]")
        vm.issue("buffer_load_dwordx4 %s, v%d, s[64:67], s72 offen%s" % (vr(V[b], 4), vV, SC), ("V", b))
        vm.issue("buffer_load_dwordx4 %s, v%d, s[64:67], s72 offen offset:512%s" % (vr(V[b] + 4, 4), vV, SC), ("V", b))
        a("s_mov_b64 exec, -1")
        a("s_add_u32 s72, s72, 1024")
        if wrap: a("s_and_b32 s72, s72, 0x3fff")
    def cap(fn):
        save = a.lines; a.lines = []
        fn(); L = a.lines; a.lines = save
        return [("s", l.strip(), None) for l in L]
    def early(vm):
        for i in range(4): a("v_mov_b32 v%d, -1" % (96 + i))
        vm.issue("buffer_store_dwordx4 v[96:99], v1, s[28:31], s53 offen%s" % SC, "sent")
        a("s_add_u32 s53, s59, 32768")
        a("s_mov_b64 exec, 1")
        vm.issue("buffer_store_dword v29, v%d, s[80:83], s59 offen%s" % (vLD, SC), "sent")
        vm.issue("buffer_store_dword v29, v%d, s[80:83], s53 offen%s" % (vLD, SC), "sent")
        if OWNQ: vm.issue("buffer_store_dword v29, v%d, s[80:83], s90 offen%s" % (vLD, SC), "sent")
        a("s_mov_b64 exec, -1")
    def setup():
        a("s_and_b32 s89, s2, 7")
        a("s_lshl_b32 s89, s89, 2")
        a("s_bfe_u32 s38, s2, 0x20003")
        a("s_add_u32 s89, s89, s38")
        a("s_lshr_b32 s88, s2, 5")
        a("s_lshr_b32 s62, s3, 2")
        a("s_and_b32 s63, s3, 3")
        a("s_cmp_eq_u32 s3, 0")
        a("s_cselect_b32 s38, 0, 0x20000")
        a("v_mov_b32 v%d, s38" % vLD)
        a("v_and_b32 v%d, 15, v0" % vV)
        a("v_lshlrev_b32 v%d, 4, v%d" % (vV, vV))
        a("v_mov_b32 v%d, v%d" % (vPO, vV))
        a("v_lshrrev_b32 v104, 5, v0")
        a("v_lshl_add_u32 v%d, v104, 8, v%d" % (vV, vV))
        a("v_mov_b32 v%d, 0xdddddddd" % vIX)
        a("s_mov_b32 s74, 0x0000ffff"); a("s_mov_b32 s75, 0x0000ffff")
        srd(a, 80, 14, FL, 98304)
        srd(a, 84, 100, 0, 256)
        a("s_lshl_b32 s73, s89, 16")
        srd(a, 68, 14, "s73", 65536)
        a("s_lshl_b32 s38, s63, 14")
        a("s_add_u32 s38, s38, s73")
        a("s_add_u32 s39, s38, %s" % hx(KF))
        srd(a, 8, 14, "s39", 16384)
        a("s_add_u32 s39, s38, %s" % hx(VF))
        srd(a, 64, 14, "s39", 16384)
        a("s_lshl_b32 s72, s88, 11")
        a("s_lshl_b32 s39, s88, 3")
        a("s_add_u32 s38, s3, s39")
        a("s_lshl_b32 s38, s38, 5")
        a("s_add_u32 s38, s38, s89")
        a("s_lshl_b32 s61, s38, 10")
        a("s_lshl_b32 s38, s62, 2")
        a("s_add_u32 s39, s39, s38")
        for i, r in enumerate(QS):
            a("s_add_u32 s38, s63, %d" % (i + 1))
            a("s_and_b32 s38, s38, 3")
            a("s_add_u32 s38, s38, s39")
            a("s_lshl_b32 %s, s38, 10" % r)
        a("v_bfe_u32 v105, v0, 4, 1")
        a("v_lshlrev_b32 v106, 2, v105")
        a("v_and_b32 v107, 7, v0")
        a("v_xor_b32 v106, v106, v107")
        a("v_lshlrev_b32 v106, 4, v106")
        a("v_lshrrev_b32 v107, 3, v0")
        a("v_lshl_add_u32 v%d, v107, 10, v106" % vW0)
        a("s_lshl_b32 s38, s62, 13")
        a("v_add_u32 v%d, s38, v%d" % (vWA, vW0))
        a("v_add_u32 v%d, %d, v%d" % (vWB, 16384 - 2048, vWA))
        a("v_bfe_u32 v107, v0, 2, 2")
        a("v_lshl_add_u32 v106, v104, 2, v107")
        a("v_bfe_u32 v107, v0, 1, 1")
        a("v_lshl_add_u32 v107, v105, 1, v107")
        a("v_bfe_u32 v108, v0, 3, 1")
        a("v_lshl_add_u32 v107, v108, 2, v107")
        a("v_lshlrev_b32 v107, 4, v107")
        a("v_and_b32 v108, 1, v0")
        a("v_lshl_add_u32 v107, v108, 3, v107")
        a("v_lshl_add_u32 v107, v106, 7, v107")
        a("s_lshl_b32 s16, s63, 12")
        a("s_add_u32 s16, s16, %d" % RING)
        a("v_add_u32 v%d, s16, v107" % vT0)
        a("v_xor_b32 v%d, 64, v%d" % (vT1, vT0))
        a("s_lshl_b32 s38, s62, 10")
        a("s_add_u32 s17, s16, s38")
        a("s_and_b32 s53, s89, 3")
        a("s_add_u32 s59, s53, s88")
        a("s_cmp_ge_u32 s59, 6")
        a("s_cselect_b32 s38, 6, 0")
        a("s_sub_u32 s59, s59, s38")
        a("s_lshl_b32 s59, s59, 2")
        a("s_mov_b32 s38, %s" % ("0x32dc7632" if ab3.HP == 2 else "0x10ba7610") + "")
        a("s_mov_b32 s39, %s" % ("0xdc76" if ab3.HP == 2 else "0xba76") + "")
        a("s_lshr_b64 s[38:39], s[38:39], s59")
        a("s_and_b32 s99, s38, 0xffffff")
        a("s_lshl_b32 s53, s53, 1")
        a("s_add_u32 s59, s53, s88")
        a("s_and_b32 s59, s59, 7")
        a("s_lshl_b32 s59, s59, 2")
        a("s_mov_b32 s38, %s" % ("0xba985410" if ab3.HP == 2 else "0xdc985432") + "")
        a("s_mov_b32 s39, s38")
        a("s_lshr_b64 s[38:39], s[38:39], s59")
        if ab3.HP == 2: a("s_mov_b32 s98, s38")
        else:
            a("s_lshl_b32 s98, s38, 24")
            a("s_or_b32 s98, s98, s99")
            a("s_lshr_b32 s99, s38, 8")
        a("s_add_u32 s53, s61, %s" % hx(OF))
        a("s_lshl_b32 s59, s18, 4")
        a("s_add_u32 s59, s59, s19")
        a("s_lshl_b32 s59, s59, 7")
        if OWNQ:
            a("s_lshl_b32 s90, s19, 4")
            a("s_add_u32 s90, s90, s18")
            a("s_lshl_b32 s90, s90, 7")
            a("s_add_u32 s90, s90, 65536")
            a("s_lshr_b32 s38, s89, 2")
            a("v_lshlrev_b32 v106, 3, v105")
            a("v_add_u32 v106, s38, v106")
            a("s_lshr_b32 s39, s38, 1")
            a("s_lshl_b32 s39, s39, 2")
            a("s_and_b32 s38, s38, 1")
            a("s_add_u32 s39, s39, s38")
            a("s_add_u32 s39, s39, 1")
            a("v_sub_u32 v107, s39, v106")
            a("v_mad_u32_u24 v106, v107, v104, v106") if False else None
            a("v_mul_i32_i24 v107, v107, v104")
            a("v_add_u32 v106, v106, v107")
            a("v_and_b32 v107, 15, v0")
            a("v_lshl_add_u32 v106, v106, 4, v107")
            a("v_lshlrev_b32 v106, 7, v106")
            a("v_add_u32 v28, 65536, v106")
    QS = ["s36", "s37", "s54", "s55"]
    def setup2b():
        a("v_and_b32 v3, 31, v0")
        a("v_cmp_eq_u32 s[20:21], 16, v3")
        a("v_mov_b32 v3, 0x3f803f80")
        a("s_nop 0")
        a("v_cndmask_b32 v%d, 0, v3, s[20:21]" % V[0])
        for i in range(1, 16): a("v_mov_b32 v%d, v%d" % (V[0] + i, V[0]))
    chunks = {}
    def ldq(vm, s):
        vm.issue("buffer_load_dwordx4 %s, v1, s[68:71], %s offen%s" % (vr(Q + 4 * s, 4), QS[s], SC), "Q")
    def hook(kind, vm, where):
        if where == "init": chunks.clear()
        elif where == "early": early(vm)
        elif where == "setup":
            if SETG < 0: setup()
            else: chunks["S"] = cap(setup)
        elif where == "base" and OWNQ or where == "pub" and not OWNQ:
            a("s_lshl_b32 s38, s19, 4")
            publish(vm, "s38")
        elif where == "pub":
            a("v_mov_b32 v%d, 1" % vP)
            a("s_mov_b64 exec, 1")
            vm.issue("buffer_store_dword v%d, v%d, s[80:83], s90 offen sc1" % (vP, vLD), "flag")
            a("s_mov_b64 exec, -1")
        elif where == "bpoll":
            if OWNQ: poll(vm)
        elif where == "poll":
            if OWNQ:
                spin("KF_SB_" + kind, 16, vm)
                a("v_mov_b32 v%d, v28" % vPO)
                poll(vm, "s[80:83]")
            else: poll(vm)
        elif where == "ld":
            if OWNQ: spin("KF_SQ_" + kind, 1, vm, False, "s[80:83]")
            else: spin("KF_SQ_" + kind, 16, vm)
            assert not chunks["V"]
            gen1.stamp(a, "sq1")
            ldq(vm, 0); ldK(vm, 0); ldq(vm, 1)
            if SPLIT == 0: ldq(vm, 2); ldq(vm, 3); ldV(vm, 0); ldK(vm, 1); ldV(vm, 1)
        elif where == "mid_h":
            if SPLIT: ldK(vm, 1); ldV(vm, 1)
        elif where == "warm":
            if not WARM: return
            srd(a, 28, 76, 0, 1792 * 1024)
            a("s_lshl_b32 s94, s2, 3")
            a("s_add_u32 s94, s94, s3")
            a("s_mul_i32 s96, s94, 896")
            a("v_lshlrev_b32 v29, 7, v0")
            a("s_mov_b64 exec, 0x7f")
            vm.issue("buffer_load_dword v30, v29, s[28:31], s96 offen ; dummy", "pf")
            srd(a, 28, 78, 0, 512 * 1024)
            a("s_lshl_b32 s96, s94, 8")
            a("s_mov_b64 exec, 3")
            vm.issue("buffer_load_dword v30, v29, s[28:31], s96 offen ; dummy", "pf")
            a("s_mov_b64 exec, -1")
        elif isinstance(where, tuple):
            g, n = where
            if g < 30:
                E_ = min(ab3.EARLY.values())
                if SETG < 0 or g < SETG or g >= E_: return []
                n = -(-len(chunks["S"]) // (E_ - g))
                while n < len(chunks["S"]) and chunks["S"][n][1].startswith(("s_cselect", "s_addc")): n += 1
                L = chunks["S"][:n]; chunks["S"] = chunks["S"][n:]
                if g == E_ - 1: assert not chunks["S"]
                return L
            if g < 44: return []
            if "L" not in chunks: chunks["L"] = []; chunks["V"] = cap(setup2b)
            key = "V"
            if key == "V" and g < 74: return []
            while n < len(chunks[key]) and chunks[key][n][1].startswith(("s_cselect", "s_addc")): n += 1
            L = chunks[key][:n]; chunks[key] = chunks[key][n:]
            return L
        elif where == "pre_h":
            a("s_setprio 3")
            if SPLIT: ldq(vm, 2); ldq(vm, 3); ldV(vm, 0)
    ENTRY = ["Q", ("K", 0), "Q", "Q", "Q", ("V", 0), ("V", 0), ("K", 1), ("V", 1), ("V", 1), "h", "h"]
    def tail(kind, vm):
        assert vm.ops[-12:] == ENTRY, vm.ops
        if kind != "P": a("s_branch KF_C")
    a("s_load_dwordx2 s[100:101], s[0:1], 72")
    a("s_load_dwordx2 s[76:77], s[0:1], 48")
    a("s_load_dwordx2 s[78:79], s[0:1], 16")
    phase_ab(a, tail, hook)
    a.label("KF_C")
    gen1.stamp(a, 5)
    vm = VM(a); vm.ops = list(ENTRY)
    lg = VM(a, "lgkmcnt", 15)
    a("s_load_dwordx2 s[12:13], s[0:1], 64")
    def QK(sl, kb, sb): a("v_mfma_f32_32x32x16_bf16 %s, %s, %s, 0" % (vr(S[sb], 16), vr(K[kb], 4), vr(Q + 4 * sl, 4)))
    def PV(sl, vb, sb, j): a("v_smfmac_f32_32x32x32_bf16 %s, %s, %s, v%d" % (vr(O + 16 * sl, 16), vr(V[vb] + 4 * j, 4), vr(S[sb] + 8 * j, 8), vIX))
    def ZERO(r): a("v_mfma_f32_32x32x16_bf16 %s, %s, %s, 0" % (vr(r, 16), vr(vZ, 4), vr(vZ, 4)))
    for i in range(4): a("v_mov_b32 v%d, 0" % (vZ + i))
    vm.wait(("K", 0))
    QK(0, 0, 0)
    for i in range(4): ZERO(O + 16 * i)
    a("s_lshr_b32 s38, s89, 1")
    a("s_lshl_b32 s38, s38, 11")
    a("v_and_b32 v%d, 15, v0" % vPO)
    a("v_lshl_add_u32 v%d, v%d, 7, s38" % (vPO, vPO))
    a("s_mov_b32 s96, 32768")
    a("s_lshl_b32 s44, s89, 1")
    a("s_add_u32 s44, s44, s62")
    a("s_mul_i32 s38, s44, 112")
    a("s_mul_i32 s39, s63, 28")
    a("s_add_u32 s38, s38, s39")
    a("s_lshl_b32 s38, s38, 10")
    a("s_add_u32 s38, s38, %s" % hx(HF))
    srd(a, 32, 14, "s38", 28 * 1024)
    a("s_lshl_b32 s38, s39, 14")
    a("s_lshl_b32 s45, s88, 7")
    a("s_add_u32 s38, s38, s45")
    a("s_sub_u32 s39, %d, s38" % (1792 * 1024))
    a("s_waitcnt lgkmcnt(0)")
    srd(a, 48, 76, "s38", "s39")
    srd(a, 40, 78, 0, 512 * 1024)
    FLG = 161792
    vF, vFA, vFB, vFR = 232, 233, 234, 235
    vRW = 236
    def ldH(b, k, so="s20"):
        vm.issue("buffer_load_dwordx4 %s, v1, s[32:35], %s offen offset:%d%s" % (vr(HB_ + 8 * b + 4 * k, 4), so, 1024 * k, SC), ("H", b, k))
    def ldW(b, k):
        if k == 0:
            a("s_and_b32 s20, s98, 15")
            a("s_lshr_b64 s[98:99], s[98:99], 4")
            a("s_add_u32 m0, s17, %d" % (b * 16384))
            a("s_lshl_b32 s21, s20, 15")
            a("s_lshl_b32 s20, s20, 11")
        vm.issue("buffer_load_dwordx4 v%d, s[48:51], s21 offen offset:%d lds" % (vWA + k, 2048 * k), ("W", b))
    def rdW(b, k):
        for ft in range(2):
            for q in range(2):
                lg.issue("ds_read_b64_tr_b16 %s, v%d offset:%d" % (vr(WF + 8 * k + 4 * ft + 2 * q, 2), vT0 + ft, b * 16384 + k * 2048 + q * 1024), ("w", k, ft))
    def DM(b, n):
        k, ft = n // 2, n % 2
        lg.wait(("w", k, ft))
        vm.wait(("H", b, k))
        d = vr(DA + 16 * ft, 16)
        a("v_mfma_f32_32x32x16_bf16 %s, %s, %s, %s" % (d, vr(WF + 8 * k + 4 * ft, 4), vr(HB_ + 8 * b + 4 * k, 4), d))
    def signal(b):
        a("v_add_u32 v%d, 1, v%d" % (vF, vF))
        vm.wait(("W", b))
        lg.issue("ds_write_b32 v%d, v%d" % (vFA, vF), "fw")
    def peek(): lg.issue("ds_read_b32 v%d, v%d" % (vFR, vFB), "fr")
    def precheck():
        lg.wait("fr")
        a("v_cmp_lt_u32 vcc, v%d, v%d" % (vFR, vF))
    def check(lab):
        a("s_cbranch_vccnz %s" % lab)
        a.label(lab + "_OK")
        def slow():
            a.label(lab)
            a("s_mov_b32 s38, 0x40000")
            a("s_setprio 0")
            a.label(lab + "_L")
            a("s_sleep 1")
            a("ds_read_b32 v%d, v%d" % (vFR, vFB))
            a("s_sub_u32 s38, s38, 1")
            a("s_waitcnt lgkmcnt(0)")
            a("v_cmp_lt_u32 vcc, v%d, v%d" % (vFR, vF))
            a("s_cbranch_scc1 %s_GO" % lab)
            a("s_cbranch_vccnz %s_L" % lab)
            a.label(lab + "_GO")
            a("s_setprio 3")
            a("s_branch %s_OK" % lab)
        outl[lab] = slow
    outl = {}
    def give(s):
        lg.issue("ds_write_b128 v%d, %s" % (vRW + 2 * s, vr(O + 16 * s, 4)), "gv")
        lg.issue("ds_write_b128 v%d, %s offset:1024" % (vRW + 2 * s, vr(O + 16 * s + 4, 4)), "gv")
        lg.issue("ds_write_b32 v%d, v%d offset:2048" % (vRW + 2 * s + 1, O + 16 * s + 8), "gv")
    def keytile(b, first=False, down=False, loop=None, top=None, extra=None, pre=False, lab=None, last=False, nobar=False):
        if top:
            top("pre")
            if not nobar: a("s_barrier")
            top("post")
        for sl in range(4):
            sb = sl % 2
            def E(i): a("v_exp_f32 v%d, v%d" % (S[sb] + i, S[sb] + i))
            if LADDER == 3:
                a("s_setprio %d" % (1 - sl % 2 if sl < 2 else 0)) if sl in (0, 1) else None
            elif LADDER == 4:
                if sl % 2 == 0: a("s_setprio %d" % (1 - sl // 2))
            elif LADDER == 2:
                if sl % 2 == 0: a("s_setprio %d" % (3 - 2 * b - sl // 2))
            elif LADDER: a("s_setprio %d" % (3 - sl))
            elif first and sl == 0: a("s_setprio 0")
            if down and sl == 0:
                if "nosync" not in XP: check(lab)
                if "nord" not in XP: rdW(b, 0)
            E(0); E(1)
            if sl == 0:
                if not first:
                    PV(3, 1 - b, 1, 1)
                    if not (last and b == 1): ldV(vm, 1 - b)
            else: PV(sl - 1, b, 1 - sb, 1)
            if down and sl == 1 and "nord" not in XP: rdW(b, 1)
            E(2); E(3); E(4)
            if sl == 3:
                if not (last and b == 1):
                    vm.wait(("K", 1 - b))
                    QK(0, 1 - b, 0)
            else:
                if first: vm.wait("Q")
                QK(sl + 1, b, 1 - sb)
                if sl == 2 and not last: ldK(vm, b)
            if (down or pre) and sl < 2 and not (down and "nold" in XP): ldW(b, sl)
            fin_ = last and b == 1
            if (down or pre == 2) and sl == 2 and not fin_: signal(1 - b)
            if (down or pre == 2) and sl == 3 and not fin_: peek()
            if fin_ and sl == 2:
                lg.wait(("w", 1, 1))
                a("s_barrier")
                give(0)
            for i in range(5, 10): E(i)
            if sl == 0: vm.wait(("V", b))
            if last and b == 1 and sl == 3: give(1)
            PV(sl, b, sb, 0)
            for i in range(10, DMP): E(i)
            if extra: extra(sl)
            if down:
                if "nodm" not in XP: DM(b, sl)
                if sl % 2 == 1 and "nold" not in XP: ldH(b, sl // 2)
                if sl == 3:
                    if b == 1:
                        a("v_xor_b32 v%d, 0x8000, v%d" % (vT0, vT0))
                        a("v_xor_b32 v%d, 0x8000, v%d" % (vT1, vT1))
                        a("s_xor_b32 s17, s17, 0x8000")
            if loop and sl == 3:
                a("s_sub_u32 s46, s46, 1"); a("s_cmp_lg_u32 s46, 0")
            for i in range(DMP, 14): E(i)
            if (down or pre == 2) and sl == 3 and not fin_: precheck()
            if fin_ and sl == 2: pass
            E(14); E(15)
            if fin_ and sl == 2: give(1) if False else None
            if fin_ and sl == 3: give(2)
    def pubH(tag, off):
        def f(when):
            if when == "pre":
                vm.wait(tag); lg.wait("fw")
            else:
                a("s_add_u32 s38, s59, %d" % off)
                a("v_mov_b32 v4, 1")
                a("s_mov_b64 exec, 1")
                vm.issue("buffer_store_dword v4, v%d, s[80:83], s38 offen sc1" % vLD, "flag")
                a("s_mov_b64 exec, -1")
        return f
    def wo_stage(i):
        a("s_add_u32 m0, s60, %d" % (i * 2048))
        a("s_add_u32 s38, s47, %d" % (i * 16384))
        vm.issue("buffer_load_dwordx4 v%d, s[40:43], s38 offen lds" % vW0, "wo")
        a("s_add_u32 s38, s38, %d" % (8192 - 1024))
        vm.issue("buffer_load_dwordx4 v%d, s[40:43], s38 offen offset:1024 lds" % vW0, "wo")
    a("s_lshl_b32 s60, s3, 13")
    a("s_lshl_b32 s47, s3, 16")
    a("s_add_u32 s47, s47, s45")
    def ex0(sl):
        if sl < 2: ZERO(DA + 16 * sl)
        if sl == 2:
            a("s_lshl_b32 s38, s3, 8")
            a("s_add_u32 s38, s38, %d" % FLG)
            a("v_lshl_add_u32 v%d, v0, 2, s38" % vFA)
            a("v_xor_b32 v%d, 1024, v%d" % (vFB, vFA))
            a("v_mov_b32 v%d, 0" % vF)
            lg.issue("ds_write_b32 v%d, v%d" % (vFA, vF), "fw")
            if NOB3:
                a("v_mov_b32 v247, 153600")
                lg.issue("ds_write_b32 v247, v%d" % vF, "fw")
    keytile(0, first=True, extra=ex0)
    gen1.stamp(a, "k0")
    keytile(1, top=pubH("Q", 0), extra=wo_stage)
    gen1.stamp(a, "k1")
    def ex2(sl):
        if sl == 2: poll(vm, "s[80:83]")
        if sl < 3:
            s = sl + 1
            a("s_add_u32 s28, s63, %d" % s)
            a("s_and_b32 s28, s28, 3")
            a("s_lshl_b32 s38, s62, 2")
            a("s_add_u32 s28, s28, s38")
            a("s_mul_i32 s28, s28, 3")
            a("s_add_u32 s28, s28, %d" % (s - 1))
            a("s_mul_i32 s28, s28, 2304")
            a("s_add_u32 s28, s28, %d" % SCR)
            a("v_add_u32 v%d, s28, v1" % (vRW + 2 * sl))
            a("v_lshl_add_u32 v%d, v0, 2, s28" % (vRW + 2 * sl + 1))
        else:
            a("s_mul_i32 s28, s3, %d" % (3 * 2304))
            a("s_add_u32 s28, s28, %d" % SCR)
            a("v_add_u32 v%d, s28, v1" % (vRW + 6))
            a("v_lshl_add_u32 v%d, v0, 2, s28" % (vRW + 7))
    keytile(0, pre=1, extra=ex2)
    a("s_mov_b32 s36, s20")
    gen1.stamp(a, "k2")
    def top3(when):
        if not NOB3 and when != "now": pubH("h", 32768)(when)
        if when == "post" and SHT < 0 or when == "now":
            spin("KF_SH", 1, vm, False, "s[80:83]")
            gen1.stamp(a, "sh1")
            ldH(0, 0, "s36"); ldH(0, 1, "s36")
    def ex3(sl):
        if sl == SHT: top3("now")
        if NOB3 and sl == 0:
            vm.wait("h")
            a("v_mov_b32 v5, 1")
            a("s_mov_b64 exec, 1")
            lg.issue("ds_add_rtn_u32 v6, v247, v5", "cnt")
            a("s_mov_b64 exec, -1")
        if NOB3 and sl == 1:
            a("s_lshl_b32 s38, s18, 4")
            a("s_add_u32 s38, s38, s19")
            a("s_lshl_b32 s38, s38, 7")
            a("s_add_u32 s38, s38, 32768")
            lg.wait("cnt")
            a("v_xor_b32 v6, 7, v6")
            a("v_lshlrev_b32 v6, 16, v6")
            a("s_mov_b64 exec, 1")
            vm.issue("buffer_store_dword v5, v6, s[80:83], s38 offen sc1", "flag")
            a("s_mov_b64 exec, -1")
        if sl % 2 == 1: ldH(1, sl // 2)
        if sl == 0: srd(a, 52, 14, OF, 2 * MB)
        if sl == 2:
            srd(a, 24, 14, GG, 16384)
            a("s_lshl_b32 s39, s44, 8")
            a("v_and_b32 v4, 31, v0")
            a("v_lshlrev_b32 v4, 3, v4")
            vm.issue("buffer_load_dword v245, v4, s[24:27], s39 offen offset:4%s" % SC, "g")
            a("s_lshl_b32 s39, s88, 3")
            a("s_add_u32 s39, s39, s3")
            a("s_lshl_b32 s39, s39, 8")
            vm.issue("buffer_load_dword v246, v4, s[24:27], s39 offen%s" % SC, "g")
        if sl == 3:
            a("s_xor_b32 s17, s17, 0x8000")
    keytile(1, top=top3, pre=2, extra=ex3, nobar=NOB3)
    gen1.stamp(a, "k3")
    a("s_mov_b32 s46, 5")
    a("s_mov_b32 s37, %d" % (3 if ab3.HP == 2 else 4))
    def ev():
        a.label("KF_EV")
        a("s_sub_u32 s37, s37, 1")
        a("s_cmp_eq_u32 s37, %d" % (2 if ab3.HP == 2 else 3))
        a("s_cbranch_scc0 KF_EV2")
        a("buffer_load_dword v%d, v%d, s[80:83], s96 offen sc1" % (vP, vPO))
        a("s_branch KF_EVR")
        a.label("KF_EV2")
        a("s_mov_b32 s37, 0")
        a("s_waitcnt vmcnt(14)")
        spin("KF_S2", 1, None, False, "s[80:83]", "s96", " ; kv-ok")
        a("v_cmp_lt_u32 vcc, v%d, v%d" % (vFR, vF))
        a("s_nop 4")
        a("s_branch KF_EVR")
    outl["ev"] = ev
    def it():
        a("s_cmp_eq_u32 s46, s37")
        a("s_cbranch_scc1 KF_EV")
        a.label("KF_EVR")
        keytile(0, down=True, lab="KF_P0"); keytile(1, down=True, loop=True, lab="KF_P1")
        a("s_cbranch_scc1 KF_LB")
    body = steady_loop(a, [vm, lg], it)
    a(".p2align 6")
    a.label("KF_LB")
    a.lines += body
    keytile(0, down=True, lab="KF_P2", last=True); keytile(1, down=True, lab="KF_P3", last=True)
    PV(3, 1, 1, 1)
    if LADDER: a("s_setprio 3")
    gen1.stamp(a, 7)
    OW = O + 48
    vm.wait(("W", 0), ("W", 1))
    a("s_waitcnt lgkmcnt(0)"); lg.ops = []
    a("s_barrier")
    gen1.stamp(a, "rb")
    for s in range(3):
        a("ds_read_b128 %s, v%d offset:%d" % (vr(O + 16 * s, 4), vRW + 6, s * 2304))
        a("ds_read_b128 %s, v%d offset:%d" % (vr(O + 16 * s + 4, 4), vRW + 6, s * 2304 + 1024))
        a("ds_read_b32 v%d, v%d offset:%d" % (O + 16 * s + 8, vRW + 7, s * 2304 + 2048))
    a("s_mov_b32 s38, %s" % hx(f2u(2.0 ** -60)))
    a("v_mov_b32 v5, %s" % hx(f2u(2.0 ** 40)))
    for s in range(3):
        a("s_waitcnt lgkmcnt(%d)" % (6 - 3 * s))
        for i in (8, 0, 1, 2, 3, 4, 5, 6, 7): a("v_add_f32 v%d, v%d, v%d" % (OW + i, OW + i, O + 16 * s + i))
    a.label("KF_CHK")
    a("v_mov_b32 v4, v%d" % (OW + 8))
    a("v_pk_add_f32 v[6:7], %s, %s" % (vr(OW, 2), vr(OW + 2, 2)))
    a("v_pk_add_f32 v[8:9], %s, %s" % (vr(OW + 4, 2), vr(OW + 6, 2)))
    a("v_permlane32_swap_b32 v%d, v4" % (OW + 8))
    a("v_pk_add_f32 v[6:7], v[6:7], v[8:9]")
    a("s_cmp_eq_u32 s46, 1")
    a("v_rcp_f32 v4, v%d" % (OW + 8))
    a("s_cbranch_scc1 KF_NORM")
    a("v_add_f32 v6, v6, v7")
    a("v_med3_f32 v5, v%d, s38, v5" % (OW + 8))
    a("v_fmac_f32 v5, 0, v6")
    a("v_cmp_eq_f32 vcc, v5, v%d" % (OW + 8))
    a("s_nop 1")
    a("s_cmp_eq_u64 vcc, -1")
    a("s_cbranch_scc0 KF_SLOW")
    a.label("KF_NORM")
    a("v_mul_f32 v4, v4, v246")
    for i in range(8): a("v_mul_f32 v%d, v%d, v4" % (OW + i, OW + i))
    for i in range(4): a("v_cvt_pk_bf16_f32 v%d, v%d, v%d" % (S[0] + i, OW + 2 * i, OW + 2 * i + 1))
    for i in range(4): a("v_min_u32 v%d, -2, v%d" % (S[0] + i, S[0] + i))
    vm.issue("buffer_store_dwordx4 %s, v1, s[52:55], s61 offen%s" % (vr(S[0], 4), SC), "o")
    gen1.stamp(a, "ost")
    WO = 64; OFR = 128; vG = 244; YA = 32
    a("s_lshl_b32 s60, s44, 15")
    a("s_lshl_b32 s39, s63, 13")
    a("s_add_u32 s60, s60, s39")
    a("s_add_u32 s47, s60, 4096")
    def ldO(i): return "buffer_load_dwordx4 %s, v1, s[52:55], %s offen offset:%d%s" % (vr(OFR + 4 * i, 4), "s60" if i < 4 else "s47", (i % 4) * 1024, SC)
    rdW(0, 0); rdW(0, 1)
    a("v_and_b32 v4, 31, v0")
    a("v_and_b32 v7, 0xfff, v%d" % vT0)
    a("s_lshl_b32 s39, s63, 14")
    a("v_add_u32 v7, s39, v7")
    a("v_xor_b32 v8, 64, v7")
    def rdWo(i):
        for ft in range(2):
            for q in range(2):
                lg.issue("ds_read_b64_tr_b16 %s, v%d offset:%d" % (vr(WO + 8 * i + 4 * ft + 2 * q, 2), 7 + ft, i * 2048 + q * 1024), ("wof", i))
    def lo(i): vm.issue(ldO(i), ("of", i))
    if EARLYO:
        vm.wait(("H", 1, 1))
        lo(0); DM(0, 0); lo(1); DM(0, 1); rdW(1, 0)
        lo(2); DM(0, 2); lo(3); DM(0, 3); rdW(1, 1)
        rdWo(0)
        lo(4); DM(1, 0); lo(5); DM(1, 1)
        rdWo(1); rdWo(2)
        lo(6); DM(1, 2); lo(7); DM(1, 3)
    else:
        DM(0, 0); DM(0, 1); rdW(1, 0)
        DM(0, 2); DM(0, 3); rdW(1, 1)
        rdWo(0)
        DM(1, 0); DM(1, 1)
        rdWo(1); rdWo(2)
        DM(1, 2); DM(1, 3)
        for i in range(8): lo(i)
    for i in range(3, 8):
        lg.wait(("wof", i - 3)); rdWo(i)
    a("v_lshlrev_b32 v6, 10, v4")
    a("v_lshrrev_b32 v9, 5, v0")
    a("v_lshl_add_u32 v6, v9, 4, v6")
    a("s_lshl_b32 s61, s44, 15")
    a("s_add_u32 s61, s61, s45")
    a("s_lshl_b32 s39, s63, 5")
    a("s_add_u32 s61, s61, s39")
    srd(a, 4, 12, 0, 2 * MB)
    a("s_mul_i32 s38, s62, %d" % (4 * 6912))
    a("s_add_u32 s38, s38, %d" % SCR)
    a("v_add_u32 v10, s38, v1")
    vm.wait("g")
    for i in range(32): a("v_mul_f32 v%d, v%d, v%d" % (DA + i, DA + i, vG + 1))
    lg.wait(("wof", 7))
    gen1.stamp(a, "so0")
    a("s_mov_b32 s38, 0x8000")
    def val(i):
        r = OFR + 4 * i
        a("v_max3_u32 v11, v%d, v%d, v%d" % (r, r + 1, r + 2))
        a("v_max_u32 v11, v11, v%d" % (r + 3))
        a("v_cmp_eq_u32 vcc, -1, v11")
    def mm(i):
        for ft in range(2):
            d = vr(DA + 16 * ft, 16)
            a("v_mfma_f32_32x32x16_bf16 %s, %s, %s, %s" % (d, vr(WO + 8 * i + 4 * ft, 4), vr(OFR + 4 * i, 4), d))
    if ORDERED:
        for i in range(8):
            vm.wait(("of", i))
            lab = "KF_O%d" % i
            a.label(lab)
            val(i)
            a("s_nop 0")
            a("s_cbranch_vccnz %s_RE" % lab)
            a.label(lab + "_OK")
            def slow(i=i, lab=lab):
                a.label(lab + "_RE")
                a("s_sub_u32 s38, s38, 1")
                a("s_cbranch_scc1 %s_GU" % lab)
                a("s_sleep 1")
                for j in range(i, 8): a(ldO(j))
                a("s_waitcnt vmcnt(0)")
                a("s_branch %s" % lab)
                a.label(lab + "_GU")
                a("s_mov_b32 s38, 0")
                a("s_branch %s_OK" % lab)
            outl[lab] = slow
            mm(i)
    else:
        a("s_mov_b32 s39, 0")
        for i in range(8):
            vm.wait(("of", i))
            val(i)
            a("s_nop 0")
            a("s_cbranch_vccnz KF_O%d_LATE" % i)
            mm(i)
            a.label("KF_O%d_NEXT" % i)
            def late(i=i):
                a.label("KF_O%d_LATE" % i)
                a("s_bitset1_b32 s39, %d" % i)
                a("s_branch KF_O%d_NEXT" % i)
            outl["late%d" % i] = late
        a("s_cmp_lg_u32 s39, 0")
        a("s_cbranch_scc1 KF_OR")
        a.label("KF_OD")
        def retry():
            a.label("KF_OR")
            for i in range(8):
                a("s_bitcmp1_b32 s39, %d" % i)
                a("s_cbranch_scc0 KF_OL%d" % i)
                a(ldO(i))
                a.label("KF_OL%d" % i)
            a("s_sub_u32 s38, s38, 1")
            a("s_cbranch_scc1 KF_OD")
            a("s_waitcnt vmcnt(0)")
            for i in range(8):
                a("s_bitcmp1_b32 s39, %d" % i)
                a("s_cbranch_scc0 KF_OM%d" % i)
                val(i)
                a("s_nop 0")
                a("s_cbranch_vccnz KF_OM%d" % i)
                mm(i)
                a("s_bitset0_b32 s39, %d" % i)
                a.label("KF_OM%d" % i)
            a("s_cmp_lg_u32 s39, 0")
            a("s_cbranch_scc1 KF_OR")
            a("s_branch KF_OD")
        outl["retry"] = retry
    gen1.stamp(a, "so1")
    a("s_cmp_ge_u32 s63, 2")
    a("s_nop 9")
    a("s_cbranch_scc1 KF_X2")
    a("s_cmp_eq_u32 s63, 1")
    a("s_cbranch_scc1 KF_X1")
    def fin(kq):
        idx = lambda src, dst: dst if dst < src else dst - 1
        for p in range(4):
            if p == kq: continue
            a("ds_write_b128 v%d, %s offset:%d" % (vRW + 6, vr(DA + 8 * p, 4), idx(kq, p) * 2048))
            a("ds_write_b128 v%d, %s offset:%d" % (vRW + 6, vr(DA + 8 * p + 4, 4), idx(kq, p) * 2048 + 1024))
        a("s_waitcnt lgkmcnt(0)")
        a("s_barrier")
        srcs = [s for s in range(4) if s != kq]
        for n, s in enumerate(srcs):
            a("ds_read_b128 %s, v10 offset:%d" % (vr(YA + 8 * n, 4), s * 6912 + idx(s, kq) * 2048))
            a("ds_read_b128 %s, v10 offset:%d" % (vr(YA + 8 * n + 4, 4), s * 6912 + idx(s, kq) * 2048 + 1024))
        a("s_waitcnt lgkmcnt(4)")
        for i in range(8): a("v_add_f32 v%d, v%d, v%d" % (YA + i, YA + i, DA + 8 * kq + i))
        a("s_waitcnt lgkmcnt(0)")
        for i in range(8): a("v_add_f32 v%d, v%d, v%d" % (YA + 8 + i, YA + 8 + i, YA + 16 + i))
        for i in range(8): a("v_add_f32 v%d, v%d, v%d" % (YA + i, YA + i, YA + 8 + i))
        for i in range(4): a("v_cvt_pk_bf16_f32 v%d, v%d, v%d" % (YA + 24 + i, YA + 2 * i, YA + 2 * i + 1))
        a("s_nop 1")
        a("v_permlane32_swap_b32 v%d, v%d" % (YA + 24, YA + 26))
        a("v_permlane32_swap_b32 v%d, v%d" % (YA + 25, YA + 27))
        a("buffer_store_dwordx4 %s, v6, s[4:7], s61 offen%s" % (vr(YA + 24, 4), OSC))
        gen1.stamp(a, "fin")
        gen1.stamp_end(a, 0, 14, 5)
        a("s_endpgm")
    fin(0)
    a.label("KF_X1"); fin(1)
    a.label("KF_X2")
    a("s_cmp_eq_u32 s63, 3")
    a("s_cbranch_scc1 KF_X3")
    fin(2)
    a.label("KF_X3"); fin(3)
    a.label("KF_END")
    a("s_endpgm")
    for f in list(outl.values()): f()
    a("s_endpgm")
    a.label("KF_SLOW")
    vm2 = VM(a)
    CB = O
    a("s_waitcnt vmcnt(0)")
    a("s_add_u32 s72, s73, %s" % hx(KF))
    srd(a, 8, 14, "s72", 65536)
    a("s_add_u32 s72, s73, %s" % hx(VF))
    srd(a, 64, 14, "s72", 65536)
    a("s_mov_b32 s72, 0")
    a("v_mov_b32 v4, 0xff800000")
    a("s_mov_b32 s46, 64")
    a.label("KF_SL1")
    ldK(vm2, 0)
    a("s_add_u32 s72, s72, 1024")
    a("s_waitcnt vmcnt(0)")
    QK(3, 0, 0)
    a("s_nop 15")
    for i in range(8): a("v_max3_f32 v4, v4, v%d, v%d" % (S[0] + 2 * i, S[0] + 2 * i + 1))
    a("s_sub_u32 s46, s46, 1"); a("s_cmp_lg_u32 s46, 0")
    a("s_cbranch_scc1 KF_SL1")
    a("v_mov_b32 v5, v4")
    a("s_nop 1")
    a("v_permlane32_swap_b32 v4, v5")
    a("s_nop 1")
    a("v_max_f32 v4, v4, v5")
    for i in range(16): a("v_sub_f32 v%d, 0, v4" % (CB + i))
    for i in range(16): a("v_mov_b32 v%d, 0" % (O + 48 + i))
    a("s_mov_b32 s72, 0")
    a("s_mov_b32 s46, 65")
    a.label("KF_SL2")
    ldK(vm2, 0); ldV(vm2, 0, False)
    a("s_waitcnt vmcnt(0)")
    a("v_mfma_f32_32x32x16_bf16 %s, %s, %s, %s" % (vr(S[0], 16), vr(K[0], 4), vr(Q + 12, 4), vr(CB, 16)))
    a("s_nop 15")
    for i in range(16): a("v_exp_f32 v%d, v%d" % (S[0] + i, S[0] + i))
    a("s_nop 1")
    PV(3, 0, 0, 0); PV(3, 0, 0, 1)
    a("s_sub_u32 s46, s46, 1"); a("s_cmp_lg_u32 s46, 1")
    a("s_cbranch_scc1 KF_SL2")
    a("s_nop 15")
    a("s_branch KF_CHK")
    a.label("KF_LAST")
    a("s_endpgm")
    return NAME, 256, "grid=(256,1,1) block=(512,1,1) lds=163840"

def parse(argv):
    global KVROT, OSC, LADDER, HPUB, LATE
    global WARM, NOWAIT, SPLIT, DMP, ORDERED, EARLYO, NOB3, SHT, SETG, OWNQ
    if 'noownq' in argv: OWNQ = False; ab3.BASES = -1
    for x in argv:
        if x.startswith('setg='): SETG = int(x[5:])
    for x in argv:
        if x.startswith('sht='): SHT = int(x[4:])
    if 'b3' in argv: NOB3 = False
    if 'lateo' in argv: EARLYO = False
    if 'ordered' in argv: ORDERED = True
    for x in argv:
        if x.startswith('dmp='): DMP = int(x[4:])
    if 'nosplit' in argv: SPLIT = 0
    if 'wait' in argv: NOWAIT = False
    if 'nowarm' in argv: WARM = False
    if "stamp" in argv: gen1.STAMP = True
    if "rt" in argv: gen1.RT = True
    gen3.GST = [32]
    for x in argv:
        if x.startswith("rot="): ab3.ROT = int(x[4:])
        if x.startswith("epr="): ab3.EPR = int(x[4:])
        if x == "pk": ab3.PK = True
        if x.startswith("hp="): ab3.HP = int(x[3:])
        if x.startswith("ep1r="): ab3.EP1R = int(x[5:])
        if x.startswith("bases="): ab3.BASES = int(x[6:])
        if x == "noaltr": ab3.ALTR = False
        if x == "swarm": ab3.SWARM = True
        if x.startswith("warmg="): ab3.WARMG = int(x[6:])
        if x.startswith("gcg="): ab3.GCG = int(x[4:])
        if x == "iwarm": ab3.IWARM = True
        if x.startswith("prio="): ab3.PRIO, ab3.PRG = [int(y) for y in x[5:].split(",")]
        if x.startswith("stg="): ab3.STG = int(x[4:])
        if x.startswith("eprr="): ab3.EPRR = int(x[5:])
        if x.startswith("ch="): ab3.CH = int(x[3:])
        if x.startswith("ldg="): ab3.LDG = dict(zip(("P", "R"), [int(y) for y in x[4:].split(",")]))
        if x.startswith("pld="): ab3.PLD = int(x[4:])
        if x.startswith("early="): ab3.EARLY = dict(zip(("P", "R"), [int(y) for y in x[6:].split(",")]))
        if x.startswith("d2="): ab3.D2 = int(x[3:])
        if x.startswith("pubs="): ab3.PUBS = dict(zip(("P", "R"), [int(y) for y in x[5:].split(",")]))
        if x.startswith("gst="): gen3.GST = [int(y) for y in x[4:].split(",")]
        if x.startswith("smap="): gen1.SMAP = [int(y) if y.isdigit() else y for y in x[5:].split(",")]
        if x == "nokvrot": KVROT = False
        if x == "noladder": LADDER = False
        if x.startswith("ladder="): LADDER = int(x[7:])
        if x == "ns4": gen3.NS4 = True
        if x.startswith("d8="): ab3.D8AT = dict(zip(("P", "R"), [int(y) for y in x[3:].split(",")]))
        if x.startswith("lead2="): gen3.LEAD2 = int(x[6:])
        if x == "fsync": gen3.FSYNC = True
        if x.startswith("sig="): gen3.SIG1, gen3.SIG2 = [int(y) for y in x[4:].split(",")]
        if x.startswith("xp="): XP.extend(x[3:].split(",")); ab3.XP = XP
        if x.startswith("hpub="): HPUB = int(x[5:])
        if x.startswith("osc="): OSC = " " + x[4:]
if __name__ == "__main__":
    parse(sys.argv)
    build1(sys.argv[1], kf, aslist=("list" in sys.argv))
```

```python
import sys
sys.path.insert(0, "gen")
import gen1, gen3
from gen1 import *
from asmlib import *
import ab4 as ab3
from gen3 import ab_prologue, SC
from ab4 import phase_ab
from gen5 import build1

FL = 17 * MB
RING = 65536; SCR = 98304
KVROT = True
LATE = True
WARM = True
NOWAIT = False
SPLIT = 1
DMP = 12
ORDERED = True
EARLYO = False
NOB3 = False
SHT = 1
SLP = 12
SETG = 10
OWNQ = False
SETN = 0
OSC = ""
LADDER = True
XP = []
HPUB = 1
NAME = "gated_mix__softmax_full_mha__swiglu_ffn__prompt_kernel"

def kf(a):
    header(a, NAME)
    Q = 128; K = [144, 148]; V = [152, 160]; S = [32, 48]; O = 64
    WF = 168; DA = 184; HB_ = 216
    vV, vIX, vP, vPO, vLD = 18, 19, 20, 21, 22
    vWA, vWB, vT0, vT1, vZ = 24, 25, 26, 27, 28
    vW0 = 23
    ab_prologue(a, "KF_END")
    def spin(lab, expect, vm, leader_only=False, sr_="s[84:87]", so="0", note=""):
        if vm: vm.wait("poll")
        a("v_cmp_le_u32 vcc, %d, v%d%s" % (expect, vP, note))
        a("s_mov_b32 s38, 0x8000")
        if leader_only:
            a("s_cmp_lg_u32 s3, 0")
            a("s_cbranch_scc1 %s_OK" % lab)
        a("s_cmp_eq_u64 vcc, -1")
        a("s_cbranch_scc1 %s_OK" % lab)
        a.label(lab)
        a("s_sleep %d" % (SLP if sr_ == "s[84:87]" else 4))
        a("buffer_load_dword v%d, v%d, %s, %s offen sc1%s" % (vP, vPO, sr_, so, note))
        a("s_sub_u32 s38, s38, 1")
        a("s_waitcnt vmcnt(0)")
        a("v_cmp_le_u32 vcc, %d, v%d" % (expect, vP))
        a("s_cselect_b32 s39, 1, 0")
        a("s_cmp_eq_u64 vcc, -1")
        a("s_cselect_b32 s39, 1, s39")
        a("s_cmp_eq_u32 s39, 0")
        a("s_cbranch_scc1 %s" % lab)
        a.label(lab + "_OK")
    def poll(vm, sr_="s[84:87]"): vm.issue("buffer_load_dword v%d, v%d, %s, 0 offen sc1" % (vP, vPO, sr_), "poll")
    def publish(vm, soff):
        a("v_mov_b32 v%d, 1" % vP)
        a("s_mov_b64 exec, 1")
        vm.issue("buffer_atomic_add v%d, v%d, s[84:87], %s offen sc1" % (vP, vLD, soff), "atom")
        a("s_mov_b64 exec, -1")
    KSC = "" if "plainkv" in XP else " nt" if "ntkv" in XP else SC
    def ldK(vm, b):
        vm.issue("buffer_load_dwordx4 %s, v1, s[8:11], s72 offen%s" % (vr(K[b], 4), KSC), ("K", b))
    def ldV(vm, b, wrap=True):
        a("s_mov_b64 exec, s[74:75]")
        vm.issue("buffer_load_dwordx4 %s, v%d, s[64:67], s72 offen%s" % (vr(V[b], 4), vV, KSC), ("V", b))
        vm.issue("buffer_load_dwordx4 %s, v%d, s[64:67], s72 offen offset:512%s" % (vr(V[b] + 4, 4), vV, KSC), ("V", b))
        a("s_mov_b64 exec, -1")
        a("s_add_u32 s72, s72, 1024")
        if wrap: a("s_and_b32 s72, s72, 0x3fff")
    def cap(fn):
        save = a.lines; a.lines = []
        fn(); L = a.lines; a.lines = save
        return [("s", l.strip(), None) for l in L]
    def early(vm):
        for i in range(4): a("v_mov_b32 v%d, -1" % (96 + i))
        vm.issue("buffer_store_dwordx4 v[96:99], v1, s[28:31], s53 offen%s" % SC, "sent")
        a("s_add_u32 s53, s59, 32768")
        a("s_mov_b64 exec, 1")
        vm.issue("buffer_store_dword v29, v%d, s[80:83], s59 offen%s" % (vLD, SC), "sent")
        vm.issue("buffer_store_dword v29, v%d, s[80:83], s53 offen%s" % (vLD, SC), "sent")
        if OWNQ: vm.issue("buffer_store_dword v29, v%d, s[80:83], s90 offen%s" % (vLD, SC), "sent")
        a("s_mov_b64 exec, -1")
    def setup():
        a("s_and_b32 s89, s2, 7")
        a("s_lshl_b32 s89, s89, 2")
        a("s_bfe_u32 s38, s2, 0x20003")
        a("s_add_u32 s89, s89, s38")
        a("s_lshr_b32 s88, s2, 5")
        a("s_lshr_b32 s62, s3, 2")
        a("s_and_b32 s63, s3, 3")
        a("s_cmp_eq_u32 s3, 0")
        a("s_cselect_b32 s38, 0, 0x20000")
        a("v_mov_b32 v%d, s38" % vLD)
        a("v_and_b32 v%d, 15, v0" % vV)
        a("v_lshlrev_b32 v%d, 4, v%d" % (vV, vV))
        a("v_mov_b32 v%d, v%d" % (vPO, vV))
        a("v_lshrrev_b32 v104, 5, v0")
        a("v_lshl_add_u32 v%d, v104, 8, v%d" % (vV, vV))
        a("v_mov_b32 v%d, 0xdddddddd" % vIX)
        a("s_mov_b32 s74, 0x0000ffff"); a("s_mov_b32 s75, 0x0000ffff")
        srd(a, 80, 14, FL, 98304)
        srd(a, 84, 100, 0, 256)
        a("s_lshl_b32 s73, s89, 16")
        srd(a, 68, 14, "s73", 65536)
        a("s_lshl_b32 s38, s63, 14")
        a("s_add_u32 s38, s38, s73")
        a("s_add_u32 s39, s38, %s" % hx(KF))
        srd(a, 8, 14, "s39", 16384)
        a("s_add_u32 s39, s38, %s" % hx(VF))
        srd(a, 64, 14, "s39", 16384)
        a("s_lshl_b32 s72, s88, 11")
        a("s_lshl_b32 s39, s88, 3")
        a("s_add_u32 s38, s3, s39")
        a("s_lshl_b32 s38, s38, 5")
        a("s_add_u32 s38, s38, s89")
        a("s_lshl_b32 s61, s38, 10")
        a("s_lshl_b32 s38, s62, 2")
        a("s_add_u32 s39, s39, s38")
        for i, r in enumerate(QS):
            a("s_add_u32 s38, s63, %d" % (i + 1))
            a("s_and_b32 s38, s38, 3")
            a("s_add_u32 s38, s38, s39")
            a("s_lshl_b32 %s, s38, 10" % r)
        a("v_bfe_u32 v105, v0, 4, 1")
        a("v_lshlrev_b32 v106, 2, v105")
        a("v_and_b32 v107, 7, v0")
        a("v_xor_b32 v106, v106, v107")
        a("v_lshlrev_b32 v106, 4, v106")
        a("v_lshrrev_b32 v107, 3, v0")
        a("v_lshl_add_u32 v%d, v107, 10, v106" % vW0)
        a("s_lshl_b32 s38, s62, 13")
        a("v_add_u32 v%d, s38, v%d" % (vWA, vW0))
        a("v_add_u32 v%d, %d, v%d" % (vWB, 16384 - 2048, vWA))
        a("v_bfe_u32 v107, v0, 2, 2")
        a("v_lshl_add_u32 v106, v104, 2, v107")
        a("v_bfe_u32 v107, v0, 1, 1")
        a("v_lshl_add_u32 v107, v105, 1, v107")
        a("v_bfe_u32 v108, v0, 3, 1")
        a("v_lshl_add_u32 v107, v108, 2, v107")
        a("v_lshlrev_b32 v107, 4, v107")
        a("v_and_b32 v108, 1, v0")
        a("v_lshl_add_u32 v107, v108, 3, v107")
        a("v_lshl_add_u32 v107, v106, 7, v107")
        a("s_lshl_b32 s16, s63, 12")
        a("s_add_u32 s16, s16, %d" % RING)
        a("v_add_u32 v%d, s16, v107" % vT0)
        a("v_xor_b32 v%d, 64, v%d" % (vT1, vT0))
        a("s_lshl_b32 s38, s62, 10")
        a("s_add_u32 s17, s16, s38")
        a("s_and_b32 s53, s89, 3")
        a("s_add_u32 s59, s53, s88")
        a("s_cmp_ge_u32 s59, 6")
        a("s_cselect_b32 s38, 6, 0")
        a("s_sub_u32 s59, s59, s38")
        a("s_lshl_b32 s59, s59, 2")
        a("s_mov_b32 s38, %s" % ("0x32dc7632" if ab3.HP == 2 else "0x10ba7610") + "")
        a("s_mov_b32 s39, %s" % ("0xdc76" if ab3.HP == 2 else "0xba76") + "")
        a("s_lshr_b64 s[38:39], s[38:39], s59")
        a("s_and_b32 s99, s38, 0xffffff")
        a("s_lshl_b32 s53, s53, 1")
        a("s_add_u32 s59, s53, s88")
        a("s_and_b32 s59, s59, 7")
        a("s_lshl_b32 s59, s59, 2")
        a("s_mov_b32 s38, %s" % ("0xba985410" if ab3.HP == 2 else "0xdc985432") + "")
        a("s_mov_b32 s39, s38")
        a("s_lshr_b64 s[38:39], s[38:39], s59")
        if ab3.HP == 2: a("s_mov_b32 s98, s38")
        else:
            a("s_lshl_b32 s98, s38, 24")
            a("s_or_b32 s98, s98, s99")
            a("s_lshr_b32 s99, s38, 8")
        a("s_add_u32 s53, s61, %s" % hx(OF))
        a("s_lshl_b32 s59, s18, 4")
        a("s_add_u32 s59, s59, s19")
        a("s_lshl_b32 s59, s59, 7")
        if OWNQ:
            a("s_lshl_b32 s90, s19, 4")
            a("s_add_u32 s90, s90, s18")
            a("s_lshl_b32 s90, s90, 7")
            a("s_add_u32 s90, s90, 65536")
            a("s_lshr_b32 s38, s89, 2")
            a("v_lshlrev_b32 v106, 3, v105")
            a("v_add_u32 v106, s38, v106")
            a("s_lshr_b32 s39, s38, 1")
            a("s_lshl_b32 s39, s39, 2")
            a("s_and_b32 s38, s38, 1")
            a("s_add_u32 s39, s39, s38")
            a("s_add_u32 s39, s39, 1")
            a("v_sub_u32 v107, s39, v106")
            a("v_mad_u32_u24 v106, v107, v104, v106") if False else None
            a("v_mul_i32_i24 v107, v107, v104")
            a("v_add_u32 v106, v106, v107")
            a("v_and_b32 v107, 15, v0")
            a("v_lshl_add_u32 v106, v106, 4, v107")
            a("v_lshlrev_b32 v106, 7, v106")
            a("v_add_u32 v28, 65536, v106")
    QS = ["s36", "s37", "s54", "s55"]
    def setup2b():
        a("v_and_b32 v3, 31, v0")
        a("v_cmp_eq_u32 s[20:21], 16, v3")
        a("v_mov_b32 v3, 0x3f803f80")
        a("s_nop 0")
        a("v_cndmask_b32 v%d, 0, v3, s[20:21]" % V[0])
        for i in range(1, 16): a("v_mov_b32 v%d, v%d" % (V[0] + i, V[0]))
    chunks = {}
    def ldq(vm, s):
        vm.issue("buffer_load_dwordx4 %s, v1, s[68:71], %s offen%s" % (vr(Q + 4 * s, 4), QS[s], SC), "Q")
    def hook(kind, vm, where):
        if where == "init": chunks.clear()
        elif where == "early": early(vm)
        elif where == "setup":
            if SETG < 0: setup()
            else: chunks["S"] = cap(setup)
        elif where == "base" and OWNQ or where == "pub" and not OWNQ:
            a("s_lshl_b32 s38, s19, 4")
            publish(vm, "s38")
        elif where == "pub":
            a("v_mov_b32 v%d, 1" % vP)
            a("s_mov_b64 exec, 1")
            vm.issue("buffer_store_dword v%d, v%d, s[80:83], s90 offen sc1" % (vP, vLD), "flag")
            a("s_mov_b64 exec, -1")
        elif where == "bpoll":
            if OWNQ: poll(vm)
        elif where == "poll":
            if OWNQ:
                spin("KF_SB_" + kind, 16, vm)
                a("v_mov_b32 v%d, v28" % vPO)
                poll(vm, "s[80:83]")
            elif "noq" not in XP: poll(vm)
        elif where == "ld":
            if OWNQ: spin("KF_SQ_" + kind, 1, vm, False, "s[80:83]")
            elif "noq" not in XP: spin("KF_SQ_" + kind, 16, vm)
            assert not chunks["V"]
            gen1.stamp(a, "sq1")
            ldq(vm, 0); ldK(vm, 0); ldq(vm, 1)
            if SPLIT == 0: ldq(vm, 2); ldq(vm, 3); ldV(vm, 0); ldK(vm, 1); ldV(vm, 1)
        elif where == "mid_h":
            if SPLIT: ldK(vm, 1); ldV(vm, 1)
        elif where == "warm":
            if not WARM: return
            srd(a, 28, 76, 0, 1792 * 1024)
            a("s_lshl_b32 s94, s2, 3")
            a("s_add_u32 s94, s94, s3")
            a("s_mul_i32 s96, s94, 896")
            a("v_lshlrev_b32 v29, 7, v0")
            a("s_mov_b64 exec, 0x7f")
            vm.issue("buffer_load_dword v30, v29, s[28:31], s96 offen ; dummy", "pf")
            srd(a, 28, 78, 0, 512 * 1024)
            a("s_lshl_b32 s96, s94, 8")
            a("s_mov_b64 exec, 3")
            vm.issue("buffer_load_dword v30, v29, s[28:31], s96 offen ; dummy", "pf")
            a("s_mov_b64 exec, -1")
        elif isinstance(where, tuple):
            g, n = where
            if g < 30:
                E_ = min(ab3.EARLY.values())
                if SETG < 0 or g < SETG or g >= E_: return []
                n = -(-len(chunks["S"]) // (E_ - g))
                while n < len(chunks["S"]) and chunks["S"][n][1].startswith(("s_cselect", "s_addc")): n += 1
                L = chunks["S"][:n]; chunks["S"] = chunks["S"][n:]
                if g == E_ - 1: assert not chunks["S"]
                return L
            if g < 44: return []
            if "L" not in chunks: chunks["L"] = []; chunks["V"] = cap(setup2b)
            key = "V"
            if key == "V" and g < 74: return []
            while n < len(chunks[key]) and chunks[key][n][1].startswith(("s_cselect", "s_addc")): n += 1
            L = chunks[key][:n]; chunks[key] = chunks[key][n:]
            return L
        elif where == "pre_h":
            a("s_setprio 3")
            if SPLIT: ldq(vm, 2); ldq(vm, 3); ldV(vm, 0)
    ENTRY = ["Q", ("K", 0), "Q", "Q", "Q", ("V", 0), ("V", 0), ("K", 1), ("V", 1), ("V", 1), "h", "h"]
    def tail(kind, vm):
        assert vm.ops[-12:] == ENTRY, vm.ops
        if kind != "P": a("s_branch KF_C")
    a("s_load_dwordx2 s[100:101], s[0:1], 72")
    a("s_load_dwordx2 s[76:77], s[0:1], 48")
    a("s_load_dwordx2 s[78:79], s[0:1], 16")
    phase_ab(a, tail, hook)
    a.label("KF_C")
    gen1.stamp(a, 5)
    if "idle" in XP:
        a("s_memrealtime s[38:39]")
        a("s_waitcnt lgkmcnt(0)")
        a("s_add_u32 s28, s38, 200")
        a.label("KF_IDLE")
        a("s_sleep 2")
        a("s_memrealtime s[38:39]")
        a("s_waitcnt lgkmcnt(0)")
        a("s_cmp_lt_u32 s38, s28")
        a("s_cbranch_scc1 KF_IDLE")
    vm = VM(a); vm.ops = list(ENTRY)
    lg = VM(a, "lgkmcnt", 15)
    a("s_load_dwordx2 s[12:13], s[0:1], 64")
    def QK(sl, kb, sb): a("v_mfma_f32_32x32x16_bf16 %s, %s, %s, 0" % (vr(S[sb], 16), vr(K[kb], 4), vr(Q + 4 * sl, 4)))
    def PV(sl, vb, sb, j): a("v_smfmac_f32_32x32x32_bf16 %s, %s, %s, v%d" % (vr(O + 16 * sl, 16), vr(V[vb] + 4 * j, 4), vr(S[sb] + 8 * j, 8), vIX))
    def ZERO(r): a("v_mfma_f32_32x32x16_bf16 %s, %s, %s, 0" % (vr(r, 16), vr(vZ, 4), vr(vZ, 4)))
    for i in range(4): a("v_mov_b32 v%d, 0" % (vZ + i))
    vm.wait(("K", 0))
    QK(0, 0, 0)
    for i in range(4): ZERO(O + 16 * i)
    a("s_lshr_b32 s38, s89, 1")
    a("s_lshl_b32 s38, s38, 11")
    a("v_and_b32 v%d, 15, v0" % vPO)
    a("v_lshl_add_u32 v%d, v%d, 7, s38" % (vPO, vPO))
    a("s_mov_b32 s96, 32768")
    a("s_lshl_b32 s44, s89, 1")
    a("s_add_u32 s44, s44, s62")
    a("s_mul_i32 s38, s44, 112")
    a("s_mul_i32 s39, s63, 28")
    a("s_add_u32 s38, s38, s39")
    a("s_lshl_b32 s38, s38, 10")
    a("s_add_u32 s38, s38, %s" % hx(HF))
    srd(a, 32, 14, "s38", 28 * 1024)
    a("s_lshl_b32 s38, s39, 14")
    a("s_lshl_b32 s45, s88, 7")
    a("s_add_u32 s38, s38, s45")
    a("s_sub_u32 s39, %d, s38" % (1792 * 1024))
    a("s_waitcnt lgkmcnt(0)")
    srd(a, 48, 76, "s38", "s39")
    srd(a, 40, 78, 0, 512 * 1024)
    FLG = 161792
    vF, vFA, vFB, vFR = 232, 233, 234, 235
    vRW = 236
    def ldH(b, k, so="s20"):
        vm.issue("buffer_load_dwordx4 %s, v1, s[32:35], %s offen offset:%d%s" % (vr(HB_ + 8 * b + 4 * k, 4), so, 1024 * k, SC), ("H", b, k))
    def ldW(b, k):
        if k == 0:
            a("s_and_b32 s20, s98, 15")
            a("s_lshr_b64 s[98:99], s[98:99], 4")
            a("s_add_u32 m0, s17, %d" % (b * 16384))
            a("s_lshl_b32 s21, s20, 15")
            a("s_lshl_b32 s20, s20, 11")
        vm.issue("buffer_load_dwordx4 v%d, s[48:51], s21 offen offset:%d lds" % (vWA + k, 2048 * k), ("W", b))
    def rdW(b, k):
        for ft in range(2):
            for q in range(2):
                lg.issue("ds_read_b64_tr_b16 %s, v%d offset:%d" % (vr(WF + 8 * k + 4 * ft + 2 * q, 2), vT0 + ft, b * 16384 + k * 2048 + q * 1024), ("w", k, ft))
    def DM(b, n):
        k, ft = n // 2, n % 2
        lg.wait(("w", k, ft))
        vm.wait(("H", b, k))
        d = vr(DA + 16 * ft, 16)
        a("v_mfma_f32_32x32x16_bf16 %s, %s, %s, %s" % (d, vr(WF + 8 * k + 4 * ft, 4), vr(HB_ + 8 * b + 4 * k, 4), d))
    def signal(b):
        a("v_add_u32 v%d, 1, v%d" % (vF, vF))
        vm.wait(("W", b))
        lg.issue("ds_write_b32 v%d, v%d" % (vFA, vF), "fw")
    def peek(): lg.issue("ds_read_b32 v%d, v%d" % (vFR, vFB), "fr")
    def precheck():
        lg.wait("fr")
        a("v_cmp_lt_u32 vcc, v%d, v%d" % (vFR, vF))
    def check(lab):
        a("s_cbranch_vccnz %s" % lab)
        a.label(lab + "_OK")
        def slow():
            a.label(lab)
            a("s_mov_b32 s38, 0x40000")
            a("s_setprio 0")
            a.label(lab + "_L")
            a("s_sleep 1")
            a("ds_read_b32 v%d, v%d" % (vFR, vFB))
            a("s_sub_u32 s38, s38, 1")
            a("s_waitcnt lgkmcnt(0)")
            a("v_cmp_lt_u32 vcc, v%d, v%d" % (vFR, vF))
            a("s_cbranch_scc1 %s_GO" % lab)
            a("s_cbranch_vccnz %s_L" % lab)
            a.label(lab + "_GO")
            a("s_setprio 3")
            a("s_branch %s_OK" % lab)
        outl[lab] = slow
    outl = {}
    def give(s):
        lg.issue("ds_write_b128 v%d, %s" % (vRW + 2 * s, vr(O + 16 * s, 4)), "gv")
        lg.issue("ds_write_b128 v%d, %s offset:1024" % (vRW + 2 * s, vr(O + 16 * s + 4, 4)), "gv")
        lg.issue("ds_write_b32 v%d, v%d offset:2048" % (vRW + 2 * s + 1, O + 16 * s + 8), "gv")
    def keytile(b, first=False, down=False, loop=None, top=None, extra=None, pre=False, lab=None, last=False, nobar=False):
        if top:
            top("pre")
            if not nobar: a("s_barrier")
            top("post")
        for sl in range(4):
            sb = sl % 2
            def E(i): a("v_exp_f32 v%d, v%d" % (S[sb] + i, S[sb] + i))
            if LADDER == 3:
                a("s_setprio %d" % (1 - sl % 2 if sl < 2 else 0)) if sl in (0, 1) else None
            elif LADDER == 4:
                if sl % 2 == 0: a("s_setprio %d" % (1 - sl // 2))
            elif LADDER == 2:
                if sl % 2 == 0: a("s_setprio %d" % (3 - 2 * b - sl // 2))
            elif LADDER: a("s_setprio %d" % (3 - sl))
            elif first and sl == 0: a("s_setprio 0")
            if down and sl == 0:
                if "nosync" not in XP: check(lab)
                if "nord" not in XP: rdW(b, 0)
            E(0); E(1)
            if sl == 0:
                if not first:
                    PV(3, 1 - b, 1, 1)
                    if not (last and b == 1): ldV(vm, 1 - b)
            else: PV(sl - 1, b, 1 - sb, 1)
            if down and sl == 1 and "nord" not in XP: rdW(b, 1)
            E(2); E(3); E(4)
            if sl == 3:
                if not (last and b == 1):
                    vm.wait(("K", 1 - b))
                    QK(0, 1 - b, 0)
            else:
                if first: vm.wait("Q")
                QK(sl + 1, b, 1 - sb)
                if sl == 2 and not last: ldK(vm, b)
            if (down or pre) and sl < 2 and not (down and "nold" in XP): ldW(b, sl)
            fin_ = last and b == 1
            if (down or pre == 2) and sl == 2 and not fin_: signal(1 - b)
            if (down or pre == 2) and sl == 3 and not fin_: peek()
            if fin_ and sl == 2:
                lg.wait(("w", 1, 1))
                a("s_barrier")
                give(0)
            for i in range(5, 10): E(i)
            if sl == 0: vm.wait(("V", b))
            if last and b == 1 and sl == 3: give(1)
            PV(sl, b, sb, 0)
            for i in range(10, DMP): E(i)
            if extra: extra(sl)
            if down:
                if "nodm" not in XP: DM(b, sl)
                if sl % 2 == 1 and "nold" not in XP: ldH(b, sl // 2)
                if sl == 3:
                    if b == 1:
                        a("v_xor_b32 v%d, 0x8000, v%d" % (vT0, vT0))
                        a("v_xor_b32 v%d, 0x8000, v%d" % (vT1, vT1))
                        a("s_xor_b32 s17, s17, 0x8000")
            if loop and sl == 3:
                a("s_sub_u32 s46, s46, 1"); a("s_cmp_lg_u32 s46, 0")
            for i in range(DMP, 14): E(i)
            if (down or pre == 2) and sl == 3 and not fin_: precheck()
            if fin_ and sl == 2: pass
            E(14); E(15)
            if fin_ and sl == 2: give(1) if False else None
            if fin_ and sl == 3: give(2)
    def pubH(tag, off):
        def f(when):
            if when == "pre":
                vm.wait(tag); lg.wait("fw")
            else:
                a("s_add_u32 s38, s59, %d" % off)
                a("v_mov_b32 v4, 1")
                a("s_mov_b64 exec, 1")
                vm.issue("buffer_store_dword v4, v%d, s[80:83], s38 offen sc1" % vLD, "flag")
                a("s_mov_b64 exec, -1")
        return f
    def wo_stage(i):
        a("s_add_u32 m0, s60, %d" % (i * 2048))
        a("s_add_u32 s38, s47, %d" % (i * 16384))
        vm.issue("buffer_load_dwordx4 v%d, s[40:43], s38 offen lds" % vW0, "wo")
        a("s_add_u32 s38, s38, %d" % (8192 - 1024))
        vm.issue("buffer_load_dwordx4 v%d, s[40:43], s38 offen offset:1024 lds" % vW0, "wo")
    a("s_lshl_b32 s60, s3, 13")
    a("s_lshl_b32 s47, s3, 16")
    a("s_add_u32 s47, s47, s45")
    def ex0(sl):
        if sl < 2: ZERO(DA + 16 * sl)
        if sl == 2:
            a("s_lshl_b32 s38, s3, 8")
            a("s_add_u32 s38, s38, %d" % FLG)
            a("v_lshl_add_u32 v%d, v0, 2, s38" % vFA)
            a("v_xor_b32 v%d, 1024, v%d" % (vFB, vFA))
            a("v_mov_b32 v%d, 0" % vF)
            lg.issue("ds_write_b32 v%d, v%d" % (vFA, vF), "fw")
            if NOB3:
                a("v_mov_b32 v247, 153600")
                lg.issue("ds_write_b32 v247, v%d" % vF, "fw")
    keytile(0, first=True, extra=ex0)
    gen1.stamp(a, "k0")
    keytile(1, top=pubH("Q", 0), extra=wo_stage)
    gen1.stamp(a, "k1")
    def ex2(sl):
        if sl == 2: poll(vm, "s[80:83]")
        if sl < 3:
            s = sl + 1
            a("s_add_u32 s28, s63, %d" % s)
            a("s_and_b32 s28, s28, 3")
            a("s_lshl_b32 s38, s62, 2")
            a("s_add_u32 s28, s28, s38")
            a("s_mul_i32 s28, s28, 3")
            a("s_add_u32 s28, s28, %d" % (s - 1))
            a("s_mul_i32 s28, s28, 2304")
            a("s_add_u32 s28, s28, %d" % SCR)
            a("v_add_u32 v%d, s28, v1" % (vRW + 2 * sl))
            a("v_lshl_add_u32 v%d, v0, 2, s28" % (vRW + 2 * sl + 1))
        else:
            a("s_mul_i32 s28, s3, %d" % (3 * 2304))
            a("s_add_u32 s28, s28, %d" % SCR)
            a("v_add_u32 v%d, s28, v1" % (vRW + 6))
            a("v_lshl_add_u32 v%d, v0, 2, s28" % (vRW + 7))
    keytile(0, pre=1, extra=ex2)
    a("s_mov_b32 s36, s20")
    gen1.stamp(a, "k2")
    def top3(when):
        if not NOB3 and when != "now": pubH("h", 32768)(when)
        if when == "post" and SHT < 0 or when == "now":
            spin("KF_SH", 1, vm, False, "s[80:83]")
            gen1.stamp(a, "sh1")
            ldH(0, 0, "s36"); ldH(0, 1, "s36")
    def ex3(sl):
        if sl == SHT: top3("now")
        if NOB3 and sl == 0:
            vm.wait("h")
            a("v_mov_b32 v5, 1")
            a("s_mov_b64 exec, 1")
            lg.issue("ds_add_rtn_u32 v6, v247, v5", "cnt")
            a("s_mov_b64 exec, -1")
        if NOB3 and sl == 1:
            a("s_lshl_b32 s38, s18, 4")
            a("s_add_u32 s38, s38, s19")
            a("s_lshl_b32 s38, s38, 7")
            a("s_add_u32 s38, s38, 32768")
            lg.wait("cnt")
            a("v_xor_b32 v6, 7, v6")
            a("v_lshlrev_b32 v6, 16, v6")
            a("s_mov_b64 exec, 1")
            vm.issue("buffer_store_dword v5, v6, s[80:83], s38 offen sc1", "flag")
            a("s_mov_b64 exec, -1")
        if sl % 2 == 1: ldH(1, sl // 2)
        if sl == 0: srd(a, 52, 14, OF, 2 * MB)
        if sl == 2:
            srd(a, 24, 14, GG, 16384)
            a("s_lshl_b32 s39, s44, 8")
            a("v_and_b32 v4, 31, v0")
            a("v_lshlrev_b32 v4, 3, v4")
            vm.issue("buffer_load_dword v245, v4, s[24:27], s39 offen offset:4%s" % SC, "g")
            a("s_lshl_b32 s39, s88, 3")
            a("s_add_u32 s39, s39, s3")
            a("s_lshl_b32 s39, s39, 8")
            vm.issue("buffer_load_dword v246, v4, s[24:27], s39 offen%s" % SC, "g")
        if sl == 3:
            a("s_xor_b32 s17, s17, 0x8000")
    keytile(1, top=top3, pre=2, extra=ex3, nobar=NOB3)
    gen1.stamp(a, "k3")
    a("s_mov_b32 s46, 5")
    a("s_mov_b32 s37, %d" % (3 if ab3.HP == 2 else 4))
    def ev():
        a.label("KF_EV")
        a("s_sub_u32 s37, s37, 1")
        a("s_cmp_eq_u32 s37, %d" % (2 if ab3.HP == 2 else 3))
        a("s_cbranch_scc0 KF_EV2")
        a("buffer_load_dword v%d, v%d, s[80:83], s96 offen sc1" % (vP, vPO))
        a("s_branch KF_EVR")
        a.label("KF_EV2")
        a("s_mov_b32 s37, 0")
        a("s_waitcnt vmcnt(14)")
        spin("KF_S2", 1, None, False, "s[80:83]", "s96", " ; kv-ok")
        a("v_cmp_lt_u32 vcc, v%d, v%d" % (vFR, vF))
        a("s_nop 4")
        a("s_branch KF_EVR")
    outl["ev"] = ev
    def it():
        a("s_cmp_eq_u32 s46, s37")
        a("s_cbranch_scc1 KF_EV")
        a.label("KF_EVR")
        keytile(0, down=True, lab="KF_P0"); keytile(1, down=True, loop=True, lab="KF_P1")
        a("s_cbranch_scc1 KF_LB")
    body = steady_loop(a, [vm, lg], it)
    a(".p2align 6")
    a.label("KF_LB")
    a.lines += body
    keytile(0, down=True, lab="KF_P2", last=True); keytile(1, down=True, lab="KF_P3", last=True)
    PV(3, 1, 1, 1)
    if LADDER: a("s_setprio 3")
    gen1.stamp(a, 7)
    OW = O + 48
    vm.wait(("W", 0), ("W", 1))
    a("s_waitcnt lgkmcnt(0)"); lg.ops = []
    a("s_barrier")
    gen1.stamp(a, "rb")
    for s in range(3):
        a("ds_read_b128 %s, v%d offset:%d" % (vr(O + 16 * s, 4), vRW + 6, s * 2304))
        a("ds_read_b128 %s, v%d offset:%d" % (vr(O + 16 * s + 4, 4), vRW + 6, s * 2304 + 1024))
        a("ds_read_b32 v%d, v%d offset:%d" % (O + 16 * s + 8, vRW + 7, s * 2304 + 2048))
    a("s_mov_b32 s38, %s" % hx(f2u(2.0 ** -60)))
    a("v_mov_b32 v5, %s" % hx(f2u(2.0 ** 40)))
    for s in range(3):
        a("s_waitcnt lgkmcnt(%d)" % (6 - 3 * s))
        for i in (8, 0, 1, 2, 3, 4, 5, 6, 7): a("v_add_f32 v%d, v%d, v%d" % (OW + i, OW + i, O + 16 * s + i))
    a.label("KF_CHK")
    a("v_mov_b32 v4, v%d" % (OW + 8))
    a("v_pk_add_f32 v[6:7], %s, %s" % (vr(OW, 2), vr(OW + 2, 2)))
    a("v_pk_add_f32 v[8:9], %s, %s" % (vr(OW + 4, 2), vr(OW + 6, 2)))
    a("v_permlane32_swap_b32 v%d, v4" % (OW + 8))
    a("v_pk_add_f32 v[6:7], v[6:7], v[8:9]")
    a("s_cmp_eq_u32 s46, 1")
    a("v_rcp_f32 v4, v%d" % (OW + 8))
    a("s_cbranch_scc1 KF_NORM")
    a("v_add_f32 v6, v6, v7")
    a("v_med3_f32 v5, v%d, s38, v5" % (OW + 8))
    a("v_fmac_f32 v5, 0, v6")
    a("v_cmp_eq_f32 vcc, v5, v%d" % (OW + 8))
    a("s_nop 1")
    a("s_cmp_eq_u64 vcc, -1")
    a("s_cbranch_scc0 KF_SLOW")
    a.label("KF_NORM")
    a("v_mul_f32 v4, v4, v246")
    for i in range(8): a("v_mul_f32 v%d, v%d, v4" % (OW + i, OW + i))
    for i in range(4): a("v_cvt_pk_bf16_f32 v%d, v%d, v%d" % (S[0] + i, OW + 2 * i, OW + 2 * i + 1))
    for i in range(4): a("v_min_u32 v%d, -2, v%d" % (S[0] + i, S[0] + i))
    vm.issue("buffer_store_dwordx4 %s, v1, s[52:55], s61 offen%s" % (vr(S[0], 4), SC), "o")
    gen1.stamp(a, "ost")
    WO = 64; OFR = 128; vG = 244; YA = 32
    a("s_lshl_b32 s60, s44, 15")
    a("s_lshl_b32 s39, s63, 13")
    a("s_add_u32 s60, s60, s39")
    a("s_add_u32 s47, s60, 4096")
    def ldO(i): return "buffer_load_dwordx4 %s, v1, s[52:55], %s offen offset:%d%s" % (vr(OFR + 4 * i, 4), "s60" if i < 4 else "s47", (i % 4) * 1024, SC)
    rdW(0, 0); rdW(0, 1)
    a("v_and_b32 v4, 31, v0")
    a("v_and_b32 v7, 0xfff, v%d" % vT0)
    a("s_lshl_b32 s39, s63, 14")
    a("v_add_u32 v7, s39, v7")
    a("v_xor_b32 v8, 64, v7")
    def rdWo(i):
        for ft in range(2):
            for q in range(2):
                lg.issue("ds_read_b64_tr_b16 %s, v%d offset:%d" % (vr(WO + 8 * i + 4 * ft + 2 * q, 2), 7 + ft, i * 2048 + q * 1024), ("wof", i))
    def lo(i): vm.issue(ldO(i), ("of", i))
    if EARLYO:
        vm.wait(("H", 1, 1))
        lo(0); DM(0, 0); lo(1); DM(0, 1); rdW(1, 0)
        lo(2); DM(0, 2); lo(3); DM(0, 3); rdW(1, 1)
        rdWo(0)
        lo(4); DM(1, 0); lo(5); DM(1, 1)
        rdWo(1); rdWo(2)
        lo(6); DM(1, 2); lo(7); DM(1, 3)
    else:
        DM(0, 0); DM(0, 1); rdW(1, 0)
        DM(0, 2); DM(0, 3); rdW(1, 1)
        rdWo(0)
        DM(1, 0); DM(1, 1)
        rdWo(1); rdWo(2)
        DM(1, 2); DM(1, 3)
        for i in range(8): lo(i)
    for i in range(3, 8):
        lg.wait(("wof", i - 3)); rdWo(i)
    a("v_lshlrev_b32 v6, 10, v4")
    a("v_lshrrev_b32 v9, 5, v0")
    a("v_lshl_add_u32 v6, v9, 4, v6")
    a("s_lshl_b32 s61, s44, 15")
    a("s_add_u32 s61, s61, s45")
    a("s_lshl_b32 s39, s63, 5")
    a("s_add_u32 s61, s61, s39")
    srd(a, 4, 12, 0, 2 * MB)
    a("s_mul_i32 s38, s62, %d" % (4 * 6912))
    a("s_add_u32 s38, s38, %d" % SCR)
    a("v_add_u32 v10, s38, v1")
    vm.wait("g")
    for i in range(32): a("v_mul_f32 v%d, v%d, v%d" % (DA + i, DA + i, vG + 1))
    lg.wait(("wof", 7))
    gen1.stamp(a, "so0")
    a("s_mov_b32 s38, 0x8000")
    def val(i):
        r = OFR + 4 * i
        a("v_max3_u32 v11, v%d, v%d, v%d" % (r, r + 1, r + 2))
        a("v_max_u32 v11, v11, v%d" % (r + 3))
        a("v_cmp_eq_u32 vcc, -1, v11")
    def mm(i):
        for ft in range(2):
            d = vr(DA + 16 * ft, 16)
            a("v_mfma_f32_32x32x16_bf16 %s, %s, %s, %s" % (d, vr(WO + 8 * i + 4 * ft, 4), vr(OFR + 4 * i, 4), d))
    if ORDERED:
        for i in range(8):
            vm.wait(("of", i))
            lab = "KF_O%d" % i
            a.label(lab)
            val(i)
            a("s_nop 0")
            a("s_cbranch_vccnz %s_RE" % lab)
            a.label(lab + "_OK")
            def slow(i=i, lab=lab):
                a.label(lab + "_RE")
                a("s_sub_u32 s38, s38, 1")
                a("s_cbranch_scc1 %s_GU" % lab)
                a("s_sleep 1")
                for j in range(i, 8): a(ldO(j))
                a("s_waitcnt vmcnt(0)")
                a("s_branch %s" % lab)
                a.label(lab + "_GU")
                a("s_mov_b32 s38, 0")
                a("s_branch %s_OK" % lab)
            outl[lab] = slow
            mm(i)
    else:
        a("s_mov_b32 s39, 0")
        for i in range(8):
            vm.wait(("of", i))
            val(i)
            a("s_nop 0")
            a("s_cbranch_vccnz KF_O%d_LATE" % i)
            mm(i)
            a.label("KF_O%d_NEXT" % i)
            def late(i=i):
                a.label("KF_O%d_LATE" % i)
                a("s_bitset1_b32 s39, %d" % i)
                a("s_branch KF_O%d_NEXT" % i)
            outl["late%d" % i] = late
        a("s_cmp_lg_u32 s39, 0")
        a("s_cbranch_scc1 KF_OR")
        a.label("KF_OD")
        def retry():
            a.label("KF_OR")
            for i in range(8):
                a("s_bitcmp1_b32 s39, %d" % i)
                a("s_cbranch_scc0 KF_OL%d" % i)
                a(ldO(i))
                a.label("KF_OL%d" % i)
            a("s_sub_u32 s38, s38, 1")
            a("s_cbranch_scc1 KF_OD")
            a("s_waitcnt vmcnt(0)")
            for i in range(8):
                a("s_bitcmp1_b32 s39, %d" % i)
                a("s_cbranch_scc0 KF_OM%d" % i)
                val(i)
                a("s_nop 0")
                a("s_cbranch_vccnz KF_OM%d" % i)
                mm(i)
                a("s_bitset0_b32 s39, %d" % i)
                a.label("KF_OM%d" % i)
            a("s_cmp_lg_u32 s39, 0")
            a("s_cbranch_scc1 KF_OR")
            a("s_branch KF_OD")
        outl["retry"] = retry
    gen1.stamp(a, "so1")
    a("s_cmp_ge_u32 s63, 2")
    a("s_nop 9")
    a("s_cbranch_scc1 KF_X2")
    a("s_cmp_eq_u32 s63, 1")
    a("s_cbranch_scc1 KF_X1")
    def fin(kq):
        idx = lambda src, dst: dst if dst < src else dst - 1
        for p in range(4):
            if p == kq: continue
            a("ds_write_b128 v%d, %s offset:%d" % (vRW + 6, vr(DA + 8 * p, 4), idx(kq, p) * 2048))
            a("ds_write_b128 v%d, %s offset:%d" % (vRW + 6, vr(DA + 8 * p + 4, 4), idx(kq, p) * 2048 + 1024))
        a("s_waitcnt lgkmcnt(0)")
        a("s_barrier")
        srcs = [s for s in range(4) if s != kq]
        for n, s in enumerate(srcs):
            a("ds_read_b128 %s, v10 offset:%d" % (vr(YA + 8 * n, 4), s * 6912 + idx(s, kq) * 2048))
            a("ds_read_b128 %s, v10 offset:%d" % (vr(YA + 8 * n + 4, 4), s * 6912 + idx(s, kq) * 2048 + 1024))
        a("s_waitcnt lgkmcnt(4)")
        for i in range(8): a("v_add_f32 v%d, v%d, v%d" % (YA + i, YA + i, DA + 8 * kq + i))
        a("s_waitcnt lgkmcnt(0)")
        for i in range(8): a("v_add_f32 v%d, v%d, v%d" % (YA + 8 + i, YA + 8 + i, YA + 16 + i))
        for i in range(8): a("v_add_f32 v%d, v%d, v%d" % (YA + i, YA + i, YA + 8 + i))
        for i in range(4): a("v_cvt_pk_bf16_f32 v%d, v%d, v%d" % (YA + 24 + i, YA + 2 * i, YA + 2 * i + 1))
        a("s_nop 1")
        a("v_permlane32_swap_b32 v%d, v%d" % (YA + 24, YA + 26))
        a("v_permlane32_swap_b32 v%d, v%d" % (YA + 25, YA + 27))
        a("buffer_store_dwordx4 %s, v6, s[4:7], s61 offen%s" % (vr(YA + 24, 4), OSC))
        gen1.stamp(a, "fin")
        gen1.stamp_end(a, 0, 14, 5)
        a("s_endpgm")
    fin(0)
    a.label("KF_X1"); fin(1)
    a.label("KF_X2")
    a("s_cmp_eq_u32 s63, 3")
    a("s_cbranch_scc1 KF_X3")
    fin(2)
    a.label("KF_X3"); fin(3)
    a.label("KF_END")
    a("s_endpgm")
    for f in list(outl.values()): f()
    a("s_endpgm")
    a.label("KF_SLOW")
    vm2 = VM(a)
    CB = O
    a("s_waitcnt vmcnt(0)")
    a("s_add_u32 s72, s73, %s" % hx(KF))
    srd(a, 8, 14, "s72", 65536)
    a("s_add_u32 s72, s73, %s" % hx(VF))
    srd(a, 64, 14, "s72", 65536)
    a("s_mov_b32 s72, 0")
    a("v_mov_b32 v4, 0xff800000")
    a("s_mov_b32 s46, 64")
    a.label("KF_SL1")
    ldK(vm2, 0)
    a("s_add_u32 s72, s72, 1024")
    a("s_waitcnt vmcnt(0)")
    QK(3, 0, 0)
    a("s_nop 15")
    for i in range(8): a("v_max3_f32 v4, v4, v%d, v%d" % (S[0] + 2 * i, S[0] + 2 * i + 1))
    a("s_sub_u32 s46, s46, 1"); a("s_cmp_lg_u32 s46, 0")
    a("s_cbranch_scc1 KF_SL1")
    a("v_mov_b32 v5, v4")
    a("s_nop 1")
    a("v_permlane32_swap_b32 v4, v5")
    a("s_nop 1")
    a("v_max_f32 v4, v4, v5")
    for i in range(16): a("v_sub_f32 v%d, 0, v4" % (CB + i))
    for i in range(16): a("v_mov_b32 v%d, 0" % (O + 48 + i))
    a("s_mov_b32 s72, 0")
    a("s_mov_b32 s46, 65")
    a.label("KF_SL2")
    ldK(vm2, 0); ldV(vm2, 0, False)
    a("s_waitcnt vmcnt(0)")
    a("v_mfma_f32_32x32x16_bf16 %s, %s, %s, %s" % (vr(S[0], 16), vr(K[0], 4), vr(Q + 12, 4), vr(CB, 16)))
    a("s_nop 15")
    for i in range(16): a("v_exp_f32 v%d, v%d" % (S[0] + i, S[0] + i))
    a("s_nop 1")
    PV(3, 0, 0, 0); PV(3, 0, 0, 1)
    a("s_sub_u32 s46, s46, 1"); a("s_cmp_lg_u32 s46, 1")
    a("s_cbranch_scc1 KF_SL2")
    a("s_nop 15")
    a("s_branch KF_CHK")
    a.label("KF_LAST")
    a("s_endpgm")
    return NAME, 256, "grid=(256,1,1) block=(512,1,1) lds=163840"

def parse(argv):
    global KVROT, OSC, LADDER, HPUB, LATE
    global WARM, NOWAIT, SPLIT, DMP, ORDERED, EARLYO, NOB3, SHT, SETG, OWNQ
    if 'noownq' in argv: OWNQ = False; ab3.BASES = -1
    for x in argv:
        if x.startswith('setg='): SETG = int(x[5:])
    for x in argv:
        if x.startswith('sht='): SHT = int(x[4:])
    if 'b3' in argv: NOB3 = False
    if 'lateo' in argv: EARLYO = False
    if 'ordered' in argv: ORDERED = True
    for x in argv:
        if x.startswith('dmp='): DMP = int(x[4:])
    if 'nosplit' in argv: SPLIT = 0
    if 'wait' in argv: NOWAIT = False
    if 'nowarm' in argv: WARM = False
    if "stamp" in argv: gen1.STAMP = True
    if "rt" in argv: gen1.RT = True
    gen3.GST = [32]
    for x in argv:
        if x.startswith("rot="): ab3.ROT = int(x[4:])
        if x.startswith("epr="): ab3.EPR = int(x[4:])
        if x == "pk": ab3.PK = True
        if x.startswith("hp="): ab3.HP = int(x[3:])
        if x.startswith("ep1r="): ab3.EP1R = int(x[5:])
        if x.startswith("bases="): ab3.BASES = int(x[6:])
        if x == "noaltr": ab3.ALTR = False
        if x == "swarm": ab3.SWARM = True
        if x.startswith("warmg="): ab3.WARMG = int(x[6:])
        if x.startswith("gcg="): ab3.GCG = int(x[4:])
        if x == "iwarm": ab3.IWARM = True
        if x.startswith("prio="): ab3.PRIO, ab3.PRG = [int(y) for y in x[5:].split(",")]
        if x.startswith("stg="): ab3.STG = int(x[4:])
        if x.startswith("eprr="): ab3.EPRR = int(x[5:])
        if x.startswith("ch="): ab3.CH = int(x[3:])
        if x.startswith("ldg="): ab3.LDG = dict(zip(("P", "R"), [int(y) for y in x[4:].split(",")]))
        if x.startswith("pld="): ab3.PLD = int(x[4:])
        if x.startswith("early="): ab3.EARLY = dict(zip(("P", "R"), [int(y) for y in x[6:].split(",")]))
        if x.startswith("d2="): ab3.D2 = int(x[3:])
        if x.startswith("pubs="): ab3.PUBS = dict(zip(("P", "R"), [int(y) for y in x[5:].split(",")]))
        if x.startswith("gst="): gen3.GST = [int(y) for y in x[4:].split(",")]
        if x.startswith("smap="): gen1.SMAP = [int(y) if y.isdigit() else y for y in x[5:].split(",")]
        if x == "nokvrot": KVROT = False
        if x == "noladder": LADDER = False
        if x.startswith("ladder="): LADDER = int(x[7:])
        if x == "ns4": gen3.NS4 = True
        if x.startswith("d8="): ab3.D8AT = dict(zip(("P", "R"), [int(y) for y in x[3:].split(",")]))
        if x.startswith("lead2="): gen3.LEAD2 = int(x[6:])
        if x == "fsync": gen3.FSYNC = True
        if x.startswith("sig="): gen3.SIG1, gen3.SIG2 = [int(y) for y in x[4:].split(",")]
        if x.startswith("xp="): XP.extend(x[3:].split(",")); ab3.XP = XP
        if x.startswith("hpub="): HPUB = int(x[5:])
        if x.startswith("osc="): OSC = " " + x[4:]
if __name__ == "__main__":
    parse(sys.argv)
    build1(sys.argv[1], kf, aslist=("list" in sys.argv))
```

```python
import sys
sys.path.insert(0, "gen")
import gen1
from gen1 import *
from asmlib import *
from gen2 import gate_code
SC = " sc1"
SLOT = 32768
GCG = -1
EPR = 9
PUBS = {"P": 11, "R": 13}
ROT = 8
PAIRS = False
PM = False
SPLITW = True
D8AT = {"P": -1, "R": -1}
HP = 1
BASES = -1
ALTP = False
ALTR = False
CHR = 2
EP1R = 4
SWARM = False
IWARM = True
PRIO = 0
PRG = 32
STG = 3
XP = []
PK = False
CH = 3
D2 = 3
PLD = 5; LDG = {"P": 93, "R": 93}; WARMG = 68
EARLY = {"P": 30, "R": 30}
EPRR = 9

def phase_ab(a, tail, hook):
    X = 128; WF = 32; E = 128
    SET = [64, 80, 96, 112]
    vAX, vT, vST, vAW1, vA2, vAM, vSV, vD, vDM = 2, 3, 4, 5, 7, 9, 10, 11, 16
    a("v_lshrrev_b32 v20, 4, v0")
    a("v_and_b32 v21, 7, v0")
    a("v_xor_b32 v22, v21, v20")
    a("v_lshlrev_b32 v22, 4, v22")
    a("v_lshrrev_b32 v23, 3, v0")
    a("v_lshl_add_u32 v22, v23, 10, v22")
    a("s_lshl_b32 s58, s3, 14")
    a("v_add_u32 v%d, s58, v22" % vD)
    a("v_xor_b32 v%d, 64, v%d" % (vD + 1, vD))
    a("v_add_u32 v%d, %d, v%d" % (vD + 1, 7168, vD + 1))
    a("v_and_b32 v22, 1, v20")
    a("v_lshlrev_b32 v22, 2, v22")
    a("v_xor_b32 v22, v22, v21")
    a("s_and_b32 s58, s3, 1")
    a("s_lshl_b32 s58, s58, 1")
    a("v_xor_b32 v22, s58, v22")
    a("v_lshlrev_b32 v22, 4, v22")
    a("s_lshl_b32 s58, s3, 3")
    a("v_add_u32 v23, s58, v23")
    a("v_mul_u32_u24 v24, 3072, v23")
    a("v_add_u32 v%d, v24, v22" % (vD + 2))
    a("s_lshl_b32 s56, s3, 11")
    a("s_lshl_b32 s57, s3, 10")
    a("s_lshl_b32 s44, s18, 17")
    a("s_lshl_b32 s45, s19, 7")
    a("s_sub_u32 s46, %d, s45" % (512 * 3072))
    a("s_lshl_b32 s50, s55, 1")
    a("s_add_u32 s50, s50, s18")
    if ROT != 8:
        a("s_add_u32 s50, s55, s18")
        a("s_and_b32 s50, s50, %d" % (ROT - 1))
        a("s_mul_i32 s50, s50, %d" % (8 // ROT))
    a("s_lshl_b32 s51, s54, 8")
    a("s_sub_u32 s51, 1920, s51")
    a("s_add_u32 s28, s55, 1")
    a("s_waitcnt lgkmcnt(0)")
    gen1.stamp(a, 1)
    if IWARM:
        a("s_getpc_b64 s[90:91]")
        a.label("AB_PC")
        a("s_lshl_b32 s92, s17, 3")
        a("s_add_u32 s92, s92, s3")
        a("s_lshl_b32 s92, s92, 7")
        a("s_min_u32 s92, s92, KF_LAST-AB_PC")
        a("s_load_dword s53, s[90:91], s92")
    srd(a, 20, 4, "s44", 128 * 1024)
    srd(a, 24, 6, "s45", "s46")
    a("s_bitcmp1_b32 s28, 1")
    a("s_cbranch_scc0 AB_P")

    def stream(kind):
        P = kind == "P" and not PM; PP = kind == "P" and PM
        assert not PM or HP == 1
        vm = VM(a); lg = VM(a, "lgkmcnt", 15)
        d8 = D8AT[kind]
        SL = [(t + (1 if PAIRS else 0)) % 5 for t in range(16)] if d8 < 0 else [0, 1, 2, 3, 0, 1, 2, 3, 4, 0, 1, 2, 3, 4, 0, 1]
        def base(s): return SL[s] * SLOT
        def after(t):
            if PAIRS and t >= 10: return t - 2 - t % 2
            prev = [u for u in range(t) if SL[u] == SL[t]]
            return max(prev[-1] + 2 if prev else 0, t - 3, 0)
        def dma(s):
            b = base(s); tag = ("d", s)
            G = []
            def grp(m0, off, txt, pre=None):
                G.append([("s", "s_add_u32 m0, %s, %s" % (m0, hx(off)))] + (pre or [("s", "s_nop 0")]) + [("v", txt)])
            ld = "buffer_load_dwordx4 v%d, s[%d:%d], %s offen offset:%d lds"
            if s < 8:
                pre = [("s", "s_add_u32 s48, s50, %d" % s), ("s", "s_and_b32 s48, s48, 7"),
                       ("s", "s_mul_i32 s49, s48, %d" % (64 * 3072)), ("s", "s_lshl_b32 s48, s48, 7")]
                grp("s56", b, ld % (vD, 20, 23, "s48", 0), pre)
                G.append([("v", ld % (vD + 1, 20, 23, "s48", 1024))])
                grp("s57", b + 16384, ld % (vD + 2, 24, 27, "s49", 0))
                if PP: grp("s57", b + 24576, ld % (vDM, 4, 7, "s49", 0), [("s", "s_mul_i32 s49, s48, 1792")])
                elif not P: grp("s57", b + 24576, ld % (vD + 2, 24, 27, "s49", 0), [("s", "s_add_u32 s49, s49, s51")])
            else:
                for c in range(2):
                    pos = (2 * (s - 8) + c) % 8
                    pre = [("s", "s_add_u32 s48, s50, %d" % pos), ("s", "s_and_b32 s48, s48, 7"),
                           ("s", "s_mul_i32 s49, s48, %d" % (64 * 3584)), ("s", "s_add_u32 s49, s49, s%d" % (52 if s < 12 else 97))]
                    if P or (s < 12) == (HP == 2):
                        grp("s57", b + c * 16384, ld % (vD + 3, 40, 43, "s49", 0), pre)
                        grp("s57", b + c * 16384 + 8192, ld % (vD + 3, 44, 47, "s49", 0))
                    else:
                        grp("s57", b + c * 8192, ld % (vDM, 4, 7, "s49", 0), pre)
            return [[(k, t, tag) for (k, t) in g] for g in G]
        def flat(G): return [x for g in G for x in g]
        def emit(it):
            k, t, tag = it
            if k == "v": vm.issue(t, tag)
            elif k == "l": lg.issue(t, tag)
            elif k == "f": t()
            else: a(t)
        def ffn_setup():
            a("s_lshl_b32 s58, s55, 3")
            a("s_lshr_b32 s38, 0x140e0800, s58")
            a("s_and_b32 s38, s38, 0xff")
            a("s_lshr_b32 s52, %s, s58" % ("0x00400000" if HP == 2 else "0x40008040" if PM else "0x00008000"))
            a("s_and_b32 s52, s52, 0xff")
            a("s_lshr_b32 s97, %s, s58" % ("0x80008080" if HP == 2 else "0x80400080"))
            a("s_and_b32 s97, s97, 0xff")
            a("s_mul_i32 s58, s54, 28")
            a("s_add_u32 s58, s58, s38")
            a("s_lshl_b32 s38, s58, 5")
            a("s_sub_u32 s39, %d, s38" % (512 * 3584))
            srd(a, 40, 8, "s38", "s39")
            srd(a, 44, 10, "s38", "s39")
            a("v_mul_u32_u24 v24, 3584, v23")
            a("v_add_u32 v%d, v24, v22" % (vD + 3))
            if not P:
                a("v_lshrrev_b32 v23, 2, v0")
                a("s_lshl_b32 s38, s36, 4")
                a("v_add_u32 v23, s38, v23")
                a("v_mul_u32_u24 v23, 3584, v23")
                a("v_and_b32 v24, 3, v0")
                a("v_lshrrev_b32 v25, 5, v0")
                a("v_lshlrev_b32 v25, 1, v25")
                a("v_xor_b32 v24, v25, v24")
                a("s_cmp_eq_u32 s37, 0")
                a("s_cselect_b32 s4, s40, s44")
                a("s_cselect_b32 s5, s41, s45")
                a("s_mov_b32 s6, s42")
                a("s_mov_b32 s7, 0x20000")
                a("v_lshl_add_u32 v%d, v24, 4, v23" % vDM)
        gi0, gc0 = gate_code(a, vm, "s[28:31]", "s[20:23]", "s39", X + 112)
        if GCG >= 0:
            for it in flat(dma(0)): emit(it)
        srd(a, 28, 12, 0, 1024)
        a("s_lshl_b32 s60, s19, 3")
        a("s_add_u32 s60, s60, s3")
        a("s_lshl_b32 s39, s60, 10")
        gi0()
        if GCG < 0:
            D0 = dma(0)
            for it in flat(D0[:3]): emit(it)
            if PP: ffn_setup()
            for it in flat(D0[3:]): emit(it)
        a("s_barrier")
        for it in flat(dma(1)): emit(it)
        hook(kind, vm, "init")
        if SWARM:
            a("s_lshl_b32 s38, s2, 3")
            a("s_add_u32 s38, s38, s3")
            a("s_mul_i32 s38, s38, 896")
            a("s_add_u32 s90, s8, s38"); a("s_addc_u32 s91, s9, 0")
            a("s_add_u32 s92, s10, s38"); a("s_addc_u32 s93, s11, 0")
            for i in range(7):
                a("s_load_dword s53, s[90:91], %d" % (128 * i))
                a("s_load_dword s53, s[92:93], %d" % (128 * i))
        if not PP: ffn_setup()
        a("v_and_b32 v24, 15, v0")
        a("v_lshrrev_b32 v25, 4, v0")
        a("v_bfe_u32 v26, v0, 1, 3")
        a("v_xor_b32 v26, v25, v26")
        a("v_lshlrev_b32 v26, 4, v26")
        a("v_lshl_add_u32 v26, v24, 7, v26")
        a("s_lshl_b32 s38, s36, 12")
        if base(0): a("s_add_u32 s38, s38, %d" % base(0))
        a("v_add_u32 v%d, s38, v26" % vAX)
        a("v_bfe_u32 v21, v0, 2, 2")
        a("v_lshl_add_u32 v26, v25, 3, v21")
        a("v_bfe_u32 v27, v0, 4, 1")
        a("v_and_b32 v28, 3, v0")
        a("v_lshlrev_b32 v28, 3, v28")
        a("v_bfe_u32 v30, v0, 3, 1")
        a("v_xor_b32 v23, s37, v30")
        a("v_lshl_add_u32 v23, v23, 1, v27")
        a("v_lshl_add_u32 v29, v23, 5, v28")
        a("v_lshl_add_u32 v29, v26, 7, v29")
        a("v_add_u32 v%d, %d, v29" % (vAW1, 16384 + base(0)))
        a("v_xor_b32 v%d, 32, v%d" % (vAW1 + 1, vAW1))
        a("v_add_u32 v%d, %d, v29" % (vA2, base(8 if P or HP == 2 else 12)))
        a("v_xor_b32 v%d, 32, v%d" % (vA2 + 1, vA2))
        if not P:
            a("v_xor_b32 v23, s37, v27")
            a("v_lshl_add_u32 v29, v23, 5, v28")
            a("v_lshl_add_u32 v29, v26, 6, v29")
            a("v_add_u32 v%d, %d, v29" % (vAM, base(12 if HP == 2 else 8)))
            if PP: a("v_add_u32 v%d, %d, v29" % (vSV, 24576 + base(0)))
        a("v_lshrrev_b32 v25, 5, v0")
        a("s_lshl_b32 s90, s18, 2")
        a("s_add_u32 s90, s90, s36")
        a("s_lshl_b32 s91, s90, 10")
        a("s_mul_i32 s90, s90, 112")
        a("s_add_u32 s90, s90, s58")
        a("s_lshr_b32 s38, s52, 5")
        a("s_add_u32 s95, s90, s38")
        a("s_lshr_b32 s38, s97, 5")
        a("s_add_u32 s58, s90, s38")
        a("s_lshl_b32 s38, s37, 1")
        a("s_add_u32 s58, s58, %s" % ("s38" if P or HP == 1 else "s37"))
        a("s_lshl_b32 s58, s58, 10")
        a("s_add_u32 s95, s95, %s" % ("s38" if P or HP == 2 else "s37"))
        a("s_lshl_b32 s95, s95, 10")
        if PP:
            a("s_add_u32 s96, s90, s37")
            a("s_lshl_b32 s96, s96, 10")
        elif not P:
            a("v_and_b32 v29, 15, v0")
            a("v_lshlrev_b32 v29, 4, v29")
            a("v_lshl_add_u32 v29, v25, 8, v29")
            a("v_lshl_add_u32 v%d, v27, 16, v29" % vSV)
            a("s_lshl_b32 s38, s54, 1")
            a("s_add_u32 s38, s38, s55")
            a("s_sub_u32 s38, s38, 1")
            a("s_lshl_b32 s38, s38, 18")
            a("s_add_u32 s96, s91, s38")
            a("s_lshl_b32 s38, s37, 17")
            a("s_add_u32 s96, s96, s38")
            a("s_add_u32 s96, s96, %s" % hx(VF))
        a("s_cmp_lt_u32 s19, 8")
        a("s_cselect_b32 s92, %s, 1.0" % hx(f2u(0.25 * LOG2E)))
        a("s_mov_b32 s93, s92")
        a("s_lshl_b32 s38, s19, 18")
        a("s_add_u32 s91, s91, s38")
        a("s_lshl_b32 s38, s37, 17")
        a("s_add_u32 s91, s91, s38")
        a("s_add_u32 s94, s91, 0x10000")
        def gc():
            o = gc0()
            a("v_mov_b32 v30, v%d" % o); a("v_mov_b32 v31, v%d" % (o + 1))
            srd(a, 28, 14, 0, 17 * MB)
            a("s_lshl_b32 s39, s18, 7")
            a("s_add_u32 s60, s60, s39")
            a("s_lshl_b32 s60, s60, 3")
            a("s_add_u32 s60, s60, %s" % hx(GG))
            a("v_mov_b32 v29, 0")
        def gst():
            a("s_mov_b32 exec_lo, 0")
            a("s_mov_b32 exec_hi, 0x80000000")
            vm.issue("buffer_store_dwordx2 v[30:31], v29, s[28:31], s60 offen%s" % SC, "gst")
            a("s_mov_b64 exec, -1")
        T = [[3], [0, 1], [2, 3]] if P else [[0, 1], [2, 3], [0]] if HP == 2 else [[0, 1], [2], [0, 1]]
        ALT = [2 if ALTP else None, None, None] if P else [None, None, 1 if ALTR else None] if HP == 2 else [None, 3 if ALTR else None, None]
        DIST = [2, D2, D2] if P else [2, D2, 4] if HP == 2 else [2, 4, D2]
        def ph(g): return g // 32
        def stage(g): return g // 4 if g < 32 else 8 + (g - 32) // 8
        def first(g): return g % 4 == 0 if g < 32 else g % 8 == 0
        def wf(g, n, f):
            S = g // 2; nt = len(T[ph(g)])
            nb = 2 if nt == 2 else (4 if ph(g) == 0 else 3)
            if not P and HP == 1 and ph(g) == 2: S += 1
            return WF + 8 * nt * ((S if nb == 2 else S % 16) % nb) + 8 * n + 4 * f
        def wregs(g): return set(r for n in range(len(T[ph(g)])) for r in range(wf(g, n, 0), wf(g, n, 0) + 8))
        def reads(g):
            s = stage(g); p = ph(g); L = []
            if p == 0: R = [vAX, vAW1, vAW1 + 1] + ([vSV] if PP else [])
            elif p == HP and not P: R = [vAM]
            else: R = [vA2, vA2 + 1]
            if first(g) and s not in (0, 8) and not (s == 12 and not P):
                d = base(s) - base(s - 1)
                for r in R: L.append(("s", "v_add_u32 v%d, %s, v%d" % (r, hx(d), r), None))
            ks = g % 4
            if p == 0:
                if ks == 2: L.append(("s", "v_xor_b32 v%d, 64, v%d" % (vT, vAX), None))
                L.append(("l", "ds_read_b128 %s, v%d offset:%d" % (vr(X + 4 * g, 4), vT if ks >= 2 else vAX, (ks % 2) * 2048), g))
            if g % 2: return L
            c = 0 if p == 0 else (g % 8) // 4
            for n in range(len(T[p])):
                for f in range(2):
                    if p == 0 and n == 1 and PP: ad, off, rb_ = vSV, f * 4096, 64
                    elif p == 0: ad, off, rb_ = vAW1 + f, n * 8192, 128
                    elif R[0] == vAM: ad, off, rb_ = vAM, c * 8192 + f * 4096, 64
                    else: ad, off, rb_ = vA2 + n, c * 16384 + f * 8192, 128
                    for j in range(2):
                        L.append(("l", "ds_read_b64_tr_b16 %s, v%d offset:%d" % (vr(wf(g, n, f) + 2 * j, 2), ad, off + (16 * ks + 4 * j) * rb_), (g, 1) if (n == 1 and SPLITW) else g))
            return L
        def mfmas(g):
            L = []
            x = vr(X + 4 * (g % 32), 4); h = g % 2
            for n, ac in enumerate(T[ph(g)]):
                for f in range(2):
                    w = vr(wf(g, n, f), 4)
                    if g < 32 and n == 1 and not PP: d = vr(SET[ac] + 8 * h + 4 * f, 4); A, B = x, w
                    else: d = vr(SET[ac] + 8 * f + 4 * h, 4); A, B = w, x
                    L.append("v_mfma_f32_16x16x32_bf16 %s, %s, %s, %s" % (d, A, B, "0" if g % 32 < 2 else d))
            return L
        def qkv_epi(n):
            b = SET[T[0][n]]; L = []
            if n == 0:
                for i in range(16): L.append(("s", "v_mul_f32 v%d, s92, v%d" % (b + i, b + i), None))
            for i in range(8): L.append(("s", "v_cvt_pk_bf16_f32 v%d, v%d, v%d" % (b + i, b + 2 * i, b + 2 * i + 1), None))
            for i in (0, 1, 4, 5): L.append(("s", "v_permlane16_swap_b32 v%d, v%d" % (b + i, b + i + 2), None))
            if n == 0:
                L.append(("v", "buffer_store_dwordx4 %s, v1, s[28:31], s91 offen%s" % (vr(b, 4), SC), "qkv"))
                L.append(("v", "buffer_store_dwordx4 %s, v1, s[28:31], s94 offen%s" % (vr(b + 4, 4), SC), "qkv"))
            else:
                for j in range(2):
                    L.append(("v", "buffer_store_dwordx4 %s, v%d, s[28:31], s96 offen offset:%d%s" % (vr(b + 4 * j, 4), vSV, j * 512, SC), "qkv"))
            return L
        def silu(G, Tm, so, off, tag, pk=True):
            U = G + 8; L = []
            def op(o, d, x, y):
                if pk:
                    for i in range(4): L.append("v_pk_%s_f32 %s, %s, %s" % (o, vr(d + 2 * i, 2), vr(x + 2 * i, 2), y if isinstance(y, str) else vr(y + 2 * i, 2)))
                else:
                    for i in range(8): L.append("v_%s_f32 v%d, %s, v%d" % (o, d + i, {"s[92:93]": "s92", "s[12:13]": "1.0"}.get(y, None) or "v%d" % (y + i), x + i))
            op("mul", Tm, G, "s[92:93]")
            for i in range(8): L.append("v_exp_f32 v%d, v%d" % (Tm + i, Tm + i))
            op("mul", G, G, U)
            op("add", Tm, Tm, "s[12:13]")
            for i in range(8): L.append("v_rcp_f32 v%d, v%d" % (Tm + i, Tm + i))
            L.append("s_nop 0")
            op("mul", G, G, Tm)
            for i in range(4): L.append("v_cvt_pk_bf16_f32 v%d, v%d, v%d" % (G + i, G + 2 * i, G + 2 * i + 1))
            L.append("s_nop 0")
            for i in range(2): L.append("v_permlane16_swap_b32 v%d, v%d" % (G + i, G + i + 2))
            L = [("s", t, None) for t in L]
            L.append(("v", "buffer_store_dwordx4 %s, v1, s[32:35], %s offen offset:%d%s" % (vr(G, 4), so, off, SC), tag))
            return L
        def consts():
            a("s_mov_b32 s92, %s" % hx(f2u(-LOG2E))); a("s_mov_b32 s93, s92")
            a("s_mov_b32 s12, 1.0"); a("s_mov_b32 s13, 1.0")
            srd(a, 32, 14, HF, 7 * MB)
        ep1 = []
        if PP: ep1 = qkv_epi(0) + [("f", consts, None)] + silu(SET[T[0][1]], 56, "s96", 0, "h1", PK)
        else:
            for n in reversed(range(len(T[0]))): ep1 += qkv_epi(n)
        ep0 = [("f", lambda: hook(kind, vm, "early"), None), ("f", gst, None)]
        if "noearly" in XP: ep0 = []
        ep1b = [("f", consts, None)] if not PP else []
        assert EARLY[kind] <= 30
        if "noqst" in XP: ep1 = [x for x in ep1 if x[0] != "v"]
        if "noep1" in XP: ep1 = [x for x in ep1 if x[0] == "v"]
        if "plainq" in XP: ep1 = [(k, t.replace(SC, ""), g) if k == "v" else (k, t, g) for (k, t, g) in ep1]
        ep2 = []
        if ALT[1] is not None:
            for i in range(16): ep2.append(("s", "v_add_f32 v%d, v%d, v%d" % (SET[T[1][0]] + i, SET[T[1][0]] + i, SET[ALT[1]] + i), None))
        for n, ac in enumerate(T[1]): ep2 += silu(SET[ac], E if P or HP == 1 else 56, "s95", n * 1024, "h1", PK)
        if "noep2" in XP: ep2 = []
        if "ep2nost" in XP: ep2 = [x for x in ep2 if x[0] != "v"]
        islot = {}
        last = -1
        for g in range(96):
            want = g - DIST[ph(g)]
            if g % 2 == 0:
                for g2 in range(g - 1, max(-1, g - 12), -1):
                    if wregs(g) & wregs(g2): want = max(want, g2 + 1); break
            want = max(want, last)
            assert want < g or g == 0, g
            islot[g] = want; last = want
        syncs = {islot[g]: stage(g) for g in range(1, 96) if first(g) and not (PAIRS and stage(g) > 8 and stage(g) % 2)}
        def barrier(s):
            if PAIRS and s >= 8: vm.wait(("d", s + 1), *(("qkv", "gst", "sent") if s == PUBS[kind] else ()))
            elif s == PUBS[kind]: vm.wait(("d", s), "qkv", "gst", "sent")
            elif s == BASES: vm.wait(("d", s), "gst", "sent")
            else: vm.wait(("d", s))
            if s == (14 if PAIRS else 15): a("s_waitcnt lgkmcnt(0)"); lg.ops = []
            a("s_barrier")
            if s == BASES: hook(kind, vm, "base")
            if s == PUBS[kind]: hook(kind, vm, "pub")
        hook(kind, vm, "setup")
        if GCG < 0: gc()
        barrier(0)
        if SWARM or IWARM: a("s_waitcnt lgkmcnt(0)")
        gen1.stamp(a, 2)
        for g in range(96):
            if islot[g] < 0:
                for it in reads(g): emit(it)
        stq = []; nst = [0]; late = []
        pend = []
        for t in range(2, 16):
            if after(t) == 0 and not (t == 8 and d8 >= 0): pend += dma(t)
            if t == d8 and after(t) == 0: pend += dma(8)
        for g in range(96):
            O = []
            O += late; late = []
            for g2 in range(g + 1, 96):
                if islot[g2] == g:
                    Lr = reads(g2)
                    if g2 - g >= 2:
                        late += [it for it in Lr if it[2] == (g2, 1)]
                        Lr = [it for it in Lr if it[2] != (g2, 1)]
                    O += Lr
            bar = syncs.get(g)
            if bar is not None:
                assert not any(it[2] in (("d", bar), ("d", bar + 1) if PAIRS and bar >= 8 else None) for grp in pend for it in grp), (g, bar)
                for t in range(2, 16):
                    if after(t) == bar and not (t == 8 and d8 >= 0): pend += dma(t)
                    if t == d8 and after(t) == bar: pend += dma(8)
            if pend and (g < 32 or g % 2 == 0 or len(pend) > (5 if PAIRS else 4)):
                for _ in range(2 if len(pend) > 3 and g < 32 else 1): O += pend.pop(0)
            if g == GCG: O.append(("f", gc, None))
            if ep0 and g >= EARLY[kind]: O.append(ep0.pop(0))
            if g >= 34 and stq and g >= nst[0] and None not in stq[:2]:
                O += stq.pop(0); nst[0] = g + STG
            if g >= 34 and ep1:
                n = EPR + 2 if P or HP == 2 else EP1R
                for it in ep1[:n]:
                    if it[0] == "v": stq.append([it])
                    elif it[0] == "s" and it[1].startswith("s_add_u32 s9"): stq.append([it]) ; stq.append(None)
                    else: O.append(it)
                ep1 = ep1[n:]
                i = 0
                while i < len(stq):
                    if stq[i] is None and i + 1 < len(stq):
                        stq[i - 1] = stq[i - 1] + stq[i + 1]
                        del stq[i:i + 2]
                    else: i += 1
            elif stq: pass
            elif g >= max(34, EARLY[kind]) and ep1b and g >= nst[0]: O.append(ep1b.pop(0)); nst[0] = g + 2
            elif g >= (67 if P or HP == 1 else 66) and ep2:
                n = EPR if P else EPRR
                O += ep2[:n]; ep2 = ep2[n:]
                O += hook(kind, vm, (g, CH if P else CHR)) or []
            elif g >= 34 and not ep1b:
                O += hook(kind, vm, (g, 6 if g < 64 else 10)) or []
            if g < 30: O += hook(kind, vm, (g, 0)) or []
            if g == WARMG: O.append(("f", lambda: hook(kind, vm, "warm"), None))
            if bar == BASES: assert not ep0
            if BASES > 0 and g == LDG[kind] - 2 * PLD: O.append(("f", lambda: hook(kind, vm, "bpoll"), None))
            if g == LDG[kind] - PLD: O.append(("f", lambda: hook(kind, vm, "poll"), None))
            if g == LDG[kind]: assert not ep2 or (not P and HP == 2)
            if g == LDG[kind]: O.append(("f", lambda: hook(kind, vm, "ld"), None))
            if bar == PUBS[kind]: assert not ep1 and not stq and not ep1b and not any(it[0] == "f" for it in O), (kind, g)
            if g == 63: assert not ep1 and not stq and not ep1b
            M = mfmas(g)
            pr = PRIO if g >= PRG else 0
            if pr: a("s_setprio 1")
            lg.wait(g)
            assert not (gen1.STAMP and "g%d" % g in gen1.SMAP and 10 < g < 30), "stamp would clobber the set-up temporaries"
            gen1.stamp(a, "g%d" % g)
            n = len(M); per = max(1, -(-len(O) // n))
            if pr == 2:
                for m in M: a(m)
                a("s_setprio 0")
                if bar is not None: barrier(bar)
                for it in O: emit(it)
                continue
            for i, m in enumerate(M):
                if i == 2: lg.wait((g, 1))
                if pr and i: a("s_setprio 1")
                a(m)
                if pr: a("s_setprio 0")
                if i == 0 and bar is not None: barrier(bar)
                for it in O[i * per:(i + 1) * per]: emit(it)
        assert not ep1 and not ep2 and not pend
        gen1.stamp(a, 4)
        hook(kind, vm, "pre_h")
        a("s_nop 10")
        L0 = silu(SET[T[2][0]], WF, "s58", 0, "h")
        if len(T[2]) == 2:
            L1 = silu(SET[T[2][1]], WF + 8, "s58", 1024, "h")
            for it in L0[:12] + L1[:12] + L0[12:28]: emit(it)
            hook(kind, vm, "mid_h")
            for it in L1[12:28] + L0[29:] + L1[29:]: emit(it)
        else:
            if ALT[2] is not None:
                b = SET[T[2][0]]; c = SET[ALT[2]]
                for i in range(8): a("v_pk_add_f32 %s, %s, %s" % (vr(b + 2 * i, 2), vr(b + 2 * i, 2), vr(c + 2 * i, 2)))
            for it in L0[:28]: emit(it)
            hook(kind, vm, "mid_h")
            for it in L0[28:]: emit(it)
            a("v_mov_b32 v4, 0x1000")
            vm.issue("buffer_store_dword v4, v4, s[84:87], 0 offen", "h")
        tail(kind, vm)
    stream("R")
    a.label("AB_P")
    stream("P")
```

```python
import sys
sys.path.insert(0, "gen")
import gen1, gen3
from gen1 import *
from asmlib import *
import ab5 as ab3
from gen3 import ab_prologue, SC
from ab5 import phase_ab
from gen5 import build1

FL = 17 * MB
RING = 65536; SCR = 98304
KVROT = True
LATE = True
WARM = True
NOWAIT = False
SPLIT = 1
DMP = 12
ORDERED = True
EARLYO = False
NOB3 = False
SHT = 1
SLP = 12
SETG = 10
OWNQ = False
SETN = 0
OSC = ""
LADDER = True
XP = []
HPUB = 1
NAME = "gated_mix__softmax_full_mha__swiglu_ffn__prompt_kernel"

def kf(a):
    header(a, NAME)
    Q = 128; K = [144, 148]; V = [152, 160]; S = [32, 48]; O = 64
    WF = 168; DA = 184; HB_ = 216
    vV, vIX, vP, vPO, vLD = 18, 19, 20, 21, 22
    vWA, vWB, vT0, vT1, vZ = 24, 25, 26, 27, 28
    vW0 = 23
    ab_prologue(a, "KF_END")
    def spin(lab, expect, vm, leader_only=False, sr_="s[84:87]", so="0", note=""):
        if vm: vm.wait("poll")
        a("v_cmp_le_u32 vcc, %d, v%d%s" % (expect, vP, note))
        a("s_mov_b32 s38, 0x8000")
        if leader_only:
            a("s_cmp_lg_u32 s3, 0")
            a("s_cbranch_scc1 %s_OK" % lab)
        a("s_cmp_eq_u64 vcc, -1")
        a("s_cbranch_scc1 %s_OK" % lab)
        a.label(lab)
        a("s_sleep %d" % (SLP if sr_ == "s[84:87]" else 4))
        a("buffer_load_dword v%d, v%d, %s, %s offen sc1%s" % (vP, vPO, sr_, so, note))
        a("s_sub_u32 s38, s38, 1")
        a("s_waitcnt vmcnt(0)")
        a("v_cmp_le_u32 vcc, %d, v%d" % (expect, vP))
        a("s_cselect_b32 s39, 1, 0")
        a("s_cmp_eq_u64 vcc, -1")
        a("s_cselect_b32 s39, 1, s39")
        a("s_cmp_eq_u32 s39, 0")
        a("s_cbranch_scc1 %s" % lab)
        a.label(lab + "_OK")
    def poll(vm, sr_="s[84:87]"): vm.issue("buffer_load_dword v%d, v%d, %s, 0 offen sc1" % (vP, vPO, sr_), "poll")
    def publish(vm, soff):
        a("v_mov_b32 v%d, 1" % vP)
        a("s_mov_b64 exec, 1")
        vm.issue("buffer_atomic_add v%d, v%d, s[84:87], %s offen sc1" % (vP, vLD, soff), "atom")
        a("s_mov_b64 exec, -1")
    def ldK(vm, b):
        vm.issue("buffer_load_dwordx4 %s, v1, s[8:11], s72 offen%s" % (vr(K[b], 4), SC), ("K", b))
    def ldV(vm, b, wrap=True):
        a("s_mov_b64 exec, s[74:75]")
        vm.issue("buffer_load_dwordx4 %s, v%d, s[64:67], s72 offen%s" % (vr(V[b], 4), vV, SC), ("V", b))
        vm.issue("buffer_load_dwordx4 %s, v%d, s[64:67], s72 offen offset:512%s" % (vr(V[b] + 4, 4), vV, SC), ("V", b))
        a("s_mov_b64 exec, -1")
        a("s_add_u32 s72, s72, 1024")
        if wrap: a("s_and_b32 s72, s72, 0x3fff")
    def cap(fn):
        save = a.lines; a.lines = []
        fn(); L = a.lines; a.lines = save
        return [("s", l.strip(), None) for l in L]
    def early(vm):
        for i in range(4): a("v_mov_b32 v%d, -1" % (96 + i))
        vm.issue("buffer_store_dwordx4 v[96:99], v1, s[28:31], s53 offen%s" % SC, "sent")
        a("s_add_u32 s53, s59, 32768")
        a("s_mov_b64 exec, 1")
        vm.issue("buffer_store_dword v29, v%d, s[80:83], s59 offen%s" % (vLD, SC), "sent")
        vm.issue("buffer_store_dword v29, v%d, s[80:83], s53 offen%s" % (vLD, SC), "sent")
        if OWNQ: vm.issue("buffer_store_dword v29, v%d, s[80:83], s90 offen%s" % (vLD, SC), "sent")
        a("s_mov_b64 exec, -1")
    def setup():
        a("s_and_b32 s89, s2, 7")
        a("s_lshl_b32 s89, s89, 2")
        a("s_bfe_u32 s38, s2, 0x20003")
        a("s_add_u32 s89, s89, s38")
        a("s_lshr_b32 s88, s2, 5")
        a("s_lshr_b32 s62, s3, 2")
        a("s_and_b32 s63, s3, 3")
        a("s_cmp_eq_u32 s3, 0")
        a("s_cselect_b32 s38, 0, 0x20000")
        a("v_mov_b32 v%d, s38" % vLD)
        a("v_and_b32 v%d, 15, v0" % vV)
        a("v_lshlrev_b32 v%d, 4, v%d" % (vV, vV))
        a("v_mov_b32 v%d, v%d" % (vPO, vV))
        a("v_lshrrev_b32 v104, 5, v0")
        a("v_lshl_add_u32 v%d, v104, 8, v%d" % (vV, vV))
        a("v_mov_b32 v%d, 0xdddddddd" % vIX)
        a("s_mov_b32 s74, 0x0000ffff"); a("s_mov_b32 s75, 0x0000ffff")
        srd(a, 80, 14, FL, 98304)
        srd(a, 84, 100, 0, 256)
        a("s_lshl_b32 s73, s89, 16")
        srd(a, 68, 14, "s73", 65536)
        a("s_lshl_b32 s38, s63, 14")
        a("s_add_u32 s38, s38, s73")
        a("s_add_u32 s39, s38, %s" % hx(KF))
        srd(a, 8, 14, "s39", 16384)
        a("s_add_u32 s39, s38, %s" % hx(VF))
        srd(a, 64, 14, "s39", 16384)
        a("s_lshl_b32 s72, s88, 11")
        a("s_lshl_b32 s39, s88, 3")
        a("s_add_u32 s38, s3, s39")
        a("s_lshl_b32 s38, s38, 5")
        a("s_add_u32 s38, s38, s89")
        a("s_lshl_b32 s61, s38, 10")
        a("s_lshl_b32 s38, s62, 2")
        a("s_add_u32 s39, s39, s38")
        for i, r in enumerate(QS):
            a("s_add_u32 s38, s63, %d" % (i + 1))
            a("s_and_b32 s38, s38, 3")
            a("s_add_u32 s38, s38, s39")
            a("s_lshl_b32 %s, s38, 10" % r)
        a("v_bfe_u32 v105, v0, 4, 1")
        a("v_lshlrev_b32 v106, 2, v105")
        a("v_and_b32 v107, 7, v0")
        a("v_xor_b32 v106, v106, v107")
        a("v_lshlrev_b32 v106, 4, v106")
        a("v_lshrrev_b32 v107, 3, v0")
        a("v_lshl_add_u32 v%d, v107, 10, v106" % vW0)
        a("s_lshl_b32 s38, s62, 13")
        a("v_add_u32 v%d, s38, v%d" % (vWA, vW0))
        a("v_add_u32 v%d, %d, v%d" % (vWB, 16384 - 2048, vWA))
        a("v_bfe_u32 v107, v0, 2, 2")
        a("v_lshl_add_u32 v106, v104, 3, v107")
        a("v_bfe_u32 v107, v0, 1, 1")
        a("v_lshl_add_u32 v107, v105, 1, v107")
        a("v_bfe_u32 v108, v0, 3, 1")
        a("v_lshl_add_u32 v107, v108, 2, v107")
        a("v_lshlrev_b32 v107, 4, v107")
        a("v_and_b32 v108, 1, v0")
        a("v_lshl_add_u32 v107, v108, 3, v107")
        a("v_lshl_add_u32 v107, v106, 7, v107")
        a("s_lshl_b32 s16, s63, 12")
        a("s_add_u32 s16, s16, %d" % RING)
        a("v_add_u32 v%d, s16, v107" % vT0)
        a("v_xor_b32 v%d, 64, v%d" % (vT1, vT0))
        a("s_lshl_b32 s38, s62, 10")
        a("s_add_u32 s17, s16, s38")
        a("s_and_b32 s53, s89, 3")
        a("s_add_u32 s59, s53, s88")
        a("s_cmp_ge_u32 s59, 6")
        a("s_cselect_b32 s38, 6, 0")
        a("s_sub_u32 s59, s59, s38")
        a("s_lshl_b32 s59, s59, 2")
        a("s_mov_b32 s38, %s" % ("0x32dc7632" if ab3.HP == 2 else "0x10ba7610") + "")
        a("s_mov_b32 s39, %s" % ("0xdc76" if ab3.HP == 2 else "0xba76") + "")
        a("s_lshr_b64 s[38:39], s[38:39], s59")
        a("s_and_b32 s99, s38, 0xffffff")
        a("s_lshl_b32 s53, s53, 1")
        a("s_add_u32 s59, s53, s88")
        a("s_and_b32 s59, s59, 7")
        a("s_lshl_b32 s59, s59, 2")
        a("s_mov_b32 s38, %s" % ("0xba985410" if ab3.HP == 2 else "0xdc985432") + "")
        a("s_mov_b32 s39, s38")
        a("s_lshr_b64 s[38:39], s[38:39], s59")
        if ab3.HP == 2: a("s_mov_b32 s98, s38")
        else:
            a("s_lshl_b32 s98, s38, 24")
            a("s_or_b32 s98, s98, s99")
            a("s_lshr_b32 s99, s38, 8")
        a("s_add_u32 s53, s61, %s" % hx(OF))
        a("s_lshl_b32 s59, s18, 4")
        a("s_add_u32 s59, s59, s19")
        a("s_lshl_b32 s59, s59, 7")
        if OWNQ:
            a("s_lshl_b32 s90, s19, 4")
            a("s_add_u32 s90, s90, s18")
            a("s_lshl_b32 s90, s90, 7")
            a("s_add_u32 s90, s90, 65536")
            a("s_lshr_b32 s38, s89, 2")
            a("v_lshlrev_b32 v106, 3, v105")
            a("v_add_u32 v106, s38, v106")
            a("s_lshr_b32 s39, s38, 1")
            a("s_lshl_b32 s39, s39, 2")
            a("s_and_b32 s38, s38, 1")
            a("s_add_u32 s39, s39, s38")
            a("s_add_u32 s39, s39, 1")
            a("v_sub_u32 v107, s39, v106")
            a("v_mad_u32_u24 v106, v107, v104, v106") if False else None
            a("v_mul_i32_i24 v107, v107, v104")
            a("v_add_u32 v106, v106, v107")
            a("v_and_b32 v107, 15, v0")
            a("v_lshl_add_u32 v106, v106, 4, v107")
            a("v_lshlrev_b32 v106, 7, v106")
            a("v_add_u32 v28, 65536, v106")
    QS = ["s36", "s37", "s54", "s55"]
    def setup2b():
        a("v_and_b32 v3, 31, v0")
        a("v_cmp_eq_u32 s[20:21], 16, v3")
        a("v_mov_b32 v3, 0x3f803f80")
        a("s_nop 0")
        a("v_cndmask_b32 v%d, 0, v3, s[20:21]" % V[0])
        for i in range(1, 16): a("v_mov_b32 v%d, v%d" % (V[0] + i, V[0]))
    chunks = {}
    def ldq(vm, s):
        vm.issue("buffer_load_dwordx4 %s, v1, s[68:71], %s offen%s" % (vr(Q + 4 * s, 4), QS[s], SC), "Q")
    def hook(kind, vm, where):
        if where == "init": chunks.clear()
        elif where == "early": early(vm)
        elif where == "setup":
            if SETG < 0: setup()
            else: chunks["S"] = cap(setup)
        elif where == "base" and OWNQ or where == "pub" and not OWNQ:
            a("s_lshl_b32 s38, s19, 4")
            publish(vm, "s38")
        elif where == "pub":
            a("v_mov_b32 v%d, 1" % vP)
            a("s_mov_b64 exec, 1")
            vm.issue("buffer_store_dword v%d, v%d, s[80:83], s90 offen sc1" % (vP, vLD), "flag")
            a("s_mov_b64 exec, -1")
        elif where == "bpoll":
            if OWNQ: poll(vm)
        elif where == "poll":
            if OWNQ:
                spin("KF_SB_" + kind, 16, vm)
                a("v_mov_b32 v%d, v28" % vPO)
                poll(vm, "s[80:83]")
            elif "noq" not in XP: poll(vm)
        elif where == "ld":
            if OWNQ: spin("KF_SQ_" + kind, 1, vm, False, "s[80:83]")
            elif "noq" not in XP: spin("KF_SQ_" + kind, 16, vm)
            assert not chunks["V"]
            gen1.stamp(a, "sq1")
            ldq(vm, 0); ldK(vm, 0); ldq(vm, 1)
            if SPLIT == 0: ldq(vm, 2); ldq(vm, 3); ldV(vm, 0); ldK(vm, 1); ldV(vm, 1)
        elif where == "mid_h":
            if SPLIT: ldK(vm, 1); ldV(vm, 1)
        elif where == "warm":
            if not WARM: return
            srd(a, 28, 76, 0, 1792 * 1024)
            a("s_lshl_b32 s94, s2, 3")
            a("s_add_u32 s94, s94, s3")
            a("s_mul_i32 s96, s94, 896")
            a("v_lshlrev_b32 v29, 7, v0")
            a("s_mov_b64 exec, 0x7f")
            vm.issue("buffer_load_dword v30, v29, s[28:31], s96 offen ; dummy", "pf")
            srd(a, 28, 78, 0, 512 * 1024)
            a("s_lshl_b32 s96, s94, 8")
            a("s_mov_b64 exec, 3")
            vm.issue("buffer_load_dword v30, v29, s[28:31], s96 offen ; dummy", "pf")
            a("s_mov_b64 exec, -1")
        elif isinstance(where, tuple):
            g, n = where
            if g < 30:
                E_ = min(ab3.EARLY.values())
                if SETG < 0 or g < SETG or g >= E_: return []
                n = -(-len(chunks["S"]) // (E_ - g))
                while n < len(chunks["S"]) and chunks["S"][n][1].startswith(("s_cselect", "s_addc")): n += 1
                L = chunks["S"][:n]; chunks["S"] = chunks["S"][n:]
                if g == E_ - 1: assert not chunks["S"]
                return L
            if g < 44: return []
            if "L" not in chunks: chunks["L"] = []; chunks["V"] = cap(setup2b)
            key = "V"
            if key == "V" and g < 74: return []
            while n < len(chunks[key]) and chunks[key][n][1].startswith(("s_cselect", "s_addc")): n += 1
            L = chunks[key][:n]; chunks[key] = chunks[key][n:]
            return L
        elif where == "pre_h":
            a("s_setprio 3")
            if SPLIT: ldq(vm, 2); ldq(vm, 3); ldV(vm, 0)
    ENTRY = ["Q", ("K", 0), "Q", "Q", "Q", ("V", 0), ("V", 0), ("K", 1), ("V", 1), ("V", 1), "h", "h"]
    def tail(kind, vm):
        assert vm.ops[-12:] == ENTRY, vm.ops
        if kind != "P": a("s_branch KF_C")
    a("s_load_dwordx2 s[100:101], s[0:1], 72")
    a("s_load_dwordx2 s[76:77], s[0:1], 48")
    a("s_load_dwordx2 s[78:79], s[0:1], 16")
    phase_ab(a, tail, hook)
    a.label("KF_C")
    gen1.stamp(a, 5)
    vm = VM(a); vm.ops = list(ENTRY)
    lg = VM(a, "lgkmcnt", 15)
    a("s_load_dwordx2 s[12:13], s[0:1], 64")
    def QK(sl, kb, sb): a("v_mfma_f32_32x32x16_bf16 %s, %s, %s, 0" % (vr(S[sb], 16), vr(K[kb], 4), vr(Q + 4 * sl, 4)))
    def PV(sl, vb, sb, j): a("v_smfmac_f32_32x32x32_bf16 %s, %s, %s, v%d" % (vr(O + 16 * sl, 16), vr(V[vb] + 4 * j, 4), vr(S[sb] + 8 * j, 8), vIX))
    def ZERO(r): a("v_mfma_f32_32x32x16_bf16 %s, %s, %s, 0" % (vr(r, 16), vr(vZ, 4), vr(vZ, 4)))
    for i in range(4): a("v_mov_b32 v%d, 0" % (vZ + i))
    vm.wait(("K", 0))
    QK(0, 0, 0)
    for i in range(4): ZERO(O + 16 * i)
    a("s_lshr_b32 s38, s89, 1")
    a("s_lshl_b32 s38, s38, 11")
    a("v_and_b32 v%d, 15, v0" % vPO)
    a("v_lshl_add_u32 v%d, v%d, 7, s38" % (vPO, vPO))
    a("s_mov_b32 s96, 32768")
    a("s_lshl_b32 s44, s89, 1")
    a("s_add_u32 s44, s44, s62")
    a("s_mul_i32 s38, s44, 112")
    a("s_mul_i32 s39, s63, 28")
    a("s_add_u32 s38, s38, s39")
    a("s_lshl_b32 s38, s38, 10")
    a("s_add_u32 s38, s38, %s" % hx(HF))
    srd(a, 32, 14, "s38", 28 * 1024)
    a("s_lshl_b32 s38, s39, 14")
    a("s_lshl_b32 s45, s88, 7")
    a("s_add_u32 s38, s38, s45")
    a("s_sub_u32 s39, %d, s38" % (1792 * 1024))
    a("s_waitcnt lgkmcnt(0)")
    srd(a, 48, 76, "s38", "s39")
    srd(a, 40, 78, 0, 512 * 1024)
    FLG = 161792
    vF, vFA, vFB, vFR = 232, 233, 234, 235
    vRW = 236
    def ldH(b, k, so="s20"):
        vm.issue("buffer_load_dwordx4 %s, v1, s[32:35], %s offen offset:%d%s" % (vr(HB_ + 8 * b + 4 * k, 4), so, 1024 * k, SC), ("H", b, k))
    def ldW(b, k):
        if k == 0:
            a("s_and_b32 s20, s98, 15")
            a("s_lshr_b64 s[98:99], s[98:99], 4")
            a("s_add_u32 m0, s17, %d" % (b * 16384))
            a("s_lshl_b32 s21, s20, 15")
            a("s_lshl_b32 s20, s20, 11")
        vm.issue("buffer_load_dwordx4 v%d, s[48:51], s21 offen offset:%d lds" % (vWA + k, 2048 * k), ("W", b))
    def rdW(b, k):
        for ft in range(2):
            for q in range(2):
                lg.issue("ds_read_b64_tr_b16 %s, v%d offset:%d" % (vr(WF + 8 * k + 4 * ft + 2 * q, 2), vT0 + ft, b * 16384 + k * 2048 + q * 512), ("w", k, ft))
    def DM(b, n):
        k, ft = n // 2, n % 2
        lg.wait(("w", k, ft))
        vm.wait(("H", b, k))
        d = vr(DA + 16 * ft, 16)
        a("v_mfma_f32_32x32x16_bf16 %s, %s, %s, %s" % (d, vr(WF + 8 * k + 4 * ft, 4), vr(HB_ + 8 * b + 4 * k, 4), d))
    def signal(b):
        a("v_add_u32 v%d, 1, v%d" % (vF, vF))
        vm.wait(("W", b))
        lg.issue("ds_write_b32 v%d, v%d" % (vFA, vF), "fw")
    def peek(): lg.issue("ds_read_b32 v%d, v%d" % (vFR, vFB), "fr")
    def precheck():
        lg.wait("fr")
        a("v_cmp_lt_u32 vcc, v%d, v%d" % (vFR, vF))
    def check(lab):
        a("s_cbranch_vccnz %s" % lab)
        a.label(lab + "_OK")
        def slow():
            a.label(lab)
            a("s_mov_b32 s38, 0x40000")
            a("s_setprio 0")
            a.label(lab + "_L")
            a("s_sleep 1")
            a("ds_read_b32 v%d, v%d" % (vFR, vFB))
            a("s_sub_u32 s38, s38, 1")
            a("s_waitcnt lgkmcnt(0)")
            a("v_cmp_lt_u32 vcc, v%d, v%d" % (vFR, vF))
            a("s_cbranch_scc1 %s_GO" % lab)
            a("s_cbranch_vccnz %s_L" % lab)
            a.label(lab + "_GO")
            a("s_setprio 3")
            a("s_branch %s_OK" % lab)
        outl[lab] = slow
    outl = {}
    def give(s):
        lg.issue("ds_write_b128 v%d, %s" % (vRW + 2 * s, vr(O + 16 * s, 4)), "gv")
        lg.issue("ds_write_b128 v%d, %s offset:1024" % (vRW + 2 * s, vr(O + 16 * s + 4, 4)), "gv")
        lg.issue("ds_write_b32 v%d, v%d offset:2048" % (vRW + 2 * s + 1, O + 16 * s + 8), "gv")
    def keytile(b, first=False, down=False, loop=None, top=None, extra=None, pre=False, lab=None, last=False, nobar=False):
        if top:
            top("pre")
            if not nobar: a("s_barrier")
            top("post")
        for sl in range(4):
            sb = sl % 2
            def E(i): a("v_exp_f32 v%d, v%d" % (S[sb] + i, S[sb] + i))
            if LADDER == 3:
                a("s_setprio %d" % (1 - sl % 2 if sl < 2 else 0)) if sl in (0, 1) else None
            elif LADDER == 4:
                if sl % 2 == 0: a("s_setprio %d" % (1 - sl // 2))
            elif LADDER == 2:
                if sl % 2 == 0: a("s_setprio %d" % (3 - 2 * b - sl // 2))
            elif LADDER: a("s_setprio %d" % (3 - sl))
            elif first and sl == 0: a("s_setprio 0")
            if down and sl == 0:
                if "nosync" not in XP: check(lab)
                if "nord" not in XP: rdW(b, 0)
            E(0); E(1)
            if sl == 0:
                if not first:
                    PV(3, 1 - b, 1, 1)
                    if not (last and b == 1): ldV(vm, 1 - b)
            else: PV(sl - 1, b, 1 - sb, 1)
            if down and sl == 1 and "nord" not in XP: rdW(b, 1)
            E(2); E(3); E(4)
            if sl == 3:
                if not (last and b == 1):
                    vm.wait(("K", 1 - b))
                    QK(0, 1 - b, 0)
            else:
                if first: vm.wait("Q")
                QK(sl + 1, b, 1 - sb)
                if sl == 2 and not last: ldK(vm, b)
            if (down or pre) and sl < 2 and not (down and "nold" in XP): ldW(b, sl)
            fin_ = last and b == 1
            if (down or pre == 2) and sl == 2 and not fin_: signal(1 - b)
            if (down or pre == 2) and sl == 3 and not fin_: peek()
            if fin_ and sl == 2:
                lg.wait(("w", 1, 1))
                a("s_barrier")
                give(0)
            for i in range(5, 10): E(i)
            if sl == 0: vm.wait(("V", b))
            if last and b == 1 and sl == 3: give(1)
            PV(sl, b, sb, 0)
            for i in range(10, DMP): E(i)
            if extra: extra(sl)
            if down:
                if "nodm" not in XP: DM(b, sl)
                if sl % 2 == 1 and "nold" not in XP: ldH(b, sl // 2)
                if sl == 3:
                    if b == 1:
                        a("v_xor_b32 v%d, 0x8000, v%d" % (vT0, vT0))
                        a("v_xor_b32 v%d, 0x8000, v%d" % (vT1, vT1))
                        a("s_xor_b32 s17, s17, 0x8000")
            if loop and sl == 3:
                a("s_sub_u32 s46, s46, 1"); a("s_cmp_lg_u32 s46, 0")
            for i in range(DMP, 14): E(i)
            if (down or pre == 2) and sl == 3 and not fin_: precheck()
            if fin_ and sl == 2: pass
            E(14); E(15)
            if fin_ and sl == 2: give(1) if False else None
            if fin_ and sl == 3: give(2)
    def pubH(tag, off):
        def f(when):
            if when == "pre":
                vm.wait(tag); lg.wait("fw")
            else:
                a("s_add_u32 s38, s59, %d" % off)
                a("v_mov_b32 v4, 1")
                a("s_mov_b64 exec, 1")
                vm.issue("buffer_store_dword v4, v%d, s[80:83], s38 offen sc1" % vLD, "flag")
                a("s_mov_b64 exec, -1")
        return f
    def wo_stage(i):
        a("s_add_u32 m0, s60, %d" % (i * 2048))
        a("s_add_u32 s38, s47, %d" % (i * 16384))
        vm.issue("buffer_load_dwordx4 v%d, s[40:43], s38 offen lds" % vW0, "wo")
        a("s_add_u32 s38, s38, %d" % (8192 - 1024))
        vm.issue("buffer_load_dwordx4 v%d, s[40:43], s38 offen offset:1024 lds" % vW0, "wo")
    a("s_lshl_b32 s60, s3, 13")
    a("s_lshl_b32 s47, s3, 16")
    a("s_add_u32 s47, s47, s45")
    def ex0(sl):
        if sl < 2: ZERO(DA + 16 * sl)
        if sl == 2:
            a("s_lshl_b32 s38, s3, 8")
            a("s_add_u32 s38, s38, %d" % FLG)
            a("v_lshl_add_u32 v%d, v0, 2, s38" % vFA)
            a("v_xor_b32 v%d, 1024, v%d" % (vFB, vFA))
            a("v_mov_b32 v%d, 0" % vF)
            lg.issue("ds_write_b32 v%d, v%d" % (vFA, vF), "fw")
            if NOB3:
                a("v_mov_b32 v247, 153600")
                lg.issue("ds_write_b32 v247, v%d" % vF, "fw")
    keytile(0, first=True, extra=ex0)
    gen1.stamp(a, "k0")
    keytile(1, top=pubH("Q", 0), extra=wo_stage)
    gen1.stamp(a, "k1")
    def ex2(sl):
        if sl == 2: poll(vm, "s[80:83]")
        if sl < 3:
            s = sl + 1
            a("s_add_u32 s28, s63, %d" % s)
            a("s_and_b32 s28, s28, 3")
            a("s_lshl_b32 s38, s62, 2")
            a("s_add_u32 s28, s28, s38")
            a("s_mul_i32 s28, s28, 3")
            a("s_add_u32 s28, s28, %d" % (s - 1))
            a("s_mul_i32 s28, s28, 2304")
            a("s_add_u32 s28, s28, %d" % SCR)
            a("v_add_u32 v%d, s28, v1" % (vRW + 2 * sl))
            a("v_lshl_add_u32 v%d, v0, 2, s28" % (vRW + 2 * sl + 1))
        else:
            a("s_mul_i32 s28, s3, %d" % (3 * 2304))
            a("s_add_u32 s28, s28, %d" % SCR)
            a("v_add_u32 v%d, s28, v1" % (vRW + 6))
            a("v_lshl_add_u32 v%d, v0, 2, s28" % (vRW + 7))
    keytile(0, pre=1, extra=ex2)
    a("s_mov_b32 s36, s20")
    gen1.stamp(a, "k2")
    def top3(when):
        if not NOB3 and when != "now": pubH("h", 32768)(when)
        if when == "post" and SHT < 0 or when == "now":
            spin("KF_SH", 1, vm, False, "s[80:83]")
            gen1.stamp(a, "sh1")
            ldH(0, 0, "s36"); ldH(0, 1, "s36")
    def ex3(sl):
        if sl == SHT: top3("now")
        if NOB3 and sl == 0:
            vm.wait("h")
            a("v_mov_b32 v5, 1")
            a("s_mov_b64 exec, 1")
            lg.issue("ds_add_rtn_u32 v6, v247, v5", "cnt")
            a("s_mov_b64 exec, -1")
        if NOB3 and sl == 1:
            a("s_lshl_b32 s38, s18, 4")
            a("s_add_u32 s38, s38, s19")
            a("s_lshl_b32 s38, s38, 7")
            a("s_add_u32 s38, s38, 32768")
            lg.wait("cnt")
            a("v_xor_b32 v6, 7, v6")
            a("v_lshlrev_b32 v6, 16, v6")
            a("s_mov_b64 exec, 1")
            vm.issue("buffer_store_dword v5, v6, s[80:83], s38 offen sc1", "flag")
            a("s_mov_b64 exec, -1")
        if sl % 2 == 1: ldH(1, sl // 2)
        if sl == 0: srd(a, 52, 14, OF, 2 * MB)
        if sl == 2:
            srd(a, 24, 14, GG, 16384)
            a("s_lshl_b32 s39, s44, 8")
            a("v_and_b32 v4, 31, v0")
            a("v_lshlrev_b32 v4, 3, v4")
            vm.issue("buffer_load_dword v245, v4, s[24:27], s39 offen offset:4%s" % SC, "g")
            a("s_lshl_b32 s39, s88, 3")
            a("s_add_u32 s39, s39, s3")
            a("s_lshl_b32 s39, s39, 8")
            vm.issue("buffer_load_dword v246, v4, s[24:27], s39 offen%s" % SC, "g")
        if sl == 3:
            a("s_xor_b32 s17, s17, 0x8000")
    keytile(1, top=top3, pre=2, extra=ex3, nobar=NOB3)
    gen1.stamp(a, "k3")
    a("s_mov_b32 s46, 5")
    a("s_mov_b32 s37, %d" % (3 if ab3.HP == 2 else 4))
    def ev():
        a.label("KF_EV")
        a("s_sub_u32 s37, s37, 1")
        a("s_cmp_eq_u32 s37, %d" % (2 if ab3.HP == 2 else 3))
        a("s_cbranch_scc0 KF_EV2")
        a("buffer_load_dword v%d, v%d, s[80:83], s96 offen sc1" % (vP, vPO))
        a("s_branch KF_EVR")
        a.label("KF_EV2")
        a("s_mov_b32 s37, 0")
        a("s_waitcnt vmcnt(14)")
        spin("KF_S2", 1, None, False, "s[80:83]", "s96", " ; kv-ok")
        a("v_cmp_lt_u32 vcc, v%d, v%d" % (vFR, vF))
        a("s_nop 4")
        a("s_branch KF_EVR")
    outl["ev"] = ev
    def it():
        a("s_cmp_eq_u32 s46, s37")
        a("s_cbranch_scc1 KF_EV")
        a.label("KF_EVR")
        keytile(0, down=True, lab="KF_P0"); keytile(1, down=True, loop=True, lab="KF_P1")
        a("s_cbranch_scc1 KF_LB")
    body = steady_loop(a, [vm, lg], it)
    a(".p2align 6")
    a.label("KF_LB")
    a.lines += body
    keytile(0, down=True, lab="KF_P2", last=True); keytile(1, down=True, lab="KF_P3", last=True)
    PV(3, 1, 1, 1)
    if LADDER: a("s_setprio 3")
    gen1.stamp(a, 7)
    OW = O + 48
    vm.wait(("W", 0), ("W", 1))
    a("s_waitcnt lgkmcnt(0)"); lg.ops = []
    a("s_barrier")
    gen1.stamp(a, "rb")
    for s in range(3):
        a("ds_read_b128 %s, v%d offset:%d" % (vr(O + 16 * s, 4), vRW + 6, s * 2304))
        a("ds_read_b128 %s, v%d offset:%d" % (vr(O + 16 * s + 4, 4), vRW + 6, s * 2304 + 1024))
        a("ds_read_b32 v%d, v%d offset:%d" % (O + 16 * s + 8, vRW + 7, s * 2304 + 2048))
    a("s_mov_b32 s38, %s" % hx(f2u(2.0 ** -60)))
    a("v_mov_b32 v5, %s" % hx(f2u(2.0 ** 40)))
    for s in range(3):
        a("s_waitcnt lgkmcnt(%d)" % (6 - 3 * s))
        for i in (8, 0, 1, 2, 3, 4, 5, 6, 7): a("v_add_f32 v%d, v%d, v%d" % (OW + i, OW + i, O + 16 * s + i))
    a.label("KF_CHK")
    a("v_mov_b32 v4, v%d" % (OW + 8))
    a("v_pk_add_f32 v[6:7], %s, %s" % (vr(OW, 2), vr(OW + 2, 2)))
    a("v_pk_add_f32 v[8:9], %s, %s" % (vr(OW + 4, 2), vr(OW + 6, 2)))
    a("v_permlane32_swap_b32 v%d, v4" % (OW + 8))
    a("v_pk_add_f32 v[6:7], v[6:7], v[8:9]")
    a("s_cmp_eq_u32 s46, 1")
    a("v_rcp_f32 v4, v%d" % (OW + 8))
    a("s_cbranch_scc1 KF_NORM")
    a("v_add_f32 v6, v6, v7")
    a("v_med3_f32 v5, v%d, s38, v5" % (OW + 8))
    a("v_fmac_f32 v5, 0, v6")
    a("v_cmp_eq_f32 vcc, v5, v%d" % (OW + 8))
    a("s_nop 1")
    a("s_cmp_eq_u64 vcc, -1")
    a("s_cbranch_scc0 KF_SLOW")
    a.label("KF_NORM")
    a("v_mul_f32 v4, v4, v246")
    for i in range(8): a("v_mul_f32 v%d, v%d, v4" % (OW + i, OW + i))
    for i in range(4): a("v_cvt_pk_bf16_f32 v%d, v%d, v%d" % (S[0] + i, OW + 2 * i, OW + 2 * i + 1))
    for i in range(4): a("v_min_u32 v%d, -2, v%d" % (S[0] + i, S[0] + i))
    vm.issue("buffer_store_dwordx4 %s, v1, s[52:55], s61 offen%s" % (vr(S[0], 4), SC), "o")
    gen1.stamp(a, "ost")
    WO = 64; OFR = 128; vG = 244; YA = 32
    a("s_lshl_b32 s60, s44, 15")
    a("s_lshl_b32 s39, s63, 13")
    a("s_add_u32 s60, s60, s39")
    a("s_add_u32 s47, s60, 4096")
    def ldO(i): return "buffer_load_dwordx4 %s, v1, s[52:55], %s offen offset:%d%s" % (vr(OFR + 4 * i, 4), "s60" if i < 4 else "s47", (i % 4) * 1024, SC)
    rdW(0, 0); rdW(0, 1)
    a("v_and_b32 v4, 31, v0")
    a("v_and_b32 v7, 0xfff, v%d" % vT0)
    a("s_lshl_b32 s39, s63, 14")
    a("v_add_u32 v7, s39, v7")
    a("v_lshrrev_b32 v8, 5, v0")
    a("v_lshlrev_b32 v8, 9, v8")
    a("v_sub_u32 v7, v7, v8")
    a("v_xor_b32 v8, 64, v7")
    def rdWo(i):
        for ft in range(2):
            for q in range(2):
                lg.issue("ds_read_b64_tr_b16 %s, v%d offset:%d" % (vr(WO + 8 * i + 4 * ft + 2 * q, 2), 7 + ft, i * 2048 + q * 1024), ("wof", i))
    def lo(i): vm.issue(ldO(i), ("of", i))
    if EARLYO:
        vm.wait(("H", 1, 1))
        lo(0); DM(0, 0); lo(1); DM(0, 1); rdW(1, 0)
        lo(2); DM(0, 2); lo(3); DM(0, 3); rdW(1, 1)
        rdWo(0)
        lo(4); DM(1, 0); lo(5); DM(1, 1)
        rdWo(1); rdWo(2)
        lo(6); DM(1, 2); lo(7); DM(1, 3)
    else:
        DM(0, 0); DM(0, 1); rdW(1, 0)
        DM(0, 2); DM(0, 3); rdW(1, 1)
        rdWo(0)
        DM(1, 0); DM(1, 1)
        rdWo(1); rdWo(2)
        DM(1, 2); DM(1, 3)
        for i in range(8): lo(i)
    for i in range(3, 8):
        lg.wait(("wof", i - 3)); rdWo(i)
    a("v_lshlrev_b32 v6, 10, v4")
    a("v_lshrrev_b32 v9, 5, v0")
    a("v_lshl_add_u32 v6, v9, 4, v6")
    a("s_lshl_b32 s61, s44, 15")
    a("s_add_u32 s61, s61, s45")
    a("s_lshl_b32 s39, s63, 5")
    a("s_add_u32 s61, s61, s39")
    srd(a, 4, 12, 0, 2 * MB)
    a("s_mul_i32 s38, s62, %d" % (4 * 6912))
    a("s_add_u32 s38, s38, %d" % SCR)
    a("v_add_u32 v10, s38, v1")
    vm.wait("g")
    for i in range(32): a("v_mul_f32 v%d, v%d, v%d" % (DA + i, DA + i, vG + 1))
    lg.wait(("wof", 7))
    gen1.stamp(a, "so0")
    a("s_mov_b32 s38, 0x8000")
    def val(i):
        r = OFR + 4 * i
        a("v_max3_u32 v11, v%d, v%d, v%d" % (r, r + 1, r + 2))
        a("v_max_u32 v11, v11, v%d" % (r + 3))
        a("v_cmp_eq_u32 vcc, -1, v11")
    def mm(i):
        for ft in range(2):
            d = vr(DA + 16 * ft, 16)
            a("v_mfma_f32_32x32x16_bf16 %s, %s, %s, %s" % (d, vr(WO + 8 * i + 4 * ft, 4), vr(OFR + 4 * i, 4), d))
    if ORDERED:
        for i in range(8):
            vm.wait(("of", i))
            lab = "KF_O%d" % i
            a.label(lab)
            val(i)
            a("s_nop 0")
            a("s_cbranch_vccnz %s_RE" % lab)
            a.label(lab + "_OK")
            def slow(i=i, lab=lab):
                a.label(lab + "_RE")
                a("s_sub_u32 s38, s38, 1")
                a("s_cbranch_scc1 %s_GU" % lab)
                a("s_sleep 1")
                for j in range(i, 8): a(ldO(j))
                a("s_waitcnt vmcnt(0)")
                a("s_branch %s" % lab)
                a.label(lab + "_GU")
                a("s_mov_b32 s38, 0")
                a("s_branch %s_OK" % lab)
            outl[lab] = slow
            mm(i)
    else:
        a("s_mov_b32 s39, 0")
        for i in range(8):
            vm.wait(("of", i))
            val(i)
            a("s_nop 0")
            a("s_cbranch_vccnz KF_O%d_LATE" % i)
            mm(i)
            a.label("KF_O%d_NEXT" % i)
            def late(i=i):
                a.label("KF_O%d_LATE" % i)
                a("s_bitset1_b32 s39, %d" % i)
                a("s_branch KF_O%d_NEXT" % i)
            outl["late%d" % i] = late
        a("s_cmp_lg_u32 s39, 0")
        a("s_cbranch_scc1 KF_OR")
        a.label("KF_OD")
        def retry():
            a.label("KF_OR")
            for i in range(8):
                a("s_bitcmp1_b32 s39, %d" % i)
                a("s_cbranch_scc0 KF_OL%d" % i)
                a(ldO(i))
                a.label("KF_OL%d" % i)
            a("s_sub_u32 s38, s38, 1")
            a("s_cbranch_scc1 KF_OD")
            a("s_waitcnt vmcnt(0)")
            for i in range(8):
                a("s_bitcmp1_b32 s39, %d" % i)
                a("s_cbranch_scc0 KF_OM%d" % i)
                val(i)
                a("s_nop 0")
                a("s_cbranch_vccnz KF_OM%d" % i)
                mm(i)
                a("s_bitset0_b32 s39, %d" % i)
                a.label("KF_OM%d" % i)
            a("s_cmp_lg_u32 s39, 0")
            a("s_cbranch_scc1 KF_OR")
            a("s_branch KF_OD")
        outl["retry"] = retry
    gen1.stamp(a, "so1")
    a("s_cmp_ge_u32 s63, 2")
    a("s_nop 9")
    a("s_cbranch_scc1 KF_X2")
    a("s_cmp_eq_u32 s63, 1")
    a("s_cbranch_scc1 KF_X1")
    def fin(kq):
        idx = lambda src, dst: dst if dst < src else dst - 1
        for p in range(4):
            if p == kq: continue
            a("ds_write_b128 v%d, %s offset:%d" % (vRW + 6, vr(DA + 8 * p, 4), idx(kq, p) * 2048))
            a("ds_write_b128 v%d, %s offset:%d" % (vRW + 6, vr(DA + 8 * p + 4, 4), idx(kq, p) * 2048 + 1024))
        a("s_waitcnt lgkmcnt(0)")
        a("s_barrier")
        srcs = [s for s in range(4) if s != kq]
        for n, s in enumerate(srcs):
            a("ds_read_b128 %s, v10 offset:%d" % (vr(YA + 8 * n, 4), s * 6912 + idx(s, kq) * 2048))
            a("ds_read_b128 %s, v10 offset:%d" % (vr(YA + 8 * n + 4, 4), s * 6912 + idx(s, kq) * 2048 + 1024))
        a("s_waitcnt lgkmcnt(4)")
        for i in range(8): a("v_add_f32 v%d, v%d, v%d" % (YA + i, YA + i, DA + 8 * kq + i))
        a("s_waitcnt lgkmcnt(0)")
        for i in range(8): a("v_add_f32 v%d, v%d, v%d" % (YA + 8 + i, YA + 8 + i, YA + 16 + i))
        for i in range(8): a("v_add_f32 v%d, v%d, v%d" % (YA + i, YA + i, YA + 8 + i))
        for i in range(4): a("v_cvt_pk_bf16_f32 v%d, v%d, v%d" % (YA + 24 + i, YA + 2 * i, YA + 2 * i + 1))
        a("s_nop 1")
        a("v_permlane32_swap_b32 v%d, v%d" % (YA + 24, YA + 26))
        a("v_permlane32_swap_b32 v%d, v%d" % (YA + 25, YA + 27))
        a("buffer_store_dwordx4 %s, v6, s[4:7], s61 offen%s" % (vr(YA + 24, 4), OSC))
        gen1.stamp(a, "fin")
        gen1.stamp_end(a, 0, 14, 5)
        a("s_endpgm")
    fin(0)
    a.label("KF_X1"); fin(1)
    a.label("KF_X2")
    a("s_cmp_eq_u32 s63, 3")
    a("s_cbranch_scc1 KF_X3")
    fin(2)
    a.label("KF_X3"); fin(3)
    a.label("KF_END")
    a("s_endpgm")
    for f in list(outl.values()): f()
    a("s_endpgm")
    a.label("KF_SLOW")
    vm2 = VM(a)
    CB = O
    a("s_waitcnt vmcnt(0)")
    a("s_add_u32 s72, s73, %s" % hx(KF))
    srd(a, 8, 14, "s72", 65536)
    a("s_add_u32 s72, s73, %s" % hx(VF))
    srd(a, 64, 14, "s72", 65536)
    a("s_mov_b32 s72, 0")
    a("v_mov_b32 v4, 0xff800000")
    a("s_mov_b32 s46, 64")
    a.label("KF_SL1")
    ldK(vm2, 0)
    a("s_add_u32 s72, s72, 1024")
    a("s_waitcnt vmcnt(0)")
    QK(3, 0, 0)
    a("s_nop 15")
    for i in range(8): a("v_max3_f32 v4, v4, v%d, v%d" % (S[0] + 2 * i, S[0] + 2 * i + 1))
    a("s_sub_u32 s46, s46, 1"); a("s_cmp_lg_u32 s46, 0")
    a("s_cbranch_scc1 KF_SL1")
    a("v_mov_b32 v5, v4")
    a("s_nop 1")
    a("v_permlane32_swap_b32 v4, v5")
    a("s_nop 1")
    a("v_max_f32 v4, v4, v5")
    for i in range(16): a("v_sub_f32 v%d, 0, v4" % (CB + i))
    for i in range(16): a("v_mov_b32 v%d, 0" % (O + 48 + i))
    a("s_mov_b32 s72, 0")
    a("s_mov_b32 s46, 65")
    a.label("KF_SL2")
    ldK(vm2, 0); ldV(vm2, 0, False)
    a("s_waitcnt vmcnt(0)")
    a("v_mfma_f32_32x32x16_bf16 %s, %s, %s, %s" % (vr(S[0], 16), vr(K[0], 4), vr(Q + 12, 4), vr(CB, 16)))
    a("s_nop 15")
    for i in range(16): a("v_exp_f32 v%d, v%d" % (S[0] + i, S[0] + i))
    a("s_nop 1")
    PV(3, 0, 0, 0); PV(3, 0, 0, 1)
    a("s_sub_u32 s46, s46, 1"); a("s_cmp_lg_u32 s46, 1")
    a("s_cbranch_scc1 KF_SL2")
    a("s_nop 15")
    a("s_branch KF_CHK")
    a.label("KF_LAST")
    a("s_endpgm")
    return NAME, 256, "grid=(256,1,1) block=(512,1,1) lds=163840"

def parse(argv):
    global KVROT, OSC, LADDER, HPUB, LATE
    global WARM, NOWAIT, SPLIT, DMP, ORDERED, EARLYO, NOB3, SHT, SETG, OWNQ
    if 'noownq' in argv: OWNQ = False; ab3.BASES = -1
    for x in argv:
        if x.startswith('setg='): SETG = int(x[5:])
    for x in argv:
        if x.startswith('sht='): SHT = int(x[4:])
    if 'b3' in argv: NOB3 = False
    if 'lateo' in argv: EARLYO = False
    if 'ordered' in argv: ORDERED = True
    for x in argv:
        if x.startswith('dmp='): DMP = int(x[4:])
    if 'nosplit' in argv: SPLIT = 0
    if 'wait' in argv: NOWAIT = False
    if 'nowarm' in argv: WARM = False
    if "stamp" in argv: gen1.STAMP = True
    if "rt" in argv: gen1.RT = True
    gen3.GST = [32]
    for x in argv:
        if x.startswith("rot="): ab3.ROT = int(x[4:])
        if x.startswith("epr="): ab3.EPR = int(x[4:])
        if x == "pk": ab3.PK = True
        if x == "pairs": ab3.PAIRS = True
        if x == "nopm": ab3.PM = False
        if x == "nosplitw": ab3.SPLITW = False
        if x.startswith("hp="): ab3.HP = int(x[3:])
        if x.startswith("ep1r="): ab3.EP1R = int(x[5:])
        if x.startswith("bases="): ab3.BASES = int(x[6:])
        if x == "noaltr": ab3.ALTR = False
        if x == "swarm": ab3.SWARM = True
        if x.startswith("warmg="): ab3.WARMG = int(x[6:])
        if x.startswith("gcg="): ab3.GCG = int(x[4:])
        if x == "iwarm": ab3.IWARM = True
        if x.startswith("prio="): ab3.PRIO, ab3.PRG = [int(y) for y in x[5:].split(",")]
        if x.startswith("stg="): ab3.STG = int(x[4:])
        if x.startswith("eprr="): ab3.EPRR = int(x[5:])
        if x.startswith("ch="): ab3.CH = int(x[3:])
        if x.startswith("ldg="): ab3.LDG = dict(zip(("P", "R"), [int(y) for y in x[4:].split(",")]))
        if x.startswith("pld="): ab3.PLD = int(x[4:])
        if x.startswith("early="): ab3.EARLY = dict(zip(("P", "R"), [int(y) for y in x[6:].split(",")]))
        if x.startswith("d2="): ab3.D2 = int(x[3:])
        if x.startswith("pubs="): ab3.PUBS = dict(zip(("P", "R"), [int(y) for y in x[5:].split(",")]))
        if x.startswith("gst="): gen3.GST = [int(y) for y in x[4:].split(",")]
        if x.startswith("smap="): gen1.SMAP = [int(y) if y.isdigit() else y for y in x[5:].split(",")]
        if x == "nokvrot": KVROT = False
        if x == "noladder": LADDER = False
        if x.startswith("ladder="): LADDER = int(x[7:])
        if x == "ns4": gen3.NS4 = True
        if x.startswith("d8="): ab3.D8AT = dict(zip(("P", "R"), [int(y) for y in x[3:].split(",")]))
        if x.startswith("lead2="): gen3.LEAD2 = int(x[6:])
        if x == "fsync": gen3.FSYNC = True
        if x.startswith("sig="): gen3.SIG1, gen3.SIG2 = [int(y) for y in x[4:].split(",")]
        if x.startswith("xp="): XP.extend(x[3:].split(",")); ab3.XP = XP
        if x.startswith("hpub="): HPUB = int(x[5:])
        if x.startswith("osc="): OSC = " " + x[4:]
if __name__ == "__main__":
    parse(sys.argv)
    build1(sys.argv[1], kf, aslist=("list" in sys.argv))
```

```python
import sys
sys.path.insert(0, "gen")
import gen1
from gen1 import *
from asmlib import *
from gen2 import gate_code
SC = " sc1"
SLOT = 32768
GCG = -1
EPR = 9
PUBS = {"P": 11, "R": 12}
ROT = 8
PAIRS = False
PM = False
SPLITW = True
D8AT = {"P": -1, "R": -1}
HP = 1
BASES = {"P": 10, "R": 11}
ALTP = False
ALTR = False
CHR = 2
EP1R = 4
SWARM = False
IWARM = True
PRIO = 0
PRG = 32
STG = 2
XP = []
PK = False
CH = 3
D2 = 3
PLD = 5; LDG = {"P": 88, "R": 88}; WARMG = 68
EARLY = {"P": 30, "R": 30}
EPRR = 9

def phase_ab(a, tail, hook):
    X = 128; WF = 32; E = 128
    SET = [64, 80, 96, 112]
    vAX, vT, vST, vAW1, vA2, vAM, vSV, vD, vDM = 2, 3, 4, 5, 7, 9, 10, 11, 16
    a("v_lshrrev_b32 v20, 4, v0")
    a("v_and_b32 v21, 7, v0")
    a("v_xor_b32 v22, v21, v20")
    a("v_lshlrev_b32 v22, 4, v22")
    a("v_lshrrev_b32 v23, 3, v0")
    a("v_lshl_add_u32 v22, v23, 10, v22")
    a("s_lshl_b32 s58, s3, 14")
    a("v_add_u32 v%d, s58, v22" % vD)
    a("v_xor_b32 v%d, 64, v%d" % (vD + 1, vD))
    a("v_add_u32 v%d, %d, v%d" % (vD + 1, 7168, vD + 1))
    a("v_and_b32 v22, 1, v20")
    a("v_lshlrev_b32 v22, 2, v22")
    a("v_xor_b32 v22, v22, v21")
    a("s_and_b32 s58, s3, 1")
    a("s_lshl_b32 s58, s58, 1")
    a("v_xor_b32 v22, s58, v22")
    a("v_lshlrev_b32 v22, 4, v22")
    a("s_lshl_b32 s58, s3, 3")
    a("v_add_u32 v23, s58, v23")
    a("v_mul_u32_u24 v24, 3072, v23")
    a("v_add_u32 v%d, v24, v22" % (vD + 2))
    a("s_lshl_b32 s56, s3, 11")
    a("s_lshl_b32 s57, s3, 10")
    a("s_lshl_b32 s44, s18, 17")
    a("s_lshl_b32 s45, s19, 7")
    a("s_sub_u32 s46, %d, s45" % (512 * 3072))
    a("s_lshl_b32 s50, s55, 1")
    a("s_add_u32 s50, s50, s18")
    if ROT != 8:
        a("s_add_u32 s50, s55, s18")
        a("s_and_b32 s50, s50, %d" % (ROT - 1))
        a("s_mul_i32 s50, s50, %d" % (8 // ROT))
    a("s_lshl_b32 s51, s54, 8")
    a("s_sub_u32 s51, 1920, s51")
    a("s_add_u32 s28, s55, 1")
    a("s_waitcnt lgkmcnt(0)")
    gen1.stamp(a, 1)
    if IWARM:
        a("s_getpc_b64 s[90:91]")
        a.label("AB_PC")
        a("s_lshl_b32 s92, s17, 3")
        a("s_add_u32 s92, s92, s3")
        a("s_lshl_b32 s92, s92, 7")
        a("s_min_u32 s92, s92, KF_LAST-AB_PC")
        a("s_load_dword s53, s[90:91], s92")
    srd(a, 20, 4, "s44", 128 * 1024)
    srd(a, 24, 6, "s45", "s46")
    a("s_bitcmp1_b32 s28, 1")
    a("s_cbranch_scc0 AB_P")

    def stream(kind):
        P = kind == "P" and not PM; PP = kind == "P" and PM
        assert not PM or HP == 1
        vm = VM(a); lg = VM(a, "lgkmcnt", 15)
        d8 = D8AT[kind]
        SL = [(t + (1 if PAIRS else 0)) % 5 for t in range(16)] if d8 < 0 else [0, 1, 2, 3, 0, 1, 2, 3, 4, 0, 1, 2, 3, 4, 0, 1]
        def base(s): return SL[s] * SLOT
        def after(t):
            if PAIRS and t >= 10: return t - 2 - t % 2
            prev = [u for u in range(t) if SL[u] == SL[t]]
            return max(prev[-1] + 2 if prev else 0, t - 3, 0)
        def dma(s):
            b = base(s); tag = ("d", s)
            G = []
            def grp(m0, off, txt, pre=None):
                G.append([("s", "s_add_u32 m0, %s, %s" % (m0, hx(off)))] + (pre or [("s", "s_nop 0")]) + [("v", txt)])
            ld = "buffer_load_dwordx4 v%d, s[%d:%d], %s offen offset:%d lds"
            if s < 8:
                pre = [("s", "s_add_u32 s48, s50, %d" % s), ("s", "s_and_b32 s48, s48, 7"),
                       ("s", "s_mul_i32 s49, s48, %d" % (64 * 3072)), ("s", "s_lshl_b32 s48, s48, 7")]
                grp("s56", b, ld % (vD, 20, 23, "s48", 0), pre)
                G.append([("v", ld % (vD + 1, 20, 23, "s48", 1024))])
                grp("s57", b + 16384, ld % (vD + 2, 24, 27, "s49", 0))
                if PP: grp("s57", b + 24576, ld % (vDM, 4, 7, "s49", 0), [("s", "s_mul_i32 s49, s48, 1792")])
                elif not P: grp("s57", b + 24576, ld % (vD + 2, 24, 27, "s49", 0), [("s", "s_add_u32 s49, s49, s51")])
            else:
                for c in range(2):
                    pos = (2 * (s - 8) + c) % 8
                    pre = [("s", "s_add_u32 s48, s50, %d" % pos), ("s", "s_and_b32 s48, s48, 7"),
                           ("s", "s_mul_i32 s49, s48, %d" % (64 * 3584)), ("s", "s_add_u32 s49, s49, s%d" % (52 if s < 12 else 97))]
                    if P or (s < 12) == (HP == 2):
                        grp("s57", b + c * 16384, ld % (vD + 3, 40, 43, "s49", 0), pre)
                        grp("s57", b + c * 16384 + 8192, ld % (vD + 3, 44, 47, "s49", 0))
                    else:
                        grp("s57", b + c * 8192, ld % (vDM, 4, 7, "s49", 0), pre)
            return [[(k, t, tag) for (k, t) in g] for g in G]
        def flat(G): return [x for g in G for x in g]
        def emit(it):
            k, t, tag = it
            if k == "v": vm.issue(t, tag)
            elif k == "l": lg.issue(t, tag)
            elif k == "f": t()
            else: a(t)
        def ffn_setup():
            a("s_lshl_b32 s58, s55, 3")
            a("s_lshr_b32 s38, 0x140e0800, s58")
            a("s_and_b32 s38, s38, 0xff")
            a("s_lshr_b32 s52, %s, s58" % ("0x00400000" if HP == 2 else "0x40008040" if PM else "0x00008000"))
            a("s_and_b32 s52, s52, 0xff")
            a("s_lshr_b32 s97, %s, s58" % ("0x80008080" if HP == 2 else "0x80400080"))
            a("s_and_b32 s97, s97, 0xff")
            a("s_mul_i32 s58, s54, 28")
            a("s_add_u32 s58, s58, s38")
            a("s_lshl_b32 s38, s58, 5")
            a("s_sub_u32 s39, %d, s38" % (512 * 3584))
            srd(a, 40, 8, "s38", "s39")
            srd(a, 44, 10, "s38", "s39")
            a("v_mul_u32_u24 v24, 3584, v23")
            a("v_add_u32 v%d, v24, v22" % (vD + 3))
            if not P:
                a("v_lshrrev_b32 v23, 2, v0")
                a("s_lshl_b32 s38, s36, 4")
                a("v_add_u32 v23, s38, v23")
                a("v_mul_u32_u24 v23, 3584, v23")
                a("v_and_b32 v24, 3, v0")
                a("v_lshrrev_b32 v25, 5, v0")
                a("v_lshlrev_b32 v25, 1, v25")
                a("v_xor_b32 v24, v25, v24")
                a("s_cmp_eq_u32 s37, 0")
                a("s_cselect_b32 s4, s40, s44")
                a("s_cselect_b32 s5, s41, s45")
                a("s_mov_b32 s6, s42")
                a("s_mov_b32 s7, 0x20000")
                a("v_lshl_add_u32 v%d, v24, 4, v23" % vDM)
        gi0, gc0 = gate_code(a, vm, "s[28:31]", "s[20:23]", "s39", X + 112)
        if GCG >= 0:
            for it in flat(dma(0)): emit(it)
        srd(a, 28, 12, 0, 1024)
        a("s_lshl_b32 s60, s19, 3")
        a("s_add_u32 s60, s60, s3")
        a("s_lshl_b32 s39, s60, 10")
        gi0()
        if GCG < 0:
            D0 = dma(0)
            for it in flat(D0[:3]): emit(it)
            if PP: ffn_setup()
            for it in flat(D0[3:]): emit(it)
        a("s_barrier")
        for it in flat(dma(1)): emit(it)
        hook(kind, vm, "init")
        if SWARM:
            a("s_lshl_b32 s38, s2, 3")
            a("s_add_u32 s38, s38, s3")
            a("s_mul_i32 s38, s38, 896")
            a("s_add_u32 s90, s8, s38"); a("s_addc_u32 s91, s9, 0")
            a("s_add_u32 s92, s10, s38"); a("s_addc_u32 s93, s11, 0")
            for i in range(7):
                a("s_load_dword s53, s[90:91], %d" % (128 * i))
                a("s_load_dword s53, s[92:93], %d" % (128 * i))
        if not PP: ffn_setup()
        a("v_and_b32 v24, 15, v0")
        a("v_lshrrev_b32 v25, 4, v0")
        a("v_bfe_u32 v26, v0, 1, 3")
        a("v_xor_b32 v26, v25, v26")
        a("v_lshlrev_b32 v26, 4, v26")
        a("v_lshl_add_u32 v26, v24, 7, v26")
        a("s_lshl_b32 s38, s36, 12")
        if base(0): a("s_add_u32 s38, s38, %d" % base(0))
        a("v_add_u32 v%d, s38, v26" % vAX)
        a("v_bfe_u32 v21, v0, 2, 2")
        a("v_lshl_add_u32 v26, v25, 3, v21")
        a("v_bfe_u32 v27, v0, 4, 1")
        a("v_and_b32 v28, 3, v0")
        a("v_lshlrev_b32 v28, 3, v28")
        a("v_bfe_u32 v30, v0, 3, 1")
        a("v_xor_b32 v23, s37, v30")
        a("v_lshl_add_u32 v23, v23, 1, v27")
        a("v_lshl_add_u32 v29, v23, 5, v28")
        a("v_lshl_add_u32 v29, v26, 7, v29")
        a("v_add_u32 v%d, %d, v29" % (vAW1, 16384 + base(0)))
        a("v_xor_b32 v%d, 32, v%d" % (vAW1 + 1, vAW1))
        a("v_add_u32 v%d, %d, v29" % (vA2, base(8 if P or HP == 2 else 12)))
        a("v_xor_b32 v%d, 32, v%d" % (vA2 + 1, vA2))
        if not P:
            a("v_xor_b32 v23, s37, v27")
            a("v_lshl_add_u32 v29, v23, 5, v28")
            a("v_lshl_add_u32 v29, v26, 6, v29")
            a("v_add_u32 v%d, %d, v29" % (vAM, base(12 if HP == 2 else 8)))
            if PP: a("v_add_u32 v%d, %d, v29" % (vSV, 24576 + base(0)))
        a("v_lshrrev_b32 v25, 5, v0")
        a("s_lshl_b32 s90, s18, 2")
        a("s_add_u32 s90, s90, s36")
        a("s_lshl_b32 s91, s90, 10")
        a("s_mul_i32 s90, s90, 112")
        a("s_add_u32 s90, s90, s58")
        a("s_lshr_b32 s38, s52, 5")
        a("s_add_u32 s95, s90, s38")
        a("s_lshr_b32 s38, s97, 5")
        a("s_add_u32 s58, s90, s38")
        a("s_lshl_b32 s38, s37, 1")
        a("s_add_u32 s58, s58, %s" % ("s38" if P or HP == 1 else "s37"))
        a("s_lshl_b32 s58, s58, 10")
        a("s_add_u32 s95, s95, %s" % ("s38" if P or HP == 2 else "s37"))
        a("s_lshl_b32 s95, s95, 10")
        if PP:
            a("s_add_u32 s96, s90, s37")
            a("s_lshl_b32 s96, s96, 10")
        elif not P:
            a("v_and_b32 v29, 15, v0")
            a("v_lshlrev_b32 v29, 4, v29")
            a("v_lshl_add_u32 v29, v25, 8, v29")
            a("v_lshl_add_u32 v%d, v27, 16, v29" % vSV)
            a("s_lshl_b32 s38, s54, 1")
            a("s_add_u32 s38, s38, s55")
            a("s_sub_u32 s38, s38, 1")
            a("s_lshl_b32 s38, s38, 18")
            a("s_add_u32 s96, s91, s38")
            a("s_lshl_b32 s38, s37, 17")
            a("s_add_u32 s96, s96, s38")
            a("s_add_u32 s96, s96, %s" % hx(VF))
        a("s_cmp_lt_u32 s19, 8")
        a("s_cselect_b32 s92, %s, 1.0" % hx(f2u(0.25 * LOG2E)))
        a("s_mov_b32 s93, s92")
        a("s_lshl_b32 s38, s19, 18")
        a("s_add_u32 s91, s91, s38")
        a("s_lshl_b32 s38, s37, 17")
        a("s_add_u32 s91, s91, s38")
        a("s_add_u32 s94, s91, 0x10000")
        def gc():
            o = gc0()
            a("v_mov_b32 v30, v%d" % o); a("v_mov_b32 v31, v%d" % (o + 1))
            srd(a, 28, 14, 0, 17 * MB)
            a("s_lshl_b32 s39, s18, 7")
            a("s_add_u32 s60, s60, s39")
            a("s_lshl_b32 s60, s60, 3")
            a("s_add_u32 s60, s60, %s" % hx(GG))
            a("v_mov_b32 v29, 0")
        def gst():
            a("s_mov_b32 exec_lo, 0")
            a("s_mov_b32 exec_hi, 0x80000000")
            vm.issue("buffer_store_dwordx2 v[30:31], v29, s[28:31], s60 offen%s" % SC, "gst")
            a("s_mov_b64 exec, -1")
        T = [[3], [0, 1], [2, 3]] if P else [[0, 1], [2, 3], [0]] if HP == 2 else [[0, 1], [2], [0, 1]]
        ALT = [2 if ALTP else None, None, None] if P else [None, None, 1 if ALTR else None] if HP == 2 else [None, 3 if ALTR else None, None]
        DIST = [2, D2, D2] if P else [2, D2, 4] if HP == 2 else [2, 4, D2]
        def ph(g): return g // 32
        def stage(g): return g // 4 if g < 32 else 8 + (g - 32) // 8
        def first(g): return g % 4 == 0 if g < 32 else g % 8 == 0
        def wf(g, n, f):
            S = g // 2; nt = len(T[ph(g)])
            nb = 2 if nt == 2 else (4 if ph(g) == 0 else 3)
            if not P and HP == 1 and ph(g) == 2: S += 1
            return WF + 8 * nt * ((S if nb == 2 else S % 16) % nb) + 8 * n + 4 * f
        def wregs(g): return set(r for n in range(len(T[ph(g)])) for r in range(wf(g, n, 0), wf(g, n, 0) + 8))
        def reads(g):
            s = stage(g); p = ph(g); L = []
            if p == 0: R = [vAX, vAW1, vAW1 + 1] + ([vSV] if PP else [])
            elif p == HP and not P: R = [vAM]
            else: R = [vA2, vA2 + 1]
            if first(g) and s not in (0, 8) and not (s == 12 and not P):
                d = base(s) - base(s - 1)
                for r in R: L.append(("s", "v_add_u32 v%d, %s, v%d" % (r, hx(d), r), None))
            ks = g % 4
            if p == 0:
                if ks == 2: L.append(("s", "v_xor_b32 v%d, 64, v%d" % (vT, vAX), None))
                L.append(("l", "ds_read_b128 %s, v%d offset:%d" % (vr(X + 4 * g, 4), vT if ks >= 2 else vAX, (ks % 2) * 2048), g))
            if g % 2: return L
            c = 0 if p == 0 else (g % 8) // 4
            for n in range(len(T[p])):
                for f in range(2):
                    if p == 0 and n == 1 and PP: ad, off, rb_ = vSV, f * 4096, 64
                    elif p == 0: ad, off, rb_ = vAW1 + f, n * 8192, 128
                    elif R[0] == vAM: ad, off, rb_ = vAM, c * 8192 + f * 4096, 64
                    else: ad, off, rb_ = vA2 + n, c * 16384 + f * 8192, 128
                    for j in range(2):
                        L.append(("l", "ds_read_b64_tr_b16 %s, v%d offset:%d" % (vr(wf(g, n, f) + 2 * j, 2), ad, off + (16 * ks + 4 * j) * rb_), (g, 1) if (n == 1 and SPLITW) else g))
            return L
        def mfmas(g):
            L = []
            x = vr(X + 4 * (g % 32), 4); h = g % 2
            for n, ac in enumerate(T[ph(g)]):
                for f in range(2):
                    w = vr(wf(g, n, f), 4)
                    if g < 32 and n == 1 and not PP: d = vr(SET[ac] + 8 * h + 4 * f, 4); A, B = x, w
                    else: d = vr(SET[ac] + 8 * f + 4 * h, 4); A, B = w, x
                    L.append("v_mfma_f32_16x16x32_bf16 %s, %s, %s, %s" % (d, A, B, "0" if g % 32 < 2 else d))
            return L
        def qkv_epi(n):
            b = SET[T[0][n]]; L = []
            if n == 0:
                for i in range(16): L.append(("s", "v_mul_f32 v%d, s92, v%d" % (b + i, b + i), None))
            for i in range(8): L.append(("s", "v_cvt_pk_bf16_f32 v%d, v%d, v%d" % (b + i, b + 2 * i, b + 2 * i + 1), None))
            for i in (0, 1, 4, 5): L.append(("s", "v_permlane16_swap_b32 v%d, v%d" % (b + i, b + i + 2), None))
            if n == 0:
                L.append(("v", "buffer_store_dwordx4 %s, v1, s[28:31], s91 offen%s" % (vr(b, 4), SC), "qkv"))
                L.append(("v", "buffer_store_dwordx4 %s, v1, s[28:31], s94 offen%s" % (vr(b + 4, 4), SC), "qkv"))
            else:
                for j in range(2):
                    L.append(("v", "buffer_store_dwordx4 %s, v%d, s[28:31], s96 offen offset:%d%s" % (vr(b + 4 * j, 4), vSV, j * 512, SC), "qkv"))
            return L
        def silu(G, Tm, so, off, tag, pk=True):
            U = G + 8; L = []
            def op(o, d, x, y):
                if pk:
                    for i in range(4): L.append("v_pk_%s_f32 %s, %s, %s" % (o, vr(d + 2 * i, 2), vr(x + 2 * i, 2), y if isinstance(y, str) else vr(y + 2 * i, 2)))
                else:
                    for i in range(8): L.append("v_%s_f32 v%d, %s, v%d" % (o, d + i, {"s[92:93]": "s92", "s[12:13]": "1.0"}.get(y, None) or "v%d" % (y + i), x + i))
            op("mul", Tm, G, "s[92:93]")
            for i in range(8): L.append("v_exp_f32 v%d, v%d" % (Tm + i, Tm + i))
            op("mul", G, G, U)
            op("add", Tm, Tm, "s[12:13]")
            for i in range(8): L.append("v_rcp_f32 v%d, v%d" % (Tm + i, Tm + i))
            L.append("s_nop 0")
            op("mul", G, G, Tm)
            for i in range(4): L.append("v_cvt_pk_bf16_f32 v%d, v%d, v%d" % (G + i, G + 2 * i, G + 2 * i + 1))
            L.append("s_nop 0")
            for i in range(2): L.append("v_permlane16_swap_b32 v%d, v%d" % (G + i, G + i + 2))
            L = [("s", t, None) for t in L]
            L.append(("v", "buffer_store_dwordx4 %s, v1, s[32:35], %s offen offset:%d%s" % (vr(G, 4), so, off, SC), tag))
            return L
        def consts():
            a("s_mov_b32 s92, %s" % hx(f2u(-LOG2E))); a("s_mov_b32 s93, s92")
            a("s_mov_b32 s12, 1.0"); a("s_mov_b32 s13, 1.0")
            srd(a, 32, 14, HF, 7 * MB)
        ep1 = []
        if PP: ep1 = qkv_epi(0) + [("f", consts, None)] + silu(SET[T[0][1]], 56, "s96", 0, "h1", PK)
        else:
            for n in reversed(range(len(T[0]))): ep1 += qkv_epi(n)
        ep0 = [("f", lambda: hook(kind, vm, "early"), None), ("f", gst, None)]
        if "noearly" in XP: ep0 = []
        ep1b = [("f", consts, None)] if not PP else []
        assert EARLY[kind] <= 30
        if "noqst" in XP: ep1 = [x for x in ep1 if x[0] != "v"]
        if "noep1" in XP: ep1 = [x for x in ep1 if x[0] == "v"]
        if "plainq" in XP: ep1 = [(k, t.replace(SC, ""), g) if k == "v" else (k, t, g) for (k, t, g) in ep1]
        ep2 = []
        if ALT[1] is not None:
            for i in range(16): ep2.append(("s", "v_add_f32 v%d, v%d, v%d" % (SET[T[1][0]] + i, SET[T[1][0]] + i, SET[ALT[1]] + i), None))
        for n, ac in enumerate(T[1]): ep2 += silu(SET[ac], E if P or HP == 1 else 56, "s95", n * 1024, "h1", PK)
        if "noep2" in XP: ep2 = []
        if "ep2nost" in XP: ep2 = [x for x in ep2 if x[0] != "v"]
        islot = {}
        last = -1
        for g in range(96):
            want = g - DIST[ph(g)]
            if g % 2 == 0:
                for g2 in range(g - 1, max(-1, g - 12), -1):
                    if wregs(g) & wregs(g2): want = max(want, g2 + 1); break
            want = max(want, last)
            assert want < g or g == 0, g
            islot[g] = want; last = want
        syncs = {islot[g]: stage(g) for g in range(1, 96) if first(g) and not (PAIRS and stage(g) > 8 and stage(g) % 2)}
        def barrier(s):
            if PAIRS and s >= 8: vm.wait(("d", s + 1), *(("qkv", "gst", "sent") if s == PUBS[kind] else ()))
            elif s == PUBS[kind]: vm.wait(("d", s), "qkv", "gst", "sent")
            elif s == BASES[kind]: vm.wait(("d", s), "gst", "sent")
            else: vm.wait(("d", s))
            if s == (14 if PAIRS else 15): a("s_waitcnt lgkmcnt(0)"); lg.ops = []
            a("s_barrier")
            if s == BASES[kind]: hook(kind, vm, "base")
            if s == PUBS[kind]: hook(kind, vm, "pub")
        hook(kind, vm, "setup")
        if GCG < 0: gc()
        barrier(0)
        if SWARM or IWARM: a("s_waitcnt lgkmcnt(0)")
        gen1.stamp(a, 2)
        for g in range(96):
            if islot[g] < 0:
                for it in reads(g): emit(it)
        stq = []; nst = [0]; late = []
        pend = []
        for t in range(2, 16):
            if after(t) == 0 and not (t == 8 and d8 >= 0): pend += dma(t)
            if t == d8 and after(t) == 0: pend += dma(8)
        for g in range(96):
            O = []
            O += late; late = []
            for g2 in range(g + 1, 96):
                if islot[g2] == g:
                    Lr = reads(g2)
                    if g2 - g >= 2:
                        late += [it for it in Lr if it[2] == (g2, 1)]
                        Lr = [it for it in Lr if it[2] != (g2, 1)]
                    O += Lr
            bar = syncs.get(g)
            if bar is not None:
                assert not any(it[2] in (("d", bar), ("d", bar + 1) if PAIRS and bar >= 8 else None) for grp in pend for it in grp), (g, bar)
                for t in range(2, 16):
                    if after(t) == bar and not (t == 8 and d8 >= 0): pend += dma(t)
                    if t == d8 and after(t) == bar: pend += dma(8)
            if pend and (g < 32 or g % 2 == 0 or len(pend) > (5 if PAIRS else 4)):
                for _ in range(2 if len(pend) > 3 and g < 32 else 1): O += pend.pop(0)
            if g == GCG: O.append(("f", gc, None))
            if ep0 and g >= EARLY[kind]: O.append(ep0.pop(0))
            if g >= 34 and stq and g >= nst[0] and None not in stq[:2]:
                O += stq.pop(0); nst[0] = g + STG
            if g >= 34 and ep1:
                n = EPR + 2 if P or HP == 2 else EP1R
                for it in ep1[:n]:
                    if it[0] == "v": stq.append([it])
                    elif it[0] == "s" and it[1].startswith("s_add_u32 s9"): stq.append([it]) ; stq.append(None)
                    else: O.append(it)
                ep1 = ep1[n:]
                i = 0
                while i < len(stq):
                    if stq[i] is None and i + 1 < len(stq):
                        stq[i - 1] = stq[i - 1] + stq[i + 1]
                        del stq[i:i + 2]
                    else: i += 1
            elif stq: pass
            elif g >= max(34, EARLY[kind]) and ep1b and g >= nst[0]: O.append(ep1b.pop(0)); nst[0] = g + 2
            elif g >= (67 if P or HP == 1 else 66) and ep2:
                n = EPR if P else EPRR
                O += ep2[:n]; ep2 = ep2[n:]
                O += hook(kind, vm, (g, CH if P else CHR)) or []
            elif g >= 34 and not ep1b:
                O += hook(kind, vm, (g, 6 if g < 64 else 10)) or []
            if g < 30: O += hook(kind, vm, (g, 0)) or []
            if g == WARMG: O.append(("f", lambda: hook(kind, vm, "warm"), None))
            if bar == BASES[kind]: assert not ep0
            if BASES[kind] > 0 and g == LDG[kind] - 2 * PLD: O.append(("f", lambda: hook(kind, vm, "bpoll"), None))
            if g == LDG[kind] - PLD: O.append(("f", lambda: hook(kind, vm, "poll"), None))
            if g == LDG[kind]: assert not ep2 or (not P and HP == 2)
            if g == LDG[kind]: O.append(("f", lambda: hook(kind, vm, "ld"), None))
            if bar == PUBS[kind]: assert not ep1 and not stq and not ep1b and not any(it[0] == "f" for it in O), (kind, g)
            if g == 63: assert not ep1 and not stq and not ep1b
            M = mfmas(g)
            pr = PRIO if g >= PRG else 0
            if pr: a("s_setprio 1")
            lg.wait(g)
            assert not (gen1.STAMP and "g%d" % g in gen1.SMAP and 10 < g < 30), "stamp would clobber the set-up temporaries"
            gen1.stamp(a, "g%d" % g)
            n = len(M); per = max(1, -(-len(O) // n))
            if pr == 2:
                for m in M: a(m)
                a("s_setprio 0")
                if bar is not None: barrier(bar)
                for it in O: emit(it)
                continue
            for i, m in enumerate(M):
                if i == 2: lg.wait((g, 1))
                if pr and i: a("s_setprio 1")
                a(m)
                if pr: a("s_setprio 0")
                if i == 0 and bar is not None: barrier(bar)
                for it in O[i * per:(i + 1) * per]: emit(it)
        assert not ep1 and not ep2 and not pend
        gen1.stamp(a, 4)
        hook(kind, vm, "pre_h")
        a("s_nop 10")
        L0 = silu(SET[T[2][0]], WF, "s58", 0, "h")
        if len(T[2]) == 2:
            L1 = silu(SET[T[2][1]], WF + 8, "s58", 1024, "h")
            for it in L0[:12] + L1[:12] + L0[12:28]: emit(it)
            hook(kind, vm, "mid_h")
            for it in L1[12:28] + L0[29:] + L1[29:]: emit(it)
        else:
            if ALT[2] is not None:
                b = SET[T[2][0]]; c = SET[ALT[2]]
                for i in range(8): a("v_pk_add_f32 %s, %s, %s" % (vr(b + 2 * i, 2), vr(b + 2 * i, 2), vr(c + 2 * i, 2)))
            for it in L0[:28]: emit(it)
            hook(kind, vm, "mid_h")
            for it in L0[28:]: emit(it)
            a("v_mov_b32 v4, 0x1000")
            vm.issue("buffer_store_dword v4, v4, s[84:87], 0 offen", "h")
        tail(kind, vm)
    stream("R")
    a.label("AB_P")
    stream("P")
```

```python
import sys
sys.path.insert(0, "gen")
import gen1, gen3
from gen1 import *
from asmlib import *
import ab5 as ab3
from gen3 import ab_prologue, SC
from ab5 import phase_ab
from gen5 import build1

FL = 17 * MB
RING = 65536; SCR = 98304
KVROT = True
LATE = True
WARM = True
NOWAIT = False
SPLIT = 1
DMP = 12
ORDERED = True
EARLYO = False
NOB3 = False
SHT = 1
SLP = 12
SETG = 10
OWNQ = True
SETN = 0
OSC = ""
LADDER = True
XP = []
HPUB = 1
NAME = "gated_mix__softmax_full_mha__swiglu_ffn__prompt_kernel"

def kf(a):
    header(a, NAME)
    Q = 128; K = [144, 148]; V = [152, 160]; S = [32, 48]; O = 64
    WF = 168; DA = 184; HB_ = 216
    vV, vIX, vP, vPO, vLD = 18, 19, 20, 21, 22
    vWA, vWB, vT0, vT1, vZ = 24, 25, 26, 27, 28
    vW0 = 23
    ab_prologue(a, "KF_END")
    def spin(lab, expect, vm, leader_only=False, sr_="s[84:87]", so="0", note=""):
        if vm: vm.wait("poll")
        a("v_cmp_le_u32 vcc, %d, v%d%s" % (expect, vP, note))
        a("s_mov_b32 s38, 0x8000")
        if leader_only:
            a("s_cmp_lg_u32 s3, 0")
            a("s_cbranch_scc1 %s_OK" % lab)
        a("s_cmp_eq_u64 vcc, -1")
        a("s_cbranch_scc1 %s_OK" % lab)
        a.label(lab)
        a("s_sleep %d" % (SLP if sr_ == "s[84:87]" else 4))
        a("buffer_load_dword v%d, v%d, %s, %s offen sc1%s" % (vP, vPO, sr_, so, note))
        a("s_sub_u32 s38, s38, 1")
        a("s_waitcnt vmcnt(0)")
        a("v_cmp_le_u32 vcc, %d, v%d" % (expect, vP))
        a("s_cselect_b32 s39, 1, 0")
        a("s_cmp_eq_u64 vcc, -1")
        a("s_cselect_b32 s39, 1, s39")
        a("s_cmp_eq_u32 s39, 0")
        a("s_cbranch_scc1 %s" % lab)
        a.label(lab + "_OK")
    def poll(vm, sr_="s[84:87]"): vm.issue("buffer_load_dword v%d, v%d, %s, 0 offen sc1" % (vP, vPO, sr_), "poll")
    def publish(vm, soff):
        a("v_mov_b32 v%d, 1" % vP)
        a("s_mov_b64 exec, 1")
        vm.issue("buffer_atomic_add v%d, v%d, s[84:87], %s offen sc1" % (vP, vLD, soff), "atom")
        a("s_mov_b64 exec, -1")
    def ldK(vm, b):
        vm.issue("buffer_load_dwordx4 %s, v1, s[8:11], s72 offen%s" % (vr(K[b], 4), SC), ("K", b))
    def ldV(vm, b, wrap=True):
        a("s_mov_b64 exec, s[74:75]")
        vm.issue("buffer_load_dwordx4 %s, v%d, s[64:67], s72 offen%s" % (vr(V[b], 4), vV, SC), ("V", b))
        vm.issue("buffer_load_dwordx4 %s, v%d, s[64:67], s72 offen offset:512%s" % (vr(V[b] + 4, 4), vV, SC), ("V", b))
        a("s_mov_b64 exec, -1")
        a("s_add_u32 s72, s72, 1024")
        if wrap: a("s_and_b32 s72, s72, 0x3fff")
    def cap(fn):
        save = a.lines; a.lines = []
        fn(); L = a.lines; a.lines = save
        return [("s", l.strip(), None) for l in L]
    def early(vm):
        for i in range(4): a("v_mov_b32 v%d, -1" % (96 + i))
        vm.issue("buffer_store_dwordx4 v[96:99], v1, s[28:31], s53 offen%s" % SC, "sent")
        a("s_add_u32 s53, s59, 32768")
        a("s_mov_b64 exec, 1")
        vm.issue("buffer_store_dword v29, v%d, s[80:83], s59 offen%s" % (vLD, SC), "sent")
        vm.issue("buffer_store_dword v29, v%d, s[80:83], s53 offen%s" % (vLD, SC), "sent")
        if OWNQ: vm.issue("buffer_store_dword v29, v%d, s[80:83], s90 offen%s" % (vLD, SC), "sent")
        a("s_mov_b64 exec, -1")
    def setup():
        a("s_and_b32 s89, s2, 7")
        a("s_lshl_b32 s89, s89, 2")
        a("s_bfe_u32 s38, s2, 0x20003")
        a("s_add_u32 s89, s89, s38")
        a("s_lshr_b32 s88, s2, 5")
        a("s_lshr_b32 s62, s3, 2")
        a("s_and_b32 s63, s3, 3")
        a("s_cmp_eq_u32 s3, 0")
        a("s_cselect_b32 s38, 0, 0x20000")
        a("v_mov_b32 v%d, s38" % vLD)
        a("v_and_b32 v%d, 15, v0" % vV)
        a("v_lshlrev_b32 v%d, 4, v%d" % (vV, vV))
        a("v_mov_b32 v%d, v%d" % (vPO, vV))
        a("v_lshrrev_b32 v104, 5, v0")
        a("v_lshl_add_u32 v%d, v104, 8, v%d" % (vV, vV))
        a("v_mov_b32 v%d, 0xdddddddd" % vIX)
        a("s_mov_b32 s74, 0x0000ffff"); a("s_mov_b32 s75, 0x0000ffff")
        srd(a, 80, 14, FL, 98304)
        srd(a, 84, 100, 0, 256)
        a("s_lshl_b32 s73, s89, 16")
        srd(a, 68, 14, "s73", 65536)
        a("s_lshl_b32 s38, s63, 14")
        a("s_add_u32 s38, s38, s73")
        a("s_add_u32 s39, s38, %s" % hx(KF))
        srd(a, 8, 14, "s39", 16384)
        a("s_add_u32 s39, s38, %s" % hx(VF))
        srd(a, 64, 14, "s39", 16384)
        a("s_lshl_b32 s72, s88, 11")
        a("s_lshl_b32 s39, s88, 3")
        a("s_add_u32 s38, s3, s39")
        a("s_lshl_b32 s38, s38, 5")
        a("s_add_u32 s38, s38, s89")
        a("s_lshl_b32 s61, s38, 10")
        a("s_lshl_b32 s38, s62, 2")
        a("s_add_u32 s39, s39, s38")
        for i, r in enumerate(QS):
            a("s_add_u32 s38, s63, %d" % (i + 1))
            a("s_and_b32 s38, s38, 3")
            a("s_add_u32 s38, s38, s39")
            a("s_lshl_b32 %s, s38, 10" % r)
        a("v_bfe_u32 v105, v0, 4, 1")
        a("v_lshlrev_b32 v106, 2, v105")
        a("v_and_b32 v107, 7, v0")
        a("v_xor_b32 v106, v106, v107")
        a("v_lshlrev_b32 v106, 4, v106")
        a("v_lshrrev_b32 v107, 3, v0")
        a("v_lshl_add_u32 v%d, v107, 10, v106" % vW0)
        a("s_lshl_b32 s38, s62, 13")
        a("v_add_u32 v%d, s38, v%d" % (vWA, vW0))
        a("v_add_u32 v%d, %d, v%d" % (vWB, 16384 - 2048, vWA))
        a("v_bfe_u32 v107, v0, 2, 2")
        a("v_lshl_add_u32 v106, v104, 3, v107")
        a("v_bfe_u32 v107, v0, 1, 1")
        a("v_lshl_add_u32 v107, v105, 1, v107")
        a("v_bfe_u32 v108, v0, 3, 1")
        a("v_lshl_add_u32 v107, v108, 2, v107")
        a("v_lshlrev_b32 v107, 4, v107")
        a("v_and_b32 v108, 1, v0")
        a("v_lshl_add_u32 v107, v108, 3, v107")
        a("v_lshl_add_u32 v107, v106, 7, v107")
        a("s_lshl_b32 s16, s63, 12")
        a("s_add_u32 s16, s16, %d" % RING)
        a("v_add_u32 v%d, s16, v107" % vT0)
        a("v_xor_b32 v%d, 64, v%d" % (vT1, vT0))
        a("s_lshl_b32 s38, s62, 10")
        a("s_add_u32 s17, s16, s38")
        a("s_and_b32 s53, s89, 3")
        a("s_add_u32 s59, s53, s88")
        a("s_cmp_ge_u32 s59, 6")
        a("s_cselect_b32 s38, 6, 0")
        a("s_sub_u32 s59, s59, s38")
        a("s_lshl_b32 s59, s59, 2")
        a("s_mov_b32 s38, %s" % ("0x32dc7632" if ab3.HP == 2 else "0x10ba7610") + "")
        a("s_mov_b32 s39, %s" % ("0xdc76" if ab3.HP == 2 else "0xba76") + "")
        a("s_lshr_b64 s[38:39], s[38:39], s59")
        a("s_and_b32 s99, s38, 0xffffff")
        a("s_lshl_b32 s53, s53, 1")
        a("s_add_u32 s59, s53, s88")
        a("s_and_b32 s59, s59, 7")
        a("s_lshl_b32 s59, s59, 2")
        a("s_mov_b32 s38, %s" % ("0xba985410" if ab3.HP == 2 else "0xdc985432") + "")
        a("s_mov_b32 s39, s38")
        a("s_lshr_b64 s[38:39], s[38:39], s59")
        if ab3.HP == 2: a("s_mov_b32 s98, s38")
        else:
            a("s_lshl_b32 s98, s38, 24")
            a("s_or_b32 s98, s98, s99")
            a("s_lshr_b32 s99, s38, 8")
        a("s_add_u32 s53, s61, %s" % hx(OF))
        a("s_lshl_b32 s59, s18, 4")
        a("s_add_u32 s59, s59, s19")
        a("s_lshl_b32 s59, s59, 7")
        if OWNQ:
            a("s_lshl_b32 s90, s19, 4")
            a("s_add_u32 s90, s90, s18")
            a("s_lshl_b32 s90, s90, 7")
            a("s_add_u32 s90, s90, 65536")
            a("s_lshr_b32 s38, s89, 2")
            a("v_lshlrev_b32 v106, 3, v105")
            a("v_add_u32 v106, s38, v106")
            a("s_lshr_b32 s39, s38, 1")
            a("s_lshl_b32 s39, s39, 2")
            a("s_and_b32 s38, s38, 1")
            a("s_add_u32 s39, s39, s38")
            a("s_add_u32 s39, s39, 1")
            a("v_sub_u32 v107, s39, v106")
            a("v_mad_u32_u24 v106, v107, v104, v106") if False else None
            a("v_mul_i32_i24 v107, v107, v104")
            a("v_add_u32 v106, v106, v107")
            a("v_and_b32 v107, 15, v0")
            a("v_lshl_add_u32 v106, v106, 4, v107")
            a("v_lshlrev_b32 v106, 7, v106")
            a("v_add_u32 v28, 65536, v106")
    QS = ["s36", "s37", "s54", "s55"]
    def setup2b():
        a("v_and_b32 v3, 31, v0")
        a("v_cmp_eq_u32 s[20:21], 16, v3")
        a("v_mov_b32 v3, 0x3f803f80")
        a("s_nop 0")
        a("v_cndmask_b32 v%d, 0, v3, s[20:21]" % V[0])
        for i in range(1, 16): a("v_mov_b32 v%d, v%d" % (V[0] + i, V[0]))
    chunks = {}
    def ldq(vm, s):
        vm.issue("buffer_load_dwordx4 %s, v1, s[68:71], %s offen%s" % (vr(Q + 4 * s, 4), QS[s], SC), "Q")
    def hook(kind, vm, where):
        if where == "init": chunks.clear()
        elif where == "early": early(vm)
        elif where == "setup":
            if SETG < 0: setup()
            else: chunks["S"] = cap(setup)
        elif where == "base" and OWNQ or where == "pub" and not OWNQ:
            a("s_lshl_b32 s38, s19, 4")
            publish(vm, "s38")
        elif where == "pub":
            a("v_mov_b32 v%d, 1" % vP)
            a("s_mov_b64 exec, 1")
            vm.issue("buffer_store_dword v%d, v%d, s[80:83], s90 offen sc1" % (vP, vLD), "flag")
            a("s_mov_b64 exec, -1")
        elif where == "bpoll":
            if OWNQ: poll(vm)
        elif where == "poll":
            if OWNQ:
                spin("KF_SB_" + kind, 16, vm)
                a("v_mov_b32 v%d, v28" % vPO)
                poll(vm, "s[80:83]")
            elif "noq" not in XP: poll(vm)
        elif where == "ld":
            if OWNQ: spin("KF_SQ_" + kind, 1, vm, False, "s[80:83]")
            elif "noq" not in XP: spin("KF_SQ_" + kind, 16, vm)
            assert not chunks["V"]
            gen1.stamp(a, "sq1")
            ldq(vm, 0); ldK(vm, 0); ldq(vm, 1)
            if SPLIT == 0: ldq(vm, 2); ldq(vm, 3); ldV(vm, 0); ldK(vm, 1); ldV(vm, 1)
        elif where == "mid_h":
            if SPLIT: ldK(vm, 1); ldV(vm, 1)
        elif where == "warm":
            if not WARM: return
            srd(a, 28, 76, 0, 1792 * 1024)
            a("s_lshl_b32 s94, s2, 3")
            a("s_add_u32 s94, s94, s3")
            a("s_mul_i32 s96, s94, 896")
            a("v_lshlrev_b32 v29, 7, v0")
            a("s_mov_b64 exec, 0x7f")
            vm.issue("buffer_load_dword v30, v29, s[28:31], s96 offen ; dummy", "pf")
            srd(a, 28, 78, 0, 512 * 1024)
            a("s_lshl_b32 s96, s94, 8")
            a("s_mov_b64 exec, 3")
            vm.issue("buffer_load_dword v30, v29, s[28:31], s96 offen ; dummy", "pf")
            a("s_mov_b64 exec, -1")
        elif isinstance(where, tuple):
            g, n = where
            if g < 30:
                E_ = min(ab3.EARLY.values())
                if SETG < 0 or g < SETG or g >= E_: return []
                n = -(-len(chunks["S"]) // (E_ - g))
                while n < len(chunks["S"]) and chunks["S"][n][1].startswith(("s_cselect", "s_addc")): n += 1
                L = chunks["S"][:n]; chunks["S"] = chunks["S"][n:]
                if g == E_ - 1: assert not chunks["S"]
                return L
            if g < 44: return []
            if "L" not in chunks: chunks["L"] = []; chunks["V"] = cap(setup2b)
            key = "V"
            if key == "V" and g < 74: return []
            while n < len(chunks[key]) and chunks[key][n][1].startswith(("s_cselect", "s_addc")): n += 1
            L = chunks[key][:n]; chunks[key] = chunks[key][n:]
            return L
        elif where == "pre_h":
            a("s_setprio 3")
            if SPLIT: ldq(vm, 2); ldq(vm, 3); ldV(vm, 0)
    ENTRY = ["Q", ("K", 0), "Q", "Q", "Q", ("V", 0), ("V", 0), ("K", 1), ("V", 1), ("V", 1), "h", "h"]
    def tail(kind, vm):
        assert vm.ops[-12:] == ENTRY, vm.ops
        if kind != "P": a("s_branch KF_C")
    if "late" in XP:
        a("s_and_b32 s38, s2, 0x18")
        a("s_cbranch_scc1 KF_NOTLATE")
        a("s_sleep 50")
        a.label("KF_NOTLATE")
    a("s_load_dwordx2 s[100:101], s[0:1], 72")
    a("s_load_dwordx2 s[76:77], s[0:1], 48")
    a("s_load_dwordx2 s[78:79], s[0:1], 16")
    phase_ab(a, tail, hook)
    a.label("KF_C")
    gen1.stamp(a, 5)
    vm = VM(a); vm.ops = list(ENTRY)
    lg = VM(a, "lgkmcnt", 15)
    a("s_load_dwordx2 s[12:13], s[0:1], 64")
    def QK(sl, kb, sb): a("v_mfma_f32_32x32x16_bf16 %s, %s, %s, 0" % (vr(S[sb], 16), vr(K[kb], 4), vr(Q + 4 * sl, 4)))
    def PV(sl, vb, sb, j): a("v_smfmac_f32_32x32x32_bf16 %s, %s, %s, v%d" % (vr(O + 16 * sl, 16), vr(V[vb] + 4 * j, 4), vr(S[sb] + 8 * j, 8), vIX))
    def ZERO(r): a("v_mfma_f32_32x32x16_bf16 %s, %s, %s, 0" % (vr(r, 16), vr(vZ, 4), vr(vZ, 4)))
    for i in range(4): a("v_mov_b32 v%d, 0" % (vZ + i))
    vm.wait(("K", 0))
    QK(0, 0, 0)
    for i in range(4): ZERO(O + 16 * i)
    a("s_lshr_b32 s38, s89, 1")
    a("s_lshl_b32 s38, s38, 11")
    a("v_and_b32 v%d, 15, v0" % vPO)
    a("v_lshl_add_u32 v%d, v%d, 7, s38" % (vPO, vPO))
    a("s_mov_b32 s96, 32768")
    a("s_lshl_b32 s44, s89, 1")
    a("s_add_u32 s44, s44, s62")
    a("s_mul_i32 s38, s44, 112")
    a("s_mul_i32 s39, s63, 28")
    a("s_add_u32 s38, s38, s39")
    a("s_lshl_b32 s38, s38, 10")
    a("s_add_u32 s38, s38, %s" % hx(HF))
    srd(a, 32, 14, "s38", 28 * 1024)
    a("s_lshl_b32 s38, s39, 14")
    a("s_lshl_b32 s45, s88, 7")
    a("s_add_u32 s38, s38, s45")
    a("s_sub_u32 s39, %d, s38" % (1792 * 1024))
    a("s_waitcnt lgkmcnt(0)")
    srd(a, 48, 76, "s38", "s39")
    srd(a, 40, 78, 0, 512 * 1024)
    FLG = 161792
    vF, vFA, vFB, vFR = 232, 233, 234, 235
    vRW = 236
    def ldH(b, k, so="s20"):
        vm.issue("buffer_load_dwordx4 %s, v1, s[32:35], %s offen offset:%d%s" % (vr(HB_ + 8 * b + 4 * k, 4), so, 1024 * k, SC), ("H", b, k))
    def ldW(b, k):
        if k == 0:
            a("s_and_b32 s20, s98, 15")
            a("s_lshr_b64 s[98:99], s[98:99], 4")
            a("s_add_u32 m0, s17, %d" % (b * 16384))
            a("s_lshl_b32 s21, s20, 15")
            a("s_lshl_b32 s20, s20, 11")
        vm.issue("buffer_load_dwordx4 v%d, s[48:51], s21 offen offset:%d lds" % (vWA + k, 2048 * k), ("W", b))
    def rdW(b, k):
        for ft in range(2):
            for q in range(2):
                lg.issue("ds_read_b64_tr_b16 %s, v%d offset:%d" % (vr(WF + 8 * k + 4 * ft + 2 * q, 2), vT0 + ft, b * 16384 + k * 2048 + q * 512), ("w", k, ft))
    def DM(b, n):
        k, ft = n // 2, n % 2
        lg.wait(("w", k, ft))
        vm.wait(("H", b, k))
        d = vr(DA + 16 * ft, 16)
        a("v_mfma_f32_32x32x16_bf16 %s, %s, %s, %s" % (d, vr(WF + 8 * k + 4 * ft, 4), vr(HB_ + 8 * b + 4 * k, 4), d))
    def signal(b):
        a("v_add_u32 v%d, 1, v%d" % (vF, vF))
        vm.wait(("W", b))
        lg.issue("ds_write_b32 v%d, v%d" % (vFA, vF), "fw")
    def peek(): lg.issue("ds_read_b32 v%d, v%d" % (vFR, vFB), "fr")
    def precheck():
        lg.wait("fr")
        a("v_cmp_lt_u32 vcc, v%d, v%d" % (vFR, vF))
    def check(lab):
        a("s_cbranch_vccnz %s" % lab)
        a.label(lab + "_OK")
        def slow():
            a.label(lab)
            a("s_mov_b32 s38, 0x40000")
            a("s_setprio 0")
            a.label(lab + "_L")
            a("s_sleep 1")
            a("ds_read_b32 v%d, v%d" % (vFR, vFB))
            a("s_sub_u32 s38, s38, 1")
            a("s_waitcnt lgkmcnt(0)")
            a("v_cmp_lt_u32 vcc, v%d, v%d" % (vFR, vF))
            a("s_cbranch_scc1 %s_GO" % lab)
            a("s_cbranch_vccnz %s_L" % lab)
            a.label(lab + "_GO")
            a("s_setprio 3")
            a("s_branch %s_OK" % lab)
        outl[lab] = slow
    outl = {}
    def give(s):
        lg.issue("ds_write_b128 v%d, %s" % (vRW + 2 * s, vr(O + 16 * s, 4)), "gv")
        lg.issue("ds_write_b128 v%d, %s offset:1024" % (vRW + 2 * s, vr(O + 16 * s + 4, 4)), "gv")
        lg.issue("ds_write_b32 v%d, v%d offset:2048" % (vRW + 2 * s + 1, O + 16 * s + 8), "gv")
    def keytile(b, first=False, down=False, loop=None, top=None, extra=None, pre=False, lab=None, last=False, nobar=False):
        if top:
            top("pre")
            if not nobar: a("s_barrier")
            top("post")
        for sl in range(4):
            sb = sl % 2
            def E(i): a("v_exp_f32 v%d, v%d" % (S[sb] + i, S[sb] + i))
            if LADDER == 3:
                a("s_setprio %d" % (1 - sl % 2 if sl < 2 else 0)) if sl in (0, 1) else None
            elif LADDER == 4:
                if sl % 2 == 0: a("s_setprio %d" % (1 - sl // 2))
            elif LADDER == 2:
                if sl % 2 == 0: a("s_setprio %d" % (3 - 2 * b - sl // 2))
            elif LADDER: a("s_setprio %d" % (3 - sl))
            elif first and sl == 0: a("s_setprio 0")
            if down and sl == 0:
                if "nosync" not in XP: check(lab)
                if "nord" not in XP: rdW(b, 0)
            E(0); E(1)
            if sl == 0:
                if not first:
                    PV(3, 1 - b, 1, 1)
                    if not (last and b == 1): ldV(vm, 1 - b)
            else: PV(sl - 1, b, 1 - sb, 1)
            if down and sl == 1 and "nord" not in XP: rdW(b, 1)
            E(2); E(3); E(4)
            if sl == 3:
                if not (last and b == 1):
                    vm.wait(("K", 1 - b))
                    QK(0, 1 - b, 0)
            else:
                if first: vm.wait("Q")
                QK(sl + 1, b, 1 - sb)
                if sl == 2 and not last: ldK(vm, b)
            if (down or pre) and sl < 2 and not (down and "nold" in XP): ldW(b, sl)
            fin_ = last and b == 1
            if (down or pre == 2) and sl == 2 and not fin_: signal(1 - b)
            if (down or pre == 2) and sl == 3 and not fin_: peek()
            if fin_ and sl == 2:
                lg.wait(("w", 1, 1))
                a("s_barrier")
                give(0)
            for i in range(5, 10): E(i)
            if sl == 0: vm.wait(("V", b))
            if last and b == 1 and sl == 3: give(1)
            PV(sl, b, sb, 0)
            for i in range(10, DMP): E(i)
            if extra: extra(sl)
            if down:
                if "nodm" not in XP: DM(b, sl)
                if sl % 2 == 1 and "nold" not in XP: ldH(b, sl // 2)
                if sl == 3:
                    if b == 1:
                        a("v_xor_b32 v%d, 0x8000, v%d" % (vT0, vT0))
                        a("v_xor_b32 v%d, 0x8000, v%d" % (vT1, vT1))
                        a("s_xor_b32 s17, s17, 0x8000")
            if loop and sl == 3:
                a("s_sub_u32 s46, s46, 1"); a("s_cmp_lg_u32 s46, 0")
            for i in range(DMP, 14): E(i)
            if (down or pre == 2) and sl == 3 and not fin_: precheck()
            if fin_ and sl == 2: pass
            E(14); E(15)
            if fin_ and sl == 2: give(1) if False else None
            if fin_ and sl == 3: give(2)
    def pubH(tag, off):
        def f(when):
            if when == "pre":
                vm.wait(tag); lg.wait("fw")
            else:
                a("s_add_u32 s38, s59, %d" % off)
                a("v_mov_b32 v4, 1")
                a("s_mov_b64 exec, 1")
                vm.issue("buffer_store_dword v4, v%d, s[80:83], s38 offen sc1" % vLD, "flag")
                a("s_mov_b64 exec, -1")
        return f
    def wo_stage(i):
        a("s_add_u32 m0, s60, %d" % (i * 2048))
        a("s_add_u32 s38, s47, %d" % (i * 16384))
        vm.issue("buffer_load_dwordx4 v%d, s[40:43], s38 offen lds" % vW0, "wo")
        a("s_add_u32 s38, s38, %d" % (8192 - 1024))
        vm.issue("buffer_load_dwordx4 v%d, s[40:43], s38 offen offset:1024 lds" % vW0, "wo")
    a("s_lshl_b32 s60, s3, 13")
    a("s_lshl_b32 s47, s3, 16")
    a("s_add_u32 s47, s47, s45")
    def ex0(sl):
        if sl < 2: ZERO(DA + 16 * sl)
        if sl == 2:
            a("s_lshl_b32 s38, s3, 8")
            a("s_add_u32 s38, s38, %d" % FLG)
            a("v_lshl_add_u32 v%d, v0, 2, s38" % vFA)
            a("v_xor_b32 v%d, 1024, v%d" % (vFB, vFA))
            a("v_mov_b32 v%d, 0" % vF)
            lg.issue("ds_write_b32 v%d, v%d" % (vFA, vF), "fw")
            if NOB3:
                a("v_mov_b32 v247, 153600")
                lg.issue("ds_write_b32 v247, v%d" % vF, "fw")
    keytile(0, first=True, extra=ex0)
    gen1.stamp(a, "k0")
    keytile(1, top=pubH("Q", 0), extra=wo_stage)
    gen1.stamp(a, "k1")
    def ex2(sl):
        if sl == 2: poll(vm, "s[80:83]")
        if sl < 3:
            s = sl + 1
            a("s_add_u32 s28, s63, %d" % s)
            a("s_and_b32 s28, s28, 3")
            a("s_lshl_b32 s38, s62, 2")
            a("s_add_u32 s28, s28, s38")
            a("s_mul_i32 s28, s28, 3")
            a("s_add_u32 s28, s28, %d" % (s - 1))
            a("s_mul_i32 s28, s28, 2304")
            a("s_add_u32 s28, s28, %d" % SCR)
            a("v_add_u32 v%d, s28, v1" % (vRW + 2 * sl))
            a("v_lshl_add_u32 v%d, v0, 2, s28" % (vRW + 2 * sl + 1))
        else:
            a("s_mul_i32 s28, s3, %d" % (3 * 2304))
            a("s_add_u32 s28, s28, %d" % SCR)
            a("v_add_u32 v%d, s28, v1" % (vRW + 6))
            a("v_lshl_add_u32 v%d, v0, 2, s28" % (vRW + 7))
    keytile(0, pre=1, extra=ex2)
    a("s_mov_b32 s36, s20")
    gen1.stamp(a, "k2")
    def top3(when):
        if not NOB3 and when != "now": pubH("h", 32768)(when)
        if when == "post" and SHT < 0 or when == "now":
            spin("KF_SH", 1, vm, False, "s[80:83]")
            gen1.stamp(a, "sh1")
            ldH(0, 0, "s36"); ldH(0, 1, "s36")
    def ex3(sl):
        if sl == SHT: top3("now")
        if NOB3 and sl == 0:
            vm.wait("h")
            a("v_mov_b32 v5, 1")
            a("s_mov_b64 exec, 1")
            lg.issue("ds_add_rtn_u32 v6, v247, v5", "cnt")
            a("s_mov_b64 exec, -1")
        if NOB3 and sl == 1:
            a("s_lshl_b32 s38, s18, 4")
            a("s_add_u32 s38, s38, s19")
            a("s_lshl_b32 s38, s38, 7")
            a("s_add_u32 s38, s38, 32768")
            lg.wait("cnt")
            a("v_xor_b32 v6, 7, v6")
            a("v_lshlrev_b32 v6, 16, v6")
            a("s_mov_b64 exec, 1")
            vm.issue("buffer_store_dword v5, v6, s[80:83], s38 offen sc1", "flag")
            a("s_mov_b64 exec, -1")
        if sl % 2 == 1: ldH(1, sl // 2)
        if sl == 0: srd(a, 52, 14, OF, 2 * MB)
        if sl == 2:
            srd(a, 24, 14, GG, 16384)
            a("s_lshl_b32 s39, s44, 8")
            a("v_and_b32 v4, 31, v0")
            a("v_lshlrev_b32 v4, 3, v4")
            vm.issue("buffer_load_dword v245, v4, s[24:27], s39 offen offset:4%s" % SC, "g")
            a("s_lshl_b32 s39, s88, 3")
            a("s_add_u32 s39, s39, s3")
            a("s_lshl_b32 s39, s39, 8")
            vm.issue("buffer_load_dword v246, v4, s[24:27], s39 offen%s" % SC, "g")
        if sl == 3:
            a("s_xor_b32 s17, s17, 0x8000")
    keytile(1, top=top3, pre=2, extra=ex3, nobar=NOB3)
    gen1.stamp(a, "k3")
    a("s_mov_b32 s46, 5")
    a("s_mov_b32 s37, %d" % (3 if ab3.HP == 2 else 4))
    def ev():
        a.label("KF_EV")
        a("s_sub_u32 s37, s37, 1")
        a("s_cmp_eq_u32 s37, %d" % (2 if ab3.HP == 2 else 3))
        a("s_cbranch_scc0 KF_EV2")
        a("buffer_load_dword v%d, v%d, s[80:83], s96 offen sc1" % (vP, vPO))
        a("s_branch KF_EVR")
        a.label("KF_EV2")
        a("s_mov_b32 s37, 0")
        a("s_waitcnt vmcnt(14)")
        spin("KF_S2", 1, None, False, "s[80:83]", "s96", " ; kv-ok")
        a("v_cmp_lt_u32 vcc, v%d, v%d" % (vFR, vF))
        a("s_nop 4")
        a("s_branch KF_EVR")
    outl["ev"] = ev
    def it():
        a("s_cmp_eq_u32 s46, s37")
        a("s_cbranch_scc1 KF_EV")
        a.label("KF_EVR")
        keytile(0, down=True, lab="KF_P0"); keytile(1, down=True, loop=True, lab="KF_P1")
        a("s_cbranch_scc1 KF_LB")
    body = steady_loop(a, [vm, lg], it)
    a(".p2align 6")
    a.label("KF_LB")
    a.lines += body
    keytile(0, down=True, lab="KF_P2", last=True); keytile(1, down=True, lab="KF_P3", last=True)
    PV(3, 1, 1, 1)
    if LADDER: a("s_setprio 3")
    gen1.stamp(a, 7)
    OW = O + 48
    vm.wait(("W", 0), ("W", 1))
    a("s_waitcnt lgkmcnt(0)"); lg.ops = []
    a("s_barrier")
    gen1.stamp(a, "rb")
    for s in range(3):
        a("ds_read_b128 %s, v%d offset:%d" % (vr(O + 16 * s, 4), vRW + 6, s * 2304))
        a("ds_read_b128 %s, v%d offset:%d" % (vr(O + 16 * s + 4, 4), vRW + 6, s * 2304 + 1024))
        a("ds_read_b32 v%d, v%d offset:%d" % (O + 16 * s + 8, vRW + 7, s * 2304 + 2048))
    a("s_mov_b32 s38, %s" % hx(f2u(2.0 ** -60)))
    a("v_mov_b32 v5, %s" % hx(f2u(2.0 ** 40)))
    for s in range(3):
        a("s_waitcnt lgkmcnt(%d)" % (6 - 3 * s))
        for i in (8, 0, 1, 2, 3, 4, 5, 6, 7): a("v_add_f32 v%d, v%d, v%d" % (OW + i, OW + i, O + 16 * s + i))
    a.label("KF_CHK")
    a("v_mov_b32 v4, v%d" % (OW + 8))
    a("v_pk_add_f32 v[6:7], %s, %s" % (vr(OW, 2), vr(OW + 2, 2)))
    a("v_pk_add_f32 v[8:9], %s, %s" % (vr(OW + 4, 2), vr(OW + 6, 2)))
    a("v_permlane32_swap_b32 v%d, v4" % (OW + 8))
    a("v_pk_add_f32 v[6:7], v[6:7], v[8:9]")
    a("s_cmp_eq_u32 s46, 1")
    a("v_rcp_f32 v4, v%d" % (OW + 8))
    a("s_cbranch_scc1 KF_NORM")
    a("v_add_f32 v6, v6, v7")
    a("v_med3_f32 v5, v%d, s38, v5" % (OW + 8))
    a("v_fmac_f32 v5, 0, v6")
    a("v_cmp_eq_f32 vcc, v5, v%d" % (OW + 8))
    a("s_nop 1")
    a("s_cmp_eq_u64 vcc, -1")
    a("s_cbranch_scc0 KF_SLOW")
    a.label("KF_NORM")
    a("v_mul_f32 v4, v4, v246")
    for i in range(8): a("v_mul_f32 v%d, v%d, v4" % (OW + i, OW + i))
    for i in range(4): a("v_cvt_pk_bf16_f32 v%d, v%d, v%d" % (S[0] + i, OW + 2 * i, OW + 2 * i + 1))
    for i in range(4): a("v_min_u32 v%d, -2, v%d" % (S[0] + i, S[0] + i))
    vm.issue("buffer_store_dwordx4 %s, v1, s[52:55], s61 offen%s" % (vr(S[0], 4), SC), "o")
    gen1.stamp(a, "ost")
    WO = 64; OFR = 128; vG = 244; YA = 32
    a("s_lshl_b32 s60, s44, 15")
    a("s_lshl_b32 s39, s63, 13")
    a("s_add_u32 s60, s60, s39")
    a("s_add_u32 s47, s60, 4096")
    def ldO(i): return "buffer_load_dwordx4 %s, v1, s[52:55], %s offen offset:%d%s" % (vr(OFR + 4 * i, 4), "s60" if i < 4 else "s47", (i % 4) * 1024, SC)
    rdW(0, 0); rdW(0, 1)
    a("v_and_b32 v4, 31, v0")
    a("v_and_b32 v7, 0xfff, v%d" % vT0)
    a("s_lshl_b32 s39, s63, 14")
    a("v_add_u32 v7, s39, v7")
    a("v_lshrrev_b32 v8, 5, v0")
    a("v_lshlrev_b32 v8, 9, v8")
    a("v_sub_u32 v7, v7, v8")
    a("v_xor_b32 v8, 64, v7")
    def rdWo(i):
        for ft in range(2):
            for q in range(2):
                lg.issue("ds_read_b64_tr_b16 %s, v%d offset:%d" % (vr(WO + 8 * i + 4 * ft + 2 * q, 2), 7 + ft, i * 2048 + q * 1024), ("wof", i))
    def lo(i): vm.issue(ldO(i), ("of", i))
    if EARLYO:
        vm.wait(("H", 1, 1))
        lo(0); DM(0, 0); lo(1); DM(0, 1); rdW(1, 0)
        lo(2); DM(0, 2); lo(3); DM(0, 3); rdW(1, 1)
        rdWo(0)
        lo(4); DM(1, 0); lo(5); DM(1, 1)
        rdWo(1); rdWo(2)
        lo(6); DM(1, 2); lo(7); DM(1, 3)
    else:
        DM(0, 0); DM(0, 1); rdW(1, 0)
        DM(0, 2); DM(0, 3); rdW(1, 1)
        rdWo(0)
        DM(1, 0); DM(1, 1)
        rdWo(1); rdWo(2)
        DM(1, 2); DM(1, 3)
        for i in range(8): lo(i)
    for i in range(3, 8):
        lg.wait(("wof", i - 3)); rdWo(i)
    a("v_lshlrev_b32 v6, 10, v4")
    a("v_lshrrev_b32 v9, 5, v0")
    a("v_lshl_add_u32 v6, v9, 4, v6")
    a("s_lshl_b32 s61, s44, 15")
    a("s_add_u32 s61, s61, s45")
    a("s_lshl_b32 s39, s63, 5")
    a("s_add_u32 s61, s61, s39")
    srd(a, 4, 12, 0, 2 * MB)
    a("s_mul_i32 s38, s62, %d" % (4 * 6912))
    a("s_add_u32 s38, s38, %d" % SCR)
    a("v_add_u32 v10, s38, v1")
    vm.wait("g")
    for i in range(32): a("v_mul_f32 v%d, v%d, v%d" % (DA + i, DA + i, vG + 1))
    lg.wait(("wof", 7))
    gen1.stamp(a, "so0")
    a("s_mov_b32 s38, 0x8000")
    def val(i):
        r = OFR + 4 * i
        a("v_max3_u32 v11, v%d, v%d, v%d" % (r, r + 1, r + 2))
        a("v_max_u32 v11, v11, v%d" % (r + 3))
        a("v_cmp_eq_u32 vcc, -1, v11")
    def mm(i):
        for ft in range(2):
            d = vr(DA + 16 * ft, 16)
            a("v_mfma_f32_32x32x16_bf16 %s, %s, %s, %s" % (d, vr(WO + 8 * i + 4 * ft, 4), vr(OFR + 4 * i, 4), d))
    if ORDERED:
        for i in range(8):
            vm.wait(("of", i))
            lab = "KF_O%d" % i
            a.label(lab)
            val(i)
            a("s_nop 0")
            a("s_cbranch_vccnz %s_RE" % lab)
            a.label(lab + "_OK")
            def slow(i=i, lab=lab):
                a.label(lab + "_RE")
                a("s_sub_u32 s38, s38, 1")
                a("s_cbranch_scc1 %s_GU" % lab)
                a("s_sleep 1")
                for j in range(i, 8): a(ldO(j))
                a("s_waitcnt vmcnt(0)")
                a("s_branch %s" % lab)
                a.label(lab + "_GU")
                a("s_mov_b32 s38, 0")
                a("s_branch %s_OK" % lab)
            outl[lab] = slow
            mm(i)
    else:
        a("s_mov_b32 s39, 0")
        for i in range(8):
            vm.wait(("of", i))
            val(i)
            a("s_nop 0")
            a("s_cbranch_vccnz KF_O%d_LATE" % i)
            mm(i)
            a.label("KF_O%d_NEXT" % i)
            def late(i=i):
                a.label("KF_O%d_LATE" % i)
                a("s_bitset1_b32 s39, %d" % i)
                a("s_branch KF_O%d_NEXT" % i)
            outl["late%d" % i] = late
        a("s_cmp_lg_u32 s39, 0")
        a("s_cbranch_scc1 KF_OR")
        a.label("KF_OD")
        def retry():
            a.label("KF_OR")
            for i in range(8):
                a("s_bitcmp1_b32 s39, %d" % i)
                a("s_cbranch_scc0 KF_OL%d" % i)
                a(ldO(i))
                a.label("KF_OL%d" % i)
            a("s_sub_u32 s38, s38, 1")
            a("s_cbranch_scc1 KF_OD")
            a("s_waitcnt vmcnt(0)")
            for i in range(8):
                a("s_bitcmp1_b32 s39, %d" % i)
                a("s_cbranch_scc0 KF_OM%d" % i)
                val(i)
                a("s_nop 0")
                a("s_cbranch_vccnz KF_OM%d" % i)
                mm(i)
                a("s_bitset0_b32 s39, %d" % i)
                a.label("KF_OM%d" % i)
            a("s_cmp_lg_u32 s39, 0")
            a("s_cbranch_scc1 KF_OR")
            a("s_branch KF_OD")
        outl["retry"] = retry
    gen1.stamp(a, "so1")
    a("s_cmp_ge_u32 s63, 2")
    a("s_nop 9")
    a("s_cbranch_scc1 KF_X2")
    a("s_cmp_eq_u32 s63, 1")
    a("s_cbranch_scc1 KF_X1")
    def fin(kq):
        idx = lambda src, dst: dst if dst < src else dst - 1
        for p in range(4):
            if p == kq: continue
            a("ds_write_b128 v%d, %s offset:%d" % (vRW + 6, vr(DA + 8 * p, 4), idx(kq, p) * 2048))
            a("ds_write_b128 v%d, %s offset:%d" % (vRW + 6, vr(DA + 8 * p + 4, 4), idx(kq, p) * 2048 + 1024))
        a("s_waitcnt lgkmcnt(0)")
        a("s_barrier")
        srcs = [s for s in range(4) if s != kq]
        for n, s in enumerate(srcs):
            a("ds_read_b128 %s, v10 offset:%d" % (vr(YA + 8 * n, 4), s * 6912 + idx(s, kq) * 2048))
            a("ds_read_b128 %s, v10 offset:%d" % (vr(YA + 8 * n + 4, 4), s * 6912 + idx(s, kq) * 2048 + 1024))
        a("s_waitcnt lgkmcnt(4)")
        for i in range(8): a("v_add_f32 v%d, v%d, v%d" % (YA + i, YA + i, DA + 8 * kq + i))
        a("s_waitcnt lgkmcnt(0)")
        for i in range(8): a("v_add_f32 v%d, v%d, v%d" % (YA + 8 + i, YA + 8 + i, YA + 16 + i))
        for i in range(8): a("v_add_f32 v%d, v%d, v%d" % (YA + i, YA + i, YA + 8 + i))
        for i in range(4): a("v_cvt_pk_bf16_f32 v%d, v%d, v%d" % (YA + 24 + i, YA + 2 * i, YA + 2 * i + 1))
        a("s_nop 1")
        a("v_permlane32_swap_b32 v%d, v%d" % (YA + 24, YA + 26))
        a("v_permlane32_swap_b32 v%d, v%d" % (YA + 25, YA + 27))
        a("buffer_store_dwordx4 %s, v6, s[4:7], s61 offen%s" % (vr(YA + 24, 4), OSC))
        gen1.stamp(a, "fin")
        gen1.stamp_end(a, 0, 14, 5)
        a("s_endpgm")
    fin(0)
    a.label("KF_X1"); fin(1)
    a.label("KF_X2")
    a("s_cmp_eq_u32 s63, 3")
    a("s_cbranch_scc1 KF_X3")
    fin(2)
    a.label("KF_X3"); fin(3)
    a.label("KF_END")
    a("s_endpgm")
    for f in list(outl.values()): f()
    a("s_endpgm")
    a.label("KF_SLOW")
    vm2 = VM(a)
    CB = O
    a("s_waitcnt vmcnt(0)")
    a("s_add_u32 s72, s73, %s" % hx(KF))
    srd(a, 8, 14, "s72", 65536)
    a("s_add_u32 s72, s73, %s" % hx(VF))
    srd(a, 64, 14, "s72", 65536)
    a("s_mov_b32 s72, 0")
    a("v_mov_b32 v4, 0xff800000")
    a("s_mov_b32 s46, 64")
    a.label("KF_SL1")
    ldK(vm2, 0)
    a("s_add_u32 s72, s72, 1024")
    a("s_waitcnt vmcnt(0)")
    QK(3, 0, 0)
    a("s_nop 15")
    for i in range(8): a("v_max3_f32 v4, v4, v%d, v%d" % (S[0] + 2 * i, S[0] + 2 * i + 1))
    a("s_sub_u32 s46, s46, 1"); a("s_cmp_lg_u32 s46, 0")
    a("s_cbranch_scc1 KF_SL1")
    a("v_mov_b32 v5, v4")
    a("s_nop 1")
    a("v_permlane32_swap_b32 v4, v5")
    a("s_nop 1")
    a("v_max_f32 v4, v4, v5")
    for i in range(16): a("v_sub_f32 v%d, 0, v4" % (CB + i))
    for i in range(16): a("v_mov_b32 v%d, 0" % (O + 48 + i))
    a("s_mov_b32 s72, 0")
    a("s_mov_b32 s46, 65")
    a.label("KF_SL2")
    ldK(vm2, 0); ldV(vm2, 0, False)
    a("s_waitcnt vmcnt(0)")
    a("v_mfma_f32_32x32x16_bf16 %s, %s, %s, %s" % (vr(S[0], 16), vr(K[0], 4), vr(Q + 12, 4), vr(CB, 16)))
    a("s_nop 15")
    for i in range(16): a("v_exp_f32 v%d, v%d" % (S[0] + i, S[0] + i))
    a("s_nop 1")
    PV(3, 0, 0, 0); PV(3, 0, 0, 1)
    a("s_sub_u32 s46, s46, 1"); a("s_cmp_lg_u32 s46, 1")
    a("s_cbranch_scc1 KF_SL2")
    a("s_nop 15")
    a("s_branch KF_CHK")
    a.label("KF_LAST")
    a("s_endpgm")
    return NAME, 256, "grid=(256,1,1) block=(512,1,1) lds=163840"

def parse(argv):
    global KVROT, OSC, LADDER, HPUB, LATE
    global WARM, NOWAIT, SPLIT, DMP, ORDERED, EARLYO, NOB3, SHT, SETG, OWNQ
    if 'noownq' in argv: OWNQ = False; ab3.BASES = {"P": -1, "R": -1}
    for x in argv:
        if x.startswith('setg='): SETG = int(x[5:])
    for x in argv:
        if x.startswith('sht='): SHT = int(x[4:])
    if 'b3' in argv: NOB3 = False
    if 'lateo' in argv: EARLYO = False
    if 'ordered' in argv: ORDERED = True
    for x in argv:
        if x.startswith('dmp='): DMP = int(x[4:])
    if 'nosplit' in argv: SPLIT = 0
    if 'wait' in argv: NOWAIT = False
    if 'nowarm' in argv: WARM = False
    if "stamp" in argv: gen1.STAMP = True
    if "rt" in argv: gen1.RT = True
    gen3.GST = [32]
    for x in argv:
        if x.startswith("rot="): ab3.ROT = int(x[4:])
        if x.startswith("epr="): ab3.EPR = int(x[4:])
        if x == "pk": ab3.PK = True
        if x == "pairs": ab3.PAIRS = True
        if x == "nopm": ab3.PM = False
        if x == "nosplitw": ab3.SPLITW = False
        if x.startswith("hp="): ab3.HP = int(x[3:])
        if x.startswith("ep1r="): ab3.EP1R = int(x[5:])
        if x.startswith("bases="): ab3.BASES = dict(zip(("P", "R"), [int(y) for y in x[6:].split(",")])); OWNQ = True
        if x == "noaltr": ab3.ALTR = False
        if x == "swarm": ab3.SWARM = True
        if x.startswith("warmg="): ab3.WARMG = int(x[6:])
        if x.startswith("gcg="): ab3.GCG = int(x[4:])
        if x == "iwarm": ab3.IWARM = True
        if x.startswith("prio="): ab3.PRIO, ab3.PRG = [int(y) for y in x[5:].split(",")]
        if x.startswith("stg="): ab3.STG = int(x[4:])
        if x.startswith("eprr="): ab3.EPRR = int(x[5:])
        if x.startswith("ch="): ab3.CH = int(x[3:])
        if x.startswith("ldg="): ab3.LDG = dict(zip(("P", "R"), [int(y) for y in x[4:].split(",")]))
        if x.startswith("pld="): ab3.PLD = int(x[4:])
        if x.startswith("early="): ab3.EARLY = dict(zip(("P", "R"), [int(y) for y in x[6:].split(",")]))
        if x.startswith("d2="): ab3.D2 = int(x[3:])
        if x.startswith("pubs="): ab3.PUBS = dict(zip(("P", "R"), [int(y) for y in x[5:].split(",")]))
        if x.startswith("gst="): gen3.GST = [int(y) for y in x[4:].split(",")]
        if x.startswith("smap="): gen1.SMAP = [int(y) if y.isdigit() else y for y in x[5:].split(",")]
        if x == "nokvrot": KVROT = False
        if x == "noladder": LADDER = False
        if x.startswith("ladder="): LADDER = int(x[7:])
        if x == "ns4": gen3.NS4 = True
        if x.startswith("d8="): ab3.D8AT = dict(zip(("P", "R"), [int(y) for y in x[3:].split(",")]))
        if x.startswith("lead2="): gen3.LEAD2 = int(x[6:])
        if x == "fsync": gen3.FSYNC = True
        if x.startswith("sig="): gen3.SIG1, gen3.SIG2 = [int(y) for y in x[4:].split(",")]
        if x.startswith("xp="): XP.extend(x[3:].split(",")); ab3.XP = XP
        if x.startswith("hpub="): HPUB = int(x[5:])
        if x.startswith("osc="): OSC = " " + x[4:]
if __name__ == "__main__":
    parse(sys.argv)
    build1(sys.argv[1], kf, aslist=("list" in sys.argv))
```

```python
import sys
sys.path.insert(0, "gen")
import gen1
from gen1 import *
from asmlib import *
from gen2 import gate_code
SC = " sc1"
SLOT = 32768
GCG = -1
EPR = 9
PUBS = {"P": 11, "R": 13}
ROT = 8
NT = ""
LD2 = {"P": 3, "R": 3}
PFS = -9
PFA = -9
PFB = {"P": -1, "R": -1}
D1L = 0
TWARM = False
PAIRS = False
PM = False
SPLITW = True
D8AT = {"P": -1, "R": -1}
HP = 1
BASES = {"P": 10, "R": 11}
ALTP = False
ALTR = False
CHR = 2
EP1R = 4
SWARM = False
IWARM = True
PRIO = 0
PRG = 32
STG = 3
XP = []
PK = False
CH = 3
D2 = 3
PLD = 5; LDG = {"P": 93, "R": 93}; WARMG = 68
EARLY = {"P": 30, "R": 30}
EPRR = 9

def phase_ab(a, tail, hook):
    X = 128; WF = 32; E = 128
    SET = [64, 80, 96, 112]
    vAX, vT, vST, vAW1, vA2, vAM, vSV, vD, vDM = 2, 3, 4, 5, 7, 9, 10, 11, 16
    a("v_lshrrev_b32 v20, 4, v0")
    a("v_and_b32 v21, 7, v0")
    a("v_xor_b32 v22, v21, v20")
    a("v_lshlrev_b32 v22, 4, v22")
    a("v_lshrrev_b32 v23, 3, v0")
    a("v_lshl_add_u32 v22, v23, 10, v22")
    a("s_lshl_b32 s58, s3, 14")
    a("v_add_u32 v%d, s58, v22" % vD)
    a("v_xor_b32 v%d, 64, v%d" % (vD + 1, vD))
    a("v_add_u32 v%d, %d, v%d" % (vD + 1, 7168, vD + 1))
    a("v_and_b32 v22, 1, v20")
    a("v_lshlrev_b32 v22, 2, v22")
    a("v_xor_b32 v22, v22, v21")
    a("s_and_b32 s58, s3, 1")
    a("s_lshl_b32 s58, s58, 1")
    a("v_xor_b32 v22, s58, v22")
    a("v_lshlrev_b32 v22, 4, v22")
    a("s_lshl_b32 s58, s3, 3")
    a("v_add_u32 v23, s58, v23")
    a("v_mul_u32_u24 v24, 3072, v23")
    a("v_add_u32 v%d, v24, v22" % (vD + 2))
    a("s_lshl_b32 s56, s3, 11")
    a("s_lshl_b32 s57, s3, 10")
    a("s_lshl_b32 s44, s18, 17")
    a("s_lshl_b32 s45, s19, 7")
    a("s_sub_u32 s46, %d, s45" % (512 * 3072))
    a("s_lshl_b32 s50, s55, 1")
    a("s_add_u32 s50, s50, s18")
    if ROT != 8:
        a("s_add_u32 s50, s55, s18")
        a("s_and_b32 s50, s50, %d" % (ROT - 1))
        a("s_mul_i32 s50, s50, %d" % (8 // ROT))
    a("s_lshl_b32 s51, s54, 8")
    a("s_sub_u32 s51, 1920, s51")
    a("s_add_u32 s28, s55, 1")
    a("s_waitcnt lgkmcnt(0)")
    gen1.stamp(a, 1)
    if IWARM:
        a("s_getpc_b64 s[90:91]")
        a.label("AB_PC")
        a("s_lshl_b32 s92, s17, 3")
        a("s_add_u32 s92, s92, s3")
        a("s_lshl_b32 s92, s92, 7")
        a("s_min_u32 s92, s92, KF_LAST-AB_PC")
        a("s_load_dword s33, s[90:91], s92")
    srd(a, 20, 4, "s44", 128 * 1024)
    srd(a, 24, 6, "s45", "s46")
    a("s_bitcmp1_b32 s28, 1")
    a("s_cbranch_scc0 AB_P")

    def stream(kind):
        P = kind == "P" and not PM; PP = kind == "P" and PM
        assert not PM or HP == 1
        vm = VM(a); lg = VM(a, "lgkmcnt", 15)
        d8 = D8AT[kind]
        SL = [(t + (1 if PAIRS else 0)) % 5 for t in range(16)] if d8 < 0 else [0, 1, 2, 3, 0, 1, 2, 3, 4, 0, 1, 2, 3, 4, 0, 1]
        def base(s): return SL[s] * SLOT
        def after(t):
            if PAIRS and t >= 10: return t - 2 - t % 2
            prev = [u for u in range(t) if SL[u] == SL[t]]
            return max(prev[-1] + 2 if prev else 0, t - (LD2[kind] if t >= 9 else 3), 0)
        def dma(s):
            b = base(s); tag = ("d", s)
            G = []
            def grp(m0, off, txt, pre=None):
                G.append([("s", "s_add_u32 m0, %s, %s" % (m0, hx(off)))] + (pre or [("s", "s_nop 0")]) + [("v", txt)])
            ld = "buffer_load_dwordx4 v%d, s[%d:%d], %s offen offset:%d lds"
            if s < 8:
                pre = [("s", "s_add_u32 s48, s50, %d" % s), ("s", "s_and_b32 s48, s48, 7"),
                       ("s", "s_mul_i32 s49, s48, %d" % (64 * 3072)), ("s", "s_lshl_b32 s48, s48, 7")]
                grp("s56", b, ld % (vD, 20, 23, "s48", 0), pre)
                G.append([("v", ld % (vD + 1, 20, 23, "s48", 1024))])
                grp("s57", b + 16384, ld % (vD + 2, 24, 27, "s49", 0))
                if PP: grp("s57", b + 24576, ld % (vDM, 4, 7, "s49", 0), [("s", "s_mul_i32 s49, s48, 1792")])
                elif not P: grp("s57", b + 24576, ld % (vD + 2, 24, 27, "s49", 0), [("s", "s_add_u32 s49, s49, s51")])
            else:
                for c in range(2):
                    pos = (2 * (s - 8) + c) % 8
                    pre = [("s", "s_add_u32 s48, s50, %d" % pos), ("s", "s_and_b32 s48, s48, 7"),
                           ("s", "s_mul_i32 s49, s48, %d" % (64 * 3584)), ("s", "s_add_u32 s49, s49, s%d" % (52 if s < 12 else 97))]
                    if P or (s < 12) == (HP == 2):
                        grp("s57", b + c * 16384, ld % (vD + 3, 40, 43, "s49", 0), pre)
                        grp("s57", b + c * 16384 + 8192, ld % (vD + 3, 44, 47, "s49", 0))
                    else:
                        grp("s57", b + c * 8192, ld % (vDM, 4, 7, "s49", 0), pre)
            def nt(t):
                if not t.endswith(" lds"): return t
                isx = "s[20:23]" in t; isq = "s[24:27]" in t
                on = ("x" in NT and isx) or ("q" in NT and isq) or ("g" in NT and not isx and not isq)
                return t[:-4] + " nt lds" if on else t
            return [[(k, nt(t), tag) for (k, t) in g] for g in G]
        def flat(G): return [x for g in G for x in g]
        def emit(it):
            k, t, tag = it
            if k == "v": vm.issue(t, tag)
            elif k == "l": lg.issue(t, tag)
            elif k == "f": t()
            else: a(t)
        def ffn_setup():
            a("s_lshl_b32 s58, s55, 3")
            a("s_lshr_b32 s38, 0x140e0800, s58")
            a("s_and_b32 s38, s38, 0xff")
            a("s_lshr_b32 s52, %s, s58" % ("0x00400000" if HP == 2 else "0x40008040" if PM else "0x00008000"))
            a("s_and_b32 s52, s52, 0xff")
            a("s_lshr_b32 s97, %s, s58" % ("0x80008080" if HP == 2 else "0x80400080"))
            a("s_and_b32 s97, s97, 0xff")
            a("s_mul_i32 s58, s54, 28")
            a("s_add_u32 s58, s58, s38")
            a("s_lshl_b32 s38, s58, 5")
            a("s_sub_u32 s39, %d, s38" % (512 * 3584))
            srd(a, 40, 8, "s38", "s39")
            srd(a, 44, 10, "s38", "s39")
            a("v_mul_u32_u24 v24, 3584, v23")
            a("v_add_u32 v%d, v24, v22" % (vD + 3))
            if not P:
                a("v_lshrrev_b32 v23, 2, v0")
                a("s_lshl_b32 s38, s36, 4")
                a("v_add_u32 v23, s38, v23")
                a("v_mul_u32_u24 v23, 3584, v23")
                a("v_and_b32 v24, 3, v0")
                a("v_lshrrev_b32 v25, 5, v0")
                a("v_lshlrev_b32 v25, 1, v25")
                a("v_xor_b32 v24, v25, v24")
                a("s_cmp_eq_u32 s37, 0")
                a("s_cselect_b32 s4, s40, s44")
                a("s_cselect_b32 s5, s41, s45")
                a("s_mov_b32 s6, s42")
                a("s_mov_b32 s7, 0x20000")
                a("v_lshl_add_u32 v%d, v24, 4, v23" % vDM)
        gi0, gc0 = gate_code(a, vm, "s[28:31]", "s[20:23]", "s39", X + 112)
        if GCG >= 0:
            for it in flat(dma(0)): emit(it)
        srd(a, 28, 12, 0, 1024)
        a("s_lshl_b32 s60, s19, 3")
        a("s_add_u32 s60, s60, s3")
        a("s_lshl_b32 s39, s60, 10")
        gi0()
        if GCG < 0:
            D0 = dma(0)
            for it in flat(D0[:3]): emit(it)
            if PP: ffn_setup()
            for it in flat(D0[3:]): emit(it)
        def d1(pos):
            if D1L == pos:
                if pos == 0: a("s_barrier")
                for it in flat(dma(1)): emit(it)
        d1(0)
        hook(kind, vm, "init")
        def pfa():
            a("s_mul_i32 s38, s54, %d" % (28 * 32))
            a("s_cmp_eq_u32 s55, 1")
            a("s_cselect_b32 s39, 0, 640")
            a("s_add_u32 s38, s38, s39")
            a("s_and_b32 s39, s18, 7")
            a("s_lshl_b32 s39, s39, 3")
            a("s_add_u32 s39, s39, s3")
            a("s_mul_i32 s39, s39, %d" % (8 * 3584))
            a("s_add_u32 s38, s38, s39")
            a("v_mul_u32_u24 v15, 3584, v0")
            a("s_mov_b64 exec, 0xff")
            for p in (8, 10):
                srd(a, 92, p, 0, 512 * 3584)
                vm.issue("buffer_load_dword v4, v15, s[92:95], s38 offen ; dummy", "pf")
            a("s_mov_b64 exec, -1")
        if PFA == -1 and kind == "R": pfa()
        if TWARM:
            a("s_lshl_b32 s38, s3, 21")
            a("s_load_dword s53, s[14:15], s38")
            a("s_cmp_eq_u32 s3, 7")
            a("s_cbranch_scc0 AB_TW_%s" % kind)
            for p in ("s[8:9]", "s[10:11]", "s[76:77]", "s[78:79]", "s[96:97]", "s[100:101]"): a("s_load_dword s53, %s, 0" % p)
            a("s_mov_b32 s38, %d" % (16 * MB))
            a("s_load_dword s53, s[14:15], s38")
            a.label("AB_TW_%s" % kind)
        if SWARM:
            a("s_lshl_b32 s38, s2, 3")
            a("s_add_u32 s38, s38, s3")
            a("s_mul_i32 s38, s38, 896")
            a("s_add_u32 s90, s8, s38"); a("s_addc_u32 s91, s9, 0")
            a("s_add_u32 s92, s10, s38"); a("s_addc_u32 s93, s11, 0")
            for i in range(7):
                a("s_load_dword s53, s[90:91], %d" % (128 * i))
                a("s_load_dword s53, s[92:93], %d" % (128 * i))
        if not PP: ffn_setup()
        a("v_and_b32 v24, 15, v0")
        a("v_lshrrev_b32 v25, 4, v0")
        a("v_bfe_u32 v26, v0, 1, 3")
        a("v_xor_b32 v26, v25, v26")
        a("v_lshlrev_b32 v26, 4, v26")
        a("v_lshl_add_u32 v26, v24, 7, v26")
        a("s_lshl_b32 s38, s36, 12")
        if base(0): a("s_add_u32 s38, s38, %d" % base(0))
        a("v_add_u32 v%d, s38, v26" % vAX)
        a("v_bfe_u32 v21, v0, 2, 2")
        a("v_lshl_add_u32 v26, v25, 3, v21")
        a("v_bfe_u32 v27, v0, 4, 1")
        a("v_and_b32 v28, 3, v0")
        a("v_lshlrev_b32 v28, 3, v28")
        a("v_bfe_u32 v30, v0, 3, 1")
        a("v_xor_b32 v23, s37, v30")
        a("v_lshl_add_u32 v23, v23, 1, v27")
        a("v_lshl_add_u32 v29, v23, 5, v28")
        a("v_lshl_add_u32 v29, v26, 7, v29")
        a("v_add_u32 v%d, %d, v29" % (vAW1, 16384 + base(0)))
        a("v_xor_b32 v%d, 32, v%d" % (vAW1 + 1, vAW1))
        a("v_add_u32 v%d, %d, v29" % (vA2, base(8 if P or HP == 2 else 12)))
        a("v_xor_b32 v%d, 32, v%d" % (vA2 + 1, vA2))
        if not P:
            a("v_xor_b32 v23, s37, v27")
            a("v_lshl_add_u32 v29, v23, 5, v28")
            a("v_lshl_add_u32 v29, v26, 6, v29")
            a("v_add_u32 v%d, %d, v29" % (vAM, base(12 if HP == 2 else 8)))
            if PP: a("v_add_u32 v%d, %d, v29" % (vSV, 24576 + base(0)))
        a("v_lshrrev_b32 v25, 5, v0")
        a("s_lshl_b32 s90, s18, 2")
        a("s_add_u32 s90, s90, s36")
        a("s_lshl_b32 s91, s90, 10")
        a("s_mul_i32 s90, s90, 112")
        a("s_add_u32 s90, s90, s58")
        a("s_lshr_b32 s38, s52, 5")
        a("s_add_u32 s95, s90, s38")
        a("s_lshr_b32 s38, s97, 5")
        a("s_add_u32 s58, s90, s38")
        a("s_lshl_b32 s38, s37, 1")
        a("s_add_u32 s58, s58, %s" % ("s38" if P or HP == 1 else "s37"))
        a("s_lshl_b32 s58, s58, 10")
        a("s_add_u32 s95, s95, %s" % ("s38" if P or HP == 2 else "s37"))
        a("s_lshl_b32 s95, s95, 10")
        if PP:
            a("s_add_u32 s96, s90, s37")
            a("s_lshl_b32 s96, s96, 10")
        elif not P:
            a("v_and_b32 v29, 15, v0")
            a("v_lshlrev_b32 v29, 4, v29")
            a("v_lshl_add_u32 v29, v25, 8, v29")
            a("v_lshl_add_u32 v%d, v27, 16, v29" % vSV)
            a("s_lshl_b32 s38, s54, 1")
            a("s_add_u32 s38, s38, s55")
            a("s_sub_u32 s38, s38, 1")
            a("s_lshl_b32 s38, s38, 18")
            a("s_add_u32 s96, s91, s38")
            a("s_lshl_b32 s38, s37, 17")
            a("s_add_u32 s96, s96, s38")
            a("s_add_u32 s96, s96, %s" % hx(VF))
        a("s_cmp_lt_u32 s19, 8")
        a("s_cselect_b32 s92, %s, 1.0" % hx(f2u(0.25 * LOG2E)))
        a("s_mov_b32 s93, s92")
        a("s_lshl_b32 s38, s19, 18")
        a("s_add_u32 s91, s91, s38")
        a("s_lshl_b32 s38, s37, 17")
        a("s_add_u32 s91, s91, s38")
        a("s_add_u32 s94, s91, 0x10000")
        def gc():
            o = gc0()
            a("v_mov_b32 v30, v%d" % o); a("v_mov_b32 v31, v%d" % (o + 1))
            srd(a, 28, 14, 0, 17 * MB)
            a("s_lshl_b32 s39, s18, 7")
            a("s_add_u32 s60, s60, s39")
            a("s_lshl_b32 s60, s60, 3")
            a("s_add_u32 s60, s60, %s" % hx(GG))
            a("v_mov_b32 v29, 0")
        def gst():
            a("s_mov_b32 exec_lo, 0")
            a("s_mov_b32 exec_hi, 0x80000000")
            vm.issue("buffer_store_dwordx2 v[30:31], v29, s[28:31], s60 offen%s" % SC, "gst")
            a("s_mov_b64 exec, -1")
        T = [[3], [0, 1], [2, 3]] if P else [[0, 1], [2, 3], [0]] if HP == 2 else [[0, 1], [2], [0, 1]]
        ALT = [2 if ALTP else None, None, None] if P else [None, None, 1 if ALTR else None] if HP == 2 else [None, 3 if ALTR else None, None]
        DIST = [2, D2, D2] if P else [2, D2, 4] if HP == 2 else [2, 4, D2]
        def ph(g): return g // 32
        def stage(g): return g // 4 if g < 32 else 8 + (g - 32) // 8
        def first(g): return g % 4 == 0 if g < 32 else g % 8 == 0
        def wf(g, n, f):
            S = g // 2; nt = len(T[ph(g)])
            nb = 2 if nt == 2 else (4 if ph(g) == 0 else 3)
            if not P and HP == 1 and ph(g) == 2: S += 1
            return WF + 8 * nt * ((S if nb == 2 else S % 16) % nb) + 8 * n + 4 * f
        def wregs(g): return set(r for n in range(len(T[ph(g)])) for r in range(wf(g, n, 0), wf(g, n, 0) + 8))
        def reads(g):
            s = stage(g); p = ph(g); L = []
            if p == 0: R = [vAX, vAW1, vAW1 + 1] + ([vSV] if PP else [])
            elif p == HP and not P: R = [vAM]
            else: R = [vA2, vA2 + 1]
            if first(g) and s not in (0, 8) and not (s == 12 and not P):
                d = base(s) - base(s - 1)
                for r in R: L.append(("s", "v_add_u32 v%d, %s, v%d" % (r, hx(d), r), None))
            ks = g % 4
            if p == 0:
                if ks == 2: L.append(("s", "v_xor_b32 v%d, 64, v%d" % (vT, vAX), None))
                L.append(("l", "ds_read_b128 %s, v%d offset:%d" % (vr(X + 4 * g, 4), vT if ks >= 2 else vAX, (ks % 2) * 2048), g))
            if g % 2: return L
            c = 0 if p == 0 else (g % 8) // 4
            for n in range(len(T[p])):
                for f in range(2):
                    if p == 0 and n == 1 and PP: ad, off, rb_ = vSV, f * 4096, 64
                    elif p == 0: ad, off, rb_ = vAW1 + f, n * 8192, 128
                    elif R[0] == vAM: ad, off, rb_ = vAM, c * 8192 + f * 4096, 64
                    else: ad, off, rb_ = vA2 + n, c * 16384 + f * 8192, 128
                    for j in range(2):
                        L.append(("l", "ds_read_b64_tr_b16 %s, v%d offset:%d" % (vr(wf(g, n, f) + 2 * j, 2), ad, off + (16 * ks + 4 * j) * rb_), (g, 1) if (n == 1 and SPLITW) else g))
            return L
        def mfmas(g):
            L = []
            x = vr(X + 4 * (g % 32), 4); h = g % 2
            for n, ac in enumerate(T[ph(g)]):
                for f in range(2):
                    w = vr(wf(g, n, f), 4)
                    if g < 32 and n == 1 and not PP: d = vr(SET[ac] + 8 * h + 4 * f, 4); A, B = x, w
                    else: d = vr(SET[ac] + 8 * f + 4 * h, 4); A, B = w, x
                    L.append("v_mfma_f32_16x16x32_bf16 %s, %s, %s, %s" % (d, A, B, "0" if g % 32 < 2 else d))
            return L
        def qkv_epi(n):
            b = SET[T[0][n]]; L = []
            if n == 0:
                for i in range(16): L.append(("s", "v_mul_f32 v%d, s92, v%d" % (b + i, b + i), None))
            for i in range(8): L.append(("s", "v_cvt_pk_bf16_f32 v%d, v%d, v%d" % (b + i, b + 2 * i, b + 2 * i + 1), None))
            for i in (0, 1, 4, 5): L.append(("s", "v_permlane16_swap_b32 v%d, v%d" % (b + i, b + i + 2), None))
            if n == 0:
                L.append(("v", "buffer_store_dwordx4 %s, v1, s[28:31], s91 offen%s" % (vr(b, 4), SC), "qkv"))
                L.append(("v", "buffer_store_dwordx4 %s, v1, s[28:31], s94 offen%s" % (vr(b + 4, 4), SC), "qkv"))
            else:
                for j in range(2):
                    L.append(("v", "buffer_store_dwordx4 %s, v%d, s[28:31], s96 offen offset:%d%s" % (vr(b + 4 * j, 4), vSV, j * 512, SC), "qkv"))
            return L
        def silu(G, Tm, so, off, tag, pk=True):
            U = G + 8; L = []
            def op(o, d, x, y):
                if pk:
                    for i in range(4): L.append("v_pk_%s_f32 %s, %s, %s" % (o, vr(d + 2 * i, 2), vr(x + 2 * i, 2), y if isinstance(y, str) else vr(y + 2 * i, 2)))
                else:
                    for i in range(8): L.append("v_%s_f32 v%d, %s, v%d" % (o, d + i, {"s[92:93]": "s92", "s[12:13]": "1.0"}.get(y, None) or "v%d" % (y + i), x + i))
            op("mul", Tm, G, "s[92:93]")
            for i in range(8): L.append("v_exp_f32 v%d, v%d" % (Tm + i, Tm + i))
            op("mul", G, G, U)
            op("add", Tm, Tm, "s[12:13]")
            for i in range(8): L.append("v_rcp_f32 v%d, v%d" % (Tm + i, Tm + i))
            L.append("s_nop 0")
            op("mul", G, G, Tm)
            for i in range(4): L.append("v_cvt_pk_bf16_f32 v%d, v%d, v%d" % (G + i, G + 2 * i, G + 2 * i + 1))
            L.append("s_nop 0")
            for i in range(2): L.append("v_permlane16_swap_b32 v%d, v%d" % (G + i, G + i + 2))
            L = [("s", t, None) for t in L]
            L.append(("v", "buffer_store_dwordx4 %s, v1, s[32:35], %s offen offset:%d%s" % (vr(G, 4), so, off, SC), tag))
            return L
        def consts():
            a("s_mov_b32 s92, %s" % hx(f2u(-LOG2E))); a("s_mov_b32 s93, s92")
            a("s_mov_b32 s12, 1.0"); a("s_mov_b32 s13, 1.0")
            srd(a, 32, 14, HF, 7 * MB)
        ep1 = []
        if PP: ep1 = qkv_epi(0) + [("f", consts, None)] + silu(SET[T[0][1]], 56, "s96", 0, "h1", PK)
        else:
            for n in reversed(range(len(T[0]))): ep1 += qkv_epi(n)
        ep0 = [("f", lambda: hook(kind, vm, "early"), None), ("f", gst, None)]
        if "noearly" in XP: ep0 = []
        ep1b = [("f", consts, None)] if not PP else []
        if "noqst" in XP: ep1 = [x for x in ep1 if x[0] != "v"]
        if "noep1" in XP: ep1 = [x for x in ep1 if x[0] == "v"]
        if "plainq" in XP: ep1 = [(k, t.replace(SC, ""), g) if k == "v" else (k, t, g) for (k, t, g) in ep1]
        ep2 = []
        if ALT[1] is not None:
            for i in range(16): ep2.append(("s", "v_add_f32 v%d, v%d, v%d" % (SET[T[1][0]] + i, SET[T[1][0]] + i, SET[ALT[1]] + i), None))
        for n, ac in enumerate(T[1]): ep2 += silu(SET[ac], E if P or HP == 1 else 56, "s95", n * 1024, "h1", PK)
        if "noep2" in XP: ep2 = []
        if "ep2nost" in XP: ep2 = [x for x in ep2 if x[0] != "v"]
        islot = {}
        last = -1
        for g in range(96):
            want = g - DIST[ph(g)]
            if g % 2 == 0:
                for g2 in range(g - 1, max(-1, g - 12), -1):
                    if wregs(g) & wregs(g2): want = max(want, g2 + 1); break
            want = max(want, last)
            assert want < g or g == 0, g
            islot[g] = want; last = want
        syncs = {islot[g]: stage(g) for g in range(1, 96) if first(g) and not (PAIRS and stage(g) > 8 and stage(g) % 2)}
        def barrier(s):
            if PAIRS and s >= 8: vm.wait(("d", s + 1), *(("qkv", "gst", "sent") if s == PUBS[kind] else ()))
            elif s == PUBS[kind]: vm.wait(("d", s), "qkv", "gst", "sent")
            elif s == BASES[kind]: vm.wait(("d", s), "gst", "sent")
            else: vm.wait(("d", s))
            if s == (14 if PAIRS else 15): a("s_waitcnt lgkmcnt(0)"); lg.ops = []
            a("s_barrier")
            gen1.jit(a)
            if s == BASES[kind]: hook(kind, vm, "base")
            if s == PUBS[kind]: hook(kind, vm, "pub")
        d1(1)
        hook(kind, vm, "setup")
        d1(2)
        if GCG < 0: gc()
        d1(3)
        barrier(0)
        if SWARM or IWARM: a("s_waitcnt lgkmcnt(0)")
        gen1.stamp(a, 2)
        for g in range(96):
            if islot[g] < 0:
                for it in reads(g): emit(it)
        stq = []; nst = [0]; late = []
        pend = []
        for t in range(2, 16):
            if after(t) == 0 and not (t == 8 and d8 >= 0): pend += dma(t)
            if t == d8 and after(t) == 0: pend += dma(8)
        for g in range(96):
            O = []
            O += late; late = []
            for g2 in range(g + 1, 96):
                if islot[g2] == g:
                    Lr = reads(g2)
                    if g2 - g >= 2:
                        late += [it for it in Lr if it[2] == (g2, 1)]
                        Lr = [it for it in Lr if it[2] != (g2, 1)]
                    O += Lr
            bar = syncs.get(g)
            if bar is not None:
                assert not any(it[2] in (("d", bar), ("d", bar + 1) if PAIRS and bar >= 8 else None) for grp in pend for it in grp), (g, bar)
                for t in range(2, 16):
                    if after(t) == bar and not (t == 8 and d8 >= 0): pend += dma(t)
                    if t == d8 and after(t) == bar: pend += dma(8)
            if pend and (g < 32 or g % 2 == 0 or len(pend) > (5 if PAIRS else 4)):
                for _ in range(2 if len(pend) > 3 and g < 32 else 1): O += pend.pop(0)
            if g == GCG: O.append(("f", gc, None))
            if ep0 and g >= EARLY[kind]: O.append(ep0.pop(0))
            if g >= 34 and stq and g >= nst[0] and None not in stq[:2]:
                O += stq.pop(0); nst[0] = g + STG
            if g >= 34 and ep1:
                n = EPR + 2 if P or HP == 2 else EP1R
                for it in ep1[:n]:
                    if it[0] == "v": stq.append([it])
                    elif it[0] == "s" and it[1].startswith("s_add_u32 s9"): stq.append([it]) ; stq.append(None)
                    else: O.append(it)
                ep1 = ep1[n:]
                i = 0
                while i < len(stq):
                    if stq[i] is None and i + 1 < len(stq):
                        stq[i - 1] = stq[i - 1] + stq[i + 1]
                        del stq[i:i + 2]
                    else: i += 1
            elif stq: pass
            elif g >= max(34, EARLY[kind]) and ep1b and g >= nst[0]: O.append(ep1b.pop(0)); nst[0] = g + 2
            elif g >= (67 if P or HP == 1 else 66) and ep2:
                n = EPR if P else EPRR
                O += ep2[:n]; ep2 = ep2[n:]
                O += hook(kind, vm, (g, CH if P else CHR)) or []
            elif g >= 34 and not ep1b:
                O += hook(kind, vm, (g, 6 if g < 64 else 10)) or []
            if g < 30: O += hook(kind, vm, (g, 0)) or []
            if g == PFB[kind] or (P and g == PFS):
                def pfb(o="s52" if (P and g == PFS) else "s97"):
                    a("s_and_b32 s48, s18, 7")
                    a("s_lshl_b32 s48, s48, 3")
                    a("s_add_u32 s48, s48, s3")
                    a("s_mul_i32 s48, s48, %d" % (8 * 3584))
                    a("s_add_u32 s48, s48, %s" % o)
                    a("v_mul_u32_u24 v15, 3584, v0")
                    a("s_mov_b64 exec, 0xff")
                    vm.issue("buffer_load_dword v%d, v%d, s[40:43], s48 offen ; dummy" % (4, 15), "pf")
                    vm.issue("buffer_load_dword v%d, v%d, s[44:47], s48 offen ; dummy" % (4, 15), "pf")
                    a("s_mov_b64 exec, -1")
                assert not pend or pend[0][0][1].startswith("s_add_u32 m0, s56"), (kind, g, pend[0][0])
                O.append(("f", pfb, None))
            if g == WARMG: O.append(("f", lambda: hook(kind, vm, "warm"), None))
            if bar == BASES[kind]: assert not ep0
            if BASES[kind] > 0 and g == LDG[kind] - 2 * PLD: O.append(("f", lambda: hook(kind, vm, "bpoll"), None))
            if g == LDG[kind] - PLD: O.append(("f", lambda: hook(kind, vm, "poll"), None))
            if g == LDG[kind]: assert not ep2 or (not P and HP == 2)
            if g == LDG[kind]: O.append(("f", lambda: hook(kind, vm, "ld"), None))
            if bar == PUBS[kind]: assert not ep1 and not stq and not ep1b and not any(it[0] == "f" for it in O), (kind, g)
            if g == 63: assert not ep1 and not stq and not ep1b
            M = mfmas(g)
            pr = PRIO if g >= PRG else 0
            if pr: a("s_setprio 1")
            lg.wait(g)
            assert not (gen1.STAMP and "g%d" % g in gen1.SMAP and 10 < g < 30), "stamp would clobber the set-up temporaries"
            if g % 5 == 3: gen1.jit(a)
            gen1.stamp(a, "g%d" % g)
            n = len(M); per = max(1, -(-len(O) // n))
            if pr == 2:
                for m in M: a(m)
                a("s_setprio 0")
                if bar is not None: barrier(bar)
                for it in O: emit(it)
                continue
            for i, m in enumerate(M):
                if i == 2: lg.wait((g, 1))
                if pr and i: a("s_setprio 1")
                a(m)
                if pr: a("s_setprio 0")
                if i == 0 and bar is not None: barrier(bar)
                for it in O[i * per:(i + 1) * per]: emit(it)
        assert not ep1 and not ep2 and not pend
        gen1.stamp(a, 4)
        hook(kind, vm, "pre_h")
        a("s_nop 10")
        L0 = silu(SET[T[2][0]], WF, "s58", 0, "h")
        if len(T[2]) == 2:
            L1 = silu(SET[T[2][1]], WF + 8, "s58", 1024, "h")
            for it in L0[:12] + L1[:12] + L0[12:28]: emit(it)
            hook(kind, vm, "mid_h")
            for it in L1[12:28] + L0[29:] + L1[29:]: emit(it)
        else:
            if ALT[2] is not None:
                b = SET[T[2][0]]; c = SET[ALT[2]]
                for i in range(8): a("v_pk_add_f32 %s, %s, %s" % (vr(b + 2 * i, 2), vr(b + 2 * i, 2), vr(c + 2 * i, 2)))
            for it in L0[:28]: emit(it)
            hook(kind, vm, "mid_h")
            for it in L0[28:]: emit(it)
            a("v_mov_b32 v4, 0x1000")
            vm.issue("buffer_store_dword v4, v4, s[84:87], 0 offen", "h")
        tail(kind, vm)
    stream("R")
    a.label("AB_P")
    stream("P")
```

```python
import sys
sys.path.insert(0, "gen")
from asmlib import *

MB = 1 << 20
QF = 0; KF = 2*MB; VF = 4*MB; HF = 6*MB; OF = 14*MB; GG = 16*MB; BB = 17*MB
LOG2E = 1.4426950408889634
import struct
def f2u(x): return struct.unpack("<I", struct.pack("<f", x))[0]
def hx(x): return "0x%x" % (x & 0xffffffff)

def vr(b, n): return "v[%d:%d]" % (b, b + n - 1) if n > 1 else "v%d" % b
def sr(b, n): return "s[%d:%d]" % (b, b + n - 1) if n > 1 else "s%d" % b

def srd(a, d, base, off, size):
    if off == 0:
        a("s_mov_b32 s%d, s%d" % (d, base)); a("s_mov_b32 s%d, s%d" % (d + 1, base + 1))
    else:
        a("s_add_u32 s%d, s%d, %s" % (d, base, off if isinstance(off, str) else hx(off)))
        a("s_addc_u32 s%d, s%d, 0" % (d + 1, base + 1))
    a("s_mov_b32 s%d, %s" % (d + 2, size if isinstance(size, str) else hx(size)))
    a("s_mov_b32 s%d, 0x20000" % (d + 3))

STAMP = False
TS = 32 * MB
SMAP = None
RT = False
VST = 17
def _put(a, op, lane):
    a("%s s[38:39]" % op)
    a("s_waitcnt lgkmcnt(0)")
    a("v_writelane_b32 v%d, s38, %d" % (VST, lane))
def stamp(a, i):
    if not STAMP: return
    if SMAP is None or i not in SMAP: return
    _put(a, "s_memrealtime" if RT else "s_memtime", 3 + SMAP.index(i))
JIT = 0
_jn = [0]
def jit(a):
    if not JIT: return
    _jn[0] += 1
    n = _jn[0] * 7 + JIT
    reg, bit = ("s3", n % 3) if n % 2 else ("s2", (n // 2) % 8)
    a("s_bitcmp%d_b32 %s, %d" % ((n // 5) % 2, reg, bit))
    a("s_cbranch_scc1 JIT_%d" % _jn[0])
    a("s_sleep %d" % (8 + (n * 13) % 40))
    a.label("JIT_%d" % _jn[0])
def stamp_begin(a):
    if not STAMP: return
    a("v_mov_b32 v%d, 0" % VST)
    _put(a, "s_memrealtime", 0)
    _put(a, "s_memtime", 2)
def stamp_end(a, kid, wsreg, n):
    if not STAMP: return
    a("s_mov_b64 exec, -1")
    a("s_waitcnt vmcnt(0)")
    _put(a, "s_memrealtime", 1)
    _put(a, "s_memtime", 11)
    srd(a, 20, wsreg, TS + kid * MB, MB)
    a("s_lshl_b32 s24, s2, 4")
    a("s_add_u32 s24, s24, s3")
    a("s_lshl_b32 s24, s24, 6")
    a("v_lshlrev_b32 v1, 2, v0")
    a("s_mov_b64 exec, 0xffff")
    a("buffer_store_dword v%d, v1, s[20:23], s24 offen" % VST)
    a("s_waitcnt vmcnt(0)")

def header(a, name):
    a(".globl %s" % name); a(".p2align 8"); a(".type %s,@function" % name); a.label(name)

def descriptor(name, nv, ns=102):
    acc = (nv + 3) // 4 * 4
    return """.p2align 6
.amdhsa_kernel %s
  .amdhsa_next_free_vgpr %d
  .amdhsa_next_free_sgpr %d
  .amdhsa_accum_offset %d
  .amdhsa_group_segment_fixed_size 0
  .amdhsa_kernarg_size 88
  .amdhsa_user_sgpr_count 2
  .amdhsa_user_sgpr_kernarg_segment_ptr 1
  .amdhsa_system_sgpr_workgroup_id_x 1
  .amdhsa_float_denorm_mode_32 3
.end_amdhsa_kernel
""" % (name, nv, ns, acc)

SLOT = 28672; NSLOT = 5
def k1(a):
    name = "k1_kernel"
    header(a, name)
    a("s_cmp_ge_u32 s2, 256")
    a("s_cbranch_scc1 K1_END")
    stamp_begin(a)
    a("s_load_dwordx4 s[4:7], s[0:1], 0")
    a("s_load_dwordx4 s[8:11], s[0:1], 32")
    a("s_load_dwordx2 s[12:13], s[0:1], 56")
    a("s_load_dwordx2 s[14:15], s[0:1], 80")
    a("v_lshrrev_b32 v1, 6, v0")
    a("v_and_b32 v0, 63, v0")
    a("s_and_b32 s16, s2, 7")
    a("v_readfirstlane_b32 s3, v1")
    a("s_lshr_b32 s17, s2, 3")
    a("s_and_b32 s18, s16, 1")
    a("s_lshl_b32 s18, s18, 3")
    a("s_and_b32 s19, s17, 7")
    a("s_add_u32 s18, s18, s19")
    a("s_lshr_b32 s19, s16, 1")
    a("s_lshl_b32 s19, s19, 2")
    a("s_lshr_b32 s17, s17, 3")
    a("s_add_u32 s19, s19, s17")
    a("s_mov_b32 s58, %d" % SLOT)
    a("s_cmp_ge_u32 s3, 4")
    a("s_cbranch_scc1 K1_LOADER")
    a("s_and_b32 s36, s3, 1")
    a("s_lshr_b32 s37, s3, 1")
    AX0, AX1, AQ, AG0, AG1 = 2, 3, 4, 5, 6
    F = [12, 40]; ACC = 68
    def T(tt, c): return ACC + 16 * (2 * c + tt)
    a("v_and_b32 v7, 31, v0")
    a("v_lshrrev_b32 v8, 5, v0")
    a("v_and_b32 v9, 15, v0")
    a("v_bfe_u32 v10, v0, 4, 1")
    a("v_bfe_u32 v11, v0, 2, 2")
    a("v_xor_b32 v11, v8, v11")
    a("v_lshlrev_b32 v11, 4, v11")
    a("s_lshl_b32 s38, s36, 12")
    a("v_lshl_add_u32 v%d, v7, 6, v11" % AX0)
    a("v_add_u32 v%d, s38, v%d" % (AX0, AX0))
    a("v_xor_b32 v%d, 32, v%d" % (AX1, AX0))
    a("v_lshrrev_b32 v15, 2, v9")
    a("v_lshl_add_u32 v12, v8, 3, v15")
    a("v_bfe_u32 v13, v9, 1, 1")
    a("v_lshl_add_u32 v13, v10, 1, v13")
    a("v_and_b32 v14, 1, v9")
    a("v_lshlrev_b32 v14, 3, v14")
    a("v_lshrrev_b32 v16, 3, v9")
    a("v_xor_b32 v16, s37, v16")
    a("v_lshl_add_u32 v16, v16, 2, v13")
    a("v_lshl_add_u32 v16, v16, 4, v14")
    a("v_lshl_add_u32 v16, v12, 7, v16")
    a("v_add_u32 v%d, 8192, v16" % AQ)
    a("s_lshl_b32 s38, s37, 1")
    for u, R in ((0, AG0), (1, AG1)):
        if u: a("s_add_u32 s38, s38, 1")
        a("v_xor_b32 v16, s38, v15")
        a("v_lshl_add_u32 v16, v16, 2, v13")
        a("v_lshl_add_u32 v16, v16, 4, v14")
        a("v_lshl_add_u32 v16, v12, 8, v16")
        a("v_add_u32 v%d, 12288, v16" % R)
    for r in range(ACC, ACC + 160): a("v_mov_b32 v%d, 0" % r)
    a("s_mov_b32 s40, 0")
    a("s_mov_b32 s41, 16")
    def reads(f, ks):
        b = F[f]; L = []
        ax = AX0 if ks == 0 else AX1
        def X(tt): return "ds_read_b128 %s, v%d offset:%d" % (vr(b + 4 * tt, 4), ax, tt * 2048)
        def W(c, q):
            d = vr(b + 8 + 4 * c + 2 * q, 2)
            if c == 0: return "ds_read_b64_tr_b16 %s, v%d offset:%d" % (d, AQ, (16 * ks + 4 * q) * 128)
            u = (c - 1) % 2; up = (c - 1) // 2
            return "ds_read_b64_tr_b16 %s, v%d offset:%d" % (d, AG0 + u, (16 * ks + 4 * q) * 256 + up * 8192)
        return [X(0), W(0, 0), W(0, 1), X(1), W(1, 0), W(1, 1), W(2, 0), W(2, 1), W(3, 0), W(3, 1), W(4, 0), W(4, 1)]
    def mf(f, tt, c, swap):
        b = F[f]; x = vr(b + 4 * tt, 4); w = vr(b + 8 + 4 * c, 4); d = vr(T(tt, c), 16)
        if swap and c > 0: return "v_mfma_f32_32x32x16_bf16 %s, %s, %s, %s" % (d, x, w, d)
        return "v_mfma_f32_32x32x16_bf16 %s, %s, %s, %s" % (d, w, x, d)
    stamp(a, 1)
    a("s_barrier")
    stamp(a, 2)
    for r in reads(0, 0): a(r)
    a("s_cmp_ge_u32 s19, 14")
    a("s_cbranch_scc1 K1_ZLOOP")
    def loop(lab, swap):
        a(".p2align 6")
        a.label(lab)
        for ph in range(2):
            R = reads(1 - ph, 1 - ph)
            a("s_waitcnt lgkmcnt(0)")
            n = 0
            for c in range(5):
                for tt in range(2):
                    a(mf(ph, tt, c, swap))
                    if ph == 1 and n == 0: a("s_barrier")
                    if n < 6:
                        a(R[2 * n]); a(R[2 * n + 1])
                    if ph == 0 and n == 6:
                        a("s_add_u32 s40, s40, 1")
                        a("s_cmp_eq_u32 s40, %d" % NSLOT)
                        a("s_cselect_b32 s42, %s, s58" % (hx(-(NSLOT - 1) * SLOT)))
                        a("s_cselect_b32 s40, 0, s40")
                    if ph == 0 and n == 7:
                        for R_ in (AX0, AX1, AQ): a("v_add_u32 v%d, s42, v%d" % (R_, R_))
                    if ph == 0 and n == 8:
                        for R_ in (AG0, AG1): a("v_add_u32 v%d, s42, v%d" % (R_, R_))
                    if ph == 1 and n == 7:
                        a("s_sub_u32 s41, s41, 1")
                        a("s_cmp_lg_u32 s41, 0")
                    n += 1
        a("s_cbranch_scc1 %s" % lab)
    def epi_common():
        a("s_waitcnt lgkmcnt(0)")
        stamp(a, 3)
        srd(a, 20, 14, 0, 6 * MB)
        srd(a, 24, 14, HF, 7 * MB)
        a("s_lshl_b32 s44, s18, 2")
        a("s_lshl_b32 s45, s36, 1")
        a("s_add_u32 s44, s44, s45")
        a("s_lshl_b32 s46, s19, 1")
        a("s_add_u32 s46, s46, s37")
        a("s_lshl_b32 s46, s46, 17")
        a("s_lshl_b32 s45, s44, 10")
        a("s_add_u32 s46, s46, s45")
        a("s_cmp_lt_u32 s19, 8")
        a("s_cselect_b32 s48, %s, 1.0" % hx(f2u(0.25 * LOG2E)))
        a("s_mov_b32 s49, s48")
        a("s_cselect_b32 s50, 0, 12")
        a("v_lshrrev_b32 v11, 1, v7")
        a("v_xor_b32 v11, v7, v11")
        a("v_and_b32 v11, 4, v11")
        a("v_mul_u32_u24 v11, 3, v11")
        a("v_and_b32 v11, s50, v11")
        a("v_xor_b32 v11, v7, v11")
        a("v_lshlrev_b32 v11, 4, v11")
        a("v_lshl_add_u32 v11, v8, 9, v11")
        a("v_lshlrev_b32 v2, 4, v0")
        a("s_nop 7")
        TMP = 12
        for tt in range(2):
            b = T(tt, 0)
            for i in range(8): a("v_pk_mul_f32 %s, %s, s[48:49]" % (vr(b + 2 * i, 2), vr(b + 2 * i, 2)))
            for i in range(8): a("v_cvt_pk_bf16_f32 v%d, v%d, v%d" % (TMP + 8 * tt + i, b + 2 * i, b + 2 * i + 1))
            a("s_add_u32 s47, s46, 0x10000")
            a("buffer_store_dwordx4 %s, v11, s[20:23], s46 offen offset:%d" % (vr(TMP + 8 * tt, 4), tt * 1024))
            a("buffer_store_dwordx4 %s, v11, s[20:23], s47 offen offset:%d" % (vr(TMP + 8 * tt + 4, 4), tt * 1024))
    loop("K1_XLOOP", False)
    epi_common()
    a("s_mov_b32 s52, %s" % hx(f2u(-LOG2E))); a("s_mov_b32 s53, s52")
    a("s_mov_b32 s54, 1.0"); a("s_mov_b32 s55, 1.0")
    a("s_mul_i32 s56, s44, 112")
    a("s_lshl_b32 s57, s19, 3")
    a("s_add_u32 s56, s56, s57")
    a("s_lshl_b32 s57, s37, 2")
    a("s_add_u32 s56, s56, s57")
    a("s_lshl_b32 s56, s56, 10")
    a("s_add_u32 s57, s56, %d" % (112 * 1024))
    E = 228
    for tt in range(2):
        for u in range(2):
            G = T(tt, 1 + u); U = T(tt, 3 + u); P = 28 + 8 * (2 * tt + u)
            for i in range(8): a("v_pk_mul_f32 %s, %s, s[52:53]" % (vr(E + 2 * i, 2), vr(G + 2 * i, 2)))
            for i in range(16): a("v_exp_f32 v%d, v%d" % (E + i, E + i))
            for i in range(8): a("v_pk_mul_f32 %s, %s, %s" % (vr(G + 2 * i, 2), vr(G + 2 * i, 2), vr(U + 2 * i, 2)))
            for i in range(8): a("v_pk_add_f32 %s, %s, s[54:55]" % (vr(E + 2 * i, 2), vr(E + 2 * i, 2)))
            for i in range(16): a("v_rcp_f32 v%d, v%d" % (E + i, E + i))
            a("s_nop 0")
            for i in range(8): a("v_pk_mul_f32 %s, %s, %s" % (vr(G + 2 * i, 2), vr(G + 2 * i, 2), vr(E + 2 * i, 2)))
            for i in range(8): a("v_cvt_pk_bf16_f32 v%d, v%d, v%d" % (P + i, G + 2 * i, G + 2 * i + 1))
            for jj in range(2):
                a("buffer_store_dwordx4 %s, v2, s[24:27], s%d offen offset:%d" % (vr(P + 4 * jj, 4), 56 + tt, u * 2048 + jj * 1024))
    stamp(a, 4)
    stamp_end(a, 0, 14, 5)
    a("s_endpgm")
    loop("K1_ZLOOP", True)
    epi_common()
    a("v_lshlrev_b32 v3, 16, v10")
    a("v_lshl_add_u32 v3, v8, 8, v3")
    a("v_lshl_add_u32 v3, v9, 4, v3")
    a("s_sub_u32 s56, s19, 14")
    a("s_lshl_b32 s56, s56, 3")
    a("s_lshl_b32 s57, s37, 1")
    a("s_add_u32 s56, s56, s57")
    a("s_lshl_b32 s56, s56, 17")
    a("s_add_u32 s56, s56, s45")
    a("s_add_u32 s56, s56, %s" % hx(VF))
    n = 0
    for part in range(2):
        for u in range(2):
            a("s_add_u32 s57, s56, %s" % hx((4 * part + u) << 17))
            for tt in range(2):
                b = T(tt, 1 + 2 * part + u); P = 28 + 8 * (n % 4); n += 1
                for i in range(8): a("v_cvt_pk_bf16_f32 v%d, v%d, v%d" % (P + i, b + 2 * i, b + 2 * i + 1))
                for j in range(2):
                    a("buffer_store_dwordx4 %s, v3, s[20:23], s57 offen offset:%d" % (vr(P + 4 * j, 4), tt * 1024 + j * 512))
    stamp(a, 4)
    stamp_end(a, 0, 14, 5)
    a("s_endpgm")
    a.label("K1_LOADER")
    a("s_sub_u32 s36, s3, 4")
    a("s_waitcnt lgkmcnt(0)")
    a("s_lshl_b32 s38, s18, 17")
    srd(a, 20, 4, "s38", 128 * 1024)
    a("s_lshl_b32 s38, s19, 7")
    a("s_sub_u32 s39, %d, s38" % (512 * 3072))
    srd(a, 24, 6, "s38", "s39")
    a("s_cmp_ge_u32 s19, 14")
    a("s_cbranch_scc1 K1_LZ")
    a("s_lshl_b32 s38, s19, 8")
    a("s_sub_u32 s39, %d, s38" % (512 * 3584))
    srd(a, 28, 8, "s38", "s39")
    srd(a, 32, 10, "s38", "s39")
    a("s_mov_b32 s37, 3584")
    a("s_branch K1_LGO")
    a.label("K1_LZ")
    a("s_sub_u32 s38, s19, 14")
    a("s_lshl_b32 s38, s38, 9")
    a("s_add_u32 s38, s38, 2048")
    a("s_sub_u32 s39, %d, s38" % (512 * 3072))
    srd(a, 28, 6, "s38", "s39")
    a("s_add_u32 s38, s38, 256")
    a("s_sub_u32 s39, s39, 256")
    srd(a, 32, 6, "s38", "s39")
    a("s_mov_b32 s37, 3072")
    a.label("K1_LGO")
    a("v_lshrrev_b32 v8, 4, v0")
    a("v_and_b32 v9, 3, v0")
    a("v_xor_b32 v9, v9, v8")
    a("v_lshlrev_b32 v9, 4, v9")
    a("v_lshrrev_b32 v10, 2, v0")
    a("v_lshl_add_u32 v2, v10, 10, v9")
    a("s_lshl_b32 s38, s36, 15")
    a("v_add_u32 v2, s38, v2")
    a("v_add_u32 v3, %d, v2" % (16384 - 1024))
    a("v_and_b32 v9, 1, v8")
    a("v_lshlrev_b32 v9, 2, v9")
    a("v_and_b32 v10, 7, v0")
    a("v_xor_b32 v9, v9, v10")
    a("v_lshlrev_b32 v9, 4, v9")
    a("v_lshrrev_b32 v10, 3, v0")
    a("s_lshl_b32 s38, s36, 3")
    a("v_add_u32 v10, s38, v10")
    a("v_mul_u32_u24 v10, 3072, v10")
    a("v_add_u32 v4, v10, v9")
    a("v_lshlrev_b32 v9, 2, v8")
    a("v_and_b32 v10, 15, v0")
    a("v_xor_b32 v9, v9, v10")
    a("v_lshlrev_b32 v9, 4, v9")
    a("v_add_u32 v10, s38, v8")
    a("v_mul_u32_u24 v10, s37, v10")
    a("v_add_u32 v5, v10, v9")
    a("s_lshl_b32 s38, s37, 2")
    a("s_sub_u32 s38, s38, 1024")
    a("v_add_u32 v6, s38, v5")
    a("s_lshl_b32 s40, s36, 11")
    a("s_lshl_b32 s41, s36, 10")
    a("s_add_u32 s41, s41, 8192")
    a("s_add_u32 s42, s40, 12288")
    a("s_add_u32 s43, s40, 20480")
    a("s_mov_b32 s44, 0")
    a("s_mov_b32 s45, 0"); a("s_mov_b32 s46, 0"); a("s_mov_b32 s47, 0")
    a("s_lshl_b32 s48, s37, 5")
    def issue():
        a("s_mov_b32 m0, s40")
        a("s_add_u32 s44, s44, 1")
        a("buffer_load_dwordx4 v2, s[20:23], s45 offen lds")
        a("buffer_load_dwordx4 v3, s[20:23], s45 offen offset:1024 lds")
        a("s_mov_b32 m0, s41")
        a("s_cmp_eq_u32 s44, %d" % NSLOT)
        a("buffer_load_dwordx4 v4, s[24:27], s46 offen lds")
        a("s_mov_b32 m0, s42")
        a("s_cselect_b32 s49, %s, s58" % (hx(-(NSLOT - 1) * SLOT)))
        a("buffer_load_dwordx4 v5, s[28:31], s47 offen lds")
        a("buffer_load_dwordx4 v6, s[28:31], s47 offen offset:1024 lds")
        a("s_mov_b32 m0, s43")
        a("s_cselect_b32 s44, 0, s44")
        a("buffer_load_dwordx4 v5, s[32:35], s47 offen lds")
        a("buffer_load_dwordx4 v6, s[32:35], s47 offen offset:1024 lds")
        for r in (40, 41, 42, 43): a("s_add_u32 s%d, s%d, s49" % (r, r))
        a("s_add_u32 s45, s45, 64")
        a("s_add_u32 s46, s46, %d" % (32 * 3072))
        a("s_add_u32 s47, s47, s48")
    a("s_mov_b32 s50, 5")
    a.label("K1_LPRO")
    issue()
    a("s_sub_u32 s50, s50, 1")
    a("s_cmp_lg_u32 s50, 0")
    a("s_cbranch_scc1 K1_LPRO")
    stamp(a, 1)
    a("s_waitcnt vmcnt(28)")
    stamp(a, 2)
    a("s_barrier")
    a("s_waitcnt vmcnt(21)"); a("s_barrier")
    a("s_mov_b32 s50, 11")
    a.label("K1_LLOOP")
    a("s_waitcnt vmcnt(14)"); a("s_barrier")
    issue()
    a("s_sub_u32 s50, s50, 1")
    a("s_cmp_lg_u32 s50, 0")
    a("s_cbranch_scc1 K1_LLOOP")
    a("s_waitcnt vmcnt(14)"); a("s_barrier")
    a("s_waitcnt vmcnt(7)"); a("s_barrier")
    a("s_waitcnt vmcnt(0)")
    stamp(a, 3)
    a("s_barrier")
    srd(a, 24, 12, 0, 1024)
    srd(a, 28, 14, GG, 16384)
    a("s_lshl_b32 s38, s19, 3")
    a("s_lshl_b32 s39, s36, 1")
    a("s_add_u32 s38, s38, s39")
    a("s_lshl_b32 s39, s38, 10")
    a("v_lshlrev_b32 v2, 4, v0")
    a("buffer_load_dwordx4 v[8:11], v2, s[24:27], 0 offen")
    a("buffer_load_dwordx4 v[12:15], v2, s[20:23], s39 offen")
    a("buffer_load_dwordx4 v[16:19], v2, s[20:23], s39 offen offset:1024")
    a("s_barrier")
    a("s_mov_b32 s40, 0xffff0000")
    a("s_waitcnt vmcnt(0)")
    for i in range(4):
        a("v_lshlrev_b32 v%d, 16, v%d" % (20 + 2 * i, 8 + i))
        a("v_and_b32 v%d, s40, v%d" % (21 + 2 * i, 8 + i))
    for t in range(2):
        x = 12 + 4 * t; acc = 40 + t
        for i in range(4):
            a("v_lshlrev_b32 v28, 16, v%d" % (x + i))
            a("v_and_b32 v29, s40, v%d" % (x + i))
            a("v_mul_f32 v28, v28, v%d" % (20 + 2 * i))
            a("v_mul_f32 v29, v29, v%d" % (21 + 2 * i))
            a("v_cvt_pk_bf16_f32 v28, v28, v29")
            a("v_and_b32 v29, s40, v28")
            a("v_lshlrev_b32 v28, 16, v28")
            if i == 0: a("v_add_f32 v%d, v28, v29" % acc)
            else:
                a("v_add_f32 v28, v28, v29")
                a("v_add_f32 v%d, v%d, v28" % (acc, acc))
    for m in ("row_shr:1", "row_shr:2", "row_shr:4", "row_shr:8"):
        a("s_nop 0")
        for t in range(2): a("v_add_f32_dpp v%d, v%d, v%d %s row_mask:0xf bank_mask:0xf bound_ctrl:0" % (40 + t, 40 + t, 40 + t, m))
    a("s_nop 0")
    for t in range(2): a("v_add_f32_dpp v%d, v%d, v%d row_bcast:15 row_mask:0xa bank_mask:0xf" % (40 + t, 40 + t, 40 + t))
    a("s_nop 0")
    for t in range(2): a("v_add_f32_dpp v%d, v%d, v%d row_bcast:31 row_mask:0xc bank_mask:0xf" % (40 + t, 40 + t, 40 + t))
    a("s_mov_b32 s41, %s" % hx(f2u(-LOG2E)))
    for t in range(2):
        z = 40 + t; o = 44 + 2 * t
        a("v_cvt_pk_bf16_f32 v%d, v%d, v%d" % (z, z, z))
        a("v_and_b32 v%d, s40, v%d" % (z, z))
        a("v_mul_f32 v%d, s41, v%d" % (z, z))
        a("v_exp_f32 v%d, v%d" % (z, z))
        a("s_nop 0")
        a("v_add_f32 v%d, 1.0, v%d" % (z, z))
        a("v_rcp_f32 v%d, v%d" % (z, z))
        a("s_nop 0")
        a("v_cvt_pk_bf16_f32 v%d, v%d, v%d" % (z, z, z))
        a("v_and_b32 v%d, s40, v%d" % (o, z))
        a("v_sub_f32 v%d, 1.0, v%d" % (z, o))
        a("v_cvt_pk_bf16_f32 v%d, v%d, v%d" % (z, z, z))
        a("v_and_b32 v%d, s40, v%d" % (o + 1, z))
    a("s_lshl_b32 s39, s18, 7")
    a("s_add_u32 s38, s38, s39")
    a("s_lshl_b32 s38, s38, 3")
    a("v_mov_b32 v2, 0")
    a("s_mov_b32 exec_lo, 0")
    a("s_mov_b32 exec_hi, 0x80000000")
    a("buffer_store_dwordx4 v[44:47], v2, s[28:31], s38 offen")
    stamp(a, 4)
    stamp_end(a, 0, 14, 5)
    a.label("K1_END")
    a("s_endpgm")
    return name, 256, "grid=(256,1,1) block=(512,1,1) lds=%d" % (NSLOT * SLOT)

def k2(a):
    name = "k2_kernel"
    header(a, name)
    Q = 8; S = [24, 40]; K = [56, 60]; V = [64, 72]; O = 80
    a("s_cmp_ge_u32 s2, 256")
    a("s_cbranch_scc1 K2_END")
    stamp_begin(a)
    a("s_load_dwordx2 s[4:5], s[0:1], 80")
    a("v_lshrrev_b32 v1, 6, v0")
    a("v_and_b32 v0, 63, v0")
    a("s_and_b32 s20, s2, 7")
    a("v_readfirstlane_b32 s3, v1")
    a("s_lshl_b32 s20, s20, 2")
    a("s_bfe_u32 s21, s2, 0x20003")
    a("s_add_u32 s20, s20, s21")
    a("s_lshr_b32 s21, s2, 5")
    a("s_and_b32 s22, s3, 1")
    a("s_lshr_b32 s23, s3, 1")
    a("v_lshlrev_b32 v1, 4, v0")
    a("v_and_b32 v2, 15, v0")
    a("v_lshlrev_b32 v2, 4, v2")
    a("v_lshrrev_b32 v4, 5, v0")
    a("v_lshl_add_u32 v2, v4, 8, v2")
    a("v_mov_b32 v3, 0xdddddddd")
    a("s_lshl_b32 s24, s20, 16")
    a("s_lshl_b32 s25, s21, 3")
    a("s_lshl_b32 s26, s22, 2")
    a("s_add_u32 s25, s25, s26")
    a("s_lshl_b32 s27, s23, 14")
    a("s_add_u32 s27, s27, s24")
    a("s_add_u32 s26, s27, %s" % hx(KF))
    a("s_mov_b32 s30, 0x0000ffff"); a("s_mov_b32 s31, 0x0000ffff")
    for i in range(16): a("v_mov_b32 v%d, 0x3f803f80" % (V[0] + i))
    a("s_waitcnt lgkmcnt(0)")
    srd(a, 8, 4, 0, 4 * MB)
    srd(a, 12, 4, VF, 2 * MB)
    srd(a, 16, 4, OF, 2 * MB)
    for s in range(4):
        a("s_add_u32 s28, s23, %d" % s)
        a("s_and_b32 s28, s28, 3")
        a("s_add_u32 s28, s28, s25")
        if s == 0: a("s_mov_b32 s29, s28")
        a("s_lshl_b32 s28, s28, 10")
        a("s_add_u32 s28, s28, s24")
        a("buffer_load_dwordx4 %s, v1, s[8:11], s28 offen" % vr(Q + 4 * s, 4))
    def ldK(b):
        a("buffer_load_dwordx4 %s, v1, s[8:11], s26 offen" % vr(K[b], 4))
        a("s_add_u32 s26, s26, 1024")
    def ldV(b):
        a("s_mov_b64 exec, s[30:31]")
        a("buffer_load_dwordx4 %s, v2, s[12:15], s27 offen" % vr(V[b], 4))
        a("buffer_load_dwordx4 %s, v2, s[12:15], s27 offen offset:512" % vr(V[b] + 4, 4))
        a("s_mov_b64 exec, -1")
        a("s_add_u32 s27, s27, 1024")
    ldK(0); ldV(0); ldK(1)
    for i in range(64): a("v_mov_b32 v%d, 0" % (O + i))
    for i in range(8): a("v_mov_b32 v%d, 0" % (S[1] + 8 + i))
    def QK(sl, kb, sb): a("v_mfma_f32_32x32x16_bf16 %s, %s, %s, 0" % (vr(S[sb], 16), vr(K[kb], 4), vr(Q + 4 * sl, 4)))
    def PV(sl, vb, sb, j): a("v_smfmac_f32_32x32x32_bf16 %s, %s, %s, v3" % (vr(O + 16 * sl, 16), vr(V[vb] + 4 * j, 4), vr(S[sb] + 8 * j, 8)))
    a("s_mov_b32 s32, 8")
    stamp(a, 1)
    a("s_waitcnt vmcnt(3)")
    stamp(a, 2)
    QK(0, 0, 0)
    a("s_nop 15")
    a(".p2align 6")
    a.label("K2_LOOP")
    for b in range(2):
        for sl in range(4):
            sb = sl % 2
            def E(i): a("v_exp_f32 v%d, v%d" % (S[sb] + i, S[sb] + i))
            E(0); E(1)
            if sl == 0: PV(3, 1 - b, 1, 1); ldV(1 - b)
            else: PV(sl - 1, b, 1 - sb, 1)
            E(2); E(3); E(4)
            if sl == 3:
                a("s_waitcnt vmcnt(3)")
                QK(0, 1 - b, 0)
            else:
                QK(sl + 1, b, 1 - sb)
                if sl == 2: ldK(b)
            for i in range(5, 10): E(i)
            if sl == 0: a("s_waitcnt vmcnt(3)")
            PV(sl, b, sb, 0)
            if b == 1 and sl == 3:
                a("s_sub_u32 s32, s32, 1"); a("s_cmp_lg_u32 s32, 0")
            for i in range(10, 16): E(i)
    a("s_cbranch_scc1 K2_LOOP")
    a("s_nop 1")
    PV(3, 1, 1, 1)
    stamp(a, 3)
    for s in range(1, 4):
        a("s_add_u32 s28, s23, %d" % s)
        a("s_and_b32 s28, s28, 3")
        a("s_lshl_b32 s28, s28, 1")
        a("s_add_u32 s28, s28, s22")
        a("s_mul_i32 s28, s28, 3")
        a("s_add_u32 s28, s28, %d" % (s - 1))
        a("s_mul_i32 s28, s28, 2304")
        a("v_add_u32 v%d, s28, v1" % (S[0] + 2 * s))
        a("v_lshl_add_u32 v%d, v0, 2, s28" % (S[0] + 2 * s + 1))
    for s in range(1, 4):
        if s == 3: a("s_nop 7")
        a("ds_write_b128 v%d, %s" % (S[0] + 2 * s, vr(O + 16 * s, 4)))
        a("ds_write_b128 v%d, %s offset:1024" % (S[0] + 2 * s, vr(O + 16 * s + 4, 4)))
        a("ds_write_b32 v%d, v%d offset:2048" % (S[0] + 2 * s + 1, O + 16 * s + 8))
    a("s_mul_i32 s28, s3, %d" % (3 * 2304))
    a("v_add_u32 v4, s28, v1")
    a("v_lshl_add_u32 v5, v0, 2, s28")
    a("s_waitcnt lgkmcnt(0)")
    a("s_barrier")
    stamp(a, 4)
    for s in range(3):
        a("ds_read_b128 %s, v4 offset:%d" % (vr(O + 16 * (s + 1), 4), s * 2304))
        a("ds_read_b128 %s, v4 offset:%d" % (vr(O + 16 * (s + 1) + 4, 4), s * 2304 + 1024))
        a("ds_read_b32 v%d, v5 offset:%d" % (O + 16 * (s + 1) + 8, s * 2304 + 2048))
    for s in range(3):
        a("s_waitcnt lgkmcnt(%d)" % (6 - 3 * s))
        for i in range(9): a("v_add_f32 v%d, v%d, v%d" % (O + i, O + i, O + 16 * (s + 1) + i))
    a("s_mov_b32 s34, %s" % hx(f2u(2.0 ** -60)))
    a("v_mov_b32 v5, %s" % hx(f2u(2.0 ** 40)))
    a("v_mul_f32 v4, 0, v%d" % O)
    for i in range(1, 8): a("v_fmac_f32 v4, 0, v%d" % (O + i))
    a("v_med3_f32 v5, v%d, s34, v5" % (O + 8))
    a("v_add_f32 v5, v5, v4")
    a("v_cmp_eq_f32 vcc, v5, v%d" % (O + 8))
    a("s_nop 1")
    a("s_cmp_eq_u64 vcc, -1")
    a("s_cbranch_scc0 K2_SLOW")
    a.label("K2_NORM")
    a("v_rcp_f32 v4, v%d" % (O + 8))
    a("s_lshl_b32 s28, s29, 5")
    a("s_add_u32 s28, s28, s20")
    a("s_lshl_b32 s28, s28, 10")
    for i in range(8): a("v_mul_f32 v%d, v%d, v4" % (O + i, O + i))
    for i in range(4): a("v_cvt_pk_bf16_f32 v%d, v%d, v%d" % (S[0] + i, O + 2 * i, O + 2 * i + 1))
    a("buffer_store_dwordx4 %s, v1, s[16:19], s28 offen" % vr(S[0], 4))
    stamp_end(a, 1, 4, 5)
    a.label("K2_END")
    a("s_endpgm")
    a.label("K2_SLOW")
    CB = O + 16
    a("s_waitcnt vmcnt(0)")
    a("s_add_u32 s26, s24, %s" % hx(KF))
    a("v_mov_b32 v4, 0xff800000")
    a("s_mov_b32 s32, 64")
    a.label("K2_SL1")
    ldK(0)
    a("s_waitcnt vmcnt(0)")
    QK(0, 0, 0)
    a("s_nop 15")
    for i in range(8): a("v_max3_f32 v4, v4, v%d, v%d" % (S[0] + 2 * i, S[0] + 2 * i + 1))
    a("s_sub_u32 s32, s32, 1"); a("s_cmp_lg_u32 s32, 0")
    a("s_cbranch_scc1 K2_SL1")
    a("v_mov_b32 v5, v4")
    a("s_nop 1")
    a("v_permlane32_swap_b32 v4, v5")
    a("s_nop 1")
    a("v_max_f32 v4, v4, v5")
    for i in range(16): a("v_sub_f32 v%d, 0, v4" % (CB + i))
    for i in range(16): a("v_mov_b32 v%d, 0" % (O + i))
    a("s_add_u32 s26, s24, %s" % hx(KF))
    a("s_mov_b32 s27, s24")
    a("s_mov_b32 s32, 64")
    a.label("K2_SL2")
    ldK(0); ldV(0)
    a("s_waitcnt vmcnt(0)")
    a("v_mfma_f32_32x32x16_bf16 %s, %s, %s, %s" % (vr(S[0], 16), vr(K[0], 4), vr(Q, 4), vr(CB, 16)))
    a("s_nop 15")
    for i in range(16): a("v_exp_f32 v%d, v%d" % (S[0] + i, S[0] + i))
    a("s_nop 1")
    PV(0, 0, 0, 0); PV(0, 0, 0, 1)
    a("s_sub_u32 s32, s32, 1"); a("s_cmp_lg_u32 s32, 0")
    a("s_cbranch_scc1 K2_SL2")
    a("s_nop 15")
    a("s_branch K2_NORM")
    a("s_endpgm")
    return name, 144, "grid=(256,1,1) block=(512,1,1) lds=%d" % (8 * 3 * 2304)

RED = 16896
def kgemm(a, name, P, wptr_off, actoff, NK, D, final):
    header(a, name)
    nk = NK // 4
    ACC = 16; ACT = 80; WF = 8
    RING = 4 * RED
    a("s_cmp_ge_u32 s2, 256")
    a("s_cbranch_scc1 %s_END" % P)
    stamp_begin(a)
    a("s_load_dwordx2 s[4:5], s[0:1], 80")
    a("s_load_dwordx2 s[6:7], s[0:1], %d" % wptr_off)
    a("s_load_dwordx2 s[36:37], s[0:1], 64")
    a("v_lshrrev_b32 v1, 6, v0")
    a("v_and_b32 v0, 63, v0")
    a("s_and_b32 s20, s2, 7")
    a("v_readfirstlane_b32 s3, v1")
    a("s_lshl_b32 s20, s20, 2")
    a("s_bfe_u32 s21, s2, 0x20003")
    a("s_add_u32 s20, s20, s21")
    a("s_lshr_b32 s21, s2, 5")
    a("v_lshlrev_b32 v1, 4, v0")
    a("v_add_u32 v2, %d, v1" % (NK * 1024))
    a("v_bfe_u32 v7, v0, 4, 1")
    a("v_lshlrev_b32 v8, 2, v7")
    a("v_and_b32 v9, 7, v0")
    a("v_xor_b32 v8, v8, v9")
    a("v_lshlrev_b32 v8, 4, v8")
    a("v_lshrrev_b32 v9, 3, v0")
    a("v_lshl_add_u32 v3, v9, 10, v8")
    a("v_add_u32 v4, %d, v3" % (8192 - 1024))
    a("v_lshrrev_b32 v8, 5, v0")
    a("v_bfe_u32 v9, v0, 2, 2")
    a("v_lshl_add_u32 v8, v8, 2, v9")
    a("v_bfe_u32 v9, v0, 1, 1")
    a("v_lshl_add_u32 v9, v7, 1, v9")
    a("v_bfe_u32 v10, v0, 3, 1")
    a("v_lshl_add_u32 v9, v10, 2, v9")
    a("v_lshlrev_b32 v9, 4, v9")
    a("v_and_b32 v10, 1, v0")
    a("v_lshl_add_u32 v9, v10, 3, v9")
    a("v_lshl_add_u32 v9, v8, 7, v9")
    a("s_mul_i32 s22, s3, %d" % (D * 2048))
    a("s_add_u32 s22, s22, %d" % RING)
    a("v_add_u32 v5, s22, v9")
    a("v_xor_b32 v6, 64, v5")
    a("s_mul_i32 s24, s20, %d" % (2 * NK))
    a("s_mul_i32 s25, s3, %d" % nk)
    a("s_add_u32 s24, s24, s25")
    a("s_lshl_b32 s24, s24, 10")
    a("s_lshl_b32 s25, s25, 14")
    a("s_lshl_b32 s26, s21, 7")
    a("s_add_u32 s25, s25, s26")
    a("s_waitcnt lgkmcnt(0)")
    srd(a, 8, 4, actoff, 64 * NK * 1024)
    srd(a, 12, 6, 0, NK * 16 * 1024)
    def issue(sl):
        a("s_add_u32 m0, s22, %d" % (sl * 2048))
        a("buffer_load_dwordx4 %s, v1, s[8:11], s24 offen" % vr(ACT + 8 * sl, 4))
        a("buffer_load_dwordx4 %s, v2, s[8:11], s24 offen" % vr(ACT + 8 * sl + 4, 4))
        a("buffer_load_dwordx4 v3, s[12:15], s25 offen lds")
        a("buffer_load_dwordx4 v4, s[12:15], s25 offen offset:1024 lds")
        a("s_add_u32 s24, s24, 1024")
        a("s_add_u32 s25, s25, 16384")
    def step(sl, vm):
        a("s_waitcnt vmcnt(%d)" % vm)
        for ft in range(2):
            for q in range(2):
                a("ds_read_b64_tr_b16 %s, v%d offset:%d" % (vr(WF + 4 * ft + 2 * q, 2), 5 + ft, sl * 2048 + q * 1024))
        for ft in range(2):
            a("s_waitcnt lgkmcnt(%d)" % (2 - 2 * ft))
            for tt in range(2):
                d = vr(ACC + 16 * (2 * tt + ft), 16)
                a("v_mfma_f32_32x32x16_bf16 %s, %s, %s, %s" % (d, vr(WF + 4 * ft, 4), vr(ACT + 8 * sl + 4 * tt, 4), d))
    for sl in range(D): issue(sl)
    for r in range(ACC, ACC + 64): a("v_mov_b32 v%d, 0" % r)
    rounds = nk // D
    stamp(a, 1)
    if STAMP: a("s_waitcnt vmcnt(%d)" % (4 * (D - 1)))
    stamp(a, 2)
    if rounds > 1:
        a("s_mov_b32 s32, %d" % (rounds - 1))
        a.label("%s_LOOP" % P)
        for sl in range(D):
            step(sl, 4 * (D - 1)); issue(sl)
        a("s_sub_u32 s32, s32, 1"); a("s_cmp_lg_u32 s32, 0")
        a("s_cbranch_scc1 %s_LOOP" % P)
    for sl in range(D): step(sl, 4 * (D - 1 - sl))
    stamp(a, 3)
    a("v_lshrrev_b32 v8, 3, v0")
    a("v_and_b32 v9, 7, v0")
    a("s_lshl_b32 s26, s20, 6")
    a("s_lshl_b32 s27, s3, 4")
    a("s_add_u32 s26, s26, s27")
    a("v_lshlrev_b32 v10, 10, v8")
    a("v_lshl_add_u32 v10, v9, 4, v10")
    a("s_lshl_b32 s27, s26, 10")
    a("s_lshl_b32 s28, s21, 7")
    a("s_add_u32 s27, s27, s28")
    a("s_add_u32 s28, s27, 8192")
    if final:
        srd(a, 8, 4, BB, 2 * MB)
        srd(a, 12, 4, GG, 16384)
        srd(a, 16, 36, 0, 2 * MB)
        a("v_lshlrev_b32 v11, 3, v8")
        a("s_lshl_b32 s29, s26, 3")
        a("buffer_load_dwordx4 v[80:83], v10, s[8:11], s27 offen")
        a("buffer_load_dwordx4 v[84:87], v10, s[8:11], s28 offen")
        a("buffer_load_dwordx2 v[88:89], v11, s[12:15], s29 offen")
        a("buffer_load_dwordx2 v[90:91], v11, s[12:15], s29 offen offset:64")
    else:
        srd(a, 16, 4, BB, 2 * MB)
    a("s_mul_i32 s29, s3, %d" % RED)
    a("v_add_u32 v2, s29, v1")
    a("s_nop 7")
    for t in range(4):
        for g in range(4):
            a("ds_write_b128 v2, %s offset:%d" % (vr(ACC + 16 * t + 4 * g, 4), (t * 4 + g) * 1056))
    a("s_lshr_b32 s29, s3, 1")
    a("s_mul_i32 s29, s29, %d" % (8 * 1056))
    a("s_and_b32 s30, s3, 1")
    a("s_lshl_b32 s30, s30, 8")
    a("s_add_u32 s29, s29, s30")
    a("v_mul_u32_u24 v3, 1056, v9")
    a("v_lshl_add_u32 v3, v8, 4, v3")
    a("v_add_u32 v3, s29, v3")
    a("s_waitcnt lgkmcnt(0)")
    a("s_barrier")
    stamp(a, 4)
    for p in range(2):
        for sw in range(4):
            for h in range(2):
                a("ds_read_b128 %s, v3 offset:%d" % (vr(ACC + 32 * p + 8 * sw + 4 * h, 4), sw * RED + h * 512 + p * 128))
    a("s_mov_b32 s30, 0xffff0000")
    for p in range(2):
        b = ACC + 32 * p
        a("s_waitcnt lgkmcnt(%d)" % (8 - 8 * p))
        for i in range(8): a("v_add_f32 v%d, v%d, v%d" % (b + i, b + i, b + 8 + i))
        for i in range(8): a("v_add_f32 v%d, v%d, v%d" % (b + 16 + i, b + 16 + i, b + 24 + i))
        for i in range(8): a("v_add_f32 v%d, v%d, v%d" % (b + i, b + i, b + 16 + i))
        if final:
            if p == 0: a("s_waitcnt vmcnt(0)")
            for i in range(4):
                a("v_lshlrev_b32 v%d, 16, v%d" % (b + 8 + 2 * i, 80 + 4 * p + i))
                a("v_and_b32 v%d, s30, v%d" % (b + 9 + 2 * i, 80 + 4 * p + i))
            for i in range(8): a("v_mul_f32 v%d, v%d, v%d" % (b + i, b + i, 88 + 2 * p))
            for i in range(8): a("v_fmac_f32 v%d, v%d, v%d" % (b + i, b + 8 + i, 89 + 2 * p))
        for i in range(4): a("v_cvt_pk_bf16_f32 v%d, v%d, v%d" % (b + 16 + i, b + 2 * i, b + 2 * i + 1))
        a("buffer_store_dwordx4 %s, v10, s[16:19], s%d offen" % (vr(b + 16, 4), 27 + p))
    stamp_end(a, 3 if final else 2, 4, 5)
    a.label("%s_END" % P)
    a("s_endpgm")
    return name, ACT + 8 * D, "grid=(256,1,1) block=(256,1,1) lds=%d" % (RING + 4 * D * 2048)

def build(out):
    a = Asm()
    ks = []
    a('.amdgcn_target "amdgcn-amd-amdhsa--gfx950"')
    a(".text")
    ks.append(k1(a))
    ks.append(k2(a))
    ks.append(kgemm(a, "kd_kernel", "KD", 48, HF, 112, 4, False))
    ks.append(kgemm(a, "k3_kernel", "K3", 16, OF, 32, 8, True))
    body = a.text()
    errs = check_text(body)
    for e in errs: print("CHECK:", e)
    hdr = "; gated mix of softmax attention and SwiGLU FFN; generated by gen/gen1.py\n"
    for (n, nv, l) in ks: hdr += "; @launch kernel=%s %s\n" % (n, l)
    txt = hdr + body + '.section .rodata,"a"\n' + "".join(descriptor(n, nv) for (n, nv, l) in ks)
    open(out, "w").write(txt)
    print("wrote", out, len(txt), "bytes;", len(errs), "check errors")

if __name__ == "__main__":
    if "stamp" in sys.argv: STAMP = True
    build(sys.argv[1] if len(sys.argv) > 1 else "gated_mix__softmax_full_mha__swiglu_ffn__prompt.s")
```

```python
import sys
sys.path.insert(0, "gen")
import gen1, gen3
from gen1 import *
from asmlib import *
import ab5 as ab3
from gen3 import ab_prologue, SC
from ab5 import phase_ab
from gen5 import build1

FL = 17 * MB
RING = 65536; SCR = 98304
KVROT = True
LATE = True
WARM = True
NOWAIT = False
SPLIT = 1
DMP = 12
ORDERED = True
EARLYO = False
NOB3 = False
SHT = 1
SETR = True
HID = 0
PREO = False
OSL = 1
ORL = 8
SLP = 12
SETG = 10
OWNQ = True
SETN = 0
OSC = ""
LADDER = True
XP = []
HPUB = 1
NAME = "gated_mix__softmax_full_mha__swiglu_ffn__prompt_kernel"

def kf(a):
    header(a, NAME)
    Q = 128; K = [144, 148]; V = [152, 160]; S = [32, 48]; O = 64
    WF = 168; DA = 184; HB_ = 216
    vV, vIX, vP, vPO, vLD = 18, 19, 20, 21, 22
    vWA, vWB, vT0, vT1, vZ = 24, 25, 26, 27, 28
    vW0 = 23
    ab_prologue(a, "KF_END")
    def spin(lab, expect, vm, leader_only=False, sr_="s[84:87]", so="0", note=""):
        if vm: vm.wait("poll")
        a("v_cmp_le_u32 vcc, %d, v%d%s" % (expect, vP, note))
        a("s_mov_b32 s38, 0x8000")
        if leader_only:
            a("s_cmp_lg_u32 s3, 0")
            a("s_cbranch_scc1 %s_OK" % lab)
        a("s_cmp_eq_u64 vcc, -1")
        a("s_cbranch_scc1 %s_OK" % lab)
        a.label(lab)
        a("s_sleep %d" % (SLP if sr_ == "s[84:87]" else 4))
        a("buffer_load_dword v%d, v%d, %s, %s offen sc1%s" % (vP, vPO, sr_, so, note))
        a("s_sub_u32 s38, s38, 1")
        a("s_waitcnt vmcnt(0)")
        a("v_cmp_le_u32 vcc, %d, v%d" % (expect, vP))
        a("s_cselect_b32 s39, 1, 0")
        a("s_cmp_eq_u64 vcc, -1")
        a("s_cselect_b32 s39, 1, s39")
        a("s_cmp_eq_u32 s39, 0")
        a("s_cbranch_scc1 %s" % lab)
        a.label(lab + "_OK")
    def poll(vm, sr_="s[84:87]"): vm.issue("buffer_load_dword v%d, v%d, %s, 0 offen sc1" % (vP, vPO, sr_), "poll")
    def publish(vm, soff):
        a("v_mov_b32 v%d, 1" % vP)
        a("s_mov_b64 exec, 1")
        vm.issue("buffer_atomic_add v%d, v%d, s[84:87], %s offen sc1" % (vP, vLD, soff), "atom")
        a("s_mov_b64 exec, -1")
    def ldK(vm, b):
        vm.issue("buffer_load_dwordx4 %s, v1, s[8:11], s72 offen%s" % (vr(K[b], 4), SC), ("K", b))
    def ldV(vm, b, wrap=True):
        a("s_mov_b64 exec, s[74:75]")
        vm.issue("buffer_load_dwordx4 %s, v%d, s[64:67], s72 offen%s" % (vr(V[b], 4), vV, SC), ("V", b))
        vm.issue("buffer_load_dwordx4 %s, v%d, s[64:67], s72 offen offset:512%s" % (vr(V[b] + 4, 4), vV, SC), ("V", b))
        a("s_mov_b64 exec, -1")
        a("s_add_u32 s72, s72, 1024")
        if wrap: a("s_and_b32 s72, s72, 0x3fff")
    def cap(fn):
        save = a.lines; a.lines = []
        fn(); L = a.lines; a.lines = save
        return [("s", l.strip(), None) for l in L]
    def early(vm, kind="P"):
        R0 = 96 if kind == "P" or ab3.EARLY[kind] <= 30 else 112
        assert ab3.HP == 1 or R0 == 96
        for i in range(4): a("v_mov_b32 v%d, -1" % (R0 + i))
        vm.issue("buffer_store_dwordx4 %s, v1, s[28:31], s53 offen%s" % (vr(R0, 4), SC), "sent")
        a("s_add_u32 s53, s59, 32768")
        a("s_mov_b64 exec, 1")
        vm.issue("buffer_store_dword v29, v%d, s[80:83], s59 offen%s" % (vLD, SC), "sent")
        vm.issue("buffer_store_dword v29, v%d, s[80:83], s53 offen%s" % (vLD, SC), "sent")
        if OWNQ: vm.issue("buffer_store_dword v29, v%d, s[80:83], s90 offen%s" % (vLD, SC), "sent")
        a("s_mov_b64 exec, -1")
    def setup():
        a("s_and_b32 s89, s2, 7")
        a("s_lshl_b32 s89, s89, 2")
        a("s_bfe_u32 s38, s2, 0x20003")
        a("s_add_u32 s89, s89, s38")
        a("s_lshr_b32 s88, s2, 5")
        a("s_lshr_b32 s62, s3, 2")
        a("s_and_b32 s63, s3, 3")
        a("s_cmp_eq_u32 s3, 0")
        a("s_cselect_b32 s38, 0, 0x20000")
        a("v_mov_b32 v%d, s38" % vLD)
        a("v_and_b32 v%d, 15, v0" % vV)
        a("v_lshlrev_b32 v%d, 4, v%d" % (vV, vV))
        a("v_mov_b32 v%d, v%d" % (vPO, vV))
        a("v_lshrrev_b32 v104, 5, v0")
        a("v_lshl_add_u32 v%d, v104, 8, v%d" % (vV, vV))
        a("v_mov_b32 v%d, 0xdddddddd" % vIX)
        a("s_mov_b32 s74, 0x0000ffff"); a("s_mov_b32 s75, 0x0000ffff")
        srd(a, 80, 14, FL, 98304)
        srd(a, 84, 100, 0, 256)
        a("s_lshl_b32 s73, s89, 16")
        srd(a, 68, 14, "s73", 65536)
        a("s_lshl_b32 s38, s63, 14")
        a("s_add_u32 s38, s38, s73")
        a("s_add_u32 s39, s38, %s" % hx(KF))
        srd(a, 8, 14, "s39", 16384)
        a("s_add_u32 s39, s38, %s" % hx(VF))
        srd(a, 64, 14, "s39", 16384)
        a("s_lshl_b32 s72, s88, 11")
        a("s_lshl_b32 s39, s88, 3")
        a("s_add_u32 s38, s3, s39")
        a("s_lshl_b32 s38, s38, 5")
        a("s_add_u32 s38, s38, s89")
        a("s_lshl_b32 s61, s38, 10")
        a("s_lshl_b32 s38, s62, 2")
        a("s_add_u32 s39, s39, s38")
        for i, r in enumerate(QS):
            a("s_add_u32 s38, s63, %d" % (i + 1))
            a("s_and_b32 s38, s38, 3")
            a("s_add_u32 s38, s38, s39")
            a("s_lshl_b32 %s, s38, 10" % r)
        a("v_bfe_u32 v105, v0, 4, 1")
        a("v_lshlrev_b32 v106, 2, v105")
        a("v_and_b32 v107, 7, v0")
        a("v_xor_b32 v106, v106, v107")
        a("v_lshlrev_b32 v106, 4, v106")
        a("v_lshrrev_b32 v107, 3, v0")
        a("v_lshl_add_u32 v%d, v107, 10, v106" % vW0)
        a("s_lshl_b32 s38, s62, 13")
        a("v_add_u32 v%d, s38, v%d" % (vWA, vW0))
        a("v_add_u32 v%d, %d, v%d" % (vWB, 16384 - 2048, vWA))
        a("v_bfe_u32 v107, v0, 2, 2")
        a("v_lshl_add_u32 v106, v104, 3, v107")
        a("v_bfe_u32 v107, v0, 1, 1")
        a("v_lshl_add_u32 v107, v105, 1, v107")
        a("v_bfe_u32 v108, v0, 3, 1")
        a("v_lshl_add_u32 v107, v108, 2, v107")
        a("v_lshlrev_b32 v107, 4, v107")
        a("v_and_b32 v108, 1, v0")
        a("v_lshl_add_u32 v107, v108, 3, v107")
        a("v_lshl_add_u32 v107, v106, 7, v107")
        a("s_lshl_b32 s16, s63, 12")
        a("s_add_u32 s16, s16, %d" % RING)
        a("v_add_u32 v%d, s16, v107" % vT0)
        a("v_xor_b32 v%d, 64, v%d" % (vT1, vT0))
        a("s_lshl_b32 s38, s62, 10")
        a("s_add_u32 s17, s16, s38")
        a("s_and_b32 s53, s89, 3")
        a("s_add_u32 s59, s53, s88")
        a("s_cmp_ge_u32 s59, 6")
        a("s_cselect_b32 s38, 6, 0")
        a("s_sub_u32 s59, s59, s38")
        a("s_lshl_b32 s59, s59, 2")
        a("s_mov_b32 s38, %s" % ("0x32dc7632" if ab3.HP == 2 else "0x10ba7610") + "")
        a("s_mov_b32 s39, %s" % ("0xdc76" if ab3.HP == 2 else "0xba76") + "")
        a("s_lshr_b64 s[38:39], s[38:39], s59")
        a("s_and_b32 s99, s38, 0xffffff")
        a("s_lshl_b32 s53, s53, 1")
        a("s_add_u32 s59, s53, s88")
        a("s_and_b32 s59, s59, 7")
        a("s_lshl_b32 s59, s59, 2")
        a("s_mov_b32 s38, %s" % ("0xba985410" if ab3.HP == 2 else "0xdc985432") + "")
        a("s_mov_b32 s39, s38")
        a("s_lshr_b64 s[38:39], s[38:39], s59")
        if ab3.HP == 2: a("s_mov_b32 s98, s38")
        else:
            a("s_lshl_b32 s98, s38, 24")
            a("s_or_b32 s98, s98, s99")
            a("s_lshr_b32 s99, s38, 8")
        a("s_add_u32 s53, s61, %s" % hx(OF))
        a("s_lshl_b32 s59, s18, 4")
        a("s_add_u32 s59, s59, s19")
        a("s_lshl_b32 s59, s59, 7")
        if OWNQ:
            a("s_lshl_b32 s90, s19, 4")
            a("s_add_u32 s90, s90, s18")
            a("s_lshl_b32 s90, s90, 7")
            a("s_add_u32 s90, s90, 65536")
            a("s_lshr_b32 s38, s89, 2")
            a("v_lshlrev_b32 v106, 3, v105")
            a("v_add_u32 v106, s38, v106")
            a("s_lshr_b32 s39, s38, 1")
            a("s_lshl_b32 s39, s39, 2")
            a("s_and_b32 s38, s38, 1")
            a("s_add_u32 s39, s39, s38")
            a("s_add_u32 s39, s39, 1")
            a("v_sub_u32 v107, s39, v106")
            a("v_mad_u32_u24 v106, v107, v104, v106") if False else None
            a("v_mul_i32_i24 v107, v107, v104")
            a("v_add_u32 v106, v106, v107")
            a("v_and_b32 v107, 15, v0")
            a("v_lshl_add_u32 v106, v106, 4, v107")
            a("v_lshlrev_b32 v106, 7, v106")
            a("v_add_u32 v28, 65536, v106")
    QS = ["s36", "s37", "s54", "s55"]
    def setup2b():
        a("v_and_b32 v3, 31, v0")
        a("v_cmp_eq_u32 s[20:21], 16, v3")
        a("v_mov_b32 v3, 0x3f803f80")
        a("s_nop 0")
        a("v_cndmask_b32 v%d, 0, v3, s[20:21]" % V[0])
        for i in range(1, 16): a("v_mov_b32 v%d, v%d" % (V[0] + i, V[0]))
    chunks = {}
    def ldq(vm, s):
        vm.issue("buffer_load_dwordx4 %s, v1, s[68:71], %s offen%s" % (vr(Q + 4 * s, 4), QS[s], SC), "Q")
    def hook(kind, vm, where):
        if where == "init": chunks.clear()
        elif where == "early": early(vm, kind)
        elif where == "setup":
            if SETG < 0 or (SETR and kind == "R"): setup(); chunks["S"] = []
            else: chunks["S"] = cap(setup)
        elif where == "base" and OWNQ or where == "pub" and not OWNQ:
            a("s_lshl_b32 s38, s19, 4")
            publish(vm, "s38")
        elif where == "pub":
            a("v_mov_b32 v%d, 1" % vP)
            a("s_mov_b64 exec, 1")
            vm.issue("buffer_store_dword v%d, v%d, s[80:83], s90 offen sc1" % (vP, vLD), "flag")
            a("s_mov_b64 exec, -1")
        elif where == "bpoll":
            if OWNQ: poll(vm)
        elif where == "poll":
            if OWNQ:
                spin("KF_SB_" + kind, 16, vm)
                a("v_mov_b32 v%d, v28" % vPO)
                poll(vm, "s[80:83]")
            elif "noq" not in XP: poll(vm)
        elif where == "ld":
            if OWNQ: spin("KF_SQ_" + kind, 1, vm, False, "s[80:83]")
            elif "noq" not in XP: spin("KF_SQ_" + kind, 16, vm)
            assert not chunks["V"]
            gen1.stamp(a, "sq1")
            ldq(vm, 0); ldK(vm, 0); ldq(vm, 1)
            if SPLIT == 0: ldq(vm, 2); ldq(vm, 3); ldV(vm, 0); ldK(vm, 1); ldV(vm, 1)
        elif where == "mid_h":
            if SPLIT: ldK(vm, 1); ldV(vm, 1)
        elif where == "warm":
            if not WARM: return
            srd(a, 28, 76, 0, 1792 * 1024)
            a("s_lshl_b32 s94, s2, 3")
            a("s_add_u32 s94, s94, s3")
            a("s_mul_i32 s96, s94, 896")
            a("v_lshlrev_b32 v29, 7, v0")
            a("s_mov_b64 exec, 0x7f")
            vm.issue("buffer_load_dword v30, v29, s[28:31], s96 offen ; dummy", "pf")
            srd(a, 28, 78, 0, 512 * 1024)
            a("s_lshl_b32 s96, s94, 8")
            a("s_mov_b64 exec, 3")
            vm.issue("buffer_load_dword v30, v29, s[28:31], s96 offen ; dummy", "pf")
            a("s_mov_b64 exec, -1")
        elif isinstance(where, tuple):
            g, n = where
            if g < 30:
                E_ = min(30, min(ab3.EARLY.values()))
                if SETG < 0 or g < SETG or g >= E_: return []
                n = -(-len(chunks["S"]) // (E_ - g))
                while n < len(chunks["S"]) and chunks["S"][n][1].startswith(("s_cselect", "s_addc")): n += 1
                L = chunks["S"][:n]; chunks["S"] = chunks["S"][n:]
                if g == E_ - 1: assert not chunks["S"]
                return L
            if g < 44: return []
            if "L" not in chunks: chunks["L"] = []; chunks["V"] = cap(setup2b)
            key = "V"
            if key == "V" and g < 74: return []
            while n < len(chunks[key]) and chunks[key][n][1].startswith(("s_cselect", "s_addc")): n += 1
            L = chunks[key][:n]; chunks[key] = chunks[key][n:]
            return L
        elif where == "pre_h":
            a("s_setprio 3")
            if SPLIT: ldq(vm, 2); ldq(vm, 3); ldV(vm, 0)
    ENTRY = ["Q", ("K", 0), "Q", "Q", "Q", ("V", 0), ("V", 0), ("K", 1), ("V", 1), ("V", 1), "h", "h"]
    def tail(kind, vm):
        assert vm.ops[-12:] == ENTRY, vm.ops
        if kind != "P": a("s_branch KF_C")
    if "late" in XP:
        a("s_and_b32 s38, s2, 0x18")
        a("s_cbranch_scc1 KF_NOTLATE")
        a("s_sleep 50")
        a.label("KF_NOTLATE")
    a("s_load_dwordx2 s[100:101], s[0:1], 72")
    a("s_load_dwordx2 s[76:77], s[0:1], 48")
    a("s_load_dwordx2 s[78:79], s[0:1], 16")
    if ab3.TWARM: a("s_load_dwordx2 s[96:97], s[0:1], 64")
    phase_ab(a, tail, hook)
    a.label("KF_C")
    gen1.stamp(a, 5)
    vm = VM(a); vm.ops = list(ENTRY)
    lg = VM(a, "lgkmcnt", 15)
    a("s_load_dwordx2 s[12:13], s[0:1], 64")
    def QK(sl, kb, sb): a("v_mfma_f32_32x32x16_bf16 %s, %s, %s, 0" % (vr(S[sb], 16), vr(K[kb], 4), vr(Q + 4 * sl, 4)))
    def PV(sl, vb, sb, j): a("v_smfmac_f32_32x32x32_bf16 %s, %s, %s, v%d" % (vr(O + 16 * sl, 16), vr(V[vb] + 4 * j, 4), vr(S[sb] + 8 * j, 8), vIX))
    def ZERO(r): a("v_mfma_f32_32x32x16_bf16 %s, %s, %s, 0" % (vr(r, 16), vr(vZ, 4), vr(vZ, 4)))
    for i in range(4): a("v_mov_b32 v%d, 0" % (vZ + i))
    vm.wait(("K", 0))
    QK(0, 0, 0)
    for i in range(4): ZERO(O + 16 * i)
    a("s_lshr_b32 s38, s89, 1")
    a("s_lshl_b32 s38, s38, 11")
    a("v_and_b32 v%d, 15, v0" % vPO)
    a("v_lshl_add_u32 v%d, v%d, 7, s38" % (vPO, vPO))
    a("s_mov_b32 s96, 32768")
    a("s_lshl_b32 s44, s89, 1")
    a("s_add_u32 s44, s44, s62")
    a("s_mul_i32 s38, s44, 112")
    a("s_mul_i32 s39, s63, 28")
    a("s_add_u32 s38, s38, s39")
    a("s_lshl_b32 s38, s38, 10")
    a("s_add_u32 s38, s38, %s" % hx(HF))
    srd(a, 32, 14, "s38", 28 * 1024)
    a("s_lshl_b32 s38, s39, 14")
    a("s_lshl_b32 s45, s88, 7")
    a("s_add_u32 s38, s38, s45")
    a("s_sub_u32 s39, %d, s38" % (1792 * 1024))
    a("s_waitcnt lgkmcnt(0)")
    srd(a, 48, 76, "s38", "s39")
    srd(a, 40, 78, 0, 512 * 1024)
    FLG = 161792
    vF, vFA, vFB, vFR = 232, 233, 234, 235
    vRW = 236
    def ldH(b, k, so="s20"):
        vm.issue("buffer_load_dwordx4 %s, v1, s[32:35], %s offen offset:%d%s" % (vr(HB_ + 8 * b + 4 * k, 4), so, 1024 * k, SC), ("H", b, k))
    def ldW(b, k):
        if k == 0:
            a("s_and_b32 s20, s98, 15")
            a("s_lshr_b64 s[98:99], s[98:99], 4")
            a("s_add_u32 m0, s17, %d" % (b * 16384))
            a("s_lshl_b32 s21, s20, 15")
            a("s_lshl_b32 s20, s20, 11")
        vm.issue("buffer_load_dwordx4 v%d, s[48:51], s21 offen offset:%d lds" % (vWA + k, 2048 * k), ("W", b))
    def rdW(b, k):
        for ft in range(2):
            for q in range(2):
                lg.issue("ds_read_b64_tr_b16 %s, v%d offset:%d" % (vr(WF + 8 * k + 4 * ft + 2 * q, 2), vT0 + ft, b * 16384 + k * 2048 + q * 512), ("w", k, ft))
    def DM(b, n):
        k, ft = n // 2, n % 2
        lg.wait(("w", k, ft))
        vm.wait(("H", b, k))
        d = vr(DA + 16 * ft, 16)
        a("v_mfma_f32_32x32x16_bf16 %s, %s, %s, %s" % (d, vr(WF + 8 * k + 4 * ft, 4), vr(HB_ + 8 * b + 4 * k, 4), d))
    def signal(b):
        a("v_add_u32 v%d, 1, v%d" % (vF, vF))
        vm.wait(("W", b))
        lg.issue("ds_write_b32 v%d, v%d" % (vFA, vF), "fw")
    def peek(): lg.issue("ds_read_b32 v%d, v%d" % (vFR, vFB), "fr")
    def precheck():
        lg.wait("fr")
        a("v_cmp_lt_u32 vcc, v%d, v%d" % (vFR, vF))
    def check(lab):
        a("s_cbranch_vccnz %s" % lab)
        a.label(lab + "_OK")
        def slow():
            a.label(lab)
            a("s_mov_b32 s38, 0x40000")
            a("s_setprio 0")
            a.label(lab + "_L")
            a("s_sleep 1")
            a("ds_read_b32 v%d, v%d" % (vFR, vFB))
            a("s_sub_u32 s38, s38, 1")
            a("s_waitcnt lgkmcnt(0)")
            a("v_cmp_lt_u32 vcc, v%d, v%d" % (vFR, vF))
            a("s_cbranch_scc1 %s_GO" % lab)
            a("s_cbranch_vccnz %s_L" % lab)
            a.label(lab + "_GO")
            a("s_setprio 3")
            a("s_branch %s_OK" % lab)
        outl[lab] = slow
    outl = {}
    def give(s):
        lg.issue("ds_write_b128 v%d, %s" % (vRW + 2 * s, vr(O + 16 * s, 4)), "gv")
        lg.issue("ds_write_b128 v%d, %s offset:1024" % (vRW + 2 * s, vr(O + 16 * s + 4, 4)), "gv")
        lg.issue("ds_write_b32 v%d, v%d offset:2048" % (vRW + 2 * s + 1, O + 16 * s + 8), "gv")
    def keytile(b, first=False, down=False, loop=None, top=None, extra=None, pre=False, lab=None, last=False, nobar=False, post=None):
        if top:
            top("pre")
            if not nobar: a("s_barrier")
            top("post")
        for sl in range(4):
            sb = sl % 2
            def E(i): a("v_exp_f32 v%d, v%d" % (S[sb] + i, S[sb] + i))
            if LADDER == 3:
                a("s_setprio %d" % (1 - sl % 2 if sl < 2 else 0)) if sl in (0, 1) else None
            elif LADDER == 4:
                if sl % 2 == 0: a("s_setprio %d" % (1 - sl // 2))
            elif LADDER == 2:
                if sl % 2 == 0: a("s_setprio %d" % (3 - 2 * b - sl // 2))
            elif LADDER: a("s_setprio %d" % (3 - sl))
            elif first and sl == 0: a("s_setprio 0")
            if sl in (1, 2): gen1.jit(a)
            if down and sl == 0:
                if "nosync" not in XP: check(lab)
                if "nord" not in XP: rdW(b, 0)
            E(0); E(1)
            if sl == 0:
                if not first:
                    PV(3, 1 - b, 1, 1)
                    if not (last and b == 1): ldV(vm, 1 - b)
            else: PV(sl - 1, b, 1 - sb, 1)
            if down and sl == 1 and "nord" not in XP: rdW(b, 1)
            E(2); E(3); E(4)
            if sl == 3:
                if not (last and b == 1):
                    vm.wait(("K", 1 - b))
                    QK(0, 1 - b, 0)
            else:
                if first: vm.wait("Q")
                QK(sl + 1, b, 1 - sb)
                if sl == 2 and not last: ldK(vm, b)
            if (down or pre) and sl < 2 and not (down and "nold" in XP): ldW(b, sl)
            fin_ = last and b == 1
            if (down or pre == 2) and sl == 2 and not fin_: signal(1 - b)
            if (down or pre == 2) and sl == 3 and not fin_: peek()
            if fin_ and sl == 2:
                lg.wait(("w", 1, 1))
                a("s_barrier")
                give(0)
            for i in range(5, 10): E(i)
            if sl == 0: vm.wait(("V", b))
            if last and b == 1 and sl == 3: give(1)
            PV(sl, b, sb, 0)
            for i in range(10, DMP): E(i)
            if extra: extra(sl)
            if down:
                if "nodm" not in XP: DM(b, sl)
                if sl % 2 == 1 and "nold" not in XP: ldH(b, sl // 2)
                if sl == 3:
                    if b == 1:
                        a("v_xor_b32 v%d, 0x8000, v%d" % (vT0, vT0))
                        a("v_xor_b32 v%d, 0x8000, v%d" % (vT1, vT1))
                        a("s_xor_b32 s17, s17, 0x8000")
            if loop and sl == 3:
                a("s_sub_u32 s46, s46, 1"); a("s_cmp_lg_u32 s46, 0")
            for i in range(DMP, 14): E(i)
            if (down or pre == 2) and sl == 3 and not fin_: precheck()
            if fin_ and sl == 2: pass
            E(14); E(15)
            if fin_ and sl == 2: give(1) if False else None
            if fin_ and sl == 3: give(2)
            if post: post(sl)
    def pubH(tag, off):
        def f(when):
            if when == "pre":
                vm.wait(tag); lg.wait("fw")
            else:
                a("s_add_u32 s38, s59, %d" % off)
                a("v_mov_b32 v4, 1")
                a("s_mov_b64 exec, 1")
                vm.issue("buffer_store_dword v4, v%d, s[80:83], s38 offen sc1" % vLD, "flag")
                a("s_mov_b64 exec, -1")
        return f
    def wo_stage(i):
        a("s_add_u32 m0, s60, %d" % (i * 2048))
        a("s_add_u32 s38, s47, %d" % (i * 16384))
        vm.issue("buffer_load_dwordx4 v%d, s[40:43], s38 offen lds" % vW0, "wo")
        a("s_add_u32 s38, s38, %d" % (8192 - 1024))
        vm.issue("buffer_load_dwordx4 v%d, s[40:43], s38 offen offset:1024 lds" % vW0, "wo")
    a("s_lshl_b32 s60, s3, 13")
    a("s_lshl_b32 s47, s3, 16")
    a("s_add_u32 s47, s47, s45")
    def ex0(sl):
        if sl < 2: ZERO(DA + 16 * sl)
        if sl == 2:
            a("s_lshl_b32 s38, s3, 8")
            a("s_add_u32 s38, s38, %d" % FLG)
            a("v_lshl_add_u32 v%d, v0, 2, s38" % vFA)
            a("v_xor_b32 v%d, 1024, v%d" % (vFB, vFA))
            a("v_mov_b32 v%d, 0" % vF)
            lg.issue("ds_write_b32 v%d, v%d" % (vFA, vF), "fw")
            if NOB3:
                a("v_mov_b32 v247, 153600")
                lg.issue("ds_write_b32 v247, v%d" % vF, "fw")
    keytile(0, first=True, extra=ex0)
    gen1.stamp(a, "k0")
    keytile(1, top=pubH("Q", 0), extra=wo_stage)
    gen1.stamp(a, "k1")
    def ex2(sl):
        if sl == 2: poll(vm, "s[80:83]")
        if sl < 3:
            s = sl + 1
            a("s_add_u32 s28, s63, %d" % s)
            a("s_and_b32 s28, s28, 3")
            a("s_lshl_b32 s38, s62, 2")
            a("s_add_u32 s28, s28, s38")
            a("s_mul_i32 s28, s28, 3")
            a("s_add_u32 s28, s28, %d" % (s - 1))
            a("s_mul_i32 s28, s28, 2304")
            a("s_add_u32 s28, s28, %d" % SCR)
            a("v_add_u32 v%d, s28, v1" % (vRW + 2 * sl))
            a("v_lshl_add_u32 v%d, v0, 2, s28" % (vRW + 2 * sl + 1))
        else:
            a("s_mul_i32 s28, s3, %d" % (3 * 2304))
            a("s_add_u32 s28, s28, %d" % SCR)
            a("v_add_u32 v%d, s28, v1" % (vRW + 6))
            a("v_lshl_add_u32 v%d, v0, 2, s28" % (vRW + 7))
    keytile(0, pre=1, extra=ex2)
    a("s_mov_b32 s36, s20")
    gen1.stamp(a, "k2")
    def top3(when):
        if not NOB3 and when != "now": pubH("h", 32768)(when)
        if when == "post" and SHT < 0 or when == "now":
            spin("KF_SH", 1, vm, False, "s[80:83]")
            gen1.stamp(a, "sh1")
            ldH(0, 0, "s36"); ldH(0, 1, "s36")
    def ex3(sl):
        if sl == SHT: top3("now")
        if NOB3 and sl == 0:
            vm.wait("h")
            a("v_mov_b32 v5, 1")
            a("s_mov_b64 exec, 1")
            lg.issue("ds_add_rtn_u32 v6, v247, v5", "cnt")
            a("s_mov_b64 exec, -1")
        if NOB3 and sl == 1:
            a("s_lshl_b32 s38, s18, 4")
            a("s_add_u32 s38, s38, s19")
            a("s_lshl_b32 s38, s38, 7")
            a("s_add_u32 s38, s38, 32768")
            lg.wait("cnt")
            a("v_xor_b32 v6, 7, v6")
            a("v_lshlrev_b32 v6, 16, v6")
            a("s_mov_b64 exec, 1")
            vm.issue("buffer_store_dword v5, v6, s[80:83], s38 offen sc1", "flag")
            a("s_mov_b64 exec, -1")
        if sl % 2 == 1: ldH(1, sl // 2)
        if sl == 0: srd(a, 52, 14, OF, 2 * MB)
        if sl == 2:
            srd(a, 24, 14, GG, 16384)
            a("s_lshl_b32 s39, s44, 8")
            a("v_and_b32 v4, 31, v0")
            a("v_lshlrev_b32 v4, 3, v4")
            vm.issue("buffer_load_dword v245, v4, s[24:27], s39 offen offset:4%s" % SC, "g")
            a("s_lshl_b32 s39, s88, 3")
            a("s_add_u32 s39, s39, s3")
            a("s_lshl_b32 s39, s39, 8")
            vm.issue("buffer_load_dword v246, v4, s[24:27], s39 offen%s" % SC, "g")
        if sl == 3:
            a("s_xor_b32 s17, s17, 0x8000")
    keytile(1, top=top3, pre=2, extra=ex3, nobar=NOB3)
    gen1.stamp(a, "k3")
    a("s_mov_b32 s46, 5")
    a("s_mov_b32 s37, %d" % (3 if ab3.HP == 2 else 4))
    def ev():
        a.label("KF_EV")
        a("s_sub_u32 s37, s37, 1")
        a("s_cmp_eq_u32 s37, %d" % (2 if ab3.HP == 2 else 3))
        a("s_cbranch_scc0 KF_EV2")
        a("buffer_load_dword v%d, v%d, s[80:83], s96 offen sc1" % (vP, vPO))
        a("s_branch KF_EVR")
        a.label("KF_EV2")
        a("s_mov_b32 s37, 0")
        a("s_waitcnt vmcnt(14)")
        spin("KF_S2", 1, None, False, "s[80:83]", "s96", " ; kv-ok")
        a("v_cmp_lt_u32 vcc, v%d, v%d" % (vFR, vF))
        a("s_nop 4")
        a("s_branch KF_EVR")
    outl["ev"] = ev
    def it():
        a("s_cmp_eq_u32 s46, s37")
        a("s_cbranch_scc1 KF_EV")
        a.label("KF_EVR")
        keytile(0, down=True, lab="KF_P0"); keytile(1, down=True, loop=True, lab="KF_P1")
        a("s_cbranch_scc1 KF_LB")
    body = steady_loop(a, [vm, lg], it)
    a(".p2align 6")
    a.label("KF_LB")
    a.lines += body
    def exl(sl):
        for i in {1: (0, 1, 4, 6, 7), 2: (2, 3, 5)}.get(sl + (0 if PREO == 1 else -1) if PREO else -9, ()):
            vm.issue("buffer_load_dwordx4 %s, v1, s[52:55], %s offen offset:%d%s" % (vr(128 + 4 * i, 4), "s60" if i < 4 else "s47", (i % 4) * 1024, SC), ("of", i))
    a("s_lshl_b32 s60, s44, 15")
    a("s_lshl_b32 s39, s63, 13")
    a("s_add_u32 s60, s60, s39")
    a("s_add_u32 s47, s60, 4096")
    keytile(0, down=True, lab="KF_P2", last=True); keytile(1, down=True, lab="KF_P3", last=True, extra=exl)
    PV(3, 1, 1, 1)
    if LADDER: a("s_setprio 3")
    gen1.stamp(a, 7)
    OW = O + 48
    OFR = 128
    def ldO(i): return "buffer_load_dwordx4 %s, v1, s[52:55], %s offen offset:%d%s" % (vr(OFR + 4 * i, 4), "s60" if i < 4 else "s47", (i % 4) * 1024, SC)
    vm.wait(("W", 0), ("W", 1))
    a("s_waitcnt lgkmcnt(0)"); lg.ops = []
    a("s_barrier")
    gen1.stamp(a, "rb"); gen1.jit(a)
    for s in range(3):
        lg.issue("ds_read_b128 %s, v%d offset:%d" % (vr(O + 16 * s, 4), vRW + 6, s * 2304), ("x", s))
        lg.issue("ds_read_b128 %s, v%d offset:%d" % (vr(O + 16 * s + 4, 4), vRW + 6, s * 2304 + 1024), ("x", s))
        lg.issue("ds_read_b32 v%d, v%d offset:%d" % (O + 16 * s + 8, vRW + 7, s * 2304 + 2048), ("x", s))
    if HID: rdW(0, 0)
    a("s_mov_b32 s38, %s" % hx(f2u(2.0 ** -60)))
    a("v_mov_b32 v5, %s" % hx(f2u(2.0 ** 40)))
    for s in range(3):
        lg.wait(("x", s))
        if HID and s == 1: rdW(0, 1)
        for i in (8, 0, 1, 2, 3, 4, 5, 6, 7): a("v_add_f32 v%d, v%d, v%d" % (OW + i, OW + i, O + 16 * s + i))
        if HID and s == 1: DM(0, 0)
        if HID and s == 2:
            DM(0, 1); rdW(1, 0)
            if HID > 1: DM(0, 2)
    a.label("KF_CHK")
    a("v_mov_b32 v4, v%d" % (OW + 8))
    a("v_pk_add_f32 v[6:7], %s, %s" % (vr(OW, 2), vr(OW + 2, 2)))
    a("v_pk_add_f32 v[8:9], %s, %s" % (vr(OW + 4, 2), vr(OW + 6, 2)))
    a("v_permlane32_swap_b32 v%d, v4" % (OW + 8))
    a("v_pk_add_f32 v[6:7], v[6:7], v[8:9]")
    a("s_cmp_eq_u32 s46, 1")
    a("v_rcp_f32 v4, v%d" % (OW + 8))
    a("s_cbranch_scc1 KF_NORM")
    a("v_add_f32 v6, v6, v7")
    a("v_med3_f32 v5, v%d, s38, v5" % (OW + 8))
    a("v_fmac_f32 v5, 0, v6")
    a("v_cmp_eq_f32 vcc, v5, v%d" % (OW + 8))
    a("s_nop 1")
    a("s_cmp_eq_u64 vcc, -1")
    a("s_cbranch_scc0 KF_SLOW")
    a.label("KF_NORM")
    a("v_mul_f32 v4, v4, v246")
    for i in range(8): a("v_mul_f32 v%d, v%d, v4" % (OW + i, OW + i))
    if HID > 1: DM(0, 3); rdW(1, 1)
    for i in range(4): a("v_cvt_pk_bf16_f32 v%d, v%d, v%d" % (S[0] + i, OW + 2 * i, OW + 2 * i + 1))
    for i in range(4): a("v_min_u32 v%d, -2, v%d" % (S[0] + i, S[0] + i))
    vm.issue("buffer_store_dwordx4 %s, v1, s[52:55], s61 offen%s" % (vr(S[0], 4), SC), "o")
    gen1.stamp(a, "ost"); gen1.jit(a)
    WO = 64; OFR = 128; vG = 244; YA = 32
    if not HID: rdW(0, 0); rdW(0, 1)
    if HID == 1: DM(0, 2); DM(0, 3); rdW(1, 1)
    if HID == 2: DM(1, 0)
    a("v_and_b32 v4, 31, v0")
    a("v_and_b32 v7, 0xfff, v%d" % vT0)
    a("s_lshl_b32 s39, s63, 14")
    a("v_add_u32 v7, s39, v7")
    a("v_lshrrev_b32 v8, 5, v0")
    a("v_lshlrev_b32 v8, 9, v8")
    a("v_sub_u32 v7, v7, v8")
    a("v_xor_b32 v8, 64, v7")
    def rdWo(i):
        for ft in range(2):
            for q in range(2):
                lg.issue("ds_read_b64_tr_b16 %s, v%d offset:%d" % (vr(WO + 8 * i + 4 * ft + 2 * q, 2), 7 + ft, i * 2048 + q * 1024), ("wof", i))
    def lo(i): vm.issue(ldO(i), ("of", i))
    if EARLYO:
        vm.wait(("H", 1, 1))
        lo(0); DM(0, 0); lo(1); DM(0, 1); rdW(1, 0)
        lo(2); DM(0, 2); lo(3); DM(0, 3); rdW(1, 1)
        rdWo(0)
        lo(4); DM(1, 0); lo(5); DM(1, 1)
        rdWo(1); rdWo(2)
        lo(6); DM(1, 2); lo(7); DM(1, 3)
    else:
        if not HID:
            DM(0, 0); DM(0, 1); rdW(1, 0)
            DM(0, 2); DM(0, 3); rdW(1, 1)
        rdWo(0)
        if HID < 2: DM(1, 0)
        DM(1, 1)
        rdWo(1); rdWo(2)
        DM(1, 2); DM(1, 3)
        gen1.stamp(a, "t1"); gen1.jit(a)
        if not PREO:
            for i in range(8): lo(i)
        gen1.stamp(a, "t2")
    for i in range(3, 8):
        lg.wait(("wof", i - 3)); rdWo(i)
    gen1.stamp(a, "t3")
    a("v_lshlrev_b32 v6, 10, v4")
    a("v_lshrrev_b32 v9, 5, v0")
    a("v_lshl_add_u32 v6, v9, 4, v6")
    a("s_lshl_b32 s61, s44, 15")
    a("s_add_u32 s61, s61, s45")
    a("s_lshl_b32 s39, s63, 5")
    a("s_add_u32 s61, s61, s39")
    srd(a, 4, 12, 0, 2 * MB)
    a("s_mul_i32 s38, s62, %d" % (4 * 6912))
    a("s_add_u32 s38, s38, %d" % SCR)
    a("v_add_u32 v10, s38, v1")
    vm.wait("g")
    for i in range(32): a("v_mul_f32 v%d, v%d, v%d" % (DA + i, DA + i, vG + 1))
    lg.wait(("wof", 7))
    gen1.stamp(a, "so0"); gen1.jit(a)
    a("s_mov_b32 s38, 0x8000")
    def val(i):
        r = OFR + 4 * i
        a("v_max3_u32 v11, v%d, v%d, v%d" % (r, r + 1, r + 2))
        a("v_max_u32 v11, v11, v%d" % (r + 3))
        a("v_cmp_eq_u32 vcc, -1, v11")
    def mm(i):
        for ft in range(2):
            d = vr(DA + 16 * ft, 16)
            a("v_mfma_f32_32x32x16_bf16 %s, %s, %s, %s" % (d, vr(WO + 8 * i + 4 * ft, 4), vr(OFR + 4 * i, 4), d))
    if ORDERED:
        for i in range(8):
            vm.wait(("of", i))
            lab = "KF_O%d" % i
            a.label(lab)
            val(i)
            a("s_nop 0")
            a("s_cbranch_vccnz %s_RE" % lab)
            a.label(lab + "_OK")
            def slow(i=i, lab=lab):
                a.label(lab + "_RE")
                a("s_sub_u32 s38, s38, 1")
                a("s_cbranch_scc1 %s_GU" % lab)
                if OSL: a("s_sleep %d" % OSL)
                for j in range(i, min(8, i + ORL)): a(ldO(j))
                a("s_waitcnt vmcnt(0)")
                a("s_branch %s" % lab)
                a.label(lab + "_GU")
                a("s_mov_b32 s38, 0")
                a("s_branch %s_OK" % lab)
            outl[lab] = slow
            mm(i)
    else:
        a("s_mov_b32 s39, 0")
        for i in range(8):
            vm.wait(("of", i))
            val(i)
            a("s_nop 0")
            a("s_cbranch_vccnz KF_O%d_LATE" % i)
            mm(i)
            a.label("KF_O%d_NEXT" % i)
            def late(i=i):
                a.label("KF_O%d_LATE" % i)
                a("s_bitset1_b32 s39, %d" % i)
                a("s_branch KF_O%d_NEXT" % i)
            outl["late%d" % i] = late
        a("s_cmp_lg_u32 s39, 0")
        a("s_cbranch_scc1 KF_OR")
        a.label("KF_OD")
        def retry():
            a.label("KF_OR")
            for i in range(8):
                a("s_bitcmp1_b32 s39, %d" % i)
                a("s_cbranch_scc0 KF_OL%d" % i)
                a(ldO(i))
                a.label("KF_OL%d" % i)
            a("s_sub_u32 s38, s38, 1")
            a("s_cbranch_scc1 KF_OD")
            a("s_waitcnt vmcnt(0)")
            for i in range(8):
                a("s_bitcmp1_b32 s39, %d" % i)
                a("s_cbranch_scc0 KF_OM%d" % i)
                val(i)
                a("s_nop 0")
                a("s_cbranch_vccnz KF_OM%d" % i)
                mm(i)
                a("s_bitset0_b32 s39, %d" % i)
                a.label("KF_OM%d" % i)
            a("s_cmp_lg_u32 s39, 0")
            a("s_cbranch_scc1 KF_OR")
            a("s_branch KF_OD")
        outl["retry"] = retry
    gen1.stamp(a, "so1"); gen1.jit(a)
    a("s_cmp_ge_u32 s63, 2")
    a("s_nop 9")
    a("s_cbranch_scc1 KF_X2")
    a("s_cmp_eq_u32 s63, 1")
    a("s_cbranch_scc1 KF_X1")
    def fin(kq):
        idx = lambda src, dst: dst if dst < src else dst - 1
        for p in range(4):
            if p == kq: continue
            a("ds_write_b128 v%d, %s offset:%d" % (vRW + 6, vr(DA + 8 * p, 4), idx(kq, p) * 2048))
            a("ds_write_b128 v%d, %s offset:%d" % (vRW + 6, vr(DA + 8 * p + 4, 4), idx(kq, p) * 2048 + 1024))
        a("s_waitcnt lgkmcnt(0)")
        a("s_barrier")
        srcs = [s for s in range(4) if s != kq]
        for n, s in enumerate(srcs):
            a("ds_read_b128 %s, v10 offset:%d" % (vr(YA + 8 * n, 4), s * 6912 + idx(s, kq) * 2048))
            a("ds_read_b128 %s, v10 offset:%d" % (vr(YA + 8 * n + 4, 4), s * 6912 + idx(s, kq) * 2048 + 1024))
        a("s_waitcnt lgkmcnt(4)")
        for i in range(8): a("v_add_f32 v%d, v%d, v%d" % (YA + i, YA + i, DA + 8 * kq + i))
        a("s_waitcnt lgkmcnt(0)")
        for i in range(8): a("v_add_f32 v%d, v%d, v%d" % (YA + 8 + i, YA + 8 + i, YA + 16 + i))
        for i in range(8): a("v_add_f32 v%d, v%d, v%d" % (YA + i, YA + i, YA + 8 + i))
        for i in range(4): a("v_cvt_pk_bf16_f32 v%d, v%d, v%d" % (YA + 24 + i, YA + 2 * i, YA + 2 * i + 1))
        a("s_nop 1")
        a("v_permlane32_swap_b32 v%d, v%d" % (YA + 24, YA + 26))
        a("v_permlane32_swap_b32 v%d, v%d" % (YA + 25, YA + 27))
        a("buffer_store_dwordx4 %s, v6, s[4:7], s61 offen%s" % (vr(YA + 24, 4), OSC))
        gen1.stamp(a, "fin")
        gen1.stamp_end(a, 0, 14, 5)
        a("s_endpgm")
    fin(0)
    a.label("KF_X1"); fin(1)
    a.label("KF_X2")
    a("s_cmp_eq_u32 s63, 3")
    a("s_cbranch_scc1 KF_X3")
    fin(2)
    a.label("KF_X3"); fin(3)
    a.label("KF_END")
    a("s_endpgm")
    for f in list(outl.values()): f()
    a("s_endpgm")
    a.label("KF_SLOW")
    vm2 = VM(a)
    CB = O
    a("s_waitcnt vmcnt(0)")
    a("s_add_u32 s72, s73, %s" % hx(KF))
    srd(a, 8, 14, "s72", 65536)
    a("s_add_u32 s72, s73, %s" % hx(VF))
    srd(a, 64, 14, "s72", 65536)
    if PREO:
        a("s_lshl_b32 s38, s88, 3")
        a("s_add_u32 s38, s38, s3")
        a("s_lshl_b32 s38, s38, 10")
        a("buffer_load_dwordx4 %s, v1, s[68:71], s38 offen%s" % (vr(Q + 12, 4), SC))
        a("v_and_b32 v4, 31, v0")
        a("v_cmp_eq_u32 vcc, 16, v4")
        a("v_mov_b32 v4, 0x3f803f80")
        a("s_nop 0")
        a("v_cndmask_b32 v%d, 0, v4, vcc" % V[0])
        for i in range(1, 8): a("v_mov_b32 v%d, v%d" % (V[0] + i, V[0]))
    a("s_mov_b32 s72, 0")
    a("v_mov_b32 v4, 0xff800000")
    a("s_mov_b32 s46, 64")
    a.label("KF_SL1")
    ldK(vm2, 0)
    a("s_add_u32 s72, s72, 1024")
    a("s_waitcnt vmcnt(0)")
    QK(3, 0, 0)
    a("s_nop 15")
    for i in range(8): a("v_max3_f32 v4, v4, v%d, v%d" % (S[0] + 2 * i, S[0] + 2 * i + 1))
    a("s_sub_u32 s46, s46, 1"); a("s_cmp_lg_u32 s46, 0")
    a("s_cbranch_scc1 KF_SL1")
    a("v_mov_b32 v5, v4")
    a("s_nop 1")
    a("v_permlane32_swap_b32 v4, v5")
    a("s_nop 1")
    a("v_max_f32 v4, v4, v5")
    for i in range(16): a("v_sub_f32 v%d, 0, v4" % (CB + i))
    for i in range(16): a("v_mov_b32 v%d, 0" % (O + 48 + i))
    a("s_mov_b32 s72, 0")
    a("s_mov_b32 s46, 65")
    a.label("KF_SL2")
    ldK(vm2, 0); ldV(vm2, 0, False)
    a("s_waitcnt vmcnt(0)")
    a("v_mfma_f32_32x32x16_bf16 %s, %s, %s, %s" % (vr(S[0], 16), vr(K[0], 4), vr(Q + 12, 4), vr(CB, 16)))
    a("s_nop 15")
    for i in range(16): a("v_exp_f32 v%d, v%d" % (S[0] + i, S[0] + i))
    a("s_nop 1")
    PV(3, 0, 0, 0); PV(3, 0, 0, 1)
    a("s_sub_u32 s46, s46, 1"); a("s_cmp_lg_u32 s46, 1")
    a("s_cbranch_scc1 KF_SL2")
    a("s_nop 15")
    if PREO:
        for i in range(8): a("v_mov_b32 v%d, -1" % (128 + 4 * i))
    a("s_branch KF_CHK")
    a.label("KF_LAST")
    a("s_endpgm")
    return NAME, 256, "grid=(256,1,1) block=(512,1,1) lds=163840"

def parse(argv):
    global KVROT, OSC, LADDER, HPUB, LATE
    global WARM, NOWAIT, SPLIT, DMP, ORDERED, EARLYO, NOB3, SHT, SETG, OWNQ, OSL, ORL, PREO, HID, SETR
    if 'setr' in argv: SETR = True
    for x in argv:
        if x.startswith('hid='): HID = int(x[4:])
    for x in argv:
        if x.startswith('preo='): PREO = int(x[5:])
    for x in argv:
        if x.startswith('osl='): OSL = int(x[4:])
        if x.startswith('orl='): ORL = int(x[4:])
    if 'noownq' in argv: OWNQ = False; ab3.BASES = {"P": -1, "R": -1}
    for x in argv:
        if x.startswith('setg='): SETG = int(x[5:])
    for x in argv:
        if x.startswith('sht='): SHT = int(x[4:])
    if 'b3' in argv: NOB3 = False
    if 'lateo' in argv: EARLYO = False
    if 'unordered' in argv: ORDERED = False
    for x in argv:
        if x.startswith('dmp='): DMP = int(x[4:])
    if 'nosplit' in argv: SPLIT = 0
    if 'wait' in argv: NOWAIT = False
    if 'nowarm' in argv: WARM = False
    if "stamp" in argv: gen1.STAMP = True
    if "rt" in argv: gen1.RT = True
    gen3.GST = [32]
    for x in argv:
        if x.startswith("rot="): ab3.ROT = int(x[4:])
        if x.startswith("epr="): ab3.EPR = int(x[4:])
        if x == "pk": ab3.PK = True
        if x.startswith("d0l="): ab3.D0L = dict(zip(("P", "R"), [int(y) for y in x[4:].split(",")]))
        if x == "h1m": ab3.H1M = True
        if x == "pfr": ab3.PFR = True
        if x.startswith("nt="): ab3.NT = x[3:]
        if x.startswith("ld2="): ab3.LD2 = dict(zip(("P", "R"), [int(y) for y in x[4:].split(",")]))
        if x.startswith("pfs="): ab3.PFS = int(x[4:])
        if x.startswith("pfa="): ab3.PFA = int(x[4:])
        if x.startswith("pfb="): ab3.PFB = dict(zip(("P", "R"), [int(y) for y in x[4:].split(",")]))
        if x.startswith("d1l="): ab3.D1L = int(x[4:])
        if x.startswith("jit="): gen1.JIT = int(x[4:])
        if x == "twarm": ab3.TWARM = True
        if x == "pairs": ab3.PAIRS = True
        if x == "nopm": ab3.PM = False
        if x == "nosplitw": ab3.SPLITW = False
        if x.startswith("hp="): ab3.HP = int(x[3:])
        if x.startswith("ep1r="): ab3.EP1R = int(x[5:])
        if x.startswith("bases="): ab3.BASES = dict(zip(("P", "R"), [int(y) for y in x[6:].split(",")])); OWNQ = True
        if x == "noaltr": ab3.ALTR = False
        if x == "swarm": ab3.SWARM = True
        if x.startswith("warmg="): ab3.WARMG = int(x[6:])
        if x.startswith("gcg="): ab3.GCG = int(x[4:])
        if x == "iwarm": ab3.IWARM = True
        if x.startswith("prio="): ab3.PRIO, ab3.PRG = [int(y) for y in x[5:].split(",")]
        if x.startswith("stg="): ab3.STG = int(x[4:])
        if x.startswith("eprr="): ab3.EPRR = int(x[5:])
        if x.startswith("ch="): ab3.CH = int(x[3:])
        if x.startswith("ldg="): ab3.LDG = dict(zip(("P", "R"), [int(y) for y in x[4:].split(",")]))
        if x.startswith("pld="): ab3.PLD = int(x[4:])
        if x.startswith("early="): ab3.EARLY = dict(zip(("P", "R"), [int(y) for y in x[6:].split(",")]))
        if x.startswith("d2="): ab3.D2 = int(x[3:])
        if x.startswith("pubs="): ab3.PUBS = dict(zip(("P", "R"), [int(y) for y in x[5:].split(",")]))
        if x.startswith("gst="): gen3.GST = [int(y) for y in x[4:].split(",")]
        if x.startswith("smap="): gen1.SMAP = [int(y) if y.isdigit() else y for y in x[5:].split(",")]
        if x == "nokvrot": KVROT = False
        if x == "noladder": LADDER = False
        if x.startswith("ladder="): LADDER = int(x[7:])
        if x == "ns4": gen3.NS4 = True
        if x.startswith("d8="): ab3.D8AT = dict(zip(("P", "R"), [int(y) for y in x[3:].split(",")]))
        if x.startswith("lead2="): gen3.LEAD2 = int(x[6:])
        if x == "fsync": gen3.FSYNC = True
        if x.startswith("sig="): gen3.SIG1, gen3.SIG2 = [int(y) for y in x[4:].split(",")]
        if x.startswith("xp="): XP.extend(x[3:].split(",")); ab3.XP = XP
        if x.startswith("hpub="): HPUB = int(x[5:])
        if x.startswith("osc="): OSC = " " + x[4:]
if __name__ == "__main__":
    parse(sys.argv)
    build1(sys.argv[1], kf, aslist=("list" in sys.argv))
```

```python
import sys
sys.path.insert(0, "gen")
import gen1
from gen1 import *
from asmlib import *
from gen2 import gate_code
SC = " sc1"
SLOT = 32768
GCG = -1
EPR = 9
PUBS = {"P": 11, "R": 13}
ROT = 8
PFR = False
NT = ""
LD2 = {"P": 2, "R": 2}
PFS = -1
PFA = -9
PFB = {"P": -1, "R": -1}
D1L = 0
TWARM = False
PAIRS = False
PM = False
SPLITW = True
D8AT = {"P": -1, "R": -1}
HP = 1
BASES = {"P": 10, "R": 11}
ALTP = False
ALTR = False
CHR = 2
EP1R = 4
SWARM = False
IWARM = True
PRIO = 0
PRG = 32
STG = 3
XP = []
PK = False
CH = 3
D2 = 3
PLD = 5; LDG = {"P": 93, "R": 93}; WARMG = 68
EARLY = {"P": 30, "R": 30}
EPRR = 9

def phase_ab(a, tail, hook):
    X = 128; WF = 32; E = 128
    SET = [64, 80, 96, 112]
    vAX, vT, vST, vAW1, vA2, vAM, vSV, vD, vDM = 2, 3, 4, 5, 7, 9, 10, 11, 16
    a("v_lshrrev_b32 v20, 4, v0")
    a("v_and_b32 v21, 7, v0")
    a("v_xor_b32 v22, v21, v20")
    a("v_lshlrev_b32 v22, 4, v22")
    a("v_lshrrev_b32 v23, 3, v0")
    a("v_lshl_add_u32 v22, v23, 10, v22")
    a("s_lshl_b32 s58, s3, 14")
    a("v_add_u32 v%d, s58, v22" % vD)
    a("v_xor_b32 v%d, 64, v%d" % (vD + 1, vD))
    a("v_add_u32 v%d, %d, v%d" % (vD + 1, 7168, vD + 1))
    a("v_and_b32 v22, 1, v20")
    a("v_lshlrev_b32 v22, 2, v22")
    a("v_xor_b32 v22, v22, v21")
    a("s_and_b32 s58, s3, 1")
    a("s_lshl_b32 s58, s58, 1")
    a("v_xor_b32 v22, s58, v22")
    a("v_lshlrev_b32 v22, 4, v22")
    a("s_lshl_b32 s58, s3, 3")
    a("v_add_u32 v23, s58, v23")
    a("v_mul_u32_u24 v24, 3072, v23")
    a("v_add_u32 v%d, v24, v22" % (vD + 2))
    a("s_lshl_b32 s56, s3, 11")
    a("s_lshl_b32 s57, s3, 10")
    a("s_lshl_b32 s44, s18, 17")
    a("s_lshl_b32 s45, s19, 7")
    a("s_sub_u32 s46, %d, s45" % (512 * 3072))
    a("s_lshl_b32 s50, s55, 1")
    a("s_add_u32 s50, s50, s18")
    if ROT != 8:
        a("s_add_u32 s50, s55, s18")
        a("s_and_b32 s50, s50, %d" % (ROT - 1))
        a("s_mul_i32 s50, s50, %d" % (8 // ROT))
    a("s_lshl_b32 s51, s54, 8")
    a("s_sub_u32 s51, 1920, s51")
    a("s_add_u32 s28, s55, 1")
    a("s_waitcnt lgkmcnt(0)")
    gen1.stamp(a, 1)
    if IWARM:
        a("s_getpc_b64 s[90:91]")
        a.label("AB_PC")
        a("s_lshl_b32 s92, s17, 3")
        a("s_add_u32 s92, s92, s3")
        a("s_lshl_b32 s92, s92, 7")
        a("s_min_u32 s92, s92, KF_LAST-AB_PC")
        a("s_load_dword s33, s[90:91], s92")
    srd(a, 20, 4, "s44", 128 * 1024)
    srd(a, 24, 6, "s45", "s46")
    a("s_bitcmp1_b32 s28, 1")
    a("s_cbranch_scc0 AB_P")

    def stream(kind):
        P = kind == "P" and not PM; PP = kind == "P" and PM
        assert not PM or HP == 1
        vm = VM(a); lg = VM(a, "lgkmcnt", 15)
        d8 = D8AT[kind]
        SL = [(t + (1 if PAIRS else 0)) % 5 for t in range(16)] if d8 < 0 else [0, 1, 2, 3, 0, 1, 2, 3, 4, 0, 1, 2, 3, 4, 0, 1]
        def base(s): return SL[s] * SLOT
        def after(t):
            if PAIRS and t >= 10: return t - 2 - t % 2
            prev = [u for u in range(t) if SL[u] == SL[t]]
            return max(prev[-1] + 2 if prev else 0, t - (LD2[kind] if t >= 9 else 3), 0)
        def dma(s):
            b = base(s); tag = ("d", s)
            G = []
            def grp(m0, off, txt, pre=None):
                G.append([("s", "s_add_u32 m0, %s, %s" % (m0, hx(off)))] + (pre or [("s", "s_nop 0")]) + [("v", txt)])
            ld = "buffer_load_dwordx4 v%d, s[%d:%d], %s offen offset:%d lds"
            if s < 8:
                pre = [("s", "s_add_u32 s48, s50, %d" % s), ("s", "s_and_b32 s48, s48, 7"),
                       ("s", "s_mul_i32 s49, s48, %d" % (64 * 3072)), ("s", "s_lshl_b32 s48, s48, 7")]
                grp("s56", b, ld % (vD, 20, 23, "s48", 0), pre)
                G.append([("v", ld % (vD + 1, 20, 23, "s48", 1024))])
                grp("s57", b + 16384, ld % (vD + 2, 24, 27, "s49", 0))
                if PP: grp("s57", b + 24576, ld % (vDM, 4, 7, "s49", 0), [("s", "s_mul_i32 s49, s48, 1792")])
                elif not P: grp("s57", b + 24576, ld % (vD + 2, 24, 27, "s49", 0), [("s", "s_add_u32 s49, s49, s51")])
            else:
                for c in range(2):
                    pos = (2 * (s - 8) + c) % 8
                    pre = [("s", "s_add_u32 s48, s50, %d" % pos), ("s", "s_and_b32 s48, s48, 7"),
                           ("s", "s_mul_i32 s49, s48, %d" % (64 * 3584)), ("s", "s_add_u32 s49, s49, s%d" % (52 if s < 12 else 97))]
                    if P or (s < 12) == (HP == 2):
                        grp("s57", b + c * 16384, ld % (vD + 3, 40, 43, "s49", 0), pre)
                        grp("s57", b + c * 16384 + 8192, ld % (vD + 3, 44, 47, "s49", 0))
                    else:
                        grp("s57", b + c * 8192, ld % (vDM, 4, 7, "s49", 0), pre)
            def nt(t):
                if not t.endswith(" lds"): return t
                isx = "s[20:23]" in t; isq = "s[24:27]" in t
                on = ("x" in NT and isx) or ("q" in NT and isq) or ("g" in NT and not isx and not isq)
                return t[:-4] + " nt lds" if on else t
            return [[(k, nt(t), tag) for (k, t) in g] for g in G]
        def flat(G): return [x for g in G for x in g]
        def emit(it):
            k, t, tag = it
            if k == "v": vm.issue(t, tag)
            elif k == "l": lg.issue(t, tag)
            elif k == "f": t()
            else: a(t)
        def ffn_setup():
            a("s_lshl_b32 s58, s55, 3")
            a("s_lshr_b32 s38, 0x140e0800, s58")
            a("s_and_b32 s38, s38, 0xff")
            a("s_lshr_b32 s52, %s, s58" % ("0x00400000" if HP == 2 else "0x40008040" if PM else "0x00008000"))
            a("s_and_b32 s52, s52, 0xff")
            a("s_lshr_b32 s97, %s, s58" % ("0x80008080" if HP == 2 else "0x80400080"))
            a("s_and_b32 s97, s97, 0xff")
            a("s_mul_i32 s58, s54, 28")
            a("s_add_u32 s58, s58, s38")
            a("s_lshl_b32 s38, s58, 5")
            a("s_sub_u32 s39, %d, s38" % (512 * 3584))
            srd(a, 40, 8, "s38", "s39")
            srd(a, 44, 10, "s38", "s39")
            a("v_mul_u32_u24 v24, 3584, v23")
            a("v_add_u32 v%d, v24, v22" % (vD + 3))
            if not P:
                a("v_lshrrev_b32 v23, 2, v0")
                a("s_lshl_b32 s38, s36, 4")
                a("v_add_u32 v23, s38, v23")
                a("v_mul_u32_u24 v23, 3584, v23")
                a("v_and_b32 v24, 3, v0")
                a("v_lshrrev_b32 v25, 5, v0")
                a("v_lshlrev_b32 v25, 1, v25")
                a("v_xor_b32 v24, v25, v24")
                a("s_cmp_eq_u32 s37, 0")
                a("s_cselect_b32 s4, s40, s44")
                a("s_cselect_b32 s5, s41, s45")
                a("s_mov_b32 s6, s42")
                a("s_mov_b32 s7, 0x20000")
                a("v_lshl_add_u32 v%d, v24, 4, v23" % vDM)
        gi0, gc0 = gate_code(a, vm, "s[28:31]", "s[20:23]", "s39", X + 112)
        if GCG >= 0:
            for it in flat(dma(0)): emit(it)
        srd(a, 28, 12, 0, 1024)
        a("s_lshl_b32 s60, s19, 3")
        a("s_add_u32 s60, s60, s3")
        a("s_lshl_b32 s39, s60, 10")
        gi0()
        if GCG < 0:
            D0 = dma(0)
            for it in flat(D0[:3]): emit(it)
            if PP: ffn_setup()
            for it in flat(D0[3:]): emit(it)
        def d1(pos):
            if D1L == pos:
                if pos == 0: a("s_barrier")
                for it in flat(dma(1)): emit(it)
        d1(0)
        hook(kind, vm, "init")
        def pfa():
            a("s_mul_i32 s38, s54, %d" % (28 * 32))
            a("s_cmp_eq_u32 s55, 1")
            a("s_cselect_b32 s39, 0, 640")
            a("s_add_u32 s38, s38, s39")
            a("s_and_b32 s39, s18, 7")
            a("s_lshl_b32 s39, s39, 3")
            a("s_add_u32 s39, s39, s3")
            a("s_mul_i32 s39, s39, %d" % (8 * 3584))
            a("s_add_u32 s38, s38, s39")
            a("v_mul_u32_u24 v15, 3584, v0")
            a("s_mov_b64 exec, 0xff")
            for p in (8, 10):
                srd(a, 92, p, 0, 512 * 3584)
                vm.issue("buffer_load_dword v4, v15, s[92:95], s38 offen ; dummy", "pf")
            a("s_mov_b64 exec, -1")
        if PFA == -1 and kind == "R": pfa()
        if TWARM:
            a("s_lshl_b32 s38, s3, 21")
            a("s_load_dword s53, s[14:15], s38")
            a("s_cmp_eq_u32 s3, 7")
            a("s_cbranch_scc0 AB_TW_%s" % kind)
            for p in ("s[8:9]", "s[10:11]", "s[76:77]", "s[78:79]", "s[96:97]", "s[100:101]"): a("s_load_dword s53, %s, 0" % p)
            a("s_mov_b32 s38, %d" % (16 * MB))
            a("s_load_dword s53, s[14:15], s38")
            a.label("AB_TW_%s" % kind)
        if SWARM:
            a("s_lshl_b32 s38, s2, 3")
            a("s_add_u32 s38, s38, s3")
            a("s_mul_i32 s38, s38, 896")
            a("s_add_u32 s90, s8, s38"); a("s_addc_u32 s91, s9, 0")
            a("s_add_u32 s92, s10, s38"); a("s_addc_u32 s93, s11, 0")
            for i in range(7):
                a("s_load_dword s53, s[90:91], %d" % (128 * i))
                a("s_load_dword s53, s[92:93], %d" % (128 * i))
        if not PP: ffn_setup()
        if PFS == -1 and (P or PFR):
            a("s_and_b32 s38, s18, 7")
            a("s_lshl_b32 s38, s38, 3")
            a("s_add_u32 s38, s38, s3")
            a("s_mul_i32 s38, s38, %d" % (8 * 3584))
            a("s_add_u32 s38, s38, s52")
            a("v_mul_u32_u24 v15, 3584, v0")
            a("s_mov_b64 exec, 0xff")
            vm.issue("buffer_load_dword v4, v15, s[40:43], s38 offen ; dummy", "pf")
            vm.issue("buffer_load_dword v4, v15, s[44:47], s38 offen ; dummy", "pf")
            a("s_mov_b64 exec, -1")
        a("v_and_b32 v24, 15, v0")
        a("v_lshrrev_b32 v25, 4, v0")
        a("v_bfe_u32 v26, v0, 1, 3")
        a("v_xor_b32 v26, v25, v26")
        a("v_lshlrev_b32 v26, 4, v26")
        a("v_lshl_add_u32 v26, v24, 7, v26")
        a("s_lshl_b32 s38, s36, 12")
        if base(0): a("s_add_u32 s38, s38, %d" % base(0))
        a("v_add_u32 v%d, s38, v26" % vAX)
        a("v_bfe_u32 v21, v0, 2, 2")
        a("v_lshl_add_u32 v26, v25, 3, v21")
        a("v_bfe_u32 v27, v0, 4, 1")
        a("v_and_b32 v28, 3, v0")
        a("v_lshlrev_b32 v28, 3, v28")
        a("v_bfe_u32 v30, v0, 3, 1")
        a("v_xor_b32 v23, s37, v30")
        a("v_lshl_add_u32 v23, v23, 1, v27")
        a("v_lshl_add_u32 v29, v23, 5, v28")
        a("v_lshl_add_u32 v29, v26, 7, v29")
        a("v_add_u32 v%d, %d, v29" % (vAW1, 16384 + base(0)))
        a("v_xor_b32 v%d, 32, v%d" % (vAW1 + 1, vAW1))
        a("v_add_u32 v%d, %d, v29" % (vA2, base(8 if P or HP == 2 else 12)))
        a("v_xor_b32 v%d, 32, v%d" % (vA2 + 1, vA2))
        if not P:
            a("v_xor_b32 v23, s37, v27")
            a("v_lshl_add_u32 v29, v23, 5, v28")
            a("v_lshl_add_u32 v29, v26, 6, v29")
            a("v_add_u32 v%d, %d, v29" % (vAM, base(12 if HP == 2 else 8)))
            if PP: a("v_add_u32 v%d, %d, v29" % (vSV, 24576 + base(0)))
        a("v_lshrrev_b32 v25, 5, v0")
        a("s_lshl_b32 s90, s18, 2")
        a("s_add_u32 s90, s90, s36")
        a("s_lshl_b32 s91, s90, 10")
        a("s_mul_i32 s90, s90, 112")
        a("s_add_u32 s90, s90, s58")
        a("s_lshr_b32 s38, s52, 5")
        a("s_add_u32 s95, s90, s38")
        a("s_lshr_b32 s38, s97, 5")
        a("s_add_u32 s58, s90, s38")
        a("s_lshl_b32 s38, s37, 1")
        a("s_add_u32 s58, s58, %s" % ("s38" if P or HP == 1 else "s37"))
        a("s_lshl_b32 s58, s58, 10")
        a("s_add_u32 s95, s95, %s" % ("s38" if P or HP == 2 else "s37"))
        a("s_lshl_b32 s95, s95, 10")
        if PP:
            a("s_add_u32 s96, s90, s37")
            a("s_lshl_b32 s96, s96, 10")
        elif not P:
            a("v_and_b32 v29, 15, v0")
            a("v_lshlrev_b32 v29, 4, v29")
            a("v_lshl_add_u32 v29, v25, 8, v29")
            a("v_lshl_add_u32 v%d, v27, 16, v29" % vSV)
            a("s_lshl_b32 s38, s54, 1")
            a("s_add_u32 s38, s38, s55")
            a("s_sub_u32 s38, s38, 1")
            a("s_lshl_b32 s38, s38, 18")
            a("s_add_u32 s96, s91, s38")
            a("s_lshl_b32 s38, s37, 17")
            a("s_add_u32 s96, s96, s38")
            a("s_add_u32 s96, s96, %s" % hx(VF))
        a("s_cmp_lt_u32 s19, 8")
        a("s_cselect_b32 s92, %s, 1.0" % hx(f2u(0.25 * LOG2E)))
        a("s_mov_b32 s93, s92")
        a("s_lshl_b32 s38, s19, 18")
        a("s_add_u32 s91, s91, s38")
        a("s_lshl_b32 s38, s37, 17")
        a("s_add_u32 s91, s91, s38")
        a("s_add_u32 s94, s91, 0x10000")
        def gc():
            o = gc0()
            a("v_mov_b32 v30, v%d" % o); a("v_mov_b32 v31, v%d" % (o + 1))
            srd(a, 28, 14, 0, 17 * MB)
            a("s_lshl_b32 s39, s18, 7")
            a("s_add_u32 s60, s60, s39")
            a("s_lshl_b32 s60, s60, 3")
            a("s_add_u32 s60, s60, %s" % hx(GG))
            a("v_mov_b32 v29, 0")
        def gst():
            a("s_mov_b32 exec_lo, 0")
            a("s_mov_b32 exec_hi, 0x80000000")
            vm.issue("buffer_store_dwordx2 v[30:31], v29, s[28:31], s60 offen%s" % SC, "gst")
            a("s_mov_b64 exec, -1")
        T = [[3], [0, 1], [2, 3]] if P else [[0, 1], [2, 3], [0]] if HP == 2 else [[0, 1], [2], [0, 1]]
        ALT = [2 if ALTP else None, None, None] if P else [None, None, 1 if ALTR else None] if HP == 2 else [None, 3 if ALTR else None, None]
        DIST = [2, D2, D2] if P else [2, D2, 4] if HP == 2 else [2, 4, D2]
        def ph(g): return g // 32
        def stage(g): return g // 4 if g < 32 else 8 + (g - 32) // 8
        def first(g): return g % 4 == 0 if g < 32 else g % 8 == 0
        def wf(g, n, f):
            S = g // 2; nt = len(T[ph(g)])
            nb = 2 if nt == 2 else (4 if ph(g) == 0 else 3)
            if not P and HP == 1 and ph(g) == 2: S += 1
            return WF + 8 * nt * ((S if nb == 2 else S % 16) % nb) + 8 * n + 4 * f
        def wregs(g): return set(r for n in range(len(T[ph(g)])) for r in range(wf(g, n, 0), wf(g, n, 0) + 8))
        def reads(g):
            s = stage(g); p = ph(g); L = []
            if p == 0: R = [vAX, vAW1, vAW1 + 1] + ([vSV] if PP else [])
            elif p == HP and not P: R = [vAM]
            else: R = [vA2, vA2 + 1]
            if first(g) and s not in (0, 8) and not (s == 12 and not P):
                d = base(s) - base(s - 1)
                for r in R: L.append(("s", "v_add_u32 v%d, %s, v%d" % (r, hx(d), r), None))
            ks = g % 4
            if p == 0:
                if ks == 2: L.append(("s", "v_xor_b32 v%d, 64, v%d" % (vT, vAX), None))
                L.append(("l", "ds_read_b128 %s, v%d offset:%d" % (vr(X + 4 * g, 4), vT if ks >= 2 else vAX, (ks % 2) * 2048), g))
            if g % 2: return L
            c = 0 if p == 0 else (g % 8) // 4
            for n in range(len(T[p])):
                for f in range(2):
                    if p == 0 and n == 1 and PP: ad, off, rb_ = vSV, f * 4096, 64
                    elif p == 0: ad, off, rb_ = vAW1 + f, n * 8192, 128
                    elif R[0] == vAM: ad, off, rb_ = vAM, c * 8192 + f * 4096, 64
                    else: ad, off, rb_ = vA2 + n, c * 16384 + f * 8192, 128
                    for j in range(2):
                        L.append(("l", "ds_read_b64_tr_b16 %s, v%d offset:%d" % (vr(wf(g, n, f) + 2 * j, 2), ad, off + (16 * ks + 4 * j) * rb_), (g, 1) if (n == 1 and SPLITW) else g))
            return L
        def mfmas(g):
            L = []
            x = vr(X + 4 * (g % 32), 4); h = g % 2
            for n, ac in enumerate(T[ph(g)]):
                for f in range(2):
                    w = vr(wf(g, n, f), 4)
                    if g < 32 and n == 1 and not PP: d = vr(SET[ac] + 8 * h + 4 * f, 4); A, B = x, w
                    else: d = vr(SET[ac] + 8 * f + 4 * h, 4); A, B = w, x
                    L.append("v_mfma_f32_16x16x32_bf16 %s, %s, %s, %s" % (d, A, B, "0" if g % 32 < 2 else d))
            return L
        def qkv_epi(n):
            b = SET[T[0][n]]; L = []
            if n == 0:
                for i in range(16): L.append(("s", "v_mul_f32 v%d, s92, v%d" % (b + i, b + i), None))
            for i in range(8): L.append(("s", "v_cvt_pk_bf16_f32 v%d, v%d, v%d" % (b + i, b + 2 * i, b + 2 * i + 1), None))
            for i in (0, 1, 4, 5): L.append(("s", "v_permlane16_swap_b32 v%d, v%d" % (b + i, b + i + 2), None))
            if n == 0:
                L.append(("v", "buffer_store_dwordx4 %s, v1, s[28:31], s91 offen%s" % (vr(b, 4), SC), "qkv"))
                L.append(("v", "buffer_store_dwordx4 %s, v1, s[28:31], s94 offen%s" % (vr(b + 4, 4), SC), "qkv"))
            else:
                for j in range(2):
                    L.append(("v", "buffer_store_dwordx4 %s, v%d, s[28:31], s96 offen offset:%d%s" % (vr(b + 4 * j, 4), vSV, j * 512, SC), "qkv"))
            return L
        def silu(G, Tm, so, off, tag, pk=True):
            U = G + 8; L = []
            def op(o, d, x, y):
                if pk:
                    for i in range(4): L.append("v_pk_%s_f32 %s, %s, %s" % (o, vr(d + 2 * i, 2), vr(x + 2 * i, 2), y if isinstance(y, str) else vr(y + 2 * i, 2)))
                else:
                    for i in range(8): L.append("v_%s_f32 v%d, %s, v%d" % (o, d + i, {"s[92:93]": "s92", "s[12:13]": "1.0"}.get(y, None) or "v%d" % (y + i), x + i))
            op("mul", Tm, G, "s[92:93]")
            for i in range(8): L.append("v_exp_f32 v%d, v%d" % (Tm + i, Tm + i))
            op("mul", G, G, U)
            op("add", Tm, Tm, "s[12:13]")
            for i in range(8): L.append("v_rcp_f32 v%d, v%d" % (Tm + i, Tm + i))
            L.append("s_nop 0")
            op("mul", G, G, Tm)
            for i in range(4): L.append("v_cvt_pk_bf16_f32 v%d, v%d, v%d" % (G + i, G + 2 * i, G + 2 * i + 1))
            L.append("s_nop 0")
            for i in range(2): L.append("v_permlane16_swap_b32 v%d, v%d" % (G + i, G + i + 2))
            L = [("s", t, None) for t in L]
            L.append(("v", "buffer_store_dwordx4 %s, v1, s[32:35], %s offen offset:%d%s" % (vr(G, 4), so, off, SC), tag))
            return L
        def consts():
            a("s_mov_b32 s92, %s" % hx(f2u(-LOG2E))); a("s_mov_b32 s93, s92")
            a("s_mov_b32 s12, 1.0"); a("s_mov_b32 s13, 1.0")
            srd(a, 32, 14, HF, 7 * MB)
        ep1 = []
        if PP: ep1 = qkv_epi(0) + [("f", consts, None)] + silu(SET[T[0][1]], 56, "s96", 0, "h1", PK)
        else:
            for n in reversed(range(len(T[0]))): ep1 += qkv_epi(n)
        ep0 = [("f", lambda: hook(kind, vm, "early"), None), ("f", gst, None)]
        if "noearly" in XP: ep0 = []
        ep1b = [("f", consts, None)] if not PP else []
        if "noqst" in XP: ep1 = [x for x in ep1 if x[0] != "v"]
        if "noep1" in XP: ep1 = [x for x in ep1 if x[0] == "v"]
        if "plainq" in XP: ep1 = [(k, t.replace(SC, ""), g) if k == "v" else (k, t, g) for (k, t, g) in ep1]
        ep2 = []
        if ALT[1] is not None:
            for i in range(16): ep2.append(("s", "v_add_f32 v%d, v%d, v%d" % (SET[T[1][0]] + i, SET[T[1][0]] + i, SET[ALT[1]] + i), None))
        for n, ac in enumerate(T[1]): ep2 += silu(SET[ac], E if P or HP == 1 else 56, "s95", n * 1024, "h1", PK)
        if "noep2" in XP: ep2 = []
        if "ep2nost" in XP: ep2 = [x for x in ep2 if x[0] != "v"]
        islot = {}
        last = -1
        for g in range(96):
            want = g - DIST[ph(g)]
            if g % 2 == 0:
                for g2 in range(g - 1, max(-1, g - 12), -1):
                    if wregs(g) & wregs(g2): want = max(want, g2 + 1); break
            want = max(want, last)
            assert want < g or g == 0, g
            islot[g] = want; last = want
        syncs = {islot[g]: stage(g) for g in range(1, 96) if first(g) and not (PAIRS and stage(g) > 8 and stage(g) % 2)}
        def barrier(s):
            if PAIRS and s >= 8: vm.wait(("d", s + 1), *(("qkv", "gst", "sent") if s == PUBS[kind] else ()))
            elif s == PUBS[kind]: vm.wait(("d", s), "qkv", "gst", "sent")
            elif s == BASES[kind]: vm.wait(("d", s), "gst", "sent")
            else: vm.wait(("d", s))
            if s == (14 if PAIRS else 15): a("s_waitcnt lgkmcnt(0)"); lg.ops = []
            a("s_barrier")
            gen1.jit(a)
            if s == BASES[kind]: hook(kind, vm, "base")
            if s == PUBS[kind]: hook(kind, vm, "pub")
        d1(1)
        hook(kind, vm, "setup")
        d1(2)
        if GCG < 0: gc()
        d1(3)
        barrier(0)
        if SWARM or IWARM: a("s_waitcnt lgkmcnt(0)")
        gen1.stamp(a, 2)
        for g in range(96):
            if islot[g] < 0:
                for it in reads(g): emit(it)
        stq = []; nst = [0]; late = []
        pend = []
        for t in range(2, 16):
            if after(t) == 0 and not (t == 8 and d8 >= 0): pend += dma(t)
            if t == d8 and after(t) == 0: pend += dma(8)
        for g in range(96):
            O = []
            O += late; late = []
            for g2 in range(g + 1, 96):
                if islot[g2] == g:
                    Lr = reads(g2)
                    if g2 - g >= 2:
                        late += [it for it in Lr if it[2] == (g2, 1)]
                        Lr = [it for it in Lr if it[2] != (g2, 1)]
                    O += Lr
            bar = syncs.get(g)
            if bar is not None:
                assert not any(it[2] in (("d", bar), ("d", bar + 1) if PAIRS and bar >= 8 else None) for grp in pend for it in grp), (g, bar)
                for t in range(2, 16):
                    if after(t) == bar and not (t == 8 and d8 >= 0): pend += dma(t)
                    if t == d8 and after(t) == bar: pend += dma(8)
            if pend and (g < 32 or g % 2 == 0 or len(pend) > (5 if PAIRS else 4)):
                for _ in range(2 if len(pend) > 3 and g < 32 else 1): O += pend.pop(0)
            if g == GCG: O.append(("f", gc, None))
            if ep0 and g >= EARLY[kind]: O.append(ep0.pop(0))
            if g >= 34 and stq and g >= nst[0] and None not in stq[:2]:
                O += stq.pop(0); nst[0] = g + STG
            if g >= 34 and ep1:
                n = EPR + 2 if P or HP == 2 else EP1R
                for it in ep1[:n]:
                    if it[0] == "v": stq.append([it])
                    elif it[0] == "s" and it[1].startswith("s_add_u32 s9"): stq.append([it]) ; stq.append(None)
                    else: O.append(it)
                ep1 = ep1[n:]
                i = 0
                while i < len(stq):
                    if stq[i] is None and i + 1 < len(stq):
                        stq[i - 1] = stq[i - 1] + stq[i + 1]
                        del stq[i:i + 2]
                    else: i += 1
            elif stq: pass
            elif g >= max(34, EARLY[kind]) and ep1b and g >= nst[0]: O.append(ep1b.pop(0)); nst[0] = g + 2
            elif g >= (67 if P or HP == 1 else 66) and ep2:
                n = EPR if P else EPRR
                O += ep2[:n]; ep2 = ep2[n:]
                O += hook(kind, vm, (g, CH if P else CHR)) or []
            elif g >= 34 and not ep1b:
                O += hook(kind, vm, (g, 6 if g < 64 else 10)) or []
            if g < 30: O += hook(kind, vm, (g, 0)) or []
            if g == PFB[kind] or (P and g == PFS):
                def pfb(o="s52" if (P and g == PFS) else "s97"):
                    a("s_and_b32 s48, s18, 7")
                    a("s_lshl_b32 s48, s48, 3")
                    a("s_add_u32 s48, s48, s3")
                    a("s_mul_i32 s48, s48, %d" % (8 * 3584))
                    a("s_add_u32 s48, s48, %s" % o)
                    a("v_mul_u32_u24 v15, 3584, v0")
                    a("s_mov_b64 exec, 0xff")
                    vm.issue("buffer_load_dword v%d, v%d, s[40:43], s48 offen ; dummy" % (4, 15), "pf")
                    vm.issue("buffer_load_dword v%d, v%d, s[44:47], s48 offen ; dummy" % (4, 15), "pf")
                    a("s_mov_b64 exec, -1")
                assert not pend or pend[0][0][1].startswith("s_add_u32 m0, s56"), (kind, g, pend[0][0])
                O.append(("f", pfb, None))
            if g == WARMG: O.append(("f", lambda: hook(kind, vm, "warm"), None))
            if bar == BASES[kind]: assert not ep0
            if BASES[kind] > 0 and g == LDG[kind] - 2 * PLD: O.append(("f", lambda: hook(kind, vm, "bpoll"), None))
            if g == LDG[kind] - PLD: O.append(("f", lambda: hook(kind, vm, "poll"), None))
            if g == LDG[kind]: assert not ep2 or (not P and HP == 2)
            if g == LDG[kind]: O.append(("f", lambda: hook(kind, vm, "ld"), None))
            if bar == PUBS[kind]: assert not ep1 and not stq and not ep1b and not any(it[0] == "f" for it in O), (kind, g)
            if g == 63: assert not ep1 and not stq and not ep1b
            M = mfmas(g)
            pr = PRIO if g >= PRG else 0
            if pr: a("s_setprio 1")
            lg.wait(g)
            assert not (gen1.STAMP and "g%d" % g in gen1.SMAP and 10 < g < 30), "stamp would clobber the set-up temporaries"
            if g % 5 == 3: gen1.jit(a)
            gen1.stamp(a, "g%d" % g)
            n = len(M); per = max(1, -(-len(O) // n))
            if pr == 2:
                for m in M: a(m)
                a("s_setprio 0")
                if bar is not None: barrier(bar)
                for it in O: emit(it)
                continue
            for i, m in enumerate(M):
                if i == 2: lg.wait((g, 1))
                if pr and i: a("s_setprio 1")
                a(m)
                if pr: a("s_setprio 0")
                if i == 0 and bar is not None: barrier(bar)
                for it in O[i * per:(i + 1) * per]: emit(it)
        assert not ep1 and not ep2 and not pend
        gen1.stamp(a, 4)
        hook(kind, vm, "pre_h")
        a("s_nop 10")
        L0 = silu(SET[T[2][0]], WF, "s58", 0, "h")
        if len(T[2]) == 2:
            L1 = silu(SET[T[2][1]], WF + 8, "s58", 1024, "h")
            for it in L0[:12] + L1[:12] + L0[12:28]: emit(it)
            hook(kind, vm, "mid_h")
            for it in L1[12:28] + L0[29:] + L1[29:]: emit(it)
        else:
            if ALT[2] is not None:
                b = SET[T[2][0]]; c = SET[ALT[2]]
                for i in range(8): a("v_pk_add_f32 %s, %s, %s" % (vr(b + 2 * i, 2), vr(b + 2 * i, 2), vr(c + 2 * i, 2)))
            for it in L0[:28]: emit(it)
            hook(kind, vm, "mid_h")
            for it in L0[28:]: emit(it)
            a("v_mov_b32 v4, 0x1000")
            vm.issue("buffer_store_dword v4, v4, s[84:87], 0 offen", "h")
        tail(kind, vm)
    stream("R")
    a.label("AB_P")
    stream("P")
```

```python
import sys
sys.path.insert(0, "gen")
import gen1
from gen1 import *
from asmlib import *
from gen2 import gate_code
SC = " sc1"
SLOT = 32768
GCG = -1
EPR = 9
PUBS = {"P": 11, "R": 13}
ROT = 8
H1M = False
PFR = False
NT = ""
LD2 = {"P": 2, "R": 2}
PFS = -1
PFA = -9
PFB = {"P": -1, "R": -1}
D1L = 0
TWARM = False
PAIRS = False
PM = False
SPLITW = True
D8AT = {"P": -1, "R": -1}
HP = 1
BASES = {"P": 10, "R": 12}
ALTP = False
ALTR = False
CHR = 2
EP1R = 4
SWARM = False
IWARM = True
PRIO = 0
PRG = 32
STG = 1
XP = []
PK = False
CH = 3
D2 = 3
PLD = 5; LDG = {"P": 93, "R": 93}; WARMG = 68
EARLY = {"P": 33, "R": 33}
EPRR = 9

def phase_ab(a, tail, hook):
    X = 128; WF = 32; E = 128
    SET = [64, 80, 96, 112]
    vAX, vT, vST, vAW1, vA2, vAM, vSV, vD, vDM = 2, 3, 4, 5, 7, 9, 10, 11, 16
    a("v_lshrrev_b32 v20, 4, v0")
    a("v_and_b32 v21, 7, v0")
    a("v_xor_b32 v22, v21, v20")
    a("v_lshlrev_b32 v22, 4, v22")
    a("v_lshrrev_b32 v23, 3, v0")
    a("v_lshl_add_u32 v22, v23, 10, v22")
    a("s_lshl_b32 s58, s3, 14")
    a("v_add_u32 v%d, s58, v22" % vD)
    a("v_xor_b32 v%d, 64, v%d" % (vD + 1, vD))
    a("v_add_u32 v%d, %d, v%d" % (vD + 1, 7168, vD + 1))
    a("v_and_b32 v22, 1, v20")
    a("v_lshlrev_b32 v22, 2, v22")
    a("v_xor_b32 v22, v22, v21")
    a("s_and_b32 s58, s3, 1")
    a("s_lshl_b32 s58, s58, 1")
    a("v_xor_b32 v22, s58, v22")
    a("v_lshlrev_b32 v22, 4, v22")
    a("s_lshl_b32 s58, s3, 3")
    a("v_add_u32 v23, s58, v23")
    a("v_mul_u32_u24 v24, 3072, v23")
    a("v_add_u32 v%d, v24, v22" % (vD + 2))
    a("s_lshl_b32 s56, s3, 11")
    a("s_lshl_b32 s57, s3, 10")
    a("s_lshl_b32 s44, s18, 17")
    a("s_lshl_b32 s45, s19, 7")
    a("s_sub_u32 s46, %d, s45" % (512 * 3072))
    a("s_lshl_b32 s50, s55, 1")
    a("s_add_u32 s50, s50, s18")
    if ROT != 8:
        a("s_add_u32 s50, s55, s18")
        a("s_and_b32 s50, s50, %d" % (ROT - 1))
        a("s_mul_i32 s50, s50, %d" % (8 // ROT))
    a("s_lshl_b32 s51, s54, 8")
    a("s_sub_u32 s51, 1920, s51")
    a("s_add_u32 s28, s55, 1")
    a("s_waitcnt lgkmcnt(0)")
    gen1.stamp(a, 1)
    if IWARM:
        a("s_getpc_b64 s[90:91]")
        a.label("AB_PC")
        a("s_lshl_b32 s92, s17, 3")
        a("s_add_u32 s92, s92, s3")
        a("s_lshl_b32 s92, s92, 7")
        a("s_min_u32 s92, s92, KF_LAST-AB_PC")
        a("s_load_dword s33, s[90:91], s92")
    srd(a, 20, 4, "s44", 128 * 1024)
    srd(a, 24, 6, "s45", "s46")
    a("s_bitcmp1_b32 s28, 1")
    a("s_cbranch_scc0 AB_P")

    def stream(kind):
        P = kind == "P" and not PM; PP = kind == "P" and PM
        assert not PM or HP == 1
        vm = VM(a); lg = VM(a, "lgkmcnt", 15)
        d8 = D8AT[kind]
        SL = [(t + (1 if PAIRS else 0)) % 5 for t in range(16)] if d8 < 0 else [0, 1, 2, 3, 0, 1, 2, 3, 4, 0, 1, 2, 3, 4, 0, 1]
        def base(s): return SL[s] * SLOT
        def after(t):
            if PAIRS and t >= 10: return t - 2 - t % 2
            prev = [u for u in range(t) if SL[u] == SL[t]]
            return max(prev[-1] + 2 if prev else 0, t - (LD2[kind] if t >= 9 else 3), 0)
        def dma(s):
            b = base(s); tag = ("d", s)
            G = []
            def grp(m0, off, txt, pre=None):
                G.append([("s", "s_add_u32 m0, %s, %s" % (m0, hx(off)))] + (pre or [("s", "s_nop 0")]) + [("v", txt)])
            ld = "buffer_load_dwordx4 v%d, s[%d:%d], %s offen offset:%d lds"
            if s < 8:
                pre = [("s", "s_add_u32 s48, s50, %d" % s), ("s", "s_and_b32 s48, s48, 7"),
                       ("s", "s_mul_i32 s49, s48, %d" % (64 * 3072)), ("s", "s_lshl_b32 s48, s48, 7")]
                grp("s56", b, ld % (vD, 20, 23, "s48", 0), pre)
                G.append([("v", ld % (vD + 1, 20, 23, "s48", 1024))])
                grp("s57", b + 16384, ld % (vD + 2, 24, 27, "s49", 0))
                if PP: grp("s57", b + 24576, ld % (vDM, 4, 7, "s49", 0), [("s", "s_mul_i32 s49, s48, 1792")])
                elif not P: grp("s57", b + 24576, ld % (vD + 2, 24, 27, "s49", 0), [("s", "s_add_u32 s49, s49, s51")])
            else:
                for c in range(2):
                    pos = (2 * (s - 8) + c) % 8
                    pre = [("s", "s_add_u32 s48, s50, %d" % pos), ("s", "s_and_b32 s48, s48, 7"),
                           ("s", "s_mul_i32 s49, s48, %d" % (64 * 3584)), ("s", "s_add_u32 s49, s49, s%d" % (52 if s < 12 else 97))]
                    if P or (s < 12) == (HP == 2):
                        grp("s57", b + c * 16384, ld % (vD + 3, 40, 43, "s49", 0), pre)
                        grp("s57", b + c * 16384 + 8192, ld % (vD + 3, 44, 47, "s49", 0))
                    else:
                        grp("s57", b + c * 8192, ld % (vDM, 4, 7, "s49", 0), pre)
            def nt(t):
                if not t.endswith(" lds"): return t
                isx = "s[20:23]" in t; isq = "s[24:27]" in t
                on = ("x" in NT and isx) or ("q" in NT and isq) or ("g" in NT and not isx and not isq)
                return t[:-4] + " nt lds" if on else t
            return [[(k, nt(t), tag) for (k, t) in g] for g in G]
        def flat(G): return [x for g in G for x in g]
        def emit(it):
            k, t, tag = it
            if k == "v": vm.issue(t, tag)
            elif k == "l": lg.issue(t, tag)
            elif k == "f": t()
            else: a(t)
        def ffn_setup():
            a("s_lshl_b32 s58, s55, 3")
            a("s_lshr_b32 s38, 0x140e0800, s58")
            a("s_and_b32 s38, s38, 0xff")
            a("s_lshr_b32 s52, %s, s58" % ("0x00400000" if HP == 2 else "0x40008040" if PM else "0x00008000"))
            a("s_and_b32 s52, s52, 0xff")
            a("s_lshr_b32 s97, %s, s58" % ("0x80008080" if HP == 2 else "0x80400080"))
            a("s_and_b32 s97, s97, 0xff")
            a("s_mul_i32 s58, s54, 28")
            a("s_add_u32 s58, s58, s38")
            a("s_lshl_b32 s38, s58, 5")
            a("s_sub_u32 s39, %d, s38" % (512 * 3584))
            srd(a, 40, 8, "s38", "s39")
            srd(a, 44, 10, "s38", "s39")
            a("v_mul_u32_u24 v24, 3584, v23")
            a("v_add_u32 v%d, v24, v22" % (vD + 3))
            if not P:
                a("v_lshrrev_b32 v23, 2, v0")
                a("s_lshl_b32 s38, s36, 4")
                a("v_add_u32 v23, s38, v23")
                a("v_mul_u32_u24 v23, 3584, v23")
                a("v_and_b32 v24, 3, v0")
                a("v_lshrrev_b32 v25, 5, v0")
                a("v_lshlrev_b32 v25, 1, v25")
                a("v_xor_b32 v24, v25, v24")
                a("s_cmp_eq_u32 s37, 0")
                a("s_cselect_b32 s4, s40, s44")
                a("s_cselect_b32 s5, s41, s45")
                a("s_mov_b32 s6, s42")
                a("s_mov_b32 s7, 0x20000")
                a("v_lshl_add_u32 v%d, v24, 4, v23" % vDM)
        gi0, gc0 = gate_code(a, vm, "s[28:31]", "s[20:23]", "s39", X + 112)
        if GCG >= 0:
            for it in flat(dma(0)): emit(it)
        srd(a, 28, 12, 0, 1024)
        a("s_lshl_b32 s60, s19, 3")
        a("s_add_u32 s60, s60, s3")
        a("s_lshl_b32 s39, s60, 10")
        gi0()
        if GCG < 0:
            D0 = dma(0)
            for it in flat(D0[:3]): emit(it)
            if PP: ffn_setup()
            for it in flat(D0[3:]): emit(it)
        def d1(pos):
            if D1L == pos:
                if pos == 0: a("s_barrier")
                for it in flat(dma(1)): emit(it)
        d1(0)
        hook(kind, vm, "init")
        def pfa():
            a("s_mul_i32 s38, s54, %d" % (28 * 32))
            a("s_cmp_eq_u32 s55, 1")
            a("s_cselect_b32 s39, 0, 640")
            a("s_add_u32 s38, s38, s39")
            a("s_and_b32 s39, s18, 7")
            a("s_lshl_b32 s39, s39, 3")
            a("s_add_u32 s39, s39, s3")
            a("s_mul_i32 s39, s39, %d" % (8 * 3584))
            a("s_add_u32 s38, s38, s39")
            a("v_mul_u32_u24 v15, 3584, v0")
            a("s_mov_b64 exec, 0xff")
            for p in (8, 10):
                srd(a, 92, p, 0, 512 * 3584)
                vm.issue("buffer_load_dword v4, v15, s[92:95], s38 offen ; dummy", "pf")
            a("s_mov_b64 exec, -1")
        if PFA == -1 and kind == "R": pfa()
        if TWARM:
            a("s_lshl_b32 s38, s3, 21")
            a("s_load_dword s53, s[14:15], s38")
            a("s_cmp_eq_u32 s3, 7")
            a("s_cbranch_scc0 AB_TW_%s" % kind)
            for p in ("s[8:9]", "s[10:11]", "s[76:77]", "s[78:79]", "s[96:97]", "s[100:101]"): a("s_load_dword s53, %s, 0" % p)
            a("s_mov_b32 s38, %d" % (16 * MB))
            a("s_load_dword s53, s[14:15], s38")
            a.label("AB_TW_%s" % kind)
        if SWARM:
            a("s_lshl_b32 s38, s2, 3")
            a("s_add_u32 s38, s38, s3")
            a("s_mul_i32 s38, s38, 896")
            a("s_add_u32 s90, s8, s38"); a("s_addc_u32 s91, s9, 0")
            a("s_add_u32 s92, s10, s38"); a("s_addc_u32 s93, s11, 0")
            for i in range(7):
                a("s_load_dword s53, s[90:91], %d" % (128 * i))
                a("s_load_dword s53, s[92:93], %d" % (128 * i))
        if not PP: ffn_setup()
        if PFS == -1 and (P or PFR):
            a("s_and_b32 s38, s18, 7")
            a("s_lshl_b32 s38, s38, 3")
            a("s_add_u32 s38, s38, s3")
            a("s_mul_i32 s38, s38, %d" % (8 * 3584))
            a("s_add_u32 s38, s38, s52")
            a("v_mul_u32_u24 v15, 3584, v0")
            a("s_mov_b64 exec, 0xff")
            vm.issue("buffer_load_dword v4, v15, s[40:43], s38 offen ; dummy", "pf")
            vm.issue("buffer_load_dword v4, v15, s[44:47], s38 offen ; dummy", "pf")
            a("s_mov_b64 exec, -1")
        a("v_and_b32 v24, 15, v0")
        a("v_lshrrev_b32 v25, 4, v0")
        a("v_bfe_u32 v26, v0, 1, 3")
        a("v_xor_b32 v26, v25, v26")
        a("v_lshlrev_b32 v26, 4, v26")
        a("v_lshl_add_u32 v26, v24, 7, v26")
        a("s_lshl_b32 s38, s36, 12")
        if base(0): a("s_add_u32 s38, s38, %d" % base(0))
        a("v_add_u32 v%d, s38, v26" % vAX)
        a("v_bfe_u32 v21, v0, 2, 2")
        a("v_lshl_add_u32 v26, v25, 3, v21")
        a("v_bfe_u32 v27, v0, 4, 1")
        a("v_and_b32 v28, 3, v0")
        a("v_lshlrev_b32 v28, 3, v28")
        a("v_bfe_u32 v30, v0, 3, 1")
        a("v_xor_b32 v23, s37, v30")
        a("v_lshl_add_u32 v23, v23, 1, v27")
        a("v_lshl_add_u32 v29, v23, 5, v28")
        a("v_lshl_add_u32 v29, v26, 7, v29")
        a("v_add_u32 v%d, %d, v29" % (vAW1, 16384 + base(0)))
        a("v_xor_b32 v%d, 32, v%d" % (vAW1 + 1, vAW1))
        a("v_add_u32 v%d, %d, v29" % (vA2, base(8 if P or HP == 2 else 12)))
        a("v_xor_b32 v%d, 32, v%d" % (vA2 + 1, vA2))
        if not P:
            a("v_xor_b32 v23, s37, v27")
            a("v_lshl_add_u32 v29, v23, 5, v28")
            a("v_lshl_add_u32 v29, v26, 6, v29")
            a("v_add_u32 v%d, %d, v29" % (vAM, base(12 if HP == 2 else 8)))
            if PP: a("v_add_u32 v%d, %d, v29" % (vSV, 24576 + base(0)))
        a("v_lshrrev_b32 v25, 5, v0")
        a("s_lshl_b32 s90, s18, 2")
        a("s_add_u32 s90, s90, s36")
        a("s_lshl_b32 s91, s90, 10")
        a("s_mul_i32 s90, s90, 112")
        a("s_add_u32 s90, s90, s58")
        a("s_lshr_b32 s38, s52, 5")
        a("s_add_u32 s95, s90, s38")
        a("s_lshr_b32 s38, s97, 5")
        a("s_add_u32 s58, s90, s38")
        a("s_lshl_b32 s38, s37, 1")
        a("s_add_u32 s58, s58, %s" % ("s38" if P or HP == 1 else "s37"))
        a("s_lshl_b32 s58, s58, 10")
        a("s_add_u32 s95, s95, %s" % ("s38" if P or HP == 2 else "s37"))
        a("s_lshl_b32 s95, s95, 10")
        if PP:
            a("s_add_u32 s96, s90, s37")
            a("s_lshl_b32 s96, s96, 10")
        elif not P:
            a("v_and_b32 v29, 15, v0")
            a("v_lshlrev_b32 v29, 4, v29")
            a("v_lshl_add_u32 v29, v25, 8, v29")
            a("v_lshl_add_u32 v%d, v27, 16, v29" % vSV)
            a("s_lshl_b32 s38, s54, 1")
            a("s_add_u32 s38, s38, s55")
            a("s_sub_u32 s38, s38, 1")
            a("s_lshl_b32 s38, s38, 18")
            a("s_add_u32 s96, s91, s38")
            a("s_lshl_b32 s38, s37, 17")
            a("s_add_u32 s96, s96, s38")
            a("s_add_u32 s96, s96, %s" % hx(VF))
        a("s_cmp_lt_u32 s19, 8")
        a("s_cselect_b32 s92, %s, 1.0" % hx(f2u(0.25 * LOG2E)))
        a("s_mov_b32 s93, s92")
        a("s_lshl_b32 s38, s19, 18")
        a("s_add_u32 s91, s91, s38")
        a("s_lshl_b32 s38, s37, 17")
        a("s_add_u32 s91, s91, s38")
        a("s_add_u32 s94, s91, 0x10000")
        def gc():
            o = gc0()
            a("v_mov_b32 v30, v%d" % o); a("v_mov_b32 v31, v%d" % (o + 1))
            srd(a, 28, 14, 0, 17 * MB)
            a("s_lshl_b32 s39, s18, 7")
            a("s_add_u32 s60, s60, s39")
            a("s_lshl_b32 s60, s60, 3")
            a("s_add_u32 s60, s60, %s" % hx(GG))
            a("v_mov_b32 v29, 0")
        def gst():
            a("s_mov_b32 exec_lo, 0")
            a("s_mov_b32 exec_hi, 0x80000000")
            vm.issue("buffer_store_dwordx2 v[30:31], v29, s[28:31], s60 offen%s" % SC, "gst")
            a("s_mov_b64 exec, -1")
        T = [[3], [0, 1], [2, 3]] if P else [[0, 1], [2, 3], [0]] if HP == 2 else [[0, 1], [2], [0, 1]]
        ALT = [2 if ALTP else None, None, None] if P else [None, None, 1 if ALTR else None] if HP == 2 else [None, 3 if ALTR else None, None]
        DIST = [2, D2, D2] if P else [2, D2, 4] if HP == 2 else [2, 4, D2]
        def ph(g): return g // 32
        def stage(g): return g // 4 if g < 32 else 8 + (g - 32) // 8
        def first(g): return g % 4 == 0 if g < 32 else g % 8 == 0
        def wf(g, n, f):
            S = g // 2; nt = len(T[ph(g)])
            nb = 2 if nt == 2 else (4 if ph(g) == 0 else 3)
            if not P and HP == 1 and ph(g) == 2: S += 1
            return WF + 8 * nt * ((S if nb == 2 else S % 16) % nb) + 8 * n + 4 * f
        def wregs(g): return set(r for n in range(len(T[ph(g)])) for r in range(wf(g, n, 0), wf(g, n, 0) + 8))
        def reads(g):
            s = stage(g); p = ph(g); L = []
            if p == 0: R = [vAX, vAW1, vAW1 + 1] + ([vSV] if PP else [])
            elif p == HP and not P: R = [vAM]
            else: R = [vA2, vA2 + 1]
            if first(g) and s not in (0, 8) and not (s == 12 and not P):
                d = base(s) - base(s - 1)
                for r in R: L.append(("s", "v_add_u32 v%d, %s, v%d" % (r, hx(d), r), None))
            ks = g % 4
            if p == 0:
                if ks == 2: L.append(("s", "v_xor_b32 v%d, 64, v%d" % (vT, vAX), None))
                L.append(("l", "ds_read_b128 %s, v%d offset:%d" % (vr(X + 4 * g, 4), vT if ks >= 2 else vAX, (ks % 2) * 2048), g))
            if g % 2: return L
            c = 0 if p == 0 else (g % 8) // 4
            for n in range(len(T[p])):
                for f in range(2):
                    if p == 0 and n == 1 and PP: ad, off, rb_ = vSV, f * 4096, 64
                    elif p == 0: ad, off, rb_ = vAW1 + f, n * 8192, 128
                    elif R[0] == vAM: ad, off, rb_ = vAM, c * 8192 + f * 4096, 64
                    else: ad, off, rb_ = vA2 + n, c * 16384 + f * 8192, 128
                    for j in range(2):
                        L.append(("l", "ds_read_b64_tr_b16 %s, v%d offset:%d" % (vr(wf(g, n, f) + 2 * j, 2), ad, off + (16 * ks + 4 * j) * rb_), (g, 1) if (n == 1 and SPLITW) else g))
            return L
        def mfmas(g):
            L = []
            x = vr(X + 4 * (g % 32), 4); h = g % 2
            for n, ac in enumerate(T[ph(g)]):
                for f in range(2):
                    w = vr(wf(g, n, f), 4)
                    if g < 32 and n == 1 and not PP: d = vr(SET[ac] + 8 * h + 4 * f, 4); A, B = x, w
                    else: d = vr(SET[ac] + 8 * f + 4 * h, 4); A, B = w, x
                    L.append("v_mfma_f32_16x16x32_bf16 %s, %s, %s, %s" % (d, A, B, "0" if g % 32 < 2 else d))
            return L
        def qkv_epi(n):
            b = SET[T[0][n]]; L = []
            if n == 0:
                for i in range(16): L.append(("s", "v_mul_f32 v%d, s92, v%d" % (b + i, b + i), None))
            for i in range(8): L.append(("s", "v_cvt_pk_bf16_f32 v%d, v%d, v%d" % (b + i, b + 2 * i, b + 2 * i + 1), None))
            for i in (0, 1, 4, 5): L.append(("s", "v_permlane16_swap_b32 v%d, v%d" % (b + i, b + i + 2), None))
            if n == 0:
                L.append(("v", "buffer_store_dwordx4 %s, v1, s[28:31], s91 offen%s" % (vr(b, 4), SC), "qkv"))
                L.append(("v", "buffer_store_dwordx4 %s, v1, s[28:31], s94 offen%s" % (vr(b + 4, 4), SC), "qkv"))
            else:
                for j in range(2):
                    L.append(("v", "buffer_store_dwordx4 %s, v%d, s[28:31], s96 offen offset:%d%s" % (vr(b + 4 * j, 4), vSV, j * 512, SC), "qkv"))
            return L
        def silu(G, Tm, so, off, tag, pk=True):
            U = G + 8; L = []
            def op(o, d, x, y):
                if pk:
                    for i in range(4): L.append("v_pk_%s_f32 %s, %s, %s" % (o, vr(d + 2 * i, 2), vr(x + 2 * i, 2), y if isinstance(y, str) else vr(y + 2 * i, 2)))
                else:
                    for i in range(8): L.append("v_%s_f32 v%d, %s, v%d" % (o, d + i, {"s[92:93]": "s92", "s[12:13]": "1.0"}.get(y, None) or "v%d" % (y + i), x + i))
            op("mul", Tm, G, "s[92:93]")
            for i in range(8): L.append("v_exp_f32 v%d, v%d" % (Tm + i, Tm + i))
            op("mul", G, G, U)
            op("add", Tm, Tm, "s[12:13]")
            for i in range(8): L.append("v_rcp_f32 v%d, v%d" % (Tm + i, Tm + i))
            L.append("s_nop 0")
            op("mul", G, G, Tm)
            for i in range(4): L.append("v_cvt_pk_bf16_f32 v%d, v%d, v%d" % (G + i, G + 2 * i, G + 2 * i + 1))
            L.append("s_nop 0")
            for i in range(2): L.append("v_permlane16_swap_b32 v%d, v%d" % (G + i, G + i + 2))
            L = [("s", t, None) for t in L]
            L.append(("v", "buffer_store_dwordx4 %s, v1, s[32:35], %s offen offset:%d%s" % (vr(G, 4), so, off, SC), tag))
            return L
        def consts():
            a("s_mov_b32 s92, %s" % hx(f2u(-LOG2E))); a("s_mov_b32 s93, s92")
            a("s_mov_b32 s12, 1.0"); a("s_mov_b32 s13, 1.0")
            srd(a, 32, 14, HF, 7 * MB)
        ep1 = []
        if PP: ep1 = qkv_epi(0) + [("f", consts, None)] + silu(SET[T[0][1]], 56, "s96", 0, "h1", PK)
        else:
            for n in reversed(range(len(T[0]))): ep1 += qkv_epi(n)
        ep0 = [("f", lambda: hook(kind, vm, "early"), None), ("f", gst, None)]
        if "noearly" in XP: ep0 = []
        ep1b = [("f", consts, None)] if not PP else []
        if "noqst" in XP: ep1 = [x for x in ep1 if x[0] != "v"]
        if "noep1" in XP: ep1 = [x for x in ep1 if x[0] == "v"]
        if "plainq" in XP: ep1 = [(k, t.replace(SC, ""), g) if k == "v" else (k, t, g) for (k, t, g) in ep1]
        ep2 = []
        if ALT[1] is not None:
            for i in range(16): ep2.append(("s", "v_add_f32 v%d, v%d, v%d" % (SET[T[1][0]] + i, SET[T[1][0]] + i, SET[ALT[1]] + i), None))
        for n, ac in enumerate(T[1]): ep2 += silu(SET[ac], E if P or HP == 1 else 56, "s95", n * 1024, "h1", PK)
        if H1M: ep2 = [x for x in ep2 if x[0] != "v"] + [x for x in ep2 if x[0] == "v"]
        if "noep2" in XP: ep2 = []
        if "ep2nost" in XP: ep2 = [x for x in ep2 if x[0] != "v"]
        islot = {}
        last = -1
        for g in range(96):
            want = g - DIST[ph(g)]
            if g % 2 == 0:
                for g2 in range(g - 1, max(-1, g - 12), -1):
                    if wregs(g) & wregs(g2): want = max(want, g2 + 1); break
            want = max(want, last)
            assert want < g or g == 0, g
            islot[g] = want; last = want
        syncs = {islot[g]: stage(g) for g in range(1, 96) if first(g) and not (PAIRS and stage(g) > 8 and stage(g) % 2)}
        def barrier(s):
            if PAIRS and s >= 8: vm.wait(("d", s + 1), *(("qkv", "gst", "sent") if s == PUBS[kind] else ()))
            elif s == PUBS[kind]: vm.wait(("d", s), "qkv", "gst", "sent")
            elif s == BASES[kind]: vm.wait(("d", s), "gst", "sent")
            else: vm.wait(("d", s))
            if s == (14 if PAIRS else 15): a("s_waitcnt lgkmcnt(0)"); lg.ops = []
            a("s_barrier")
            gen1.jit(a)
            if s == BASES[kind]: hook(kind, vm, "base")
            if s == PUBS[kind]: hook(kind, vm, "pub")
        d1(1)
        hook(kind, vm, "setup")
        d1(2)
        if GCG < 0: gc()
        d1(3)
        barrier(0)
        if SWARM or IWARM: a("s_waitcnt lgkmcnt(0)")
        gen1.stamp(a, 2)
        for g in range(96):
            if islot[g] < 0:
                for it in reads(g): emit(it)
        stq = []; nst = [0]; late = []
        pend = []
        for t in range(2, 16):
            if after(t) == 0 and not (t == 8 and d8 >= 0): pend += dma(t)
            if t == d8 and after(t) == 0: pend += dma(8)
        for g in range(96):
            O = []
            O += late; late = []
            for g2 in range(g + 1, 96):
                if islot[g2] == g:
                    Lr = reads(g2)
                    if g2 - g >= 2:
                        late += [it for it in Lr if it[2] == (g2, 1)]
                        Lr = [it for it in Lr if it[2] != (g2, 1)]
                    O += Lr
            bar = syncs.get(g)
            if bar is not None:
                assert not any(it[2] in (("d", bar), ("d", bar + 1) if PAIRS and bar >= 8 else None) for grp in pend for it in grp), (g, bar)
                for t in range(2, 16):
                    if after(t) == bar and not (t == 8 and d8 >= 0): pend += dma(t)
                    if t == d8 and after(t) == bar: pend += dma(8)
            if pend and (g < 32 or g % 2 == 0 or len(pend) > (5 if PAIRS else 4)):
                for _ in range(2 if len(pend) > 3 and g < 32 else 1): O += pend.pop(0)
            if g == GCG: O.append(("f", gc, None))
            if ep0 and g >= EARLY[kind]: O.append(ep0.pop(0))
            if g >= 34 and stq and g >= nst[0] and None not in stq[:2]:
                O += stq.pop(0); nst[0] = g + STG
            if g >= 34 and ep1:
                n = EPR + 2 if P or HP == 2 else EP1R
                for it in ep1[:n]:
                    if it[0] == "v": stq.append([it])
                    elif it[0] == "s" and it[1].startswith("s_add_u32 s9"): stq.append([it]) ; stq.append(None)
                    else: O.append(it)
                ep1 = ep1[n:]
                i = 0
                while i < len(stq):
                    if stq[i] is None and i + 1 < len(stq):
                        stq[i - 1] = stq[i - 1] + stq[i + 1]
                        del stq[i:i + 2]
                    else: i += 1
            elif stq: pass
            elif g >= max(34, EARLY[kind]) and ep1b and g >= nst[0]: O.append(ep1b.pop(0)); nst[0] = g + 2
            elif g >= (67 if P or HP == 1 else 66) and ep2:
                n = EPR if P else EPRR
                O += ep2[:n]; ep2 = ep2[n:]
                O += hook(kind, vm, (g, CH if P else CHR)) or []
            elif g >= 34 and not ep1b:
                O += hook(kind, vm, (g, 6 if g < 64 else 10)) or []
            if g < 30: O += hook(kind, vm, (g, 0)) or []
            if g == PFB[kind] or (P and g == PFS):
                def pfb(o="s52" if (P and g == PFS) else "s97"):
                    a("s_and_b32 s48, s18, 7")
                    a("s_lshl_b32 s48, s48, 3")
                    a("s_add_u32 s48, s48, s3")
                    a("s_mul_i32 s48, s48, %d" % (8 * 3584))
                    a("s_add_u32 s48, s48, %s" % o)
                    a("v_mul_u32_u24 v15, 3584, v0")
                    a("s_mov_b64 exec, 0xff")
                    vm.issue("buffer_load_dword v%d, v%d, s[40:43], s48 offen ; dummy" % (4, 15), "pf")
                    vm.issue("buffer_load_dword v%d, v%d, s[44:47], s48 offen ; dummy" % (4, 15), "pf")
                    a("s_mov_b64 exec, -1")
                assert not pend or pend[0][0][1].startswith("s_add_u32 m0, s56"), (kind, g, pend[0][0])
                O.append(("f", pfb, None))
            if g == WARMG: O.append(("f", lambda: hook(kind, vm, "warm"), None))
            if bar == BASES[kind]: assert not ep0
            if BASES[kind] > 0 and g == LDG[kind] - 2 * PLD: O.append(("f", lambda: hook(kind, vm, "bpoll"), None))
            if g == LDG[kind] - PLD: O.append(("f", lambda: hook(kind, vm, "poll"), None))
            if g == LDG[kind]: assert not ep2 or (not P and HP == 2)
            if g == LDG[kind]: O.append(("f", lambda: hook(kind, vm, "ld"), None))
            if bar == PUBS[kind]: assert not ep1 and not stq and not ep1b and not any(it[0] == "f" for it in O), (kind, g)
            if g == 63: assert not ep1 and not stq and not ep1b
            M = mfmas(g)
            pr = PRIO if g >= PRG else 0
            if pr: a("s_setprio 1")
            lg.wait(g)
            assert not (gen1.STAMP and "g%d" % g in gen1.SMAP and 10 < g < 30), "stamp would clobber the set-up temporaries"
            if g % 5 == 3: gen1.jit(a)
            gen1.stamp(a, "g%d" % g)
            n = len(M); per = max(1, -(-len(O) // n))
            if pr == 2:
                for m in M: a(m)
                a("s_setprio 0")
                if bar is not None: barrier(bar)
                for it in O: emit(it)
                continue
            for i, m in enumerate(M):
                if i == 2: lg.wait((g, 1))
                if pr and i: a("s_setprio 1")
                a(m)
                if pr: a("s_setprio 0")
                if i == 0 and bar is not None: barrier(bar)
                for it in O[i * per:(i + 1) * per]: emit(it)
        assert not ep1 and not ep2 and not pend
        gen1.stamp(a, 4)
        hook(kind, vm, "pre_h")
        a("s_nop 10")
        L0 = silu(SET[T[2][0]], WF, "s58", 0, "h")
        if len(T[2]) == 2:
            L1 = silu(SET[T[2][1]], WF + 8, "s58", 1024, "h")
            for it in L0[:12] + L1[:12] + L0[12:28]: emit(it)
            hook(kind, vm, "mid_h")
            for it in L1[12:28] + L0[29:] + L1[29:]: emit(it)
        else:
            if ALT[2] is not None:
                b = SET[T[2][0]]; c = SET[ALT[2]]
                for i in range(8): a("v_pk_add_f32 %s, %s, %s" % (vr(b + 2 * i, 2), vr(b + 2 * i, 2), vr(c + 2 * i, 2)))
            for it in L0[:28]: emit(it)
            hook(kind, vm, "mid_h")
            for it in L0[28:]: emit(it)
            a("v_mov_b32 v4, 0x1000")
            vm.issue("buffer_store_dword v4, v4, s[84:87], 0 offen", "h")
        tail(kind, vm)
    stream("R")
    a.label("AB_P")
    stream("P")
```

```python
import sys
sys.path.insert(0, "gen")
import gen1
from gen1 import *
from asmlib import *
from gen2 import gate_code
SC = " sc1"
SLOT = 32768
GCG = -1
EPR = 9
PUBS = {"P": 11, "R": 13}
ROT = 8
D0L = {"P": 0, "R": 0}
H1M = False
PFR = False
NT = ""
LD2 = {"P": 2, "R": 2}
PFS = -1
PFA = -9
PFB = {"P": -1, "R": -1}
D1L = 0
TWARM = False
PAIRS = False
PM = False
SPLITW = True
D8AT = {"P": -1, "R": -1}
HP = 1
BASES = {"P": 10, "R": 12}
ALTP = False
ALTR = False
CHR = 2
EP1R = 4
SWARM = False
IWARM = True
PRIO = 0
PRG = 32
STG = 1
XP = []
PK = False
CH = 3
D2 = 3
PLD = 5; LDG = {"P": 93, "R": 93}; WARMG = 68
EARLY = {"P": 33, "R": 33}
EPRR = 9

def phase_ab(a, tail, hook):
    X = 128; WF = 32; E = 128
    SET = [64, 80, 96, 112]
    vAX, vT, vST, vAW1, vA2, vAM, vSV, vD, vDM = 2, 3, 4, 5, 7, 9, 10, 11, 16
    a("v_lshrrev_b32 v20, 4, v0")
    a("v_and_b32 v21, 7, v0")
    a("v_xor_b32 v22, v21, v20")
    a("v_lshlrev_b32 v22, 4, v22")
    a("v_lshrrev_b32 v23, 3, v0")
    a("v_lshl_add_u32 v22, v23, 10, v22")
    a("s_lshl_b32 s58, s3, 14")
    a("v_add_u32 v%d, s58, v22" % vD)
    a("v_xor_b32 v%d, 64, v%d" % (vD + 1, vD))
    a("v_add_u32 v%d, %d, v%d" % (vD + 1, 7168, vD + 1))
    a("v_and_b32 v22, 1, v20")
    a("v_lshlrev_b32 v22, 2, v22")
    a("v_xor_b32 v22, v22, v21")
    a("s_and_b32 s58, s3, 1")
    a("s_lshl_b32 s58, s58, 1")
    a("v_xor_b32 v22, s58, v22")
    a("v_lshlrev_b32 v22, 4, v22")
    a("s_lshl_b32 s58, s3, 3")
    a("v_add_u32 v23, s58, v23")
    a("v_mul_u32_u24 v24, 3072, v23")
    a("v_add_u32 v%d, v24, v22" % (vD + 2))
    a("s_lshl_b32 s56, s3, 11")
    a("s_lshl_b32 s57, s3, 10")
    a("s_lshl_b32 s44, s18, 17")
    a("s_lshl_b32 s45, s19, 7")
    a("s_sub_u32 s46, %d, s45" % (512 * 3072))
    a("s_lshl_b32 s50, s55, 1")
    a("s_add_u32 s50, s50, s18")
    if ROT != 8:
        a("s_add_u32 s50, s55, s18")
        a("s_and_b32 s50, s50, %d" % (ROT - 1))
        a("s_mul_i32 s50, s50, %d" % (8 // ROT))
    a("s_lshl_b32 s51, s54, 8")
    a("s_sub_u32 s51, 1920, s51")
    a("s_add_u32 s28, s55, 1")
    a("s_waitcnt lgkmcnt(0)")
    gen1.stamp(a, 1)
    if IWARM:
        a("s_getpc_b64 s[90:91]")
        a.label("AB_PC")
        a("s_lshl_b32 s92, s17, 3")
        a("s_add_u32 s92, s92, s3")
        a("s_lshl_b32 s92, s92, 7")
        a("s_min_u32 s92, s92, KF_LAST-AB_PC")
        a("s_load_dword s33, s[90:91], s92")
    srd(a, 20, 4, "s44", 128 * 1024)
    srd(a, 24, 6, "s45", "s46")
    a("s_bitcmp1_b32 s28, 1")
    a("s_cbranch_scc0 AB_P")

    def stream(kind):
        P = kind == "P" and not PM; PP = kind == "P" and PM
        assert not PM or HP == 1
        vm = VM(a); lg = VM(a, "lgkmcnt", 15)
        d8 = D8AT[kind]
        SL = [(t + (1 if PAIRS else 0)) % 5 for t in range(16)] if d8 < 0 else [0, 1, 2, 3, 0, 1, 2, 3, 4, 0, 1, 2, 3, 4, 0, 1]
        def base(s): return SL[s] * SLOT
        def after(t):
            if PAIRS and t >= 10: return t - 2 - t % 2
            prev = [u for u in range(t) if SL[u] == SL[t]]
            return max(prev[-1] + 2 if prev else 0, t - (LD2[kind] if t >= 9 else 3), 0)
        def dma(s):
            b = base(s); tag = ("d", s)
            G = []
            def grp(m0, off, txt, pre=None):
                G.append([("s", "s_add_u32 m0, %s, %s" % (m0, hx(off)))] + (pre or [("s", "s_nop 0")]) + [("v", txt)])
            ld = "buffer_load_dwordx4 v%d, s[%d:%d], %s offen offset:%d lds"
            if s < 8:
                pre = [("s", "s_add_u32 s48, s50, %d" % s), ("s", "s_and_b32 s48, s48, 7"),
                       ("s", "s_mul_i32 s49, s48, %d" % (64 * 3072)), ("s", "s_lshl_b32 s48, s48, 7")]
                grp("s56", b, ld % (vD, 20, 23, "s48", 0), pre)
                G.append([("v", ld % (vD + 1, 20, 23, "s48", 1024))])
                grp("s57", b + 16384, ld % (vD + 2, 24, 27, "s49", 0))
                if PP: grp("s57", b + 24576, ld % (vDM, 4, 7, "s49", 0), [("s", "s_mul_i32 s49, s48, 1792")])
                elif not P: grp("s57", b + 24576, ld % (vD + 2, 24, 27, "s49", 0), [("s", "s_add_u32 s49, s49, s51")])
            else:
                for c in range(2):
                    pos = (2 * (s - 8) + c) % 8
                    pre = [("s", "s_add_u32 s48, s50, %d" % pos), ("s", "s_and_b32 s48, s48, 7"),
                           ("s", "s_mul_i32 s49, s48, %d" % (64 * 3584)), ("s", "s_add_u32 s49, s49, s%d" % (52 if s < 12 else 97))]
                    if P or (s < 12) == (HP == 2):
                        grp("s57", b + c * 16384, ld % (vD + 3, 40, 43, "s49", 0), pre)
                        grp("s57", b + c * 16384 + 8192, ld % (vD + 3, 44, 47, "s49", 0))
                    else:
                        grp("s57", b + c * 8192, ld % (vDM, 4, 7, "s49", 0), pre)
            def nt(t):
                if not t.endswith(" lds"): return t
                isx = "s[20:23]" in t; isq = "s[24:27]" in t
                on = ("x" in NT and isx) or ("q" in NT and isq) or ("g" in NT and not isx and not isq)
                return t[:-4] + " nt lds" if on else t
            return [[(k, nt(t), tag) for (k, t) in g] for g in G]
        def flat(G): return [x for g in G for x in g]
        def emit(it):
            k, t, tag = it
            if k == "v": vm.issue(t, tag)
            elif k == "l": lg.issue(t, tag)
            elif k == "f": t()
            else: a(t)
        def ffn_setup():
            a("s_lshl_b32 s58, s55, 3")
            a("s_lshr_b32 s38, 0x140e0800, s58")
            a("s_and_b32 s38, s38, 0xff")
            a("s_lshr_b32 s52, %s, s58" % ("0x00400000" if HP == 2 else "0x40008040" if PM else "0x00008000"))
            a("s_and_b32 s52, s52, 0xff")
            a("s_lshr_b32 s97, %s, s58" % ("0x80008080" if HP == 2 else "0x80400080"))
            a("s_and_b32 s97, s97, 0xff")
            a("s_mul_i32 s58, s54, 28")
            a("s_add_u32 s58, s58, s38")
            a("s_lshl_b32 s38, s58, 5")
            a("s_sub_u32 s39, %d, s38" % (512 * 3584))
            srd(a, 40, 8, "s38", "s39")
            srd(a, 44, 10, "s38", "s39")
            a("v_mul_u32_u24 v24, 3584, v23")
            a("v_add_u32 v%d, v24, v22" % (vD + 3))
            if not P:
                a("v_lshrrev_b32 v23, 2, v0")
                a("s_lshl_b32 s38, s36, 4")
                a("v_add_u32 v23, s38, v23")
                a("v_mul_u32_u24 v23, 3584, v23")
                a("v_and_b32 v24, 3, v0")
                a("v_lshrrev_b32 v25, 5, v0")
                a("v_lshlrev_b32 v25, 1, v25")
                a("v_xor_b32 v24, v25, v24")
                a("s_cmp_eq_u32 s37, 0")
                a("s_cselect_b32 s4, s40, s44")
                a("s_cselect_b32 s5, s41, s45")
                a("s_mov_b32 s6, s42")
                a("s_mov_b32 s7, 0x20000")
                a("v_lshl_add_u32 v%d, v24, 4, v23" % vDM)
        gi0, gc0 = gate_code(a, vm, "s[28:31]", "s[20:23]", "s39", X + 112)
        def d0():
            srd(a, 28, 12, 0, 1024)
            a("s_lshl_b32 s60, s19, 3")
            a("s_add_u32 s60, s60, s3")
            a("s_lshl_b32 s39, s60, 10")
            gi0()
            D0 = dma(0)
            for it in flat(D0[:3]): emit(it)
            if PP: ffn_setup()
            for it in flat(D0[3:]): emit(it)
        def d1(pos):
            if D0L[kind] == pos: d0()
            if max(D1L, D0L[kind]) == pos:
                if D0L[kind] == pos: a("s_barrier")
                for it in flat(dma(1)): emit(it)
        d1(0)
        hook(kind, vm, "init")
        def pfa():
            a("s_mul_i32 s38, s54, %d" % (28 * 32))
            a("s_cmp_eq_u32 s55, 1")
            a("s_cselect_b32 s39, 0, 640")
            a("s_add_u32 s38, s38, s39")
            a("s_and_b32 s39, s18, 7")
            a("s_lshl_b32 s39, s39, 3")
            a("s_add_u32 s39, s39, s3")
            a("s_mul_i32 s39, s39, %d" % (8 * 3584))
            a("s_add_u32 s38, s38, s39")
            a("v_mul_u32_u24 v15, 3584, v0")
            a("s_mov_b64 exec, 0xff")
            for p in (8, 10):
                srd(a, 92, p, 0, 512 * 3584)
                vm.issue("buffer_load_dword v4, v15, s[92:95], s38 offen ; dummy", "pf")
            a("s_mov_b64 exec, -1")
        if PFA == -1 and kind == "R": pfa()
        if TWARM:
            a("s_lshl_b32 s38, s3, 21")
            a("s_load_dword s53, s[14:15], s38")
            a("s_cmp_eq_u32 s3, 7")
            a("s_cbranch_scc0 AB_TW_%s" % kind)
            for p in ("s[8:9]", "s[10:11]", "s[76:77]", "s[78:79]", "s[96:97]", "s[100:101]"): a("s_load_dword s53, %s, 0" % p)
            a("s_mov_b32 s38, %d" % (16 * MB))
            a("s_load_dword s53, s[14:15], s38")
            a.label("AB_TW_%s" % kind)
        if SWARM:
            a("s_lshl_b32 s38, s2, 3")
            a("s_add_u32 s38, s38, s3")
            a("s_mul_i32 s38, s38, 896")
            a("s_add_u32 s90, s8, s38"); a("s_addc_u32 s91, s9, 0")
            a("s_add_u32 s92, s10, s38"); a("s_addc_u32 s93, s11, 0")
            for i in range(7):
                a("s_load_dword s53, s[90:91], %d" % (128 * i))
                a("s_load_dword s53, s[92:93], %d" % (128 * i))
        if not PP: ffn_setup()
        if PFS == -1 and (P or PFR):
            a("s_and_b32 s38, s18, 7")
            a("s_lshl_b32 s38, s38, 3")
            a("s_add_u32 s38, s38, s3")
            a("s_mul_i32 s38, s38, %d" % (8 * 3584))
            a("s_add_u32 s38, s38, s52")
            a("v_mul_u32_u24 v15, 3584, v0")
            a("s_mov_b64 exec, 0xff")
            vm.issue("buffer_load_dword v4, v15, s[40:43], s38 offen ; dummy", "pf")
            vm.issue("buffer_load_dword v4, v15, s[44:47], s38 offen ; dummy", "pf")
            a("s_mov_b64 exec, -1")
        a("v_and_b32 v24, 15, v0")
        a("v_lshrrev_b32 v25, 4, v0")
        a("v_bfe_u32 v26, v0, 1, 3")
        a("v_xor_b32 v26, v25, v26")
        a("v_lshlrev_b32 v26, 4, v26")
        a("v_lshl_add_u32 v26, v24, 7, v26")
        a("s_lshl_b32 s38, s36, 12")
        if base(0): a("s_add_u32 s38, s38, %d" % base(0))
        a("v_add_u32 v%d, s38, v26" % vAX)
        a("v_bfe_u32 v21, v0, 2, 2")
        a("v_lshl_add_u32 v26, v25, 3, v21")
        a("v_bfe_u32 v27, v0, 4, 1")
        a("v_and_b32 v28, 3, v0")
        a("v_lshlrev_b32 v28, 3, v28")
        a("v_bfe_u32 v30, v0, 3, 1")
        a("v_xor_b32 v23, s37, v30")
        a("v_lshl_add_u32 v23, v23, 1, v27")
        a("v_lshl_add_u32 v29, v23, 5, v28")
        a("v_lshl_add_u32 v29, v26, 7, v29")
        a("v_add_u32 v%d, %d, v29" % (vAW1, 16384 + base(0)))
        a("v_xor_b32 v%d, 32, v%d" % (vAW1 + 1, vAW1))
        a("v_add_u32 v%d, %d, v29" % (vA2, base(8 if P or HP == 2 else 12)))
        a("v_xor_b32 v%d, 32, v%d" % (vA2 + 1, vA2))
        if not P:
            a("v_xor_b32 v23, s37, v27")
            a("v_lshl_add_u32 v29, v23, 5, v28")
            a("v_lshl_add_u32 v29, v26, 6, v29")
            a("v_add_u32 v%d, %d, v29" % (vAM, base(12 if HP == 2 else 8)))
            if PP: a("v_add_u32 v%d, %d, v29" % (vSV, 24576 + base(0)))
        a("v_lshrrev_b32 v25, 5, v0")
        a("s_lshl_b32 s90, s18, 2")
        a("s_add_u32 s90, s90, s36")
        a("s_lshl_b32 s91, s90, 10")
        a("s_mul_i32 s90, s90, 112")
        a("s_add_u32 s90, s90, s58")
        a("s_lshr_b32 s38, s52, 5")
        a("s_add_u32 s95, s90, s38")
        a("s_lshr_b32 s38, s97, 5")
        a("s_add_u32 s58, s90, s38")
        a("s_lshl_b32 s38, s37, 1")
        a("s_add_u32 s58, s58, %s" % ("s38" if P or HP == 1 else "s37"))
        a("s_lshl_b32 s58, s58, 10")
        a("s_add_u32 s95, s95, %s" % ("s38" if P or HP == 2 else "s37"))
        a("s_lshl_b32 s95, s95, 10")
        if PP:
            a("s_add_u32 s96, s90, s37")
            a("s_lshl_b32 s96, s96, 10")
        elif not P:
            a("v_and_b32 v29, 15, v0")
            a("v_lshlrev_b32 v29, 4, v29")
            a("v_lshl_add_u32 v29, v25, 8, v29")
            a("v_lshl_add_u32 v%d, v27, 16, v29" % vSV)
            a("s_lshl_b32 s38, s54, 1")
            a("s_add_u32 s38, s38, s55")
            a("s_sub_u32 s38, s38, 1")
            a("s_lshl_b32 s38, s38, 18")
            a("s_add_u32 s96, s91, s38")
            a("s_lshl_b32 s38, s37, 17")
            a("s_add_u32 s96, s96, s38")
            a("s_add_u32 s96, s96, %s" % hx(VF))
        a("s_cmp_lt_u32 s19, 8")
        a("s_cselect_b32 s92, %s, 1.0" % hx(f2u(0.25 * LOG2E)))
        a("s_mov_b32 s93, s92")
        a("s_lshl_b32 s38, s19, 18")
        a("s_add_u32 s91, s91, s38")
        a("s_lshl_b32 s38, s37, 17")
        a("s_add_u32 s91, s91, s38")
        a("s_add_u32 s94, s91, 0x10000")
        def gc():
            o = gc0()
            a("v_mov_b32 v30, v%d" % o); a("v_mov_b32 v31, v%d" % (o + 1))
            srd(a, 28, 14, 0, 17 * MB)
            a("s_lshl_b32 s39, s18, 7")
            a("s_add_u32 s60, s60, s39")
            a("s_lshl_b32 s60, s60, 3")
            a("s_add_u32 s60, s60, %s" % hx(GG))
            a("v_mov_b32 v29, 0")
        def gst():
            a("s_mov_b32 exec_lo, 0")
            a("s_mov_b32 exec_hi, 0x80000000")
            vm.issue("buffer_store_dwordx2 v[30:31], v29, s[28:31], s60 offen%s" % SC, "gst")
            a("s_mov_b64 exec, -1")
        T = [[3], [0, 1], [2, 3]] if P else [[0, 1], [2, 3], [0]] if HP == 2 else [[0, 1], [2], [0, 1]]
        ALT = [2 if ALTP else None, None, None] if P else [None, None, 1 if ALTR else None] if HP == 2 else [None, 3 if ALTR else None, None]
        DIST = [2, D2, D2] if P else [2, D2, 4] if HP == 2 else [2, 4, D2]
        def ph(g): return g // 32
        def stage(g): return g // 4 if g < 32 else 8 + (g - 32) // 8
        def first(g): return g % 4 == 0 if g < 32 else g % 8 == 0
        def wf(g, n, f):
            S = g // 2; nt = len(T[ph(g)])
            nb = 2 if nt == 2 else (4 if ph(g) == 0 else 3)
            if not P and HP == 1 and ph(g) == 2: S += 1
            return WF + 8 * nt * ((S if nb == 2 else S % 16) % nb) + 8 * n + 4 * f
        def wregs(g): return set(r for n in range(len(T[ph(g)])) for r in range(wf(g, n, 0), wf(g, n, 0) + 8))
        def reads(g):
            s = stage(g); p = ph(g); L = []
            if p == 0: R = [vAX, vAW1, vAW1 + 1] + ([vSV] if PP else [])
            elif p == HP and not P: R = [vAM]
            else: R = [vA2, vA2 + 1]
            if first(g) and s not in (0, 8) and not (s == 12 and not P):
                d = base(s) - base(s - 1)
                for r in R: L.append(("s", "v_add_u32 v%d, %s, v%d" % (r, hx(d), r), None))
            ks = g % 4
            if p == 0:
                if ks == 2: L.append(("s", "v_xor_b32 v%d, 64, v%d" % (vT, vAX), None))
                L.append(("l", "ds_read_b128 %s, v%d offset:%d" % (vr(X + 4 * g, 4), vT if ks >= 2 else vAX, (ks % 2) * 2048), g))
            if g % 2: return L
            c = 0 if p == 0 else (g % 8) // 4
            for n in range(len(T[p])):
                for f in range(2):
                    if p == 0 and n == 1 and PP: ad, off, rb_ = vSV, f * 4096, 64
                    elif p == 0: ad, off, rb_ = vAW1 + f, n * 8192, 128
                    elif R[0] == vAM: ad, off, rb_ = vAM, c * 8192 + f * 4096, 64
                    else: ad, off, rb_ = vA2 + n, c * 16384 + f * 8192, 128
                    for j in range(2):
                        L.append(("l", "ds_read_b64_tr_b16 %s, v%d offset:%d" % (vr(wf(g, n, f) + 2 * j, 2), ad, off + (16 * ks + 4 * j) * rb_), (g, 1) if (n == 1 and SPLITW) else g))
            return L
        def mfmas(g):
            L = []
            x = vr(X + 4 * (g % 32), 4); h = g % 2
            for n, ac in enumerate(T[ph(g)]):
                for f in range(2):
                    w = vr(wf(g, n, f), 4)
                    if g < 32 and n == 1 and not PP: d = vr(SET[ac] + 8 * h + 4 * f, 4); A, B = x, w
                    else: d = vr(SET[ac] + 8 * f + 4 * h, 4); A, B = w, x
                    L.append("v_mfma_f32_16x16x32_bf16 %s, %s, %s, %s" % (d, A, B, "0" if g % 32 < 2 else d))
            return L
        def qkv_epi(n):
            b = SET[T[0][n]]; L = []
            if n == 0:
                for i in range(16): L.append(("s", "v_mul_f32 v%d, s92, v%d" % (b + i, b + i), None))
            for i in range(8): L.append(("s", "v_cvt_pk_bf16_f32 v%d, v%d, v%d" % (b + i, b + 2 * i, b + 2 * i + 1), None))
            for i in (0, 1, 4, 5): L.append(("s", "v_permlane16_swap_b32 v%d, v%d" % (b + i, b + i + 2), None))
            if n == 0:
                L.append(("v", "buffer_store_dwordx4 %s, v1, s[28:31], s91 offen%s" % (vr(b, 4), SC), "qkv"))
                L.append(("v", "buffer_store_dwordx4 %s, v1, s[28:31], s94 offen%s" % (vr(b + 4, 4), SC), "qkv"))
            else:
                for j in range(2):
                    L.append(("v", "buffer_store_dwordx4 %s, v%d, s[28:31], s96 offen offset:%d%s" % (vr(b + 4 * j, 4), vSV, j * 512, SC), "qkv"))
            return L
        def silu(G, Tm, so, off, tag, pk=True):
            U = G + 8; L = []
            def op(o, d, x, y):
                if pk:
                    for i in range(4): L.append("v_pk_%s_f32 %s, %s, %s" % (o, vr(d + 2 * i, 2), vr(x + 2 * i, 2), y if isinstance(y, str) else vr(y + 2 * i, 2)))
                else:
                    for i in range(8): L.append("v_%s_f32 v%d, %s, v%d" % (o, d + i, {"s[92:93]": "s92", "s[12:13]": "1.0"}.get(y, None) or "v%d" % (y + i), x + i))
            op("mul", Tm, G, "s[92:93]")
            for i in range(8): L.append("v_exp_f32 v%d, v%d" % (Tm + i, Tm + i))
            op("mul", G, G, U)
            op("add", Tm, Tm, "s[12:13]")
            for i in range(8): L.append("v_rcp_f32 v%d, v%d" % (Tm + i, Tm + i))
            L.append("s_nop 0")
            op("mul", G, G, Tm)
            for i in range(4): L.append("v_cvt_pk_bf16_f32 v%d, v%d, v%d" % (G + i, G + 2 * i, G + 2 * i + 1))
            L.append("s_nop 0")
            for i in range(2): L.append("v_permlane16_swap_b32 v%d, v%d" % (G + i, G + i + 2))
            L = [("s", t, None) for t in L]
            L.append(("v", "buffer_store_dwordx4 %s, v1, s[32:35], %s offen offset:%d%s" % (vr(G, 4), so, off, SC), tag))
            return L
        def consts():
            a("s_mov_b32 s92, %s" % hx(f2u(-LOG2E))); a("s_mov_b32 s93, s92")
            a("s_mov_b32 s12, 1.0"); a("s_mov_b32 s13, 1.0")
            srd(a, 32, 14, HF, 7 * MB)
        ep1 = []
        if PP: ep1 = qkv_epi(0) + [("f", consts, None)] + silu(SET[T[0][1]], 56, "s96", 0, "h1", PK)
        else:
            for n in reversed(range(len(T[0]))): ep1 += qkv_epi(n)
        ep0 = [("f", lambda: hook(kind, vm, "early"), None), ("f", gst, None)]
        if "noearly" in XP: ep0 = []
        ep1b = [("f", consts, None)] if not PP else []
        if "noqst" in XP: ep1 = [x for x in ep1 if x[0] != "v"]
        if "noep1" in XP: ep1 = [x for x in ep1 if x[0] == "v"]
        if "plainq" in XP: ep1 = [(k, t.replace(SC, ""), g) if k == "v" else (k, t, g) for (k, t, g) in ep1]
        ep2 = []
        if ALT[1] is not None:
            for i in range(16): ep2.append(("s", "v_add_f32 v%d, v%d, v%d" % (SET[T[1][0]] + i, SET[T[1][0]] + i, SET[ALT[1]] + i), None))
        for n, ac in enumerate(T[1]): ep2 += silu(SET[ac], E if P or HP == 1 else 56, "s95", n * 1024, "h1", PK)
        if H1M: ep2 = [x for x in ep2 if x[0] != "v"] + [x for x in ep2 if x[0] == "v"]
        if "noep2" in XP: ep2 = []
        if "ep2nost" in XP: ep2 = [x for x in ep2 if x[0] != "v"]
        islot = {}
        last = -1
        for g in range(96):
            want = g - DIST[ph(g)]
            if g % 2 == 0:
                for g2 in range(g - 1, max(-1, g - 12), -1):
                    if wregs(g) & wregs(g2): want = max(want, g2 + 1); break
            want = max(want, last)
            assert want < g or g == 0, g
            islot[g] = want; last = want
        syncs = {islot[g]: stage(g) for g in range(1, 96) if first(g) and not (PAIRS and stage(g) > 8 and stage(g) % 2)}
        def barrier(s):
            if PAIRS and s >= 8: vm.wait(("d", s + 1), *(("qkv", "gst", "sent") if s == PUBS[kind] else ()))
            elif s == PUBS[kind]: vm.wait(("d", s), "qkv", "gst", "sent")
            elif s == BASES[kind]: vm.wait(("d", s), "gst", "sent")
            else: vm.wait(("d", s))
            if s == (14 if PAIRS else 15): a("s_waitcnt lgkmcnt(0)"); lg.ops = []
            a("s_barrier")
            gen1.jit(a)
            if s == BASES[kind]: hook(kind, vm, "base")
            if s == PUBS[kind]: hook(kind, vm, "pub")
        d1(1)
        hook(kind, vm, "setup")
        d1(2)
        if GCG < 0: gc()
        d1(3)
        barrier(0)
        if SWARM or IWARM: a("s_waitcnt lgkmcnt(0)")
        gen1.stamp(a, 2)
        for g in range(96):
            if islot[g] < 0:
                for it in reads(g): emit(it)
        stq = []; nst = [0]; late = []
        pend = []
        for t in range(2, 16):
            if after(t) == 0 and not (t == 8 and d8 >= 0): pend += dma(t)
            if t == d8 and after(t) == 0: pend += dma(8)
        for g in range(96):
            O = []
            O += late; late = []
            for g2 in range(g + 1, 96):
                if islot[g2] == g:
                    Lr = reads(g2)
                    if g2 - g >= 2:
                        late += [it for it in Lr if it[2] == (g2, 1)]
                        Lr = [it for it in Lr if it[2] != (g2, 1)]
                    O += Lr
            bar = syncs.get(g)
            if bar is not None:
                assert not any(it[2] in (("d", bar), ("d", bar + 1) if PAIRS and bar >= 8 else None) for grp in pend for it in grp), (g, bar)
                for t in range(2, 16):
                    if after(t) == bar and not (t == 8 and d8 >= 0): pend += dma(t)
                    if t == d8 and after(t) == bar: pend += dma(8)
            if pend and (g < 32 or g % 2 == 0 or len(pend) > (5 if PAIRS else 4)):
                for _ in range(2 if len(pend) > 3 and g < 32 else 1): O += pend.pop(0)
            if g == GCG: O.append(("f", gc, None))
            if ep0 and g >= EARLY[kind]: O.append(ep0.pop(0))
            if g >= 34 and stq and g >= nst[0] and None not in stq[:2]:
                O += stq.pop(0); nst[0] = g + STG
            if g >= 34 and ep1:
                n = EPR + 2 if P or HP == 2 else EP1R
                for it in ep1[:n]:
                    if it[0] == "v": stq.append([it])
                    elif it[0] == "s" and it[1].startswith("s_add_u32 s9"): stq.append([it]) ; stq.append(None)
                    else: O.append(it)
                ep1 = ep1[n:]
                i = 0
                while i < len(stq):
                    if stq[i] is None and i + 1 < len(stq):
                        stq[i - 1] = stq[i - 1] + stq[i + 1]
                        del stq[i:i + 2]
                    else: i += 1
            elif stq: pass
            elif g >= max(34, EARLY[kind]) and ep1b and g >= nst[0]: O.append(ep1b.pop(0)); nst[0] = g + 2
            elif g >= (67 if P or HP == 1 else 66) and ep2:
                n = EPR if P else EPRR
                O += ep2[:n]; ep2 = ep2[n:]
                O += hook(kind, vm, (g, CH if P else CHR)) or []
            elif g >= 34 and not ep1b:
                O += hook(kind, vm, (g, 6 if g < 64 else 10)) or []
            if g < 30: O += hook(kind, vm, (g, 0)) or []
            if g == PFB[kind] or (P and g == PFS):
                def pfb(o="s52" if (P and g == PFS) else "s97"):
                    a("s_and_b32 s48, s18, 7")
                    a("s_lshl_b32 s48, s48, 3")
                    a("s_add_u32 s48, s48, s3")
                    a("s_mul_i32 s48, s48, %d" % (8 * 3584))
                    a("s_add_u32 s48, s48, %s" % o)
                    a("v_mul_u32_u24 v15, 3584, v0")
                    a("s_mov_b64 exec, 0xff")
                    vm.issue("buffer_load_dword v%d, v%d, s[40:43], s48 offen ; dummy" % (4, 15), "pf")
                    vm.issue("buffer_load_dword v%d, v%d, s[44:47], s48 offen ; dummy" % (4, 15), "pf")
                    a("s_mov_b64 exec, -1")
                assert not pend or pend[0][0][1].startswith("s_add_u32 m0, s56"), (kind, g, pend[0][0])
                O.append(("f", pfb, None))
            if g == WARMG: O.append(("f", lambda: hook(kind, vm, "warm"), None))
            if bar == BASES[kind]: assert not ep0
            if BASES[kind] > 0 and g == LDG[kind] - 2 * PLD: O.append(("f", lambda: hook(kind, vm, "bpoll"), None))
            if g == LDG[kind] - PLD: O.append(("f", lambda: hook(kind, vm, "poll"), None))
            if g == LDG[kind]: assert not ep2 or (not P and HP == 2)
            if g == LDG[kind]: O.append(("f", lambda: hook(kind, vm, "ld"), None))
            if bar == PUBS[kind]: assert not ep1 and not stq and not ep1b and not any(it[0] == "f" for it in O), (kind, g)
            if g == 63: assert not ep1 and not stq and not ep1b
            M = mfmas(g)
            if "no2b" in XP and g >= 66: M = M[:1]; O = [it for it in O if it[0] != "l"]
            pr = PRIO if g >= PRG else 0
            if pr: a("s_setprio 1")
            lg.wait(g)
            assert not (gen1.STAMP and "g%d" % g in gen1.SMAP and 10 < g < 30), "stamp would clobber the set-up temporaries"
            if g % 5 == 3: gen1.jit(a)
            gen1.stamp(a, "g%d" % g)
            n = len(M); per = max(1, -(-len(O) // n))
            if pr == 2:
                for m in M: a(m)
                a("s_setprio 0")
                if bar is not None: barrier(bar)
                for it in O: emit(it)
                continue
            for i, m in enumerate(M):
                if i == 2: lg.wait((g, 1))
                if pr and i: a("s_setprio 1")
                a(m)
                if pr: a("s_setprio 0")
                if i == 0 and bar is not None: barrier(bar)
                for it in O[i * per:(i + 1) * per]: emit(it)
        assert not ep1 and not ep2 and not pend
        gen1.stamp(a, 4)
        hook(kind, vm, "pre_h")
        a("s_nop 10")
        L0 = silu(SET[T[2][0]], WF, "s58", 0, "h")
        if len(T[2]) == 2:
            L1 = silu(SET[T[2][1]], WF + 8, "s58", 1024, "h")
            for it in L0[:12] + L1[:12] + L0[12:28]: emit(it)
            hook(kind, vm, "mid_h")
            for it in L1[12:28] + L0[29:] + L1[29:]: emit(it)
        else:
            if ALT[2] is not None:
                b = SET[T[2][0]]; c = SET[ALT[2]]
                for i in range(8): a("v_pk_add_f32 %s, %s, %s" % (vr(b + 2 * i, 2), vr(b + 2 * i, 2), vr(c + 2 * i, 2)))
            for it in L0[:28]: emit(it)
            hook(kind, vm, "mid_h")
            for it in L0[28:]: emit(it)
            a("v_mov_b32 v4, 0x1000")
            vm.issue("buffer_store_dword v4, v4, s[84:87], 0 offen", "h")
        tail(kind, vm)
    stream("R")
    a.label("AB_P")
    stream("P")
```
